```python
import torch

def _softmax(x, axis=-1):
    return torch.softmax(x, dim=axis)

def _gelu(x):
    return torch.nn.functional.gelu(x, approximate='tanh')

def _silu(x):
    return torch.nn.functional.silu(x)

def _sigmoid(x):
    return torch.sigmoid(x)

def _layernorm(x, axis=-1, eps=1e-05):
    m = x.mean(dim=axis, keepdim=True)
    v = x.var(dim=axis, keepdim=True, unbiased=False)
    return (x - m) / torch.sqrt(v + eps)

def _scatter_add(tgt, idx, src, axis=0):
    return tgt.clone().index_add_(axis, idx, src)

def _segment_sum(src, seg, n):
    out = torch.zeros((n,) + src.shape[1:], dtype=src.dtype)
    return out.index_add_(0, seg, src)

def _pad(x, pw):
    flat = tuple((v for pair in reversed(pw) for v in pair))
    return torch.nn.functional.pad(x, flat)
kernel_name = 'adaLN_cond__ssm_conv_s4__mixer_s_mlp__prompt'

def setup_inputs():

    _w = lambda a: (lambda t: t.to(torch.bfloat16) if t.is_floating_point() else t)(torch.as_tensor(a))

    def _A_setup():
        B, L, D, N = (1, 2048, 512, 128)
        A_re = -(lambda _x: torch.exp(torch.as_tensor(_x)))((lambda *s: torch.randn(*s, dtype=torch.bfloat16) * 3.2)(D, N))
        A_im = torch.pi * (lambda *s: torch.randn(*s, dtype=torch.bfloat16) * 0.1)(D, N)
        B_re = (lambda *s: torch.randn(*s, dtype=torch.bfloat16) * 0.2)(D, N)
        B_im = (lambda *s: torch.randn(*s, dtype=torch.bfloat16) * 0.2)(D, N)
        C_re = (lambda *s: torch.randn(*s, dtype=torch.bfloat16) * 0.2)(D, N)
        C_im = (lambda *s: torch.randn(*s, dtype=torch.bfloat16) * 0.2)(D, N)
        log_dt = (lambda *s: torch.randn(*s, dtype=torch.bfloat16) * 0.1)(D) * 0.5 - 4.0
        Dskip = (lambda *s: torch.randn(*s, dtype=torch.bfloat16) * 0.1)(D)
        return {'u': _w((lambda *s: torch.randn(*s, dtype=torch.bfloat16) * 0.05)(B, L, D)), 'A_re': _w(A_re), 'A_im': _w(A_im), 'B_re': _w(B_re), 'B_im': _w(B_im), 'C_re': _w(C_re), 'C_im': _w(C_im), 'log_dt': _w(log_dt), 'Dskip': _w(Dskip)}
    _A_in = _A_setup()

    def _B_setup():
        B, S, D, F = (1, 2048, 512, 1376)
        return {'x': _w((lambda *s: torch.randn(*s, dtype=torch.bfloat16) * 0.05)(B, S, D)), 'w1': _w((lambda *s: torch.randn(*s, dtype=torch.bfloat16) * 3.2)(D, D) * D ** (-0.5)), 'w2': _w((lambda *s: torch.randn(*s, dtype=torch.bfloat16) * 3.2)(D, D) * D ** (-0.5)), 'w3': _w((lambda *s: torch.randn(*s, dtype=torch.bfloat16) * 3.2)(D, F) * D ** (-0.5)), 'w4': _w((lambda *s: torch.randn(*s, dtype=torch.bfloat16) * 1.6)(F, D) * F ** (-0.5))}
    _B_in = _B_setup()
    return {'A_u': _A_in['u'], 'A_A_re': _A_in['A_re'], 'A_A_im': _A_in['A_im'], 'A_B_re': _A_in['B_re'], 'A_B_im': _A_in['B_im'], 'A_C_re': _A_in['C_re'], 'A_C_im': _A_in['C_im'], 'A_log_dt': _A_in['log_dt'], 'A_Dskip': _A_in['Dskip'], 'B_x': _B_in['x'], 'B_w1': _B_in['w1'], 'B_w2': _B_in['w2'], 'B_w3': _B_in['w3'], 'B_w4': _B_in['w4'], 'c': _w((lambda *s: torch.randn(*s, dtype=torch.bfloat16) * 0.1)(1, 512) * 8.0), 'w_mod': _w((lambda *s: torch.randn(*s, dtype=torch.bfloat16) * 0.1)(512, 6 * 512) * 512 ** (-0.5) * 8.0)}

def reference(A_u, A_A_re, A_A_im, A_B_re, A_B_im, A_C_re, A_C_im, A_log_dt, A_Dskip, B_x, B_w1, B_w2, B_w3, B_w4, c, w_mod):

    def _A_ref(u, A_re, A_im, B_re, B_im, C_re, C_im, log_dt, Dskip):
        Bsz, L, D = u.shape
        dt = torch.exp(log_dt)[:, None]
        A = A_re + 1j * A_im
        Bc = B_re + 1j * B_im
        Cc = C_re + 1j * C_im
        logdA = dt * A
        dB = dt * Bc
        l = (lambda x, dt: x.to(dt))(torch.arange(L), A_re.dtype)
        P = torch.exp(logdA[:, :, None] * l[None, None, :])
        K = torch.einsum('dn,dnl,dn->dl', Cc, P, dB).real
        L2 = 2 * L
        Kp = _pad(K, ((0, 0), (0, L)))
        up = (lambda x, *d: x.permute(*d))(u, 0, 2, 1)
        up = _pad(up, ((0, 0), (0, 0), (0, L)))
        Kf = (lambda x, axes=(-2, -1): torch.fft.rfft2(x.float(), dim=axes))(Kp[:, None, :], axes=(-2, -1))
        Uf = (lambda x, axes=(-2, -1): torch.fft.rfft2(x.float(), dim=axes))(up[:, :, None, :], axes=(-2, -1))
        Yf = Uf * Kf[None, :, :, :]
        y = (lambda x, s, axes=(-2, -1): torch.fft.irfft2(x, s=s, dim=axes).to(torch.bfloat16))(Yf, (1, L2), axes=(-2, -1))[:, :, 0, :L]
        y = (lambda x, *d: x.permute(*d))(y, 0, 2, 1) + u * Dskip[None, None, :]
        return y

    def _B_ref(x, w1, w2, w3, w4):
        B, S, D = x.shape
        h = _gelu(_layernorm(x, axis=-1) @ w1)
        c = D // 4
        g0 = _pad(h[:, :, 0 * c:1 * c], ((0, 0), (1, 0), (0, 0)))[:, :S, :]
        g1 = _pad(h[:, :, 1 * c:2 * c], ((0, 0), (0, 1), (0, 0)))[:, 1:, :]
        g2 = _pad(h[:, :, 2 * c:3 * c], ((0, 0), (2, 0), (0, 0)))[:, :S, :]
        g3 = _pad(h[:, :, 3 * c:], ((0, 0), (0, 2), (0, 0)))[:, 2:, :]
        hs = torch.concatenate([g0, g1, g2, g3], axis=-1) @ w2
        x1 = x + hs
        h2 = _gelu(_layernorm(x1, axis=-1) @ w3) @ w4
        return x1 + h2
    x = A_u
    mod = (_silu(c) @ w_mod).reshape(c.shape[0], 6, 1, -1)
    sa, ca, ga, sb, cb, gb = (mod[:, 0].clone(), mod[:, 1].clone(), mod[:, 2].clone(), mod[:, 3].clone(), mod[:, 4].clone(), mod[:, 5].clone())
    h = _layernorm(x, axis=-1) * (1 + ca) + sa
    x = x + ga * _A_ref(h, A_A_re, A_A_im, A_B_re, A_B_im, A_C_re, A_C_im, A_log_dt, A_Dskip)
    h = _layernorm(x, axis=-1) * (1 + cb) + sb
    x = x + gb * _B_ref(h, B_w1, B_w2, B_w3, B_w4)
    return x
```

```python
import re

TRANS = ('v_exp_f32', 'v_log_f32', 'v_rcp_f32', 'v_rsq_f32', 'v_sqrt_f32', 'v_sin_f32', 'v_cos_f32',
         'v_rcp_iflag_f32')
REG_RE = re.compile(r'^(-|\|)?(?:abs\()?([vsa])(\d+|\[(\d+):(\d+)\])\)?\|?$')


def parse_reg(tok):
    tok = tok.strip()
    if tok in ('vcc', 'exec', 'm0', 'scc'):
        return (tok, 0, 1 if tok in ('vcc', 'exec') else 0)
    if tok in ('vcc_lo', 'vcc_hi'):
        return ('vcc', 0 if tok == 'vcc_lo' else 1, 0 if tok == 'vcc_lo' else 1)
    if tok in ('exec_lo', 'exec_hi'):
        return ('exec', 0 if tok == 'exec_lo' else 1, 0 if tok == 'exec_lo' else 1)
    m = REG_RE.match(tok)
    if not m:
        return None
    k = m.group(2)
    if m.group(4) is not None:
        return (k, int(m.group(4)), int(m.group(5)))
    return (k, int(m.group(3)), int(m.group(3)))


def regset(r):
    if r is None:
        return set()
    return {(r[0], i) for i in range(r[1], r[2] + 1)}


class Ins:
    __slots__ = ('text', 'op', 'kind', 'w', 'r', 'label', 'target', 'ops', 'mods', 'srcc', 'dst', 'ab', 'passes',
                 'dpp', 'lds_dma', 'note')

    def __init__(self, text):
        self.text = text
        self.label = None
        self.target = None
        self.note = None
        t = text.split(';')[0].strip()
        self.w = set(); self.r = set(); self.srcc = set(); self.dst = set(); self.ab = set()
        self.passes = 0; self.dpp = False; self.lds_dma = False
        self.ops = []; self.mods = ''
        if t.endswith(':'):
            self.kind = 'label'; self.label = t[:-1]; self.op = ''
            return
        if t.startswith('.') or t == '':
            self.kind = 'dir'; self.op = ''
            return
        sp = t.split(None, 1)
        self.op = op = sp[0]
        rest = sp[1] if len(sp) > 1 else ''
        parts = []
        depth = 0; cur = ''
        for ch in rest:
            if ch in '[(':
                depth += 1
            if ch in '])':
                depth -= 1
            if ch == ',' and depth == 0:
                parts.append(cur.strip()); cur = ''
            else:
                cur += ch
        if cur.strip():
            parts.append(cur.strip())
        if parts:
            last = parts[-1].split(None, 1)
            parts[-1] = last[0]
            self.mods = last[1] if len(last) > 1 else ''
        self.ops = parts
        regs = [parse_reg(p) for p in parts]
        base = op
        for suf in ('_e32', '_e64', '_dpp', '_sdwa'):
            if base.endswith(suf):
                base = base[:-len(suf)]
        self.dpp = op.endswith('_dpp') or 'row_' in self.mods or 'quad_perm' in self.mods or 'wave_' in self.mods
        if op.startswith('v_mfma'):
            self.kind = 'mfma'
            self.passes = 8 if '32x32' in op else 4
            self.dst = regset(regs[0]); self.w = set(self.dst)
            self.ab = regset(regs[1]) | regset(regs[2])
            self.srcc = regset(regs[3])
            self.r = self.ab | self.srcc
        elif op.startswith('v_'):
            self.kind = 'trans' if base in TRANS else 'valu'
            if base.startswith('v_cmp'):
                self.w = regset(regs[0])
                for x in regs[1:]:
                    self.r |= regset(x)
            elif base in ('v_permlane16_swap_b32', 'v_permlane32_swap_b32', 'v_swap_b32'):
                self.w = regset(regs[0]) | regset(regs[1]); self.r = set(self.w)
            elif base in ('v_add_co_u32', 'v_sub_co_u32', 'v_addc_co_u32', 'v_subb_co_u32'):
                self.w = regset(regs[0]) | regset(regs[1])
                for x in regs[2:]:
                    self.r |= regset(x)
            else:
                self.w = regset(regs[0])
                for x in regs[1:]:
                    self.r |= regset(x)
                if base.startswith(('v_fmac', 'v_dot2c', 'v_pk_fmac', 'v_mac', 'v_writelane')):
                    self.r |= regset(regs[0])
                if base == 'v_cndmask_b32' and len(parts) == 3:
                    self.r |= regset(('vcc', 0, 1))
                if self.dpp:
                    self.r |= regset(regs[0])
        elif op.startswith('ds_'):
            self.kind = 'ds'
            if op.startswith(('ds_read', 'ds_bpermute', 'ds_permute', 'ds_swizzle')):
                self.w = regset(regs[0])
                for x in regs[1:]:
                    self.r |= regset(x)
            else:
                for x in regs:
                    self.r |= regset(x)
        elif op.startswith(('buffer_', 'global_')):
            self.kind = 'vmem'
            allm = ' ' + self.mods + ' '
            if op.startswith('buffer_load'):
                if ' lds ' in allm:
                    self.lds_dma = True
                    for x in regs:
                        self.r |= regset(x)
                    self.r |= {('m0', 0)}
                else:
                    self.w = regset(regs[0])
                    for x in regs[1:]:
                        self.r |= regset(x)
                    if 'd16' in op:
                        self.r |= regset(regs[0])
            elif op.startswith('global_load_lds'):
                self.lds_dma = True
                for x in regs:
                    self.r |= regset(x)
                self.r |= {('m0', 0)}
            elif op.startswith('global_load'):
                self.w = regset(regs[0])
                for x in regs[1:]:
                    self.r |= regset(x)
            elif 'atomic' in op:
                for x in regs:
                    self.r |= regset(x)
                if ' sc0 ' in allm:
                    self.w = regset(regs[0])
            else:
                for x in regs:
                    self.r |= regset(x)
        elif op.startswith(('s_load', 's_buffer_load', 's_memtime', 's_memrealtime')):
            self.kind = 'smem'
            self.w = regset(regs[0])
            for x in regs[1:]:
                self.r |= regset(x)
        elif op.startswith(('s_cbranch', 's_branch')):
            self.kind = 'branch'
            self.target = parts[0]
            if 'vcc' in op:
                self.r = regset(('vcc', 0, 1))
            if 'exec' in op:
                self.r = regset(('exec', 0, 1))
        elif op in ('s_waitcnt', 's_barrier', 's_nop', 's_endpgm', 's_sleep', 's_setprio', 's_sethalt'):
            self.kind = 'ctl'
        elif op.startswith('s_'):
            self.kind = 'salu'
            if op.startswith('s_cmp') or op.startswith('s_bitcmp'):
                for x in regs:
                    self.r |= regset(x)
            else:
                self.w = regset(regs[0])
                for x in regs[1:]:
                    self.r |= regset(x)
                if 'saveexec' in op:
                    self.w |= regset(('exec', 0, 1)); self.r |= regset(('exec', 0, 1))
                if op.startswith(('s_addk', 's_mulk')):
                    self.r |= regset(regs[0])
        else:
            raise ValueError('unknown instruction: ' + text)
        if self.kind in ('valu', 'trans', 'mfma', 'vmem', 'ds'):
            pass

    def states(self):
        if self.kind in ('label', 'dir'):
            return 0
        if self.op == 's_nop':
            return int(self.ops[0], 0) + 1
        return 1


def vg(s):
    return {x for x in s if x[0] in ('v', 'a')}


def sg(s):
    return {x for x in s if x[0] in ('s', 'vcc', 'exec')}


def need(p, c):
    n = 0
    isvalu = lambda i: i.kind in ('valu', 'trans')
    if isvalu(p):
        pw = vg(p.w)
        if c.kind == 'mfma' and pw & c.r:
            n = max(n, 2)
        if isvalu(c):
            if p.kind == 'trans' and c.kind != 'trans' and pw & c.r:
                n = max(n, 1)
            if c.dpp and pw & c.r:
                n = max(n, 2)
            if c.op.startswith('v_permlane') and pw & c.r:
                n = max(n, 2)
            if c.op.startswith(('v_readlane', 'v_readfirstlane')) and pw & c.r:
                n = max(n, 1)
        ps = sg(p.w)
        if ps:
            if isvalu(c) and ps & c.r:
                n = max(n, 2)
            if c.kind == 'vmem' and ps & c.r:
                n = max(n, 5)
            if c.kind == 'mfma' and ('exec', 0) in ps:
                n = max(n, 4)
    if p.kind == 'mfma':
        big = 12 if p.passes == 8 else 8
        if c.kind == 'mfma':
            if p.dst & c.ab:
                n = max(n, big)
            if p.dst & c.srcc:
                if not (p.dst == c.srcc and p.passes == c.passes):
                    n = max(n, 10 if p.passes == 8 else 6)
            if p.dst & c.dst and not (p.dst & c.srcc):
                n = max(n, 10 if p.passes == 8 else 6) if p.passes != c.passes else n
        elif isvalu(c):
            if p.dst & (vg(c.r) | vg(c.w)):
                n = max(n, big)
            if p.srcc & vg(c.w):
                n = max(n, 7 if p.passes == 8 else 3)
        elif c.kind in ('vmem', 'ds'):
            if p.dst & (vg(c.r) | vg(c.w)):
                n = max(n, big)
    if p.kind == 'salu' and ('m0', 0) in p.w and c.lds_dma:
        n = max(n, 1)
    if p.kind == 'vmem' and ('store' in p.op) and ('x4' in p.op or 'x3' in p.op):
        data = vg(p.r)
        if isvalu(c) and data & vg(c.w):
            n = max(n, 2)
        elif c.kind in ('vmem', 'ds', 'mfma') and data & vg(c.w):
            n = max(n, 1)
    return n


MAXW = 14


class Asm:
    def __init__(self):
        self.lines = []
        self.uid = 0

    def __call__(self, s):
        for ln in s.split('\n'):
            ln = ln.strip()
            if ln and not ln.startswith(';'):
                self.lines.append(ln)

    def label(self, name):
        self.lines.append(name + ':')

    def newlabel(self, p='L'):
        self.uid += 1
        return f'{p}_{self.uid}'

    def _cfg(self, ins):
        labels = {i.label: k for k, i in enumerate(ins) if i.kind == 'label'}
        preds = [[] for _ in ins]
        for k, i in enumerate(ins):
            fall = not (i.op in ('s_branch', 's_endpgm'))
            if fall and k + 1 < len(ins):
                preds[k + 1].append(k)
            if i.kind == 'branch' and i.target in labels:
                preds[labels[i.target]].append(k)
        return labels, preds

    def hazard_pass(self):
        ins = [Ins(l) for l in self.lines]
        total = 0
        while True:
            labels, preds = self._cfg(ins)
            fix = None
            changed = False
            out = []
            for k, c in enumerate(ins):
                add = 0
                if c.kind in ('valu', 'trans', 'mfma', 'vmem', 'ds'):
                    stack = [(p, 0) for p in preds[k]]
                    seen = {}
                    while stack:
                        j, d = stack.pop()
                        if d >= MAXW:
                            continue
                        if j in seen and seen[j] <= d:
                            continue
                        seen[j] = d
                        p = ins[j]
                        if p.kind not in ('label', 'dir'):
                            nd = need(p, c)
                            if nd > d:
                                add = max(add, nd - d)
                        d2 = d + p.states()
                        for q in preds[j]:
                            stack.append((q, d2))
                if add:
                    out.append(Ins(f's_nop {add - 1}'))
                    total += add
                    changed = True
                    out.append(c)
                    out.extend(ins[k + 1:])
                    break
                out.append(c)
            ins = out
            if not changed:
                break
        self.lines = [i.text for i in ins]
        return total

    def fast_hazard_pass(self):
        ins = [Ins(l) for l in self.lines]
        labels, preds = self._cfg(ins)
        extra = [0] * len(ins)
        total = 0
        for k, c in enumerate(ins):
            if c.kind not in ('valu', 'trans', 'mfma', 'vmem', 'ds'):
                continue
            add = 0
            stack = [(p, 0) for p in preds[k]]
            seen = {}
            while stack:
                j, d = stack.pop()
                if d >= MAXW:
                    continue
                if j in seen and seen[j] <= d:
                    continue
                seen[j] = d
                p = ins[j]
                if p.kind not in ('label', 'dir'):
                    nd = need(p, c)
                    if nd > d:
                        add = max(add, nd - d)
                d2 = d + p.states() + (extra[j] if j < k else 0)
                for q in preds[j]:
                    stack.append((q, d2))
            extra[k] = add
            total += add
        out = []
        for k, c in enumerate(ins):
            a = extra[k]
            while a > 0:
                n = min(a, 16)
                out.append(f's_nop {n - 1}')
                a -= n
            out.append(c.text)
        self.lines = out
        return total

    def check_waits(self, maxvisit=2):
        ins = [Ins(l) for l in self.lines]
        labels = {i.label: k for k, i in enumerate(ins) if i.kind == 'label'}
        errs = set()
        seen = set()
        stack = [(0, (), (), ())]
        visits = {}
        while stack:
            k, vm, lg, _ = stack.pop()
            while k < len(ins):
                i = ins[k]
                if i.kind == 'label':
                    key = (k, vm, lg)
                    if key in seen:
                        break
                    seen.add(key)
                    visits[k] = visits.get(k, 0) + 1
                    if visits[k] > 40:
                        break
                if i.op == 's_waitcnt':
                    txt = ' '.join(i.ops) + ' ' + i.mods
                    m = re.search(r'vmcnt\((\d+)\)', txt)
                    if m:
                        n = int(m.group(1))
                        vm = vm[len(vm) - n:] if n < len(vm) else vm
                        if n == 0:
                            vm = ()
                    m = re.search(r'lgkmcnt\((\d+)\)', txt)
                    if m:
                        n = int(m.group(1))
                        if n == 0:
                            lg = ()
                        elif not any(x[0] == 'smem' for x in lg):
                            lg = lg[len(lg) - n:] if n < len(lg) else lg
                elif i.kind not in ('label', 'dir'):
                    touch = i.r | i.w
                    for q in (vm, lg):
                        for kind, regs, src in q:
                            if regs & touch:
                                errs.add((k, i.text, src))
                    if i.kind == 'vmem':
                        vm = vm + (('vm', frozenset(i.w), i.text),)
                        if len(vm) > 63:
                            errs.add((k, i.text, 'vmcnt overflow (>63 outstanding)'))
                            vm = vm[-63:]
                    elif i.kind == 'ds':
                        lg = lg + (('ds', frozenset(i.w), i.text),)
                        if len(lg) > 64:
                            lg = lg[-64:]
                    elif i.kind == 'smem':
                        lg = lg + (('smem', frozenset(i.w), i.text),)
                if i.op == 's_endpgm':
                    break
                if i.kind == 'branch':
                    if i.target in labels:
                        if i.op == 's_branch':
                            k = labels[i.target]
                            continue
                        stack.append((labels[i.target], vm, lg, ()))
                k += 1
        return sorted(errs)

    def text(self):
        out = []
        for l in self.lines:
            if l.endswith(':'):
                out.append(l)
            else:
                out.append('    ' + l)
        return '\n'.join(out) + '\n'
```

```python
L_, D_, F_ = 2048, 512, 1376
WS_EPOCH = 0
WS_F2 = 0x400
WS_F3 = 0x800
WS_F4 = 0xC00
WS_F5 = 0x1000
WS_STATS = 0x2000
WS_MODG = 0xA000
WS_X2T = 0x10000
WS_H1 = WS_X2T + 0x200000
WS_X1 = WS_H1 + 0x200000
WS_H3 = WS_X1 + 0x200000
WS_W3S = WS_H3 + 128 * 43 * 1024
WS_W4S = WS_W3S + 86 * 16 * 1024
WS_DBG = WS_W4S + 32 * 43 * 1024
WS_DBG_SIZE = 0x1000000
WS_USED = WS_DBG
```

```python
import sys, os
sys.path.insert(0, os.path.dirname(os.path.abspath(__file__)))
from asmlib import Asm
from layout import *

KNAME = 'adaLN_cond__ssm_conv_s4__mixer_s_mlp__prompt_kernel'
STOP_AFTER = os.environ.get('STOP_AFTER', '')
SPIN_MAX = 20000

sT = 's4'; sWV = 's5'; sX = 's6'; sJ = 's7'
U, WS, OUT = 8, 12, 16
ARE, AIM, BRE, BIM, CRE, CIM = 20, 24, 28, 32, 36, 40
LDT, DSK, CC, WMOD, W1, W2, W3, W4 = 44, 48, 52, 56, 60, 64, 68, 72
sCH0 = 's76'
sRB = 's77'; sCS = 's78'
sA, sB, sC, sD = 's80', 's81', 's82', 's83'
sSPIN = 's84'
sCHL = 's85'; sQ = 's86'
sE, sF = 's87', 's88'
sP0 = 90
sP1 = 92
sP2 = 94
sP3 = 96


def srd(n):
    return f's[{n}:{n + 3}]'


def vr(a, n=1):
    return f'v{a}' if n == 1 else f'v[{a}:{a + n - 1}]'


L_G = 0; G_ROW = 544; G_CH = 48 * G_ROW
L_E = 2 * G_CH; E_CH = 16 * G_ROW
L_KT = L_E + 2 * E_CH; KT_CH = 4352
L_COPY = L_KT + 2 * KT_CH; CP_R = 4160; CP_CH = 4 * CP_R
L_STG = L_COPY + 2 * CP_CH
L_PART = 0
L_XC = 143360
L_H = L_XC + 8192; H_CH = 4672
L_MISC = L_H + 2 * H_CH
KT_ZERO = 2175; KT_DUMMY = 2174
assert L_STG + 3 * 4096 <= L_XC and L_MISC + 1024 <= 163840

a = Asm()


def bload(dst, n, voff, s, imm=0, soff='0', mods=''):
    op = {1: 'buffer_load_dword', 2: 'buffer_load_dwordx2', 4: 'buffer_load_dwordx4', 'u16': 'buffer_load_ushort'}[n]
    cnt = 1 if n == 'u16' else n
    a(f'{op} {vr(dst, cnt)}, {vr(voff)}, {srd(s)}, {soff} offen' + (f' offset:{imm}' if imm else '') + (' ' + mods if mods else ''))


def bstore(src, n, voff, s, imm=0, soff='0', mods=''):
    op = {1: 'buffer_store_dword', 2: 'buffer_store_dwordx2', 4: 'buffer_store_dwordx4'}[n]
    a(f'{op} {vr(src, n)}, {vr(voff)}, {srd(s)}, {soff} offen' + (f' offset:{imm}' if imm else '') + (' ' + mods if mods else ''))


def dma(n, voff, s, m0, soff='0', mods=''):
    a(f's_mov_b32 m0, {m0}')
    op = {1: 'buffer_load_dword', 4: 'buffer_load_dwordx4'}[n]
    a(f'{op} {vr(voff)}, {srd(s)}, {soff} offen' + (' ' + mods if mods else '') + ' lds')


def cmul(d, x, y):
    a(f'v_pk_mul_f32 {vr(d, 2)}, {vr(x, 2)}, {vr(y, 2)} op_sel:[0,0] op_sel_hi:[0,1]')
    a(f'v_pk_fma_f32 {vr(d, 2)}, {vr(x, 2)}, {vr(y, 2)}, {vr(d, 2)} op_sel:[1,1,0] op_sel_hi:[1,0,1] neg_lo:[1,0,0]')


def fconst(x):
    import struct
    return hex(struct.unpack('<I', struct.pack('<f', x))[0])


def prologue():
    a(f's_cmp_ge_u32 s2, 256')
    a(f's_cbranch_scc1 L_END')
    ptrs = [(U, 0), (ARE, 8), (AIM, 16), (BRE, 24), (BIM, 32), (CRE, 40), (CIM, 48), (LDT, 56), (DSK, 64),
            (W1, 80), (W2, 88), (W3, 96), (W4, 104), (CC, 112), (WMOD, 120), (OUT, 128), (WS, 144)]
    for r, off in ptrs:
        a(f's_load_dwordx2 s[{r}:{r + 1}], s[0:1], {off}')
    sizes = {U: 2 * 1024 * 1024, ARE: 131072, AIM: 131072, BRE: 131072, BIM: 131072, CRE: 131072, CIM: 131072,
             LDT: 1024, DSK: 1024, W1: 524288, W2: 524288, W3: 512 * F_ * 2, W4: 512 * F_ * 2, CC: 1024,
             WMOD: 512 * 3072 * 2, OUT: 2 * 1024 * 1024, WS: WS_USED + (WS_DBG_SIZE if DEBUG else 0)}
    for r, sz in sizes.items():
        a(f's_mov_b32 s{r + 2}, {sz}')
        a(f's_mov_b32 s{r + 3}, 0x20000')
    a('v_and_b32 v1, 63, v0')
    a('v_lshrrev_b32 v2, 6, v0')
    a('v_and_b32 v3, 15, v1')
    a(f'v_readfirstlane_b32 {sWV}, v2')
    a(f's_and_b32 {sX}, s2, 7')
    a(f's_lshr_b32 {sJ}, s2, 3')
    a(f's_lshl_b32 {sCH0}, {sX}, 6')
    a(f's_lshl_b32 {sA}, {sJ}, 1')
    a(f's_add_u32 {sCH0}, {sCH0}, {sA}')
    a(f's_lshl_b32 {sRB}, {sX}, 2')
    a(f's_lshr_b32 {sA}, {sJ}, 3')
    a(f's_add_u32 {sRB}, {sRB}, {sA}')
    a(f's_and_b32 {sCS}, {sJ}, 7')
    a('v_mov_b32 v2, v3')
    a('v_lshrrev_b32 v3, 4, v1')
    a('s_waitcnt lgkmcnt(0)')


def expansion_addrs():
    a('v_and_b32 v16, 255, v0')
    a('v_lshlrev_b32 v16, 3, v16')
    a('v_lshrrev_b32 v17, 8, v0')
    a(f'v_mul_u32_u24 v17, {KT_CH}, v17')
    a(f'v_add_u32 v17, {L_KT}, v17')
    a(f'v_add_u32 v18, {2 * KT_ZERO}, v17')
    for d in range(1, 12):
        dd = d - 4
        r = 4 + d
        if dd >= 0:
            a(f'v_add_u32 v19, {dd}, v16')
        else:
            a(f'v_subrev_u32 v19, {-dd}, v16')
        a('v_cvt_f32_i32 v20, v19')
        a('v_cvt_pk_bf16_f32 v20, v20, v20')
        a('v_lshlrev_b32 v20, 16, v20')
        a('v_cvt_u32_f32 v20, v20')
        a(f'v_lshl_add_u32 {vr(r)}, v20, 1, v17')
        if dd < 0:
            a('v_cmp_gt_i32 vcc, 0, v19')
            a(f'v_cndmask_b32 {vr(r)}, {vr(r)}, v18, vcc')


def role_k():
    a(f's_lshr_b32 {sA}, {sWV}, 1')
    a(f's_add_u32 {sB}, {sCH0}, {sA}')
    a(f's_and_b32 {sC}, {sWV}, 1')
    a(f's_lshl_b32 {sC}, {sC}, 6')
    a(f's_lshl_b32 {sD}, {sB}, 7')
    a(f's_add_u32 {sD}, {sD}, {sC}')
    a(f'v_add_u32 v21, {sD}, v1')
    a('v_lshlrev_b32 v21, 1, v21')
    a(f's_lshl_b32 {sB}, {sB}, 1')
    a(f'v_mov_b32 v22, {sB}')
    for i, s in enumerate((ARE, AIM, BRE, BIM, CRE, CIM)):
        bload(24 + i, 'u16', 21, s)
    bload(30, 'u16', 22, LDT)
    a(f's_load_dword {sT}, s[{WS}:{WS + 1}], {WS_EPOCH}')
    expansion_addrs()
    a(f's_mul_i32 {sB}, {sA}, {G_CH}')
    a(f's_add_u32 {sB}, {sB}, {L_G}')
    a(f'v_add_u32 v22, {sC}, v1')
    a('v_lshlrev_b32 v22, 2, v22')
    a(f'v_add_u32 v23, {sB}, v22')
    a(f's_mul_i32 {sB}, {sA}, {E_CH}')
    a(f's_add_u32 {sB}, {sB}, {L_E}')
    a(f'v_add_u32 v22, {sB}, v22')
    a('s_waitcnt vmcnt(0) lgkmcnt(0)')
    a(f's_add_u32 {sT}, {sT}, 1')
    for i in range(7):
        a(f'v_lshlrev_b32 {vr(24 + i)}, 16, {vr(24 + i)}')
    LOG2E = 1.4426950408889634
    import struct
    hi = struct.unpack('<f', struct.pack('<f', LOG2E))[0]
    lo = LOG2E - hi
    a(f's_mov_b32 {sB}, {fconst(hi)}')
    a(f's_mov_b32 {sD}, {fconst(lo)}')
    a(f'v_mul_f32 v32, {sB}, v30')
    a(f'v_fma_f32 v33, v30, {sB}, -v32')
    a(f'v_fma_f32 v33, v30, {sD}, v33')
    a('v_exp_f32 v32, v32')
    a(f'v_mul_f32 v33, {fconst(0.6931471805599453)}, v33')
    a('v_fma_f32 v32, v32, v33, v32')
    a('v_cvt_pk_bf16_f32 v32, v32, v32')
    a('v_lshlrev_b32 v30, 16, v32')
    a('v_mul_f32 v24, v24, v30')
    a('v_mul_f32 v25, v25, v30')
    a(f'v_mul_f32 v24, {sB}, v24')
    a(f'v_mul_f32 v25, {fconst(1.0 / (2 * 3.141592653589793))}, v25')
    a('v_mul_f32 v26, v26, v30')
    a('v_mul_f32 v27, v27, v30')
    cmul(32, 26, 28)
    for d, m in ((34, 1.0), (36, 8.0), (38, 128.0)):
        a(f'v_mul_f32 v40, {fconst(m)}, v24')
        a(f'v_mul_f32 v41, {fconst(m)}, v25')
        a('v_exp_f32 v40, v40')
        a('v_fract_f32 v41, v41')
        a('v_cos_f32 v42, v41')
        a('v_sin_f32 v43, v41')
        a(f'v_mul_f32 {vr(d)}, v40, v42')
        a(f'v_mul_f32 {vr(d + 1)}, v40, v43')
    P = {1: 34, 2: 44, 3: 46, 4: 48, 5: 50, 6: 52, 7: 54}
    cmul(P[2], P[1], P[1])
    cmul(P[3], P[2], P[1])
    cmul(P[4], P[2], P[2])
    cmul(P[5], P[4], P[1])
    cmul(P[6], P[4], P[2])
    cmul(P[7], P[4], P[3])

    def putG(rho, x):
        a(f'v_cvt_pk_bf16_f32 v31, {vr(x)}, -{vr(x + 1)}')
        a(f'ds_write_b32 v23, v31 offset:{rho * G_ROW}')

    def putE(j, x):
        a(f'v_cvt_pk_bf16_f32 v29, {vr(x)}, {vr(x + 1)}')
        a(f'ds_write_b32 v22, v29 offset:{j * G_ROW}')

    rows = {}
    for rho in range(41):
        if rho < 16:
            i, b = rho >> 3, rho & 7
        elif rho < 24:
            i, b = 2 + ((rho - 16) >> 2), 2 * ((rho - 16) & 3)
        elif rho < 32:
            i, b = 4 + ((rho - 24) >> 1), 4 * ((rho - 24) & 1)
        else:
            i, b = 8 + (rho - 32), 0
        rows.setdefault(i, []).append((rho, b))
    a('v_mov_b32 v29, 0x00003f80')
    a('ds_write_b32 v22, v29 offset:0')
    putE(1, 36)
    Ecur = 36
    Q = 32
    for i in range(17):
        for n_, (rho, b) in enumerate(rows[i]):
            if b == 0:
                putG(rho, Q)
            else:
                t = 64 + 2 * (n_ & 1)
                cmul(t, Q, P[b])
                putG(rho, t)
        if i < 16:
            nq = 60 if Q != 60 else 62
            cmul(nq, Q, 38)
            Q = nq
        j = i + 2
        if j < 16:
            ne = 56 if Ecur != 56 else 58
            cmul(ne, Ecur, 36)
            putE(j, ne)
            Ecur = ne
    a('s_waitcnt lgkmcnt(0)')


def role_stats():
    a(f's_lshl_b32 {sA}, s2, 13')
    a('v_lshlrev_b32 v21, 4, v1')
    a(f'v_add_u32 v21, {sA}, v21')
    for i in range(8):
        bload(24 + 4 * i, 4, 21, U, imm=0, soff='0') if i == 0 else None
        if i > 0:
            if i * 1024 < 4096:
                bload(24 + 4 * i, 4, 21, U, imm=i * 1024)
            else:
                if i == 4:
                    a('v_add_u32 v22, 4096, v21')
                bload(24 + 4 * i, 4, 22, U, imm=(i - 4) * 1024)
    a(f's_load_dword {sT}, s[{WS}:{WS + 1}], {WS_EPOCH}')
    expansion_addrs()
    a('s_waitcnt lgkmcnt(0)')
    a(f's_add_u32 {sT}, {sT}, 1')
    a(f's_mov_b32 {sA}, 0x3f803f80')
    for i in range(8):
        a(f's_waitcnt vmcnt({7 - i})')
        b = 24 + 4 * i
        a(f'v_dot2_f32_bf16 {vr(60 + i)}, {vr(b)}, {sA}, 0')
        a(f'v_dot2_f32_bf16 {vr(68 + i)}, {vr(b)}, {vr(b)}, 0')
        for k in range(1, 4):
            a(f'v_dot2_f32_bf16 {vr(60 + i)}, {vr(b + k)}, {sA}, {vr(60 + i)}')
            a(f'v_dot2_f32_bf16 {vr(68 + i)}, {vr(b + k)}, {vr(b + k)}, {vr(68 + i)}')
    for base in (60, 68):
        for i in range(4):
            a(f'v_permlane32_swap_b32 {vr(base + i)}, {vr(base + i + 4)}')
        for i in range(4):
            a(f'v_add_f32 {vr(base + i)}, {vr(base + i)}, {vr(base + i + 4)}')
    for base in (60, 68):
        for i in range(2):
            a(f'v_permlane16_swap_b32 {vr(base + i)}, {vr(base + i + 2)}')
        for i in range(2):
            a(f'v_add_f32 {vr(base + i)}, {vr(base + i)}, {vr(base + i + 2)}')
    for sh in (1, 2, 4, 8):
        for r in (60, 61, 68, 69):
            a(f'v_add_f32_dpp {vr(r)}, {vr(r)}, {vr(r)} row_ror:{sh} row_mask:0xf bank_mask:0xf')
    a(f's_mov_b32 {sA}, {fconst(1.0 / 512)}')
    for p in range(2):
        S, Q = 60 + p, 68 + p
        a(f'v_mul_f32 {vr(S)}, {sA}, {vr(S)}')
        a(f'v_mul_f32 {vr(Q)}, {sA}, {vr(Q)}')
        a(f'v_fma_f32 {vr(Q)}, -{vr(S)}, {vr(S)}, {vr(Q)}')
        a(f'v_add_f32 {vr(Q)}, {fconst(1e-5)}, {vr(Q)}')
        a(f'v_rsq_f32 {vr(Q)}, {vr(Q)}')
    for p in range(2):
        d = 72 + 4 * p
        a(f'v_mov_b32 {vr(d)}, {vr(68 + p)}')
        a(f'v_mov_b32 {vr(d + 1)}, {sT}')
        a(f'v_mul_f32 {vr(d + 2)}, {vr(60 + p)}, {vr(68 + p)}')
        a(f'v_mov_b32 {vr(d + 3)}, {sT}')
    a(f's_lshl_b32 {sA}, s2, 7')
    a(f's_add_u32 {sA}, {sA}, {WS_STATS}')
    a('v_lshlrev_b32 v21, 5, v3')
    a(f'v_add_u32 v21, {sA}, v21')
    a('v_cmp_eq_u32 vcc, 0, v2')
    a(f's_and_saveexec_b64 s[{sP0}:{sP0 + 1}], vcc')
    bstore(72, 4, 21, WS, mods='sc1')
    bstore(76, 4, 21, WS, imm=16, mods='sc1')
    a(f's_mov_b64 exec, s[{sP0}:{sP0 + 1}]')


def role_mod_issue():
    a(f's_lshr_b32 {sA}, {sJ}, 2')
    a(f's_lshl_b32 {sA}, {sA}, 3')
    a(f's_add_u32 {sA}, {sA}, {sX}')
    a(f's_lshl_b32 {sA}, {sA}, 6')
    a(f's_and_b32 {sB}, {sJ}, 3')
    a(f's_lshl_b32 {sB}, {sB}, 4')
    a(f's_add_u32 {sE}, {sA}, {sB}')
    a('v_lshrrev_b32 v21, 1, v1')
    a('v_lshlrev_b32 v22, 1, v21')
    for i in range(16):
        bload(24 + i, 'u16', 22, CC, imm=64 * i)
    a('v_mul_u32_u24 v23, 6144, v21')
    a('v_and_b32 v40, 1, v1')
    a('v_lshlrev_b32 v40, 4, v40')
    a('v_add_u32 v23, v23, v40')
    a(f's_lshl_b32 {sA}, {sE}, 1')
    a(f'v_add_u32 v23, {sA}, v23')
    a(f's_mov_b32 {sB}, 0')
    for i in range(16):
        a(f's_mov_b32 {sB}, {i * 32 * 6144}')
        bload(64 + 4 * i, 4, 23, WMOD, soff=sB)


def role_mod_compute(nlater):
    a(f's_waitcnt vmcnt({16 + nlater})')
    for i in range(16):
        r = 24 + i
        a(f'v_lshlrev_b32 {vr(r)}, 16, {vr(r)}')
        a(f'v_mul_f32 v58, {fconst(-1.4426950408889634)}, {vr(r)}')
        a('v_exp_f32 v58, v58')
        a('v_add_f32 v58, 1.0, v58')
        a('v_rcp_f32 v58, v58')
        a(f'v_mul_f32 v58, v58, {vr(r)}')
        a('v_cvt_pk_bf16_f32 v58, v58, v58')
        a(f'v_and_b32 {vr(r)}, 0xffff, v58')
        a(f'v_lshlrev_b32 {vr(40 + i)}, 16, v58')
    for i in range(16):
        a(f's_waitcnt vmcnt({15 - i + nlater})')
        b = 64 + 4 * i
        for k in range(4):
            c0 = '0' if i == 0 else vr(128 + 2 * k)
            c1 = '0' if i == 0 else vr(129 + 2 * k)
            a(f'v_dot2_f32_bf16 {vr(128 + 2 * k)}, {vr(b + k)}, {vr(24 + i)}, {c0}')
            a(f'v_dot2_f32_bf16 {vr(129 + 2 * k)}, {vr(b + k)}, {vr(40 + i)}, {c1}')
    for i in range(4):
        a(f'v_permlane32_swap_b32 {vr(128 + i)}, {vr(132 + i)}')
    for i in range(4):
        a(f'v_add_f32 {vr(128 + i)}, {vr(128 + i)}, {vr(132 + i)}')
    for i in range(2):
        a(f'v_permlane16_swap_b32 {vr(128 + i)}, {vr(130 + i)}')
    for i in range(2):
        a(f'v_add_f32 {vr(128 + i)}, {vr(128 + i)}, {vr(130 + i)}')
    for sh in (2, 4, 8):
        for r in (128, 129):
            a(f'v_add_f32_dpp {vr(r)}, {vr(r)}, {vr(r)} row_ror:{sh} row_mask:0xf bank_mask:0xf')
    a('v_and_b32 v21, 1, v3')
    a('v_lshlrev_b32 v21, 1, v21')
    a('v_lshrrev_b32 v22, 1, v3')
    a('v_lshl_add_u32 v21, v22, 2, v21')
    a('v_and_b32 v22, 1, v1')
    a('v_lshl_add_u32 v21, v22, 3, v21')
    a(f'v_add_u32 v21, {sE}, v21')
    a('v_lshlrev_b32 v21, 3, v21')
    a(f'v_add_u32 v21, {WS_MODG}, v21')
    a(f'v_mov_b32 v130, v129')
    a(f'v_mov_b32 v129, {sT}')
    a(f'v_mov_b32 v131, {sT}')
    a('v_cmp_gt_u32 vcc, 2, v2')
    a(f's_and_saveexec_b64 s[{sP0}:{sP0 + 1}], vcc')
    bstore(128, 4, 21, WS, mods='sc1')
    a(f's_mov_b64 exec, s[{sP0}:{sP0 + 1}]')


def gather_issue():
    a(f's_sub_u32 {sA}, {sWV}, 4')
    a(f's_lshl_b32 {sB}, {sA}, 9')
    a(f'v_add_u32 v21, {sB}, v1')
    a('v_lshlrev_b32 v21, 10, v21')
    a(f's_lshl_b32 {sC}, {sCH0}, 1')
    a(f'v_add_u32 v21, {sC}, v21')
    a(f's_lshl_b32 {sB}, {sB}, 2')
    a(f's_add_u32 {sB}, {sB}, {L_XC}')
    for i in range(8):
        a(f's_mov_b32 {sC}, {i * 64 * 1024}')
        a(f's_add_u32 {sD}, {sB}, {i * 256}')
        dma(1, 21, U, sD, soff=sC)


def swz_issue():
    a(f's_mul_i32 {sA}, s2, 3')
    a(f's_add_u32 {sA}, {sA}, {sWV}')
    a(f's_sub_u32 {sA}, {sA}, 5')
    a('v_lshrrev_b32 v44, 3, v1')
    a('v_and_b32 v45, 7, v1')
    a('v_lshlrev_b32 v45, 4, v45')
    a(f's_sub_u32 {sB}, {sWV}, 5')
    a(f's_lshl_b32 {sB}, {sB}, 12')
    a(f's_add_u32 s101, {sB}, {L_STG}')
    lw4 = a.newlabel('L_swz4'); ldone = a.newlabel('L_swzd'); lnone = a.newlabel('L_swzn')
    a(f's_mov_b32 s99, 0')
    a(f's_cmp_ge_u32 {sA}, 352')
    a(f's_cbranch_scc1 {lw4}')
    a(f's_lshr_b32 {sB}, {sA}, 4')
    a(f's_and_b32 {sC}, {sA}, 15')
    a(f's_lshl_b32 s98, {sB}, 2')
    a(f's_lshl_b32 s98, s98, 4')
    a(f's_add_u32 s98, s98, {sC}')
    a(f's_lshl_b32 s98, s98, 10')
    a(f's_add_u32 s98, s98, {WS_W3S}')
    a(f's_mov_b32 s100, {16 * 1024}')
    a(f's_cmp_eq_u32 {sB}, 21')
    a(f's_cselect_b32 s99, 2, 4')
    a(f's_mul_i32 {sC}, {sC}, {32 * F_ * 2}')
    a(f's_lshl_b32 {sB}, {sB}, 7')
    a(f's_add_u32 {sC}, {sC}, {sB}')
    a(f'v_mul_u32_u24 v44, {F_ * 2}, v44')
    a('v_add_u32 v44, v44, v45')
    for q in range(4):
        a(f's_add_u32 {sD}, {sC}, {q * 8 * F_ * 2}')
        a(f's_add_u32 {sB}, s101, {q * 1024}')
        dma(4, 44, W3, sB, soff=sD)
    a(f's_branch {ldone}')
    a.label(lw4)
    a(f's_sub_u32 {sA}, {sA}, 352')
    a(f's_cmp_ge_u32 {sA}, 344')
    a(f's_cbranch_scc1 {lnone}')
    a(f's_lshr_b32 {sC}, {sA}, 3')
    a(f's_and_b32 {sB}, {sA}, 7')
    a(f's_mul_i32 s98, {sB}, {4 * 43}')
    a(f's_add_u32 s98, s98, {sC}')
    a(f's_lshl_b32 s98, s98, 10')
    a(f's_add_u32 s98, s98, {WS_W4S}')
    a(f's_mov_b32 s100, {43 * 1024}')
    a(f's_mov_b32 s99, 4')
    a(f's_lshl_b32 {sC}, {sC}, 15')
    a(f's_lshl_b32 {sB}, {sB}, 7')
    a(f's_add_u32 {sC}, {sC}, {sB}')
    a('v_lshlrev_b32 v44, 10, v44')
    a('v_add_u32 v44, v44, v45')
    for q in range(4):
        a(f's_add_u32 {sD}, {sC}, {q * 8 * 1024}')
        a(f's_add_u32 {sB}, s101, {q * 1024}')
        dma(4, 44, W4, sB, soff=sD)
    a(f's_branch {ldone}')
    a.label(lnone)
    for q in range(4):
        a(f's_add_u32 {sB}, s101, {q * 1024}')
        dma(4, 45, W4, sB)
    a.label(ldone)


def swz_finish():
    a('v_lshrrev_b32 v46, 2, v2')
    a('v_lshl_add_u32 v46, v3, 2, v46')
    a('v_lshlrev_b32 v46, 7, v46')
    a('v_and_b32 v47, 3, v2')
    a('v_lshl_add_u32 v46, v47, 3, v46')
    a(f'v_add_u32 v46, s101, v46')
    for nt in range(4):
        a(f'ds_read_b64_tr_b16 {vr(48 + 4 * nt, 2)}, v46 offset:{32 * nt}')
        a(f'ds_read_b64_tr_b16 {vr(50 + 4 * nt, 2)}, v46 offset:{32 * nt + 2048}')
    a('v_lshlrev_b32 v47, 4, v1')
    a('s_waitcnt lgkmcnt(0)')
    lskip = a.newlabel('L_swzs')
    a(f's_mov_b32 {sA}, s98')
    for nt in range(4):
        a(f's_cmp_le_u32 s99, {nt}')
        a(f's_cbranch_scc1 {lskip}')
        bstore(48 + 4 * nt, 4, 47, WS, soff=sA, mods='sc1')
        a(f's_add_u32 {sA}, {sA}, s100')
    a.label(lskip)


def phase_a():
    lk = 'L_roleK'; l5 = 'L_role5'; l67 = 'L_role67'; lj = 'L_A_join'
    a(f's_cmp_lt_u32 {sWV}, 4')
    a(f's_cbranch_scc1 {lk}')
    a(f's_cmp_eq_u32 {sWV}, 5')
    a(f's_cbranch_scc1 {l5}')
    a(f's_cmp_gt_u32 {sWV}, 5')
    a(f's_cbranch_scc1 {l67}')
    role_stats()
    gather_issue()
    a(f's_branch {lj}')
    a.label(l5)
    lnomod = a.newlabel('L_nomod'); l5b = a.newlabel('L_5b')
    a(f's_cmp_ge_u32 s2, 192')
    a(f's_cbranch_scc1 {lnomod}')
    role_mod_issue()
    swz_issue()
    a(f's_load_dword {sT}, s[{WS}:{WS + 1}], {WS_EPOCH}')
    expansion_addrs()
    a('s_waitcnt lgkmcnt(0)')
    a(f's_add_u32 {sT}, {sT}, 1')
    role_mod_compute(4)
    a(f's_branch {l5b}')
    a.label(lnomod)
    swz_issue()
    a(f's_load_dword {sT}, s[{WS}:{WS + 1}], {WS_EPOCH}')
    expansion_addrs()
    a('s_waitcnt lgkmcnt(0)')
    a(f's_add_u32 {sT}, {sT}, 1')
    a.label(l5b)
    a('s_waitcnt vmcnt(1)') if False else None
    a('s_waitcnt vmcnt(0)')
    gather_issue()
    swz_finish()
    a(f's_branch {lj}')
    a.label(l67)
    swz_issue()
    a(f's_load_dword {sT}, s[{WS}:{WS + 1}], {WS_EPOCH}')
    expansion_addrs()
    a('s_waitcnt lgkmcnt(0)')
    a(f's_add_u32 {sT}, {sT}, 1')
    a('s_waitcnt vmcnt(0)')
    gather_issue()
    swz_finish()
    a(f's_branch {lj}')
    a.label(lk)
    role_k()
    a.label(lj)
    a('v_mov_b32 v24, 0'); a('v_mov_b32 v25, 0'); a('v_mov_b32 v26, 0'); a('v_mov_b32 v27, 0')
    a('v_lshrrev_b32 v21, 5, v0')
    a(f'v_mul_u32_u24 v21, {H_CH}, v21')
    a('v_and_b32 v22, 31, v0')
    a('v_lshl_add_u32 v21, v22, 4, v21')
    a(f'v_add_u32 v21, {L_H}, v21')
    a('v_subrev_u32 v22, 64, v0')
    a('v_lshrrev_b32 v23, 1, v22')
    a(f'v_mul_u32_u24 v23, {CP_R}, v23')
    a('v_and_b32 v22, 1, v0')
    a('v_lshl_add_u32 v23, v22, 4, v23')
    a(f'v_add_u32 v23, {L_COPY}, v23')
    a('v_cmp_gt_u32 vcc, 64, v0')
    a('v_cndmask_b32 v21, v23, v21, vcc')
    a('v_cmp_gt_u32 vcc, 80, v0')
    a(f's_and_saveexec_b64 s[{sP0}:{sP0 + 1}], vcc')
    lz = a.newlabel('L_z')
    a(f's_cbranch_execz {lz}')
    a('ds_write_b128 v21, v[24:27]')
    a.label(lz)
    a(f's_mov_b64 exec, s[{sP0}:{sP0 + 1}]')
    a('v_and_b32 v22, 1, v0')
    a(f'v_mul_u32_u24 v22, {KT_CH}, v22')
    a(f'v_add_u32 v22, {L_KT + 2 * KT_ZERO}, v22')
    a('v_cmp_gt_u32 vcc, 2, v0')
    a(f's_and_saveexec_b64 s[{sP0}:{sP0 + 1}], vcc')
    lz = a.newlabel('L_z')
    a(f's_cbranch_execz {lz}')
    a('ds_write_b16 v22, v24')
    a.label(lz)
    a(f's_mov_b64 exec, s[{sP0}:{sP0 + 1}]')
    a('s_waitcnt lgkmcnt(0)')
    a('s_barrier')
    lsk = a.newlabel('L_kmf')
    a(f's_cmp_ge_u32 {sWV}, 6')
    a(f's_cbranch_scc1 {lsk}')
    a(f's_cmp_ge_u32 {sWV}, 3')
    a(f's_cselect_b32 {sA}, 1, 0')
    a(f's_mul_i32 {sB}, {sA}, 3')
    a(f's_sub_u32 {sB}, {sWV}, {sB}')
    a(f's_mul_i32 {sC}, {sA}, {G_CH}')
    a(f's_mul_i32 {sD}, {sB}, {16 * G_ROW}')
    a(f's_add_u32 {sC}, {sC}, {sD}')
    a(f'v_mul_u32_u24 v21, {G_ROW}, v2')
    a('v_lshl_add_u32 v21, v3, 4, v21')
    a(f'v_add_u32 v22, {sC}, v21')
    a(f's_mul_i32 {sC}, {sA}, {E_CH}')
    a(f's_add_u32 {sC}, {sC}, {L_E}')
    a(f'v_add_u32 v23, {sC}, v21')
    for ks in range(8):
        a(f'ds_read_b128 {vr(24 + 8 * ks, 4)}, v22 offset:{64 * ks}')
        a(f'ds_read_b128 {vr(28 + 8 * ks, 4)}, v23 offset:{64 * ks}')
    a(f's_mul_i32 {sC}, {sA}, {KT_CH}')
    a(f's_add_u32 {sC}, {sC}, {L_KT}')
    lt1 = a.newlabel('L_t1'); lt2 = a.newlabel('L_t2'); ltd = a.newlabel('L_td')
    a(f's_cmp_eq_u32 {sB}, 1'); a(f's_cbranch_scc1 {lt1}')
    a(f's_cmp_eq_u32 {sB}, 2'); a(f's_cbranch_scc1 {lt2}')
    a('v_lshrrev_b32 v96, 1, v3'); a('v_lshlrev_b32 v96, 7, v96')
    a('v_and_b32 v97, 1, v3'); a('v_lshl_add_u32 v96, v97, 2, v96')
    for r in range(4):
        a(f'v_add_u32 {vr(92 + r)}, {r}, v96')
    a(f's_branch {ltd}')
    a.label(lt1)
    a('v_cmp_gt_u32 vcc, 2, v3')
    for r in range(4):
        a(f'v_add_u32 v96, 2, v3'); a('v_lshlrev_b32 v96, 7, v96'); a(f'v_add_u32 v96, {2 * r}, v96')
        a(f'v_lshlrev_b32 v97, 1, v3'); a(f'v_add_u32 v97, {r >> 1}, v97'); a('v_lshlrev_b32 v97, 7, v97')
        a(f'v_add_u32 v97, {4 * (r & 1)}, v97')
        a(f'v_cndmask_b32 {vr(92 + r)}, v97, v96, vcc')
    a(f's_branch {ltd}')
    a.label(lt2)
    for r in range(4):
        a('v_lshlrev_b32 v96, 2, v3'); a(f'v_add_u32 v96, {8 + r}, v96'); a('v_lshlrev_b32 v96, 7, v96')
        a('v_lshlrev_b32 v97, 3, v2'); a(f'v_sub_u32 v97, {KT_DUMMY}, v97')
        lim = 3 if r == 0 else 2
        a(f'v_cmp_gt_u32 vcc, {lim}, v3')
        a(f'v_cndmask_b32 {vr(92 + r)}, v97, v96, vcc')
    a.label(ltd)
    a('v_lshlrev_b32 v96, 3, v2')
    for r in range(4):
        a(f'v_add_u32 {vr(92 + r)}, {vr(92 + r)}, v96')
        a(f'v_lshlrev_b32 {vr(92 + r)}, 1, {vr(92 + r)}')
        a(f'v_add_u32 {vr(92 + r)}, {sC}, {vr(92 + r)}')
    for ks in range(8):
        a(f's_waitcnt lgkmcnt({14 - 2 * ks})')
        c = '0' if ks == 0 else 'v[88:91]'
        a(f'v_mfma_f32_16x16x32_bf16 v[88:91], {vr(24 + 8 * ks, 4)}, {vr(28 + 8 * ks, 4)}, {c}')
    a('v_cvt_pk_bf16_f32 v96, v88, v89')
    a('v_cvt_pk_bf16_f32 v97, v90, v91')
    a('ds_write_b16 v92, v96')
    a('ds_write_b16_d16_hi v93, v96')
    a('ds_write_b16 v94, v97')
    a('ds_write_b16_d16_hi v95, v97')
    a('s_waitcnt lgkmcnt(0)')
    a.label(lsk)
    a('s_barrier')
    for d in range(1, 12):
        a(f'ds_read_u16 {vr(24 + d)}, {vr(4 + d)}')
    a('v_lshrrev_b32 v21, 8, v0')
    a(f'v_mul_u32_u24 v21, {CP_CH}, v21')
    a('v_and_b32 v22, 255, v0')
    a('v_lshl_add_u32 v21, v22, 4, v21')
    a(f'v_add_u32 v21, {L_COPY + 32}, v21')
    a('s_waitcnt lgkmcnt(0)')
    for r in range(4):
        d = 36 + 4 * r
        for p in range(4):
            a(f'v_lshl_or_b32 {vr(d + p)}, {vr(24 + 5 + 2 * p - r)}, 16, {vr(24 + 4 + 2 * p - r)}')
        a(f'ds_write_b128 v21, {vr(d, 4)} offset:{r * CP_R}')


def spin_guard(label_retry, label_ok):
    a(f's_add_u32 {sSPIN}, {sSPIN}, 1')
    a(f's_cmp_lt_u32 {sSPIN}, {SPIN_MAX}')
    a(f's_cbranch_scc1 {label_retry}')


def phase_b():
    a('v_lshlrev_b32 v21, 6, v0')
    a(f'v_add_u32 v21, {WS_STATS}, v21')
    a(f's_lshl_b32 {sA}, {sCH0}, 3')
    a(f's_add_u32 {sA}, {sA}, {WS_MODG}')
    a(f'v_mov_b32 v22, {sA}')
    a(f's_mov_b32 {sB}, 4096'); a(f's_mov_b32 {sC}, 8192')
    a(f's_mov_b32 {sSPIN}, 0')
    lp = 'L_S1_poll'; lok = 'L_S1_ok'
    a.label(lp)
    for i in range(4):
        bload(44 + 4 * i, 4, 21, WS, imm=16 * i, mods='sc1')
    bload(60, 4, 22, WS, mods='sc1')
    bload(64, 4, 22, WS, soff=sB, mods='sc1')
    bload(68, 4, 22, WS, soff=sC, mods='sc1')
    a('s_waitcnt vmcnt(0)')
    tags = [45, 47, 49, 51, 53, 55, 57, 59, 61, 63, 65, 67, 69, 71]
    a(f'v_min3_u32 v72, {vr(tags[0])}, {vr(tags[1])}, {vr(tags[2])}')
    a(f'v_max3_u32 v73, {vr(tags[0])}, {vr(tags[1])}, {vr(tags[2])}')
    k = 3
    while k < len(tags):
        t2 = tags[k + 1] if k + 1 < len(tags) else tags[k]
        a(f'v_min3_u32 v72, v72, {vr(tags[k])}, {vr(t2)}')
        a(f'v_max3_u32 v73, v73, {vr(tags[k])}, {vr(t2)}')
        k += 2
    a(f'v_cmp_ne_u32 vcc, {sT}, v72')
    a(f'v_cmp_ne_u32 s[{sP0}:{sP0 + 1}], {sT}, v73')
    a('s_nop 0')
    a(f's_or_b64 vcc, vcc, s[{sP0}:{sP0 + 1}]')
    a(f's_cbranch_vccz {lok}')
    spin_guard(lp, lok)
    a.label(lok)
    a('s_waitcnt lgkmcnt(0)')
    a('s_barrier')
    a('v_lshlrev_b32 v23, 4, v0')
    a(f'v_add_u32 v23, {L_XC}, v23')
    a('ds_read_b128 v[72:75], v23')
    a('v_add_f32 v64, 1.0, v64'); a('v_add_f32 v66, 1.0, v66')
    a(f's_lshr_b32 {sCHL}, {sWV}, 2'); a(f's_and_b32 {sQ}, {sWV}, 3')
    a(f's_add_u32 {sA}, {sCH0}, {sCHL}'); a(f's_lshl_b32 {sA}, {sA}, 1')
    a(f'v_mov_b32 v77, {sA}')
    bload(76, 'u16', 77, DSK)
    a('s_waitcnt lgkmcnt(0)')
    for i in range(4):
        r, mr = 44 + 4 * i, 46 + 4 * i
        a(f'v_lshlrev_b32 v80, 16, {vr(72 + i)}')
        a(f'v_and_b32 v81, 0xffff0000, {vr(72 + i)}')
        a(f'v_fma_f32 v80, v80, {vr(r)}, -{vr(mr)}')
        a(f'v_fma_f32 v81, v81, {vr(r)}, -{vr(mr)}')
        a(f'v_fma_f32 {vr(82 + i)}, v80, v64, v60')
        a(f'v_fma_f32 {vr(86 + i)}, v81, v66, v62')
    a('v_cvt_pk_bf16_f32 v90, v82, v83'); a('v_cvt_pk_bf16_f32 v91, v84, v85')
    a('v_cvt_pk_bf16_f32 v92, v86, v87'); a('v_cvt_pk_bf16_f32 v93, v88, v89')
    a('v_lshlrev_b32 v23, 3, v0')
    a(f'v_add_u32 v23, {L_H + 512}, v23')
    a('ds_write_b64 v23, v[90:91]')
    a(f'ds_write_b64 v23, v[92:93] offset:{H_CH}')
    a(f's_cmp_eq_u32 {sCHL}, 0')
    a(f's_cselect_b64 vcc, -1, 0')
    a('v_cndmask_b32 v78, v70, v68, vcc')
    a(f's_mul_i32 {sA}, {sCHL}, {H_CH}')
    a(f's_lshl_b32 {sB}, {sQ}, 6')
    a(f's_sub_u32 {sA}, {sA}, {sB}')
    a(f's_add_u32 {sA}, {sA}, {L_H + 480 - 256}')
    a('v_lshlrev_b32 v21, 5, v2')
    a('v_lshl_add_u32 v21, v3, 4, v21')
    a(f'v_add_u32 v21, {sA}, v21')
    a(f's_mul_i32 {sA}, {sCHL}, {CP_CH}')
    a(f's_add_u32 {sA}, {sA}, {sB}')
    a(f's_add_u32 {sA}, {sA}, {L_COPY + 64 - 8}')
    a('v_lshrrev_b32 v22, 2, v2')
    a(f'v_mul_u32_u24 v22, {CP_R}, v22')
    a('v_and_b32 v23, 3, v2')
    a('v_lshl_add_u32 v22, v23, 3, v22')
    a('v_lshlrev_b32 v23, 4, v3')
    a('v_sub_u32 v22, v22, v23')
    a(f'v_add_u32 v22, {sA}, v22')
    a(f's_lshl_b32 {sA}, {sWV}, 13')
    a('v_lshlrev_b32 v23, 4, v1')
    a(f'v_add_u32 v23, {sA}, v23')
    a('s_waitcnt lgkmcnt(0)')
    a('s_barrier')
    BF = 96; ACC = 160; AF = 24
    order = [1, 0] + list(range(2, 16))
    first = [u for u in range(1, 16, 2)] + [u for u in range(0, 16, 2)]

    def ldA(i):
        r = AF + 4 * (i % 4)
        a(f'ds_read_b64_tr_b16 {vr(r, 2)}, v22 offset:{256 * i + 8}')
        a(f'ds_read_b64_tr_b16 {vr(r + 2, 2)}, v22 offset:{256 * i}')
    ldA(0)
    for u in first[:8]:
        a(f'ds_read_b128 {vr(BF + 4 * u, 4)}, v21 offset:{256 * u}')
    ldA(1)
    issued_even = False
    for i in range(16):
        nmin = max(0, (i - 1 + 1) // 2) if i >= 1 else 0
        nmin = (i) // 2 if i >= 1 else 0
        if i == 0:
            a('s_waitcnt lgkmcnt(2)')
            for u in first[8:]:
                a(f'ds_read_b128 {vr(BF + 4 * u, 4)}, v21 offset:{256 * u}')
            ldA(2)
        elif i == 1:
            a('s_waitcnt lgkmcnt(2)')
            ldA(3)
        else:
            pend = 2 if i + 1 < 16 else 0
            wr_prev = 1 if (i - 1) >= 2 and (i - 1) % 2 == 0 else 0
            a(f's_waitcnt lgkmcnt({pend + wr_prev})')
            if i + 2 < 16:
                ldA(i + 2)
        for n in range(nmin, 8):
            u = 2 * n - i + 1
            c = '0' if i == 0 else vr(ACC + 4 * n, 4)
            a(f'v_mfma_f32_16x16x32_bf16 {vr(ACC + 4 * n, 4)}, {vr(AF + 4 * (i % 4), 4)}, {vr(BF + 4 * u, 4)}, {c}')
        if i >= 2 and i % 2 == 0:
            n = i // 2 - 1
            a(f'ds_write_b128 v23, {vr(ACC + 4 * n, 4)} offset:{1024 * n}')
    a(f'ds_write_b128 v23, {vr(ACC + 28, 4)} offset:{1024 * 7}')
    a('s_waitcnt lgkmcnt(0)')
    a('s_barrier')
    a(f's_lshl_b32 {sA}, {sCHL}, 15')
    a(f's_lshl_b32 {sB}, {sQ}, 11')
    a(f's_add_u32 {sA}, {sA}, {sB}')
    a('v_lshlrev_b32 v23, 4, v1')
    a(f'v_add_u32 v23, {sA}, v23')
    for nn in range(2):
        for qq in range(4):
            a(f'ds_read_b128 {vr(96 + 16 * nn + 4 * qq, 4)}, v23 offset:{8192 * qq + 1024 * nn}')
    a('v_lshlrev_b32 v21, 4, v2')
    a('v_lshl_add_u32 v21, v3, 2, v21')
    a(f's_lshl_b32 {sA}, {sQ}, 9')
    a(f'v_add_u32 v21, {sA}, v21')
    a('v_lshlrev_b32 v22, 2, v21')
    a(f'v_add_u32 v22, {L_XC}, v22')
    a(f's_mul_i32 {sA}, {sCHL}, {H_CH}')
    a(f's_add_u32 {sA}, {sA}, {L_H + 512}')
    a('v_lshlrev_b32 v24, 1, v21')
    a(f'v_add_u32 v25, {sA}, v24')
    for nn in range(2):
        a(f'ds_read_b128 {vr(128 + 4 * nn, 4)}, v22 offset:{1024 * nn}')
        a(f'ds_read_b64 {vr(136 + 2 * nn, 2)}, v25 offset:{512 * nn}')
    a(f's_add_u32 {sA}, {sCH0}, {sCHL}')
    a(f's_lshl_b32 {sA}, {sA}, 12')
    a(f's_add_u32 {sA}, {sA}, {WS_X2T}')
    a(f'v_add_u32 v24, {sA}, v24')
    a(f's_xor_b32 {sB}, {sCHL}, 1')
    a(f's_lshl_b32 {sB}, {sB}, 4')
    a('s_waitcnt vmcnt(0)')
    a('v_lshlrev_b32 v76, 16, v76')
    a('s_waitcnt lgkmcnt(0)')
    for nn in range(2):
        y = 96 + 16 * nn
        for k in range(4):
            a(f'v_add_f32 {vr(y + k)}, {vr(y + k)}, {vr(y + 4 + k)}')
            a(f'v_add_f32 {vr(y + 8 + k)}, {vr(y + 8 + k)}, {vr(y + 12 + k)}')
            a(f'v_add_f32 {vr(y + k)}, {vr(y + k)}, {vr(y + 8 + k)}')
        for k in range(4):
            hreg = 136 + 2 * nn + (k >> 1)
            if k & 1:
                a(f'v_and_b32 v26, 0xffff0000, {vr(hreg)}')
            else:
                a(f'v_lshlrev_b32 v26, 16, {vr(hreg)}')
            a(f'v_fma_f32 {vr(y + k)}, v26, v76, {vr(y + k)}')
            a(f'v_lshlrev_b32 v27, {sB}, {vr(128 + 4 * nn + k)}')
            a('v_and_b32 v27, 0xffff0000, v27')
            a(f'v_fma_f32 {vr(y + k)}, v78, {vr(y + k)}, v27')
        a(f'v_cvt_pk_bf16_f32 {vr(y)}, {vr(y)}, {vr(y + 1)}')
        a(f'v_cvt_pk_bf16_f32 {vr(y + 1)}, {vr(y + 2)}, {vr(y + 3)}')
        bstore(y, 2, 24, WS, imm=512 * nn, mods='sc1')
    a('s_waitcnt vmcnt(0)')
    a('s_barrier')
    lf = a.newlabel('L_f2')
    a(f's_cmp_lg_u32 {sWV}, 0')
    a(f's_cbranch_scc1 {lf}')
    a(f's_lshl_b32 {sA}, s2, 2')
    a(f's_add_u32 {sA}, {sA}, {WS_F2}')
    a(f'v_mov_b32 v21, {sA}')
    a(f'v_mov_b32 v22, {sT}')
    a('v_cmp_eq_u32 vcc, 0, v1')
    a(f's_and_saveexec_b64 s[{sP0}:{sP0 + 1}], vcc')
    bstore(22, 1, 21, WS, mods='sc1')
    a(f's_mov_b64 exec, s[{sP0}:{sP0 + 1}]')
    a.label(lf)


L_X = 0
L_W1 = 69632
L_A4 = 0
L_W2 = 81920
L_EX = 0
L_HS = 147456
L_CB = L_HS + 8192
L_SB = L_CB + 2048
L_CSP = L_SB + 2048
L_ST = L_CSP + 512
L_ST3 = L_ST + 1024
assert L_ST3 + 1024 <= 163840
XS = 4; X1R = 8
ONES = 128
mK1, mK2, mK3, mDG = 90, 92, 94, 96


def lane_consts():
    a('v_lshrrev_b32 v14, 2, v2')
    a('v_lshl_add_u32 v12, v3, 2, v14')
    a('v_lshlrev_b32 v12, 7, v12')
    a('v_and_b32 v15, 3, v2')
    a('v_lshl_add_u32 v12, v15, 3, v12')
    a('v_lshrrev_b32 v14, 1, v14')
    a('v_lshl_add_u32 v13, v3, 1, v14')
    a('v_and_b32 v13, 3, v13')
    a(f'v_cmp_eq_u32 s[{mK1}:{mK1 + 1}], 1, v15')
    a(f'v_cmp_eq_u32 s[{mK2}:{mK2 + 1}], 2, v15')
    a(f'v_cmp_eq_u32 s[{mK3}:{mK3 + 1}], 3, v15')
    a('v_lshrrev_b32 v14, 2, v2')
    a(f'v_cmp_eq_u32 s[{mDG}:{mDG + 1}], v14, v3')


def tr_addr(dst, chunk, base):
    a(f'v_xor_b32 {vr(dst)}, {chunk}, v13')
    a(f'v_lshl_add_u32 {vr(dst)}, {vr(dst)}, 5, v12')
    if base != 0:
        a(f'v_add_u32 {vr(dst)}, {base}, {vr(dst)}')


def slab_dma_addr(dst, rowstride_log2):
    a(f'v_lshrrev_b32 {vr(dst)}, 3, v1')
    a('v_lshrrev_b32 v14, 4, v1')
    a('v_and_b32 v14, 3, v14')
    a('v_bfe_u32 v15, v1, 1, 2')
    a('v_xor_b32 v14, v14, v15')
    a('v_lshlrev_b32 v14, 5, v14')
    a('v_and_b32 v15, 1, v1')
    a('v_lshl_add_u32 v14, v15, 4, v14')
    a(f'v_lshl_add_u32 {vr(dst)}, {vr(dst)}, {rowstride_log2}, v14')


def weight_slab_dma(S, ldsbase):
    slab_dma_addr(20, 10)
    a(f's_lshl_b32 {sA}, {sCS}, 7')
    a(f's_lshl_b32 {sB}, {sWV}, 13')
    a(f's_add_u32 {sA}, {sA}, {sB}')
    a(f's_lshl_b32 {sB}, {sWV}, 10')
    a(f's_add_u32 {sB}, {sB}, {ldsbase}')
    for k in range(8):
        a(f's_add_u32 {sC}, {sA}, {k * 65536}')
        a(f's_add_u32 {sD}, {sB}, {k * 8192}')
        dma(4, 20, S, sD, soff=sC)


def set_flag(off, idx_sgpr):
    lf = a.newlabel('L_flag')
    a(f's_cmp_lg_u32 {sWV}, 0')
    a(f's_cbranch_scc1 {lf}')
    a(f's_lshl_b32 {sA}, {idx_sgpr}, 2')
    a(f's_add_u32 {sA}, {sA}, {off}')
    a(f'v_mov_b32 v116, {sA}')
    a(f'v_mov_b32 v117, {sT}')
    a('v_cmp_eq_u32 vcc, 0, v1')
    a(f's_and_saveexec_b64 s[{sP3 + 2}:{sP3 + 3}], vcc')
    bstore(117, 1, 116, WS, mods='sc1')
    a(f's_mov_b64 exec, s[{sP3 + 2}:{sP3 + 3}]')
    a.label(lf)


def poll(off, kind):
    lf = a.newlabel('L_pollskip'); lp = a.newlabel('L_poll'); lok = a.newlabel('L_pollok')
    a(f's_cmp_lg_u32 {sWV}, 0')
    a(f's_cbranch_scc1 {lf}')
    if kind == 'all':
        a('v_lshlrev_b32 v116, 4, v1')
        a(f'v_add_u32 v116, {off}, v116')
    elif kind == 'own':
        a('v_and_b32 v116, 7, v1')
        a(f's_lshl_b32 {sA}, {sRB}, 3')
        a(f'v_add_u32 v116, {sA}, v116')
        a('v_lshlrev_b32 v116, 2, v116')
        a(f'v_add_u32 v116, {off}, v116')
    else:
        a('v_min_u32 v116, 23, v1')
        a(f's_lshl_b32 {sA}, {sRB}, 3')
        a(f's_sub_u32 {sB}, {sA}, 8')
        a(f'v_add_u32 v116, {sB}, v116')
        a('v_cmp_gt_u32 vcc, 256, v116')
        a(f'v_mov_b32 v117, {sA}')
        a('v_cndmask_b32 v116, v117, v116, vcc')
        a('v_lshlrev_b32 v116, 2, v116')
        a(f'v_add_u32 v116, {off}, v116')
    a(f's_mov_b32 {sSPIN}, 0')
    a.label(lp)
    if kind == 'all':
        bload(118, 4, 116, WS, mods='sc1')
        a('s_waitcnt vmcnt(0)')
        a('v_min3_u32 v122, v118, v119, v120'); a('v_max3_u32 v123, v118, v119, v120')
        a('v_min_u32 v122, v122, v121'); a('v_max_u32 v123, v123, v121')
        a(f'v_cmp_ne_u32 vcc, {sT}, v122')
        a(f'v_cmp_ne_u32 s[{sP3 + 2}:{sP3 + 3}], {sT}, v123')
        a('s_nop 0')
        a(f's_or_b64 vcc, vcc, s[{sP3 + 2}:{sP3 + 3}]')
    else:
        bload(118, 1, 116, WS, mods='sc1')
        a('s_waitcnt vmcnt(0)')
        a(f'v_cmp_ne_u32 vcc, {sT}, v118')
        a('s_nop 0')
    a(f's_cbranch_vccz {lok}')
    spin_guard(lp, lok)
    a.label(lok)
    a.label(lf)
    a('s_barrier')


def diag_select(dst, q):
    a(f'v_cndmask_b32 {vr(dst)}, {vr(q)}, {vr(q + 1)}, s[{mK1}:{mK1 + 1}]')
    a(f'v_cndmask_b32 {vr(dst)}, {vr(dst)}, {vr(q + 2)}, s[{mK2}:{mK2 + 1}]')
    a(f'v_cndmask_b32 {vr(dst)}, {vr(dst)}, {vr(q + 3)}, s[{mK3}:{mK3 + 1}]')


def stats_publish(ldsbase, S, Q, t0, t1, addr):
    diag_select(t1, Q)
    a(f'v_mov_b32 {vr(t0)}, {vr(S)}')
    a(f's_lshl_b32 {sA}, {sWV}, 7')
    a(f's_add_u32 {sA}, {sA}, {ldsbase}')
    a(f'v_lshl_add_u32 {vr(addr)}, v2, 3, {sA}')
    a(f's_mov_b64 s[{sP3 + 2}:{sP3 + 3}], exec')
    a(f's_mov_b64 exec, s[{mDG}:{mDG + 1}]')
    a(f'ds_write_b64 {vr(addr)}, {vr(t0, 2)}')
    a(f's_mov_b64 exec, s[{sP3 + 2}:{sP3 + 3}]')


def stats_finish(S, Q, m, r):
    a(f'v_mul_f32 {vr(m)}, {fconst(1.0 / 512)}, {vr(S)}')
    a(f'v_mul_f32 {vr(r)}, {fconst(1.0 / 512)}, {vr(Q)}')
    a(f'v_fma_f32 {vr(r)}, -{vr(m)}, {vr(m)}, {vr(r)}')
    a(f'v_max_f32 {vr(r)}, 0, {vr(r)}')
    a(f'v_add_f32 {vr(r)}, {fconst(1e-5)}, {vr(r)}')
    a(f'v_rsq_f32 {vr(r)}, {vr(r)}')


GC0 = -2.0 * 1.4426950408889634 * 0.7978845608028654
GC1 = GC0 * 0.044715


def gelu(regs, tmp):
    n = len(regs)
    for i in range(0, n, 2):
        x = regs[i]
        t = tmp + 2 * ((i // 2) & 1)
        a(f'v_pk_mul_f32 {vr(t, 2)}, {vr(x, 2)}, {vr(x, 2)}')
        a(f'v_pk_fma_f32 {vr(t, 2)}, {vr(t, 2)}, v[{GK1}:{GK1 + 1}], v[{GK0}:{GK0 + 1}]')
        a(f'v_pk_mul_f32 {vr(t, 2)}, {vr(t, 2)}, {vr(x, 2)}')
        a(f'v_exp_f32 {vr(t)}, {vr(t)}')
        a(f'v_exp_f32 {vr(t + 1)}, {vr(t + 1)}')
        a(f'v_pk_add_f32 {vr(t, 2)}, {vr(t, 2)}, v[{GONE}:{GONE + 1}]')
        a(f'v_rcp_f32 {vr(t)}, {vr(t)}')
        a(f'v_rcp_f32 {vr(t + 1)}, {vr(t + 1)}')
        a(f'v_pk_mul_f32 {vr(x, 2)}, {vr(x, 2)}, {vr(t, 2)}')


GK0, GK1, GONE = 14, 18, 22


def gelu_consts():
    for r, c in ((GK0, GC0), (GK1, GC1), (GONE, 1.0)):
        a(f'v_mov_b32 {vr(r)}, {fconst(c)}')
        a(f'v_mov_b32 {vr(r + 1)}, {fconst(c)}')


def phase3():
    lane_consts()
    weight_slab_dma(W1, L_W1)
    for k in range(4):
        a(f'v_mov_b32 {vr(ONES + k)}, 0x3f803f80')
    a(f's_and_b32 {sA}, {sWV}, 3')
    a(f's_lshr_b32 {sB}, {sWV}, 2')
    a(f's_lshl_b32 {sB}, {sB}, 15')
    a(f's_add_u32 {sB}, {sB}, {L_W1}')
    tr_addr(20, sA, 0)
    a(f'v_add_u32 v20, {sB}, v20')
    a('s_waitcnt vmcnt(0)')
    a('s_barrier')
    for ks in range(8):
        a(f'ds_read_b64_tr_b16 {vr(16 + 4 * ks if False else 32 + 4 * ks, 2)}, v20 offset:{4096 * ks}')
        a(f'ds_read_b64_tr_b16 {vr(34 + 4 * ks, 2)}, v20 offset:{4096 * ks + 2048}')
    a('s_waitcnt lgkmcnt(0)')
    for ks in range(8):
        c = '0' if ks == 0 else 'v[100:103]'
        a(f'v_mfma_f32_16x16x32_bf16 v[100:103], {vr(32 + 4 * ks, 4)}, {vr(ONES, 4)}, {c}')
    a(f's_lshr_b32 {sA}, {sWV}, 2'); a(f's_lshl_b32 {sA}, {sA}, 8')
    a(f's_and_b32 {sB}, {sWV}, 3'); a(f's_lshl_b32 {sB}, {sB}, 6')
    a(f's_add_u32 {sA}, {sA}, {sB}'); a(f's_add_u32 {sA}, {sA}, {L_CSP}')
    a(f'v_lshl_add_u32 v21, v3, 4, {sA}')
    a('v_cmp_eq_u32 vcc, 0, v2')
    a(f's_and_saveexec_b64 s[{sP3 + 2}:{sP3 + 3}], vcc')
    a('ds_write_b128 v21, v[100:103]')
    a(f's_mov_b64 exec, s[{sP3 + 2}:{sP3 + 3}]')
    a('s_waitcnt lgkmcnt(0)')
    poll(WS_F2, 'all')
    slab_dma_addr(20, 12)
    a(f's_lshl_b32 {sA}, {sRB}, 7')
    a(f's_lshl_b32 {sB}, {sWV}, 15')
    a(f's_add_u32 {sA}, {sA}, {sB}')
    a(f's_add_u32 {sA}, {sA}, {WS_X2T}')
    a(f's_lshl_b32 {sB}, {sWV}, 10')
    for k in range(8):
        a(f's_add_u32 {sC}, {sA}, {k * 8 * 8 * 4096}')
        a(f's_add_u32 {sD}, {sB}, {L_X + k * 8192}')
        dma(4, 20, WS, sD, soff=sC, mods='sc1')
    a('v_lshlrev_b32 v21, 3, v0')
    a(f'v_add_u32 v21, {WS_MODG + 3 * 512 * 8}, v21')
    a(f's_mov_b32 {sA}, 4096')
    bload(24, 2, 21, WS, mods='sc1')
    bload(26, 2, 21, WS, soff=sA, mods='sc1')
    a('v_lshlrev_b32 v22, 2, v0')
    a(f'v_add_u32 v22, {L_CB}, v22')
    a(f's_and_b32 {sCHL}, {sWV}, 3')
    a(f's_lshr_b32 {sQ}, {sWV}, 2')
    a(f's_lshl_b32 {sB}, {sQ}, 15')
    tr_addr(136, sCHL, 0)
    a(f'v_add_u32 v136, {sB}, v136')
    a(f's_add_u32 {sB}, {sB}, {L_W1}')
    for nt in range(4):
        tr_addr(132 + nt, nt, 0)
        a(f'v_add_u32 {vr(132 + nt)}, {sB}, {vr(132 + nt)}')
    a(f's_lshl_b32 {sA}, {sQ}, 10')
    a(f's_add_u32 {sA}, {sA}, {L_CB}')
    a(f'v_lshl_add_u32 v137, v3, 4, {sA}')
    a('s_waitcnt vmcnt(0)')
    a('v_add_f32 v26, 1.0, v26')
    a('ds_write_b32 v22, v26')
    a('ds_write_b32 v22, v24 offset:2048')
    a('s_waitcnt lgkmcnt(0)')
    a('s_barrier')
    for ks in range(8):
        a(f'ds_read_b64_tr_b16 {vr(16 + 4 * ks, 2)}, v136 offset:{4096 * ks}')
        a(f'ds_read_b64_tr_b16 {vr(18 + 4 * ks, 2)}, v136 offset:{4096 * ks + 2048}')
    a(f's_lshl_b32 {sA}, {sCS}, 13')
    a(f's_lshl_b32 {sB}, {sCHL}, 11')
    a(f's_add_u32 {sA}, {sA}, {sB}')
    a(f's_lshl_b32 {sB}, {sQ}, 1')
    tr_addr(138, sB, 0)
    a(f'v_add_u32 v138, {sA}, v138')
    a(f's_add_u32 {sB}, {sB}, 1')
    tr_addr(139, sB, 0)
    a(f'v_add_u32 v139, {sA}, v139')
    a(f'ds_read_b64_tr_b16 {vr(XS, 2)}, v138')
    a(f'ds_read_b64_tr_b16 {vr(XS + 2, 2)}, v139')
    a('s_waitcnt lgkmcnt(0)')
    for ks in range(8):
        f = vr(16 + 4 * ks, 4)
        a(f'v_mfma_f32_16x16x32_bf16 v[116:119], {vr(ONES, 4)}, {f}, ' + ('0' if ks == 0 else 'v[116:119]'))
        a(f'v_mfma_f32_16x16x32_bf16 v[120:123], {f}, {f}, ' + ('0' if ks == 0 else 'v[120:123]'))
    stats_publish(L_ST, 116, 120, 48, 49, 50)
    a('s_waitcnt lgkmcnt(0)')
    a('s_barrier')
    a(f's_lshl_b32 {sA}, {sCHL}, 7')
    a(f's_add_u32 {sA}, {sA}, {L_ST}')
    a(f'v_lshl_add_u32 v50, v2, 3, {sA}')
    a('ds_read_b64 v[52:53], v50')
    a('ds_read_b64 v[54:55], v50 offset:512')

    def ldcoef(ks):
        a(f'ds_read_b128 v[48:51], v137 offset:{128 * ks}') if False else None
    a('s_waitcnt lgkmcnt(0)')
    a('v_add_f32 v52, v52, v54'); a('v_add_f32 v53, v53, v55')
    stats_finish(52, 53, 126, 124)
    a('v_mul_f32 v126, v126, v124')
    CO = 48
    WB = 68

    def ldc(ks):
        a(f'ds_read_b128 {vr(CO, 4)}, v137 offset:{128 * ks}')
        a(f'ds_read_b128 {vr(CO + 4, 4)}, v137 offset:{128 * ks + 64}')
        a(f'ds_read_b128 {vr(CO + 8, 4)}, v137 offset:{2048 + 128 * ks}')
        a(f'ds_read_b128 {vr(CO + 12, 4)}, v137 offset:{2048 + 128 * ks + 64}')

    def ldw(ks):
        b = WB + 16 * (ks & 1)
        for nt in range(4):
            a(f'ds_read_b64_tr_b16 {vr(b + 4 * nt, 2)}, {vr(132 + nt)} offset:{4096 * ks}')
            a(f'ds_read_b64_tr_b16 {vr(b + 4 * nt + 2, 2)}, {vr(132 + nt)} offset:{4096 * ks + 2048}')
    ldc(0)
    ldw(0)
    for ks in range(8):
        f = 16 + 4 * ks
        a('s_waitcnt lgkmcnt(8)')
        for p in range(4):
            z = 64 + 2 * (p & 1)
            a(f'v_lshlrev_b32 {vr(z)}, 16, {vr(f + p)}')
            a(f'v_and_b32 {vr(z + 1)}, 0xffff0000, {vr(f + p)}')
            a(f'v_pk_fma_f32 {vr(z, 2)}, {vr(z, 2)}, v[124:125], v[126:127] op_sel_hi:[1,0,0] neg_lo:[0,0,1] neg_hi:[0,0,1]')
            a(f'v_pk_fma_f32 {vr(z, 2)}, {vr(z, 2)}, {vr(CO + 2 * p, 2)}, {vr(CO + 8 + 2 * p, 2)}')
            a(f'v_cvt_pk_bf16_f32 {vr(f + p)}, {vr(z)}, {vr(z + 1)}')
        if ks < 7:
            ldc(ks + 1)
        lsk = a.newlabel('L_hs')
        a(f's_lshl_b32 {sA}, {sQ}, 3')
        a(f's_add_u32 {sA}, {sA}, {ks}')
        a(f's_lshr_b32 {sA}, {sA}, 1')
        a(f's_cmp_lg_u32 {sA}, {sCS}')
        a(f's_cbranch_scc1 {lsk}')
        a(f's_lshl_b32 {sA}, {sCHL}, 9')
        a(f's_add_u32 {sA}, {sA}, {L_HS + (2 * (ks & 1)) * 4 * 512}')
        a(f'v_lshl_add_u32 v138, v1, 3, {sA}')
        a(f'ds_write_b64 v138, {vr(f, 2)}')
        a(f'ds_write_b64 v138, {vr(f + 2, 2)} offset:2048')
        a('s_waitcnt lgkmcnt(0)')
        a.label(lsk)
        a(f's_waitcnt lgkmcnt({4 if ks < 7 else 0})')
        wb = WB + 16 * (ks & 1)
        if ks < 7:
            ldw(ks + 1)
        for nt in range(4):
            c = '0' if ks == 0 else vr(100 + 4 * nt, 4)
            a(f'v_mfma_f32_16x16x32_bf16 {vr(100 + 4 * nt, 4)}, {vr(wb + 4 * nt, 4)}, {vr(f, 4)}, {c}')
        a(f'v_mfma_f32_16x16x32_bf16 v[116:119], {vr(ONES, 4)}, {vr(f, 4)}, ' + ('0' if ks == 0 else 'v[116:119]'))
        a(f'v_mfma_f32_16x16x32_bf16 v[120:123], {vr(f, 4)}, {vr(f, 4)}, ' + ('0' if ks == 0 else 'v[120:123]'))
    stats_publish(L_ST3, 116, 120, 48, 49, 50)
    a(f's_lshl_b32 {sA}, {sWV}, 11')
    a(f'v_lshl_add_u32 v20, v1, 4, {sA}')
    lk1 = a.newlabel('L_k1'); lkd = a.newlabel('L_kd')
    a(f's_cmp_eq_u32 {sQ}, 1')
    a(f's_cbranch_scc1 {lk1}')
    a(f'ds_write_b128 v20, v[108:111] offset:{L_EX}')
    a(f'ds_write_b128 v20, v[112:115] offset:{L_EX + 1024}')
    a(f's_branch {lkd}')
    a.label(lk1)
    a(f'ds_write_b128 v20, v[100:103] offset:{L_EX}')
    a(f'ds_write_b128 v20, v[104:107] offset:{L_EX + 1024}')
    for k in range(8):
        a(f'v_mov_b32 {vr(100 + k)}, {vr(108 + k)}')
    a.label(lkd)
    a('s_waitcnt lgkmcnt(0)')
    a('s_barrier')
    a(f's_xor_b32 {sA}, {sWV}, 4')
    a(f's_lshl_b32 {sA}, {sA}, 11')
    a(f'v_lshl_add_u32 v20, v1, 4, {sA}')
    a(f'ds_read_b128 v[108:111], v20 offset:{L_EX}')
    a(f'ds_read_b128 v[112:115], v20 offset:{L_EX + 1024}')
    a(f's_lshl_b32 {sA}, {sCHL}, 7')
    a(f's_add_u32 {sA}, {sA}, {L_ST3}')
    a(f'v_lshl_add_u32 v50, v2, 3, {sA}')
    a('ds_read_b64 v[52:53], v50')
    a('ds_read_b64 v[54:55], v50 offset:512')
    a(f's_lshl_b32 {sA}, {sQ}, 7')
    a(f's_add_u32 {sA}, {sA}, {L_CSP}')
    a(f'v_lshl_add_u32 v51, v3, 4, {sA}')
    a('ds_read_b128 v[56:59], v51')
    a('ds_read_b128 v[60:63], v51 offset:64')
    a('ds_read_b128 v[64:67], v51 offset:256')
    a('ds_read_b128 v[68:71], v51 offset:320')
    gelu_consts()
    a('s_waitcnt lgkmcnt(0)')
    a('v_add_f32 v52, v52, v54'); a('v_add_f32 v53, v53, v55')
    stats_finish(52, 53, 126, 124)
    for k in range(8):
        a(f'v_add_f32 {vr(100 + k)}, {vr(100 + k)}, {vr(108 + k)}')
        a(f'v_add_f32 {vr(56 + k)}, {vr(56 + k)}, {vr(64 + k)}')
    for k in range(8):
        a(f'v_fma_f32 {vr(100 + k)}, -v126, {vr(56 + k)}, {vr(100 + k)}')
        a(f'v_mul_f32 {vr(100 + k)}, v124, {vr(100 + k)}')
    gelu(list(range(100, 108)), 72)
    for p in range(4):
        a(f'v_cvt_pk_bf16_f32 {vr(76 + p)}, {vr(100 + 2 * p)}, {vr(101 + 2 * p)}')
    a(f's_lshl_b32 {sA}, {sRB}, 2'); a(f's_add_u32 {sA}, {sA}, {sCHL}')
    a(f's_lshl_b32 {sA}, {sA}, 4')
    a(f's_lshl_b32 {sB}, {sCS}, 1'); a(f's_add_u32 {sA}, {sA}, {sB}'); a(f's_add_u32 {sA}, {sA}, {sQ}')
    a(f's_lshl_b32 {sA}, {sA}, 10'); a(f's_add_u32 {sA}, {sA}, {WS_H1}')
    a('v_lshlrev_b32 v20, 4, v1')
    bstore(76, 4, 20, WS, soff=sA, mods='sc1')
    a('s_waitcnt vmcnt(0)')
    a('s_barrier')
    a(f's_lshl_b32 {sE}, {sRB}, 3'); a(f's_add_u32 {sE}, {sE}, {sCS}')
    set_flag(WS_F3, sE)


def phase4():
    weight_slab_dma(W2, L_W2)
    a(f's_lshl_b32 {sA}, {sWV}, 6')
    a(f'v_add_u32 v20, {sA}, v1')
    a(f's_lshl_b32 {sB}, {sRB}, 6')
    a(f's_sub_u32 {sB}, {sB}, 8')
    a(f's_mov_b32 {sC}, 0x7ffffff0')
    for k in range(10):
        if k:
            a('v_add_u32 v20, 512, v20')
        a('v_mul_u32_u24 v21, 52429, v20')
        a('v_lshrrev_b32 v21, 22, v21')
        a('v_mul_u32_u24 v34, 80, v21')
        a('v_sub_u32 v34, v20, v34')
        a(f'v_add_u32 v35, {sB}, v34')
        a('v_lshrrev_b32 v36, 4, v35')
        a('v_lshlrev_b32 v36, 4, v36')
        a('v_lshrrev_b32 v37, 2, v21')
        a('v_add_u32 v36, v36, v37')
        a('v_lshlrev_b32 v36, 10, v36')
        a('v_and_b32 v37, 3, v21')
        a('v_lshl_add_u32 v36, v37, 8, v36')
        a('v_and_b32 v37, 15, v35')
        a('v_lshl_add_u32 v36, v37, 4, v36')
        a(f'v_add_u32 v36, {WS_H1}, v36')
        a('v_subrev_u32 v34, 6, v34')
        a('v_cmp_gt_u32 vcc, 68, v34')
        a(f'v_cmp_gt_u32 s[{sP3 + 2}:{sP3 + 3}], 2048, v35') if False else None
        a(f'v_mov_b32 v37, {sC}')
        a('v_cndmask_b32 v36, v37, v36, vcc')
        a('v_cmp_gt_u32 vcc, 2048, v35')
        a(f'v_cndmask_b32 {vr(40 + k)}, v37, v36, vcc')
    poll(WS_F3, 'halo')
    a(f's_lshl_b32 {sB}, {sWV}, 10')
    for k in range(10):
        a(f's_add_u32 {sD}, {sB}, {L_A4 + k * 8192}')
        dma(4, 40 + k, WS, sD, mods='sc1')
    a(f's_lshl_b32 {sB}, {sQ}, 15')
    a(f's_add_u32 {sB}, {sB}, {L_W2}')
    tr_addr(20, sCHL, 0)
    a(f'v_add_u32 v20, {sB}, v20')
    a('v_mul_u32_u24 v21, 80, v3')
    a('v_add_u32 v21, v21, v2')
    a(f's_add_u32 {sA}, {sQ}, 1')
    a(f's_sub_u32 {sB}, 8, {sA}')
    a(f's_add_u32 {sC}, {sA}, 8')
    a(f's_mul_i32 {sD}, {sQ}, {8 * 5120}')
    a(f'v_add_u32 v22, {sB}, v21'); a('v_lshlrev_b32 v22, 4, v22'); a(f'v_add_u32 v22, {sD}, v22')
    a(f'v_add_u32 v23, {sC}, v21'); a('v_lshlrev_b32 v23, 4, v23'); a(f'v_add_u32 v23, {sD}, v23')
    a('s_waitcnt vmcnt(0)')
    a('s_barrier')
    for ks in range(8):
        a(f'ds_read_b64_tr_b16 {vr(64 + 4 * ks, 2)}, v20 offset:{4096 * ks}')
        a(f'ds_read_b64_tr_b16 {vr(66 + 4 * ks, 2)}, v20 offset:{4096 * ks + 2048}')
    AB = 32

    def lda(ks):
        b = AB + 16 * (ks & 1)
        ad = 22 if ks < 4 else 23
        for tt in range(4):
            a(f'ds_read_b128 {vr(b + 4 * tt, 4)}, {vr(ad)} offset:{L_A4 + 5120 * ks + 256 * tt}')
    lda(0)
    for ks in range(8):
        if ks < 7:
            a('s_waitcnt lgkmcnt(0)') if ks == 0 else a('s_waitcnt lgkmcnt(0)')
            lda(ks + 1)
        else:
            a('s_waitcnt lgkmcnt(0)')
        b = AB + 16 * (ks & 1)
        for tt in range(4):
            c = '0' if ks == 0 else vr(100 + 4 * tt, 4)
            a(f'v_mfma_f32_16x16x32_bf16 {vr(100 + 4 * tt, 4)}, {vr(64 + 4 * ks, 4)}, {vr(b + 4 * tt, 4)}, {c}')
    a('s_barrier')
    a(f's_lshl_b32 {sA}, {sWV}, 11')
    a(f'v_lshl_add_u32 v20, v1, 4, {sA}')
    lk1 = a.newlabel('L_k1'); lkd = a.newlabel('L_kd')
    a(f's_cmp_eq_u32 {sQ}, 1')
    a(f's_cbranch_scc1 {lk1}')
    a(f'ds_write_b128 v20, v[108:111] offset:{L_EX}')
    a(f'ds_write_b128 v20, v[112:115] offset:{L_EX + 1024}')
    a(f's_branch {lkd}')
    a.label(lk1)
    a(f'ds_write_b128 v20, v[100:103] offset:{L_EX}')
    a(f'ds_write_b128 v20, v[104:107] offset:{L_EX + 1024}')
    for k in range(8):
        a(f'v_mov_b32 {vr(100 + k)}, {vr(108 + k)}')
    a.label(lkd)
    a('s_waitcnt lgkmcnt(0)')
    a('s_barrier')
    a(f's_xor_b32 {sA}, {sWV}, 4')
    a(f's_lshl_b32 {sA}, {sA}, 11')
    a(f'v_lshl_add_u32 v20, v1, 4, {sA}')
    a(f'ds_read_b128 v[108:111], v20 offset:{L_EX}')
    a(f'ds_read_b128 v[112:115], v20 offset:{L_EX + 1024}')
    a(f's_lshl_b32 {sA}, {sCHL}, 11'); a(f's_lshl_b32 {sB}, {sQ}, 10'); a(f's_add_u32 {sA}, {sA}, {sB}')
    a(f's_add_u32 {sA}, {sA}, {L_HS}')
    a(f'v_lshl_add_u32 v21, v1, 3, {sA}')
    a('ds_read_b64 v[56:57], v21')
    a('ds_read_b64 v[58:59], v21 offset:512')
    a('s_waitcnt lgkmcnt(0)')
    for e in range(2):
        for k in range(4):
            r = 100 + 4 * e + k
            h = 56 + 2 * e + (k >> 1)
            a(f'v_add_f32 {vr(r)}, {vr(r)}, {vr(108 + 4 * e + k)}')
            if k & 1:
                a(f'v_and_b32 v60, 0xffff0000, {vr(h)}')
            else:
                a(f'v_lshlrev_b32 v60, 16, {vr(h)}')
            a(f'v_add_f32 {vr(r)}, {vr(r)}, v60')
        a(f'v_cvt_pk_bf16_f32 {vr(X1R + 2 * e)}, {vr(100 + 4 * e)}, {vr(101 + 4 * e)}')
        a(f'v_cvt_pk_bf16_f32 {vr(X1R + 2 * e + 1)}, {vr(102 + 4 * e)}, {vr(103 + 4 * e)}')
    a(f's_lshl_b32 {sA}, {sRB}, 2'); a(f's_lshl_b32 {sB}, {sQ}, 1'); a(f's_add_u32 {sA}, {sA}, {sB}')
    a(f's_lshl_b32 {sA}, {sA}, 4')
    a(f's_lshl_b32 {sB}, {sCS}, 1'); a(f's_add_u32 {sA}, {sA}, {sB}')
    a(f's_lshr_b32 {sB}, {sCHL}, 1'); a(f's_add_u32 {sA}, {sA}, {sB}')
    a(f's_lshl_b32 {sA}, {sA}, 10')
    a(f's_and_b32 {sB}, {sCHL}, 1'); a(f's_lshl_b32 {sB}, {sB}, 3'); a(f's_add_u32 {sA}, {sA}, {sB}')
    a(f's_add_u32 {sA}, {sA}, {WS_X1}')
    a('v_lshlrev_b32 v20, 4, v1')
    bstore(X1R, 2, 20, WS, soff=sA, mods='sc1')
    a(f's_add_u32 {sA}, {sA}, {16 * 1024}')
    bstore(X1R + 2, 2, 20, WS, soff=sA, mods='sc1')
    a('s_waitcnt vmcnt(0)')
    a('s_barrier')
    a(f's_lshl_b32 {sE}, {sRB}, 3'); a(f's_add_u32 {sE}, {sE}, {sCS}')
    set_flag(WS_F4, sE)


sNTA = 's79'
sNV = 's89'
W3R = 128


def phase5():
    a(f's_mul_i32 {sA}, {sCS}, 6')
    a(f's_mul_i32 {sB}, {sCS}, 5'); a(f's_add_u32 {sB}, {sB}, 3')
    a(f's_cmp_lt_u32 {sCS}, 3')
    a(f's_cselect_b32 {sA}, {sA}, {sB}')
    a(f's_cselect_b32 {sB}, 6, 5')
    lhi = a.newlabel('L_p5hi'); ld = a.newlabel('L_p5d')
    a(f's_cmp_ge_u32 {sWV}, 4')
    a(f's_cbranch_scc1 {lhi}')
    a(f's_add_u32 {sA}, {sA}, {sWV}')
    a(f's_lshl_b32 {sNTA}, {sA}, 1')
    a(f's_mov_b32 {sNV}, 2')
    a(f's_branch {ld}')
    a.label(lhi)
    a(f's_sub_u32 {sC}, {sWV}, 4'); a(f's_lshr_b32 {sC}, {sC}, 1'); a(f's_add_u32 {sC}, {sC}, 4')
    a(f's_cmp_lt_u32 {sC}, {sB}')
    a(f's_cselect_b32 {sNV}, 1, 0')
    a(f's_cselect_b32 {sC}, {sC}, 0')
    a(f's_add_u32 {sA}, {sA}, {sC}')
    a(f's_lshl_b32 {sNTA}, {sA}, 1')
    a(f's_and_b32 {sC}, {sWV}, 1')
    a(f's_add_u32 {sNTA}, {sNTA}, {sC}')
    a.label(ld)
    a('v_lshlrev_b32 v20, 4, v1')
    a(f's_lshl_b32 {sA}, {sNTA}, 14')
    a(f's_add_u32 {sA}, {sA}, {WS_W3S}')
    a(f'v_add_u32 v20, {sA}, v20')
    for ks in range(16):
        a(f's_mov_b32 {sB}, {1024 * ks}')
        bload(W3R + 4 * ks, 4, 20, WS, soff=sB, mods='sc1')
    lnb = a.newlabel('L_nob')
    a(f's_cmp_lt_u32 {sNV}, 2')
    a(f's_cbranch_scc1 {lnb}')
    for ks in range(16):
        a(f's_mov_b32 {sB}, {16384 + 1024 * ks}')
        bload(W3R + 64 + 4 * ks, 4, 20, WS, soff=sB, mods='sc1')
    a.label(lnb)
    for k in range(4):
        a(f'v_mov_b32 {vr(16 + k)}, 0x3f803f80')
    a('s_waitcnt vmcnt(0)')
    for ks in range(16):
        a(f'v_mfma_f32_16x16x32_bf16 v[100:103], {vr(W3R + 4 * ks, 4)}, v[16:19], ' + ('0' if ks == 0 else 'v[100:103]'))
    lnb = a.newlabel('L_nob')
    a(f's_cmp_lt_u32 {sNV}, 2')
    a(f's_cbranch_scc1 {lnb}')
    for ks in range(16):
        a(f'v_mfma_f32_16x16x32_bf16 v[104:107], {vr(W3R + 64 + 4 * ks, 4)}, v[16:19], ' + ('0' if ks == 0 else 'v[104:107]'))
    a.label(lnb)
    poll(WS_F4, 'own')
    a(f's_lshl_b32 {sA}, {sRB}, 2'); a(f's_add_u32 {sA}, {sA}, {sCHL}'); a(f's_lshl_b32 {sA}, {sA}, 4')
    a(f's_add_u32 {sA}, {sA}, {sQ}'); a(f's_lshl_b32 {sA}, {sA}, 10'); a(f's_add_u32 {sA}, {sA}, {WS_X1}')
    a('v_lshlrev_b32 v20, 4, v1')
    a(f's_lshl_b32 {sB}, {sWV}, 10')
    for k in range(8):
        a(f's_add_u32 {sC}, {sA}, {2048 * k}')
        a(f's_add_u32 {sD}, {sB}, {8192 * k}')
        dma(4, 20, WS, sD, soff=sC, mods='sc1')
    a('s_waitcnt vmcnt(0)')
    a('s_barrier')
    a(f's_lshl_b32 {sA}, {sQ}, 15'); a(f's_lshl_b32 {sB}, {sCHL}, 10'); a(f's_add_u32 {sA}, {sA}, {sB}')
    a(f'v_add_u32 v21, {sA}, v20')
    for k in range(8):
        a(f'ds_read_b128 {vr(32 + 4 * k, 4)}, v21 offset:{4096 * k}')
    a('s_waitcnt lgkmcnt(0)')
    for k in range(8):
        f = vr(32 + 4 * k, 4)
        a(f'v_mfma_f32_16x16x32_bf16 v[108:111], v[16:19], {f}, ' + ('0' if k == 0 else 'v[108:111]'))
        a(f'v_mfma_f32_16x16x32_bf16 v[112:115], {f}, {f}, ' + ('0' if k == 0 else 'v[112:115]'))
    stats_publish(L_ST, 108, 112, 24, 25, 26)
    AB = 32

    def lda(ks):
        b = AB + 16 * (ks & 1)
        for tt in range(4):
            a(f'ds_read_b128 {vr(b + 4 * tt, 4)}, v20 offset:{4096 * ks + 1024 * tt}')

    def main(two):
        lda(0)
        for ks in range(16):
            a('s_waitcnt lgkmcnt(0)')
            if ks < 15:
                lda(ks + 1)
            b = AB + 16 * (ks & 1)
            for tt in range(4):
                c = '0' if ks == 0 else vr(64 + 4 * tt, 4)
                a(f'v_mfma_f32_16x16x32_bf16 {vr(64 + 4 * tt, 4)}, {vr(W3R + 4 * ks, 4)}, {vr(b + 4 * tt, 4)}, {c}')
                if two:
                    c = '0' if ks == 0 else vr(80 + 4 * tt, 4)
                    a(f'v_mfma_f32_16x16x32_bf16 {vr(80 + 4 * tt, 4)}, {vr(W3R + 64 + 4 * ks, 4)}, {vr(b + 4 * tt, 4)}, {c}')
    l1 = a.newlabel('L_one'); l0 = a.newlabel('L_none'); lj = a.newlabel('L_p5j')
    a(f's_cmp_eq_u32 {sNV}, 0')
    a(f's_cbranch_scc1 {lj}')
    a(f's_cmp_eq_u32 {sNV}, 1')
    a(f's_cbranch_scc1 {l1}')
    main(True)
    a(f's_branch {lj}')
    a.label(l1)
    main(False)
    a.label(lj)
    a('s_waitcnt lgkmcnt(0)')
    a('s_barrier')
    a(f'v_lshlrev_b32 v21, 3, v2')
    a(f'v_add_u32 v21, {L_ST}, v21')
    for tt in range(4):
        a(f'ds_read_b64 {vr(32 + 4 * tt, 2)}, v21 offset:{128 * tt}')
        a(f'ds_read_b64 {vr(34 + 4 * tt, 2)}, v21 offset:{512 + 128 * tt}')
    gelu_consts()
    a('s_waitcnt lgkmcnt(0)')
    for tt in range(4):
        b = 32 + 4 * tt
        a(f'v_add_f32 {vr(b)}, {vr(b)}, {vr(b + 2)}'); a(f'v_add_f32 {vr(b + 1)}, {vr(b + 1)}, {vr(b + 3)}')
        stats_finish(b, b + 1, b + 2, b + 3)

    def epi(acc, cs):
        for tt in range(4):
            b = 32 + 4 * tt
            for k in range(4):
                r = acc + 4 * tt + k
                a(f'v_fma_f32 {vr(r)}, -{vr(b + 2)}, {vr(cs + k)}, {vr(r)}')
                a(f'v_mul_f32 {vr(r)}, {vr(b + 3)}, {vr(r)}')
        gelu(list(range(acc, acc + 16)), 48)
    a(f's_lshl_b32 {sA}, {sRB}, 2'); a(f's_mul_i32 {sA}, {sA}, 43')
    a(f's_lshr_b32 {sB}, {sNTA}, 1'); a(f's_add_u32 {sA}, {sA}, {sB}')
    a(f's_lshl_b32 {sA}, {sA}, 10'); a(f's_add_u32 {sA}, {sA}, {WS_H3}')
    a(f's_and_b32 {sB}, {sNTA}, 1'); a(f's_lshl_b32 {sB}, {sB}, 3'); a(f's_add_u32 {sA}, {sA}, {sB}')
    a('v_lshlrev_b32 v20, 4, v1')
    l1 = a.newlabel('L_one'); lj = a.newlabel('L_p5e')
    a(f's_cmp_eq_u32 {sNV}, 0')
    a(f's_cbranch_scc1 {lj}')
    epi(64, 100)
    a(f's_cmp_eq_u32 {sNV}, 1')
    a(f's_cbranch_scc1 {l1}')
    epi(80, 104)
    for tt in range(4):
        d = 108 + 4 * tt
        a(f'v_cvt_pk_bf16_f32 {vr(d)}, {vr(64 + 4 * tt)}, {vr(65 + 4 * tt)}')
        a(f'v_cvt_pk_bf16_f32 {vr(d + 1)}, {vr(66 + 4 * tt)}, {vr(67 + 4 * tt)}')
        a(f'v_cvt_pk_bf16_f32 {vr(d + 2)}, {vr(80 + 4 * tt)}, {vr(81 + 4 * tt)}')
        a(f'v_cvt_pk_bf16_f32 {vr(d + 3)}, {vr(82 + 4 * tt)}, {vr(83 + 4 * tt)}')
        bstore(d, 4, 20, WS, soff=sA, mods='sc1')
        a(f's_add_u32 {sA}, {sA}, {43 * 1024}')
    a(f's_branch {lj}')
    a.label(l1)
    for tt in range(4):
        d = 108 + 2 * tt
        a(f'v_cvt_pk_bf16_f32 {vr(d)}, {vr(64 + 4 * tt)}, {vr(65 + 4 * tt)}')
        a(f'v_cvt_pk_bf16_f32 {vr(d + 1)}, {vr(66 + 4 * tt)}, {vr(67 + 4 * tt)}')
        bstore(d, 2, 20, WS, soff=sA, mods='sc1')
        a(f's_add_u32 {sA}, {sA}, {43 * 1024}')
    a.label(lj)
    a('s_waitcnt vmcnt(0)')
    a('s_barrier')
    a(f's_lshl_b32 {sE}, {sRB}, 3'); a(f's_add_u32 {sE}, {sE}, {sCS}')
    set_flag(WS_F5, sE)


W4R = 128
NSLOT = 18


def phase6():
    a(f's_lshl_b32 {sA}, {sCS}, 2'); a(f's_add_u32 {sA}, {sA}, {sCHL}'); a(f's_mul_i32 {sA}, {sA}, 43')
    a(f's_mul_i32 {sB}, {sQ}, 22'); a(f's_add_u32 {sA}, {sA}, {sB}')
    a(f's_lshl_b32 {sA}, {sA}, 10'); a(f's_add_u32 {sA}, {sA}, {WS_W4S}')
    a('v_lshlrev_b32 v20, 4, v1')
    a(f'v_add_u32 v21, {sA}, v20')
    for s in range(22):
        a(f's_mov_b32 {sB}, {1024 * s}')
        if s == 21:
            a(f's_cmp_eq_u32 {sQ}, 1')
            a(f's_cselect_b32 {sB}, 0x7ff00000, {sB}')
        bload(W4R + 4 * s, 4, 21, WS, soff=sB, mods='sc1')
    a(f's_lshl_b32 {sA}, {sCS}, 6'); a(f's_lshl_b32 {sB}, {sCHL}, 4'); a(f's_add_u32 {sA}, {sA}, {sB}')
    a(f's_add_u32 {sA}, {sA}, {5 * 512}'); a(f's_lshl_b32 {sA}, {sA}, 3'); a(f's_add_u32 {sA}, {sA}, {WS_MODG}')
    a(f'v_lshl_add_u32 v22, v3, 5, {sA}')
    bload(24, 4, 22, WS, mods='sc1')
    bload(28, 4, 22, WS, imm=16, mods='sc1')
    poll(WS_F5, 'own')
    a(f's_lshl_b32 {sA}, {sRB}, 2'); a(f's_add_u32 {sA}, {sA}, {sCHL}'); a(f's_mul_i32 {sA}, {sA}, 43')
    a(f's_mul_i32 {sB}, {sQ}, 22'); a(f's_add_u32 {sA}, {sA}, {sB}')
    a(f's_lshl_b32 {sA}, {sA}, 10'); a(f's_add_u32 {sE}, {sA}, {WS_H3}')
    a(f's_lshl_b32 {sF}, {sWV}, 10')

    def ring(s):
        a(f's_add_u32 {sC}, {sE}, {1024 * s}')
        if s == 21:
            a(f's_cmp_eq_u32 {sQ}, 1')
            a(f's_cselect_b32 {sC}, 0x7ff00000, {sC}')
        a(f's_add_u32 {sD}, {sF}, {8192 * (s % NSLOT)}')
        dma(4, 20, WS, sD, soff=sC, mods='sc1')
    for s in range(NSLOT):
        ring(s)
    a(f's_lshl_b32 {sA}, {sQ}, 12')
    a(f'v_add_u32 v23, {sA}, v20')
    AB = 32

    def lda(s):
        b = AB + 16 * (s & 1)
        off = 8192 * (s % NSLOT)
        ad = 'v23' if off + 3072 < 65536 else 'v22' if off + 3072 < 131072 else 'v21'
        base = 0 if ad == 'v23' else 65536 if ad == 'v22' else 131072
        for tt in range(4):
            a(f'ds_read_b128 {vr(b + 4 * tt, 4)}, {ad} offset:{off - base + 1024 * tt}')
    a('v_add_u32 v22, 65536, v23')
    a('v_add_u32 v21, 131072, v23')
    issued = NSLOT
    G = 2
    for s0 in range(0, 22, G):
        last = s0 + G - 1
        a(f's_waitcnt vmcnt({issued - 1 - last})')
        a('s_barrier')
        if s0 == 4:
            for s in range(NSLOT, 22):
                ring(s)
            issued = 22
        lda(s0)
        for s in range(s0, s0 + G):
            a('s_waitcnt lgkmcnt(0)')
            if s + 1 < s0 + G:
                lda(s + 1)
            b = AB + 16 * (s & 1)
            for tt in range(4):
                c = '0' if s == 0 else vr(100 + 4 * tt, 4)
                a(f'v_mfma_f32_16x16x32_bf16 {vr(100 + 4 * tt, 4)}, {vr(W4R + 4 * s, 4)}, {vr(b + 4 * tt, 4)}, {c}')
    a('s_barrier')
    LEX = 147456
    a(f's_lshl_b32 {sA}, {sWV}, 11')
    a(f's_add_u32 {sA}, {sA}, {LEX}')
    a(f'v_lshl_add_u32 v20, v1, 4, {sA}')
    lk1 = a.newlabel('L_k1'); lkd = a.newlabel('L_kd')
    a(f's_cmp_eq_u32 {sQ}, 1')
    a(f's_cbranch_scc1 {lk1}')
    a(f'ds_write_b128 v20, v[108:111]')
    a(f'ds_write_b128 v20, v[112:115] offset:1024')
    a(f's_branch {lkd}')
    a.label(lk1)
    a(f'ds_write_b128 v20, v[100:103]')
    a(f'ds_write_b128 v20, v[104:107] offset:1024')
    for k in range(8):
        a(f'v_mov_b32 {vr(100 + k)}, {vr(108 + k)}')
    a.label(lkd)
    a('s_waitcnt lgkmcnt(0)')
    a('s_barrier')
    a(f's_xor_b32 {sA}, {sWV}, 4')
    a(f's_lshl_b32 {sA}, {sA}, 11')
    a(f's_add_u32 {sA}, {sA}, {LEX}')
    a(f'v_lshl_add_u32 v20, v1, 4, {sA}')
    a('ds_read_b128 v[108:111], v20')
    a('ds_read_b128 v[112:115], v20 offset:1024')
    a(f's_lshl_b32 {sA}, {sRB}, 6'); a(f's_lshl_b32 {sB}, {sQ}, 5'); a(f's_add_u32 {sA}, {sA}, {sB}')
    a(f'v_add_u32 v21, {sA}, v2')
    a('v_lshlrev_b32 v21, 10, v21')
    a(f's_lshl_b32 {sA}, {sCS}, 7'); a(f's_lshl_b32 {sB}, {sCHL}, 5'); a(f's_add_u32 {sA}, {sA}, {sB}')
    a(f'v_lshl_add_u32 v22, v3, 3, {sA}')
    a('v_add_u32 v21, v21, v22')
    a('s_waitcnt lgkmcnt(0)')
    for e in range(2):
        for k in range(4):
            r = 100 + 4 * e + k
            a(f'v_add_f32 {vr(r)}, {vr(r)}, {vr(108 + 4 * e + k)}')
            for (src, dst) in ((X1R + 2 * e + (k >> 1), 60), (XS + 2 * e + (k >> 1), 61)):
                if k & 1:
                    a(f'v_and_b32 {vr(dst)}, 0xffff0000, {vr(src)}')
                else:
                    a(f'v_lshlrev_b32 {vr(dst)}, 16, {vr(src)}')
            a(f'v_add_f32 {vr(r)}, {vr(r)}, v60')
            a(f'v_fma_f32 {vr(r)}, {vr(24 + 2 * k)}, {vr(r)}, v61')
        a(f'v_cvt_pk_bf16_f32 {vr(64 + 2 * e)}, {vr(100 + 4 * e)}, {vr(101 + 4 * e)}')
        a(f'v_cvt_pk_bf16_f32 {vr(65 + 2 * e)}, {vr(102 + 4 * e)}, {vr(103 + 4 * e)}')
    bstore(64, 2, 21, OUT)
    a(f's_mov_b32 {sA}, 16384')
    bstore(66, 2, 21, OUT, soff=sA)


def finish():
    lf = a.newlabel('L_fin')
    a(f's_cmp_lg_u32 s2, 0')
    a(f's_cbranch_scc1 {lf}')
    a(f's_cmp_lg_u32 {sWV}, 0')
    a(f's_cbranch_scc1 {lf}')
    a(f'v_mov_b32 v21, {WS_EPOCH}')
    a(f'v_mov_b32 v22, {sT}')
    a('v_cmp_eq_u32 vcc, 0, v1')
    a(f's_and_saveexec_b64 s[{sP0}:{sP0 + 1}], vcc')
    bstore(22, 1, 21, WS, mods='sc1')
    a(f's_mov_b64 exec, s[{sP0}:{sP0 + 1}]')
    a.label(lf)
    a('s_waitcnt vmcnt(0)')
    a.label('L_END')
    a('s_endpgm')


def build(debug=True):
    global DEBUG
    DEBUG = debug
    prologue()
    phase_a()
    phase_b()
    if STOP_AFTER != 'B':
        phase3()
        if STOP_AFTER != '3':
            phase4()
            if STOP_AFTER != '4':
                phase5()
                if STOP_AFTER != '5':
                    phase6()
    finish()
    nops = a.fast_hazard_pass()
    errs = a.check_waits()
    for e in errs:
        print('WAIT-CHECK:', e, file=sys.stderr)
    hdr = open('adaLN_cond__ssm_conv_s4__mixer_s_mlp__prompt.s.ref').read().split('\n')
    head = [l for l in hdr if l.startswith(';') and '@launch' not in l and 'Override' not in l and 'grid=ceil' not in l]
    txt = '\n'.join(head) + '\n; @launch grid=(256,1,1) block=(512,1,1) lds=163840\n'
    txt += '.amdgcn_target "amdgcn-amd-amdhsa--gfx950"\n.text\n'
    txt += f'.globl {KNAME}\n.p2align 8\n.type {KNAME},@function\n{KNAME}:\n'
    txt += a.text()
    txt += f'''.section .rodata,"a"
.p2align 6
.amdhsa_kernel {KNAME}
  .amdhsa_next_free_vgpr 256
  .amdhsa_next_free_sgpr 102
  .amdhsa_accum_offset 256
  .amdhsa_group_segment_fixed_size 0
  .amdhsa_kernarg_size 152
  .amdhsa_user_sgpr_count 2
  .amdhsa_user_sgpr_kernarg_segment_ptr 1
  .amdhsa_system_sgpr_workgroup_id_x 1
  .amdhsa_float_denorm_mode_32 3
.end_amdhsa_kernel
'''
    print(f'instructions: {len(a.lines)}  hazard nops: {nops}', file=sys.stderr)
    return txt


if __name__ == '__main__':
    out = sys.argv[1] if len(sys.argv) > 1 else 'k.s'
    open(out, 'w').write(build(debug=os.environ.get('NODEBUG') is None))
```

```python
import sys, os
sys.path.insert(0, os.path.dirname(os.path.abspath(__file__)))
from asmlib import Asm
from layout import *

KNAME = 'adaLN_cond__ssm_conv_s4__mixer_s_mlp__prompt_kernel'
STOP_AFTER = os.environ.get('STOP_AFTER', '')
SPIN_MAX = 20000

sT = 's4'; sWV = 's5'; sX = 's6'; sJ = 's7'
U, WS, OUT = 8, 12, 16
ARE, AIM, BRE, BIM, CRE, CIM = 20, 24, 28, 32, 36, 40
LDT, DSK, CC, WMOD, W1, W2, W3, W4 = 44, 48, 52, 56, 60, 64, 68, 72
sCH0 = 's76'
sRB = 's77'; sCS = 's78'
sA, sB, sC, sD = 's80', 's81', 's82', 's83'
sSPIN = 's84'
sCHL = 's85'; sQ = 's86'
sE, sF = 's87', 's88'
sP0 = 90
sP1 = 92
sP2 = 94
sP3 = 96


def srd(n):
    return f's[{n}:{n + 3}]'


def vr(a, n=1):
    return f'v{a}' if n == 1 else f'v[{a}:{a + n - 1}]'


L_G = 0; G_ROW = 544; G_CH = 48 * G_ROW
L_E = 2 * G_CH; E_CH = 16 * G_ROW
L_KT = L_E + 2 * E_CH; KT_CH = 4352
L_COPY = L_KT + 2 * KT_CH; CP_R = 4160; CP_CH = 4 * CP_R
L_STG = L_COPY + 2 * CP_CH
L_PART = 0
L_XC = 143360
L_H = L_XC + 8192; H_CH = 4672
L_MISC = L_H + 2 * H_CH
KT_ZERO = 2175; KT_DUMMY = 2174
assert L_STG + 3 * 4096 <= L_XC and L_MISC + 1024 <= 163840

a = Asm()


def bload(dst, n, voff, s, imm=0, soff='0', mods=''):
    op = {1: 'buffer_load_dword', 2: 'buffer_load_dwordx2', 4: 'buffer_load_dwordx4', 'u16': 'buffer_load_ushort'}[n]
    cnt = 1 if n == 'u16' else n
    a(f'{op} {vr(dst, cnt)}, {vr(voff)}, {srd(s)}, {soff} offen' + (f' offset:{imm}' if imm else '') + (' ' + mods if mods else ''))


def bstore(src, n, voff, s, imm=0, soff='0', mods=''):
    op = {1: 'buffer_store_dword', 2: 'buffer_store_dwordx2', 4: 'buffer_store_dwordx4'}[n]
    a(f'{op} {vr(src, n)}, {vr(voff)}, {srd(s)}, {soff} offen' + (f' offset:{imm}' if imm else '') + (' ' + mods if mods else ''))


def dma(n, voff, s, m0, soff='0', mods=''):
    a(f's_mov_b32 m0, {m0}')
    op = {1: 'buffer_load_dword', 4: 'buffer_load_dwordx4'}[n]
    a(f'{op} {vr(voff)}, {srd(s)}, {soff} offen' + (' ' + mods if mods else '') + ' lds')


def cmul(d, x, y):
    a(f'v_pk_mul_f32 {vr(d, 2)}, {vr(x, 2)}, {vr(y, 2)} op_sel:[0,0] op_sel_hi:[0,1]')
    a(f'v_pk_fma_f32 {vr(d, 2)}, {vr(x, 2)}, {vr(y, 2)}, {vr(d, 2)} op_sel:[1,1,0] op_sel_hi:[1,0,1] neg_lo:[1,0,0]')


STAMPS = os.environ.get('STAMPS') is not None
stamp_names = []


STAMP_REGS = [3] + list(range(20, 48)) + list(range(52, 60))


def stamp(name):
    if not STAMPS:
        return
    if name in stamp_names:
        i = stamp_names.index(name)
    else:
        i = len(stamp_names)
        stamp_names.append(name)
    a(f's_memrealtime s[{sP3 + 2}:{sP3 + 3}]')
    a('s_waitcnt lgkmcnt(0)')
    a(f's_mov_b32 s{STAMP_REGS[i]}, s{sP3 + 2}')


def fconst(x):
    import struct
    return hex(struct.unpack('<I', struct.pack('<f', x))[0])


PADTO = int(os.environ.get('PADTO', '0'))


def prologue():
    if PADTO:
        a('s_memrealtime s[100:101]') if False else None
    a(f's_cmp_ge_u32 s2, 256')
    a(f's_cbranch_scc1 L_END')
    ptrs = [(U, 0), (ARE, 8), (AIM, 16), (BRE, 24), (BIM, 32), (CRE, 40), (CIM, 48), (LDT, 56), (DSK, 64),
            (W1, 80), (W2, 88), (W3, 96), (W4, 104), (CC, 112), (WMOD, 120), (OUT, 128), (WS, 144)]
    for r, off in ptrs:
        a(f's_load_dwordx2 s[{r}:{r + 1}], s[0:1], {off}')
    sizes = {U: 2 * 1024 * 1024, ARE: 131072, AIM: 131072, BRE: 131072, BIM: 131072, CRE: 131072, CIM: 131072,
             LDT: 1024, DSK: 1024, W1: 524288, W2: 524288, W3: 512 * F_ * 2, W4: 512 * F_ * 2, CC: 1024,
             WMOD: 512 * 3072 * 2, OUT: 2 * 1024 * 1024, WS: WS_USED + (WS_DBG_SIZE if DEBUG else 0)}
    for r, sz in sizes.items():
        a(f's_mov_b32 s{r + 2}, {sz}')
        a(f's_mov_b32 s{r + 3}, 0x20000')
    if PADTO:
        a('s_memrealtime s[78:79]')
        a('s_waitcnt lgkmcnt(0)')
        a('s_mov_b32 s3, s78')
    a('v_and_b32 v1, 63, v0')
    a('v_lshrrev_b32 v2, 6, v0')
    a('v_and_b32 v3, 15, v1')
    a(f'v_readfirstlane_b32 {sWV}, v2')
    a(f's_and_b32 {sX}, s2, 7')
    a(f's_lshr_b32 {sJ}, s2, 3')
    a(f's_lshl_b32 {sCH0}, {sX}, 6')
    a(f's_lshl_b32 {sA}, {sJ}, 1')
    a(f's_add_u32 {sCH0}, {sCH0}, {sA}')
    a(f's_lshl_b32 {sRB}, {sX}, 2')
    a(f's_lshr_b32 {sA}, {sJ}, 3')
    a(f's_add_u32 {sRB}, {sRB}, {sA}')
    a(f's_and_b32 {sCS}, {sJ}, 7')
    a('v_mov_b32 v2, v3')
    a('v_lshrrev_b32 v3, 4, v1')
    a('s_waitcnt lgkmcnt(0)')


def expansion_addrs():
    a('v_and_b32 v16, 255, v0')
    a('v_lshlrev_b32 v16, 3, v16')
    a('v_lshrrev_b32 v17, 8, v0')
    a(f'v_mul_u32_u24 v17, {KT_CH}, v17')
    a(f'v_add_u32 v17, {L_KT}, v17')
    a(f'v_add_u32 v18, {2 * KT_ZERO}, v17')
    for d in range(1, 12):
        dd = d - 4
        r = 4 + d
        if dd >= 0:
            a(f'v_add_u32 v19, {dd}, v16')
        else:
            a(f'v_subrev_u32 v19, {-dd}, v16')
        a('v_cvt_f32_i32 v20, v19')
        a('v_cvt_pk_bf16_f32 v20, v20, v20')
        a('v_lshlrev_b32 v20, 16, v20')
        a('v_cvt_u32_f32 v20, v20')
        a(f'v_lshl_add_u32 {vr(r)}, v20, 1, v17')
        if dd < 0:
            a('v_cmp_gt_i32 vcc, 0, v19')
            a(f'v_cndmask_b32 {vr(r)}, {vr(r)}, v18, vcc')


def role_k():
    a(f's_lshr_b32 {sA}, {sWV}, 1')
    a(f's_add_u32 {sB}, {sCH0}, {sA}')
    a(f's_and_b32 {sC}, {sWV}, 1')
    a(f's_lshl_b32 {sC}, {sC}, 6')
    a(f's_lshl_b32 {sD}, {sB}, 7')
    a(f's_add_u32 {sD}, {sD}, {sC}')
    a(f'v_add_u32 v21, {sD}, v1')
    a('v_lshlrev_b32 v21, 1, v21')
    a(f's_lshl_b32 {sB}, {sB}, 1')
    a(f'v_mov_b32 v22, {sB}')
    for i, s in enumerate((ARE, AIM, BRE, BIM, CRE, CIM)):
        bload(24 + i, 'u16', 21, s)
    bload(30, 'u16', 22, LDT)
    a(f's_load_dword {sT}, s[{WS}:{WS + 1}], {WS_EPOCH}')
    expansion_addrs()
    a(f's_mul_i32 {sB}, {sA}, {G_CH}')
    a(f's_add_u32 {sB}, {sB}, {L_G}')
    a(f'v_add_u32 v22, {sC}, v1')
    a('v_lshlrev_b32 v22, 2, v22')
    a(f'v_add_u32 v23, {sB}, v22')
    a(f's_mul_i32 {sB}, {sA}, {E_CH}')
    a(f's_add_u32 {sB}, {sB}, {L_E}')
    a(f'v_add_u32 v22, {sB}, v22')
    a('s_waitcnt vmcnt(0) lgkmcnt(0)')
    stamp('r_loaded')
    a(f's_add_u32 {sT}, {sT}, 1')
    for i in range(7):
        a(f'v_lshlrev_b32 {vr(24 + i)}, 16, {vr(24 + i)}')
    LOG2E = 1.4426950408889634
    import struct
    hi = struct.unpack('<f', struct.pack('<f', LOG2E))[0]
    lo = LOG2E - hi
    a(f's_mov_b32 {sB}, {fconst(hi)}')
    a(f's_mov_b32 {sD}, {fconst(lo)}')
    a(f'v_mul_f32 v32, {sB}, v30')
    a(f'v_fma_f32 v33, v30, {sB}, -v32')
    a(f'v_fma_f32 v33, v30, {sD}, v33')
    a('v_exp_f32 v32, v32')
    a(f'v_mul_f32 v33, {fconst(0.6931471805599453)}, v33')
    a('v_fma_f32 v32, v32, v33, v32')
    a('v_cvt_pk_bf16_f32 v32, v32, v32')
    a('v_lshlrev_b32 v30, 16, v32')
    a('v_mul_f32 v24, v24, v30')
    a('v_mul_f32 v25, v25, v30')
    a(f'v_mul_f32 v24, {sB}, v24')
    a(f'v_mul_f32 v25, {fconst(1.0 / (2 * 3.141592653589793))}, v25')
    a('v_mul_f32 v26, v26, v30')
    a('v_mul_f32 v27, v27, v30')
    cmul(32, 26, 28)
    for d, m in ((34, 1.0), (36, 8.0), (38, 128.0)):
        a(f'v_mul_f32 v40, {fconst(m)}, v24')
        a(f'v_mul_f32 v41, {fconst(m)}, v25')
        a('v_exp_f32 v40, v40')
        a('v_fract_f32 v41, v41')
        a('v_cos_f32 v42, v41')
        a('v_sin_f32 v43, v41')
        a(f'v_mul_f32 {vr(d)}, v40, v42')
        a(f'v_mul_f32 {vr(d + 1)}, v40, v43')
    P = {1: 34, 2: 44, 3: 46, 4: 48, 5: 50, 6: 52, 7: 54}
    cmul(P[2], P[1], P[1])
    cmul(P[3], P[2], P[1])
    cmul(P[4], P[2], P[2])
    cmul(P[5], P[4], P[1])
    cmul(P[6], P[4], P[2])
    cmul(P[7], P[4], P[3])

    def putG(rho, x):
        a(f'v_cvt_pk_bf16_f32 v31, {vr(x)}, -{vr(x + 1)}')
        a(f'ds_write_b32 v23, v31 offset:{rho * G_ROW}')

    def putE(j, x):
        a(f'v_cvt_pk_bf16_f32 v29, {vr(x)}, {vr(x + 1)}')
        a(f'ds_write_b32 v22, v29 offset:{j * G_ROW}')

    rows = {}
    for rho in range(41):
        if rho < 16:
            i, b = rho >> 3, rho & 7
        elif rho < 24:
            i, b = 2 + ((rho - 16) >> 2), 2 * ((rho - 16) & 3)
        elif rho < 32:
            i, b = 4 + ((rho - 24) >> 1), 4 * ((rho - 24) & 1)
        else:
            i, b = 8 + (rho - 32), 0
        rows.setdefault(i, []).append((rho, b))
    a('v_mov_b32 v29, 0x00003f80')
    a('ds_write_b32 v22, v29 offset:0')
    putE(1, 36)
    Ecur = 36
    Q = 32
    for i in range(17):
        for n_, (rho, b) in enumerate(rows[i]):
            if b == 0:
                putG(rho, Q)
            else:
                t = 64 + 2 * (n_ & 1)
                cmul(t, Q, P[b])
                putG(rho, t)
        if i < 16:
            nq = 60 if Q != 60 else 62
            cmul(nq, Q, 38)
            Q = nq
        j = i + 2
        if j < 16:
            ne = 56 if Ecur != 56 else 58
            cmul(ne, Ecur, 36)
            putE(j, ne)
            Ecur = ne
    a('s_waitcnt lgkmcnt(0)')


def role_stats():
    a(f's_lshl_b32 {sA}, s2, 13')
    a('v_lshlrev_b32 v21, 4, v1')
    a(f'v_add_u32 v21, {sA}, v21')
    for i in range(8):
        bload(24 + 4 * i, 4, 21, U, imm=0, soff='0') if i == 0 else None
        if i > 0:
            if i * 1024 < 4096:
                bload(24 + 4 * i, 4, 21, U, imm=i * 1024)
            else:
                if i == 4:
                    a('v_add_u32 v22, 4096, v21')
                bload(24 + 4 * i, 4, 22, U, imm=(i - 4) * 1024)
    a(f's_load_dword {sT}, s[{WS}:{WS + 1}], {WS_EPOCH}')
    expansion_addrs()
    a('s_waitcnt lgkmcnt(0)')
    a(f's_add_u32 {sT}, {sT}, 1')
    a(f's_mov_b32 {sA}, 0x3f803f80')
    a('s_waitcnt vmcnt(7)')
    stamp('r_loaded')
    for i in range(8):
        a(f's_waitcnt vmcnt({7 - i})')
        b = 24 + 4 * i
        a(f'v_dot2_f32_bf16 {vr(60 + i)}, {vr(b)}, {sA}, 0')
        a(f'v_dot2_f32_bf16 {vr(68 + i)}, {vr(b)}, {vr(b)}, 0')
        for k in range(1, 4):
            a(f'v_dot2_f32_bf16 {vr(60 + i)}, {vr(b + k)}, {sA}, {vr(60 + i)}')
            a(f'v_dot2_f32_bf16 {vr(68 + i)}, {vr(b + k)}, {vr(b + k)}, {vr(68 + i)}')
    for base in (60, 68):
        for i in range(4):
            a(f'v_permlane32_swap_b32 {vr(base + i)}, {vr(base + i + 4)}')
        for i in range(4):
            a(f'v_add_f32 {vr(base + i)}, {vr(base + i)}, {vr(base + i + 4)}')
    for base in (60, 68):
        for i in range(2):
            a(f'v_permlane16_swap_b32 {vr(base + i)}, {vr(base + i + 2)}')
        for i in range(2):
            a(f'v_add_f32 {vr(base + i)}, {vr(base + i)}, {vr(base + i + 2)}')
    for sh in (1, 2, 4, 8):
        for r in (60, 61, 68, 69):
            a(f'v_add_f32_dpp {vr(r)}, {vr(r)}, {vr(r)} row_ror:{sh} row_mask:0xf bank_mask:0xf')
    a(f's_mov_b32 {sA}, {fconst(1.0 / 512)}')
    for p in range(2):
        S, Q = 60 + p, 68 + p
        a(f'v_mul_f32 {vr(S)}, {sA}, {vr(S)}')
        a(f'v_mul_f32 {vr(Q)}, {sA}, {vr(Q)}')
        a(f'v_fma_f32 {vr(Q)}, -{vr(S)}, {vr(S)}, {vr(Q)}')
        a(f'v_add_f32 {vr(Q)}, {fconst(1e-5)}, {vr(Q)}')
        a(f'v_rsq_f32 {vr(Q)}, {vr(Q)}')
    for p in range(2):
        d = 72 + 4 * p
        a(f'v_mov_b32 {vr(d)}, {vr(68 + p)}')
        a(f'v_mov_b32 {vr(d + 1)}, {sT}')
        a(f'v_mul_f32 {vr(d + 2)}, {vr(60 + p)}, {vr(68 + p)}')
        a(f'v_mov_b32 {vr(d + 3)}, {sT}')
    a(f's_lshl_b32 {sA}, s2, 7')
    a(f's_add_u32 {sA}, {sA}, {WS_STATS}')
    a('v_lshlrev_b32 v21, 5, v3')
    a(f'v_add_u32 v21, {sA}, v21')
    a('v_cmp_eq_u32 vcc, 0, v2')
    a(f's_and_saveexec_b64 s[{sP0}:{sP0 + 1}], vcc')
    bstore(72, 4, 21, WS, mods='sc1')
    bstore(76, 4, 21, WS, imm=16, mods='sc1')
    a(f's_mov_b64 exec, s[{sP0}:{sP0 + 1}]')


def role_mod_issue():
    a(f's_lshr_b32 {sA}, {sJ}, 2')
    a(f's_lshl_b32 {sA}, {sA}, 3')
    a(f's_add_u32 {sA}, {sA}, {sX}')
    a(f's_lshl_b32 {sA}, {sA}, 6')
    a(f's_and_b32 {sB}, {sJ}, 3')
    a(f's_lshl_b32 {sB}, {sB}, 4')
    a(f's_add_u32 {sE}, {sA}, {sB}')
    a('v_lshrrev_b32 v21, 1, v1')
    a('v_lshlrev_b32 v22, 1, v21')
    for i in range(16):
        bload(24 + i, 'u16', 22, CC, imm=64 * i)
    a('v_mul_u32_u24 v23, 6144, v21')
    a('v_and_b32 v40, 1, v1')
    a('v_lshlrev_b32 v40, 4, v40')
    a('v_add_u32 v23, v23, v40')
    a(f's_lshl_b32 {sA}, {sE}, 1')
    a(f'v_add_u32 v23, {sA}, v23')
    a(f's_mov_b32 {sB}, 0')
    for i in range(16):
        a(f's_mov_b32 {sB}, {i * 32 * 6144}')
        bload(64 + 4 * i, 4, 23, WMOD, soff=sB)


def role_mod_compute(nlater):
    a(f's_waitcnt vmcnt({16 + nlater})')
    stamp('r_loaded')
    for i in range(16):
        r = 24 + i
        a(f'v_lshlrev_b32 {vr(r)}, 16, {vr(r)}')
        a(f'v_mul_f32 v58, {fconst(-1.4426950408889634)}, {vr(r)}')
        a('v_exp_f32 v58, v58')
        a('v_add_f32 v58, 1.0, v58')
        a('v_rcp_f32 v58, v58')
        a(f'v_mul_f32 v58, v58, {vr(r)}')
        a('v_cvt_pk_bf16_f32 v58, v58, v58')
        a(f'v_and_b32 {vr(r)}, 0xffff, v58')
        a(f'v_lshlrev_b32 {vr(40 + i)}, 16, v58')
    for i in range(16):
        a(f's_waitcnt vmcnt({15 - i + nlater})')
        b = 64 + 4 * i
        for k in range(4):
            c0 = '0' if i == 0 else vr(128 + 2 * k)
            c1 = '0' if i == 0 else vr(129 + 2 * k)
            a(f'v_dot2_f32_bf16 {vr(128 + 2 * k)}, {vr(b + k)}, {vr(24 + i)}, {c0}')
            a(f'v_dot2_f32_bf16 {vr(129 + 2 * k)}, {vr(b + k)}, {vr(40 + i)}, {c1}')
    for i in range(4):
        a(f'v_permlane32_swap_b32 {vr(128 + i)}, {vr(132 + i)}')
    for i in range(4):
        a(f'v_add_f32 {vr(128 + i)}, {vr(128 + i)}, {vr(132 + i)}')
    for i in range(2):
        a(f'v_permlane16_swap_b32 {vr(128 + i)}, {vr(130 + i)}')
    for i in range(2):
        a(f'v_add_f32 {vr(128 + i)}, {vr(128 + i)}, {vr(130 + i)}')
    for sh in (2, 4, 8):
        for r in (128, 129):
            a(f'v_add_f32_dpp {vr(r)}, {vr(r)}, {vr(r)} row_ror:{sh} row_mask:0xf bank_mask:0xf')
    a('v_and_b32 v21, 1, v3')
    a('v_lshlrev_b32 v21, 1, v21')
    a('v_lshrrev_b32 v22, 1, v3')
    a('v_lshl_add_u32 v21, v22, 2, v21')
    a('v_and_b32 v22, 1, v1')
    a('v_lshl_add_u32 v21, v22, 3, v21')
    a(f'v_add_u32 v21, {sE}, v21')
    a('v_lshlrev_b32 v21, 3, v21')
    a(f'v_add_u32 v21, {WS_MODG}, v21')
    a(f'v_mov_b32 v130, v129')
    a(f'v_mov_b32 v129, {sT}')
    a(f'v_mov_b32 v131, {sT}')
    a('v_cmp_gt_u32 vcc, 2, v2')
    a(f's_and_saveexec_b64 s[{sP0}:{sP0 + 1}], vcc')
    bstore(128, 4, 21, WS, mods='sc1')
    a(f's_mov_b64 exec, s[{sP0}:{sP0 + 1}]')


def gather_issue():
    a(f's_sub_u32 {sA}, {sWV}, 4')
    a(f's_lshl_b32 {sB}, {sA}, 9')
    a(f'v_add_u32 v21, {sB}, v1')
    a('v_lshlrev_b32 v21, 10, v21')
    a(f's_lshl_b32 {sC}, {sCH0}, 1')
    a(f'v_add_u32 v21, {sC}, v21')
    a(f's_lshl_b32 {sB}, {sB}, 2')
    a(f's_add_u32 {sB}, {sB}, {L_XC}')
    for i in range(8):
        a(f's_mov_b32 {sC}, {i * 64 * 1024}')
        a(f's_add_u32 {sD}, {sB}, {i * 256}')
        dma(1, 21, U, sD, soff=sC)


def swz_issue():
    a(f's_mul_i32 {sA}, s2, 3')
    a(f's_add_u32 {sA}, {sA}, {sWV}')
    a(f's_sub_u32 {sA}, {sA}, 5')
    a('v_lshrrev_b32 v44, 3, v1')
    a('v_and_b32 v45, 7, v1')
    a('v_lshlrev_b32 v45, 4, v45')
    a(f's_sub_u32 {sB}, {sWV}, 5')
    a(f's_lshl_b32 {sB}, {sB}, 12')
    a(f's_add_u32 s101, {sB}, {L_STG}')
    lw4 = a.newlabel('L_swz4'); ldone = a.newlabel('L_swzd'); lnone = a.newlabel('L_swzn')
    a(f's_mov_b32 s99, 0')
    a(f's_cmp_ge_u32 {sA}, 352')
    a(f's_cbranch_scc1 {lw4}')
    a(f's_lshr_b32 {sB}, {sA}, 4')
    a(f's_and_b32 {sC}, {sA}, 15')
    a(f's_lshl_b32 s98, {sB}, 2')
    a(f's_lshl_b32 s98, s98, 4')
    a(f's_add_u32 s98, s98, {sC}')
    a(f's_lshl_b32 s98, s98, 10')
    a(f's_add_u32 s98, s98, {WS_W3S}')
    a(f's_mov_b32 s100, {16 * 1024}')
    a(f's_cmp_eq_u32 {sB}, 21')
    a(f's_cselect_b32 s99, 2, 4')
    a(f's_mul_i32 {sC}, {sC}, {32 * F_ * 2}')
    a(f's_lshl_b32 {sB}, {sB}, 7')
    a(f's_add_u32 {sC}, {sC}, {sB}')
    a(f'v_mul_u32_u24 v44, {F_ * 2}, v44')
    a('v_add_u32 v44, v44, v45')
    for q in range(4):
        a(f's_add_u32 {sD}, {sC}, {q * 8 * F_ * 2}')
        a(f's_add_u32 {sB}, s101, {q * 1024}')
        dma(4, 44, W3, sB, soff=sD)
    a(f's_branch {ldone}')
    a.label(lw4)
    a(f's_sub_u32 {sA}, {sA}, 352')
    a(f's_cmp_ge_u32 {sA}, 344')
    a(f's_cbranch_scc1 {lnone}')
    a(f's_lshr_b32 {sC}, {sA}, 3')
    a(f's_and_b32 {sB}, {sA}, 7')
    a(f's_mul_i32 s98, {sB}, {4 * 43}')
    a(f's_add_u32 s98, s98, {sC}')
    a(f's_lshl_b32 s98, s98, 10')
    a(f's_add_u32 s98, s98, {WS_W4S}')
    a(f's_mov_b32 s100, {43 * 1024}')
    a(f's_mov_b32 s99, 4')
    a(f's_lshl_b32 {sC}, {sC}, 15')
    a(f's_lshl_b32 {sB}, {sB}, 7')
    a(f's_add_u32 {sC}, {sC}, {sB}')
    a('v_lshlrev_b32 v44, 10, v44')
    a('v_add_u32 v44, v44, v45')
    for q in range(4):
        a(f's_add_u32 {sD}, {sC}, {q * 8 * 1024}')
        a(f's_add_u32 {sB}, s101, {q * 1024}')
        dma(4, 44, W4, sB, soff=sD)
    a(f's_branch {ldone}')
    a.label(lnone)
    for q in range(4):
        a(f's_add_u32 {sB}, s101, {q * 1024}')
        dma(4, 45, W4, sB)
    a.label(ldone)


def swz_finish():
    a('v_lshrrev_b32 v46, 2, v2')
    a('v_lshl_add_u32 v46, v3, 2, v46')
    a('v_lshlrev_b32 v46, 7, v46')
    a('v_and_b32 v47, 3, v2')
    a('v_lshl_add_u32 v46, v47, 3, v46')
    a(f'v_add_u32 v46, s101, v46')
    for nt in range(4):
        a(f'ds_read_b64_tr_b16 {vr(48 + 4 * nt, 2)}, v46 offset:{32 * nt}')
        a(f'ds_read_b64_tr_b16 {vr(50 + 4 * nt, 2)}, v46 offset:{32 * nt + 2048}')
    a('v_lshlrev_b32 v47, 4, v1')
    a('s_waitcnt lgkmcnt(0)')
    lskip = a.newlabel('L_swzs')
    a(f's_mov_b32 {sA}, s98')
    for nt in range(4):
        a(f's_cmp_le_u32 s99, {nt}')
        a(f's_cbranch_scc1 {lskip}')
        bstore(48 + 4 * nt, 4, 47, WS, soff=sA, mods='sc1')
        a(f's_add_u32 {sA}, {sA}, s100')
    a.label(lskip)


def phase_a():
    lk = 'L_roleK'; l5 = 'L_role5'; l67 = 'L_role67'; lj = 'L_A_join'
    stamp('entry')
    a(f's_cmp_lt_u32 {sWV}, 4')
    a(f's_cbranch_scc1 {lk}')
    a(f's_cmp_eq_u32 {sWV}, 5')
    a(f's_cbranch_scc1 {l5}')
    a(f's_cmp_gt_u32 {sWV}, 5')
    a(f's_cbranch_scc1 {l67}')
    role_stats()
    stamp('r_pub')
    gather_issue()
    a(f's_branch {lj}')
    a.label(l5)
    lnomod = a.newlabel('L_nomod'); l5b = a.newlabel('L_5b')
    a(f's_cmp_ge_u32 s2, 192')
    a(f's_cbranch_scc1 {lnomod}')
    role_mod_issue()
    swz_issue()
    a(f's_load_dword {sT}, s[{WS}:{WS + 1}], {WS_EPOCH}')
    expansion_addrs()
    a('s_waitcnt lgkmcnt(0)')
    a(f's_add_u32 {sT}, {sT}, 1')
    role_mod_compute(4)
    stamp('r_pub')
    a(f's_branch {l5b}')
    a.label(lnomod)
    swz_issue()
    a(f's_load_dword {sT}, s[{WS}:{WS + 1}], {WS_EPOCH}')
    expansion_addrs()
    a('s_waitcnt lgkmcnt(0)')
    a(f's_add_u32 {sT}, {sT}, 1')
    a.label(l5b)
    a('s_waitcnt vmcnt(1)') if False else None
    a('s_waitcnt vmcnt(0)')
    gather_issue()
    swz_finish()
    a(f's_branch {lj}')
    a.label(l67)
    swz_issue()
    a(f's_load_dword {sT}, s[{WS}:{WS + 1}], {WS_EPOCH}')
    expansion_addrs()
    a('s_waitcnt lgkmcnt(0)')
    a(f's_add_u32 {sT}, {sT}, 1')
    a('s_waitcnt vmcnt(0)')
    stamp('r_loaded')
    gather_issue()
    swz_finish()
    a(f's_branch {lj}')
    a.label(lk)
    role_k()
    a.label(lj)
    a('v_mov_b32 v24, 0'); a('v_mov_b32 v25, 0'); a('v_mov_b32 v26, 0'); a('v_mov_b32 v27, 0')
    a('v_lshrrev_b32 v21, 5, v0')
    a(f'v_mul_u32_u24 v21, {H_CH}, v21')
    a('v_and_b32 v22, 31, v0')
    a('v_lshl_add_u32 v21, v22, 4, v21')
    a(f'v_add_u32 v21, {L_H}, v21')
    a('v_subrev_u32 v22, 64, v0')
    a('v_lshrrev_b32 v23, 1, v22')
    a(f'v_mul_u32_u24 v23, {CP_R}, v23')
    a('v_and_b32 v22, 1, v0')
    a('v_lshl_add_u32 v23, v22, 4, v23')
    a(f'v_add_u32 v23, {L_COPY}, v23')
    a('v_cmp_gt_u32 vcc, 64, v0')
    a('v_cndmask_b32 v21, v23, v21, vcc')
    a('v_cmp_gt_u32 vcc, 80, v0')
    a(f's_and_saveexec_b64 s[{sP0}:{sP0 + 1}], vcc')
    lz = a.newlabel('L_z')
    a(f's_cbranch_execz {lz}')
    a('ds_write_b128 v21, v[24:27]')
    a.label(lz)
    a(f's_mov_b64 exec, s[{sP0}:{sP0 + 1}]')
    a('v_and_b32 v22, 1, v0')
    a(f'v_mul_u32_u24 v22, {KT_CH}, v22')
    a(f'v_add_u32 v22, {L_KT + 2 * KT_ZERO}, v22')
    a('v_cmp_gt_u32 vcc, 2, v0')
    a(f's_and_saveexec_b64 s[{sP0}:{sP0 + 1}], vcc')
    lz = a.newlabel('L_z')
    a(f's_cbranch_execz {lz}')
    a('ds_write_b16 v22, v24')
    a.label(lz)
    a(f's_mov_b64 exec, s[{sP0}:{sP0 + 1}]')
    a('s_waitcnt lgkmcnt(0)')
    stamp('role_done')
    a('s_barrier')
    stamp('B1')
    lsk = a.newlabel('L_kmf')
    a(f's_cmp_ge_u32 {sWV}, 6')
    a(f's_cbranch_scc1 {lsk}')
    a(f's_cmp_ge_u32 {sWV}, 3')
    a(f's_cselect_b32 {sA}, 1, 0')
    a(f's_mul_i32 {sB}, {sA}, 3')
    a(f's_sub_u32 {sB}, {sWV}, {sB}')
    a(f's_mul_i32 {sC}, {sA}, {G_CH}')
    a(f's_mul_i32 {sD}, {sB}, {16 * G_ROW}')
    a(f's_add_u32 {sC}, {sC}, {sD}')
    a(f'v_mul_u32_u24 v21, {G_ROW}, v2')
    a('v_lshl_add_u32 v21, v3, 4, v21')
    a(f'v_add_u32 v22, {sC}, v21')
    a(f's_mul_i32 {sC}, {sA}, {E_CH}')
    a(f's_add_u32 {sC}, {sC}, {L_E}')
    a(f'v_add_u32 v23, {sC}, v21')
    for ks in range(8):
        a(f'ds_read_b128 {vr(24 + 8 * ks, 4)}, v22 offset:{64 * ks}')
        a(f'ds_read_b128 {vr(28 + 8 * ks, 4)}, v23 offset:{64 * ks}')
    a(f's_mul_i32 {sC}, {sA}, {KT_CH}')
    a(f's_add_u32 {sC}, {sC}, {L_KT}')
    lt1 = a.newlabel('L_t1'); lt2 = a.newlabel('L_t2'); ltd = a.newlabel('L_td')
    a(f's_cmp_eq_u32 {sB}, 1'); a(f's_cbranch_scc1 {lt1}')
    a(f's_cmp_eq_u32 {sB}, 2'); a(f's_cbranch_scc1 {lt2}')
    a('v_lshrrev_b32 v96, 1, v3'); a('v_lshlrev_b32 v96, 7, v96')
    a('v_and_b32 v97, 1, v3'); a('v_lshl_add_u32 v96, v97, 2, v96')
    for r in range(4):
        a(f'v_add_u32 {vr(92 + r)}, {r}, v96')
    a(f's_branch {ltd}')
    a.label(lt1)
    a('v_cmp_gt_u32 vcc, 2, v3')
    for r in range(4):
        a(f'v_add_u32 v96, 2, v3'); a('v_lshlrev_b32 v96, 7, v96'); a(f'v_add_u32 v96, {2 * r}, v96')
        a(f'v_lshlrev_b32 v97, 1, v3'); a(f'v_add_u32 v97, {r >> 1}, v97'); a('v_lshlrev_b32 v97, 7, v97')
        a(f'v_add_u32 v97, {4 * (r & 1)}, v97')
        a(f'v_cndmask_b32 {vr(92 + r)}, v97, v96, vcc')
    a(f's_branch {ltd}')
    a.label(lt2)
    for r in range(4):
        a('v_lshlrev_b32 v96, 2, v3'); a(f'v_add_u32 v96, {8 + r}, v96'); a('v_lshlrev_b32 v96, 7, v96')
        a('v_lshlrev_b32 v97, 3, v2'); a(f'v_sub_u32 v97, {KT_DUMMY}, v97')
        lim = 3 if r == 0 else 2
        a(f'v_cmp_gt_u32 vcc, {lim}, v3')
        a(f'v_cndmask_b32 {vr(92 + r)}, v97, v96, vcc')
    a.label(ltd)
    a('v_lshlrev_b32 v96, 3, v2')
    for r in range(4):
        a(f'v_add_u32 {vr(92 + r)}, {vr(92 + r)}, v96')
        a(f'v_lshlrev_b32 {vr(92 + r)}, 1, {vr(92 + r)}')
        a(f'v_add_u32 {vr(92 + r)}, {sC}, {vr(92 + r)}')
    for ks in range(8):
        a(f's_waitcnt lgkmcnt({14 - 2 * ks})')
        c = '0' if ks == 0 else 'v[88:91]'
        a(f'v_mfma_f32_16x16x32_bf16 v[88:91], {vr(24 + 8 * ks, 4)}, {vr(28 + 8 * ks, 4)}, {c}')
    a('v_cvt_pk_bf16_f32 v96, v88, v89')
    a('v_cvt_pk_bf16_f32 v97, v90, v91')
    a('ds_write_b16 v92, v96')
    a('ds_write_b16_d16_hi v93, v96')
    a('ds_write_b16 v94, v97')
    a('ds_write_b16_d16_hi v95, v97')
    a('s_waitcnt lgkmcnt(0)')
    a.label(lsk)
    a('s_barrier')
    stamp('B2')
    for d in range(1, 12):
        a(f'ds_read_u16 {vr(24 + d)}, {vr(4 + d)}')
    a('v_lshrrev_b32 v21, 8, v0')
    a(f'v_mul_u32_u24 v21, {CP_CH}, v21')
    a('v_and_b32 v22, 255, v0')
    a('v_lshl_add_u32 v21, v22, 4, v21')
    a(f'v_add_u32 v21, {L_COPY + 32}, v21')
    a('s_waitcnt lgkmcnt(0)')
    for r in range(4):
        d = 36 + 4 * r
        for p in range(4):
            a(f'v_lshl_or_b32 {vr(d + p)}, {vr(24 + 5 + 2 * p - r)}, 16, {vr(24 + 4 + 2 * p - r)}')
        a(f'ds_write_b128 v21, {vr(d, 4)} offset:{r * CP_R}')


def spin_guard(label_retry, label_ok):
    a(f's_add_u32 {sSPIN}, {sSPIN}, 1')
    a(f's_cmp_lt_u32 {sSPIN}, {SPIN_MAX}')
    a(f's_cbranch_scc1 {label_retry}')


def phase_b():
    stamp('expanded')
    a('v_lshlrev_b32 v21, 6, v0')
    a(f'v_add_u32 v21, {WS_STATS}, v21')
    a(f's_lshl_b32 {sA}, {sCH0}, 3')
    a(f's_add_u32 {sA}, {sA}, {WS_MODG}')
    a(f'v_mov_b32 v22, {sA}')
    a(f's_mov_b32 {sB}, 4096'); a(f's_mov_b32 {sC}, 8192')
    a(f's_mov_b32 {sSPIN}, 0')
    lp = 'L_S1_poll'; lok = 'L_S1_ok'
    a.label(lp)
    for i in range(4):
        bload(44 + 4 * i, 4, 21, WS, imm=16 * i, mods='sc1')
    bload(60, 4, 22, WS, mods='sc1')
    bload(64, 4, 22, WS, soff=sB, mods='sc1')
    bload(68, 4, 22, WS, soff=sC, mods='sc1')
    a('s_waitcnt vmcnt(0)')
    tags = [45, 47, 49, 51, 53, 55, 57, 59, 61, 63, 65, 67, 69, 71]
    a(f'v_min3_u32 v72, {vr(tags[0])}, {vr(tags[1])}, {vr(tags[2])}')
    a(f'v_max3_u32 v73, {vr(tags[0])}, {vr(tags[1])}, {vr(tags[2])}')
    k = 3
    while k < len(tags):
        t2 = tags[k + 1] if k + 1 < len(tags) else tags[k]
        a(f'v_min3_u32 v72, v72, {vr(tags[k])}, {vr(t2)}')
        a(f'v_max3_u32 v73, v73, {vr(tags[k])}, {vr(t2)}')
        k += 2
    a(f'v_cmp_ne_u32 vcc, {sT}, v72')
    a(f'v_cmp_ne_u32 s[{sP0}:{sP0 + 1}], {sT}, v73')
    a('s_nop 0')
    a(f's_or_b64 vcc, vcc, s[{sP0}:{sP0 + 1}]')
    a(f's_cbranch_vccz {lok}')
    spin_guard(lp, lok)
    a.label(lok)
    a('s_waitcnt lgkmcnt(0)')
    stamp('S1ok')
    a('s_barrier')
    a('v_lshlrev_b32 v23, 4, v0')
    a(f'v_add_u32 v23, {L_XC}, v23')
    a('ds_read_b128 v[72:75], v23')
    a('v_add_f32 v64, 1.0, v64'); a('v_add_f32 v66, 1.0, v66')
    a(f's_lshr_b32 {sCHL}, {sWV}, 2'); a(f's_and_b32 {sQ}, {sWV}, 3')
    a(f's_add_u32 {sA}, {sCH0}, {sCHL}'); a(f's_lshl_b32 {sA}, {sA}, 1')
    a(f'v_mov_b32 v77, {sA}')
    bload(76, 'u16', 77, DSK)
    a('s_waitcnt lgkmcnt(0)')
    for i in range(4):
        r, mr = 44 + 4 * i, 46 + 4 * i
        a(f'v_lshlrev_b32 v80, 16, {vr(72 + i)}')
        a(f'v_and_b32 v81, 0xffff0000, {vr(72 + i)}')
        a(f'v_fma_f32 v80, v80, {vr(r)}, -{vr(mr)}')
        a(f'v_fma_f32 v81, v81, {vr(r)}, -{vr(mr)}')
        a(f'v_fma_f32 {vr(82 + i)}, v80, v64, v60')
        a(f'v_fma_f32 {vr(86 + i)}, v81, v66, v62')
    a('v_cvt_pk_bf16_f32 v90, v82, v83'); a('v_cvt_pk_bf16_f32 v91, v84, v85')
    a('v_cvt_pk_bf16_f32 v92, v86, v87'); a('v_cvt_pk_bf16_f32 v93, v88, v89')
    a('v_lshlrev_b32 v23, 3, v0')
    a(f'v_add_u32 v23, {L_H + 512}, v23')
    a('ds_write_b64 v23, v[90:91]')
    a(f'ds_write_b64 v23, v[92:93] offset:{H_CH}')
    a(f's_cmp_eq_u32 {sCHL}, 0')
    a(f's_cselect_b64 vcc, -1, 0')
    a('v_cndmask_b32 v78, v70, v68, vcc')
    a(f's_mul_i32 {sA}, {sCHL}, {H_CH}')
    a(f's_lshl_b32 {sB}, {sQ}, 6')
    a(f's_sub_u32 {sA}, {sA}, {sB}')
    a(f's_add_u32 {sA}, {sA}, {L_H + 480 - 256}')
    a('v_lshlrev_b32 v21, 5, v2')
    a('v_lshl_add_u32 v21, v3, 4, v21')
    a(f'v_add_u32 v21, {sA}, v21')
    a(f's_mul_i32 {sA}, {sCHL}, {CP_CH}')
    a(f's_add_u32 {sA}, {sA}, {sB}')
    a(f's_add_u32 {sA}, {sA}, {L_COPY + 64 - 8}')
    a('v_lshrrev_b32 v22, 2, v2')
    a(f'v_mul_u32_u24 v22, {CP_R}, v22')
    a('v_and_b32 v23, 3, v2')
    a('v_lshl_add_u32 v22, v23, 3, v22')
    a('v_lshlrev_b32 v23, 4, v3')
    a('v_sub_u32 v22, v22, v23')
    a(f'v_add_u32 v22, {sA}, v22')
    a(f's_lshl_b32 {sA}, {sWV}, 13')
    a('v_lshlrev_b32 v23, 4, v1')
    a(f'v_add_u32 v23, {sA}, v23')
    a('s_waitcnt lgkmcnt(0)')
    a('s_barrier')
    stamp('B3')
    BF = 96; ACC = 160; AF = 24
    order = [1, 0] + list(range(2, 16))
    first = [u for u in range(1, 16, 2)] + [u for u in range(0, 16, 2)]

    def ldA(i):
        r = AF + 4 * (i % 4)
        a(f'ds_read_b64_tr_b16 {vr(r, 2)}, v22 offset:{256 * i + 8}')
        a(f'ds_read_b64_tr_b16 {vr(r + 2, 2)}, v22 offset:{256 * i}')
    ldA(0)
    for u in first[:8]:
        a(f'ds_read_b128 {vr(BF + 4 * u, 4)}, v21 offset:{256 * u}')
    ldA(1)
    issued_even = False
    for i in range(16):
        nmin = max(0, (i - 1 + 1) // 2) if i >= 1 else 0
        nmin = (i) // 2 if i >= 1 else 0
        if i == 0:
            a('s_waitcnt lgkmcnt(2)')
            for u in first[8:]:
                a(f'ds_read_b128 {vr(BF + 4 * u, 4)}, v21 offset:{256 * u}')
            ldA(2)
        elif i == 1:
            a('s_waitcnt lgkmcnt(2)')
            ldA(3)
        else:
            pend = 2 if i + 1 < 16 else 0
            wr_prev = 1 if (i - 1) >= 2 and (i - 1) % 2 == 0 else 0
            a(f's_waitcnt lgkmcnt({pend + wr_prev})')
            if i + 2 < 16:
                ldA(i + 2)
        for n in range(nmin, 8):
            u = 2 * n - i + 1
            c = '0' if i == 0 else vr(ACC + 4 * n, 4)
            a(f'v_mfma_f32_16x16x32_bf16 {vr(ACC + 4 * n, 4)}, {vr(AF + 4 * (i % 4), 4)}, {vr(BF + 4 * u, 4)}, {c}')
        if i >= 2 and i % 2 == 0:
            n = i // 2 - 1
            a(f'ds_write_b128 v23, {vr(ACC + 4 * n, 4)} offset:{1024 * n}')
    a(f'ds_write_b128 v23, {vr(ACC + 28, 4)} offset:{1024 * 7}')
    a('s_waitcnt lgkmcnt(0)')
    a('s_barrier')
    stamp('B4')
    a(f's_lshl_b32 {sA}, {sCHL}, 15')
    a(f's_lshl_b32 {sB}, {sQ}, 11')
    a(f's_add_u32 {sA}, {sA}, {sB}')
    a('v_lshlrev_b32 v23, 4, v1')
    a(f'v_add_u32 v23, {sA}, v23')
    for nn in range(2):
        for qq in range(4):
            a(f'ds_read_b128 {vr(96 + 16 * nn + 4 * qq, 4)}, v23 offset:{8192 * qq + 1024 * nn}')
    a('v_lshlrev_b32 v21, 4, v2')
    a('v_lshl_add_u32 v21, v3, 2, v21')
    a(f's_lshl_b32 {sA}, {sQ}, 9')
    a(f'v_add_u32 v21, {sA}, v21')
    a('v_lshlrev_b32 v22, 2, v21')
    a(f'v_add_u32 v22, {L_XC}, v22')
    a(f's_mul_i32 {sA}, {sCHL}, {H_CH}')
    a(f's_add_u32 {sA}, {sA}, {L_H + 512}')
    a('v_lshlrev_b32 v24, 1, v21')
    a(f'v_add_u32 v25, {sA}, v24')
    for nn in range(2):
        a(f'ds_read_b128 {vr(128 + 4 * nn, 4)}, v22 offset:{1024 * nn}')
        a(f'ds_read_b64 {vr(136 + 2 * nn, 2)}, v25 offset:{512 * nn}')
    a(f's_add_u32 {sA}, {sCH0}, {sCHL}')
    a(f's_lshl_b32 {sA}, {sA}, 12')
    a(f's_add_u32 {sA}, {sA}, {WS_X2T}')
    a(f'v_add_u32 v24, {sA}, v24')
    a(f's_xor_b32 {sB}, {sCHL}, 1')
    a(f's_lshl_b32 {sB}, {sB}, 4')
    a('s_waitcnt vmcnt(0)')
    a('v_lshlrev_b32 v76, 16, v76')
    a('s_waitcnt lgkmcnt(0)')
    for nn in range(2):
        y = 96 + 16 * nn
        for k in range(4):
            a(f'v_add_f32 {vr(y + k)}, {vr(y + k)}, {vr(y + 4 + k)}')
            a(f'v_add_f32 {vr(y + 8 + k)}, {vr(y + 8 + k)}, {vr(y + 12 + k)}')
            a(f'v_add_f32 {vr(y + k)}, {vr(y + k)}, {vr(y + 8 + k)}')
        for k in range(4):
            hreg = 136 + 2 * nn + (k >> 1)
            if k & 1:
                a(f'v_and_b32 v26, 0xffff0000, {vr(hreg)}')
            else:
                a(f'v_lshlrev_b32 v26, 16, {vr(hreg)}')
            a(f'v_fma_f32 {vr(y + k)}, v26, v76, {vr(y + k)}')
            a(f'v_lshlrev_b32 v27, {sB}, {vr(128 + 4 * nn + k)}')
            a('v_and_b32 v27, 0xffff0000, v27')
            a(f'v_fma_f32 {vr(y + k)}, v78, {vr(y + k)}, v27')
        a(f'v_cvt_pk_bf16_f32 {vr(y)}, {vr(y)}, {vr(y + 1)}')
        a(f'v_cvt_pk_bf16_f32 {vr(y + 1)}, {vr(y + 2)}, {vr(y + 3)}')
        bstore(y, 2, 24, WS, imm=512 * nn, mods='sc1')
    a('s_waitcnt vmcnt(0)')
    stamp('x2stored')
    a('s_barrier')
    lf = a.newlabel('L_f2')
    a(f's_cmp_lg_u32 {sWV}, 0')
    a(f's_cbranch_scc1 {lf}')
    a(f's_lshl_b32 {sA}, s2, 2')
    a(f's_add_u32 {sA}, {sA}, {WS_F2}')
    a(f'v_mov_b32 v21, {sA}')
    a(f'v_mov_b32 v22, {sT}')
    a('v_cmp_eq_u32 vcc, 0, v1')
    a(f's_and_saveexec_b64 s[{sP0}:{sP0 + 1}], vcc')
    bstore(22, 1, 21, WS, mods='sc1')
    a(f's_mov_b64 exec, s[{sP0}:{sP0 + 1}]')
    a.label(lf)


L_X = 0
L_W1 = 69632
L_A4 = 0
L_W2 = 81920
L_EX = 0
L_HS = 147456
L_CB = L_HS + 8192
L_SB = L_CB + 2048
L_CSP = L_SB + 2048
L_ST = L_CSP + 512
L_ST3 = L_ST + 1024
assert L_ST3 + 1024 <= 163840
XS = 4; X1R = 8
ONES = 128
mK1, mK2, mK3, mDG = 90, 92, 94, 96


def lane_consts():
    a('v_lshrrev_b32 v14, 2, v2')
    a('v_lshl_add_u32 v12, v3, 2, v14')
    a('v_lshlrev_b32 v12, 7, v12')
    a('v_and_b32 v15, 3, v2')
    a('v_lshl_add_u32 v12, v15, 3, v12')
    a('v_lshrrev_b32 v14, 1, v14')
    a('v_lshl_add_u32 v13, v3, 1, v14')
    a('v_and_b32 v13, 3, v13')
    a(f'v_cmp_eq_u32 s[{mK1}:{mK1 + 1}], 1, v15')
    a(f'v_cmp_eq_u32 s[{mK2}:{mK2 + 1}], 2, v15')
    a(f'v_cmp_eq_u32 s[{mK3}:{mK3 + 1}], 3, v15')
    a('v_lshrrev_b32 v14, 2, v2')
    a(f'v_cmp_eq_u32 s[{mDG}:{mDG + 1}], v14, v3')


def tr_addr(dst, chunk, base):
    a(f'v_xor_b32 {vr(dst)}, {chunk}, v13')
    a(f'v_lshl_add_u32 {vr(dst)}, {vr(dst)}, 5, v12')
    if base != 0:
        a(f'v_add_u32 {vr(dst)}, {base}, {vr(dst)}')


def slab_dma_addr(dst, rowstride_log2):
    a(f'v_lshrrev_b32 {vr(dst)}, 3, v1')
    a('v_lshrrev_b32 v14, 4, v1')
    a('v_and_b32 v14, 3, v14')
    a('v_bfe_u32 v15, v1, 1, 2')
    a('v_xor_b32 v14, v14, v15')
    a('v_lshlrev_b32 v14, 5, v14')
    a('v_and_b32 v15, 1, v1')
    a('v_lshl_add_u32 v14, v15, 4, v14')
    a(f'v_lshl_add_u32 {vr(dst)}, {vr(dst)}, {rowstride_log2}, v14')


def weight_slab_dma(S, ldsbase):
    slab_dma_addr(20, 10)
    a(f's_lshl_b32 {sA}, {sCS}, 7')
    a(f's_lshl_b32 {sB}, {sWV}, 13')
    a(f's_add_u32 {sA}, {sA}, {sB}')
    a(f's_lshl_b32 {sB}, {sWV}, 10')
    a(f's_add_u32 {sB}, {sB}, {ldsbase}')
    for k in range(8):
        a(f's_add_u32 {sC}, {sA}, {k * 65536}')
        a(f's_add_u32 {sD}, {sB}, {k * 8192}')
        dma(4, 20, S, sD, soff=sC)


def set_flag(off, idx_sgpr):
    lf = a.newlabel('L_flag')
    a(f's_cmp_lg_u32 {sWV}, 0')
    a(f's_cbranch_scc1 {lf}')
    a(f's_lshl_b32 {sA}, {idx_sgpr}, 2')
    a(f's_add_u32 {sA}, {sA}, {off}')
    a(f'v_mov_b32 v116, {sA}')
    a(f'v_mov_b32 v117, {sT}')
    a('v_cmp_eq_u32 vcc, 0, v1')
    a(f's_and_saveexec_b64 s[{sP3 + 2}:{sP3 + 3}], vcc')
    bstore(117, 1, 116, WS, mods='sc1')
    a(f's_mov_b64 exec, s[{sP3 + 2}:{sP3 + 3}]')
    a.label(lf)


def poll(off, kind):
    lf = a.newlabel('L_pollskip'); lp = a.newlabel('L_poll'); lok = a.newlabel('L_pollok')
    a(f's_cmp_lg_u32 {sWV}, 0')
    a(f's_cbranch_scc1 {lf}')
    if kind == 'all':
        a('v_lshlrev_b32 v116, 4, v1')
        a(f'v_add_u32 v116, {off}, v116')
    elif kind == 'own':
        a('v_and_b32 v116, 7, v1')
        a(f's_lshl_b32 {sA}, {sRB}, 3')
        a(f'v_add_u32 v116, {sA}, v116')
        a('v_lshlrev_b32 v116, 2, v116')
        a(f'v_add_u32 v116, {off}, v116')
    else:
        a('v_min_u32 v116, 23, v1')
        a(f's_lshl_b32 {sA}, {sRB}, 3')
        a(f's_sub_u32 {sB}, {sA}, 8')
        a(f'v_add_u32 v116, {sB}, v116')
        a('v_cmp_gt_u32 vcc, 256, v116')
        a(f'v_mov_b32 v117, {sA}')
        a('v_cndmask_b32 v116, v117, v116, vcc')
        a('v_lshlrev_b32 v116, 2, v116')
        a(f'v_add_u32 v116, {off}, v116')
    a(f's_mov_b32 {sSPIN}, 0')
    a.label(lp)
    if kind == 'all':
        bload(118, 4, 116, WS, mods='sc1')
        a('s_waitcnt vmcnt(0)')
        a('v_min3_u32 v122, v118, v119, v120'); a('v_max3_u32 v123, v118, v119, v120')
        a('v_min_u32 v122, v122, v121'); a('v_max_u32 v123, v123, v121')
        a(f'v_cmp_ne_u32 vcc, {sT}, v122')
        a(f'v_cmp_ne_u32 s[{sP3 + 2}:{sP3 + 3}], {sT}, v123')
        a('s_nop 0')
        a(f's_or_b64 vcc, vcc, s[{sP3 + 2}:{sP3 + 3}]')
    else:
        bload(118, 1, 116, WS, mods='sc1')
        a('s_waitcnt vmcnt(0)')
        a(f'v_cmp_ne_u32 vcc, {sT}, v118')
        a('s_nop 0')
    a(f's_cbranch_vccz {lok}')
    spin_guard(lp, lok)
    a.label(lok)
    a.label(lf)
    a('s_barrier')


def diag_select(dst, q):
    a(f'v_cndmask_b32 {vr(dst)}, {vr(q)}, {vr(q + 1)}, s[{mK1}:{mK1 + 1}]')
    a(f'v_cndmask_b32 {vr(dst)}, {vr(dst)}, {vr(q + 2)}, s[{mK2}:{mK2 + 1}]')
    a(f'v_cndmask_b32 {vr(dst)}, {vr(dst)}, {vr(q + 3)}, s[{mK3}:{mK3 + 1}]')


def stats_publish(ldsbase, S, Q, t0, t1, addr):
    diag_select(t1, Q)
    a(f'v_mov_b32 {vr(t0)}, {vr(S)}')
    a(f's_lshl_b32 {sA}, {sWV}, 7')
    a(f's_add_u32 {sA}, {sA}, {ldsbase}')
    a(f'v_lshl_add_u32 {vr(addr)}, v2, 3, {sA}')
    a(f's_mov_b64 s[{sP3 + 2}:{sP3 + 3}], exec')
    a(f's_mov_b64 exec, s[{mDG}:{mDG + 1}]')
    a(f'ds_write_b64 {vr(addr)}, {vr(t0, 2)}')
    a(f's_mov_b64 exec, s[{sP3 + 2}:{sP3 + 3}]')


def stats_finish(S, Q, m, r):
    a(f'v_mul_f32 {vr(m)}, {fconst(1.0 / 512)}, {vr(S)}')
    a(f'v_mul_f32 {vr(r)}, {fconst(1.0 / 512)}, {vr(Q)}')
    a(f'v_fma_f32 {vr(r)}, -{vr(m)}, {vr(m)}, {vr(r)}')
    a(f'v_max_f32 {vr(r)}, 0, {vr(r)}')
    a(f'v_add_f32 {vr(r)}, {fconst(1e-5)}, {vr(r)}')
    a(f'v_rsq_f32 {vr(r)}, {vr(r)}')


GC0 = -2.0 * 1.4426950408889634 * 0.7978845608028654
GC1 = GC0 * 0.044715


def gelu(regs, tmp):
    n = len(regs)
    for i in range(0, n, 2):
        x = regs[i]
        t = tmp + 2 * ((i // 2) & 1)
        a(f'v_pk_mul_f32 {vr(t, 2)}, {vr(x, 2)}, {vr(x, 2)}')
        a(f'v_pk_fma_f32 {vr(t, 2)}, {vr(t, 2)}, v[{GK1}:{GK1 + 1}], v[{GK0}:{GK0 + 1}]')
        a(f'v_pk_mul_f32 {vr(t, 2)}, {vr(t, 2)}, {vr(x, 2)}')
        a(f'v_exp_f32 {vr(t)}, {vr(t)}')
        a(f'v_exp_f32 {vr(t + 1)}, {vr(t + 1)}')
        a(f'v_pk_add_f32 {vr(t, 2)}, {vr(t, 2)}, v[{GONE}:{GONE + 1}]')
        a(f'v_rcp_f32 {vr(t)}, {vr(t)}')
        a(f'v_rcp_f32 {vr(t + 1)}, {vr(t + 1)}')
        a(f'v_pk_mul_f32 {vr(x, 2)}, {vr(x, 2)}, {vr(t, 2)}')


GK0, GK1, GONE = 14, 18, 22


def gelu_consts():
    for r, c in ((GK0, GC0), (GK1, GC1), (GONE, 1.0)):
        a(f'v_mov_b32 {vr(r)}, {fconst(c)}')
        a(f'v_mov_b32 {vr(r + 1)}, {fconst(c)}')


def phase3():
    lane_consts()
    weight_slab_dma(W1, L_W1)
    for k in range(4):
        a(f'v_mov_b32 {vr(ONES + k)}, 0x3f803f80')
    a(f's_and_b32 {sA}, {sWV}, 3')
    a(f's_lshr_b32 {sB}, {sWV}, 2')
    a(f's_lshl_b32 {sB}, {sB}, 15')
    a(f's_add_u32 {sB}, {sB}, {L_W1}')
    tr_addr(20, sA, 0)
    a(f'v_add_u32 v20, {sB}, v20')
    a('s_waitcnt vmcnt(0)')
    a('s_barrier')
    stamp('W1landed')
    for ks in range(8):
        a(f'ds_read_b64_tr_b16 {vr(16 + 4 * ks if False else 32 + 4 * ks, 2)}, v20 offset:{4096 * ks}')
        a(f'ds_read_b64_tr_b16 {vr(34 + 4 * ks, 2)}, v20 offset:{4096 * ks + 2048}')
    a('s_waitcnt lgkmcnt(0)')
    for ks in range(8):
        c = '0' if ks == 0 else 'v[100:103]'
        a(f'v_mfma_f32_16x16x32_bf16 v[100:103], {vr(32 + 4 * ks, 4)}, {vr(ONES, 4)}, {c}')
    a(f's_lshr_b32 {sA}, {sWV}, 2'); a(f's_lshl_b32 {sA}, {sA}, 8')
    a(f's_and_b32 {sB}, {sWV}, 3'); a(f's_lshl_b32 {sB}, {sB}, 6')
    a(f's_add_u32 {sA}, {sA}, {sB}'); a(f's_add_u32 {sA}, {sA}, {L_CSP}')
    a(f'v_lshl_add_u32 v21, v3, 4, {sA}')
    a('v_cmp_eq_u32 vcc, 0, v2')
    a(f's_and_saveexec_b64 s[{sP3 + 2}:{sP3 + 3}], vcc')
    a('ds_write_b128 v21, v[100:103]')
    a(f's_mov_b64 exec, s[{sP3 + 2}:{sP3 + 3}]')
    a('s_waitcnt lgkmcnt(0)')
    poll(WS_F2, 'all')
    stamp('S2ok')
    slab_dma_addr(20, 12)
    a(f's_lshl_b32 {sA}, {sRB}, 7')
    a(f's_lshl_b32 {sB}, {sWV}, 15')
    a(f's_add_u32 {sA}, {sA}, {sB}')
    a(f's_add_u32 {sA}, {sA}, {WS_X2T}')
    a(f's_lshl_b32 {sB}, {sWV}, 10')
    for k in range(8):
        a(f's_add_u32 {sC}, {sA}, {k * 8 * 8 * 4096}')
        a(f's_add_u32 {sD}, {sB}, {L_X + k * 8192}')
        dma(4, 20, WS, sD, soff=sC, mods='sc1')
    a('v_lshlrev_b32 v21, 3, v0')
    a(f'v_add_u32 v21, {WS_MODG + 3 * 512 * 8}, v21')
    a(f's_mov_b32 {sA}, 4096')
    bload(24, 2, 21, WS, mods='sc1')
    bload(26, 2, 21, WS, soff=sA, mods='sc1')
    a('v_lshlrev_b32 v22, 2, v0')
    a(f'v_add_u32 v22, {L_CB}, v22')
    a(f's_and_b32 {sCHL}, {sWV}, 3')
    a(f's_lshr_b32 {sQ}, {sWV}, 2')
    a(f's_lshl_b32 {sB}, {sQ}, 15')
    tr_addr(136, sCHL, 0)
    a(f'v_add_u32 v136, {sB}, v136')
    a(f's_add_u32 {sB}, {sB}, {L_W1}')
    for nt in range(4):
        tr_addr(132 + nt, nt, 0)
        a(f'v_add_u32 {vr(132 + nt)}, {sB}, {vr(132 + nt)}')
    a(f's_lshl_b32 {sA}, {sQ}, 10')
    a(f's_add_u32 {sA}, {sA}, {L_CB}')
    a(f'v_lshl_add_u32 v137, v3, 4, {sA}')
    a('s_waitcnt vmcnt(0)')
    a('v_add_f32 v26, 1.0, v26')
    a('ds_write_b32 v22, v26')
    a('ds_write_b32 v22, v24 offset:2048')
    a('s_waitcnt lgkmcnt(0)')
    a('s_barrier')
    stamp('Xlanded')
    for ks in range(8):
        a(f'ds_read_b64_tr_b16 {vr(16 + 4 * ks, 2)}, v136 offset:{4096 * ks}')
        a(f'ds_read_b64_tr_b16 {vr(18 + 4 * ks, 2)}, v136 offset:{4096 * ks + 2048}')
    a(f's_lshl_b32 {sA}, {sCS}, 13')
    a(f's_lshl_b32 {sB}, {sCHL}, 11')
    a(f's_add_u32 {sA}, {sA}, {sB}')
    a(f's_lshl_b32 {sB}, {sQ}, 1')
    tr_addr(138, sB, 0)
    a(f'v_add_u32 v138, {sA}, v138')
    a(f's_add_u32 {sB}, {sB}, 1')
    tr_addr(139, sB, 0)
    a(f'v_add_u32 v139, {sA}, v139')
    a(f'ds_read_b64_tr_b16 {vr(XS, 2)}, v138')
    a(f'ds_read_b64_tr_b16 {vr(XS + 2, 2)}, v139')
    a('s_waitcnt lgkmcnt(0)')
    for ks in range(8):
        f = vr(16 + 4 * ks, 4)
        a(f'v_mfma_f32_16x16x32_bf16 v[116:119], {vr(ONES, 4)}, {f}, ' + ('0' if ks == 0 else 'v[116:119]'))
        a(f'v_mfma_f32_16x16x32_bf16 v[120:123], {f}, {f}, ' + ('0' if ks == 0 else 'v[120:123]'))
    stats_publish(L_ST, 116, 120, 48, 49, 50)
    a('s_waitcnt lgkmcnt(0)')
    a('s_barrier')
    a(f's_lshl_b32 {sA}, {sCHL}, 7')
    a(f's_add_u32 {sA}, {sA}, {L_ST}')
    a(f'v_lshl_add_u32 v50, v2, 3, {sA}')
    a('ds_read_b64 v[52:53], v50')
    a('ds_read_b64 v[54:55], v50 offset:512')

    def ldcoef(ks):
        a(f'ds_read_b128 v[48:51], v137 offset:{128 * ks}') if False else None
    a('s_waitcnt lgkmcnt(0)')
    a('v_add_f32 v52, v52, v54'); a('v_add_f32 v53, v53, v55')
    stats_finish(52, 53, 126, 124)
    a('v_mul_f32 v126, v126, v124')
    stamp('stats2')
    CO = 48
    WB = 68

    def ldc(ks):
        a(f'ds_read_b128 {vr(CO, 4)}, v137 offset:{128 * ks}')
        a(f'ds_read_b128 {vr(CO + 4, 4)}, v137 offset:{128 * ks + 64}')
        a(f'ds_read_b128 {vr(CO + 8, 4)}, v137 offset:{2048 + 128 * ks}')
        a(f'ds_read_b128 {vr(CO + 12, 4)}, v137 offset:{2048 + 128 * ks + 64}')

    def ldw(ks):
        b = WB + 16 * (ks & 1)
        for nt in range(4):
            a(f'ds_read_b64_tr_b16 {vr(b + 4 * nt, 2)}, {vr(132 + nt)} offset:{4096 * ks}')
            a(f'ds_read_b64_tr_b16 {vr(b + 4 * nt + 2, 2)}, {vr(132 + nt)} offset:{4096 * ks + 2048}')
    ldc(0)
    ldw(0)
    for ks in range(8):
        f = 16 + 4 * ks
        a('s_waitcnt lgkmcnt(8)')
        for p in range(4):
            z = 64 + 2 * (p & 1)
            a(f'v_lshlrev_b32 {vr(z)}, 16, {vr(f + p)}')
            a(f'v_and_b32 {vr(z + 1)}, 0xffff0000, {vr(f + p)}')
            a(f'v_pk_fma_f32 {vr(z, 2)}, {vr(z, 2)}, v[124:125], v[126:127] op_sel_hi:[1,0,0] neg_lo:[0,0,1] neg_hi:[0,0,1]')
            a(f'v_pk_fma_f32 {vr(z, 2)}, {vr(z, 2)}, {vr(CO + 2 * p, 2)}, {vr(CO + 8 + 2 * p, 2)}')
            a(f'v_cvt_pk_bf16_f32 {vr(f + p)}, {vr(z)}, {vr(z + 1)}')
        if ks < 7:
            ldc(ks + 1)
        lsk = a.newlabel('L_hs')
        a(f's_lshl_b32 {sA}, {sQ}, 3')
        a(f's_add_u32 {sA}, {sA}, {ks}')
        a(f's_lshr_b32 {sA}, {sA}, 1')
        a(f's_cmp_lg_u32 {sA}, {sCS}')
        a(f's_cbranch_scc1 {lsk}')
        a(f's_lshl_b32 {sA}, {sCHL}, 9')
        a(f's_add_u32 {sA}, {sA}, {L_HS + (2 * (ks & 1)) * 4 * 512}')
        a(f'v_lshl_add_u32 v138, v1, 3, {sA}')
        a(f'ds_write_b64 v138, {vr(f, 2)}')
        a(f'ds_write_b64 v138, {vr(f + 2, 2)} offset:2048')
        a('s_waitcnt lgkmcnt(0)')
        a.label(lsk)
        a(f's_waitcnt lgkmcnt({4 if ks < 7 else 0})')
        wb = WB + 16 * (ks & 1)
        if ks < 7:
            ldw(ks + 1)
        for nt in range(4):
            c = '0' if ks == 0 else vr(100 + 4 * nt, 4)
            a(f'v_mfma_f32_16x16x32_bf16 {vr(100 + 4 * nt, 4)}, {vr(wb + 4 * nt, 4)}, {vr(f, 4)}, {c}')
        a(f'v_mfma_f32_16x16x32_bf16 v[116:119], {vr(ONES, 4)}, {vr(f, 4)}, ' + ('0' if ks == 0 else 'v[116:119]'))
        a(f'v_mfma_f32_16x16x32_bf16 v[120:123], {vr(f, 4)}, {vr(f, 4)}, ' + ('0' if ks == 0 else 'v[120:123]'))
    stamp('gemm1')
    stats_publish(L_ST3, 116, 120, 48, 49, 50)
    a(f's_lshl_b32 {sA}, {sWV}, 11')
    a(f'v_lshl_add_u32 v20, v1, 4, {sA}')
    lk1 = a.newlabel('L_k1'); lkd = a.newlabel('L_kd')
    a(f's_cmp_eq_u32 {sQ}, 1')
    a(f's_cbranch_scc1 {lk1}')
    a(f'ds_write_b128 v20, v[108:111] offset:{L_EX}')
    a(f'ds_write_b128 v20, v[112:115] offset:{L_EX + 1024}')
    a(f's_branch {lkd}')
    a.label(lk1)
    a(f'ds_write_b128 v20, v[100:103] offset:{L_EX}')
    a(f'ds_write_b128 v20, v[104:107] offset:{L_EX + 1024}')
    for k in range(8):
        a(f'v_mov_b32 {vr(100 + k)}, {vr(108 + k)}')
    a.label(lkd)
    a('s_waitcnt lgkmcnt(0)')
    a('s_barrier')
    a(f's_xor_b32 {sA}, {sWV}, 4')
    a(f's_lshl_b32 {sA}, {sA}, 11')
    a(f'v_lshl_add_u32 v20, v1, 4, {sA}')
    a(f'ds_read_b128 v[108:111], v20 offset:{L_EX}')
    a(f'ds_read_b128 v[112:115], v20 offset:{L_EX + 1024}')
    a(f's_lshl_b32 {sA}, {sCHL}, 7')
    a(f's_add_u32 {sA}, {sA}, {L_ST3}')
    a(f'v_lshl_add_u32 v50, v2, 3, {sA}')
    a('ds_read_b64 v[52:53], v50')
    a('ds_read_b64 v[54:55], v50 offset:512')
    a(f's_lshl_b32 {sA}, {sQ}, 7')
    a(f's_add_u32 {sA}, {sA}, {L_CSP}')
    a(f'v_lshl_add_u32 v51, v3, 4, {sA}')
    a('ds_read_b128 v[56:59], v51')
    a('ds_read_b128 v[60:63], v51 offset:64')
    a('ds_read_b128 v[64:67], v51 offset:256')
    a('ds_read_b128 v[68:71], v51 offset:320')
    gelu_consts()
    a('s_waitcnt lgkmcnt(0)')
    a('v_add_f32 v52, v52, v54'); a('v_add_f32 v53, v53, v55')
    stats_finish(52, 53, 126, 124)
    for k in range(8):
        a(f'v_add_f32 {vr(100 + k)}, {vr(100 + k)}, {vr(108 + k)}')
        a(f'v_add_f32 {vr(56 + k)}, {vr(56 + k)}, {vr(64 + k)}')
    for k in range(8):
        a(f'v_fma_f32 {vr(100 + k)}, -v126, {vr(56 + k)}, {vr(100 + k)}')
        a(f'v_mul_f32 {vr(100 + k)}, v124, {vr(100 + k)}')
    gelu(list(range(100, 108)), 72)
    for p in range(4):
        a(f'v_cvt_pk_bf16_f32 {vr(76 + p)}, {vr(100 + 2 * p)}, {vr(101 + 2 * p)}')
    a(f's_lshl_b32 {sA}, {sRB}, 2'); a(f's_add_u32 {sA}, {sA}, {sCHL}')
    a(f's_lshl_b32 {sA}, {sA}, 4')
    a(f's_lshl_b32 {sB}, {sCS}, 1'); a(f's_add_u32 {sA}, {sA}, {sB}'); a(f's_add_u32 {sA}, {sA}, {sQ}')
    a(f's_lshl_b32 {sA}, {sA}, 10'); a(f's_add_u32 {sA}, {sA}, {WS_H1}')
    a('v_lshlrev_b32 v20, 4, v1')
    stamp('gelu1')
    bstore(76, 4, 20, WS, soff=sA, mods='sc1')
    a('s_waitcnt vmcnt(0)')
    a('s_barrier')
    stamp('h1stored')
    a(f's_lshl_b32 {sE}, {sRB}, 3'); a(f's_add_u32 {sE}, {sE}, {sCS}')
    set_flag(WS_F3, sE)


def phase4():
    weight_slab_dma(W2, L_W2)
    a(f's_lshl_b32 {sA}, {sWV}, 6')
    a(f'v_add_u32 v20, {sA}, v1')
    a(f's_lshl_b32 {sB}, {sRB}, 6')
    a(f's_sub_u32 {sB}, {sB}, 8')
    a(f's_mov_b32 {sC}, 0x7ffffff0')
    for k in range(10):
        if k:
            a('v_add_u32 v20, 512, v20')
        a('v_mul_u32_u24 v21, 52429, v20')
        a('v_lshrrev_b32 v21, 22, v21')
        a('v_mul_u32_u24 v34, 80, v21')
        a('v_sub_u32 v34, v20, v34')
        a(f'v_add_u32 v35, {sB}, v34')
        a('v_lshrrev_b32 v36, 4, v35')
        a('v_lshlrev_b32 v36, 4, v36')
        a('v_lshrrev_b32 v37, 2, v21')
        a('v_add_u32 v36, v36, v37')
        a('v_lshlrev_b32 v36, 10, v36')
        a('v_and_b32 v37, 3, v21')
        a('v_lshl_add_u32 v36, v37, 8, v36')
        a('v_and_b32 v37, 15, v35')
        a('v_lshl_add_u32 v36, v37, 4, v36')
        a(f'v_add_u32 v36, {WS_H1}, v36')
        a('v_subrev_u32 v34, 6, v34')
        a('v_cmp_gt_u32 vcc, 68, v34')
        a(f'v_cmp_gt_u32 s[{sP3 + 2}:{sP3 + 3}], 2048, v35') if False else None
        a(f'v_mov_b32 v37, {sC}')
        a('v_cndmask_b32 v36, v37, v36, vcc')
        a('v_cmp_gt_u32 vcc, 2048, v35')
        a(f'v_cndmask_b32 {vr(40 + k)}, v37, v36, vcc')
    poll(WS_F3, 'halo')
    stamp('S3ok')
    a(f's_lshl_b32 {sB}, {sWV}, 10')
    for k in range(10):
        a(f's_add_u32 {sD}, {sB}, {L_A4 + k * 8192}')
        dma(4, 40 + k, WS, sD, mods='sc1')
    a(f's_lshl_b32 {sB}, {sQ}, 15')
    a(f's_add_u32 {sB}, {sB}, {L_W2}')
    tr_addr(20, sCHL, 0)
    a(f'v_add_u32 v20, {sB}, v20')
    a('v_mul_u32_u24 v21, 80, v3')
    a('v_add_u32 v21, v21, v2')
    a(f's_add_u32 {sA}, {sQ}, 1')
    a(f's_sub_u32 {sB}, 8, {sA}')
    a(f's_add_u32 {sC}, {sA}, 8')
    a(f's_mul_i32 {sD}, {sQ}, {8 * 5120}')
    a(f'v_add_u32 v22, {sB}, v21'); a('v_lshlrev_b32 v22, 4, v22'); a(f'v_add_u32 v22, {sD}, v22')
    a(f'v_add_u32 v23, {sC}, v21'); a('v_lshlrev_b32 v23, 4, v23'); a(f'v_add_u32 v23, {sD}, v23')
    a('s_waitcnt vmcnt(0)')
    a('s_barrier')
    stamp('A4landed')
    for ks in range(8):
        a(f'ds_read_b64_tr_b16 {vr(64 + 4 * ks, 2)}, v20 offset:{4096 * ks}')
        a(f'ds_read_b64_tr_b16 {vr(66 + 4 * ks, 2)}, v20 offset:{4096 * ks + 2048}')
    AB = 32

    def lda(ks):
        b = AB + 16 * (ks & 1)
        ad = 22 if ks < 4 else 23
        for tt in range(4):
            a(f'ds_read_b128 {vr(b + 4 * tt, 4)}, {vr(ad)} offset:{L_A4 + 5120 * ks + 256 * tt}')
    lda(0)
    for ks in range(8):
        if ks < 7:
            a('s_waitcnt lgkmcnt(0)') if ks == 0 else a('s_waitcnt lgkmcnt(0)')
            lda(ks + 1)
        else:
            a('s_waitcnt lgkmcnt(0)')
        b = AB + 16 * (ks & 1)
        for tt in range(4):
            c = '0' if ks == 0 else vr(100 + 4 * tt, 4)
            a(f'v_mfma_f32_16x16x32_bf16 {vr(100 + 4 * tt, 4)}, {vr(64 + 4 * ks, 4)}, {vr(b + 4 * tt, 4)}, {c}')
    stamp('gemm2')
    a('s_barrier')
    a(f's_lshl_b32 {sA}, {sWV}, 11')
    a(f'v_lshl_add_u32 v20, v1, 4, {sA}')
    lk1 = a.newlabel('L_k1'); lkd = a.newlabel('L_kd')
    a(f's_cmp_eq_u32 {sQ}, 1')
    a(f's_cbranch_scc1 {lk1}')
    a(f'ds_write_b128 v20, v[108:111] offset:{L_EX}')
    a(f'ds_write_b128 v20, v[112:115] offset:{L_EX + 1024}')
    a(f's_branch {lkd}')
    a.label(lk1)
    a(f'ds_write_b128 v20, v[100:103] offset:{L_EX}')
    a(f'ds_write_b128 v20, v[104:107] offset:{L_EX + 1024}')
    for k in range(8):
        a(f'v_mov_b32 {vr(100 + k)}, {vr(108 + k)}')
    a.label(lkd)
    a('s_waitcnt lgkmcnt(0)')
    a('s_barrier')
    a(f's_xor_b32 {sA}, {sWV}, 4')
    a(f's_lshl_b32 {sA}, {sA}, 11')
    a(f'v_lshl_add_u32 v20, v1, 4, {sA}')
    a(f'ds_read_b128 v[108:111], v20 offset:{L_EX}')
    a(f'ds_read_b128 v[112:115], v20 offset:{L_EX + 1024}')
    a(f's_lshl_b32 {sA}, {sCHL}, 11'); a(f's_lshl_b32 {sB}, {sQ}, 10'); a(f's_add_u32 {sA}, {sA}, {sB}')
    a(f's_add_u32 {sA}, {sA}, {L_HS}')
    a(f'v_lshl_add_u32 v21, v1, 3, {sA}')
    a('ds_read_b64 v[56:57], v21')
    a('ds_read_b64 v[58:59], v21 offset:512')
    a('s_waitcnt lgkmcnt(0)')
    for e in range(2):
        for k in range(4):
            r = 100 + 4 * e + k
            h = 56 + 2 * e + (k >> 1)
            a(f'v_add_f32 {vr(r)}, {vr(r)}, {vr(108 + 4 * e + k)}')
            if k & 1:
                a(f'v_and_b32 v60, 0xffff0000, {vr(h)}')
            else:
                a(f'v_lshlrev_b32 v60, 16, {vr(h)}')
            a(f'v_add_f32 {vr(r)}, {vr(r)}, v60')
        a(f'v_cvt_pk_bf16_f32 {vr(X1R + 2 * e)}, {vr(100 + 4 * e)}, {vr(101 + 4 * e)}')
        a(f'v_cvt_pk_bf16_f32 {vr(X1R + 2 * e + 1)}, {vr(102 + 4 * e)}, {vr(103 + 4 * e)}')
    a(f's_lshl_b32 {sA}, {sRB}, 2'); a(f's_lshl_b32 {sB}, {sQ}, 1'); a(f's_add_u32 {sA}, {sA}, {sB}')
    a(f's_lshl_b32 {sA}, {sA}, 4')
    a(f's_lshl_b32 {sB}, {sCS}, 1'); a(f's_add_u32 {sA}, {sA}, {sB}')
    a(f's_lshr_b32 {sB}, {sCHL}, 1'); a(f's_add_u32 {sA}, {sA}, {sB}')
    a(f's_lshl_b32 {sA}, {sA}, 10')
    a(f's_and_b32 {sB}, {sCHL}, 1'); a(f's_lshl_b32 {sB}, {sB}, 3'); a(f's_add_u32 {sA}, {sA}, {sB}')
    a(f's_add_u32 {sA}, {sA}, {WS_X1}')
    a('v_lshlrev_b32 v20, 4, v1')
    bstore(X1R, 2, 20, WS, soff=sA, mods='sc1')
    a(f's_add_u32 {sA}, {sA}, {16 * 1024}')
    bstore(X1R + 2, 2, 20, WS, soff=sA, mods='sc1')
    a('s_waitcnt vmcnt(0)')
    a('s_barrier')
    stamp('x1stored')
    a(f's_lshl_b32 {sE}, {sRB}, 3'); a(f's_add_u32 {sE}, {sE}, {sCS}')
    set_flag(WS_F4, sE)


sNTA = 's79'
sNV = 's89'
W3R = 128


def phase5():
    a(f's_mul_i32 {sA}, {sCS}, 6')
    a(f's_mul_i32 {sB}, {sCS}, 5'); a(f's_add_u32 {sB}, {sB}, 3')
    a(f's_cmp_lt_u32 {sCS}, 3')
    a(f's_cselect_b32 {sA}, {sA}, {sB}')
    a(f's_cselect_b32 {sB}, 6, 5')
    lhi = a.newlabel('L_p5hi'); ld = a.newlabel('L_p5d')
    a(f's_cmp_ge_u32 {sWV}, 4')
    a(f's_cbranch_scc1 {lhi}')
    a(f's_add_u32 {sA}, {sA}, {sWV}')
    a(f's_lshl_b32 {sNTA}, {sA}, 1')
    a(f's_mov_b32 {sNV}, 2')
    a(f's_branch {ld}')
    a.label(lhi)
    a(f's_sub_u32 {sC}, {sWV}, 4'); a(f's_lshr_b32 {sC}, {sC}, 1'); a(f's_add_u32 {sC}, {sC}, 4')
    a(f's_cmp_lt_u32 {sC}, {sB}')
    a(f's_cselect_b32 {sNV}, 1, 0')
    a(f's_cselect_b32 {sC}, {sC}, 0')
    a(f's_add_u32 {sA}, {sA}, {sC}')
    a(f's_lshl_b32 {sNTA}, {sA}, 1')
    a(f's_and_b32 {sC}, {sWV}, 1')
    a(f's_add_u32 {sNTA}, {sNTA}, {sC}')
    a.label(ld)
    a('v_lshlrev_b32 v20, 4, v1')
    a(f's_lshl_b32 {sA}, {sNTA}, 14')
    a(f's_add_u32 {sA}, {sA}, {WS_W3S}')
    a(f'v_add_u32 v20, {sA}, v20')
    for ks in range(16):
        a(f's_mov_b32 {sB}, {1024 * ks}')
        bload(W3R + 4 * ks, 4, 20, WS, soff=sB, mods='sc1')
    lnb = a.newlabel('L_nob')
    a(f's_cmp_lt_u32 {sNV}, 2')
    a(f's_cbranch_scc1 {lnb}')
    for ks in range(16):
        a(f's_mov_b32 {sB}, {16384 + 1024 * ks}')
        bload(W3R + 64 + 4 * ks, 4, 20, WS, soff=sB, mods='sc1')
    a.label(lnb)
    for k in range(4):
        a(f'v_mov_b32 {vr(16 + k)}, 0x3f803f80')
    a('s_waitcnt vmcnt(0)')
    stamp('W3landed')
    for ks in range(16):
        a(f'v_mfma_f32_16x16x32_bf16 v[100:103], {vr(W3R + 4 * ks, 4)}, v[16:19], ' + ('0' if ks == 0 else 'v[100:103]'))
    lnb = a.newlabel('L_nob')
    a(f's_cmp_lt_u32 {sNV}, 2')
    a(f's_cbranch_scc1 {lnb}')
    for ks in range(16):
        a(f'v_mfma_f32_16x16x32_bf16 v[104:107], {vr(W3R + 64 + 4 * ks, 4)}, v[16:19], ' + ('0' if ks == 0 else 'v[104:107]'))
    a.label(lnb)
    poll(WS_F4, 'own')
    stamp('S4ok')
    a(f's_lshl_b32 {sA}, {sRB}, 2'); a(f's_add_u32 {sA}, {sA}, {sCHL}'); a(f's_lshl_b32 {sA}, {sA}, 4')
    a(f's_add_u32 {sA}, {sA}, {sQ}'); a(f's_lshl_b32 {sA}, {sA}, 10'); a(f's_add_u32 {sA}, {sA}, {WS_X1}')
    a('v_lshlrev_b32 v20, 4, v1')
    a(f's_lshl_b32 {sB}, {sWV}, 10')
    for k in range(8):
        a(f's_add_u32 {sC}, {sA}, {2048 * k}')
        a(f's_add_u32 {sD}, {sB}, {8192 * k}')
        dma(4, 20, WS, sD, soff=sC, mods='sc1')
    a('s_waitcnt vmcnt(0)')
    a('s_barrier')
    stamp('x1landed')
    a(f's_lshl_b32 {sA}, {sQ}, 15'); a(f's_lshl_b32 {sB}, {sCHL}, 10'); a(f's_add_u32 {sA}, {sA}, {sB}')
    a(f'v_add_u32 v21, {sA}, v20')
    for k in range(8):
        a(f'ds_read_b128 {vr(32 + 4 * k, 4)}, v21 offset:{4096 * k}')
    a('s_waitcnt lgkmcnt(0)')
    for k in range(8):
        f = vr(32 + 4 * k, 4)
        a(f'v_mfma_f32_16x16x32_bf16 v[108:111], v[16:19], {f}, ' + ('0' if k == 0 else 'v[108:111]'))
        a(f'v_mfma_f32_16x16x32_bf16 v[112:115], {f}, {f}, ' + ('0' if k == 0 else 'v[112:115]'))
    stats_publish(L_ST, 108, 112, 24, 25, 26)
    AB = 32

    def lda(ks):
        b = AB + 16 * (ks & 1)
        for tt in range(4):
            a(f'ds_read_b128 {vr(b + 4 * tt, 4)}, v20 offset:{4096 * ks + 1024 * tt}')

    def main(two):
        lda(0)
        for ks in range(16):
            a('s_waitcnt lgkmcnt(0)')
            if ks < 15:
                lda(ks + 1)
            b = AB + 16 * (ks & 1)
            for tt in range(4):
                c = '0' if ks == 0 else vr(64 + 4 * tt, 4)
                a(f'v_mfma_f32_16x16x32_bf16 {vr(64 + 4 * tt, 4)}, {vr(W3R + 4 * ks, 4)}, {vr(b + 4 * tt, 4)}, {c}')
                if two:
                    c = '0' if ks == 0 else vr(80 + 4 * tt, 4)
                    a(f'v_mfma_f32_16x16x32_bf16 {vr(80 + 4 * tt, 4)}, {vr(W3R + 64 + 4 * ks, 4)}, {vr(b + 4 * tt, 4)}, {c}')
    l1 = a.newlabel('L_one'); l0 = a.newlabel('L_none'); lj = a.newlabel('L_p5j')
    a(f's_cmp_eq_u32 {sNV}, 0')
    a(f's_cbranch_scc1 {lj}')
    a(f's_cmp_eq_u32 {sNV}, 1')
    a(f's_cbranch_scc1 {l1}')
    main(True)
    a(f's_branch {lj}')
    a.label(l1)
    main(False)
    a.label(lj)
    a('s_waitcnt lgkmcnt(0)')
    a('s_barrier')
    stamp('gemm3')
    a(f'v_lshlrev_b32 v21, 3, v2')
    a(f'v_add_u32 v21, {L_ST}, v21')
    for tt in range(4):
        a(f'ds_read_b64 {vr(32 + 4 * tt, 2)}, v21 offset:{128 * tt}')
        a(f'ds_read_b64 {vr(34 + 4 * tt, 2)}, v21 offset:{512 + 128 * tt}')
    gelu_consts()
    a('s_waitcnt lgkmcnt(0)')
    for tt in range(4):
        b = 32 + 4 * tt
        a(f'v_add_f32 {vr(b)}, {vr(b)}, {vr(b + 2)}'); a(f'v_add_f32 {vr(b + 1)}, {vr(b + 1)}, {vr(b + 3)}')
        stats_finish(b, b + 1, b + 2, b + 3)

    def epi(acc, cs):
        for tt in range(4):
            b = 32 + 4 * tt
            for k in range(4):
                r = acc + 4 * tt + k
                a(f'v_fma_f32 {vr(r)}, -{vr(b + 2)}, {vr(cs + k)}, {vr(r)}')
                a(f'v_mul_f32 {vr(r)}, {vr(b + 3)}, {vr(r)}')
        gelu(list(range(acc, acc + 16)), 48)
    a(f's_lshl_b32 {sA}, {sRB}, 2'); a(f's_mul_i32 {sA}, {sA}, 43')
    a(f's_lshr_b32 {sB}, {sNTA}, 1'); a(f's_add_u32 {sA}, {sA}, {sB}')
    a(f's_lshl_b32 {sA}, {sA}, 10'); a(f's_add_u32 {sA}, {sA}, {WS_H3}')
    a(f's_and_b32 {sB}, {sNTA}, 1'); a(f's_lshl_b32 {sB}, {sB}, 3'); a(f's_add_u32 {sA}, {sA}, {sB}')
    a('v_lshlrev_b32 v20, 4, v1')
    l1 = a.newlabel('L_one'); lj = a.newlabel('L_p5e')
    a(f's_cmp_eq_u32 {sNV}, 0')
    a(f's_cbranch_scc1 {lj}')
    epi(64, 100)
    a(f's_cmp_eq_u32 {sNV}, 1')
    a(f's_cbranch_scc1 {l1}')
    epi(80, 104)
    for tt in range(4):
        d = 108 + 4 * tt
        a(f'v_cvt_pk_bf16_f32 {vr(d)}, {vr(64 + 4 * tt)}, {vr(65 + 4 * tt)}')
        a(f'v_cvt_pk_bf16_f32 {vr(d + 1)}, {vr(66 + 4 * tt)}, {vr(67 + 4 * tt)}')
        a(f'v_cvt_pk_bf16_f32 {vr(d + 2)}, {vr(80 + 4 * tt)}, {vr(81 + 4 * tt)}')
        a(f'v_cvt_pk_bf16_f32 {vr(d + 3)}, {vr(82 + 4 * tt)}, {vr(83 + 4 * tt)}')
        bstore(d, 4, 20, WS, soff=sA, mods='sc1')
        a(f's_add_u32 {sA}, {sA}, {43 * 1024}')
    a(f's_branch {lj}')
    a.label(l1)
    for tt in range(4):
        d = 108 + 2 * tt
        a(f'v_cvt_pk_bf16_f32 {vr(d)}, {vr(64 + 4 * tt)}, {vr(65 + 4 * tt)}')
        a(f'v_cvt_pk_bf16_f32 {vr(d + 1)}, {vr(66 + 4 * tt)}, {vr(67 + 4 * tt)}')
        bstore(d, 2, 20, WS, soff=sA, mods='sc1')
        a(f's_add_u32 {sA}, {sA}, {43 * 1024}')
    a.label(lj)
    a('s_waitcnt vmcnt(0)')
    a('s_barrier')
    stamp('h3stored')
    a(f's_lshl_b32 {sE}, {sRB}, 3'); a(f's_add_u32 {sE}, {sE}, {sCS}')
    set_flag(WS_F5, sE)


W4R = 128
NSLOT = 18


def phase6():
    a(f's_lshl_b32 {sA}, {sCS}, 2'); a(f's_add_u32 {sA}, {sA}, {sCHL}'); a(f's_mul_i32 {sA}, {sA}, 43')
    a(f's_mul_i32 {sB}, {sQ}, 22'); a(f's_add_u32 {sA}, {sA}, {sB}')
    a(f's_lshl_b32 {sA}, {sA}, 10'); a(f's_add_u32 {sA}, {sA}, {WS_W4S}')
    a('v_lshlrev_b32 v20, 4, v1')
    a(f'v_add_u32 v21, {sA}, v20')
    for s in range(22):
        a(f's_mov_b32 {sB}, {1024 * s}')
        if s == 21:
            a(f's_cmp_eq_u32 {sQ}, 1')
            a(f's_cselect_b32 {sB}, 0x7ff00000, {sB}')
        bload(W4R + 4 * s, 4, 21, WS, soff=sB, mods='sc1')
    a(f's_lshl_b32 {sA}, {sCS}, 6'); a(f's_lshl_b32 {sB}, {sCHL}, 4'); a(f's_add_u32 {sA}, {sA}, {sB}')
    a(f's_add_u32 {sA}, {sA}, {5 * 512}'); a(f's_lshl_b32 {sA}, {sA}, 3'); a(f's_add_u32 {sA}, {sA}, {WS_MODG}')
    a(f'v_lshl_add_u32 v22, v3, 5, {sA}')
    bload(24, 4, 22, WS, mods='sc1')
    bload(28, 4, 22, WS, imm=16, mods='sc1')
    poll(WS_F5, 'own')
    stamp('S5ok')
    a(f's_lshl_b32 {sA}, {sRB}, 2'); a(f's_add_u32 {sA}, {sA}, {sCHL}'); a(f's_mul_i32 {sA}, {sA}, 43')
    a(f's_mul_i32 {sB}, {sQ}, 22'); a(f's_add_u32 {sA}, {sA}, {sB}')
    a(f's_lshl_b32 {sA}, {sA}, 10'); a(f's_add_u32 {sE}, {sA}, {WS_H3}')
    a(f's_lshl_b32 {sF}, {sWV}, 10')

    def ring(s):
        a(f's_add_u32 {sC}, {sE}, {1024 * s}')
        if s == 21:
            a(f's_cmp_eq_u32 {sQ}, 1')
            a(f's_cselect_b32 {sC}, 0x7ff00000, {sC}')
        a(f's_add_u32 {sD}, {sF}, {8192 * (s % NSLOT)}')
        dma(4, 20, WS, sD, soff=sC, mods='sc1')
    for s in range(NSLOT):
        ring(s)
    a(f's_lshl_b32 {sA}, {sQ}, 12')
    a(f'v_add_u32 v23, {sA}, v20')
    AB = 32

    def lda(s):
        b = AB + 16 * (s & 1)
        off = 8192 * (s % NSLOT)
        ad = 'v23' if off + 3072 < 65536 else 'v22' if off + 3072 < 131072 else 'v21'
        base = 0 if ad == 'v23' else 65536 if ad == 'v22' else 131072
        for tt in range(4):
            a(f'ds_read_b128 {vr(b + 4 * tt, 4)}, {ad} offset:{off - base + 1024 * tt}')
    a('v_add_u32 v22, 65536, v23')
    a('v_add_u32 v21, 131072, v23')
    issued = NSLOT
    G = 2
    for s0 in range(0, 22, G):
        last = s0 + G - 1
        a(f's_waitcnt vmcnt({issued - 1 - last})')
        a('s_barrier')
        if s0 == 4:
            for s in range(NSLOT, 22):
                ring(s)
            issued = 22
        lda(s0)
        for s in range(s0, s0 + G):
            a('s_waitcnt lgkmcnt(0)')
            if s + 1 < s0 + G:
                lda(s + 1)
            b = AB + 16 * (s & 1)
            for tt in range(4):
                c = '0' if s == 0 else vr(100 + 4 * tt, 4)
                a(f'v_mfma_f32_16x16x32_bf16 {vr(100 + 4 * tt, 4)}, {vr(W4R + 4 * s, 4)}, {vr(b + 4 * tt, 4)}, {c}')
    stamp('gemm4')
    a('s_barrier')
    LEX = 147456
    a(f's_lshl_b32 {sA}, {sWV}, 11')
    a(f's_add_u32 {sA}, {sA}, {LEX}')
    a(f'v_lshl_add_u32 v20, v1, 4, {sA}')
    lk1 = a.newlabel('L_k1'); lkd = a.newlabel('L_kd')
    a(f's_cmp_eq_u32 {sQ}, 1')
    a(f's_cbranch_scc1 {lk1}')
    a(f'ds_write_b128 v20, v[108:111]')
    a(f'ds_write_b128 v20, v[112:115] offset:1024')
    a(f's_branch {lkd}')
    a.label(lk1)
    a(f'ds_write_b128 v20, v[100:103]')
    a(f'ds_write_b128 v20, v[104:107] offset:1024')
    for k in range(8):
        a(f'v_mov_b32 {vr(100 + k)}, {vr(108 + k)}')
    a.label(lkd)
    a('s_waitcnt lgkmcnt(0)')
    a('s_barrier')
    a(f's_xor_b32 {sA}, {sWV}, 4')
    a(f's_lshl_b32 {sA}, {sA}, 11')
    a(f's_add_u32 {sA}, {sA}, {LEX}')
    a(f'v_lshl_add_u32 v20, v1, 4, {sA}')
    a('ds_read_b128 v[108:111], v20')
    a('ds_read_b128 v[112:115], v20 offset:1024')
    a(f's_lshl_b32 {sA}, {sRB}, 6'); a(f's_lshl_b32 {sB}, {sQ}, 5'); a(f's_add_u32 {sA}, {sA}, {sB}')
    a(f'v_add_u32 v21, {sA}, v2')
    a('v_lshlrev_b32 v21, 10, v21')
    a(f's_lshl_b32 {sA}, {sCS}, 7'); a(f's_lshl_b32 {sB}, {sCHL}, 5'); a(f's_add_u32 {sA}, {sA}, {sB}')
    a(f'v_lshl_add_u32 v22, v3, 3, {sA}')
    a('v_add_u32 v21, v21, v22')
    a('s_waitcnt lgkmcnt(0)')
    for e in range(2):
        for k in range(4):
            r = 100 + 4 * e + k
            a(f'v_add_f32 {vr(r)}, {vr(r)}, {vr(108 + 4 * e + k)}')
            for (src, dst) in ((X1R + 2 * e + (k >> 1), 60), (XS + 2 * e + (k >> 1), 61)):
                if k & 1:
                    a(f'v_and_b32 {vr(dst)}, 0xffff0000, {vr(src)}')
                else:
                    a(f'v_lshlrev_b32 {vr(dst)}, 16, {vr(src)}')
            a(f'v_add_f32 {vr(r)}, {vr(r)}, v60')
            a(f'v_fma_f32 {vr(r)}, {vr(24 + 2 * k)}, {vr(r)}, v61')
        a(f'v_cvt_pk_bf16_f32 {vr(64 + 2 * e)}, {vr(100 + 4 * e)}, {vr(101 + 4 * e)}')
        a(f'v_cvt_pk_bf16_f32 {vr(65 + 2 * e)}, {vr(102 + 4 * e)}, {vr(103 + 4 * e)}')
    bstore(64, 2, 21, OUT)
    a(f's_mov_b32 {sA}, 16384')
    bstore(66, 2, 21, OUT, soff=sA)


def finish():
    lf = a.newlabel('L_fin')
    a(f's_cmp_lg_u32 s2, 0')
    a(f's_cbranch_scc1 {lf}')
    a(f's_cmp_lg_u32 {sWV}, 0')
    a(f's_cbranch_scc1 {lf}')
    a(f'v_mov_b32 v21, {WS_EPOCH}')
    a(f'v_mov_b32 v22, {sT}')
    a('v_cmp_eq_u32 vcc, 0, v1')
    a(f's_and_saveexec_b64 s[{sP0}:{sP0 + 1}], vcc')
    bstore(22, 1, 21, WS, mods='sc1')
    a(f's_mov_b64 exec, s[{sP0}:{sP0 + 1}]')
    a.label(lf)
    a('s_waitcnt vmcnt(0)')
    if PADTO:
        lp = a.newlabel('L_pad'); lq = a.newlabel('L_padq')
        a('s_cmp_lg_u32 s2, 0')
        a(f's_cbranch_scc1 {lq}')
        a.label(lp)
        a('s_memrealtime s[98:99]')
        a('s_waitcnt lgkmcnt(0)')
        a('s_sub_u32 s98, s98, s3')
        a(f's_cmp_lt_u32 s98, {PADTO * 100}')
        a(f's_cbranch_scc1 {lp}')
        a.label(lq)
    stamp('end')
    if STAMPS:
        for i in range(len(stamp_names)):
            a(f'v_writelane_b32 v255, s{STAMP_REGS[i]}, {i}')
        a(f's_lshl_b32 {sA}, s2, 3')
        a(f's_add_u32 {sA}, {sA}, {sWV}')
        a(f's_lshl_b32 {sA}, {sA}, 8')
        a(f's_add_u32 {sA}, {sA}, {WS_DBG}')
        a(f'v_lshl_add_u32 v20, v1, 2, {sA}')
        bstore(255, 1, 20, WS)
        a('s_waitcnt vmcnt(0)')
        open('stamps.txt', 'w').write('\n'.join(stamp_names) + '\n')
    a.label('L_END')
    a('s_endpgm')


def build(debug=True):
    global DEBUG
    DEBUG = debug
    prologue()
    phase_a()
    phase_b()
    if STOP_AFTER != 'B':
        phase3()
        if STOP_AFTER != '3':
            phase4()
            if STOP_AFTER != '4':
                phase5()
                if STOP_AFTER != '5':
                    phase6()
    finish()
    nops = a.fast_hazard_pass()
    errs = a.check_waits()
    for e in errs:
        print('WAIT-CHECK:', e, file=sys.stderr)
    hdr = open('adaLN_cond__ssm_conv_s4__mixer_s_mlp__prompt.s.ref').read().split('\n')
    head = [l for l in hdr if l.startswith(';') and '@launch' not in l and 'Override' not in l and 'grid=ceil' not in l]
    txt = '\n'.join(head) + '\n; @launch grid=(256,1,1) block=(512,1,1) lds=163840\n'
    txt += '.amdgcn_target "amdgcn-amd-amdhsa--gfx950"\n.text\n'
    txt += f'.globl {KNAME}\n.p2align 8\n.type {KNAME},@function\n{KNAME}:\n'
    txt += a.text()
    txt += f'''.section .rodata,"a"
.p2align 6
.amdhsa_kernel {KNAME}
  .amdhsa_next_free_vgpr 256
  .amdhsa_next_free_sgpr 102
  .amdhsa_accum_offset 256
  .amdhsa_group_segment_fixed_size 0
  .amdhsa_kernarg_size 152
  .amdhsa_user_sgpr_count 2
  .amdhsa_user_sgpr_kernarg_segment_ptr 1
  .amdhsa_system_sgpr_workgroup_id_x 1
  .amdhsa_float_denorm_mode_32 3
.end_amdhsa_kernel
'''
    print(f'instructions: {len(a.lines)}  hazard nops: {nops}', file=sys.stderr)
    return txt


if __name__ == '__main__':
    out = sys.argv[1] if len(sys.argv) > 1 else 'k.s'
    open(out, 'w').write(build(debug=os.environ.get('NODEBUG') is None))
```

```python
import sys, os
sys.path.insert(0, os.path.dirname(os.path.abspath(__file__)))
from asmlib import Asm
from layout import *

KNAME = 'adaLN_cond__ssm_conv_s4__mixer_s_mlp__prompt_kernel'
STOP_AFTER = os.environ.get('STOP_AFTER', '')
SPIN_MAX = 20000

sT = 's4'; sWV = 's5'; sX = 's6'; sJ = 's7'
U, WS, OUT = 8, 12, 16
ARE, AIM, BRE, BIM, CRE, CIM = 20, 24, 28, 32, 36, 40
LDT, DSK, CC, WMOD, W1, W2, W3, W4 = 44, 48, 52, 56, 60, 64, 68, 72
sCH0 = 's76'
sRB = 's77'; sCS = 's78'
sA, sB, sC, sD = 's80', 's81', 's82', 's83'
sSPIN = 's84'
sCHL = 's85'; sQ = 's86'
sE, sF = 's87', 's88'
sP0 = 90
sP1 = 92
sP2 = 94
sP3 = 96


def srd(n):
    return f's[{n}:{n + 3}]'


def vr(a, n=1):
    return f'v{a}' if n == 1 else f'v[{a}:{a + n - 1}]'


L_G = 0; G_ROW = 544; G_CH = 48 * G_ROW
L_E = 2 * G_CH; E_CH = 16 * G_ROW
L_KT = L_E + 2 * E_CH; KT_CH = 4352
L_COPY = L_KT + 2 * KT_CH; CP_R = 4160; CP_CH = 4 * CP_R
L_STG = L_COPY + 2 * CP_CH
L_PART = 0
L_XC = 143360
L_H = L_XC + 8192; H_CH = 4672
L_MISC = L_H + 2 * H_CH
KT_ZERO = 2175; KT_DUMMY = 2174
assert L_STG + 3 * 4096 <= L_XC and L_MISC + 1024 <= 163840

a = Asm()


def bload(dst, n, voff, s, imm=0, soff='0', mods=''):
    op = {1: 'buffer_load_dword', 2: 'buffer_load_dwordx2', 4: 'buffer_load_dwordx4', 'u16': 'buffer_load_ushort'}[n]
    cnt = 1 if n == 'u16' else n
    a(f'{op} {vr(dst, cnt)}, {vr(voff)}, {srd(s)}, {soff} offen' + (f' offset:{imm}' if imm else '') + (' ' + mods if mods else ''))


def bstore(src, n, voff, s, imm=0, soff='0', mods=''):
    op = {1: 'buffer_store_dword', 2: 'buffer_store_dwordx2', 4: 'buffer_store_dwordx4'}[n]
    a(f'{op} {vr(src, n)}, {vr(voff)}, {srd(s)}, {soff} offen' + (f' offset:{imm}' if imm else '') + (' ' + mods if mods else ''))


def dma(n, voff, s, m0, soff='0', mods=''):
    a(f's_mov_b32 m0, {m0}')
    op = {1: 'buffer_load_dword', 4: 'buffer_load_dwordx4'}[n]
    a(f'{op} {vr(voff)}, {srd(s)}, {soff} offen' + (' ' + mods if mods else '') + ' lds')


def cmul(d, x, y):
    a(f'v_pk_mul_f32 {vr(d, 2)}, {vr(x, 2)}, {vr(y, 2)} op_sel:[0,0] op_sel_hi:[0,1]')
    a(f'v_pk_fma_f32 {vr(d, 2)}, {vr(x, 2)}, {vr(y, 2)}, {vr(d, 2)} op_sel:[1,1,0] op_sel_hi:[1,0,1] neg_lo:[1,0,0]')


STAMPS = os.environ.get('STAMPS') is not None
stamp_names = []


STAMP_REGS = [3] + list(range(20, 48)) + list(range(52, 60))


def stamp(name):
    if not STAMPS:
        return
    if name in stamp_names:
        i = stamp_names.index(name)
    else:
        i = len(stamp_names)
        stamp_names.append(name)
    a(f's_memrealtime s[{sP3 + 2}:{sP3 + 3}]')
    a('s_waitcnt lgkmcnt(0)')
    a(f's_mov_b32 s{STAMP_REGS[i]}, s{sP3 + 2}')


def fconst(x):
    import struct
    return hex(struct.unpack('<I', struct.pack('<f', x))[0])


PADTO = int(os.environ.get('PADTO', '0'))


def prologue():
    if PADTO:
        a('s_memrealtime s[100:101]') if False else None
    if PADTO and os.environ.get('PADFIRST'):
        a('s_memrealtime s[78:79]')
        a('s_waitcnt lgkmcnt(0)')
        a('s_mov_b32 s3, s78')
    a(f's_cmp_ge_u32 s2, 256')
    a(f's_cbranch_scc1 L_END')
    ptrs = [(U, 0), (ARE, 8), (AIM, 16), (BRE, 24), (BIM, 32), (CRE, 40), (CIM, 48), (LDT, 56), (DSK, 64),
            (W1, 80), (W2, 88), (W3, 96), (W4, 104), (CC, 112), (WMOD, 120), (OUT, 128), (WS, 144)]
    for r, off in ptrs:
        a(f's_load_dwordx2 s[{r}:{r + 1}], s[0:1], {off}')
    sizes = {U: 2 * 1024 * 1024, ARE: 131072, AIM: 131072, BRE: 131072, BIM: 131072, CRE: 131072, CIM: 131072,
             LDT: 1024, DSK: 1024, W1: 524288, W2: 524288, W3: 512 * F_ * 2, W4: 512 * F_ * 2, CC: 1024,
             WMOD: 512 * 3072 * 2, OUT: 2 * 1024 * 1024, WS: WS_USED + (WS_DBG_SIZE if DEBUG else 0)}
    for r, sz in sizes.items():
        a(f's_mov_b32 s{r + 2}, {sz}')
        a(f's_mov_b32 s{r + 3}, 0x20000')
    if PADTO and not os.environ.get('PADFIRST'):
        a('s_memrealtime s[78:79]')
        a('s_waitcnt lgkmcnt(0)')
        a('s_mov_b32 s3, s78')
    a('v_and_b32 v1, 63, v0')
    a('v_lshrrev_b32 v2, 6, v0')
    a('v_and_b32 v3, 15, v1')
    a(f'v_readfirstlane_b32 {sWV}, v2')
    a(f's_and_b32 {sX}, s2, 7')
    a(f's_lshr_b32 {sJ}, s2, 3')
    a(f's_lshl_b32 {sCH0}, {sX}, 6')
    a(f's_lshl_b32 {sA}, {sJ}, 1')
    a(f's_add_u32 {sCH0}, {sCH0}, {sA}')
    a(f's_lshl_b32 {sRB}, {sX}, 2')
    a(f's_lshr_b32 {sA}, {sJ}, 3')
    a(f's_add_u32 {sRB}, {sRB}, {sA}')
    a(f's_and_b32 {sCS}, {sJ}, 7')
    a('v_mov_b32 v2, v3')
    a('v_lshrrev_b32 v3, 4, v1')
    a('s_waitcnt lgkmcnt(0)')


def expansion_addrs():
    a('v_and_b32 v16, 255, v0')
    a('v_lshlrev_b32 v16, 3, v16')
    a('v_lshrrev_b32 v17, 8, v0')
    a(f'v_mul_u32_u24 v17, {KT_CH}, v17')
    a(f'v_add_u32 v17, {L_KT}, v17')
    a(f'v_add_u32 v18, {2 * KT_ZERO}, v17')
    for d in range(1, 12):
        dd = d - 4
        r = 4 + d
        if dd >= 0:
            a(f'v_add_u32 v19, {dd}, v16')
        else:
            a(f'v_subrev_u32 v19, {-dd}, v16')
        a('v_cvt_f32_i32 v20, v19')
        a('v_cvt_pk_bf16_f32 v20, v20, v20')
        a('v_lshlrev_b32 v20, 16, v20')
        a('v_cvt_u32_f32 v20, v20')
        a(f'v_lshl_add_u32 {vr(r)}, v20, 1, v17')
        if dd < 0:
            a('v_cmp_gt_i32 vcc, 0, v19')
            a(f'v_cndmask_b32 {vr(r)}, {vr(r)}, v18, vcc')


def role_k():
    a(f's_lshr_b32 {sA}, {sWV}, 1')
    a(f's_add_u32 {sB}, {sCH0}, {sA}')
    a(f's_and_b32 {sC}, {sWV}, 1')
    a(f's_lshl_b32 {sC}, {sC}, 6')
    a(f's_lshl_b32 {sD}, {sB}, 7')
    a(f's_add_u32 {sD}, {sD}, {sC}')
    a(f'v_add_u32 v21, {sD}, v1')
    a('v_lshlrev_b32 v21, 1, v21')
    a(f's_lshl_b32 {sB}, {sB}, 1')
    a(f'v_mov_b32 v22, {sB}')
    for i, s in enumerate((ARE, AIM, BRE, BIM, CRE, CIM)):
        bload(24 + i, 'u16', 21, s)
    bload(30, 'u16', 22, LDT)
    a(f's_load_dword {sT}, s[{WS}:{WS + 1}], {WS_EPOCH}')
    expansion_addrs()
    a(f's_mul_i32 {sB}, {sA}, {G_CH}')
    a(f's_add_u32 {sB}, {sB}, {L_G}')
    a(f'v_add_u32 v22, {sC}, v1')
    a('v_lshlrev_b32 v22, 2, v22')
    a(f'v_add_u32 v23, {sB}, v22')
    a(f's_mul_i32 {sB}, {sA}, {E_CH}')
    a(f's_add_u32 {sB}, {sB}, {L_E}')
    a(f'v_add_u32 v22, {sB}, v22')
    a('s_waitcnt vmcnt(0) lgkmcnt(0)')
    stamp('r_loaded')
    a(f's_add_u32 {sT}, {sT}, 1')
    for i in range(7):
        a(f'v_lshlrev_b32 {vr(24 + i)}, 16, {vr(24 + i)}')
    LOG2E = 1.4426950408889634
    import struct
    hi = struct.unpack('<f', struct.pack('<f', LOG2E))[0]
    lo = LOG2E - hi
    a(f's_mov_b32 {sB}, {fconst(hi)}')
    a(f's_mov_b32 {sD}, {fconst(lo)}')
    a(f'v_mul_f32 v32, {sB}, v30')
    a(f'v_fma_f32 v33, v30, {sB}, -v32')
    a(f'v_fma_f32 v33, v30, {sD}, v33')
    a('v_exp_f32 v32, v32')
    a(f'v_mul_f32 v33, {fconst(0.6931471805599453)}, v33')
    a('v_fma_f32 v32, v32, v33, v32')
    a('v_cvt_pk_bf16_f32 v32, v32, v32')
    a('v_lshlrev_b32 v30, 16, v32')
    a('v_mul_f32 v24, v24, v30')
    a('v_mul_f32 v25, v25, v30')
    a(f'v_mul_f32 v24, {sB}, v24')
    a(f'v_mul_f32 v25, {fconst(1.0 / (2 * 3.141592653589793))}, v25')
    a('v_mul_f32 v26, v26, v30')
    a('v_mul_f32 v27, v27, v30')
    cmul(32, 26, 28)
    for d, m in ((34, 1.0), (36, 8.0), (38, 128.0)):
        a(f'v_mul_f32 v40, {fconst(m)}, v24')
        a(f'v_mul_f32 v41, {fconst(m)}, v25')
        a('v_exp_f32 v40, v40')
        a('v_fract_f32 v41, v41')
        a('v_cos_f32 v42, v41')
        a('v_sin_f32 v43, v41')
        a(f'v_mul_f32 {vr(d)}, v40, v42')
        a(f'v_mul_f32 {vr(d + 1)}, v40, v43')
    P = {1: 34, 2: 44, 3: 46, 4: 48, 5: 50, 6: 52, 7: 54}
    cmul(P[2], P[1], P[1])
    cmul(P[3], P[2], P[1])
    cmul(P[4], P[2], P[2])
    cmul(P[5], P[4], P[1])
    cmul(P[6], P[4], P[2])
    cmul(P[7], P[4], P[3])

    def putG(rho, x):
        a(f'v_cvt_pk_bf16_f32 v31, {vr(x)}, -{vr(x + 1)}')
        a(f'ds_write_b32 v23, v31 offset:{rho * G_ROW}')

    def putE(j, x):
        a(f'v_cvt_pk_bf16_f32 v29, {vr(x)}, {vr(x + 1)}')
        a(f'ds_write_b32 v22, v29 offset:{j * G_ROW}')

    rows = {}
    for rho in range(41):
        if rho < 16:
            i, b = rho >> 3, rho & 7
        elif rho < 24:
            i, b = 2 + ((rho - 16) >> 2), 2 * ((rho - 16) & 3)
        elif rho < 32:
            i, b = 4 + ((rho - 24) >> 1), 4 * ((rho - 24) & 1)
        else:
            i, b = 8 + (rho - 32), 0
        rows.setdefault(i, []).append((rho, b))
    a('v_mov_b32 v29, 0x00003f80')
    a('ds_write_b32 v22, v29 offset:0')
    putE(1, 36)
    Ecur = 36
    Q = 32
    for i in range(17):
        for n_, (rho, b) in enumerate(rows[i]):
            if b == 0:
                putG(rho, Q)
            else:
                t = 64 + 2 * (n_ & 1)
                cmul(t, Q, P[b])
                putG(rho, t)
        if i < 16:
            nq = 60 if Q != 60 else 62
            cmul(nq, Q, 38)
            Q = nq
        j = i + 2
        if j < 16:
            ne = 56 if Ecur != 56 else 58
            cmul(ne, Ecur, 36)
            putE(j, ne)
            Ecur = ne
    a('s_waitcnt lgkmcnt(0)')


def role_stats():
    a(f's_lshl_b32 {sA}, s2, 13')
    a('v_lshlrev_b32 v21, 4, v1')
    a(f'v_add_u32 v21, {sA}, v21')
    for i in range(8):
        bload(24 + 4 * i, 4, 21, U, imm=0, soff='0') if i == 0 else None
        if i > 0:
            if i * 1024 < 4096:
                bload(24 + 4 * i, 4, 21, U, imm=i * 1024)
            else:
                if i == 4:
                    a('v_add_u32 v22, 4096, v21')
                bload(24 + 4 * i, 4, 22, U, imm=(i - 4) * 1024)
    a(f's_load_dword {sT}, s[{WS}:{WS + 1}], {WS_EPOCH}')
    expansion_addrs()
    a('s_waitcnt lgkmcnt(0)')
    a(f's_add_u32 {sT}, {sT}, 1')
    a(f's_mov_b32 {sA}, 0x3f803f80')
    a('s_waitcnt vmcnt(7)')
    stamp('r_loaded')
    for i in range(8):
        a(f's_waitcnt vmcnt({7 - i})')
        b = 24 + 4 * i
        a(f'v_dot2_f32_bf16 {vr(60 + i)}, {vr(b)}, {sA}, 0')
        a(f'v_dot2_f32_bf16 {vr(68 + i)}, {vr(b)}, {vr(b)}, 0')
        for k in range(1, 4):
            a(f'v_dot2_f32_bf16 {vr(60 + i)}, {vr(b + k)}, {sA}, {vr(60 + i)}')
            a(f'v_dot2_f32_bf16 {vr(68 + i)}, {vr(b + k)}, {vr(b + k)}, {vr(68 + i)}')
    for base in (60, 68):
        for i in range(4):
            a(f'v_permlane32_swap_b32 {vr(base + i)}, {vr(base + i + 4)}')
        for i in range(4):
            a(f'v_add_f32 {vr(base + i)}, {vr(base + i)}, {vr(base + i + 4)}')
    for base in (60, 68):
        for i in range(2):
            a(f'v_permlane16_swap_b32 {vr(base + i)}, {vr(base + i + 2)}')
        for i in range(2):
            a(f'v_add_f32 {vr(base + i)}, {vr(base + i)}, {vr(base + i + 2)}')
    for sh in (1, 2, 4, 8):
        for r in (60, 61, 68, 69):
            a(f'v_add_f32_dpp {vr(r)}, {vr(r)}, {vr(r)} row_ror:{sh} row_mask:0xf bank_mask:0xf')
    a(f's_mov_b32 {sA}, {fconst(1.0 / 512)}')
    for p in range(2):
        S, Q = 60 + p, 68 + p
        a(f'v_mul_f32 {vr(S)}, {sA}, {vr(S)}')
        a(f'v_mul_f32 {vr(Q)}, {sA}, {vr(Q)}')
        a(f'v_fma_f32 {vr(Q)}, -{vr(S)}, {vr(S)}, {vr(Q)}')
        a(f'v_add_f32 {vr(Q)}, {fconst(1e-5)}, {vr(Q)}')
        a(f'v_rsq_f32 {vr(Q)}, {vr(Q)}')
    for p in range(2):
        d = 72 + 4 * p
        a(f'v_mov_b32 {vr(d)}, {vr(68 + p)}')
        a(f'v_mov_b32 {vr(d + 1)}, {sT}')
        a(f'v_mul_f32 {vr(d + 2)}, {vr(60 + p)}, {vr(68 + p)}')
        a(f'v_mov_b32 {vr(d + 3)}, {sT}')
    a(f's_lshl_b32 {sA}, s2, 7')
    a(f's_add_u32 {sA}, {sA}, {WS_STATS}')
    a('v_lshlrev_b32 v21, 5, v3')
    a(f'v_add_u32 v21, {sA}, v21')
    a('v_cmp_eq_u32 vcc, 0, v2')
    a(f's_and_saveexec_b64 s[{sP0}:{sP0 + 1}], vcc')
    bstore(72, 4, 21, WS, mods='sc1')
    bstore(76, 4, 21, WS, imm=16, mods='sc1')
    a(f's_mov_b64 exec, s[{sP0}:{sP0 + 1}]')


def role_mod_issue():
    a(f's_lshr_b32 {sA}, {sJ}, 2')
    a(f's_lshl_b32 {sA}, {sA}, 3')
    a(f's_add_u32 {sA}, {sA}, {sX}')
    a(f's_lshl_b32 {sA}, {sA}, 6')
    a(f's_and_b32 {sB}, {sJ}, 3')
    a(f's_lshl_b32 {sB}, {sB}, 4')
    a(f's_add_u32 {sE}, {sA}, {sB}')
    a('v_lshrrev_b32 v21, 1, v1')
    a('v_lshlrev_b32 v22, 1, v21')
    for i in range(16):
        bload(24 + i, 'u16', 22, CC, imm=64 * i)
    a('v_mul_u32_u24 v23, 6144, v21')
    a('v_and_b32 v40, 1, v1')
    a('v_lshlrev_b32 v40, 4, v40')
    a('v_add_u32 v23, v23, v40')
    a(f's_lshl_b32 {sA}, {sE}, 1')
    a(f'v_add_u32 v23, {sA}, v23')
    a(f's_mov_b32 {sB}, 0')
    for i in range(16):
        a(f's_mov_b32 {sB}, {i * 32 * 6144}')
        bload(64 + 4 * i, 4, 23, WMOD, soff=sB)


def role_mod_compute(nlater):
    a(f's_waitcnt vmcnt({16 + nlater})')
    stamp('r_loaded')
    for i in range(16):
        r = 24 + i
        a(f'v_lshlrev_b32 {vr(r)}, 16, {vr(r)}')
        a(f'v_mul_f32 v58, {fconst(-1.4426950408889634)}, {vr(r)}')
        a('v_exp_f32 v58, v58')
        a('v_add_f32 v58, 1.0, v58')
        a('v_rcp_f32 v58, v58')
        a(f'v_mul_f32 v58, v58, {vr(r)}')
        a('v_cvt_pk_bf16_f32 v58, v58, v58')
        a(f'v_and_b32 {vr(r)}, 0xffff, v58')
        a(f'v_lshlrev_b32 {vr(40 + i)}, 16, v58')
    for i in range(16):
        a(f's_waitcnt vmcnt({15 - i + nlater})')
        b = 64 + 4 * i
        for k in range(4):
            c0 = '0' if i == 0 else vr(128 + 2 * k)
            c1 = '0' if i == 0 else vr(129 + 2 * k)
            a(f'v_dot2_f32_bf16 {vr(128 + 2 * k)}, {vr(b + k)}, {vr(24 + i)}, {c0}')
            a(f'v_dot2_f32_bf16 {vr(129 + 2 * k)}, {vr(b + k)}, {vr(40 + i)}, {c1}')
    for i in range(4):
        a(f'v_permlane32_swap_b32 {vr(128 + i)}, {vr(132 + i)}')
    for i in range(4):
        a(f'v_add_f32 {vr(128 + i)}, {vr(128 + i)}, {vr(132 + i)}')
    for i in range(2):
        a(f'v_permlane16_swap_b32 {vr(128 + i)}, {vr(130 + i)}')
    for i in range(2):
        a(f'v_add_f32 {vr(128 + i)}, {vr(128 + i)}, {vr(130 + i)}')
    for sh in (2, 4, 8):
        for r in (128, 129):
            a(f'v_add_f32_dpp {vr(r)}, {vr(r)}, {vr(r)} row_ror:{sh} row_mask:0xf bank_mask:0xf')
    a('v_and_b32 v21, 1, v3')
    a('v_lshlrev_b32 v21, 1, v21')
    a('v_lshrrev_b32 v22, 1, v3')
    a('v_lshl_add_u32 v21, v22, 2, v21')
    a('v_and_b32 v22, 1, v1')
    a('v_lshl_add_u32 v21, v22, 3, v21')
    a(f'v_add_u32 v21, {sE}, v21')
    a('v_lshlrev_b32 v21, 3, v21')
    a(f'v_add_u32 v21, {WS_MODG}, v21')
    a(f'v_mov_b32 v130, v129')
    a(f'v_mov_b32 v129, {sT}')
    a(f'v_mov_b32 v131, {sT}')
    a('v_cmp_gt_u32 vcc, 2, v2')
    a(f's_and_saveexec_b64 s[{sP0}:{sP0 + 1}], vcc')
    bstore(128, 4, 21, WS, mods='sc1')
    a(f's_mov_b64 exec, s[{sP0}:{sP0 + 1}]')


def gather_issue():
    a(f's_sub_u32 {sA}, {sWV}, 4')
    a(f's_lshl_b32 {sB}, {sA}, 9')
    a(f'v_add_u32 v21, {sB}, v1')
    a('v_lshlrev_b32 v21, 10, v21')
    a(f's_lshl_b32 {sC}, {sCH0}, 1')
    a(f'v_add_u32 v21, {sC}, v21')
    a(f's_lshl_b32 {sB}, {sB}, 2')
    a(f's_add_u32 {sB}, {sB}, {L_XC}')
    for i in range(8):
        a(f's_mov_b32 {sC}, {i * 64 * 1024}')
        a(f's_add_u32 {sD}, {sB}, {i * 256}')
        dma(1, 21, U, sD, soff=sC)


def swz_issue():
    a(f's_mul_i32 {sA}, s2, 3')
    a(f's_add_u32 {sA}, {sA}, {sWV}')
    a(f's_sub_u32 {sA}, {sA}, 5')
    a('v_lshrrev_b32 v44, 3, v1')
    a('v_and_b32 v45, 7, v1')
    a('v_lshlrev_b32 v45, 4, v45')
    a(f's_sub_u32 {sB}, {sWV}, 5')
    a(f's_lshl_b32 {sB}, {sB}, 12')
    a(f's_add_u32 s101, {sB}, {L_STG}')
    lw4 = a.newlabel('L_swz4'); ldone = a.newlabel('L_swzd'); lnone = a.newlabel('L_swzn')
    a(f's_mov_b32 s99, 0')
    a(f's_cmp_ge_u32 {sA}, 352')
    a(f's_cbranch_scc1 {lw4}')
    a(f's_lshr_b32 {sB}, {sA}, 4')
    a(f's_and_b32 {sC}, {sA}, 15')
    a(f's_lshl_b32 s98, {sB}, 2')
    a(f's_lshl_b32 s98, s98, 4')
    a(f's_add_u32 s98, s98, {sC}')
    a(f's_lshl_b32 s98, s98, 10')
    a(f's_add_u32 s98, s98, {WS_W3S}')
    a(f's_mov_b32 s100, {16 * 1024}')
    a(f's_cmp_eq_u32 {sB}, 21')
    a(f's_cselect_b32 s99, 2, 4')
    a(f's_mul_i32 {sC}, {sC}, {32 * F_ * 2}')
    a(f's_lshl_b32 {sB}, {sB}, 7')
    a(f's_add_u32 {sC}, {sC}, {sB}')
    a(f'v_mul_u32_u24 v44, {F_ * 2}, v44')
    a('v_add_u32 v44, v44, v45')
    for q in range(4):
        a(f's_add_u32 {sD}, {sC}, {q * 8 * F_ * 2}')
        a(f's_add_u32 {sB}, s101, {q * 1024}')
        dma(4, 44, W3, sB, soff=sD)
    a(f's_branch {ldone}')
    a.label(lw4)
    a(f's_sub_u32 {sA}, {sA}, 352')
    a(f's_cmp_ge_u32 {sA}, 344')
    a(f's_cbranch_scc1 {lnone}')
    a(f's_lshr_b32 {sC}, {sA}, 3')
    a(f's_and_b32 {sB}, {sA}, 7')
    a(f's_mul_i32 s98, {sB}, {4 * 43}')
    a(f's_add_u32 s98, s98, {sC}')
    a(f's_lshl_b32 s98, s98, 10')
    a(f's_add_u32 s98, s98, {WS_W4S}')
    a(f's_mov_b32 s100, {43 * 1024}')
    a(f's_mov_b32 s99, 4')
    a(f's_lshl_b32 {sC}, {sC}, 15')
    a(f's_lshl_b32 {sB}, {sB}, 7')
    a(f's_add_u32 {sC}, {sC}, {sB}')
    a('v_lshlrev_b32 v44, 10, v44')
    a('v_add_u32 v44, v44, v45')
    for q in range(4):
        a(f's_add_u32 {sD}, {sC}, {q * 8 * 1024}')
        a(f's_add_u32 {sB}, s101, {q * 1024}')
        dma(4, 44, W4, sB, soff=sD)
    a(f's_branch {ldone}')
    a.label(lnone)
    for q in range(4):
        a(f's_add_u32 {sB}, s101, {q * 1024}')
        dma(4, 45, W4, sB)
    a.label(ldone)


def swz_finish():
    a('v_lshrrev_b32 v46, 2, v2')
    a('v_lshl_add_u32 v46, v3, 2, v46')
    a('v_lshlrev_b32 v46, 7, v46')
    a('v_and_b32 v47, 3, v2')
    a('v_lshl_add_u32 v46, v47, 3, v46')
    a(f'v_add_u32 v46, s101, v46')
    for nt in range(4):
        a(f'ds_read_b64_tr_b16 {vr(48 + 4 * nt, 2)}, v46 offset:{32 * nt}')
        a(f'ds_read_b64_tr_b16 {vr(50 + 4 * nt, 2)}, v46 offset:{32 * nt + 2048}')
    a('v_lshlrev_b32 v47, 4, v1')
    a('s_waitcnt lgkmcnt(0)')
    lskip = a.newlabel('L_swzs')
    a(f's_mov_b32 {sA}, s98')
    for nt in range(4):
        a(f's_cmp_le_u32 s99, {nt}')
        a(f's_cbranch_scc1 {lskip}')
        bstore(48 + 4 * nt, 4, 47, WS, soff=sA, mods='sc1')
        a(f's_add_u32 {sA}, {sA}, s100')
    a.label(lskip)


def phase_a():
    lk = 'L_roleK'; l5 = 'L_role5'; l67 = 'L_role67'; lj = 'L_A_join'
    stamp('entry')
    a(f's_cmp_lt_u32 {sWV}, 4')
    a(f's_cbranch_scc1 {lk}')
    a(f's_cmp_eq_u32 {sWV}, 5')
    a(f's_cbranch_scc1 {l5}')
    a(f's_cmp_gt_u32 {sWV}, 5')
    a(f's_cbranch_scc1 {l67}')
    role_stats()
    stamp('r_pub')
    gather_issue()
    a(f's_branch {lj}')
    a.label(l5)
    lnomod = a.newlabel('L_nomod'); l5b = a.newlabel('L_5b')
    a(f's_cmp_ge_u32 s2, 192')
    a(f's_cbranch_scc1 {lnomod}')
    role_mod_issue()
    swz_issue()
    a(f's_load_dword {sT}, s[{WS}:{WS + 1}], {WS_EPOCH}')
    expansion_addrs()
    a('s_waitcnt lgkmcnt(0)')
    a(f's_add_u32 {sT}, {sT}, 1')
    role_mod_compute(4)
    stamp('r_pub')
    a(f's_branch {l5b}')
    a.label(lnomod)
    swz_issue()
    a(f's_load_dword {sT}, s[{WS}:{WS + 1}], {WS_EPOCH}')
    expansion_addrs()
    a('s_waitcnt lgkmcnt(0)')
    a(f's_add_u32 {sT}, {sT}, 1')
    a.label(l5b)
    a('s_waitcnt vmcnt(1)') if False else None
    a('s_waitcnt vmcnt(0)')
    gather_issue()
    swz_finish()
    a(f's_branch {lj}')
    a.label(l67)
    swz_issue()
    a(f's_load_dword {sT}, s[{WS}:{WS + 1}], {WS_EPOCH}')
    expansion_addrs()
    a('s_waitcnt lgkmcnt(0)')
    a(f's_add_u32 {sT}, {sT}, 1')
    a('s_waitcnt vmcnt(0)')
    stamp('r_loaded')
    gather_issue()
    swz_finish()
    a(f's_branch {lj}')
    a.label(lk)
    role_k()
    a.label(lj)
    a('v_mov_b32 v24, 0'); a('v_mov_b32 v25, 0'); a('v_mov_b32 v26, 0'); a('v_mov_b32 v27, 0')
    a('v_lshrrev_b32 v21, 5, v0')
    a(f'v_mul_u32_u24 v21, {H_CH}, v21')
    a('v_and_b32 v22, 31, v0')
    a('v_lshl_add_u32 v21, v22, 4, v21')
    a(f'v_add_u32 v21, {L_H}, v21')
    a('v_subrev_u32 v22, 64, v0')
    a('v_lshrrev_b32 v23, 1, v22')
    a(f'v_mul_u32_u24 v23, {CP_R}, v23')
    a('v_and_b32 v22, 1, v0')
    a('v_lshl_add_u32 v23, v22, 4, v23')
    a(f'v_add_u32 v23, {L_COPY}, v23')
    a('v_cmp_gt_u32 vcc, 64, v0')
    a('v_cndmask_b32 v21, v23, v21, vcc')
    a('v_cmp_gt_u32 vcc, 80, v0')
    a(f's_and_saveexec_b64 s[{sP0}:{sP0 + 1}], vcc')
    lz = a.newlabel('L_z')
    a(f's_cbranch_execz {lz}')
    a('ds_write_b128 v21, v[24:27]')
    a.label(lz)
    a(f's_mov_b64 exec, s[{sP0}:{sP0 + 1}]')
    a('v_and_b32 v22, 1, v0')
    a(f'v_mul_u32_u24 v22, {KT_CH}, v22')
    a(f'v_add_u32 v22, {L_KT + 2 * KT_ZERO}, v22')
    a('v_cmp_gt_u32 vcc, 2, v0')
    a(f's_and_saveexec_b64 s[{sP0}:{sP0 + 1}], vcc')
    lz = a.newlabel('L_z')
    a(f's_cbranch_execz {lz}')
    a('ds_write_b16 v22, v24')
    a.label(lz)
    a(f's_mov_b64 exec, s[{sP0}:{sP0 + 1}]')
    a('s_waitcnt lgkmcnt(0)')
    stamp('role_done')
    a('s_barrier')
    stamp('B1')
    lsk = a.newlabel('L_kmf')
    a(f's_cmp_ge_u32 {sWV}, 6')
    a(f's_cbranch_scc1 {lsk}')
    a(f's_cmp_ge_u32 {sWV}, 3')
    a(f's_cselect_b32 {sA}, 1, 0')
    a(f's_mul_i32 {sB}, {sA}, 3')
    a(f's_sub_u32 {sB}, {sWV}, {sB}')
    a(f's_mul_i32 {sC}, {sA}, {G_CH}')
    a(f's_mul_i32 {sD}, {sB}, {16 * G_ROW}')
    a(f's_add_u32 {sC}, {sC}, {sD}')
    a(f'v_mul_u32_u24 v21, {G_ROW}, v2')
    a('v_lshl_add_u32 v21, v3, 4, v21')
    a(f'v_add_u32 v22, {sC}, v21')
    a(f's_mul_i32 {sC}, {sA}, {E_CH}')
    a(f's_add_u32 {sC}, {sC}, {L_E}')
    a(f'v_add_u32 v23, {sC}, v21')
    for ks in range(8):
        a(f'ds_read_b128 {vr(24 + 8 * ks, 4)}, v22 offset:{64 * ks}')
        a(f'ds_read_b128 {vr(28 + 8 * ks, 4)}, v23 offset:{64 * ks}')
    a(f's_mul_i32 {sC}, {sA}, {KT_CH}')
    a(f's_add_u32 {sC}, {sC}, {L_KT}')
    lt1 = a.newlabel('L_t1'); lt2 = a.newlabel('L_t2'); ltd = a.newlabel('L_td')
    a(f's_cmp_eq_u32 {sB}, 1'); a(f's_cbranch_scc1 {lt1}')
    a(f's_cmp_eq_u32 {sB}, 2'); a(f's_cbranch_scc1 {lt2}')
    a('v_lshrrev_b32 v96, 1, v3'); a('v_lshlrev_b32 v96, 7, v96')
    a('v_and_b32 v97, 1, v3'); a('v_lshl_add_u32 v96, v97, 2, v96')
    for r in range(4):
        a(f'v_add_u32 {vr(92 + r)}, {r}, v96')
    a(f's_branch {ltd}')
    a.label(lt1)
    a('v_cmp_gt_u32 vcc, 2, v3')
    for r in range(4):
        a(f'v_add_u32 v96, 2, v3'); a('v_lshlrev_b32 v96, 7, v96'); a(f'v_add_u32 v96, {2 * r}, v96')
        a(f'v_lshlrev_b32 v97, 1, v3'); a(f'v_add_u32 v97, {r >> 1}, v97'); a('v_lshlrev_b32 v97, 7, v97')
        a(f'v_add_u32 v97, {4 * (r & 1)}, v97')
        a(f'v_cndmask_b32 {vr(92 + r)}, v97, v96, vcc')
    a(f's_branch {ltd}')
    a.label(lt2)
    for r in range(4):
        a('v_lshlrev_b32 v96, 2, v3'); a(f'v_add_u32 v96, {8 + r}, v96'); a('v_lshlrev_b32 v96, 7, v96')
        a('v_lshlrev_b32 v97, 3, v2'); a(f'v_sub_u32 v97, {KT_DUMMY}, v97')
        lim = 3 if r == 0 else 2
        a(f'v_cmp_gt_u32 vcc, {lim}, v3')
        a(f'v_cndmask_b32 {vr(92 + r)}, v97, v96, vcc')
    a.label(ltd)
    a('v_lshlrev_b32 v96, 3, v2')
    for r in range(4):
        a(f'v_add_u32 {vr(92 + r)}, {vr(92 + r)}, v96')
        a(f'v_lshlrev_b32 {vr(92 + r)}, 1, {vr(92 + r)}')
        a(f'v_add_u32 {vr(92 + r)}, {sC}, {vr(92 + r)}')
    for ks in range(8):
        a(f's_waitcnt lgkmcnt({14 - 2 * ks})')
        c = '0' if ks == 0 else 'v[88:91]'
        a(f'v_mfma_f32_16x16x32_bf16 v[88:91], {vr(24 + 8 * ks, 4)}, {vr(28 + 8 * ks, 4)}, {c}')
    a('v_cvt_pk_bf16_f32 v96, v88, v89')
    a('v_cvt_pk_bf16_f32 v97, v90, v91')
    a('ds_write_b16 v92, v96')
    a('ds_write_b16_d16_hi v93, v96')
    a('ds_write_b16 v94, v97')
    a('ds_write_b16_d16_hi v95, v97')
    a('s_waitcnt lgkmcnt(0)')
    a.label(lsk)
    a('s_barrier')
    stamp('B2')
    for d in range(1, 12):
        a(f'ds_read_u16 {vr(24 + d)}, {vr(4 + d)}')
    a('v_lshrrev_b32 v21, 8, v0')
    a(f'v_mul_u32_u24 v21, {CP_CH}, v21')
    a('v_and_b32 v22, 255, v0')
    a('v_lshl_add_u32 v21, v22, 4, v21')
    a(f'v_add_u32 v21, {L_COPY + 32}, v21')
    a('s_waitcnt lgkmcnt(0)')
    for r in range(4):
        d = 36 + 4 * r
        for p in range(4):
            a(f'v_lshl_or_b32 {vr(d + p)}, {vr(24 + 5 + 2 * p - r)}, 16, {vr(24 + 4 + 2 * p - r)}')
        a(f'ds_write_b128 v21, {vr(d, 4)} offset:{r * CP_R}')


def spin_guard(label_retry, label_ok):
    a(f's_add_u32 {sSPIN}, {sSPIN}, 1')
    a(f's_cmp_lt_u32 {sSPIN}, {SPIN_MAX}')
    a(f's_cbranch_scc1 {label_retry}')


def phase_b():
    stamp('expanded')
    a('v_lshlrev_b32 v21, 6, v0')
    a(f'v_add_u32 v21, {WS_STATS}, v21')
    a(f's_lshl_b32 {sA}, {sCH0}, 3')
    a(f's_add_u32 {sA}, {sA}, {WS_MODG}')
    a(f'v_mov_b32 v22, {sA}')
    a(f's_mov_b32 {sB}, 4096'); a(f's_mov_b32 {sC}, 8192')
    a(f's_mov_b32 {sSPIN}, 0')
    lp = 'L_S1_poll'; lok = 'L_S1_ok'
    a.label(lp)
    for i in range(4):
        bload(44 + 4 * i, 4, 21, WS, imm=16 * i, mods='sc1')
    bload(60, 4, 22, WS, mods='sc1')
    bload(64, 4, 22, WS, soff=sB, mods='sc1')
    bload(68, 4, 22, WS, soff=sC, mods='sc1')
    a('s_waitcnt vmcnt(0)')
    tags = [45, 47, 49, 51, 53, 55, 57, 59, 61, 63, 65, 67, 69, 71]
    a(f'v_min3_u32 v72, {vr(tags[0])}, {vr(tags[1])}, {vr(tags[2])}')
    a(f'v_max3_u32 v73, {vr(tags[0])}, {vr(tags[1])}, {vr(tags[2])}')
    k = 3
    while k < len(tags):
        t2 = tags[k + 1] if k + 1 < len(tags) else tags[k]
        a(f'v_min3_u32 v72, v72, {vr(tags[k])}, {vr(t2)}')
        a(f'v_max3_u32 v73, v73, {vr(tags[k])}, {vr(t2)}')
        k += 2
    a(f'v_cmp_ne_u32 vcc, {sT}, v72')
    a(f'v_cmp_ne_u32 s[{sP0}:{sP0 + 1}], {sT}, v73')
    a('s_nop 0')
    a(f's_or_b64 vcc, vcc, s[{sP0}:{sP0 + 1}]')
    a(f's_cbranch_vccz {lok}')
    spin_guard(lp, lok)
    a.label(lok)
    a('s_waitcnt lgkmcnt(0)')
    stamp('S1ok')
    a('s_barrier')
    a('v_lshlrev_b32 v23, 4, v0')
    a(f'v_add_u32 v23, {L_XC}, v23')
    a('ds_read_b128 v[72:75], v23')
    a('v_add_f32 v64, 1.0, v64'); a('v_add_f32 v66, 1.0, v66')
    a(f's_lshr_b32 {sCHL}, {sWV}, 2'); a(f's_and_b32 {sQ}, {sWV}, 3')
    a(f's_add_u32 {sA}, {sCH0}, {sCHL}'); a(f's_lshl_b32 {sA}, {sA}, 1')
    a(f'v_mov_b32 v77, {sA}')
    bload(76, 'u16', 77, DSK)
    a('s_waitcnt lgkmcnt(0)')
    for i in range(4):
        r, mr = 44 + 4 * i, 46 + 4 * i
        a(f'v_lshlrev_b32 v80, 16, {vr(72 + i)}')
        a(f'v_and_b32 v81, 0xffff0000, {vr(72 + i)}')
        a(f'v_fma_f32 v80, v80, {vr(r)}, -{vr(mr)}')
        a(f'v_fma_f32 v81, v81, {vr(r)}, -{vr(mr)}')
        a(f'v_fma_f32 {vr(82 + i)}, v80, v64, v60')
        a(f'v_fma_f32 {vr(86 + i)}, v81, v66, v62')
    a('v_cvt_pk_bf16_f32 v90, v82, v83'); a('v_cvt_pk_bf16_f32 v91, v84, v85')
    a('v_cvt_pk_bf16_f32 v92, v86, v87'); a('v_cvt_pk_bf16_f32 v93, v88, v89')
    a('v_lshlrev_b32 v23, 3, v0')
    a(f'v_add_u32 v23, {L_H + 512}, v23')
    a('ds_write_b64 v23, v[90:91]')
    a(f'ds_write_b64 v23, v[92:93] offset:{H_CH}')
    a(f's_cmp_eq_u32 {sCHL}, 0')
    a(f's_cselect_b64 vcc, -1, 0')
    a('v_cndmask_b32 v78, v70, v68, vcc')
    a(f's_mul_i32 {sA}, {sCHL}, {H_CH}')
    a(f's_lshl_b32 {sB}, {sQ}, 6')
    a(f's_sub_u32 {sA}, {sA}, {sB}')
    a(f's_add_u32 {sA}, {sA}, {L_H + 480 - 256}')
    a('v_lshlrev_b32 v21, 5, v2')
    a('v_lshl_add_u32 v21, v3, 4, v21')
    a(f'v_add_u32 v21, {sA}, v21')
    a(f's_mul_i32 {sA}, {sCHL}, {CP_CH}')
    a(f's_add_u32 {sA}, {sA}, {sB}')
    a(f's_add_u32 {sA}, {sA}, {L_COPY + 64 - 8}')
    a('v_lshrrev_b32 v22, 2, v2')
    a(f'v_mul_u32_u24 v22, {CP_R}, v22')
    a('v_and_b32 v23, 3, v2')
    a('v_lshl_add_u32 v22, v23, 3, v22')
    a('v_lshlrev_b32 v23, 4, v3')
    a('v_sub_u32 v22, v22, v23')
    a(f'v_add_u32 v22, {sA}, v22')
    a(f's_lshl_b32 {sA}, {sWV}, 13')
    a('v_lshlrev_b32 v23, 4, v1')
    a(f'v_add_u32 v23, {sA}, v23')
    a('s_waitcnt lgkmcnt(0)')
    a('s_barrier')
    stamp('B3')
    BF = 96; ACC = 160; AF = 24
    order = [1, 0] + list(range(2, 16))
    first = [u for u in range(1, 16, 2)] + [u for u in range(0, 16, 2)]

    def ldA(i):
        r = AF + 4 * (i % 4)
        a(f'ds_read_b64_tr_b16 {vr(r, 2)}, v22 offset:{256 * i + 8}')
        a(f'ds_read_b64_tr_b16 {vr(r + 2, 2)}, v22 offset:{256 * i}')
    ldA(0)
    for u in first[:8]:
        a(f'ds_read_b128 {vr(BF + 4 * u, 4)}, v21 offset:{256 * u}')
    ldA(1)
    issued_even = False
    for i in range(16):
        nmin = max(0, (i - 1 + 1) // 2) if i >= 1 else 0
        nmin = (i) // 2 if i >= 1 else 0
        if i == 0:
            a('s_waitcnt lgkmcnt(2)')
            for u in first[8:]:
                a(f'ds_read_b128 {vr(BF + 4 * u, 4)}, v21 offset:{256 * u}')
            ldA(2)
        elif i == 1:
            a('s_waitcnt lgkmcnt(2)')
            ldA(3)
        else:
            pend = 2 if i + 1 < 16 else 0
            wr_prev = 1 if (i - 1) >= 2 and (i - 1) % 2 == 0 else 0
            a(f's_waitcnt lgkmcnt({pend + wr_prev})')
            if i + 2 < 16:
                ldA(i + 2)
        for n in range(nmin, 8):
            u = 2 * n - i + 1
            c = '0' if i == 0 else vr(ACC + 4 * n, 4)
            a(f'v_mfma_f32_16x16x32_bf16 {vr(ACC + 4 * n, 4)}, {vr(AF + 4 * (i % 4), 4)}, {vr(BF + 4 * u, 4)}, {c}')
        if i >= 2 and i % 2 == 0:
            n = i // 2 - 1
            a(f'ds_write_b128 v23, {vr(ACC + 4 * n, 4)} offset:{1024 * n}')
    a(f'ds_write_b128 v23, {vr(ACC + 28, 4)} offset:{1024 * 7}')
    a('s_waitcnt lgkmcnt(0)')
    a('s_barrier')
    stamp('B4')
    a(f's_lshl_b32 {sA}, {sCHL}, 15')
    a(f's_lshl_b32 {sB}, {sQ}, 11')
    a(f's_add_u32 {sA}, {sA}, {sB}')
    a('v_lshlrev_b32 v23, 4, v1')
    a(f'v_add_u32 v23, {sA}, v23')
    for nn in range(2):
        for qq in range(4):
            a(f'ds_read_b128 {vr(96 + 16 * nn + 4 * qq, 4)}, v23 offset:{8192 * qq + 1024 * nn}')
    a('v_lshlrev_b32 v21, 4, v2')
    a('v_lshl_add_u32 v21, v3, 2, v21')
    a(f's_lshl_b32 {sA}, {sQ}, 9')
    a(f'v_add_u32 v21, {sA}, v21')
    a('v_lshlrev_b32 v22, 2, v21')
    a(f'v_add_u32 v22, {L_XC}, v22')
    a(f's_mul_i32 {sA}, {sCHL}, {H_CH}')
    a(f's_add_u32 {sA}, {sA}, {L_H + 512}')
    a('v_lshlrev_b32 v24, 1, v21')
    a(f'v_add_u32 v25, {sA}, v24')
    for nn in range(2):
        a(f'ds_read_b128 {vr(128 + 4 * nn, 4)}, v22 offset:{1024 * nn}')
        a(f'ds_read_b64 {vr(136 + 2 * nn, 2)}, v25 offset:{512 * nn}')
    a(f's_add_u32 {sA}, {sCH0}, {sCHL}')
    a(f's_lshl_b32 {sA}, {sA}, 12')
    a(f's_add_u32 {sA}, {sA}, {WS_X2T}')
    a(f'v_add_u32 v24, {sA}, v24')
    a(f's_xor_b32 {sB}, {sCHL}, 1')
    a(f's_lshl_b32 {sB}, {sB}, 4')
    a('s_waitcnt vmcnt(0)')
    a('v_lshlrev_b32 v76, 16, v76')
    a('s_waitcnt lgkmcnt(0)')
    for nn in range(2):
        y = 96 + 16 * nn
        for k in range(4):
            a(f'v_add_f32 {vr(y + k)}, {vr(y + k)}, {vr(y + 4 + k)}')
            a(f'v_add_f32 {vr(y + 8 + k)}, {vr(y + 8 + k)}, {vr(y + 12 + k)}')
            a(f'v_add_f32 {vr(y + k)}, {vr(y + k)}, {vr(y + 8 + k)}')
        for k in range(4):
            hreg = 136 + 2 * nn + (k >> 1)
            if k & 1:
                a(f'v_and_b32 v26, 0xffff0000, {vr(hreg)}')
            else:
                a(f'v_lshlrev_b32 v26, 16, {vr(hreg)}')
            a(f'v_fma_f32 {vr(y + k)}, v26, v76, {vr(y + k)}')
            a(f'v_lshlrev_b32 v27, {sB}, {vr(128 + 4 * nn + k)}')
            a('v_and_b32 v27, 0xffff0000, v27')
            a(f'v_fma_f32 {vr(y + k)}, v78, {vr(y + k)}, v27')
        a(f'v_cvt_pk_bf16_f32 {vr(y)}, {vr(y)}, {vr(y + 1)}')
        a(f'v_cvt_pk_bf16_f32 {vr(y + 1)}, {vr(y + 2)}, {vr(y + 3)}')
        bstore(y, 2, 24, WS, imm=512 * nn, mods='sc1')
    a('s_waitcnt vmcnt(0)')
    stamp('x2stored')
    a('s_barrier')
    lf = a.newlabel('L_f2')
    a(f's_cmp_lg_u32 {sWV}, 0')
    a(f's_cbranch_scc1 {lf}')
    a(f's_lshl_b32 {sA}, s2, 2')
    a(f's_add_u32 {sA}, {sA}, {WS_F2}')
    a(f'v_mov_b32 v21, {sA}')
    a(f'v_mov_b32 v22, {sT}')
    a('v_cmp_eq_u32 vcc, 0, v1')
    a(f's_and_saveexec_b64 s[{sP0}:{sP0 + 1}], vcc')
    bstore(22, 1, 21, WS, mods='sc1')
    a(f's_mov_b64 exec, s[{sP0}:{sP0 + 1}]')
    a.label(lf)


L_X = 0
L_W1 = 69632
L_A4 = 0
L_W2 = 81920
L_EX = 0
L_HS = 147456
L_CB = L_HS + 8192
L_SB = L_CB + 2048
L_CSP = L_SB + 2048
L_ST = L_CSP + 512
L_ST3 = L_ST + 1024
assert L_ST3 + 1024 <= 163840
XS = 4; X1R = 8
ONES = 128
mK1, mK2, mK3, mDG = 90, 92, 94, 96


def lane_consts():
    a('v_lshrrev_b32 v14, 2, v2')
    a('v_lshl_add_u32 v12, v3, 2, v14')
    a('v_lshlrev_b32 v12, 7, v12')
    a('v_and_b32 v15, 3, v2')
    a('v_lshl_add_u32 v12, v15, 3, v12')
    a('v_lshrrev_b32 v14, 1, v14')
    a('v_lshl_add_u32 v13, v3, 1, v14')
    a('v_and_b32 v13, 3, v13')
    a(f'v_cmp_eq_u32 s[{mK1}:{mK1 + 1}], 1, v15')
    a(f'v_cmp_eq_u32 s[{mK2}:{mK2 + 1}], 2, v15')
    a(f'v_cmp_eq_u32 s[{mK3}:{mK3 + 1}], 3, v15')
    a('v_lshrrev_b32 v14, 2, v2')
    a(f'v_cmp_eq_u32 s[{mDG}:{mDG + 1}], v14, v3')


def tr_addr(dst, chunk, base):
    a(f'v_xor_b32 {vr(dst)}, {chunk}, v13')
    a(f'v_lshl_add_u32 {vr(dst)}, {vr(dst)}, 5, v12')
    if base != 0:
        a(f'v_add_u32 {vr(dst)}, {base}, {vr(dst)}')


def slab_dma_addr(dst, rowstride_log2):
    a(f'v_lshrrev_b32 {vr(dst)}, 3, v1')
    a('v_lshrrev_b32 v14, 4, v1')
    a('v_and_b32 v14, 3, v14')
    a('v_bfe_u32 v15, v1, 1, 2')
    a('v_xor_b32 v14, v14, v15')
    a('v_lshlrev_b32 v14, 5, v14')
    a('v_and_b32 v15, 1, v1')
    a('v_lshl_add_u32 v14, v15, 4, v14')
    a(f'v_lshl_add_u32 {vr(dst)}, {vr(dst)}, {rowstride_log2}, v14')


def weight_slab_dma(S, ldsbase):
    slab_dma_addr(20, 10)
    a(f's_lshl_b32 {sA}, {sCS}, 7')
    a(f's_lshl_b32 {sB}, {sWV}, 13')
    a(f's_add_u32 {sA}, {sA}, {sB}')
    a(f's_lshl_b32 {sB}, {sWV}, 10')
    a(f's_add_u32 {sB}, {sB}, {ldsbase}')
    for k in range(8):
        a(f's_add_u32 {sC}, {sA}, {k * 65536}')
        a(f's_add_u32 {sD}, {sB}, {k * 8192}')
        dma(4, 20, S, sD, soff=sC)


def set_flag(off, idx_sgpr):
    lf = a.newlabel('L_flag')
    a(f's_cmp_lg_u32 {sWV}, 0')
    a(f's_cbranch_scc1 {lf}')
    a(f's_lshl_b32 {sA}, {idx_sgpr}, 2')
    a(f's_add_u32 {sA}, {sA}, {off}')
    a(f'v_mov_b32 v116, {sA}')
    a(f'v_mov_b32 v117, {sT}')
    a('v_cmp_eq_u32 vcc, 0, v1')
    a(f's_and_saveexec_b64 s[{sP3 + 2}:{sP3 + 3}], vcc')
    bstore(117, 1, 116, WS, mods='sc1')
    a(f's_mov_b64 exec, s[{sP3 + 2}:{sP3 + 3}]')
    a.label(lf)


def poll(off, kind):
    lf = a.newlabel('L_pollskip'); lp = a.newlabel('L_poll'); lok = a.newlabel('L_pollok')
    a(f's_cmp_lg_u32 {sWV}, 0')
    a(f's_cbranch_scc1 {lf}')
    if kind == 'all':
        a('v_lshlrev_b32 v116, 4, v1')
        a(f'v_add_u32 v116, {off}, v116')
    elif kind == 'own':
        a('v_and_b32 v116, 7, v1')
        a(f's_lshl_b32 {sA}, {sRB}, 3')
        a(f'v_add_u32 v116, {sA}, v116')
        a('v_lshlrev_b32 v116, 2, v116')
        a(f'v_add_u32 v116, {off}, v116')
    else:
        a('v_min_u32 v116, 23, v1')
        a(f's_lshl_b32 {sA}, {sRB}, 3')
        a(f's_sub_u32 {sB}, {sA}, 8')
        a(f'v_add_u32 v116, {sB}, v116')
        a('v_cmp_gt_u32 vcc, 256, v116')
        a(f'v_mov_b32 v117, {sA}')
        a('v_cndmask_b32 v116, v117, v116, vcc')
        a('v_lshlrev_b32 v116, 2, v116')
        a(f'v_add_u32 v116, {off}, v116')
    a(f's_mov_b32 {sSPIN}, 0')
    a.label(lp)
    if kind == 'all':
        bload(118, 4, 116, WS, mods='sc1')
        a('s_waitcnt vmcnt(0)')
        a('v_min3_u32 v122, v118, v119, v120'); a('v_max3_u32 v123, v118, v119, v120')
        a('v_min_u32 v122, v122, v121'); a('v_max_u32 v123, v123, v121')
        a(f'v_cmp_ne_u32 vcc, {sT}, v122')
        a(f'v_cmp_ne_u32 s[{sP3 + 2}:{sP3 + 3}], {sT}, v123')
        a('s_nop 0')
        a(f's_or_b64 vcc, vcc, s[{sP3 + 2}:{sP3 + 3}]')
    else:
        bload(118, 1, 116, WS, mods='sc1')
        a('s_waitcnt vmcnt(0)')
        a(f'v_cmp_ne_u32 vcc, {sT}, v118')
        a('s_nop 0')
    a(f's_cbranch_vccz {lok}')
    spin_guard(lp, lok)
    a.label(lok)
    a.label(lf)
    a('s_barrier')


def diag_select(dst, q):
    a(f'v_cndmask_b32 {vr(dst)}, {vr(q)}, {vr(q + 1)}, s[{mK1}:{mK1 + 1}]')
    a(f'v_cndmask_b32 {vr(dst)}, {vr(dst)}, {vr(q + 2)}, s[{mK2}:{mK2 + 1}]')
    a(f'v_cndmask_b32 {vr(dst)}, {vr(dst)}, {vr(q + 3)}, s[{mK3}:{mK3 + 1}]')


def stats_publish(ldsbase, S, Q, t0, t1, addr):
    diag_select(t1, Q)
    a(f'v_mov_b32 {vr(t0)}, {vr(S)}')
    a(f's_lshl_b32 {sA}, {sWV}, 7')
    a(f's_add_u32 {sA}, {sA}, {ldsbase}')
    a(f'v_lshl_add_u32 {vr(addr)}, v2, 3, {sA}')
    a(f's_mov_b64 s[{sP3 + 2}:{sP3 + 3}], exec')
    a(f's_mov_b64 exec, s[{mDG}:{mDG + 1}]')
    a(f'ds_write_b64 {vr(addr)}, {vr(t0, 2)}')
    a(f's_mov_b64 exec, s[{sP3 + 2}:{sP3 + 3}]')


def stats_finish(S, Q, m, r):
    a(f'v_mul_f32 {vr(m)}, {fconst(1.0 / 512)}, {vr(S)}')
    a(f'v_mul_f32 {vr(r)}, {fconst(1.0 / 512)}, {vr(Q)}')
    a(f'v_fma_f32 {vr(r)}, -{vr(m)}, {vr(m)}, {vr(r)}')
    a(f'v_max_f32 {vr(r)}, 0, {vr(r)}')
    a(f'v_add_f32 {vr(r)}, {fconst(1e-5)}, {vr(r)}')
    a(f'v_rsq_f32 {vr(r)}, {vr(r)}')


GC0 = -2.0 * 1.4426950408889634 * 0.7978845608028654
GC1 = GC0 * 0.044715


def gelu(regs, tmp):
    n = len(regs)
    for i in range(0, n, 2):
        x = regs[i]
        t = tmp + 2 * ((i // 2) & 1)
        a(f'v_pk_mul_f32 {vr(t, 2)}, {vr(x, 2)}, {vr(x, 2)}')
        a(f'v_pk_fma_f32 {vr(t, 2)}, {vr(t, 2)}, v[{GK1}:{GK1 + 1}], v[{GK0}:{GK0 + 1}]')
        a(f'v_pk_mul_f32 {vr(t, 2)}, {vr(t, 2)}, {vr(x, 2)}')
        a(f'v_exp_f32 {vr(t)}, {vr(t)}')
        a(f'v_exp_f32 {vr(t + 1)}, {vr(t + 1)}')
        a(f'v_pk_add_f32 {vr(t, 2)}, {vr(t, 2)}, v[{GONE}:{GONE + 1}]')
        a(f'v_rcp_f32 {vr(t)}, {vr(t)}')
        a(f'v_rcp_f32 {vr(t + 1)}, {vr(t + 1)}')
        a(f'v_pk_mul_f32 {vr(x, 2)}, {vr(x, 2)}, {vr(t, 2)}')


GK0, GK1, GONE = 14, 18, 22


def gelu_consts():
    for r, c in ((GK0, GC0), (GK1, GC1), (GONE, 1.0)):
        a(f'v_mov_b32 {vr(r)}, {fconst(c)}')
        a(f'v_mov_b32 {vr(r + 1)}, {fconst(c)}')


def phase3():
    lane_consts()
    weight_slab_dma(W1, L_W1)
    for k in range(4):
        a(f'v_mov_b32 {vr(ONES + k)}, 0x3f803f80')
    a(f's_and_b32 {sA}, {sWV}, 3')
    a(f's_lshr_b32 {sB}, {sWV}, 2')
    a(f's_lshl_b32 {sB}, {sB}, 15')
    a(f's_add_u32 {sB}, {sB}, {L_W1}')
    tr_addr(20, sA, 0)
    a(f'v_add_u32 v20, {sB}, v20')
    a('s_waitcnt vmcnt(0)')
    a('s_barrier')
    stamp('W1landed')
    for ks in range(8):
        a(f'ds_read_b64_tr_b16 {vr(16 + 4 * ks if False else 32 + 4 * ks, 2)}, v20 offset:{4096 * ks}')
        a(f'ds_read_b64_tr_b16 {vr(34 + 4 * ks, 2)}, v20 offset:{4096 * ks + 2048}')
    a('s_waitcnt lgkmcnt(0)')
    for ks in range(8):
        c = '0' if ks == 0 else 'v[100:103]'
        a(f'v_mfma_f32_16x16x32_bf16 v[100:103], {vr(32 + 4 * ks, 4)}, {vr(ONES, 4)}, {c}')
    a(f's_lshr_b32 {sA}, {sWV}, 2'); a(f's_lshl_b32 {sA}, {sA}, 8')
    a(f's_and_b32 {sB}, {sWV}, 3'); a(f's_lshl_b32 {sB}, {sB}, 6')
    a(f's_add_u32 {sA}, {sA}, {sB}'); a(f's_add_u32 {sA}, {sA}, {L_CSP}')
    a(f'v_lshl_add_u32 v21, v3, 4, {sA}')
    a('v_cmp_eq_u32 vcc, 0, v2')
    a(f's_and_saveexec_b64 s[{sP3 + 2}:{sP3 + 3}], vcc')
    a('ds_write_b128 v21, v[100:103]')
    a(f's_mov_b64 exec, s[{sP3 + 2}:{sP3 + 3}]')
    a('s_waitcnt lgkmcnt(0)')
    poll(WS_F2, 'all')
    stamp('S2ok')
    slab_dma_addr(20, 12)
    a(f's_lshl_b32 {sA}, {sRB}, 7')
    a(f's_lshl_b32 {sB}, {sWV}, 15')
    a(f's_add_u32 {sA}, {sA}, {sB}')
    a(f's_add_u32 {sA}, {sA}, {WS_X2T}')
    a(f's_lshl_b32 {sB}, {sWV}, 10')
    for k in range(8):
        a(f's_add_u32 {sC}, {sA}, {k * 8 * 8 * 4096}')
        a(f's_add_u32 {sD}, {sB}, {L_X + k * 8192}')
        dma(4, 20, WS, sD, soff=sC, mods='sc1')
    a('v_lshlrev_b32 v21, 3, v0')
    a(f'v_add_u32 v21, {WS_MODG + 3 * 512 * 8}, v21')
    a(f's_mov_b32 {sA}, 4096')
    bload(24, 2, 21, WS, mods='sc1')
    bload(26, 2, 21, WS, soff=sA, mods='sc1')
    a('v_lshlrev_b32 v22, 2, v0')
    a(f'v_add_u32 v22, {L_CB}, v22')
    a(f's_and_b32 {sCHL}, {sWV}, 3')
    a(f's_lshr_b32 {sQ}, {sWV}, 2')
    a(f's_lshl_b32 {sB}, {sQ}, 15')
    tr_addr(136, sCHL, 0)
    a(f'v_add_u32 v136, {sB}, v136')
    a(f's_add_u32 {sB}, {sB}, {L_W1}')
    for nt in range(4):
        tr_addr(132 + nt, nt, 0)
        a(f'v_add_u32 {vr(132 + nt)}, {sB}, {vr(132 + nt)}')
    a(f's_lshl_b32 {sA}, {sQ}, 10')
    a(f's_add_u32 {sA}, {sA}, {L_CB}')
    a(f'v_lshl_add_u32 v137, v3, 4, {sA}')
    a('s_waitcnt vmcnt(0)')
    a('v_add_f32 v26, 1.0, v26')
    a('ds_write_b32 v22, v26')
    a('ds_write_b32 v22, v24 offset:2048')
    a('s_waitcnt lgkmcnt(0)')
    a('s_barrier')
    stamp('Xlanded')
    for ks in range(8):
        a(f'ds_read_b64_tr_b16 {vr(16 + 4 * ks, 2)}, v136 offset:{4096 * ks}')
        a(f'ds_read_b64_tr_b16 {vr(18 + 4 * ks, 2)}, v136 offset:{4096 * ks + 2048}')
    a(f's_lshl_b32 {sA}, {sCS}, 13')
    a(f's_lshl_b32 {sB}, {sCHL}, 11')
    a(f's_add_u32 {sA}, {sA}, {sB}')
    a(f's_lshl_b32 {sB}, {sQ}, 1')
    tr_addr(138, sB, 0)
    a(f'v_add_u32 v138, {sA}, v138')
    a(f's_add_u32 {sB}, {sB}, 1')
    tr_addr(139, sB, 0)
    a(f'v_add_u32 v139, {sA}, v139')
    a(f'ds_read_b64_tr_b16 {vr(XS, 2)}, v138')
    a(f'ds_read_b64_tr_b16 {vr(XS + 2, 2)}, v139')
    a('s_waitcnt lgkmcnt(0)')
    for ks in range(8):
        f = vr(16 + 4 * ks, 4)
        a(f'v_mfma_f32_16x16x32_bf16 v[116:119], {vr(ONES, 4)}, {f}, ' + ('0' if ks == 0 else 'v[116:119]'))
        a(f'v_mfma_f32_16x16x32_bf16 v[120:123], {f}, {f}, ' + ('0' if ks == 0 else 'v[120:123]'))
    stats_publish(L_ST, 116, 120, 48, 49, 50)
    a('s_waitcnt lgkmcnt(0)')
    a('s_barrier')
    a(f's_lshl_b32 {sA}, {sCHL}, 7')
    a(f's_add_u32 {sA}, {sA}, {L_ST}')
    a(f'v_lshl_add_u32 v50, v2, 3, {sA}')
    a('ds_read_b64 v[52:53], v50')
    a('ds_read_b64 v[54:55], v50 offset:512')

    def ldcoef(ks):
        a(f'ds_read_b128 v[48:51], v137 offset:{128 * ks}') if False else None
    a('s_waitcnt lgkmcnt(0)')
    a('v_add_f32 v52, v52, v54'); a('v_add_f32 v53, v53, v55')
    stats_finish(52, 53, 126, 124)
    a('v_mul_f32 v126, v126, v124')
    stamp('stats2')
    CO = 48
    WB = 68

    def ldc(ks):
        a(f'ds_read_b128 {vr(CO, 4)}, v137 offset:{128 * ks}')
        a(f'ds_read_b128 {vr(CO + 4, 4)}, v137 offset:{128 * ks + 64}')
        a(f'ds_read_b128 {vr(CO + 8, 4)}, v137 offset:{2048 + 128 * ks}')
        a(f'ds_read_b128 {vr(CO + 12, 4)}, v137 offset:{2048 + 128 * ks + 64}')

    def ldw(ks):
        b = WB + 16 * (ks & 1)
        for nt in range(4):
            a(f'ds_read_b64_tr_b16 {vr(b + 4 * nt, 2)}, {vr(132 + nt)} offset:{4096 * ks}')
            a(f'ds_read_b64_tr_b16 {vr(b + 4 * nt + 2, 2)}, {vr(132 + nt)} offset:{4096 * ks + 2048}')
    ldc(0)
    ldw(0)
    for ks in range(8):
        f = 16 + 4 * ks
        a('s_waitcnt lgkmcnt(8)')
        for p in range(4):
            z = 64 + 2 * (p & 1)
            a(f'v_lshlrev_b32 {vr(z)}, 16, {vr(f + p)}')
            a(f'v_and_b32 {vr(z + 1)}, 0xffff0000, {vr(f + p)}')
            a(f'v_pk_fma_f32 {vr(z, 2)}, {vr(z, 2)}, v[124:125], v[126:127] op_sel_hi:[1,0,0] neg_lo:[0,0,1] neg_hi:[0,0,1]')
            a(f'v_pk_fma_f32 {vr(z, 2)}, {vr(z, 2)}, {vr(CO + 2 * p, 2)}, {vr(CO + 8 + 2 * p, 2)}')
            a(f'v_cvt_pk_bf16_f32 {vr(f + p)}, {vr(z)}, {vr(z + 1)}')
        if ks < 7:
            ldc(ks + 1)
        lsk = a.newlabel('L_hs')
        a(f's_lshl_b32 {sA}, {sQ}, 3')
        a(f's_add_u32 {sA}, {sA}, {ks}')
        a(f's_lshr_b32 {sA}, {sA}, 1')
        a(f's_cmp_lg_u32 {sA}, {sCS}')
        a(f's_cbranch_scc1 {lsk}')
        a(f's_lshl_b32 {sA}, {sCHL}, 9')
        a(f's_add_u32 {sA}, {sA}, {L_HS + (2 * (ks & 1)) * 4 * 512}')
        a(f'v_lshl_add_u32 v138, v1, 3, {sA}')
        a(f'ds_write_b64 v138, {vr(f, 2)}')
        a(f'ds_write_b64 v138, {vr(f + 2, 2)} offset:2048')
        a('s_waitcnt lgkmcnt(0)')
        a.label(lsk)
        a(f's_waitcnt lgkmcnt({4 if ks < 7 else 0})')
        wb = WB + 16 * (ks & 1)
        if ks < 7:
            ldw(ks + 1)
        for nt in range(4):
            c = '0' if ks == 0 else vr(100 + 4 * nt, 4)
            a(f'v_mfma_f32_16x16x32_bf16 {vr(100 + 4 * nt, 4)}, {vr(wb + 4 * nt, 4)}, {vr(f, 4)}, {c}')
        a(f'v_mfma_f32_16x16x32_bf16 v[116:119], {vr(ONES, 4)}, {vr(f, 4)}, ' + ('0' if ks == 0 else 'v[116:119]'))
        a(f'v_mfma_f32_16x16x32_bf16 v[120:123], {vr(f, 4)}, {vr(f, 4)}, ' + ('0' if ks == 0 else 'v[120:123]'))
    stamp('gemm1')
    stats_publish(L_ST3, 116, 120, 48, 49, 50)
    a(f's_lshl_b32 {sA}, {sWV}, 11')
    a(f'v_lshl_add_u32 v20, v1, 4, {sA}')
    lk1 = a.newlabel('L_k1'); lkd = a.newlabel('L_kd')
    a(f's_cmp_eq_u32 {sQ}, 1')
    a(f's_cbranch_scc1 {lk1}')
    a(f'ds_write_b128 v20, v[108:111] offset:{L_EX}')
    a(f'ds_write_b128 v20, v[112:115] offset:{L_EX + 1024}')
    a(f's_branch {lkd}')
    a.label(lk1)
    a(f'ds_write_b128 v20, v[100:103] offset:{L_EX}')
    a(f'ds_write_b128 v20, v[104:107] offset:{L_EX + 1024}')
    for k in range(8):
        a(f'v_mov_b32 {vr(100 + k)}, {vr(108 + k)}')
    a.label(lkd)
    a('s_waitcnt lgkmcnt(0)')
    a('s_barrier')
    a(f's_xor_b32 {sA}, {sWV}, 4')
    a(f's_lshl_b32 {sA}, {sA}, 11')
    a(f'v_lshl_add_u32 v20, v1, 4, {sA}')
    a(f'ds_read_b128 v[108:111], v20 offset:{L_EX}')
    a(f'ds_read_b128 v[112:115], v20 offset:{L_EX + 1024}')
    a(f's_lshl_b32 {sA}, {sCHL}, 7')
    a(f's_add_u32 {sA}, {sA}, {L_ST3}')
    a(f'v_lshl_add_u32 v50, v2, 3, {sA}')
    a('ds_read_b64 v[52:53], v50')
    a('ds_read_b64 v[54:55], v50 offset:512')
    a(f's_lshl_b32 {sA}, {sQ}, 7')
    a(f's_add_u32 {sA}, {sA}, {L_CSP}')
    a(f'v_lshl_add_u32 v51, v3, 4, {sA}')
    a('ds_read_b128 v[56:59], v51')
    a('ds_read_b128 v[60:63], v51 offset:64')
    a('ds_read_b128 v[64:67], v51 offset:256')
    a('ds_read_b128 v[68:71], v51 offset:320')
    gelu_consts()
    a('s_waitcnt lgkmcnt(0)')
    a('v_add_f32 v52, v52, v54'); a('v_add_f32 v53, v53, v55')
    stats_finish(52, 53, 126, 124)
    for k in range(8):
        a(f'v_add_f32 {vr(100 + k)}, {vr(100 + k)}, {vr(108 + k)}')
        a(f'v_add_f32 {vr(56 + k)}, {vr(56 + k)}, {vr(64 + k)}')
    for k in range(8):
        a(f'v_fma_f32 {vr(100 + k)}, -v126, {vr(56 + k)}, {vr(100 + k)}')
        a(f'v_mul_f32 {vr(100 + k)}, v124, {vr(100 + k)}')
    gelu(list(range(100, 108)), 72)
    for p in range(4):
        a(f'v_cvt_pk_bf16_f32 {vr(76 + p)}, {vr(100 + 2 * p)}, {vr(101 + 2 * p)}')
    a(f's_lshl_b32 {sA}, {sRB}, 2'); a(f's_add_u32 {sA}, {sA}, {sCHL}')
    a(f's_lshl_b32 {sA}, {sA}, 4')
    a(f's_lshl_b32 {sB}, {sCS}, 1'); a(f's_add_u32 {sA}, {sA}, {sB}'); a(f's_add_u32 {sA}, {sA}, {sQ}')
    a(f's_lshl_b32 {sA}, {sA}, 10'); a(f's_add_u32 {sA}, {sA}, {WS_H1}')
    a('v_lshlrev_b32 v20, 4, v1')
    stamp('gelu1')
    bstore(76, 4, 20, WS, soff=sA, mods='sc1')
    a('s_waitcnt vmcnt(0)')
    a('s_barrier')
    stamp('h1stored')
    a(f's_lshl_b32 {sE}, {sRB}, 3'); a(f's_add_u32 {sE}, {sE}, {sCS}')
    set_flag(WS_F3, sE)


def phase4():
    weight_slab_dma(W2, L_W2)
    a(f's_lshl_b32 {sA}, {sWV}, 6')
    a(f'v_add_u32 v20, {sA}, v1')
    a(f's_lshl_b32 {sB}, {sRB}, 6')
    a(f's_sub_u32 {sB}, {sB}, 8')
    a(f's_mov_b32 {sC}, 0x7ffffff0')
    for k in range(10):
        if k:
            a('v_add_u32 v20, 512, v20')
        a('v_mul_u32_u24 v21, 52429, v20')
        a('v_lshrrev_b32 v21, 22, v21')
        a('v_mul_u32_u24 v34, 80, v21')
        a('v_sub_u32 v34, v20, v34')
        a(f'v_add_u32 v35, {sB}, v34')
        a('v_lshrrev_b32 v36, 4, v35')
        a('v_lshlrev_b32 v36, 4, v36')
        a('v_lshrrev_b32 v37, 2, v21')
        a('v_add_u32 v36, v36, v37')
        a('v_lshlrev_b32 v36, 10, v36')
        a('v_and_b32 v37, 3, v21')
        a('v_lshl_add_u32 v36, v37, 8, v36')
        a('v_and_b32 v37, 15, v35')
        a('v_lshl_add_u32 v36, v37, 4, v36')
        a(f'v_add_u32 v36, {WS_H1}, v36')
        a('v_subrev_u32 v34, 6, v34')
        a('v_cmp_gt_u32 vcc, 68, v34')
        a(f'v_cmp_gt_u32 s[{sP3 + 2}:{sP3 + 3}], 2048, v35') if False else None
        a(f'v_mov_b32 v37, {sC}')
        a('v_cndmask_b32 v36, v37, v36, vcc')
        a('v_cmp_gt_u32 vcc, 2048, v35')
        a(f'v_cndmask_b32 {vr(40 + k)}, v37, v36, vcc')
    poll(WS_F3, 'halo')
    stamp('S3ok')
    a(f's_lshl_b32 {sB}, {sWV}, 10')
    for k in range(10):
        a(f's_add_u32 {sD}, {sB}, {L_A4 + k * 8192}')
        dma(4, 40 + k, WS, sD, mods='sc1')
    a(f's_lshl_b32 {sB}, {sQ}, 15')
    a(f's_add_u32 {sB}, {sB}, {L_W2}')
    tr_addr(20, sCHL, 0)
    a(f'v_add_u32 v20, {sB}, v20')
    a('v_mul_u32_u24 v21, 80, v3')
    a('v_add_u32 v21, v21, v2')
    a(f's_add_u32 {sA}, {sQ}, 1')
    a(f's_sub_u32 {sB}, 8, {sA}')
    a(f's_add_u32 {sC}, {sA}, 8')
    a(f's_mul_i32 {sD}, {sQ}, {8 * 5120}')
    a(f'v_add_u32 v22, {sB}, v21'); a('v_lshlrev_b32 v22, 4, v22'); a(f'v_add_u32 v22, {sD}, v22')
    a(f'v_add_u32 v23, {sC}, v21'); a('v_lshlrev_b32 v23, 4, v23'); a(f'v_add_u32 v23, {sD}, v23')
    a('s_waitcnt vmcnt(0)')
    a('s_barrier')
    stamp('A4landed')
    for ks in range(8):
        a(f'ds_read_b64_tr_b16 {vr(64 + 4 * ks, 2)}, v20 offset:{4096 * ks}')
        a(f'ds_read_b64_tr_b16 {vr(66 + 4 * ks, 2)}, v20 offset:{4096 * ks + 2048}')
    AB = 32

    def lda(ks):
        b = AB + 16 * (ks & 1)
        ad = 22 if ks < 4 else 23
        for tt in range(4):
            a(f'ds_read_b128 {vr(b + 4 * tt, 4)}, {vr(ad)} offset:{L_A4 + 5120 * ks + 256 * tt}')
    lda(0)
    for ks in range(8):
        if ks < 7:
            a('s_waitcnt lgkmcnt(0)') if ks == 0 else a('s_waitcnt lgkmcnt(0)')
            lda(ks + 1)
        else:
            a('s_waitcnt lgkmcnt(0)')
        b = AB + 16 * (ks & 1)
        for tt in range(4):
            c = '0' if ks == 0 else vr(100 + 4 * tt, 4)
            a(f'v_mfma_f32_16x16x32_bf16 {vr(100 + 4 * tt, 4)}, {vr(64 + 4 * ks, 4)}, {vr(b + 4 * tt, 4)}, {c}')
    stamp('gemm2')
    a('s_barrier')
    a(f's_lshl_b32 {sA}, {sWV}, 11')
    a(f'v_lshl_add_u32 v20, v1, 4, {sA}')
    lk1 = a.newlabel('L_k1'); lkd = a.newlabel('L_kd')
    a(f's_cmp_eq_u32 {sQ}, 1')
    a(f's_cbranch_scc1 {lk1}')
    a(f'ds_write_b128 v20, v[108:111] offset:{L_EX}')
    a(f'ds_write_b128 v20, v[112:115] offset:{L_EX + 1024}')
    a(f's_branch {lkd}')
    a.label(lk1)
    a(f'ds_write_b128 v20, v[100:103] offset:{L_EX}')
    a(f'ds_write_b128 v20, v[104:107] offset:{L_EX + 1024}')
    for k in range(8):
        a(f'v_mov_b32 {vr(100 + k)}, {vr(108 + k)}')
    a.label(lkd)
    a('s_waitcnt lgkmcnt(0)')
    a('s_barrier')
    a(f's_xor_b32 {sA}, {sWV}, 4')
    a(f's_lshl_b32 {sA}, {sA}, 11')
    a(f'v_lshl_add_u32 v20, v1, 4, {sA}')
    a(f'ds_read_b128 v[108:111], v20 offset:{L_EX}')
    a(f'ds_read_b128 v[112:115], v20 offset:{L_EX + 1024}')
    a(f's_lshl_b32 {sA}, {sCHL}, 11'); a(f's_lshl_b32 {sB}, {sQ}, 10'); a(f's_add_u32 {sA}, {sA}, {sB}')
    a(f's_add_u32 {sA}, {sA}, {L_HS}')
    a(f'v_lshl_add_u32 v21, v1, 3, {sA}')
    a('ds_read_b64 v[56:57], v21')
    a('ds_read_b64 v[58:59], v21 offset:512')
    a('s_waitcnt lgkmcnt(0)')
    for e in range(2):
        for k in range(4):
            r = 100 + 4 * e + k
            h = 56 + 2 * e + (k >> 1)
            a(f'v_add_f32 {vr(r)}, {vr(r)}, {vr(108 + 4 * e + k)}')
            if k & 1:
                a(f'v_and_b32 v60, 0xffff0000, {vr(h)}')
            else:
                a(f'v_lshlrev_b32 v60, 16, {vr(h)}')
            a(f'v_add_f32 {vr(r)}, {vr(r)}, v60')
        a(f'v_cvt_pk_bf16_f32 {vr(X1R + 2 * e)}, {vr(100 + 4 * e)}, {vr(101 + 4 * e)}')
        a(f'v_cvt_pk_bf16_f32 {vr(X1R + 2 * e + 1)}, {vr(102 + 4 * e)}, {vr(103 + 4 * e)}')
    a(f's_lshl_b32 {sA}, {sRB}, 2'); a(f's_lshl_b32 {sB}, {sQ}, 1'); a(f's_add_u32 {sA}, {sA}, {sB}')
    a(f's_lshl_b32 {sA}, {sA}, 4')
    a(f's_lshl_b32 {sB}, {sCS}, 1'); a(f's_add_u32 {sA}, {sA}, {sB}')
    a(f's_lshr_b32 {sB}, {sCHL}, 1'); a(f's_add_u32 {sA}, {sA}, {sB}')
    a(f's_lshl_b32 {sA}, {sA}, 10')
    a(f's_and_b32 {sB}, {sCHL}, 1'); a(f's_lshl_b32 {sB}, {sB}, 3'); a(f's_add_u32 {sA}, {sA}, {sB}')
    a(f's_add_u32 {sA}, {sA}, {WS_X1}')
    a('v_lshlrev_b32 v20, 4, v1')
    bstore(X1R, 2, 20, WS, soff=sA, mods='sc1')
    a(f's_add_u32 {sA}, {sA}, {16 * 1024}')
    bstore(X1R + 2, 2, 20, WS, soff=sA, mods='sc1')
    a('s_waitcnt vmcnt(0)')
    a('s_barrier')
    stamp('x1stored')
    a(f's_lshl_b32 {sE}, {sRB}, 3'); a(f's_add_u32 {sE}, {sE}, {sCS}')
    set_flag(WS_F4, sE)


sNTA = 's79'
sNV = 's89'
W3R = 128


def phase5():
    a(f's_mul_i32 {sA}, {sCS}, 6')
    a(f's_mul_i32 {sB}, {sCS}, 5'); a(f's_add_u32 {sB}, {sB}, 3')
    a(f's_cmp_lt_u32 {sCS}, 3')
    a(f's_cselect_b32 {sA}, {sA}, {sB}')
    a(f's_cselect_b32 {sB}, 6, 5')
    lhi = a.newlabel('L_p5hi'); ld = a.newlabel('L_p5d')
    a(f's_cmp_ge_u32 {sWV}, 4')
    a(f's_cbranch_scc1 {lhi}')
    a(f's_add_u32 {sA}, {sA}, {sWV}')
    a(f's_lshl_b32 {sNTA}, {sA}, 1')
    a(f's_mov_b32 {sNV}, 2')
    a(f's_branch {ld}')
    a.label(lhi)
    a(f's_sub_u32 {sC}, {sWV}, 4'); a(f's_lshr_b32 {sC}, {sC}, 1'); a(f's_add_u32 {sC}, {sC}, 4')
    a(f's_cmp_lt_u32 {sC}, {sB}')
    a(f's_cselect_b32 {sNV}, 1, 0')
    a(f's_cselect_b32 {sC}, {sC}, 0')
    a(f's_add_u32 {sA}, {sA}, {sC}')
    a(f's_lshl_b32 {sNTA}, {sA}, 1')
    a(f's_and_b32 {sC}, {sWV}, 1')
    a(f's_add_u32 {sNTA}, {sNTA}, {sC}')
    a.label(ld)
    a('v_lshlrev_b32 v20, 4, v1')
    a(f's_lshl_b32 {sA}, {sNTA}, 14')
    a(f's_add_u32 {sA}, {sA}, {WS_W3S}')
    a(f'v_add_u32 v20, {sA}, v20')
    for ks in range(16):
        a(f's_mov_b32 {sB}, {1024 * ks}')
        bload(W3R + 4 * ks, 4, 20, WS, soff=sB, mods='sc1')
    lnb = a.newlabel('L_nob')
    a(f's_cmp_lt_u32 {sNV}, 2')
    a(f's_cbranch_scc1 {lnb}')
    for ks in range(16):
        a(f's_mov_b32 {sB}, {16384 + 1024 * ks}')
        bload(W3R + 64 + 4 * ks, 4, 20, WS, soff=sB, mods='sc1')
    a.label(lnb)
    for k in range(4):
        a(f'v_mov_b32 {vr(16 + k)}, 0x3f803f80')
    a('s_waitcnt vmcnt(0)')
    stamp('W3landed')
    for ks in range(16):
        a(f'v_mfma_f32_16x16x32_bf16 v[100:103], {vr(W3R + 4 * ks, 4)}, v[16:19], ' + ('0' if ks == 0 else 'v[100:103]'))
    lnb = a.newlabel('L_nob')
    a(f's_cmp_lt_u32 {sNV}, 2')
    a(f's_cbranch_scc1 {lnb}')
    for ks in range(16):
        a(f'v_mfma_f32_16x16x32_bf16 v[104:107], {vr(W3R + 64 + 4 * ks, 4)}, v[16:19], ' + ('0' if ks == 0 else 'v[104:107]'))
    a.label(lnb)
    poll(WS_F4, 'own')
    stamp('S4ok')
    a(f's_lshl_b32 {sA}, {sRB}, 2'); a(f's_add_u32 {sA}, {sA}, {sCHL}'); a(f's_lshl_b32 {sA}, {sA}, 4')
    a(f's_add_u32 {sA}, {sA}, {sQ}'); a(f's_lshl_b32 {sA}, {sA}, 10'); a(f's_add_u32 {sA}, {sA}, {WS_X1}')
    a('v_lshlrev_b32 v20, 4, v1')
    a(f's_lshl_b32 {sB}, {sWV}, 10')
    for k in range(8):
        a(f's_add_u32 {sC}, {sA}, {2048 * k}')
        a(f's_add_u32 {sD}, {sB}, {8192 * k}')
        dma(4, 20, WS, sD, soff=sC, mods='sc1')
    a('s_waitcnt vmcnt(0)')
    a('s_barrier')
    stamp('x1landed')
    a(f's_lshl_b32 {sA}, {sQ}, 15'); a(f's_lshl_b32 {sB}, {sCHL}, 10'); a(f's_add_u32 {sA}, {sA}, {sB}')
    a(f'v_add_u32 v21, {sA}, v20')
    for k in range(8):
        a(f'ds_read_b128 {vr(32 + 4 * k, 4)}, v21 offset:{4096 * k}')
    a('s_waitcnt lgkmcnt(0)')
    for k in range(8):
        f = vr(32 + 4 * k, 4)
        a(f'v_mfma_f32_16x16x32_bf16 v[108:111], v[16:19], {f}, ' + ('0' if k == 0 else 'v[108:111]'))
        a(f'v_mfma_f32_16x16x32_bf16 v[112:115], {f}, {f}, ' + ('0' if k == 0 else 'v[112:115]'))
    stats_publish(L_ST, 108, 112, 24, 25, 26)
    AB = 32

    def lda(ks):
        b = AB + 16 * (ks & 1)
        for tt in range(4):
            a(f'ds_read_b128 {vr(b + 4 * tt, 4)}, v20 offset:{4096 * ks + 1024 * tt}')

    def main(two):
        lda(0)
        for ks in range(16):
            a('s_waitcnt lgkmcnt(0)')
            if ks < 15:
                lda(ks + 1)
            b = AB + 16 * (ks & 1)
            for tt in range(4):
                c = '0' if ks == 0 else vr(64 + 4 * tt, 4)
                a(f'v_mfma_f32_16x16x32_bf16 {vr(64 + 4 * tt, 4)}, {vr(W3R + 4 * ks, 4)}, {vr(b + 4 * tt, 4)}, {c}')
                if two:
                    c = '0' if ks == 0 else vr(80 + 4 * tt, 4)
                    a(f'v_mfma_f32_16x16x32_bf16 {vr(80 + 4 * tt, 4)}, {vr(W3R + 64 + 4 * ks, 4)}, {vr(b + 4 * tt, 4)}, {c}')
    l1 = a.newlabel('L_one'); l0 = a.newlabel('L_none'); lj = a.newlabel('L_p5j')
    a(f's_cmp_eq_u32 {sNV}, 0')
    a(f's_cbranch_scc1 {lj}')
    a(f's_cmp_eq_u32 {sNV}, 1')
    a(f's_cbranch_scc1 {l1}')
    main(True)
    a(f's_branch {lj}')
    a.label(l1)
    main(False)
    a.label(lj)
    a('s_waitcnt lgkmcnt(0)')
    a('s_barrier')
    stamp('gemm3')
    a(f'v_lshlrev_b32 v21, 3, v2')
    a(f'v_add_u32 v21, {L_ST}, v21')
    for tt in range(4):
        a(f'ds_read_b64 {vr(32 + 4 * tt, 2)}, v21 offset:{128 * tt}')
        a(f'ds_read_b64 {vr(34 + 4 * tt, 2)}, v21 offset:{512 + 128 * tt}')
    gelu_consts()
    a('s_waitcnt lgkmcnt(0)')
    for tt in range(4):
        b = 32 + 4 * tt
        a(f'v_add_f32 {vr(b)}, {vr(b)}, {vr(b + 2)}'); a(f'v_add_f32 {vr(b + 1)}, {vr(b + 1)}, {vr(b + 3)}')
        stats_finish(b, b + 1, b + 2, b + 3)

    def epi(acc, cs):
        for tt in range(4):
            b = 32 + 4 * tt
            for k in range(4):
                r = acc + 4 * tt + k
                a(f'v_fma_f32 {vr(r)}, -{vr(b + 2)}, {vr(cs + k)}, {vr(r)}')
                a(f'v_mul_f32 {vr(r)}, {vr(b + 3)}, {vr(r)}')
        gelu(list(range(acc, acc + 16)), 48)
    a(f's_lshl_b32 {sA}, {sRB}, 2'); a(f's_mul_i32 {sA}, {sA}, 43')
    a(f's_lshr_b32 {sB}, {sNTA}, 1'); a(f's_add_u32 {sA}, {sA}, {sB}')
    a(f's_lshl_b32 {sA}, {sA}, 10'); a(f's_add_u32 {sA}, {sA}, {WS_H3}')
    a(f's_and_b32 {sB}, {sNTA}, 1'); a(f's_lshl_b32 {sB}, {sB}, 3'); a(f's_add_u32 {sA}, {sA}, {sB}')
    a('v_lshlrev_b32 v20, 4, v1')
    l1 = a.newlabel('L_one'); lj = a.newlabel('L_p5e')
    a(f's_cmp_eq_u32 {sNV}, 0')
    a(f's_cbranch_scc1 {lj}')
    epi(64, 100)
    a(f's_cmp_eq_u32 {sNV}, 1')
    a(f's_cbranch_scc1 {l1}')
    epi(80, 104)
    for tt in range(4):
        d = 108 + 4 * tt
        a(f'v_cvt_pk_bf16_f32 {vr(d)}, {vr(64 + 4 * tt)}, {vr(65 + 4 * tt)}')
        a(f'v_cvt_pk_bf16_f32 {vr(d + 1)}, {vr(66 + 4 * tt)}, {vr(67 + 4 * tt)}')
        a(f'v_cvt_pk_bf16_f32 {vr(d + 2)}, {vr(80 + 4 * tt)}, {vr(81 + 4 * tt)}')
        a(f'v_cvt_pk_bf16_f32 {vr(d + 3)}, {vr(82 + 4 * tt)}, {vr(83 + 4 * tt)}')
        bstore(d, 4, 20, WS, soff=sA, mods='sc1')
        a(f's_add_u32 {sA}, {sA}, {43 * 1024}')
    a(f's_branch {lj}')
    a.label(l1)
    for tt in range(4):
        d = 108 + 2 * tt
        a(f'v_cvt_pk_bf16_f32 {vr(d)}, {vr(64 + 4 * tt)}, {vr(65 + 4 * tt)}')
        a(f'v_cvt_pk_bf16_f32 {vr(d + 1)}, {vr(66 + 4 * tt)}, {vr(67 + 4 * tt)}')
        bstore(d, 2, 20, WS, soff=sA, mods='sc1')
        a(f's_add_u32 {sA}, {sA}, {43 * 1024}')
    a.label(lj)
    a('s_waitcnt vmcnt(0)')
    a('s_barrier')
    stamp('h3stored')
    a(f's_lshl_b32 {sE}, {sRB}, 3'); a(f's_add_u32 {sE}, {sE}, {sCS}')
    set_flag(WS_F5, sE)


W4R = 128
NSLOT = 18


def phase6():
    a(f's_lshl_b32 {sA}, {sCS}, 2'); a(f's_add_u32 {sA}, {sA}, {sCHL}'); a(f's_mul_i32 {sA}, {sA}, 43')
    a(f's_mul_i32 {sB}, {sQ}, 22'); a(f's_add_u32 {sA}, {sA}, {sB}')
    a(f's_lshl_b32 {sA}, {sA}, 10'); a(f's_add_u32 {sA}, {sA}, {WS_W4S}')
    a('v_lshlrev_b32 v20, 4, v1')
    a(f'v_add_u32 v21, {sA}, v20')
    for s in range(22):
        a(f's_mov_b32 {sB}, {1024 * s}')
        if s == 21:
            a(f's_cmp_eq_u32 {sQ}, 1')
            a(f's_cselect_b32 {sB}, 0x7ff00000, {sB}')
        bload(W4R + 4 * s, 4, 21, WS, soff=sB, mods='sc1')
    a(f's_lshl_b32 {sA}, {sCS}, 6'); a(f's_lshl_b32 {sB}, {sCHL}, 4'); a(f's_add_u32 {sA}, {sA}, {sB}')
    a(f's_add_u32 {sA}, {sA}, {5 * 512}'); a(f's_lshl_b32 {sA}, {sA}, 3'); a(f's_add_u32 {sA}, {sA}, {WS_MODG}')
    a(f'v_lshl_add_u32 v22, v3, 5, {sA}')
    bload(24, 4, 22, WS, mods='sc1')
    bload(28, 4, 22, WS, imm=16, mods='sc1')
    poll(WS_F5, 'own')
    stamp('S5ok')
    a(f's_lshl_b32 {sA}, {sRB}, 2'); a(f's_add_u32 {sA}, {sA}, {sCHL}'); a(f's_mul_i32 {sA}, {sA}, 43')
    a(f's_mul_i32 {sB}, {sQ}, 22'); a(f's_add_u32 {sA}, {sA}, {sB}')
    a(f's_lshl_b32 {sA}, {sA}, 10'); a(f's_add_u32 {sE}, {sA}, {WS_H3}')
    a(f's_lshl_b32 {sF}, {sWV}, 10')

    def ring(s):
        a(f's_add_u32 {sC}, {sE}, {1024 * s}')
        if s == 21:
            a(f's_cmp_eq_u32 {sQ}, 1')
            a(f's_cselect_b32 {sC}, 0x7ff00000, {sC}')
        a(f's_add_u32 {sD}, {sF}, {8192 * (s % NSLOT)}')
        dma(4, 20, WS, sD, soff=sC, mods='sc1')
    for s in range(NSLOT):
        ring(s)
    a(f's_lshl_b32 {sA}, {sQ}, 12')
    a(f'v_add_u32 v23, {sA}, v20')
    AB = 32

    def lda(s):
        b = AB + 16 * (s & 1)
        off = 8192 * (s % NSLOT)
        ad = 'v23' if off + 3072 < 65536 else 'v22' if off + 3072 < 131072 else 'v21'
        base = 0 if ad == 'v23' else 65536 if ad == 'v22' else 131072
        for tt in range(4):
            a(f'ds_read_b128 {vr(b + 4 * tt, 4)}, {ad} offset:{off - base + 1024 * tt}')
    a('v_add_u32 v22, 65536, v23')
    a('v_add_u32 v21, 131072, v23')
    issued = NSLOT
    G = 2
    for s0 in range(0, 22, G):
        last = s0 + G - 1
        a(f's_waitcnt vmcnt({issued - 1 - last})')
        a('s_barrier')
        if s0 == 4:
            for s in range(NSLOT, 22):
                ring(s)
            issued = 22
        lda(s0)
        for s in range(s0, s0 + G):
            a('s_waitcnt lgkmcnt(0)')
            if s + 1 < s0 + G:
                lda(s + 1)
            b = AB + 16 * (s & 1)
            for tt in range(4):
                c = '0' if s == 0 else vr(100 + 4 * tt, 4)
                a(f'v_mfma_f32_16x16x32_bf16 {vr(100 + 4 * tt, 4)}, {vr(W4R + 4 * s, 4)}, {vr(b + 4 * tt, 4)}, {c}')
    stamp('gemm4')
    a('s_barrier')
    LEX = 147456
    a(f's_lshl_b32 {sA}, {sWV}, 11')
    a(f's_add_u32 {sA}, {sA}, {LEX}')
    a(f'v_lshl_add_u32 v20, v1, 4, {sA}')
    lk1 = a.newlabel('L_k1'); lkd = a.newlabel('L_kd')
    a(f's_cmp_eq_u32 {sQ}, 1')
    a(f's_cbranch_scc1 {lk1}')
    a(f'ds_write_b128 v20, v[108:111]')
    a(f'ds_write_b128 v20, v[112:115] offset:1024')
    a(f's_branch {lkd}')
    a.label(lk1)
    a(f'ds_write_b128 v20, v[100:103]')
    a(f'ds_write_b128 v20, v[104:107] offset:1024')
    for k in range(8):
        a(f'v_mov_b32 {vr(100 + k)}, {vr(108 + k)}')
    a.label(lkd)
    a('s_waitcnt lgkmcnt(0)')
    a('s_barrier')
    a(f's_xor_b32 {sA}, {sWV}, 4')
    a(f's_lshl_b32 {sA}, {sA}, 11')
    a(f's_add_u32 {sA}, {sA}, {LEX}')
    a(f'v_lshl_add_u32 v20, v1, 4, {sA}')
    a('ds_read_b128 v[108:111], v20')
    a('ds_read_b128 v[112:115], v20 offset:1024')
    a(f's_lshl_b32 {sA}, {sRB}, 6'); a(f's_lshl_b32 {sB}, {sQ}, 5'); a(f's_add_u32 {sA}, {sA}, {sB}')
    a(f'v_add_u32 v21, {sA}, v2')
    a('v_lshlrev_b32 v21, 10, v21')
    a(f's_lshl_b32 {sA}, {sCS}, 7'); a(f's_lshl_b32 {sB}, {sCHL}, 5'); a(f's_add_u32 {sA}, {sA}, {sB}')
    a(f'v_lshl_add_u32 v22, v3, 3, {sA}')
    a('v_add_u32 v21, v21, v22')
    a('s_waitcnt lgkmcnt(0)')
    for e in range(2):
        for k in range(4):
            r = 100 + 4 * e + k
            a(f'v_add_f32 {vr(r)}, {vr(r)}, {vr(108 + 4 * e + k)}')
            for (src, dst) in ((X1R + 2 * e + (k >> 1), 60), (XS + 2 * e + (k >> 1), 61)):
                if k & 1:
                    a(f'v_and_b32 {vr(dst)}, 0xffff0000, {vr(src)}')
                else:
                    a(f'v_lshlrev_b32 {vr(dst)}, 16, {vr(src)}')
            a(f'v_add_f32 {vr(r)}, {vr(r)}, v60')
            a(f'v_fma_f32 {vr(r)}, {vr(24 + 2 * k)}, {vr(r)}, v61')
        a(f'v_cvt_pk_bf16_f32 {vr(64 + 2 * e)}, {vr(100 + 4 * e)}, {vr(101 + 4 * e)}')
        a(f'v_cvt_pk_bf16_f32 {vr(65 + 2 * e)}, {vr(102 + 4 * e)}, {vr(103 + 4 * e)}')
    bstore(64, 2, 21, OUT)
    a(f's_mov_b32 {sA}, 16384')
    bstore(66, 2, 21, OUT, soff=sA)


def finish():
    lf = a.newlabel('L_fin')
    a(f's_cmp_lg_u32 s2, 0')
    a(f's_cbranch_scc1 {lf}')
    a(f's_cmp_lg_u32 {sWV}, 0')
    a(f's_cbranch_scc1 {lf}')
    a(f'v_mov_b32 v21, {WS_EPOCH}')
    a(f'v_mov_b32 v22, {sT}')
    a('v_cmp_eq_u32 vcc, 0, v1')
    a(f's_and_saveexec_b64 s[{sP0}:{sP0 + 1}], vcc')
    bstore(22, 1, 21, WS, mods='sc1')
    a(f's_mov_b64 exec, s[{sP0}:{sP0 + 1}]')
    a.label(lf)
    a('s_waitcnt vmcnt(0)')
    if PADTO:
        lp = a.newlabel('L_pad'); lq = a.newlabel('L_padq')
        a('s_cmp_lg_u32 s2, 0')
        a(f's_cbranch_scc1 {lq}')
        a.label(lp)
        a('s_memrealtime s[98:99]')
        a('s_waitcnt lgkmcnt(0)')
        a('s_sub_u32 s98, s98, s3')
        a(f's_cmp_lt_u32 s98, {PADTO * 100}')
        a(f's_cbranch_scc1 {lp}')
        a.label(lq)
    stamp('end')
    if STAMPS:
        for i in range(len(stamp_names)):
            a(f'v_writelane_b32 v255, s{STAMP_REGS[i]}, {i}')
        a(f's_lshl_b32 {sA}, s2, 3')
        a(f's_add_u32 {sA}, {sA}, {sWV}')
        a(f's_lshl_b32 {sA}, {sA}, 8')
        a(f's_add_u32 {sA}, {sA}, {WS_DBG}')
        a(f'v_lshl_add_u32 v20, v1, 2, {sA}')
        bstore(255, 1, 20, WS)
        a('s_waitcnt vmcnt(0)')
        open('stamps.txt', 'w').write('\n'.join(stamp_names) + '\n')
    a.label('L_END')
    a('s_endpgm')


def build(debug=True):
    global DEBUG
    DEBUG = debug
    prologue()
    phase_a()
    phase_b()
    if STOP_AFTER != 'B':
        phase3()
        if STOP_AFTER != '3':
            phase4()
            if STOP_AFTER != '4':
                phase5()
                if STOP_AFTER != '5':
                    phase6()
    finish()
    nops = a.fast_hazard_pass()
    errs = a.check_waits()
    for e in errs:
        print('WAIT-CHECK:', e, file=sys.stderr)
    hdr = open('adaLN_cond__ssm_conv_s4__mixer_s_mlp__prompt.s.ref').read().split('\n')
    head = [l for l in hdr if l.startswith(';') and '@launch' not in l and 'Override' not in l and 'grid=ceil' not in l]
    txt = '\n'.join(head) + '\n; @launch grid=(256,1,1) block=(512,1,1) lds=163840\n'
    txt += '.amdgcn_target "amdgcn-amd-amdhsa--gfx950"\n.text\n'
    txt += f'.globl {KNAME}\n.p2align 8\n.type {KNAME},@function\n{KNAME}:\n'
    txt += a.text()
    txt += f'''.section .rodata,"a"
.p2align 6
.amdhsa_kernel {KNAME}
  .amdhsa_next_free_vgpr 256
  .amdhsa_next_free_sgpr 102
  .amdhsa_accum_offset 256
  .amdhsa_group_segment_fixed_size 0
  .amdhsa_kernarg_size 152
  .amdhsa_user_sgpr_count 2
  .amdhsa_user_sgpr_kernarg_segment_ptr 1
  .amdhsa_system_sgpr_workgroup_id_x 1
  .amdhsa_float_denorm_mode_32 3
.end_amdhsa_kernel
'''
    print(f'instructions: {len(a.lines)}  hazard nops: {nops}', file=sys.stderr)
    return txt


if __name__ == '__main__':
    out = sys.argv[1] if len(sys.argv) > 1 else 'k.s'
    open(out, 'w').write(build(debug=os.environ.get('NODEBUG') is None))
```

```python
import re

TRANS = ('v_exp_f32', 'v_log_f32', 'v_rcp_f32', 'v_rsq_f32', 'v_sqrt_f32', 'v_sin_f32', 'v_cos_f32',
         'v_rcp_iflag_f32')
REG_RE = re.compile(r'^(-|\|)?(?:abs\()?([vsa])(\d+|\[(\d+):(\d+)\])\)?\|?$')


def parse_reg(tok):
    tok = tok.strip()
    if tok in ('vcc', 'exec', 'm0', 'scc'):
        return (tok, 0, 1 if tok in ('vcc', 'exec') else 0)
    if tok in ('vcc_lo', 'vcc_hi'):
        return ('vcc', 0 if tok == 'vcc_lo' else 1, 0 if tok == 'vcc_lo' else 1)
    if tok in ('exec_lo', 'exec_hi'):
        return ('exec', 0 if tok == 'exec_lo' else 1, 0 if tok == 'exec_lo' else 1)
    m = REG_RE.match(tok)
    if not m:
        return None
    k = m.group(2)
    if m.group(4) is not None:
        return (k, int(m.group(4)), int(m.group(5)))
    return (k, int(m.group(3)), int(m.group(3)))


def regset(r):
    if r is None:
        return set()
    return {(r[0], i) for i in range(r[1], r[2] + 1)}


class Ins:
    __slots__ = ('text', 'op', 'kind', 'w', 'r', 'label', 'target', 'ops', 'mods', 'srcc', 'dst', 'ab', 'passes',
                 'dpp', 'lds_dma', 'note')

    def __init__(self, text):
        self.text = text
        self.label = None
        self.target = None
        self.note = None
        t = text.split(';')[0].strip()
        self.w = set(); self.r = set(); self.srcc = set(); self.dst = set(); self.ab = set()
        self.passes = 0; self.dpp = False; self.lds_dma = False
        self.ops = []; self.mods = ''
        if t.endswith(':'):
            self.kind = 'label'; self.label = t[:-1]; self.op = ''
            return
        if t.startswith('.') or t == '':
            self.kind = 'dir'; self.op = ''
            return
        sp = t.split(None, 1)
        self.op = op = sp[0]
        rest = sp[1] if len(sp) > 1 else ''
        parts = []
        depth = 0; cur = ''
        for ch in rest:
            if ch in '[(':
                depth += 1
            if ch in '])':
                depth -= 1
            if ch == ',' and depth == 0:
                parts.append(cur.strip()); cur = ''
            else:
                cur += ch
        if cur.strip():
            parts.append(cur.strip())
        if parts:
            last = parts[-1].split(None, 1)
            parts[-1] = last[0]
            self.mods = last[1] if len(last) > 1 else ''
        self.ops = parts
        regs = [parse_reg(p) for p in parts]
        base = op
        for suf in ('_e32', '_e64', '_dpp', '_sdwa'):
            if base.endswith(suf):
                base = base[:-len(suf)]
        self.dpp = op.endswith('_dpp') or 'row_' in self.mods or 'quad_perm' in self.mods or 'wave_' in self.mods
        if op.startswith('v_mfma'):
            self.kind = 'mfma'
            self.passes = 8 if '32x32' in op else 4
            self.dst = regset(regs[0]); self.w = set(self.dst)
            self.ab = regset(regs[1]) | regset(regs[2])
            self.srcc = regset(regs[3])
            self.r = self.ab | self.srcc
        elif op.startswith('v_'):
            self.kind = 'trans' if base in TRANS else 'valu'
            if base.startswith('v_cmp'):
                self.w = regset(regs[0])
                for x in regs[1:]:
                    self.r |= regset(x)
            elif base in ('v_permlane16_swap_b32', 'v_permlane32_swap_b32', 'v_swap_b32'):
                self.w = regset(regs[0]) | regset(regs[1]); self.r = set(self.w)
            elif base in ('v_add_co_u32', 'v_sub_co_u32', 'v_addc_co_u32', 'v_subb_co_u32'):
                self.w = regset(regs[0]) | regset(regs[1])
                for x in regs[2:]:
                    self.r |= regset(x)
            else:
                self.w = regset(regs[0])
                for x in regs[1:]:
                    self.r |= regset(x)
                if base.startswith(('v_fmac', 'v_dot2c', 'v_pk_fmac', 'v_mac', 'v_writelane')):
                    self.r |= regset(regs[0])
                if base == 'v_cndmask_b32' and len(parts) == 3:
                    self.r |= regset(('vcc', 0, 1))
                if self.dpp:
                    self.r |= regset(regs[0])
        elif op.startswith('ds_'):
            self.kind = 'ds'
            if op.startswith(('ds_read', 'ds_bpermute', 'ds_permute', 'ds_swizzle')):
                self.w = regset(regs[0])
                for x in regs[1:]:
                    self.r |= regset(x)
            else:
                for x in regs:
                    self.r |= regset(x)
        elif op.startswith(('buffer_', 'global_')):
            self.kind = 'vmem'
            allm = ' ' + self.mods + ' '
            if op.startswith('buffer_load'):
                if ' lds ' in allm:
                    self.lds_dma = True
                    for x in regs:
                        self.r |= regset(x)
                    self.r |= {('m0', 0)}
                else:
                    self.w = regset(regs[0])
                    for x in regs[1:]:
                        self.r |= regset(x)
                    if 'd16' in op:
                        self.r |= regset(regs[0])
            elif op.startswith('global_load_lds'):
                self.lds_dma = True
                for x in regs:
                    self.r |= regset(x)
                self.r |= {('m0', 0)}
            elif op.startswith('global_load'):
                self.w = regset(regs[0])
                for x in regs[1:]:
                    self.r |= regset(x)
            elif 'atomic' in op:
                for x in regs:
                    self.r |= regset(x)
                if ' sc0 ' in allm:
                    self.w = regset(regs[0])
            else:
                for x in regs:
                    self.r |= regset(x)
        elif op.startswith(('s_load', 's_buffer_load', 's_memtime', 's_memrealtime')):
            self.kind = 'smem'
            self.w = regset(regs[0])
            for x in regs[1:]:
                self.r |= regset(x)
        elif op.startswith(('s_cbranch', 's_branch')):
            self.kind = 'branch'
            self.target = parts[0]
            if 'vcc' in op:
                self.r = regset(('vcc', 0, 1))
            if 'exec' in op:
                self.r = regset(('exec', 0, 1))
        elif op in ('s_waitcnt', 's_barrier', 's_nop', 's_endpgm', 's_sleep', 's_setprio', 's_sethalt'):
            self.kind = 'ctl'
        elif op.startswith('s_'):
            self.kind = 'salu'
            if op.startswith('s_cmp') or op.startswith('s_bitcmp'):
                for x in regs:
                    self.r |= regset(x)
            else:
                self.w = regset(regs[0])
                for x in regs[1:]:
                    self.r |= regset(x)
                if 'saveexec' in op:
                    self.w |= regset(('exec', 0, 1)); self.r |= regset(('exec', 0, 1))
                if op.startswith(('s_addk', 's_mulk')):
                    self.r |= regset(regs[0])
        else:
            raise ValueError('unknown instruction: ' + text)
        if self.kind in ('valu', 'trans', 'mfma', 'vmem', 'ds'):
            pass

    def states(self):
        if self.kind in ('label', 'dir'):
            return 0
        if self.op == 's_nop':
            return int(self.ops[0], 0) + 1
        return 1


def vg(s):
    return {x for x in s if x[0] in ('v', 'a')}


def sg(s):
    return {x for x in s if x[0] in ('s', 'vcc', 'exec')}


def need(p, c):
    n = 0
    isvalu = lambda i: i.kind in ('valu', 'trans')
    if isvalu(p):
        pw = vg(p.w)
        if c.kind == 'mfma' and pw & c.r:
            n = max(n, 2)
        if isvalu(c):
            if p.kind == 'trans' and c.kind != 'trans' and pw & c.r:
                n = max(n, 1)
            if c.dpp and pw & c.r:
                n = max(n, 2)
            if c.op.startswith('v_permlane') and pw & c.r:
                n = max(n, 2)
            if c.op.startswith(('v_readlane', 'v_readfirstlane')) and pw & c.r:
                n = max(n, 1)
        ps = sg(p.w)
        if ps:
            if isvalu(c) and ps & c.r:
                n = max(n, 2)
            if c.kind == 'vmem' and ps & c.r:
                n = max(n, 5)
            if c.kind == 'mfma' and ('exec', 0) in ps:
                n = max(n, 4)
    if p.kind == 'mfma':
        big = 12 if p.passes == 8 else 8
        if c.kind == 'mfma':
            if p.dst & c.ab:
                n = max(n, big)
            if p.dst & c.srcc:
                if not (p.dst == c.srcc and p.passes == c.passes):
                    n = max(n, 10 if p.passes == 8 else 6)
            if p.dst & c.dst and not (p.dst & c.srcc):
                n = max(n, 10 if p.passes == 8 else 6) if p.passes != c.passes else n
        elif isvalu(c):
            if p.dst & (vg(c.r) | vg(c.w)):
                n = max(n, big)
            if p.srcc & vg(c.w):
                n = max(n, 7 if p.passes == 8 else 3)
        elif c.kind in ('vmem', 'ds'):
            if p.dst & (vg(c.r) | vg(c.w)):
                n = max(n, big)
    if p.kind == 'salu' and ('m0', 0) in p.w and c.lds_dma:
        n = max(n, 1)
    if p.kind == 'vmem' and ('store' in p.op) and ('x4' in p.op or 'x3' in p.op):
        data = vg(p.r)
        if isvalu(c) and data & vg(c.w):
            n = max(n, 2)
        elif c.kind in ('vmem', 'ds', 'mfma') and data & vg(c.w):
            n = max(n, 1)
    return n


MAXW = 14


class Asm:
    def __init__(self):
        self.lines = []
        self.uid = 0

    def __call__(self, s):
        for ln in s.split('\n'):
            ln = ln.strip()
            if ln and not ln.startswith(';'):
                self.lines.append(ln)

    def label(self, name):
        self.lines.append(name + ':')

    def newlabel(self, p='L'):
        self.uid += 1
        return f'{p}_{self.uid}'

    def _cfg(self, ins):
        labels = {i.label: k for k, i in enumerate(ins) if i.kind == 'label'}
        preds = [[] for _ in ins]
        for k, i in enumerate(ins):
            fall = not (i.op in ('s_branch', 's_endpgm'))
            if fall and k + 1 < len(ins):
                preds[k + 1].append(k)
            if i.kind == 'branch' and i.target in labels:
                preds[labels[i.target]].append(k)
        return labels, preds

    def hazard_pass(self):
        ins = [Ins(l) for l in self.lines]
        total = 0
        while True:
            labels, preds = self._cfg(ins)
            fix = None
            changed = False
            out = []
            for k, c in enumerate(ins):
                add = 0
                if c.kind in ('valu', 'trans', 'mfma', 'vmem', 'ds'):
                    stack = [(p, 0) for p in preds[k]]
                    seen = {}
                    while stack:
                        j, d = stack.pop()
                        if d >= MAXW:
                            continue
                        if j in seen and seen[j] <= d:
                            continue
                        seen[j] = d
                        p = ins[j]
                        if p.kind not in ('label', 'dir'):
                            nd = need(p, c)
                            if nd > d:
                                add = max(add, nd - d)
                        d2 = d + p.states()
                        for q in preds[j]:
                            stack.append((q, d2))
                if add:
                    out.append(Ins(f's_nop {add - 1}'))
                    total += add
                    changed = True
                    out.append(c)
                    out.extend(ins[k + 1:])
                    break
                out.append(c)
            ins = out
            if not changed:
                break
        self.lines = [i.text for i in ins]
        return total

    def fast_hazard_pass(self):
        ins = [Ins(l) for l in self.lines]
        labels, preds = self._cfg(ins)
        extra = [0] * len(ins)
        total = 0
        for k, c in enumerate(ins):
            if c.kind not in ('valu', 'trans', 'mfma', 'vmem', 'ds'):
                continue
            add = 0
            stack = [(p, 0) for p in preds[k]]
            seen = {}
            while stack:
                j, d = stack.pop()
                if d >= MAXW:
                    continue
                if j in seen and seen[j] <= d:
                    continue
                seen[j] = d
                p = ins[j]
                if p.kind not in ('label', 'dir'):
                    nd = need(p, c)
                    if nd > d:
                        add = max(add, nd - d)
                d2 = d + p.states() + (extra[j] if j < k else 0)
                for q in preds[j]:
                    stack.append((q, d2))
            extra[k] = add
            total += add
        out = []
        for k, c in enumerate(ins):
            a = extra[k]
            while a > 0:
                n = min(a, 16)
                out.append(f's_nop {n - 1}')
                a -= n
            out.append(c.text)
        self.lines = out
        return total

    def check_waits(self, known_sets=({},)):
        errs = set()
        for known in known_sets:
            errs |= set(self._check_waits(known))
        return sorted(errs)

    def _check_waits(self, known):
        ins = [Ins(l) for l in self.lines]
        labels = {i.label: k for k, i in enumerate(ins) if i.kind == 'label'}
        errs = set()
        seen = set()
        stack = [(0, (), (), None)]
        visits = {}
        cmpf = {'eq': lambda x, y: x == y, 'lg': lambda x, y: x != y, 'lt': lambda x, y: x < y,
                'le': lambda x, y: x <= y, 'gt': lambda x, y: x > y, 'ge': lambda x, y: x >= y}
        while stack:
            k, vm, lg, scc = stack.pop()
            while k < len(ins):
                i = ins[k]
                if i.kind == 'label':
                    key = (k, vm, lg, scc)
                    if key in seen:
                        break
                    seen.add(key)
                    visits[k] = visits.get(k, 0) + 1
                    if visits[k] > 40:
                        break
                if i.kind == 'salu':
                    m = re.match(r's_cmp_(eq|lg|lt|le|gt|ge)_u32$', i.op)
                    if m:
                        x, y = i.ops[0], i.ops[1]
                        if x in known and re.match(r'^\d+$', y):
                            scc = cmpf[m.group(1)](known[x], int(y))
                        else:
                            scc = None
                    elif not i.op.startswith(('s_mov', 's_cselect', 's_mul_i32')):
                        scc = None
                if i.op == 's_waitcnt':
                    txt = ' '.join(i.ops) + ' ' + i.mods
                    m = re.search(r'vmcnt\((\d+)\)', txt)
                    if m:
                        n = int(m.group(1))
                        vm = vm[len(vm) - n:] if n < len(vm) else vm
                        if n == 0:
                            vm = ()
                    m = re.search(r'lgkmcnt\((\d+)\)', txt)
                    if m:
                        n = int(m.group(1))
                        if n == 0:
                            lg = ()
                        elif not any(x[0] == 'smem' for x in lg):
                            lg = lg[len(lg) - n:] if n < len(lg) else lg
                elif i.kind not in ('label', 'dir'):
                    touch = i.r | i.w
                    for q in (vm, lg):
                        for kind, regs, src in q:
                            if regs & touch:
                                errs.add((k, i.text, src))
                    if i.kind == 'vmem':
                        vm = vm + (('vm', frozenset(i.w), i.text),)
                        if len(vm) > 63:
                            errs.add((k, i.text, 'vmcnt overflow (>63 outstanding)'))
                            vm = vm[-63:]
                    elif i.kind == 'ds':
                        lg = lg + (('ds', frozenset(i.w), i.text),)
                        if len(lg) > 64:
                            lg = lg[-64:]
                    elif i.kind == 'smem':
                        lg = lg + (('smem', frozenset(i.w), i.text),)
                if i.op == 's_endpgm':
                    break
                if i.kind == 'branch':
                    if i.target in labels:
                        if i.op == 's_branch':
                            k = labels[i.target]
                            continue
                        if i.op in ('s_cbranch_scc1', 's_cbranch_scc0') and scc is not None:
                            if scc == (i.op == 's_cbranch_scc1'):
                                k = labels[i.target]
                                continue
                        else:
                            stack.append((labels[i.target], vm, lg, scc))
                k += 1
        return sorted(errs)

    def text(self):
        out = []
        for l in self.lines:
            if l.endswith(':'):
                out.append(l)
            else:
                out.append('    ' + l)
        return '\n'.join(out) + '\n'
```

```python
L_, D_, F_ = 2048, 512, 1376
WS_EPOCH = 0
FSTR = 64
WS_F2 = 0x44000
WS_F3 = 0x48000
WS_F4 = 0x4C000
WS_F5 = 0x50000
WS_F1 = 0x58000
WS_F3H = 0x54000
WS_XID = 0x1C00
WS_STATS = 0x2000
WS_MODG = 0xA000
WS_MODF = 0x3A000
WS_X2B = 0x60000
WS_H1 = WS_X2B + 0x200000
WS_X1 = WS_H1 + 0x300000
WS_H3 = WS_X1 + 0x200000
WS_W1S = WS_H3 + 64 * 172 * 512
WS_W2S = WS_W1S + 32 * 16 * 1024
WS_W3S = WS_W2S + 32 * 16 * 1024
WS_W4S = WS_W3S + 86 * 16 * 1024
WS_XT = WS_W4S + 32 * 43 * 1024
WS_DBG = WS_XT + 256 * 16384
WS_DBG_SIZE = 0x1000000
WS_USED = WS_DBG
```

```python
import sys, os, struct
sys.path.insert(0, os.path.dirname(os.path.abspath(__file__)))
from asmlib import Asm
from layout import *

KNAME = 'adaLN_cond__ssm_conv_s4__mixer_s_mlp__prompt_kernel'
STOP_AFTER = os.environ.get('STOP_AFTER', '')
STAMPS = os.environ.get('STAMPS') is not None
PADTO = int(os.environ.get('PADTO', '0'))
SPIN_MAX = 20000
PRETOUCH = os.environ.get('PRETOUCH') is not None
NOSCOUT = os.environ.get('NOSCOUT') is not None
FASTX = os.environ.get('FASTX') is not None
CM = '' if FASTX else 'sc1'

sT = 's4'; sWV = 's5'; sX = 's6'; sJ = 's7'
U, WS, OUT = 8, 12, 16
ARE, AIM, BRE, BIM, CRE, CIM = 20, 24, 28, 32, 36, 40
LDT, DSK, CC, WMOD, W1, W2, W3, W4 = 44, 48, 52, 56, 60, 64, 68, 72
sCH0 = 's76'; sRB = 's77'; sCS = 's78'; sNT3 = 's79'
sA, sB, sC, sD = 's80', 's81', 's82', 's83'
sSPIN = 's84'; sLO = 's85'; sHI = 's86'
sE, sF = 's87', 's88'; sNV = 's89'
mK1, mK2, mK3, mDG = 90, 92, 94, 96
sX0 = 98
sT32 = 's100'; sCQ = 's101'
TSRD = 92
sSD, sSN, sSS, sSB = 's90', 's91', 's96', 's97'
sSR, sSO = 's74', 's75'

vL16, vVB = 4, 5
XS, X1R = 6, 10


def srd(n):
    return f's[{n}:{n + 3}]'


def vr(a, n=1):
    return f'v{a}' if n == 1 else f'v[{a}:{a + n - 1}]'


def fconst(x):
    return hex(struct.unpack('<I', struct.pack('<f', x))[0])


L_G = 0; G_ROW = 544; G_CH = 48 * G_ROW
L_E = 2 * G_CH; E_CH = 16 * G_ROW
L_KT = L_E + 2 * E_CH; KT_CH = 5120; KT_ZERO = 2559
L_COPY = L_KT + 2 * KT_CH; CP_R = 4160; CP_CH = 4 * CP_R
L_STG = L_COPY + 2 * CP_CH
L_PART = 0
L_XC = 143360
L_H = L_XC + 8192; H_CH = 4672
assert L_STG + 4 * 4096 <= L_XC and L_H + 2 * H_CH <= 163840
L_X = 0
L_HF = 32768
L_A4 = 65536
L_XS = 114688
L_CB = 122880
L_ST = L_CB + 4096
L_ST3 = L_ST + 1024
L_X1 = 0
L_ST5 = 147456
NSLOT = 18
L_EX = 147456

a = Asm()
stamp_names = []
STAMP_REGS = [3] + list(range(20, 48)) + list(range(52, 60))


def stamp(name):
    if not STAMPS:
        return
    if name in stamp_names:
        i = stamp_names.index(name)
    else:
        i = len(stamp_names)
        stamp_names.append(name)
    a(f's_memrealtime s[{sX0}:{sX0 + 1}]')
    a('s_waitcnt lgkmcnt(0)')
    a(f's_mov_b32 s{STAMP_REGS[i]}, s{sX0}')


def bload(dst, n, voff, s, imm=0, soff='0', mods=''):
    op = {1: 'buffer_load_dword', 2: 'buffer_load_dwordx2', 4: 'buffer_load_dwordx4', 'u16': 'buffer_load_ushort'}[n]
    cnt = 1 if n == 'u16' else n
    a(f'{op} {vr(dst, cnt)}, {vr(voff)}, {srd(s)}, {soff} offen' + (f' offset:{imm}' if imm else '') + (' ' + mods if mods else ''))


def bstore(src, n, voff, s, imm=0, soff='0', mods=''):
    op = {1: 'buffer_store_dword', 2: 'buffer_store_dwordx2', 4: 'buffer_store_dwordx4'}[n]
    a(f'{op} {vr(src, n)}, {vr(voff)}, {srd(s)}, {soff} offen' + (f' offset:{imm}' if imm else '') + (' ' + mods if mods else ''))


def dma(n, voff, s, m0, soff='0', mods=''):
    a(f's_mov_b32 m0, {m0}')
    op = {1: 'buffer_load_dword', 4: 'buffer_load_dwordx4'}[n]
    a(f'{op} {vr(voff)}, {srd(s)}, {soff} offen' + (' ' + mods if mods else '') + ' lds')


def mfma(d, x, y, c=None):
    cc = '0' if c is None else vr(c, 4)
    a(f'v_mfma_f32_16x16x32_bf16 {vr(d, 4)}, {vr(x, 4)}, {vr(y, 4)}, {cc}')


def cmul(d, x, y):
    a(f'v_pk_mul_f32 {vr(d, 2)}, {vr(x, 2)}, {vr(y, 2)} op_sel:[0,0] op_sel_hi:[0,1]')
    a(f'v_pk_fma_f32 {vr(d, 2)}, {vr(x, 2)}, {vr(y, 2)}, {vr(d, 2)} op_sel:[1,1,0] op_sel_hi:[1,0,1] neg_lo:[1,0,0]')


def save_exec_mask(mask):
    a(f's_mov_b64 s[{sX0}:{sX0 + 1}], exec')
    if isinstance(mask, int) and mask > 64:
        a(f's_mov_b32 exec_lo, {hex(mask & 0xffffffff)}')
        a(f's_mov_b32 exec_hi, {hex(mask >> 32)}')
    else:
        a(f's_mov_b64 exec, {mask}')


def restore_exec():
    a(f's_mov_b64 exec, s[{sX0}:{sX0 + 1}]')


def prologue():
    if PADTO:
        a('s_memrealtime s[78:79]')
        a('s_waitcnt lgkmcnt(0)')
        a('s_mov_b32 s3, s78')
    a('s_cmp_ge_u32 s2, 256')
    a('s_cbranch_scc1 L_END')
    ptrs = [(U, 0), (WS, 144), (ARE, 8), (AIM, 16), (BRE, 24), (BIM, 32), (CRE, 40), (CIM, 48), (LDT, 56), (CC, 112),
            (WMOD, 120), (W1, 80), (W2, 88), (W3, 96), (W4, 104), (DSK, 64), (OUT, 128)]
    for r, off in ptrs:
        a(f's_load_dwordx2 s[{r}:{r + 1}], s[0:1], {off}')
    sizes = {U: 2 * 1024 * 1024, ARE: 131072, AIM: 131072, BRE: 131072, BIM: 131072, CRE: 131072, CIM: 131072,
             LDT: 1024, DSK: 1024, W1: 524288, W2: 524288, W3: 512 * F_ * 2, W4: 512 * F_ * 2, CC: 1024,
             WMOD: 512 * 3072 * 2, OUT: 2 * 1024 * 1024, WS: WS_USED + (WS_DBG_SIZE if DEBUG else 0)}
    a('v_lshrrev_b32 v2, 6, v0')
    a('v_and_b32 v1, 63, v0')
    a(f'v_readfirstlane_b32 {sWV}, v2')
    for r, sz in sizes.items():
        a(f's_mov_b32 s{r + 2}, {sz}')
        a(f's_mov_b32 s{r + 3}, 0x20000')
    a('v_and_b32 v2, 15, v1')
    a('v_lshrrev_b32 v3, 4, v1')
    a(f'v_lshlrev_b32 {vr(vL16)}, 4, v1')
    a(f's_and_b32 {sX}, s2, 7')
    a(f's_lshr_b32 {sJ}, s2, 3')
    a(f's_lshl_b32 {sCH0}, {sX}, 6')
    a(f's_lshl_b32 {sA}, {sJ}, 1')
    a(f's_add_u32 {sCH0}, {sCH0}, {sA}')
    a(f's_lshl_b32 {sRB}, {sX}, 2')
    a(f's_lshr_b32 {sA}, {sJ}, 3')
    a(f's_add_u32 {sRB}, {sRB}, {sA}')
    a(f's_and_b32 {sCS}, {sJ}, 7')
    a(f's_lshl_b32 {sT32}, {sRB}, 1')
    a(f's_and_b32 {sA}, {sCS}, 1')
    a(f's_add_u32 {sT32}, {sT32}, {sA}')
    a(f's_lshr_b32 {sCQ}, {sCS}, 1')
    a('v_mov_b32 v102, 0')
    a('s_waitcnt lgkmcnt(0)')
    a(f's_mov_b64 s[{TSRD}:{TSRD + 1}], s[{W1}:{W1 + 1}]')
    a(f's_mov_b32 s{TSRD + 2}, 524288')
    a(f's_mov_b32 s{TSRD + 3}, 0x20000')


EXA = 112
KMA, KMB, KMD = 108, 109, 104


def precompute():
    a(f's_load_dword {sT}, s[{WS}:{WS + 1}], {WS_EPOCH}')
    a(f'v_lshlrev_b32 {vr(vVB)}, 4, v2')
    a(f'v_lshl_add_u32 {vr(vVB)}, v3, 9, {vr(vVB)}')
    a('v_and_b32 v16, 255, v0')
    a('v_lshlrev_b32 v16, 3, v16')
    a(f's_lshr_b32 {sA}, {sWV}, 2')
    a(f's_mul_i32 {sA}, {sA}, {KT_CH}')
    a(f's_add_u32 {sA}, {sA}, {L_KT}')
    a(f'v_cvt_f32_u32 v17, {sA}')
    a(f's_add_u32 {sA}, {sA}, {2 * KT_ZERO}')
    a(f'v_mov_b32 v18, {sA}')
    a('v_cvt_f32_u32 v19, v16')
    a('v_cmp_eq_u32 vcc, 0, v16')
    for d in range(1, 12):
        dd = d - 4
        r = EXA + d
        a(f'v_add_f32 v20, {float(dd)}, v19' if -16 <= dd <= 4 and float(dd) in (-4.0, -2.0, -1.0, 1.0, 2.0, 4.0, 0.5) else
          f'v_add_f32 v20, {fconst(float(dd))}, v19')
        a('v_cvt_pk_bf16_f32 v20, v20, v20')
        a('v_and_b32 v20, 0xffff0000, v20')
        a('v_fma_f32 v20, v20, 2.0, v17')
        a(f'v_cvt_u32_f32 {vr(r)}, v20')
        if dd < 0:
            a(f'v_cndmask_b32 {vr(r)}, {vr(r)}, v18, vcc')
    a(f's_cmp_ge_u32 {sWV}, 3')
    a(f's_cselect_b32 {sA}, 1, 0')
    a(f's_mul_i32 {sB}, {sA}, 3')
    a(f's_sub_u32 {sB}, {sWV}, {sB}')
    a(f's_mul_i32 {sC}, {sA}, {G_CH}')
    a(f's_mul_i32 {sD}, {sB}, {16 * G_ROW}')
    a(f's_add_u32 {sC}, {sC}, {sD}')
    a(f'v_mul_u32_u24 v16, {G_ROW}, v2')
    a('v_lshl_add_u32 v16, v3, 4, v16')
    a(f'v_add_u32 {vr(KMA)}, {sC}, v16')
    a(f's_mul_i32 {sC}, {sA}, {E_CH}')
    a(f's_add_u32 {sC}, {sC}, {L_E}')
    a(f'v_add_u32 {vr(KMB)}, {sC}, v16')
    bases = [(0, 4, 128, 132), (256, 384, 512, 516), (1024, 1536, 2048, 2049)]
    steps = [(1, 1, 1, 1), (2, 2, 128, 128), (128, 128, 128, 128)]
    pk2 = lambda x, y: x | (y << 16)
    pk4 = lambda t: t[0] | (t[1] << 8) | (t[2] << 16) | (t[3] << 24)
    for reg, vals in ((sC, [pk2(b[0], b[1]) for b in bases]), (sD, [pk2(b[2], b[3]) for b in bases]),
                      (sE, [pk4(s) for s in steps])):
        a(f's_mov_b32 {reg}, {vals[0]}')
        a(f's_cmp_eq_u32 {sB}, 1')
        a(f's_cselect_b32 {reg}, {vals[1]}, {reg}')
        a(f's_cmp_eq_u32 {sB}, 2')
        a(f's_cselect_b32 {reg}, {vals[2]}, {reg}')
    a('v_cmp_gt_u32 vcc, 2, v3')
    a(f'v_mov_b32 v16, {sD}')
    a(f'v_mov_b32 v17, {sC}')
    a('v_cndmask_b32 v16, v16, v17, vcc')
    a('v_and_b32 v17, 1, v3')
    a('v_lshlrev_b32 v17, 4, v17')
    a('v_bfe_u32 v16, v16, v17, 16')
    a('v_lshlrev_b32 v17, 3, v3')
    a(f'v_bfe_u32 v17, {sE}, v17, 8')
    a('v_lshl_add_u32 v16, v2, 3, v16')
    a(f's_mul_i32 {sC}, {sA}, {KT_CH}')
    a(f's_add_u32 {sC}, {sC}, {L_KT}')
    a(f'v_lshlrev_b32 v16, 1, v16')
    a(f'v_add_u32 {vr(KMD)}, {sC}, v16')
    a('v_lshlrev_b32 v17, 1, v17')
    for r in range(1, 4):
        a(f'v_add_u32 {vr(KMD + r)}, {vr(KMD + r - 1)}, v17')
    a('s_waitcnt lgkmcnt(0)')
    a(f's_add_u32 {sT}, {sT}, 1')


def role_k():
    a(f's_lshr_b32 {sA}, {sWV}, 1')
    a(f's_add_u32 {sB}, {sCH0}, {sA}')
    a(f's_and_b32 {sC}, {sWV}, 1')
    a(f's_lshl_b32 {sC}, {sC}, 6')
    a(f's_lshl_b32 {sD}, {sB}, 7')
    a(f's_add_u32 {sD}, {sD}, {sC}')
    a(f'v_add_u32 v21, {sD}, v1')
    a('v_lshlrev_b32 v21, 1, v21')
    a(f's_lshl_b32 {sB}, {sB}, 1')
    a(f'v_mov_b32 v22, {sB}')
    for i, s in enumerate((ARE, AIM, BRE, BIM, CRE, CIM)):
        bload(24 + i, 'u16', 21, s)
    bload(30, 'u16', 22, LDT)
    if PRETOUCH:
        a('v_lshlrev_b32 v126, 21, v1')
        a('v_min_u32 v126, ' + str(WS_USED - 4) + ', v126')
        a('v_mov_b32 v125, 0')
        bload(127, 1, 126, WS)
        for i, sr in enumerate((W1, W2, W3, W4, OUT, DSK)):
            bload(126 - 2 - i, 1, 125, sr)
    a(f's_mul_i32 {sB}, {sA}, {G_CH}')
    a(f'v_add_u32 v22, {sC}, v1')
    a('v_lshlrev_b32 v22, 2, v22')
    a(f'v_add_u32 v23, {sB}, v22')
    a(f's_mul_i32 {sB}, {sA}, {E_CH}')
    a(f's_add_u32 {sB}, {sB}, {L_E}')
    a(f'v_add_u32 v22, {sB}, v22')
    precompute()
    swz_issue()
    a('s_waitcnt vmcnt(0)')
    stamp('r_loaded')
    for i in range(7):
        a(f'v_lshlrev_b32 {vr(24 + i)}, 16, {vr(24 + i)}')
    LOG2E = 1.4426950408889634
    hi = struct.unpack('<f', struct.pack('<f', LOG2E))[0]
    lo = LOG2E - hi
    a(f'v_mul_f32 v32, {fconst(hi)}, v30')
    a(f'v_mov_b32 v31, {fconst(hi)}')
    a('v_fma_f32 v33, v30, v31, -v32')
    a(f'v_fmamk_f32 v33, v30, {fconst(lo)}, v33')
    a('v_exp_f32 v32, v32')
    a(f'v_mul_f32 v33, {fconst(0.6931471805599453)}, v33')
    a('v_fma_f32 v32, v32, v33, v32')
    a('v_cvt_pk_bf16_f32 v32, v32, v32')
    a('v_lshlrev_b32 v30, 16, v32')
    a('v_mul_f32 v24, v24, v30')
    a('v_mul_f32 v25, v25, v30')
    a(f'v_mul_f32 v24, {fconst(hi)}, v24')
    a(f'v_mul_f32 v25, {fconst(1.0 / (2 * 3.141592653589793))}, v25')
    a('v_mul_f32 v26, v26, v30')
    a('v_mul_f32 v27, v27, v30')
    cmul(32, 26, 28)
    for d, m in ((34, 1.0), (36, 8.0), (38, 128.0)):
        if m == 1.0:
            a('v_exp_f32 v40, v24'); a('v_fract_f32 v41, v25')
        else:
            a(f'v_mul_f32 v40, {fconst(m)}, v24')
            a(f'v_mul_f32 v41, {fconst(m)}, v25')
            a('v_exp_f32 v40, v40'); a('v_fract_f32 v41, v41')
        a('v_cos_f32 v42, v41')
        a('v_sin_f32 v43, v41')
        a(f'v_mul_f32 {vr(d)}, v40, v42')
        a(f'v_mul_f32 {vr(d + 1)}, v40, v43')
    P = {1: 34, 2: 44, 3: 46, 4: 48, 5: 50, 6: 52, 7: 54}
    cmul(P[2], P[1], P[1])
    cmul(P[3], P[2], P[1])
    cmul(P[4], P[2], P[2])
    cmul(P[5], P[4], P[1])
    cmul(P[6], P[4], P[2])
    cmul(P[7], P[4], P[3])

    def putG(rho, x):
        a(f'v_cvt_pk_bf16_f32 v31, {vr(x)}, -{vr(x + 1)}')
        a(f'ds_write_b32 v23, v31 offset:{rho * G_ROW}')

    def putE(j, x):
        a(f'v_cvt_pk_bf16_f32 v29, {vr(x)}, {vr(x + 1)}')
        a(f'ds_write_b32 v22, v29 offset:{j * G_ROW}')

    rows = {}
    for rho in range(41):
        if rho < 16:
            i, b = rho >> 3, rho & 7
        elif rho < 24:
            i, b = 2 + ((rho - 16) >> 2), 2 * ((rho - 16) & 3)
        elif rho < 32:
            i, b = 4 + ((rho - 24) & 3), 4 * ((rho - 24) >> 2)
        else:
            i, b = 8 + (rho - 32), 0
        rows.setdefault(i, []).append((rho, b))
    a('v_mov_b32 v29, 0x00003f80')
    a('ds_write_b32 v22, v29 offset:0')
    putE(1, 36)
    Ecur = 36
    Q = 32
    for i in range(17):
        for n_, (rho, b) in enumerate(rows[i]):
            if b == 0:
                putG(rho, Q)
            else:
                t = 64 + 2 * (n_ & 1)
                cmul(t, Q, P[b])
                putG(rho, t)
        if i < 16:
            nq = 60 if Q != 60 else 62
            cmul(nq, Q, 38)
            Q = nq
        j = i + 2
        if j < 16:
            ne = 56 if Ecur != 56 else 58
            cmul(ne, Ecur, 36)
            putE(j, ne)
            Ecur = ne
    a('v_mov_b32 v14, v102')
    swz_dma()


def swz_issue():
    a(f's_lshl_b32 {sA}, s2, 2')
    a(f's_add_u32 {sA}, {sA}, {sWV}')
    a(f's_cmp_lt_u32 {sA}, 952')
    a(f's_cselect_b32 {sSN}, 4, 0')
    a(f's_cselect_b32 {sA}, {sA}, 0')
    a(f's_mov_b64 s[{TSRD}:{TSRD + 1}], s[{W1}:{W1 + 1}]')
    a(f's_mov_b32 s{TSRD + 2}, 524288')
    a(f's_mov_b32 s{TSRD + 3}, 0x20000')
    a(f's_mov_b32 {sSD}, {WS_W1S}')
    a(f's_mov_b32 {sSS}, 16384')
    a(f's_mov_b32 {sF}, 1024')
    a(f's_mov_b32 {sB}, {sA}')
    a(f's_cmp_ge_u32 {sA}, 128')
    a(f's_cselect_b64 s[{TSRD}:{TSRD + 1}], s[{W2}:{W2 + 1}], s[{TSRD}:{TSRD + 1}]')
    a(f's_cselect_b32 {sSD}, {WS_W2S}, {sSD}')
    a(f's_cselect_b32 {sC}, 128, 0')
    a(f's_sub_u32 {sB}, {sA}, {sC}')
    a(f's_cmp_ge_u32 {sA}, 256')
    a(f's_cselect_b64 s[{TSRD}:{TSRD + 1}], s[{W3}:{W3 + 1}], s[{TSRD}:{TSRD + 1}]')
    a(f's_cselect_b32 s{TSRD + 2}, {512 * F_ * 2}, s{TSRD + 2}')
    a(f's_cselect_b32 {sSD}, {WS_W3S}, {sSD}')
    a(f's_cselect_b32 {sF}, {F_ * 2}, {sF}')
    a(f's_cselect_b32 {sC}, 256, 0')
    a(f's_cselect_b32 {sD}, 1, 0')
    a(f's_cmp_lg_u32 {sD}, 0')
    a(f's_sub_u32 {sC}, {sA}, {sC}')
    a(f's_cmp_lg_u32 {sD}, 0')
    a(f's_cselect_b32 {sB}, {sC}, {sB}')
    a(f's_and_b32 {sC}, {sB}, 15')
    a(f's_lshr_b32 {sD}, {sB}, 4')
    a(f's_mov_b32 {sE}, 16')
    a(f's_cmp_ge_u32 {sA}, 608')
    a(f's_cselect_b64 s[{TSRD}:{TSRD + 1}], s[{W4}:{W4 + 1}], s[{TSRD}:{TSRD + 1}]')
    a(f's_cselect_b32 {sSD}, {WS_W4S}, {sSD}')
    a(f's_cselect_b32 {sF}, 1024, {sF}')
    a(f's_cselect_b32 {sE}, 43, {sE}')
    a(f's_cselect_b32 {sSS}, {43 * 1024}, {sSS}')
    a(f's_sub_u32 {sB}, {sA}, 608')
    a(f's_lshr_b32 {sSB}, {sB}, 3')
    a(f's_and_b32 {sB}, {sB}, 7')
    a(f's_cmp_ge_u32 {sA}, 608')
    a(f's_cselect_b32 {sC}, {sSB}, {sC}')
    a(f's_cselect_b32 {sD}, {sB}, {sD}')
    a(f's_cselect_b32 {sB}, 0, {sD}')
    a(f's_cmp_eq_u32 {sB}, 21')
    a(f's_cselect_b32 {sB}, 2, 4')
    a(f's_min_u32 {sSN}, {sSN}, {sB}')
    a(f's_lshl_b32 {sB}, {sD}, 2')
    a(f's_mul_i32 {sB}, {sB}, {sE}')
    a(f's_add_u32 {sB}, {sB}, {sC}')
    a(f's_lshl_b32 {sB}, {sB}, 10')
    a(f's_add_u32 {sSD}, {sSD}, {sB}')
    a(f's_mul_i32 {sC}, {sC}, {sF}')
    a(f's_lshl_b32 {sC}, {sC}, 5')
    a(f's_lshl_b32 {sD}, {sD}, 7')
    a(f's_add_u32 {sC}, {sC}, {sD}')
    a('v_lshrrev_b32 v100, 3, v1')
    a(f'v_mul_lo_u32 v100, v100, {sF}')
    a('v_and_b32 v101, 7, v1')
    a('v_lshl_add_u32 v102, v101, 4, v100')
    a(f's_lshl_b32 {sB}, {sWV}, 12')
    a(f's_add_u32 {sSB}, {sB}, {L_STG}')
    a(f's_lshl_b32 {sSR}, {sF}, 3')
    a(f's_mov_b32 {sSO}, {sC}')


def swz_dma():
    a(f's_mov_b32 {sC}, {sSO}')
    for q in range(4):
        if q:
            a(f's_add_u32 {sC}, {sC}, {sSR}')
        a(f's_add_u32 {sB}, {sSB}, {q * 1024}')
        dma(4, 14, TSRD, sB, soff=sC)


def swz_finish():
    a('v_lshrrev_b32 v46, 2, v2')
    a('v_lshl_add_u32 v46, v3, 3, v46')
    a('v_lshlrev_b32 v46, 7, v46')
    a('v_and_b32 v47, 3, v2')
    a('v_lshl_add_u32 v46, v47, 3, v46')
    a(f'v_add_u32 v46, {sSB}, v46')
    for nt in range(4):
        a(f'ds_read_b64_tr_b16 {vr(48 + 4 * nt, 2)}, v46 offset:{32 * nt}')
        a(f'ds_read_b64_tr_b16 {vr(50 + 4 * nt, 2)}, v46 offset:{32 * nt + 512}')
    a('s_waitcnt lgkmcnt(0)')
    a(f's_mov_b32 {sA}, {sSD}')
    a(f's_mov_b32 {sB}, 0x7ff00000')
    for nt in range(4):
        a(f's_cmp_gt_u32 {sSN}, {nt}')
        a(f's_cselect_b32 {sC}, {sA}, {sB}')
        bstore(48 + 4 * nt, 4, vL16, WS, soff=sC, mods='sc1')
        a(f's_add_u32 {sA}, {sA}, {sSS}')


def role_stats():
    a(f's_lshl_b32 {sA}, s2, 13')
    a(f's_add_u32 {sB}, {sA}, 4096')
    for i in range(8):
        bload(24 + 4 * i, 4, vL16, U, imm=(i & 3) * 1024, soff=(sA if i < 4 else sB))
    precompute()
    a('v_mov_b32 v23, 0x3f803f80')
    a('s_waitcnt vmcnt(7)')
    stamp('r_loaded')
    for i in range(8):
        a(f's_waitcnt vmcnt({7 - i})')
        b = 24 + 4 * i
        a(f'v_dot2_f32_bf16 {vr(60 + i)}, {vr(b)}, v23, 0')
        a(f'v_dot2_f32_bf16 {vr(68 + i)}, {vr(b)}, {vr(b)}, 0')
        for k in range(1, 4):
            a(f'v_dot2c_f32_bf16 {vr(60 + i)}, {vr(b + k)}, v23')
            a(f'v_dot2c_f32_bf16 {vr(68 + i)}, {vr(b + k)}, {vr(b + k)}')
    for base in (60, 68):
        for i in range(4):
            a(f'v_permlane32_swap_b32 {vr(base + i)}, {vr(base + i + 4)}')
        for i in range(4):
            a(f'v_add_f32 {vr(base + i)}, {vr(base + i)}, {vr(base + i + 4)}')
    for base in (60, 68):
        for i in range(2):
            a(f'v_permlane16_swap_b32 {vr(base + i)}, {vr(base + i + 2)}')
        for i in range(2):
            a(f'v_add_f32 {vr(base + i)}, {vr(base + i)}, {vr(base + i + 2)}')
    for sh in (1, 2, 4, 8):
        for r in (60, 61, 68, 69):
            a(f'v_add_f32_dpp {vr(r)}, {vr(r)}, {vr(r)} row_ror:{sh} row_mask:0xf bank_mask:0xf')
    for p in range(2):
        S, Q = 60 + p, 68 + p
        d = 72 + 4 * p
        a(f'v_mul_f32 {vr(S)}, {fconst(1.0 / 512)}, {vr(S)}')
        a(f'v_mul_f32 {vr(Q)}, {fconst(1.0 / 512)}, {vr(Q)}')
        a(f'v_fma_f32 {vr(Q)}, -{vr(S)}, {vr(S)}, {vr(Q)}')
        a(f'v_max_f32 {vr(Q)}, 0, {vr(Q)}')
        a(f'v_add_f32 {vr(Q)}, {fconst(1e-5)}, {vr(Q)}')
        a(f'v_rsq_f32 {vr(d)}, {vr(Q)}')
        a(f'v_mov_b32 {vr(d + 1)}, {sT}')
        a(f'v_mov_b32 {vr(d + 3)}, {sT}')
        a(f'v_mul_f32 {vr(d + 2)}, {vr(S)}, {vr(d)}')
    a(f's_lshl_b32 {sA}, s2, 7')
    a(f's_add_u32 {sA}, {sA}, {WS_STATS}')
    a('v_lshlrev_b32 v21, 5, v3')
    save_exec_mask(0x0001000100010001)
    bstore(72, 4, 21, WS, soff=sA, mods='sc1')
    bstore(76, 4, 21, WS, imm=16, soff=sA, mods='sc1')
    restore_exec()
    stamp('r_pub')


L_SIL = 139264


def role_mod():
    lskip = a.newlabel('L_nomod'); ldone = a.newlabel('L_moddone')
    a('s_cmp_ge_u32 s2, 192')
    a(f's_cbranch_scc1 {lskip}')
    a(f's_mul_i32 {sA}, {sJ}, 43')
    a(f's_lshr_b32 {sA}, {sA}, 8')
    a(f's_mul_i32 {sB}, {sA}, 6')
    a(f's_sub_u32 {sB}, {sJ}, {sB}')
    a(f's_lshl_b32 {sB}, {sB}, 3')
    a(f's_add_u32 {sNV}, {sB}, {sX}')
    a(f's_lshl_b32 {sA}, {sA}, 1')
    a(f's_add_u32 {sA}, {sA}, {sWV}')
    a(f's_sub_u32 {sNT3}, {sA}, 5')
    a('v_lshlrev_b32 v22, 1, v1')
    a(f's_lshl_b32 {sA}, {sNT3}, 7')
    bload(24, 'u16', 22, CC, soff=sA)
    a('v_lshrrev_b32 v21, 3, v1')
    a('v_mul_u32_u24 v23, 6144, v21')
    a('v_and_b32 v40, 7, v1')
    a('v_lshl_add_u32 v23, v40, 4, v23')
    a(f's_mul_i32 {sA}, {sNT3}, {64 * 6144}')
    a(f's_lshl_b32 {sB}, {sNV}, 7')
    a(f's_add_u32 {sA}, {sA}, {sB}')
    for i in range(8):
        if i:
            a(f's_add_u32 {sA}, {sA}, {8 * 6144}')
        bload(64 + 4 * i, 4, 23, WMOD, soff=sA)
    precompute()
    a('s_waitcnt vmcnt(8)')
    stamp('r_loaded')
    a('v_lshlrev_b32 v24, 16, v24')
    a(f'v_mul_f32 v58, {fconst(-1.4426950408889634)}, v24')
    a('v_exp_f32 v58, v58')
    a('v_add_f32 v58, 1.0, v58')
    a('v_rcp_f32 v58, v58')
    a('v_mul_f32 v58, v58, v24')
    a('v_cvt_pk_bf16_f32 v58, v58, v58')
    a('v_and_b32 v56, 0xffff, v58')
    a('v_and_b32 v57, 0xffff0000, v58')
    a(f's_sub_u32 {sA}, {sWV}, 5')
    a(f's_lshl_b32 {sA}, {sA}, 9')
    a(f's_add_u32 {sA}, {sA}, {L_SIL}')
    a('v_and_b32 v25, 7, v1')
    a('v_lshlrev_b32 v25, 5, v25')
    a('v_lshrrev_b32 v26, 3, v1')
    a('v_lshl_add_u32 v25, v26, 2, v25')
    a(f'v_add_u32 v25, {sA}, v25')
    a('ds_write_b32 v25, v56')
    a('ds_write_b32 v25, v57 offset:256')
    a(f'v_lshl_add_u32 v25, v21, 5, {sA}')
    a('s_waitcnt lgkmcnt(0)')
    a('ds_read_b128 v[24:27], v25') if False else None
    a('ds_read_b128 v[28:31], v25')
    a('ds_read_b128 v[32:35], v25 offset:16')
    a('ds_read_b128 v[40:43], v25 offset:256')
    a('ds_read_b128 v[44:47], v25 offset:272')
    a('s_waitcnt lgkmcnt(0)')
    ACC = 48
    for i in range(8):
        a(f's_waitcnt vmcnt({7 - i})')
        b = 64 + 4 * i
        for k in range(4):
            if i == 0:
                a(f'v_dot2_f32_bf16 {vr(ACC + 2 * k)}, {vr(b + k)}, {vr(28 + i)}, 0')
                a(f'v_dot2_f32_bf16 {vr(ACC + 1 + 2 * k)}, {vr(b + k)}, {vr(40 + i)}, 0')
            else:
                a(f'v_dot2c_f32_bf16 {vr(ACC + 2 * k)}, {vr(b + k)}, {vr(28 + i)}')
                a(f'v_dot2c_f32_bf16 {vr(ACC + 1 + 2 * k)}, {vr(b + k)}, {vr(40 + i)}')
    for i in range(4):
        a(f'v_permlane32_swap_b32 {vr(ACC + i)}, {vr(ACC + 4 + i)}')
    for i in range(4):
        a(f'v_add_f32 {vr(ACC + i)}, {vr(ACC + i)}, {vr(ACC + 4 + i)}')
    for i in range(2):
        a(f'v_permlane16_swap_b32 {vr(ACC + i)}, {vr(ACC + 2 + i)}')
    for i in range(2):
        a(f'v_add_f32 {vr(ACC + i)}, {vr(ACC + i)}, {vr(ACC + 2 + i)}')
    for r in (ACC, ACC + 1):
        a(f'v_add_f32_dpp {vr(r)}, {vr(r)}, {vr(r)} row_ror:8 row_mask:0xf bank_mask:0xf')
    a('v_and_b32 v21, 1, v3')
    a('v_lshlrev_b32 v21, 1, v21')
    a('v_lshrrev_b32 v22, 1, v3')
    a('v_lshl_add_u32 v21, v22, 2, v21')
    a('v_and_b32 v22, 7, v1')
    a('v_lshl_add_u32 v21, v22, 3, v21')
    a('v_lshlrev_b32 v21, 3, v21')
    a(f's_mul_i32 {sA}, {sNT3}, 3072')
    a(f's_lshl_b32 {sB}, {sNV}, 6')
    a(f's_add_u32 {sA}, {sA}, {sB}')
    a(f's_lshl_b32 {sA}, {sA}, 3')
    a(f's_add_u32 {sA}, {sA}, {WS_MODG}')
    a(f'v_mov_b32 {vr(ACC + 2)}, {vr(ACC + 1)}')
    a(f'v_mov_b32 {vr(ACC + 1)}, {sT}')
    a(f'v_mov_b32 {vr(ACC + 3)}, {sT}')
    save_exec_mask(0x00ff00ff00ff00ff)
    bstore(ACC, 4, 21, WS, soff=sA, mods='sc1')
    restore_exec()
    stamp('r_pub')
    a(f's_branch {ldone}')
    a.label(lskip)
    precompute()
    a.label(ldone)


def role_xt():
    a('v_lshlrev_b32 v21, 10, v1')
    a(f's_lshl_b32 {sA}, {sJ}, 16')
    a(f's_lshl_b32 {sB}, {sX}, 7')
    a(f's_add_u32 {sA}, {sA}, {sB}')
    for i in range(8):
        bload(24 + 4 * i, 4, 21, U, imm=16 * i, soff=sA)
    precompute()
    for k in range(4):
        a(f'v_mov_b32 {vr(57 + 2 * k)}, {sT}')
    a('v_lshlrev_b32 v21, 3, v1')
    a(f's_lshl_b32 {sA}, {sX}, 19')
    a(f's_lshl_b32 {sB}, {sJ}, 9')
    a(f's_add_u32 {sA}, {sA}, {sB}')
    a(f's_add_u32 {sA}, {sA}, {WS_XT}')
    for p in range(32):
        if p % 4 == 0:
            a(f's_waitcnt vmcnt({7 - p // 4 + p})')
            if p == 0:
                stamp('r_loaded')
        t = 56 + 2 * (p % 4)
        a(f'v_mov_b32 {vr(t)}, {vr(24 + p)}')
        bstore(t, 2, 21, WS, soff=sA, mods='sc1')
        if p < 31:
            a(f's_add_u32 {sA}, {sA}, 16384')
    stamp('r_pub')


def phase_a():
    lk = 'L_roleK'; l56 = 'L_role56'; l7 = 'L_role7'; lj = 'L_A_join'
    stamp('entry')
    a(f's_cmp_lt_u32 {sWV}, 4')
    a(f's_cbranch_scc1 {lk}')
    a('s_setprio 2')
    a(f's_cmp_eq_u32 {sWV}, 7')
    a(f's_cbranch_scc1 {l7}')
    a(f's_cmp_ge_u32 {sWV}, 5')
    a(f's_cbranch_scc1 {l56}')
    role_stats()
    a(f's_branch {lj}')
    a.label(l56)
    role_mod()
    a(f's_branch {lj}')
    a.label(l7)
    role_xt()
    a(f's_branch {lj}')
    a.label(lk)
    role_k()
    a.label(lj)
    a('s_setprio 0')
    for k in range(4):
        a(f'v_mov_b32 {vr(24 + k)}, 0')
    a('v_lshrrev_b32 v21, 5, v0')
    a(f'v_mul_u32_u24 v21, {H_CH}, v21')
    a('v_and_b32 v22, 31, v0')
    a('v_lshl_add_u32 v21, v22, 4, v21')
    a(f'v_add_u32 v21, {L_H}, v21')
    a('v_subrev_u32 v22, 64, v0')
    a('v_lshrrev_b32 v23, 1, v22')
    a(f'v_mul_u32_u24 v23, {CP_R}, v23')
    a('v_and_b32 v22, 1, v0')
    a('v_lshl_add_u32 v23, v22, 4, v23')
    a(f'v_add_u32 v23, {L_COPY}, v23')
    a('v_cmp_gt_u32 vcc, 64, v0')
    a('v_cndmask_b32 v21, v23, v21, vcc')
    a(f'v_mul_u32_u24 v22, {KT_CH}, v22')
    a(f'v_add_u32 v22, {L_KT + 2 * KT_ZERO}, v22')
    lz = a.newlabel('L_z')
    a(f's_cmp_ge_u32 {sWV}, 2')
    a(f's_cbranch_scc1 {lz}')
    a('v_cmp_gt_u32 vcc, 80, v0')
    a(f's_and_saveexec_b64 s[{sX0}:{sX0 + 1}], vcc')
    a('ds_write_b128 v21, v[24:27]')
    a('ds_write_b16 v22, v24')
    restore_exec()
    a.label(lz)
    a('s_waitcnt lgkmcnt(0)')
    stamp('role_done')
    a('s_barrier')
    stamp('B1')
    lsk = a.newlabel('L_kmf')
    a(f's_cmp_ge_u32 {sWV}, 6')
    a(f's_cbranch_scc1 {lsk}')
    for ks in range(8):
        a(f'ds_read_b128 {vr(24 + 8 * ks, 4)}, {vr(KMA)} offset:{64 * ks}')
        a(f'ds_read_b128 {vr(28 + 8 * ks, 4)}, {vr(KMB)} offset:{64 * ks}')
    for ks in range(8):
        a(f's_waitcnt lgkmcnt({14 - 2 * ks})')
        acc = 88 + 4 * (ks & 1)
        mfma(acc, 24 + 8 * ks, 28 + 8 * ks, None if ks < 2 else acc)
    for k in range(4):
        a(f'v_add_f32 {vr(88 + k)}, {vr(88 + k)}, {vr(92 + k)}')
    a('v_cvt_pk_bf16_f32 v96, v88, v89')
    a('v_cvt_pk_bf16_f32 v97, v90, v91')
    a(f'ds_write_b16 {vr(KMD)}, v96')
    a(f'ds_write_b16_d16_hi {vr(KMD + 1)}, v96')
    a(f'ds_write_b16 {vr(KMD + 2)}, v97')
    a(f'ds_write_b16_d16_hi {vr(KMD + 3)}, v97')
    a('s_waitcnt lgkmcnt(0)')
    a.label(lsk)
    a('s_barrier')
    stamp('B2')
    for d in range(1, 12):
        a(f'ds_read_u16 {vr(24 + d)}, {vr(EXA + d)}')
    a(f's_lshr_b32 {sA}, {sWV}, 2')
    a(f's_mul_i32 {sA}, {sA}, {CP_CH}')
    a(f's_add_u32 {sA}, {sA}, {L_COPY + 32}')
    a('v_and_b32 v22, 255, v0')
    a(f'v_lshl_add_u32 v21, v22, 4, {sA}')
    a('s_waitcnt lgkmcnt(0)')
    for r in range(4):
        d = 36 + 4 * r
        for p in range(4):
            a(f'v_lshl_or_b32 {vr(d + p)}, {vr(24 + 5 + 2 * p - r)}, 16, {vr(24 + 4 + 2 * p - r)}')
        a(f'ds_write_b128 v21, {vr(d, 4)} offset:{r * CP_R}')
    stamp('expanded')


def spin_guard(label_retry):
    a(f's_add_u32 {sSPIN}, {sSPIN}, 1')
    a(f's_cmp_lt_u32 {sSPIN}, {SPIN_MAX}')
    a(f's_cbranch_scc1 {label_retry}')


def tags_check(tags, lo, hi):
    a(f'v_min3_u32 {vr(lo)}, {vr(tags[0])}, {vr(tags[1])}, {vr(tags[2])}')
    a(f'v_max3_u32 {vr(hi)}, {vr(tags[0])}, {vr(tags[1])}, {vr(tags[2])}')
    k = 3
    while k < len(tags):
        t2 = tags[k + 1] if k + 1 < len(tags) else tags[k]
        a(f'v_min3_u32 {vr(lo)}, {vr(lo)}, {vr(tags[k])}, {vr(t2)}')
        a(f'v_max3_u32 {vr(hi)}, {vr(hi)}, {vr(tags[k])}, {vr(t2)}')
        k += 2
    a(f'v_cmp_ne_u32 vcc, {sT}, {vr(lo)}')
    a(f'v_cmp_ne_u32 s[{sX0}:{sX0 + 1}], {sT}, {vr(hi)}')
    a('s_nop 0')
    a(f's_or_b64 vcc, vcc, s[{sX0}:{sX0 + 1}]')


def phase_b():
    a(f's_lshl_b32 {sA}, {sWV}, 12')
    a(f'v_add_u32 v21, {sA}, {vr(vL16)}')
    a('v_lshrrev_b32 v14, 3, v1')
    a('v_cmp_gt_u32 vcc, 6, v14')
    a('v_cndmask_b32 v14, 0, v14, vcc') if False else None
    a('v_mov_b32 v15, 0')
    a('v_cndmask_b32 v14, v15, v14, vcc')
    a('v_lshrrev_b32 v15, 1, v14')
    a('v_lshlrev_b32 v15, 9, v15')
    a('v_and_b32 v14, 1, v14')
    a('v_add_u32 v15, v15, v14')
    a(f'v_add_u32 v15, {sCH0}, v15')
    a('v_and_b32 v14, 7, v1')
    a('v_mul_u32_u24 v14, 3072, v14')
    a('v_add_u32 v15, v15, v14')
    a('v_lshlrev_b32 v22, 3, v15')
    a(f's_mov_b32 {sB}, {WS_STATS}')
    a('v_lshrrev_b32 v20, 1, v21')
    a(f's_lshl_b32 {sD}, {sX}, 5'); a(f's_add_u32 {sD}, {sD}, {sJ}'); a(f's_lshl_b32 {sD}, {sD}, 14')
    a(f's_add_u32 {sD}, {sD}, {WS_XT}')
    if not NOSCOUT:
        lsk = a.newlabel('L_scoutskip'); lsp = a.newlabel('L_scout'); lso = a.newlabel('L_scoutok')
        a(f's_cmp_lg_u32 {sWV}, 0')
        a(f's_cbranch_scc1 {lsk}')
        a('v_lshlrev_b32 v24, 7, v1')
        a('v_and_b32 v25, 31, v1')
        a('v_lshlrev_b32 v25, 9, v25')
        a(f's_mov_b32 {sSPIN}, 0')
        a.label(lsp)
        for i in range(4):
            a(f's_mov_b32 {sC}, {WS_STATS + 8192 * i}')
            bload(28 + i, 1, 24, WS, imm=4, soff=sC, mods='sc1')
        bload(32, 1, 25, WS, imm=4, soff=sD, mods='sc1')
        a(f's_mov_b32 {sC}, {WS_MODG}')
        bload(33, 1, 22, WS, imm=4, soff=sC, mods='sc1')
        a('s_waitcnt vmcnt(0)')
        tags_check([28, 29, 30, 31, 32, 33], 34, 35)
        a(f's_cbranch_vccz {lso}')
        spin_guard(lsp)
        a.label(lso)
        a.label(lsk)
        a('s_barrier')
        stamp('scout')
    a(f's_mov_b32 {sSPIN}, 0')
    lp = 'L_S1_poll'; lok = 'L_S1_ok'
    a.label(lp)
    for i in range(4):
        bload(44 + 4 * i, 4, 21, WS, imm=1024 * i, soff=sB, mods='sc1')
        bload(88 + 2 * i, 2, 20, WS, imm=512 * i, soff=sD, mods='sc1')
    a(f's_mov_b32 {sC}, {WS_MODG}')
    bload(60, 2, 22, WS, soff=sC, mods='sc1')
    a('s_waitcnt vmcnt(0)')
    tags = [45, 47, 49, 51, 53, 55, 57, 59, 61, 89, 91, 93, 95]
    tags_check(tags, 84, 85)
    a(f's_cbranch_vccz {lok}')
    spin_guard(lp)
    a.label(lok)
    stamp('S1ok')
    a('v_lshrrev_b32 v23, 2, v21')
    a(f'v_add_u32 v23, {L_XC}, v23')
    for i in range(4):
        a(f'ds_write_b32 v23, {vr(88 + 2 * i)} offset:{256 * i}')
    a('v_add_f32_dpp v60, v60, v60 quad_perm:[1,0,3,2] row_mask:0xf bank_mask:0xf')
    a('v_add_f32_dpp v60, v60, v60 quad_perm:[2,3,0,1] row_mask:0xf bank_mask:0xf')
    a('v_add_f32_dpp v60, v60, v60 row_half_mirror row_mask:0xf bank_mask:0xf')
    for i, dst in enumerate((60, 62, 64, 66, 68, 70)):
        a(f'v_readlane_b32 s{60 + i}, v60, {8 * i}')
    for i, dst in enumerate((60, 62, 64, 66, 68, 70)):
        a(f'v_mov_b32 {vr(dst)}, s{60 + i}')
    a('v_add_f32 v64, 1.0, v64'); a('v_add_f32 v66, 1.0, v66')
    a(f's_lshr_b32 {sHI}, {sWV}, 2'); a(f's_and_b32 {sLO}, {sWV}, 3')
    a(f's_lshl_b32 {sA}, {sCH0}, 1')
    a(f'v_mov_b32 v77, {sA}')
    bload(76, 1, 77, DSK)
    for i in range(4):
        r, mr = 44 + 4 * i, 46 + 4 * i
        a(f'v_lshlrev_b32 v80, 16, {vr(88 + 2 * i)}')
        a(f'v_and_b32 v81, 0xffff0000, {vr(88 + 2 * i)}')
        a(f'v_fma_f32 v80, v80, {vr(r)}, -{vr(mr)}')
        a(f'v_fma_f32 v81, v81, {vr(r)}, -{vr(mr)}')
        a('v_fma_f32 v80, v80, v64, v60')
        a('v_fma_f32 v81, v81, v66, v62')
        a(f'v_cvt_pk_bf16_f32 {vr(96 + i)}, v80, v81')
    a('v_lshrrev_b32 v23, 3, v21')
    a(f'v_add_u32 v23, {L_H + 512}, v23')
    for i in range(4):
        a(f'ds_write_b16 v23, {vr(96 + i)} offset:{128 * i}')
        a(f'ds_write_b16_d16_hi v23, {vr(96 + i)} offset:{H_CH + 128 * i}')
    a(f's_mul_i32 {sA}, {sHI}, {H_CH}')
    a(f's_lshl_b32 {sB}, {sLO}, 6')
    a(f's_sub_u32 {sA}, {sA}, {sB}')
    a(f's_add_u32 {sA}, {sA}, {L_H + 480 - 256}')
    a('v_lshlrev_b32 v21, 5, v2')
    a('v_lshl_add_u32 v21, v3, 4, v21')
    a(f'v_add_u32 v21, {sA}, v21')
    a(f's_mul_i32 {sA}, {sHI}, {CP_CH}')
    a(f's_add_u32 {sA}, {sA}, {sB}')
    a(f's_add_u32 {sA}, {sA}, {L_COPY + 64 - 8}')
    a('v_lshrrev_b32 v22, 2, v2')
    a(f'v_mul_u32_u24 v22, {CP_R}, v22')
    a('v_and_b32 v23, 3, v2')
    a('v_lshl_add_u32 v22, v23, 3, v22')
    a('v_lshlrev_b32 v23, 4, v3')
    a('v_sub_u32 v22, v22, v23')
    a(f'v_add_u32 v22, {sA}, v22')
    a(f's_lshl_b32 {sA}, {sWV}, 13')
    a(f'v_add_u32 v23, {sA}, {vr(vL16)}')
    mod_final_issue()
    a('s_waitcnt lgkmcnt(0)')
    a('s_barrier')
    stamp('B3')
    BF = 96; AF = 160; ACC = 224

    def ldA(i):
        r = AF + 4 * i
        a(f'ds_read_b64_tr_b16 {vr(r, 2)}, v22 offset:{256 * i + 8}')
        a(f'ds_read_b64_tr_b16 {vr(r + 2, 2)}, v22 offset:{256 * i}')

    def ldB(u):
        a(f'ds_read_b128 {vr(BF + 4 * u, 4)}, v21 offset:{256 * u}')
    seq = ['A0', 'B1', 'B3', 'B5', 'B7', 'B9', 'B11', 'B13', 'B15', 'A1', 'B0', 'B2', 'B4', 'B6', 'B8', 'B10', 'B12', 'B14'] + \
          [f'A{i}' for i in range(2, 16)]
    pos = {}
    n = 0
    for s_ in seq:
        n += 2 if s_[0] == 'A' else 1
        pos[s_] = n
    total = n
    issued = 0
    it = iter(seq)

    def issue_until(cnt):
        nonlocal issued
        while issued < min(cnt, total):
            s_ = next(it)
            if s_[0] == 'A':
                ldA(int(s_[1:])); issued += 2
            else:
                ldB(int(s_[1:])); issued += 1
    writes = 0
    issue_until(12)
    order = []
    stream = []
    q = []
    for s_ in seq:
        q += [s_] * (2 if s_[0] == 'A' else 1)
    ops = list(q[:issued])
    for i in range(16):
        nmin = i // 2 if i >= 1 else 0
        for nn in range(nmin, 8):
            u = 2 * nn - i + 1
            needs = [f'A{i}', f'B{u}']
            last_needed = max(idx for idx, o in enumerate(q) if o in needs)
            tgt = max(last_needed + 1, min(total, len([o for o in ops if o != 'W']) + 2))
            while len([o for o in ops if o != 'W']) < tgt:
                before = issued
                issue_until(issued + 1)
                ops += q[before:issued]
            lastidx = max(idx for idx, o in enumerate(ops) if o in needs)
            pend = len(ops) - 1 - lastidx
            key = ('wait', pend)
            if not hasattr(phase_b, 'done') or True:
                done_upto = getattr(phase_b, 'done_upto', -1)
                if lastidx > done_upto:
                    a(f's_waitcnt lgkmcnt({min(pend, 15)})')
                    phase_b.done_upto = lastidx if pend <= 15 else len(ops) - 1 - 15
            mfma(ACC + 4 * nn, AF + 4 * i, BF + 4 * u, None if i == 0 else ACC + 4 * nn)
        if i == 3:
            lsw = a.newlabel('L_swzfin')
            a(f's_cmp_ge_u32 {sWV}, 4')
            a(f's_cbranch_scc1 {lsw}')
            a('s_waitcnt vmcnt(0)')
            swz_finish()
            a.label(lsw)
        if i >= 3 and i % 2 == 1:
            nn = (i - 1) // 2 - 1
            a(f'ds_write_b128 v23, {vr(ACC + 4 * nn, 4)} offset:{1024 * nn}')
            ops.append('W')
    a(f'ds_write_b128 v23, {vr(ACC + 28, 4)} offset:{1024 * 7}')
    mod_final_finish()
    a('s_waitcnt lgkmcnt(0)')
    a('s_barrier')
    stamp('B4')

    a(f's_lshl_b32 {sA}, {sWV}, 10')
    a(f'v_add_u32 v23, {sA}, {vr(vL16)}')
    for c in range(2):
        for qq in range(4):
            a(f'ds_read_b128 {vr(96 + 16 * c + 4 * qq, 4)}, v23 offset:{32768 * c + 8192 * qq}')
    a('v_lshlrev_b32 v21, 4, v2')
    a('v_lshl_add_u32 v21, v3, 2, v21')
    a(f's_lshl_b32 {sA}, {sWV}, 8')
    a(f'v_add_u32 v21, {sA}, v21')
    a('v_lshlrev_b32 v22, 2, v21')
    a('v_lshlrev_b32 v24, 1, v21')
    a(f'ds_read_b128 v[128:131], v22 offset:{L_XC}') if L_XC < 65536 else None
    if L_XC >= 65536:
        a(f'v_add_u32 v22, {L_XC}, v22')
        a('ds_read_b128 v[128:131], v22')
    a(f'v_add_u32 v24, {L_H + 512}, v24')
    a('ds_read_b64 v[136:137], v24')
    a(f'ds_read_b64 v[138:139], v24 offset:{H_CH}')
    a('v_lshrrev_b32 v25, 1, v2')
    a('v_lshlrev_b32 v25, 15, v25')
    a('v_and_b32 v26, 1, v2')
    a('v_lshl_add_u32 v25, v26, 5, v25')
    a('v_and_b32 v26, 1, v3')
    a('v_lshl_add_u32 v25, v26, 6, v25')
    a('v_lshrrev_b32 v26, 1, v3')
    a('v_lshl_add_u32 v25, v26, 4, v25')
    a(f's_lshl_b32 {sA}, {sWV}, 18')
    a(f's_lshl_b32 {sB}, {sCH0}, 6')
    a(f's_add_u32 {sA}, {sA}, {sB}')
    a(f's_add_u32 {sE}, {sA}, {WS_X2B}')
    a('s_waitcnt vmcnt(0)')
    a('v_lshlrev_b32 v77, 16, v76')
    a('v_and_b32 v76, 0xffff0000, v76')
    a('s_waitcnt lgkmcnt(0)')
    for c in range(2):
        y = 96 + 16 * c
        for k in range(0, 4, 2):
            a(f'v_pk_add_f32 {vr(y + k, 2)}, {vr(y + k, 2)}, {vr(y + 4 + k, 2)}')
            a(f'v_pk_add_f32 {vr(y + 8 + k, 2)}, {vr(y + 8 + k, 2)}, {vr(y + 12 + k, 2)}')
            a(f'v_pk_add_f32 {vr(y + k, 2)}, {vr(y + k, 2)}, {vr(y + 8 + k, 2)}')
        dsk = 77 if c == 0 else 76
        ga = 68 if c == 0 else 70
        for k in range(4):
            hreg = 136 + 2 * c + (k >> 1)
            if k & 1:
                a(f'v_and_b32 v26, 0xffff0000, {vr(hreg)}')
            else:
                a(f'v_lshlrev_b32 v26, 16, {vr(hreg)}')
            a(f'v_fma_f32 {vr(y + k)}, v26, {vr(dsk)}, {vr(y + k)}')
            if c == 0:
                a(f'v_lshlrev_b32 v27, 16, {vr(128 + k)}')
            else:
                a(f'v_and_b32 v27, 0xffff0000, {vr(128 + k)}')
            a(f'v_fma_f32 {vr(y + k)}, {vr(ga)}, {vr(y + k)}, v27')
        a(f'v_cvt_pk_bf16_f32 {vr(28 + 2 * c)}, {vr(y)}, {vr(y + 1)}')
        a(f'v_cvt_pk_bf16_f32 {vr(29 + 2 * c)}, {vr(y + 2)}, {vr(y + 3)}')
    a('v_permlane16_swap_b32 v28, v30')
    a('v_permlane16_swap_b32 v29, v31')
    bstore(28, 4, 25, WS, soff=sE, mods='sc1')
    a('s_waitcnt vmcnt(0)')
    stamp('x2stored')
    a('s_barrier')
    set_flag(WS_F2, 's2')


def mod_final_issue():
    ls = a.newlabel('L_modf')
    a(f's_cmp_lg_u32 {sWV}, 7')
    a(f's_cbranch_scc1 {ls}')
    a('v_lshrrev_b32 v14, 3, v1')
    a(f's_mul_i32 {sA}, s2, 12')
    a(f'v_add_u32 v14, {sA}, v14')
    a('v_and_b32 v15, 7, v1')
    a('v_mul_u32_u24 v15, 3072, v15')
    a('v_add_u32 v15, v15, v14')
    a('v_lshlrev_b32 v24, 3, v15')
    a('v_lshrrev_b32 v14, 3, v1')
    a('v_and_b32 v15, 3, v14')
    a('v_sub_u32 v14, v15, v14')
    a('v_add_u32 v14, 8, v14')
    a('v_lshl_add_u32 v25, v14, 3, v24')
    a(f's_mov_b32 {sC}, {WS_MODG}')
    bload(26, 2, 24, WS, soff=sC, mods='sc1')
    bload(28, 2, 25, WS, soff=sC, mods='sc1')
    a.label(ls)


def mod_final_finish():
    ls = a.newlabel('L_modf'); lp = a.newlabel('L_modp'); lok = a.newlabel('L_modok')
    a(f's_cmp_lg_u32 {sWV}, 7')
    a(f's_cbranch_scc1 {ls}')
    a('s_waitcnt vmcnt(0)')
    tags_check([27, 29, 29], 30, 31)
    a(f's_cbranch_vccz {lok}')
    a(f's_mov_b32 {sSPIN}, 0')
    a.label(lp)
    a(f's_mov_b32 {sC}, {WS_MODG}')
    bload(26, 2, 24, WS, soff=sC, mods='sc1')
    bload(28, 2, 25, WS, soff=sC, mods='sc1')
    a('s_waitcnt vmcnt(0)')
    tags_check([27, 29, 29], 30, 31)
    a(f's_cbranch_vccz {lok}')
    spin_guard(lp)
    a.label(lok)
    for r in (26, 28):
        a(f'v_add_f32_dpp {vr(r)}, {vr(r)}, {vr(r)} quad_perm:[1,0,3,2] row_mask:0xf bank_mask:0xf')
        a(f'v_add_f32_dpp {vr(r)}, {vr(r)}, {vr(r)} quad_perm:[2,3,0,1] row_mask:0xf bank_mask:0xf')
        a(f'v_add_f32_dpp {vr(r)}, {vr(r)}, {vr(r)} row_half_mirror row_mask:0xf bank_mask:0xf')
    a('v_lshrrev_b32 v14, 3, v1')
    a('v_lshlrev_b32 v14, 2, v14')
    a(f's_mul_i32 {sA}, s2, 48')
    a(f's_add_u32 {sA}, {sA}, {WS_MODF}')
    save_exec_mask(0x0101010101010101)
    bstore(26, 1, 14, WS, soff=sA, mods='sc1')
    a('s_mov_b32 exec_hi, 0')
    bstore(28, 1, 14, WS, imm=32, soff=sA, mods='sc1')
    restore_exec()
    a.label(ls)


def wfrags(dst, base, n, nt_sgpr=None, stride=16, first=0):
    if nt_sgpr is None:
        a(f's_lshl_b32 {sA}, {sCQ}, 3')
        a(f's_add_u32 {sA}, {sA}, {sWV}')
    else:
        a(f's_mov_b32 {sA}, {nt_sgpr}')
    a(f's_mul_i32 {sA}, {sA}, {stride * 1024}')
    a(f's_add_u32 {sA}, {sA}, {base + first * 1024}')
    for k in range(n):
        if k and k % 4 == 0:
            a(f's_add_u32 {sA}, {sA}, 4096')
        bload(dst + 4 * k, 4, vL16, WS, imm=(k % 4) * 1024, soff=sA, mods='sc1')


def wfrag_base(sreg, base, nt_sgpr=None, stride=16, first=0):
    if nt_sgpr is None:
        a(f's_lshl_b32 {sreg}, {sCQ}, 3')
        a(f's_add_u32 {sreg}, {sreg}, {sWV}')
    else:
        a(f's_mov_b32 {sreg}, {nt_sgpr}')
    a(f's_mul_i32 {sreg}, {sreg}, {stride * 1024}')
    a(f's_add_u32 {sreg}, {sreg}, {base + first * 1024}')


def wfrag_one(dst, sreg, k):
    if k and k % 4 == 0:
        a(f's_add_u32 {sreg}, {sreg}, 4096')
    bload(dst + 4 * k, 4, vL16, WS, imm=(k % 4) * 1024, soff=sreg, mods='sc1')


def not_poller(fn):
    l = a.newlabel('L_np')
    a(f's_cmp_eq_u32 {sWV}, 7')
    a(f's_cbranch_scc1 {l}')
    fn()
    a.label(l)


def only_poller(fn):
    l = a.newlabel('L_op')
    a(f's_cmp_lg_u32 {sWV}, 7')
    a(f's_cbranch_scc1 {l}')
    fn()
    a.label(l)


def set_flag(off, idx_sgpr, mods='sc1'):
    a(f's_lshl_b32 {sA}, {idx_sgpr}, 6')
    a(f's_add_u32 {sA}, {sA}, {off}')
    a(f'v_mov_b32 v14, {sT}')
    a('v_mov_b32 v15, 0')
    a(f's_cmp_eq_u32 {sWV}, 0')
    a('s_cselect_b64 exec, 1, 0')
    bstore(14, 1, 15, WS, soff=sA, mods=mods)
    a('s_mov_b64 exec, -1')


PV = 116


def poll(off, kind):
    lf = a.newlabel('L_pollskip'); lp = a.newlabel('L_poll'); lok = a.newlabel('L_pollok')
    a(f's_cmp_lg_u32 {sWV}, 7')
    a(f's_cbranch_scc1 {lf}')
    if kind == 'all':
        a(f'v_lshlrev_b32 {vr(PV)}, 6, v1')
    elif kind == 'own':
        a(f'v_and_b32 {vr(PV)}, 7, v1')
        a(f's_lshl_b32 {sA}, {sRB}, 3')
        a(f'v_add_u32 {vr(PV)}, {sA}, {vr(PV)}')
        a(f'v_lshlrev_b32 {vr(PV)}, 6, {vr(PV)}')
    else:
        a(f'v_min_u32 {vr(PV)}, 11, v1')
        a(f's_lshl_b32 {sA}, {sT32}, 2')
        a(f's_sub_u32 {sB}, {sA}, 4')
        a(f'v_add_u32 {vr(PV)}, {sB}, {vr(PV)}')
        a(f'v_cmp_gt_u32 vcc, 256, {vr(PV)}')
        a(f'v_mov_b32 {vr(PV + 1)}, {sA}')
        a(f'v_cndmask_b32 {vr(PV)}, {vr(PV + 1)}, {vr(PV)}, vcc')
        a(f'v_lshlrev_b32 {vr(PV)}, 6, {vr(PV)}')
    a(f's_mov_b32 {sSPIN}, 0')
    a.label(lp)
    if kind == 'all':
        for i in range(4):
            a(f's_mov_b32 {sB}, {off + 4096 * i}')
            bload(PV + 2 + i, 1, PV, WS, soff=sB, mods='sc1')
        a('s_waitcnt vmcnt(0)')
        tags_check([PV + 2, PV + 3, PV + 4, PV + 5], PV + 6, PV + 7)
    else:
        a(f's_mov_b32 {sB}, {off}')
        bload(PV + 2, 1, PV, WS, soff=sB, mods='sc1')
        a('s_waitcnt vmcnt(0)')
        a(f'v_cmp_ne_u32 vcc, {sT}, {vr(PV + 2)}')
        a('s_nop 0')
    a(f's_cbranch_vccz {lok}')
    spin_guard(lp)
    a.label(lok)
    a.label(lf)
    a('s_barrier')


def lane_masks():
    a('v_and_b32 v15, 3, v2')
    a(f'v_cmp_eq_u32 s[{mK1}:{mK1 + 1}], 1, v15')
    a(f'v_cmp_eq_u32 s[{mK2}:{mK2 + 1}], 2, v15')
    a(f'v_cmp_eq_u32 s[{mK3}:{mK3 + 1}], 3, v15')
    a('v_lshrrev_b32 v14, 2, v2')
    a(f'v_cmp_eq_u32 s[{mDG}:{mDG + 1}], v14, v3')


def stats_publish(addr, S, Q, t0):
    a(f'v_cndmask_b32 {vr(t0 + 1)}, {vr(Q)}, {vr(Q + 1)}, s[{mK1}:{mK1 + 1}]')
    a(f'v_mov_b32 {vr(t0)}, {vr(S)}')
    a(f'v_cndmask_b32 {vr(t0 + 1)}, {vr(t0 + 1)}, {vr(Q + 2)}, s[{mK2}:{mK2 + 1}]')
    a(f'v_cndmask_b32 {vr(t0 + 1)}, {vr(t0 + 1)}, {vr(Q + 3)}, s[{mK3}:{mK3 + 1}]')
    save_exec_mask(f's[{mDG}:{mDG + 1}]')
    a(f'ds_write_b64 {vr(addr)}, {vr(t0, 2)}')
    restore_exec()


def stats_finish(S, Q, m, r):
    a(f'v_mul_f32 {vr(m)}, {fconst(1.0 / 512)}, {vr(S)}')
    a(f'v_mul_f32 {vr(r)}, {fconst(1.0 / 512)}, {vr(Q)}')
    a(f'v_fma_f32 {vr(r)}, -{vr(m)}, {vr(m)}, {vr(r)}')
    a(f'v_max_f32 {vr(r)}, 0, {vr(r)}')
    a(f'v_add_f32 {vr(r)}, {fconst(1e-5)}, {vr(r)}')
    a(f'v_rsq_f32 {vr(r)}, {vr(r)}')


GC0 = -2.0 * 1.4426950408889634 * 0.7978845608028654
GC1 = GC0 * 0.044715


def gelu_consts(gk):
    for r, c in ((gk, GC0), (gk + 2, GC1), (gk + 4, 1.0)):
        a(f'v_mov_b32 {vr(r)}, {fconst(c)}')


def gelu(regs, tmp, gk):
    n = len(regs)
    for i in range(0, n, 2):
        x = regs[i]
        t = tmp + 2 * ((i // 2) & 1)
        a(f'v_pk_mul_f32 {vr(t, 2)}, {vr(x, 2)}, {vr(x, 2)}')
        a(f'v_pk_fma_f32 {vr(t, 2)}, {vr(t, 2)}, {vr(gk + 2, 2)}, {vr(gk, 2)} op_sel_hi:[1,0,0]')
        a(f'v_pk_mul_f32 {vr(t, 2)}, {vr(t, 2)}, {vr(x, 2)}')
        a(f'v_exp_f32 {vr(t)}, {vr(t)}')
        a(f'v_exp_f32 {vr(t + 1)}, {vr(t + 1)}')
        a(f'v_pk_add_f32 {vr(t, 2)}, {vr(t, 2)}, {vr(gk + 4, 2)} op_sel_hi:[1,0]')
        a(f'v_rcp_f32 {vr(t)}, {vr(t)}')
        a(f'v_rcp_f32 {vr(t + 1)}, {vr(t + 1)}')
        a(f'v_pk_mul_f32 {vr(x, 2)}, {vr(x, 2)}, {vr(t, 2)}')


def ln_apply(acc, cs, m, r, tmp):
    for k in (0, 2):
        a(f'v_pk_fma_f32 {vr(acc + k, 2)}, {vr(cs + k, 2)}, {vr(m, 2)}, {vr(acc + k, 2)} op_sel_hi:[1,0,1] neg_lo:[0,1,0] neg_hi:[0,1,0]')
        a(f'v_pk_mul_f32 {vr(acc + k, 2)}, {vr(acc + k, 2)}, {vr(r, 2)} op_sel_hi:[1,0]')


def pack_swap(dst, t0, t1):
    a(f'v_cvt_pk_bf16_f32 {vr(dst)}, {vr(t0)}, {vr(t0 + 1)}')
    a(f'v_cvt_pk_bf16_f32 {vr(dst + 2)}, {vr(t1)}, {vr(t1 + 1)}')
    a(f'v_cvt_pk_bf16_f32 {vr(dst + 1)}, {vr(t0 + 2)}, {vr(t0 + 3)}')
    a(f'v_cvt_pk_bf16_f32 {vr(dst + 3)}, {vr(t1 + 2)}, {vr(t1 + 3)}')
    a(f'v_permlane16_swap_b32 {vr(dst)}, {vr(dst + 2)}')
    a(f'v_permlane16_swap_b32 {vr(dst + 1)}, {vr(dst + 3)}')


ONES = 16
CS1 = 20


def phase3():
    W1R, W2R = 128, 192
    lane_masks()
    for k in range(4):
        a(f'v_mov_b32 {vr(ONES + k)}, 0x3f803f80')
    a(f's_and_b32 {sLO}, {sWV}, 1')
    a(f's_lshr_b32 {sHI}, {sWV}, 1')
    a('v_lshrrev_b32 v24, 5, v1')
    a('v_lshlrev_b32 v24, 5, v24')
    a(f'v_xor_b32 v24, v24, {vr(vL16)}')
    a('v_lshrrev_b32 v14, 2, v2')
    a('v_lshl_add_u32 v25, v3, 3, v14')
    a('v_lshlrev_b32 v25, 6, v25')
    a('v_and_b32 v14, 3, v2')
    a('v_lshl_add_u32 v25, v14, 3, v25')
    a('v_and_b32 v14, 1, v3')
    a(f'v_xor_b32 v14, {sLO}, v14')
    a('v_lshl_add_u32 v25, v14, 5, v25')
    a(f's_lshl_b32 {sA}, {sHI}, 13')
    a(f'v_add_u32 v25, {sA}, v25')
    a(f's_lshl_b32 {sA}, {sHI}, 9')
    a(f's_add_u32 {sA}, {sA}, {L_CB}')
    a(f'v_lshl_add_u32 v26, v3, 5, {sA}')
    a(f's_lshl_b32 {sA}, {sWV}, 7')
    a(f's_add_u32 {sA}, {sA}, {L_ST}')
    a(f'v_lshl_add_u32 v27, v2, 3, {sA}')
    a(f's_lshl_b32 {sA}, {sLO}, 7')
    a(f's_add_u32 {sA}, {sA}, {L_ST}')
    a(f'v_lshl_add_u32 v28, v2, 3, {sA}')
    a(f's_lshl_b32 {sA}, {sHI}, 13')
    a(f's_lshl_b32 {sB}, {sLO}, 10')
    a(f's_add_u32 {sA}, {sA}, {sB}')
    a(f's_add_u32 {sA}, {sA}, {L_HF}')
    a(f'v_add_u32 v29, {sA}, {vr(vL16)}')
    a(f'v_add_u32 v30, {L_HF}, {vr(vL16)}')
    poll(WS_F2, 'all')
    stamp('S2ok')
    a(f's_lshl_b32 {sA}, {sT32}, 15')
    a(f's_lshl_b32 {sB}, {sWV}, 10')
    a(f's_add_u32 {sA}, {sA}, {sB}')
    a(f's_add_u32 {sA}, {sA}, {WS_X2B}')
    for k in range(4):
        if k:
            a(f's_add_u32 {sA}, {sA}, 8192')
        a(f's_add_u32 {sD}, {sB}, {L_X + k * 8192}')
        dma(4, 24, WS, sD, soff=sA, mods='sc1')
    a('v_lshlrev_b32 v14, 2, v0')
    a(f's_mov_b32 {sA}, {WS_MODF + 4 * 2048}')
    bload(32, 1, 14, WS, soff=sA, mods='sc1')
    a(f's_mov_b32 {sA}, {WS_MODF + 3 * 2048}')
    bload(36, 1, 14, WS, soff=sA, mods='sc1')
    a(f's_lshl_b32 {sA}, {sRB}, 16')
    a(f's_lshr_b32 {sB}, {sWV}, 2'); a(f's_lshl_b32 {sB}, {sB}, 15'); a(f's_add_u32 {sA}, {sA}, {sB}')
    a(f's_lshl_b32 {sB}, {sCS}, 12'); a(f's_add_u32 {sA}, {sA}, {sB}')
    a(f's_and_b32 {sB}, {sWV}, 3'); a(f's_lshl_b32 {sB}, {sB}, 10'); a(f's_add_u32 {sA}, {sA}, {sB}')
    a(f's_add_u32 {sA}, {sA}, {WS_X2B}')
    a(f's_lshl_b32 {sB}, {sWV}, 10')
    a(f's_add_u32 {sB}, {sB}, {L_XS}')
    dma(4, vL16, WS, sB, soff=sA, mods='sc1')
    a('v_lshlrev_b32 v15, 2, v0')
    a(f'v_add_u32 v15, {L_CB}, v15')
    a('s_waitcnt vmcnt(1)')
    a('v_add_f32 v32, 1.0, v32')
    a('ds_write_b32 v15, v32')
    a('ds_write_b32 v15, v36 offset:2048')
    a('s_waitcnt lgkmcnt(0)')
    a('s_barrier')
    stamp('Xlanded')
    wfrag_base(sF, WS_W1S)
    wq = list(range(16))

    def w1n(n):
        for _ in range(n):
            if wq:
                wfrag_one(W1R, sF, wq.pop(0))
    XF = 32
    for i in range(4):
        a(f'ds_read_b64_tr_b16 {vr(XF + 4 * i, 2)}, v25 offset:{2048 * i}')
        a(f'ds_read_b64_tr_b16 {vr(XF + 2 + 4 * i, 2)}, v25 offset:{2048 * i + 256}')
    CO = 64

    def ldc(i):
        b = CO + 16 * i
        a(f'ds_read_b128 {vr(b, 4)}, v26 offset:{128 * i}')
        a(f'ds_read_b128 {vr(b + 4, 4)}, v26 offset:{128 * i + 16}')
        a(f'ds_read_b128 {vr(b + 8, 4)}, v26 offset:{2048 + 128 * i}')
        a(f'ds_read_b128 {vr(b + 12, 4)}, v26 offset:{2048 + 128 * i + 16}')
    ldc(0)
    SA, QA = 48, 52
    for i in range(4):
        if i == 0:
            a('s_waitcnt lgkmcnt(10)')
        elif i == 1:
            a('s_waitcnt lgkmcnt(8)')
        elif i == 2:
            a('s_waitcnt lgkmcnt(6)')
        else:
            a('s_waitcnt lgkmcnt(4)')
        f = XF + 4 * i
        mfma(SA, ONES, f, None if i == 0 else SA)
        mfma(QA, f, f, None if i == 0 else QA)
        w1n(1)
    ldc(1); ldc(2)
    stats_publish(27, SA, QA, 56)
    ldc(3)
    a('s_waitcnt lgkmcnt(4)')
    a('s_barrier')
    a('ds_read2st64_b64 v[48:51], v28 offset0:0 offset1:1') if False else None
    a('ds_read_b64 v[48:49], v28')
    a('ds_read_b64 v[50:51], v28 offset:256')
    a('ds_read_b64 v[52:53], v28 offset:512')
    a('ds_read_b64 v[54:55], v28 offset:768')
    a('s_waitcnt lgkmcnt(0)')
    a('v_pk_add_f32 v[48:49], v[48:49], v[50:51]')
    a('v_pk_add_f32 v[52:53], v[52:53], v[54:55]')
    a('v_pk_add_f32 v[48:49], v[48:49], v[52:53]')
    stats_finish(48, 49, 58, 56)
    a('v_mul_f32 v58, v58, v56')
    stamp('stats2')
    SA, QA = 48, 52
    for i in range(4):
        f = XF + 4 * i
        b = CO + 16 * i
        for p in range(4):
            z = 60 + 2 * (p & 1)
            a(f'v_lshlrev_b32 {vr(z)}, 16, {vr(f + p)}')
            a(f'v_and_b32 {vr(z + 1)}, 0xffff0000, {vr(f + p)}')
            a(f'v_pk_fma_f32 {vr(z, 2)}, {vr(z, 2)}, v[56:57], v[58:59] op_sel_hi:[1,0,0] neg_lo:[0,0,1] neg_hi:[0,0,1]')
            a(f'v_pk_fma_f32 {vr(z, 2)}, {vr(z, 2)}, {vr(b + 2 * p, 2)}, {vr(b + 8 + 2 * p, 2)}')
            a(f'v_cvt_pk_bf16_f32 {vr(f + p)}, {vr(z)}, {vr(z + 1)}')
            if p != 3:
                w1n(1)
        a(f'ds_write_b128 v29, {vr(f, 4)} offset:{2048 * i}')
        if i > 0:
            fp = f - 4
            mfma(SA, ONES, fp, None if i == 1 else SA)
            mfma(QA, fp, fp, None if i == 1 else QA)
    f = XF + 12
    mfma(SA, ONES, f, SA)
    mfma(QA, f, f, QA)
    a(f'v_add_u32 v27, {L_ST3 - L_ST}, v27')
    stats_publish(27, SA, QA, 60)
    a('s_waitcnt lgkmcnt(0)')
    a('s_barrier')
    stamp('norm')
    AR = 64

    def lda(ks):
        b = AR + 8 * (ks % 8)
        a(f'ds_read_b128 {vr(b, 4)}, v30 offset:{2048 * ks}')
        a(f'ds_read_b128 {vr(b + 4, 4)}, v30 offset:{2048 * ks + 1024}')
    for ks in range(6):
        lda(ks)
    assert not wq
    a('s_waitcnt vmcnt(0)')
    a(f'v_lshlrev_b32 v14, 3, v2')
    a(f'v_add_u32 v14, {L_ST3}, v14')
    for ks in range(16):
        pend = min(15 - ks, 5) * 2
        a(f's_waitcnt lgkmcnt({pend})')
        b = AR + 8 * (ks % 8)
        mfma(32, W1R + 4 * ks, b, None if ks == 0 else 32)
        mfma(36, W1R + 4 * ks, b + 4, None if ks == 0 else 36)
        mfma(CS1, W1R + 4 * ks, ONES, None if ks == 0 else CS1)
        if ks + 6 < 16:
            lda(ks + 6)
    for tt in range(2):
        for kq in range(4):
            a(f'ds_read_b64 {vr(40 + 8 * tt + 2 * kq, 2)}, v14 offset:{256 * kq + 128 * tt}')
    GK = 56
    gelu_consts(GK)
    a('s_waitcnt lgkmcnt(0)')
    for tt in range(2):
        b = 40 + 8 * tt
        a(f'v_pk_add_f32 {vr(b, 2)}, {vr(b, 2)}, {vr(b + 2, 2)}')
        a(f'v_pk_add_f32 {vr(b + 4, 2)}, {vr(b + 4, 2)}, {vr(b + 6, 2)}')
        a(f'v_pk_add_f32 {vr(b, 2)}, {vr(b, 2)}, {vr(b + 4, 2)}')
        stats_finish(b, b + 1, b + 2, b + 4)
        ln_apply(32 + 4 * tt, CS1, b + 2, b + 4, None)
    stamp('gemm1')
    gelu(list(range(32, 40)), 62, GK)
    pack_swap(40, 32, 36)
    a('v_lshrrev_b32 v14, 5, v1')
    a('v_mul_u32_u24 v14, 768, v14')
    a('v_and_b32 v15, 31, v1')
    a('v_lshl_add_u32 v14, v15, 4, v14')
    a(f's_mul_i32 {sA}, {sT32}, {64 * 768}')
    a(f's_lshl_b32 {sB}, {sCQ}, 3'); a(f's_add_u32 {sB}, {sB}, {sWV}'); a(f's_mul_i32 {sB}, {sB}, {2 * 768}')
    a(f's_add_u32 {sA}, {sA}, {sB}')
    a(f's_add_u32 {sE}, {sA}, {WS_H1 + 128}')
    bstore(40, 4, 14, WS, soff=sE, mods=CM)
    a('v_cmp_gt_u32 vcc, 2, v15')
    a(f'v_mov_b32 v44, {49152 - 512}')
    a(f'v_mov_b32 v45, {(-(49152 - 512)) & 0xffffffff}')
    a('v_cndmask_b32 v44, v44, v45, vcc')
    a('v_add_u32 v44, v44, v14')
    a(f'v_add_u32 v44, {sE}, v44')
    a('v_mov_b32 v48, v40'); a('v_mov_b32 v49, v41'); a('v_mov_b32 v50, v42'); a('v_mov_b32 v51, v43')
    le = a.newlabel('L_edge'); led = a.newlabel('L_edged')
    a(f's_cmp_eq_u32 {sT32}, 0')
    a(f's_cbranch_scc1 {le}')
    a(f's_cmp_lg_u32 {sT32}, 63')
    a(f's_cbranch_scc1 {led}')
    a('v_cmp_lt_u32 vcc, 29, v15')
    a(f'v_add_u32 v45, {sE}, v14'); a('v_add_u32 v45, 32, v45')
    a('v_cndmask_b32 v44, v44, v45, vcc')
    for k in range(4):
        a(f'v_cndmask_b32 {vr(48 + k)}, {vr(48 + k)}, 0, vcc') if False else None
    a('v_mov_b32 v46, 0')
    for k in range(4):
        a(f'v_cndmask_b32 {vr(48 + k)}, {vr(48 + k)}, v46, vcc')
    a(f's_branch {led}')
    a.label(le)
    a('v_cmp_gt_u32 vcc, 2, v15')
    a(f'v_add_u32 v45, {sE}, v14'); a('v_subrev_u32 v45, 32, v45')
    a('v_cndmask_b32 v44, v44, v45, vcc')
    a('v_mov_b32 v46, 0')
    for k in range(4):
        a(f'v_cndmask_b32 {vr(48 + k)}, {vr(48 + k)}, v46, vcc')
    a.label(led)
    save_exec_mask(0xc0000003c0000003)
    bstore(48, 4, 44, WS, mods='sc1')
    restore_exec()
    p5_tiles()
    a('s_waitcnt vmcnt(0)')
    stamp('h1stored')
    a('s_barrier')
    a(f's_lshl_b32 {sE}, {sT32}, 2'); a(f's_add_u32 {sE}, {sE}, {sCQ}')
    set_flag(WS_F3, sE)
    wfrags(W2R, WS_W2S, 16)


def p5_tiles():
    a(f's_mul_i32 {sNT3}, {sCS}, 11')
    a(f's_cmp_eq_u32 {sCS}, 7')
    a(f's_cselect_b32 {sA}, 1, 0')
    a(f's_sub_u32 {sNT3}, {sNT3}, {sA}')
    a(f's_add_u32 {sNT3}, {sNT3}, {sWV}')
    a(f's_cmp_ge_u32 {sCS}, 6')
    a(f's_cselect_b32 {sA}, 2, 3')
    a(f's_cmp_lt_u32 {sWV}, {sA}')
    a(f's_cselect_b32 {sNV}, 2, 1')


def phase4():
    W2R = 192
    poll(WS_F3, 'halo')
    stamp('S3ok')
    a(f's_mul_i32 {sA}, {sT32}, {64 * 768}')
    a(f's_lshl_b32 {sB}, {sWV}, 10')
    a(f's_add_u32 {sA}, {sA}, {sB}')
    a(f's_add_u32 {sA}, {sA}, {WS_H1}')
    for k in range(6):
        if k:
            a(f's_add_u32 {sA}, {sA}, 8192')
        a(f's_add_u32 {sD}, {sB}, {L_A4 + k * 8192}')
        dma(4, vL16, WS, sD, soff=sA, mods='sc1')
    a('v_mul_u32_u24 v24, 768, v3')
    a('v_lshl_add_u32 v24, v2, 4, v24')
    a(f'v_add_u32 v24, {L_A4 + 128 - 32}, v24')
    a(f's_lshl_b32 {sA}, {sCQ}, 2'); a(f's_lshr_b32 {sB}, {sWV}, 1'); a(f's_add_u32 {sA}, {sA}, {sB}')
    a(f's_lshl_b32 {sA}, {sA}, 11')
    a(f's_and_b32 {sB}, {sWV}, 1'); a(f's_lshl_b32 {sB}, {sB}, 9'); a(f's_add_u32 {sA}, {sA}, {sB}')
    a(f's_add_u32 {sA}, {sA}, {L_HF}')
    a('v_lshrrev_b32 v25, 1, v3')
    a('v_lshlrev_b32 v25, 8, v25')
    a('v_lshl_add_u32 v25, v2, 4, v25')
    a('v_and_b32 v14, 1, v3')
    a('v_lshl_add_u32 v25, v14, 3, v25')
    a(f'v_add_u32 v25, {sA}, v25')
    a('ds_read_b64 v[40:41], v25')
    a('ds_read_b64 v[42:43], v25 offset:1024')
    AR = 64
    shifts = [-1, 1, -2, 2]

    def lda(ks):
        b = AR + 8 * (ks % 8)
        s_ = shifts[ks >> 2]
        off = 3072 * ks + 32 + 16 * s_
        a(f'ds_read_b128 {vr(b, 4)}, v24 offset:{off}')
        a(f'ds_read_b128 {vr(b + 4, 4)}, v24 offset:{off + 256}')
    a('s_waitcnt vmcnt(3)')
    a('s_barrier')
    stamp('A4landed')
    for ks in range(6):
        lda(ks)
    for ks in range(16):
        if ks == 2:
            a('s_waitcnt vmcnt(0)')
            a('s_barrier')
        pend = min(15 - ks, 5) * 2
        a(f's_waitcnt lgkmcnt({pend})')
        b = AR + 8 * (ks % 8)
        mfma(32, W2R + 4 * ks, b, None if ks == 0 else 32)
        mfma(36, W2R + 4 * ks, b + 4, None if ks == 0 else 36)
        if ks + 6 < 16:
            lda(ks + 6)
    stamp('gemm2')
    for tt in range(2):
        for k in range(4):
            h = 40 + 2 * tt + (k >> 1)
            if k & 1:
                a(f'v_and_b32 {vr(44 + k)}, 0xffff0000, {vr(h)}')
            else:
                a(f'v_lshlrev_b32 {vr(44 + k)}, 16, {vr(h)}')
        a(f'v_pk_add_f32 {vr(32 + 4 * tt, 2)}, {vr(32 + 4 * tt, 2)}, v[44:45]')
        a(f'v_pk_add_f32 {vr(34 + 4 * tt, 2)}, {vr(34 + 4 * tt, 2)}, v[46:47]')
    pack_swap(40, 32, 36)
    a(f's_lshl_b32 {sA}, {sT32}, 15')
    a(f's_lshl_b32 {sB}, {sCQ}, 3'); a(f's_add_u32 {sB}, {sB}, {sWV}'); a(f's_lshl_b32 {sB}, {sB}, 10')
    a(f's_add_u32 {sA}, {sA}, {sB}')
    a(f's_add_u32 {sA}, {sA}, {WS_X1}')
    bstore(40, 4, vL16, WS, soff=sA, mods=CM)
    a('s_waitcnt vmcnt(0)')
    stamp('x1stored')
    a('s_barrier')
    a(f's_lshl_b32 {sE}, {sRB}, 3'); a(f's_add_u32 {sE}, {sE}, {sCS}')
    set_flag(WS_F4, sE, CM)

    wfrags(128, WS_W3S, 16, nt_sgpr=sNT3)
    l1 = a.newlabel('L_p4one')
    a(f's_cmp_eq_u32 {sNV}, 1')
    a(f's_cbranch_scc1 {l1}')
    a(f's_add_u32 {sE}, {sNT3}, 8')
    wfrags(192, WS_W3S, 16, nt_sgpr=sE)
    a.label(l1)


def w4reg(s_):
    return 192 + 4 * s_ if s_ < 16 else 128 + 4 * (s_ - 16)


def w4_base(sreg, first):
    a(f's_and_b32 {sB}, {sWV}, 3')
    a(f's_lshl_b32 {sreg}, {sCS}, 2'); a(f's_add_u32 {sreg}, {sreg}, {sB}'); a(f's_mul_i32 {sreg}, {sreg}, 43')
    a(f's_lshr_b32 {sB}, {sWV}, 2'); a(f's_mul_i32 {sB}, {sB}, 22'); a(f's_add_u32 {sreg}, {sreg}, {sB}')
    a(f's_lshl_b32 {sreg}, {sreg}, 10'); a(f's_add_u32 {sreg}, {sreg}, {WS_W4S + first * 1024}')


def w4_one(sreg, first, k):
    s_ = first + k
    if k and k % 4 == 0:
        a(f's_add_u32 {sreg}, {sreg}, 4096')
    so = sreg
    if s_ == 21:
        a(f's_cmp_ge_u32 {sWV}, 4')
        a(f's_cselect_b32 {sC}, 0x7ff00000, {sreg}')
        so = sC
    bload(w4reg(s_), 4, vL16, WS, imm=(k % 4) * 1024, soff=so, mods='sc1')


def w4_loads(first, n):
    w4_base(sA, first)
    for k in range(n):
        w4_one(sA, first, k)


def phase5():
    W3A, W3B = 128, 192
    CSA, CSB = 24, 28
    for k in range(4):
        a(f'v_mov_b32 {vr(ONES + k)}, 0x3f803f80')
    a(f's_and_b32 {sLO}, {sWV}, 3')
    a(f's_lshr_b32 {sHI}, {sWV}, 2')
    a('v_lshrrev_b32 v14, 2, v2')
    a('v_lshl_add_u32 v14, v3, 2, v14')
    a('v_lshlrev_b32 v14, 6, v14')
    a('v_and_b32 v15, 3, v2')
    a('v_lshl_add_u32 v14, v15, 3, v14')
    a(f's_lshl_b32 {sA}, {sHI}, 12'); a(f's_lshl_b32 {sB}, {sLO}, 10'); a(f's_add_u32 {sA}, {sA}, {sB}')
    a(f's_add_u32 {sA}, {sA}, {L_XS}')
    a(f'v_add_u32 v14, {sA}, v14')
    a(f'ds_read_b64_tr_b16 {vr(XS, 2)}, v14')
    a(f'ds_read_b64_tr_b16 {vr(XS + 2, 2)}, v14 offset:32')
    a(f's_lshr_b32 {sA}, {sLO}, 1'); a(f's_lshl_b32 {sA}, {sA}, 15')
    a(f's_and_b32 {sB}, {sLO}, 1'); a(f's_lshl_b32 {sB}, {sB}, 8'); a(f's_add_u32 {sA}, {sA}, {sB}')
    a(f's_lshl_b32 {sB}, {sHI}, 14'); a(f's_add_u32 {sA}, {sA}, {sB}')
    a(f'v_add_u32 v20, {sA}, {vr(vVB)}')
    a(f's_lshl_b32 {sA}, {sWV}, 7'); a(f's_add_u32 {sA}, {sA}, {L_ST5}')
    a(f'v_lshl_add_u32 v21, v2, 3, {sA}')
    a(f's_lshl_b32 {sA}, {sHI}, 15'); a(f's_lshl_b32 {sB}, {sCS}, 12'); a(f's_add_u32 {sA}, {sA}, {sB}')
    a(f's_lshl_b32 {sB}, {sLO}, 10'); a(f's_add_u32 {sA}, {sA}, {sB}')
    a('v_lshrrev_b32 v22, 1, v3'); a('v_lshlrev_b32 v22, 9, v22')
    a('v_lshl_add_u32 v22, v2, 4, v22')
    a('v_and_b32 v14, 1, v3'); a('v_lshl_add_u32 v22, v14, 3, v22')
    a(f'v_add_u32 v22, {sA}, v22')
    a('v_lshlrev_b32 v23, 3, v2')
    a(f'v_add_u32 v23, {L_ST5}, v23')
    lnb = a.newlabel('L_nob')
    a(f's_cmp_lt_u32 {sNV}, 2')
    a(f's_cbranch_scc1 {lnb}')
    a('s_waitcnt vmcnt(0)')
    for ks in range(16):
        mfma(CSA, W3A + 4 * ks, ONES, None if ks == 0 else CSA)
        mfma(CSB, W3B + 4 * ks, ONES, None if ks == 0 else CSB)
    a.label(lnb)
    a('s_waitcnt lgkmcnt(0)')
    stamp('W3landed')
    poll(WS_F4, 'own')
    stamp('S4ok')
    a(f's_lshl_b32 {sA}, {sRB}, 16')
    a(f's_lshl_b32 {sB}, {sHI}, 15'); a(f's_lshl_b32 {sC}, {sLO}, 10'); a(f's_add_u32 {sB}, {sB}, {sC}')
    a(f's_add_u32 {sA}, {sA}, {sB}'); a(f's_add_u32 {sA}, {sA}, {WS_X1}')
    for j in range(8):
        if j:
            a(f's_add_u32 {sA}, {sA}, 4096')
        a(f's_add_u32 {sD}, {sB}, {L_X1 + 4096 * j}')
        dma(4, vL16, WS, sD, soff=sA, mods='sc1')
    AR = 64
    ACA, ACB = 32, 48
    SA, QA, TP, MR = 112, 116, 120, 120
    a(f's_lshl_b32 {sA}, {sRB}, 1'); a(f's_mul_i32 {sA}, {sA}, {86 * 1024}')
    a(f's_lshl_b32 {sB}, {sNT3}, 10'); a(f's_add_u32 {sA}, {sA}, {sB}'); a(f's_add_u32 {sE}, {sA}, {WS_H3}')

    def lda(ks, q):
        b = AR + 16 * (ks % 3)
        for tt in range(4):
            a(f'ds_read_b128 {vr(b + 4 * tt, 4)}, {vr(vVB)} offset:{32768 * (tt >> 1) + 2048 * ks + 256 * (tt & 1)}')
        q += [('a', ks)] * 4

    def wait_for(q, key):
        last = max(i for i, o in enumerate(q) if o == key)
        a(f's_waitcnt lgkmcnt({min(15, len(q) - 1 - last)})')

    def epi_steps(acc, cs, tileoff, tmp, gk, pk):
        steps = []
        for tt in range(4):
            mr = MR + 2 * tt
            def f(tt=tt, mr=mr):
                for k in (0, 2):
                    r = acc + 4 * tt + k
                    a(f'v_pk_fma_f32 {vr(r, 2)}, {vr(cs + k, 2)}, {vr(mr, 2)}, {vr(r, 2)} op_sel_hi:[1,0,1] neg_lo:[0,1,0] neg_hi:[0,1,0]')
                    a(f'v_pk_mul_f32 {vr(r, 2)}, {vr(r, 2)}, {vr(mr, 2)} op_sel:[0,1] op_sel_hi:[1,1]')
            steps.append(f)
        for i in range(8):
            steps.append(lambda i=i: gelu([acc + 2 * i, acc + 2 * i + 1], tmp + 2 * (i & 1), gk))
        for T in range(2):
            def f(T=T):
                d = pk + 4 * T
                pack_swap(d, acc + 8 * T, acc + 8 * T + 4)
                a(f's_add_u32 {sA}, {sE}, {tileoff + T * 86 * 1024}')
                bstore(d, 4, vL16, WS, soff=sA, mods=CM)
            steps.append(f)
        return steps

    def loop1(two):
        q = []
        vm_after = 0
        if not two:
            w4_base(sF, 0)
        a('s_waitcnt vmcnt(4)')
        a('s_barrier')
        stamp('x1landed')
        lda(0, q); lda(1, q)
        nxt = 2
        for ks in range(16):
            if ks == 5:
                if two:
                    a('s_waitcnt vmcnt(0)')
                else:
                    a(f's_waitcnt vmcnt({vm_after})')
                a('s_barrier')
            if ks in (5, 7):
                h = 0 if ks == 5 else 4
                for k in range(4):
                    a(f'ds_read_b128 {vr(ACB + 4 * k, 4)}, v20 offset:{2048 * (h + k)}')
                q += [('s', ks)] * 4
            if ks == 12:
                a('s_waitcnt lgkmcnt(0)')
                a('s_barrier')
                for tt in range(4):
                    a(f'ds_read_b64 {vr(ACB + 4 * tt, 2)}, v23 offset:{128 * tt}')
                    a(f'ds_read_b64 {vr(ACB + 4 * tt + 2, 2)}, v23 offset:{512 + 128 * tt}')
                q += [('f', 0)] * 8
            wait_for(q, ('a', ks))
            b = AR + 16 * (ks % 3)
            for tt in range(4):
                mfma(ACA + 4 * tt, W3A + 4 * ks, b + 4 * tt, None if ks == 0 else ACA + 4 * tt)
            if not two:
                mfma(CSA, W3A + 4 * ks, ONES, None if ks == 0 else CSA)
                w4_one(sF, 0, ks); vm_after += 1
            while nxt < 16 and nxt <= ks + 2 and (nxt < 8 or ks >= 5):
                lda(nxt, q); nxt += 1
            if ks in (6, 8):
                wait_for(q, ('s', ks - 1))
                for k in range(4):
                    f = ACB + 4 * k
                    first = (ks == 6 and k == 0)
                    mfma(SA, ONES, f, None if first else SA)
                    mfma(QA, f, f, None if first else QA)
            if ks == 10:
                stats_publish(21, SA, QA, TP)
                q += [('p', 0)]
            if ks in (13, 14):
                wait_for(q, ('f', 0))
                for tt in ((0, 1) if ks == 13 else (2, 3)):
                    bb = ACB + 4 * tt
                    mr = MR + 2 * tt
                    a(f'v_pk_add_f32 {vr(bb, 2)}, {vr(bb, 2)}, {vr(bb + 2, 2)}')
                    stats_finish(bb, bb + 1, mr, mr + 1)
        a(f'ds_read_b64 {vr(X1R, 2)}, v22')
        a(f'ds_read_b64 {vr(X1R + 2, 2)}, v22 offset:256')

    l1 = a.newlabel('L_one'); lj = a.newlabel('L_p5j')
    a(f's_cmp_eq_u32 {sNV}, 1')
    a(f's_cbranch_scc1 {l1}')
    loop1(True)
    stamp('gemm3')
    GK, TMP, PK = 128, 136, 140
    gelu_consts(GK)
    steps = epi_steps(ACA, CSA, 0, TMP, GK, PK)
    q = []
    lda(0, q); lda(1, q)
    nxt = 2
    for ks in range(16):
        wait_for(q, ('a', ks))
        b = AR + 16 * (ks % 3)
        for tt in range(4):
            mfma(ACB + 4 * tt, W3B + 4 * ks, b + 4 * tt, None if ks == 0 else ACB + 4 * tt)
        while nxt < 16 and nxt <= ks + 2:
            lda(nxt, q); nxt += 1
        if steps and ks >= 1:
            steps.pop(0)()
    for f in steps:
        f()
    for f in epi_steps(ACB, CSB, 8 * 1024, TMP, GK, PK + 8):
        f()
    a('s_waitcnt vmcnt(0) lgkmcnt(0)')
    a(f's_branch {lj}')
    a.label(l1)
    loop1(False)
    w4_loads(16, 6)
    stamp('gemm3')
    GK, TMP, PK = 64, 72, 76
    gelu_consts(GK)
    for f in epi_steps(ACA, CSA, 0, TMP, GK, PK):
        f()
    a('s_waitcnt vmcnt(0) lgkmcnt(0)')
    a.label(lj)
    stamp('h3stored')
    a('s_barrier')
    a(f's_lshl_b32 {sE}, {sRB}, 3'); a(f's_add_u32 {sE}, {sE}, {sCS}')
    set_flag(WS_F5, sE, CM)

    l1 = a.newlabel('L_w4one')
    a(f's_cmp_eq_u32 {sNV}, 1')
    a(f's_cbranch_scc1 {l1}')
    w4_loads(0, 16)
    w4_loads(16, 6)
    a.label(l1)


def phase6():
    a(f's_lshl_b32 {sA}, {sCS}, 6'); a(f's_lshl_b32 {sB}, {sLO}, 4'); a(f's_add_u32 {sA}, {sA}, {sB}')
    a(f's_lshl_b32 {sA}, {sA}, 2'); a(f's_add_u32 {sA}, {sA}, {WS_MODF + 5 * 2048}')
    a('v_lshlrev_b32 v14, 4, v3')
    bload(16, 4, 14, WS, soff=sA, mods='sc1')
    poll(WS_F5, 'own')
    stamp('S5ok')
    a(f's_lshl_b32 {sA}, {sRB}, 1'); a(f's_lshr_b32 {sB}, {sWV}, 1'); a(f's_and_b32 {sB}, {sB}, 1')
    a(f's_add_u32 {sA}, {sA}, {sB}'); a(f's_mul_i32 {sA}, {sA}, {86 * 1024}')
    a(f's_mul_i32 {sB}, {sHI}, {44 * 1024}'); a(f's_add_u32 {sA}, {sA}, {sB}')
    a(f's_and_b32 {sB}, {sWV}, 1'); a(f's_lshl_b32 {sB}, {sB}, 10'); a(f's_add_u32 {sA}, {sA}, {sB}')
    a(f's_add_u32 {sE}, {sA}, {WS_H3}')
    a(f's_lshl_b32 {sF}, {sWV}, 10')

    def ring(s_):
        a(f's_add_u32 {sC}, {sE}, {2048 * s_}')
        if s_ == 21:
            a(f's_cmp_eq_u32 {sHI}, 1')
            a(f's_cselect_b32 {sC}, 0x7ff00000, {sC}')
        a(f's_add_u32 {sD}, {sF}, {8192 * (s_ % NSLOT)}')
        dma(4, vL16, WS, sD, soff=sC, mods='sc1')
    AHEAD = 6
    for s_ in range(AHEAD):
        ring(s_)
    a(f's_lshl_b32 {sA}, {sHI}, 12')
    a(f'v_add_u32 v32, {sA}, {vr(vVB)}')
    a('v_add_u32 v33, 65536, v32')
    a('v_add_u32 v34, 131072, v32')
    AR = 64
    ACC = 40

    def lda(s_):
        b = AR + 16 * (s_ % 4)
        off = 8192 * (s_ % NSLOT)
        ad, base = (32, 0) if off < 65536 else (33, 65536) if off < 131072 else (34, 131072)
        for tt in range(4):
            a(f'ds_read_b128 {vr(b + 4 * tt, 4)}, {vr(ad)} offset:{off - base + 2048 * (tt >> 1) + 256 * (tt & 1)}')
    issued = AHEAD
    groups = [(0, 2), (2, 4), (4, 7), (7, 10), (10, 13), (13, 16), (16, 19), (19, 22)]
    q = []
    nxt = 0
    for gi, (s0, s1) in enumerate(groups):
        a(f's_waitcnt vmcnt({issued - s1})')
        a('s_barrier')
        while nxt < s1 and nxt <= s0 + 2:
            lda(nxt); q += [nxt] * 4; nxt += 1
        for s_ in range(s0, s1):
            if issued < 22:
                assert issued < NSLOT or issued - NSLOT < s0
                ring(issued); issued += 1
            last = max(i for i, o in enumerate(q) if o == s_)
            a(f's_waitcnt lgkmcnt({min(15, len(q) - 1 - last)})')
            b = AR + 16 * (s_ % 4)
            for tt in range(4):
                mfma(ACC + 4 * tt, w4reg(s_), b + 4 * tt, None if s_ == 0 else ACC + 4 * tt)
            while nxt < s1 and nxt <= s_ + 3:
                lda(nxt); q += [nxt] * 4; nxt += 1
    stamp('gemm4')
    a(f's_lshl_b32 {sA}, {sWV}, 11')
    a(f's_add_u32 {sA}, {sA}, {L_EX}')
    a(f'v_add_u32 v35, {sA}, {vr(vL16)}')
    lk1 = a.newlabel('L_k1'); lkd = a.newlabel('L_kd')
    a(f's_cmp_eq_u32 {sHI}, 1')
    a(f's_cbranch_scc1 {lk1}')
    a(f'ds_write_b128 v35, {vr(ACC + 8, 4)}')
    a(f'ds_write_b128 v35, {vr(ACC + 12, 4)} offset:1024')
    a(f's_branch {lkd}')
    a.label(lk1)
    a(f'ds_write_b128 v35, {vr(ACC, 4)}')
    a(f'ds_write_b128 v35, {vr(ACC + 4, 4)} offset:1024')
    for k in range(8):
        a(f'v_mov_b32 {vr(ACC + k)}, {vr(ACC + 8 + k)}')
    a.label(lkd)
    a(f's_lshl_b32 {sA}, {sRB}, 6'); a(f's_lshl_b32 {sB}, {sHI}, 5'); a(f's_add_u32 {sA}, {sA}, {sB}')
    a(f's_lshl_b32 {sA}, {sA}, 10')
    a(f's_lshl_b32 {sB}, {sCS}, 7'); a(f's_add_u32 {sA}, {sA}, {sB}')
    a(f's_lshl_b32 {sB}, {sLO}, 5'); a(f's_add_u32 {sE}, {sA}, {sB}')
    a('v_lshlrev_b32 v36, 10, v2')
    a('v_lshl_add_u32 v36, v3, 3, v36')
    a('s_waitcnt lgkmcnt(0)')
    a('s_barrier')
    a(f's_xor_b32 {sA}, {sWV}, 4')
    a(f's_lshl_b32 {sA}, {sA}, 11')
    a(f's_add_u32 {sA}, {sA}, {L_EX}')
    a(f'v_add_u32 v35, {sA}, {vr(vL16)}')
    a('ds_read_b128 v[64:67], v35')
    a('ds_read_b128 v[68:71], v35 offset:1024')
    for e in range(2):
        for k in range(4):
            for (src, dst) in ((X1R + 2 * e + (k >> 1), 72 + 8 * e + k), (XS + 2 * e + (k >> 1), 76 + 8 * e + k)):
                if k & 1:
                    a(f'v_and_b32 {vr(dst)}, 0xffff0000, {vr(src)}')
                else:
                    a(f'v_lshlrev_b32 {vr(dst)}, 16, {vr(src)}')
    a('s_waitcnt lgkmcnt(0)')
    for e in range(2):
        for k in range(4):
            r = ACC + 4 * e + k
            a(f'v_add_f32 {vr(r)}, {vr(r)}, {vr(64 + 4 * e + k)}')
            a(f'v_add_f32 {vr(r)}, {vr(r)}, {vr(72 + 8 * e + k)}')
            a(f'v_fma_f32 {vr(r)}, {vr(16 + k)}, {vr(r)}, {vr(76 + 8 * e + k)}')
        a(f'v_cvt_pk_bf16_f32 {vr(88 + 2 * e)}, {vr(ACC + 4 * e)}, {vr(ACC + 4 * e + 1)}')
        a(f'v_cvt_pk_bf16_f32 {vr(89 + 2 * e)}, {vr(ACC + 4 * e + 2)}, {vr(ACC + 4 * e + 3)}')
    bstore(88, 2, 36, OUT, soff=sE)
    a(f's_add_u32 {sE}, {sE}, 16384')
    bstore(90, 2, 36, OUT, soff=sE)


def finish():
    lf = a.newlabel('L_fin')
    a('s_cmp_lg_u32 s2, 0')
    a(f's_cbranch_scc1 {lf}')
    a(f's_cmp_lg_u32 {sWV}, 0')
    a(f's_cbranch_scc1 {lf}')
    a(f'v_mov_b32 v14, {sT}')
    a(f'v_mov_b32 v15, {WS_EPOCH}')
    save_exec_mask('1')
    bstore(14, 1, 15, WS, mods='sc1')
    restore_exec()
    a.label(lf)
    if PADTO or STAMPS:
        a('s_waitcnt vmcnt(0)')
    if PADTO:
        lp = a.newlabel('L_pad'); lq = a.newlabel('L_padq')
        a('s_cmp_lg_u32 s2, 0')
        a(f's_cbranch_scc1 {lq}')
        a.label(lp)
        a('s_memrealtime s[98:99]')
        a('s_waitcnt lgkmcnt(0)')
        a('s_sub_u32 s98, s98, s3')
        a(f's_cmp_lt_u32 s98, {PADTO * 100}')
        a(f's_cbranch_scc1 {lp}')
        a.label(lq)
    stamp('end')
    if STAMPS:
        for i in range(len(stamp_names)):
            a(f'v_writelane_b32 v255, s{STAMP_REGS[i]}, {i}')
        a(f's_lshl_b32 {sA}, s2, 3')
        a(f's_add_u32 {sA}, {sA}, {sWV}')
        a(f's_lshl_b32 {sA}, {sA}, 8')
        a(f's_add_u32 {sA}, {sA}, {WS_DBG}')
        a(f'v_lshl_add_u32 v20, v1, 2, {sA}')
        bstore(255, 1, 20, WS)
        a('s_waitcnt vmcnt(0)')
        open('stamps.txt', 'w').write('\n'.join(stamp_names) + '\n')
    a.label('L_END')
    a('s_endpgm')


def build(debug=True):
    global DEBUG
    DEBUG = debug
    prologue()
    phase_a()
    phase_b()
    for name, fn in (('3', phase3), ('4', phase4), ('5', phase5), ('6', phase6)):
        if STOP_AFTER and STOP_AFTER < name and STOP_AFTER != '':
            break
        fn()
    finish()
    nops = a.fast_hazard_pass()
    errs = a.check_waits([{'s5': w, 's89': nv} for w in range(8) for nv in ((1, 2) if w < 3 else (1,))])
    for e in errs:
        print('WAIT-CHECK:', e, file=sys.stderr)
    hdr = open('adaLN_cond__ssm_conv_s4__mixer_s_mlp__prompt.s.ref').read().split('\n')
    head = [l for l in hdr if l.startswith(';') and '@launch' not in l and 'Override' not in l and 'grid=ceil' not in l]
    txt = '\n'.join(head) + '\n; @launch grid=(256,1,1) block=(512,1,1) lds=163840\n'
    txt += '.amdgcn_target "amdgcn-amd-amdhsa--gfx950"\n.text\n'
    txt += f'.globl {KNAME}\n.p2align 8\n.type {KNAME},@function\n{KNAME}:\n'
    txt += a.text()
    txt += f'''.section .rodata,"a"
.p2align 6
.amdhsa_kernel {KNAME}
  .amdhsa_next_free_vgpr 256
  .amdhsa_next_free_sgpr 102
  .amdhsa_accum_offset 256
  .amdhsa_group_segment_fixed_size 0
  .amdhsa_kernarg_size 152
  .amdhsa_user_sgpr_count 2
  .amdhsa_user_sgpr_kernarg_segment_ptr 1
  .amdhsa_system_sgpr_workgroup_id_x 1
  .amdhsa_float_denorm_mode_32 3
.end_amdhsa_kernel
'''
    print(f'instructions: {len(a.lines)}  hazard nops: {nops}', file=sys.stderr)
    return txt


if __name__ == '__main__':
    out = sys.argv[1] if len(sys.argv) > 1 else 'k.s'
    open(out, 'w').write(build(debug=os.environ.get('NODEBUG') is None))
```

```python
import sys, os, struct
sys.path.insert(0, os.path.dirname(os.path.abspath(__file__)))
from asmlib import Asm
from layout import *

KNAME = 'adaLN_cond__ssm_conv_s4__mixer_s_mlp__prompt_kernel'
STOP_AFTER = os.environ.get('STOP_AFTER', '')
STAMPS = os.environ.get('STAMPS') is not None
PADTO = int(os.environ.get('PADTO', '0'))
SPIN_MAX = 20000
XP = os.environ.get('XP', '').split(',')
NOFAST = os.environ.get('NOFAST') is not None
LDM = os.environ.get('LDM', 'sc1')
PRETOUCH = int(os.environ.get('PRETOUCH', '0'))
NOSCOUT = os.environ.get('NOSCOUT') is not None
FASTX = os.environ.get('FASTX') is not None
CM = '' if FASTX else 'sc1'

sT = 's4'; sWV = 's5'; sX = 's6'; sJ = 's7'
U, WS, OUT = 8, 12, 16
ARE, AIM, BRE, BIM, CRE, CIM = 20, 24, 28, 32, 36, 40
LDT, DSK, CC, WMOD, W1, W2, W3, W4 = 44, 48, 52, 56, 60, 64, 68, 72
sCH0 = 's76'; sRB = 's77'; sCS = 's78'; sNT3 = 's79'
sA, sB, sC, sD = 's80', 's81', 's82', 's83'
sSPIN = 's84'; sLO = 's85'; sHI = 's86'
sE, sF = 's87', 's88'; sNV = 's89'
mK1, mK2, mK3, mDG = 90, 92, 94, 96
sX0 = 98
sT32 = 's100'; sCQ = 's101'
mFA, mSL = 64, 66
TSRD = 92
sSD, sSN, sSS, sSB = 's90', 's91', 's96', 's97'
sSR, sSO = 's74', 's75'

vL16, vVB = 4, 5
XS, X1R = 6, 10


def srd(n):
    return f's[{n}:{n + 3}]'


def vr(a, n=1):
    return f'v{a}' if n == 1 else f'v[{a}:{a + n - 1}]'


def fconst(x):
    return hex(struct.unpack('<I', struct.pack('<f', x))[0])


L_G = 0; G_ROW = 544; G_CH = 48 * G_ROW
L_E = 2 * G_CH; E_CH = 16 * G_ROW
L_KT = L_E + 2 * E_CH; KT_CH = 5120; KT_ZERO = 2559
L_COPY = L_KT + 2 * KT_CH; CP_R = 4160; CP_CH = 4 * CP_R
L_STG = L_COPY + 2 * CP_CH
L_PART = 0
L_XC = 143360
L_H = L_XC + 8192; H_CH = 4672
assert L_STG + 4 * 4096 <= L_XC and L_H + 2 * H_CH <= 163840
L_X = 0
L_HF = 32768
L_A4 = 65536
L_XS = 114688
L_CB = 122880
L_ST = L_CB + 4096
L_ST3 = L_ST + 1024
L_X1 = 0
L_ST5 = 147456
NSLOT = 18
L_EX = 147456

a = Asm()
stamp_names = []
STAMP_REGS = [3] + list(range(20, 48)) + list(range(52, 60))
STAMPSET = os.environ.get('STAMPSET', 'all')
LATE_ONLY = ('entry', 'S4ok', 'x1landed', 'k5a', 'k5b', 'k12a', 'k12b', 'gemm3', 'loop2', 'epiB', 'h3stored', 'S5ok', 'g0', 'g1', 'g2', 'g3', 'g4', 'g5', 'g6', 'g7', 'gemm4', 'exch', 'end')


def stamp(name):
    if not STAMPS:
        return
    if STAMPSET == 'late' and name not in LATE_ONLY:
        return
    if STAMPSET == 'all' and name in ('k5a', 'k5b', 'k12a', 'k12b', 'loop2', 'epiB', 'g0', 'g1', 'g2', 'g3', 'g4', 'g5', 'g6', 'g7', 'exch'):
        return
    if name in stamp_names:
        i = stamp_names.index(name)
    else:
        i = len(stamp_names)
        stamp_names.append(name)
    a(f's_memrealtime s[{sX0}:{sX0 + 1}]')
    a('s_waitcnt lgkmcnt(0)')
    a(f's_mov_b32 s{STAMP_REGS[i]}, s{sX0}')


def bload(dst, n, voff, s, imm=0, soff='0', mods=''):
    op = {1: 'buffer_load_dword', 2: 'buffer_load_dwordx2', 4: 'buffer_load_dwordx4', 'u16': 'buffer_load_ushort'}[n]
    cnt = 1 if n == 'u16' else n
    a(f'{op} {vr(dst, cnt)}, {vr(voff)}, {srd(s)}, {soff} offen' + (f' offset:{imm}' if imm else '') + (' ' + mods if mods else ''))


def bstore(src, n, voff, s, imm=0, soff='0', mods=''):
    op = {1: 'buffer_store_dword', 2: 'buffer_store_dwordx2', 4: 'buffer_store_dwordx4'}[n]
    a(f'{op} {vr(src, n)}, {vr(voff)}, {srd(s)}, {soff} offen' + (f' offset:{imm}' if imm else '') + (' ' + mods if mods else ''))


def dma(n, voff, s, m0, soff='0', mods=''):
    a(f's_mov_b32 m0, {m0}')
    op = {1: 'buffer_load_dword', 4: 'buffer_load_dwordx4'}[n]
    a(f'{op} {vr(voff)}, {srd(s)}, {soff} offen' + (' ' + mods if mods else '') + ' lds')


def cstore(src, n, voff, soff):
    if NOFAST:
        bstore(src, n, voff, WS, soff=soff, mods='sc1')
        return
    a(f's_mov_b64 exec, s[{mFA}:{mFA + 1}]')
    bstore(src, n, voff, WS, soff=soff)
    a(f's_mov_b64 exec, s[{mSL}:{mSL + 1}]')
    bstore(src, n, voff, WS, soff=soff, mods='sc1')
    a('s_mov_b64 exec, -1')


def mfma(d, x, y, c=None):
    cc = '0' if c is None else vr(c, 4)
    a(f'v_mfma_f32_16x16x32_bf16 {vr(d, 4)}, {vr(x, 4)}, {vr(y, 4)}, {cc}')


def cmul(d, x, y):
    a(f'v_pk_mul_f32 {vr(d, 2)}, {vr(x, 2)}, {vr(y, 2)} op_sel:[0,0] op_sel_hi:[0,1]')
    a(f'v_pk_fma_f32 {vr(d, 2)}, {vr(x, 2)}, {vr(y, 2)}, {vr(d, 2)} op_sel:[1,1,0] op_sel_hi:[1,0,1] neg_lo:[1,0,0]')


def save_exec_mask(mask):
    a(f's_mov_b64 s[{sX0}:{sX0 + 1}], exec')
    if isinstance(mask, int) and mask > 64:
        a(f's_mov_b32 exec_lo, {hex(mask & 0xffffffff)}')
        a(f's_mov_b32 exec_hi, {hex(mask >> 32)}')
    else:
        a(f's_mov_b64 exec, {mask}')


def restore_exec():
    a(f's_mov_b64 exec, s[{sX0}:{sX0 + 1}]')


def prologue():
    if PADTO:
        a('s_memrealtime s[78:79]')
        a('s_waitcnt lgkmcnt(0)')
        a('s_mov_b32 s3, s78')
    a('s_cmp_ge_u32 s2, 256')
    a('s_cbranch_scc1 L_END')
    ptrs = [(U, 0), (WS, 144), (ARE, 8), (AIM, 16), (BRE, 24), (BIM, 32), (CRE, 40), (CIM, 48), (LDT, 56), (CC, 112),
            (WMOD, 120), (W1, 80), (W2, 88), (W3, 96), (W4, 104), (DSK, 64), (OUT, 128)]
    for r, off in ptrs:
        a(f's_load_dwordx2 s[{r}:{r + 1}], s[0:1], {off}')
    sizes = {U: 2 * 1024 * 1024, ARE: 131072, AIM: 131072, BRE: 131072, BIM: 131072, CRE: 131072, CIM: 131072,
             LDT: 1024, DSK: 1024, W1: 524288, W2: 524288, W3: 512 * F_ * 2, W4: 512 * F_ * 2, CC: 1024,
             WMOD: 512 * 3072 * 2, OUT: 2 * 1024 * 1024, WS: WS_USED + (WS_DBG_SIZE if DEBUG else 0)}
    a('v_lshrrev_b32 v2, 6, v0')
    a('v_and_b32 v1, 63, v0')
    a(f'v_readfirstlane_b32 {sWV}, v2')
    for r, sz in sizes.items():
        a(f's_mov_b32 s{r + 2}, {sz}')
        a(f's_mov_b32 s{r + 3}, 0x20000')
    a('v_and_b32 v2, 15, v1')
    a('v_lshrrev_b32 v3, 4, v1')
    a(f'v_lshlrev_b32 {vr(vL16)}, 4, v1')
    a(f's_and_b32 {sX}, s2, 7')
    a(f's_lshr_b32 {sJ}, s2, 3')
    a(f's_lshl_b32 {sCH0}, {sX}, 6')
    a(f's_lshl_b32 {sA}, {sJ}, 1')
    a(f's_add_u32 {sCH0}, {sCH0}, {sA}')
    a(f's_lshl_b32 {sRB}, {sX}, 2')
    a(f's_lshr_b32 {sA}, {sJ}, 3')
    a(f's_add_u32 {sRB}, {sRB}, {sA}')
    a(f's_and_b32 {sCS}, {sJ}, 7')
    a(f's_lshl_b32 {sT32}, {sRB}, 1')
    a(f's_and_b32 {sA}, {sCS}, 1')
    a(f's_add_u32 {sT32}, {sT32}, {sA}')
    a(f's_lshr_b32 {sCQ}, {sCS}, 1')
    a('v_mov_b32 v102, 0')
    a('s_waitcnt lgkmcnt(0)')
    a(f's_mov_b64 s[{TSRD}:{TSRD + 1}], s[{W1}:{W1 + 1}]')
    a(f's_mov_b32 s{TSRD + 2}, 524288')
    a(f's_mov_b32 s{TSRD + 3}, 0x20000')


EXA = 112
KMA, KMB, KMD = 108, 109, 104


def precompute():
    a(f's_load_dword {sT}, s[{WS}:{WS + 1}], {WS_EPOCH}')
    a(f'v_lshlrev_b32 {vr(vVB)}, 4, v2')
    a(f'v_lshl_add_u32 {vr(vVB)}, v3, 9, {vr(vVB)}')
    a('v_and_b32 v16, 255, v0')
    a('v_lshlrev_b32 v16, 3, v16')
    a(f's_lshr_b32 {sA}, {sWV}, 2')
    a(f's_mul_i32 {sA}, {sA}, {KT_CH}')
    a(f's_add_u32 {sA}, {sA}, {L_KT}')
    a(f'v_cvt_f32_u32 v17, {sA}')
    a(f's_add_u32 {sA}, {sA}, {2 * KT_ZERO}')
    a(f'v_mov_b32 v18, {sA}')
    a('v_cvt_f32_u32 v19, v16')
    a('v_cmp_eq_u32 vcc, 0, v16')
    for d in range(1, 12):
        dd = d - 4
        r = EXA + d
        a(f'v_add_f32 v20, {float(dd)}, v19' if -16 <= dd <= 4 and float(dd) in (-4.0, -2.0, -1.0, 1.0, 2.0, 4.0, 0.5) else
          f'v_add_f32 v20, {fconst(float(dd))}, v19')
        a('v_cvt_pk_bf16_f32 v20, v20, v20')
        a('v_and_b32 v20, 0xffff0000, v20')
        a('v_fma_f32 v20, v20, 2.0, v17')
        a(f'v_cvt_u32_f32 {vr(r)}, v20')
        if dd < 0:
            a(f'v_cndmask_b32 {vr(r)}, {vr(r)}, v18, vcc')
    a(f's_cmp_ge_u32 {sWV}, 3')
    a(f's_cselect_b32 {sA}, 1, 0')
    a(f's_mul_i32 {sB}, {sA}, 3')
    a(f's_sub_u32 {sB}, {sWV}, {sB}')
    a(f's_mul_i32 {sC}, {sA}, {G_CH}')
    a(f's_mul_i32 {sD}, {sB}, {16 * G_ROW}')
    a(f's_add_u32 {sC}, {sC}, {sD}')
    a(f'v_mul_u32_u24 v16, {G_ROW}, v2')
    a('v_lshl_add_u32 v16, v3, 4, v16')
    a(f'v_add_u32 {vr(KMA)}, {sC}, v16')
    a(f's_mul_i32 {sC}, {sA}, {E_CH}')
    a(f's_add_u32 {sC}, {sC}, {L_E}')
    a(f'v_add_u32 {vr(KMB)}, {sC}, v16')
    bases = [(0, 4, 128, 132), (256, 384, 512, 516), (1024, 1536, 2048, 2049)]
    steps = [(1, 1, 1, 1), (2, 2, 128, 128), (128, 128, 128, 128)]
    pk2 = lambda x, y: x | (y << 16)
    pk4 = lambda t: t[0] | (t[1] << 8) | (t[2] << 16) | (t[3] << 24)
    for reg, vals in ((sC, [pk2(b[0], b[1]) for b in bases]), (sD, [pk2(b[2], b[3]) for b in bases]),
                      (sE, [pk4(s) for s in steps])):
        a(f's_mov_b32 {reg}, {vals[0]}')
        a(f's_cmp_eq_u32 {sB}, 1')
        a(f's_cselect_b32 {reg}, {vals[1]}, {reg}')
        a(f's_cmp_eq_u32 {sB}, 2')
        a(f's_cselect_b32 {reg}, {vals[2]}, {reg}')
    a('v_cmp_gt_u32 vcc, 2, v3')
    a(f'v_mov_b32 v16, {sD}')
    a(f'v_mov_b32 v17, {sC}')
    a('v_cndmask_b32 v16, v16, v17, vcc')
    a('v_and_b32 v17, 1, v3')
    a('v_lshlrev_b32 v17, 4, v17')
    a('v_bfe_u32 v16, v16, v17, 16')
    a('v_lshlrev_b32 v17, 3, v3')
    a(f'v_bfe_u32 v17, {sE}, v17, 8')
    a('v_lshl_add_u32 v16, v2, 3, v16')
    a(f's_mul_i32 {sC}, {sA}, {KT_CH}')
    a(f's_add_u32 {sC}, {sC}, {L_KT}')
    a(f'v_lshlrev_b32 v16, 1, v16')
    a(f'v_add_u32 {vr(KMD)}, {sC}, v16')
    a('v_lshlrev_b32 v17, 1, v17')
    for r in range(1, 4):
        a(f'v_add_u32 {vr(KMD + r)}, {vr(KMD + r - 1)}, v17')
    a('s_waitcnt lgkmcnt(0)')
    a(f's_add_u32 {sT}, {sT}, 1')


def role_k():
    a(f's_lshr_b32 {sA}, {sWV}, 1')
    a(f's_add_u32 {sB}, {sCH0}, {sA}')
    a(f's_and_b32 {sC}, {sWV}, 1')
    a(f's_lshl_b32 {sC}, {sC}, 6')
    a(f's_lshl_b32 {sD}, {sB}, 7')
    a(f's_add_u32 {sD}, {sD}, {sC}')
    a(f'v_add_u32 v21, {sD}, v1')
    a('v_lshlrev_b32 v21, 1, v21')
    a(f's_lshl_b32 {sB}, {sB}, 1')
    a(f'v_mov_b32 v22, {sB}')
    for i, s in enumerate((ARE, AIM, BRE, BIM, CRE, CIM)):
        bload(24 + i, 'u16', 21, s)
    bload(30, 'u16', 22, LDT)
    if PRETOUCH:
        a(f'v_lshlrev_b32 v126, {PRETOUCH}, v1')
        a('v_min_u32 v126, ' + str(WS_USED - 4) + ', v126')
        bload(127, 1, 126, WS)
    a(f's_mul_i32 {sB}, {sA}, {G_CH}')
    a(f'v_add_u32 v22, {sC}, v1')
    a('v_lshlrev_b32 v22, 2, v22')
    a(f'v_add_u32 v23, {sB}, v22')
    a(f's_mul_i32 {sB}, {sA}, {E_CH}')
    a(f's_add_u32 {sB}, {sB}, {L_E}')
    a(f'v_add_u32 v22, {sB}, v22')
    precompute()
    swz_issue()
    a('s_waitcnt vmcnt(0)')
    stamp('r_loaded')
    for i in range(7):
        a(f'v_lshlrev_b32 {vr(24 + i)}, 16, {vr(24 + i)}')
    LOG2E = 1.4426950408889634
    hi = struct.unpack('<f', struct.pack('<f', LOG2E))[0]
    lo = LOG2E - hi
    a(f'v_mul_f32 v32, {fconst(hi)}, v30')
    a(f'v_mov_b32 v31, {fconst(hi)}')
    a('v_fma_f32 v33, v30, v31, -v32')
    a(f'v_fmamk_f32 v33, v30, {fconst(lo)}, v33')
    a('v_exp_f32 v32, v32')
    a(f'v_mul_f32 v33, {fconst(0.6931471805599453)}, v33')
    a('v_fma_f32 v32, v32, v33, v32')
    a('v_cvt_pk_bf16_f32 v32, v32, v32')
    a('v_lshlrev_b32 v30, 16, v32')
    a('v_mul_f32 v24, v24, v30')
    a('v_mul_f32 v25, v25, v30')
    a(f'v_mul_f32 v24, {fconst(hi)}, v24')
    a(f'v_mul_f32 v25, {fconst(1.0 / (2 * 3.141592653589793))}, v25')
    a('v_mul_f32 v26, v26, v30')
    a('v_mul_f32 v27, v27, v30')
    cmul(32, 26, 28)
    for d, m in ((34, 1.0), (36, 8.0), (38, 128.0)):
        if m == 1.0:
            a('v_exp_f32 v40, v24'); a('v_fract_f32 v41, v25')
        else:
            a(f'v_mul_f32 v40, {fconst(m)}, v24')
            a(f'v_mul_f32 v41, {fconst(m)}, v25')
            a('v_exp_f32 v40, v40'); a('v_fract_f32 v41, v41')
        a('v_cos_f32 v42, v41')
        a('v_sin_f32 v43, v41')
        a(f'v_mul_f32 {vr(d)}, v40, v42')
        a(f'v_mul_f32 {vr(d + 1)}, v40, v43')
    P = {1: 34, 2: 44, 3: 46, 4: 48, 5: 50, 6: 52, 7: 54}
    cmul(P[2], P[1], P[1])
    cmul(P[3], P[2], P[1])
    cmul(P[4], P[2], P[2])
    cmul(P[5], P[4], P[1])
    cmul(P[6], P[4], P[2])
    cmul(P[7], P[4], P[3])

    def putG(rho, x):
        a(f'v_cvt_pk_bf16_f32 v31, {vr(x)}, -{vr(x + 1)}')
        a(f'ds_write_b32 v23, v31 offset:{rho * G_ROW}')

    def putE(j, x):
        a(f'v_cvt_pk_bf16_f32 v29, {vr(x)}, {vr(x + 1)}')
        a(f'ds_write_b32 v22, v29 offset:{j * G_ROW}')

    rows = {}
    for rho in range(41):
        if rho < 16:
            i, b = rho >> 3, rho & 7
        elif rho < 24:
            i, b = 2 + ((rho - 16) >> 2), 2 * ((rho - 16) & 3)
        elif rho < 32:
            i, b = 4 + ((rho - 24) & 3), 4 * ((rho - 24) >> 2)
        else:
            i, b = 8 + (rho - 32), 0
        rows.setdefault(i, []).append((rho, b))
    a('v_mov_b32 v29, 0x00003f80')
    a('ds_write_b32 v22, v29 offset:0')
    putE(1, 36)
    Ecur = 36
    Q = 32
    for i in range(17):
        for n_, (rho, b) in enumerate(rows[i]):
            if b == 0:
                putG(rho, Q)
            else:
                t = 64 + 2 * (n_ & 1)
                cmul(t, Q, P[b])
                putG(rho, t)
        if i < 16:
            nq = 60 if Q != 60 else 62
            cmul(nq, Q, 38)
            Q = nq
        j = i + 2
        if j < 16:
            ne = 56 if Ecur != 56 else 58
            cmul(ne, Ecur, 36)
            putE(j, ne)
            Ecur = ne
    a('v_mov_b32 v14, v102')
    swz_dma()


def swz_issue():
    a(f's_lshl_b32 {sA}, s2, 2')
    a(f's_add_u32 {sA}, {sA}, {sWV}')
    a(f's_add_u32 {sA}, {sA}, 128')
    a(f's_cmp_lt_u32 {sA}, 952')
    a(f's_cselect_b32 {sSN}, 4, 0')
    a(f's_cselect_b32 {sA}, {sA}, 128')
    a(f's_mov_b64 s[{TSRD}:{TSRD + 1}], s[{W1}:{W1 + 1}]')
    a(f's_mov_b32 s{TSRD + 2}, 524288')
    a(f's_mov_b32 s{TSRD + 3}, 0x20000')
    a(f's_mov_b32 {sSD}, {WS_W1S}')
    a(f's_mov_b32 {sSS}, 16384')
    a(f's_mov_b32 {sF}, 1024')
    a(f's_mov_b32 {sB}, {sA}')
    a(f's_cmp_ge_u32 {sA}, 128')
    a(f's_cselect_b64 s[{TSRD}:{TSRD + 1}], s[{W2}:{W2 + 1}], s[{TSRD}:{TSRD + 1}]')
    a(f's_cselect_b32 {sSD}, {WS_W2S}, {sSD}')
    a(f's_cselect_b32 {sC}, 128, 0')
    a(f's_sub_u32 {sB}, {sA}, {sC}')
    a(f's_cmp_ge_u32 {sA}, 256')
    a(f's_cselect_b64 s[{TSRD}:{TSRD + 1}], s[{W3}:{W3 + 1}], s[{TSRD}:{TSRD + 1}]')
    a(f's_cselect_b32 s{TSRD + 2}, {512 * F_ * 2}, s{TSRD + 2}')
    a(f's_cselect_b32 {sSD}, {WS_W3S}, {sSD}')
    a(f's_cselect_b32 {sF}, {F_ * 2}, {sF}')
    a(f's_cselect_b32 {sC}, 256, 0')
    a(f's_cselect_b32 {sD}, 1, 0')
    a(f's_cmp_lg_u32 {sD}, 0')
    a(f's_sub_u32 {sC}, {sA}, {sC}')
    a(f's_cmp_lg_u32 {sD}, 0')
    a(f's_cselect_b32 {sB}, {sC}, {sB}')
    a(f's_and_b32 {sC}, {sB}, 15')
    a(f's_lshr_b32 {sD}, {sB}, 4')
    a(f's_mov_b32 {sE}, 16')
    a(f's_cmp_ge_u32 {sA}, 608')
    a(f's_cselect_b64 s[{TSRD}:{TSRD + 1}], s[{W4}:{W4 + 1}], s[{TSRD}:{TSRD + 1}]')
    a(f's_cselect_b32 {sSD}, {WS_W4S}, {sSD}')
    a(f's_cselect_b32 {sF}, 1024, {sF}')
    a(f's_cselect_b32 {sE}, 43, {sE}')
    a(f's_cselect_b32 {sSS}, {43 * 1024}, {sSS}')
    a(f's_sub_u32 {sB}, {sA}, 608')
    a(f's_lshr_b32 {sSB}, {sB}, 3')
    a(f's_and_b32 {sB}, {sB}, 7')
    a(f's_cmp_ge_u32 {sA}, 608')
    a(f's_cselect_b32 {sC}, {sSB}, {sC}')
    a(f's_cselect_b32 {sD}, {sB}, {sD}')
    a(f's_cselect_b32 {sB}, 0, {sD}')
    a(f's_cmp_eq_u32 {sB}, 21')
    a(f's_cselect_b32 {sB}, 2, 4')
    a(f's_min_u32 {sSN}, {sSN}, {sB}')
    a(f's_lshl_b32 {sB}, {sD}, 2')
    a(f's_mul_i32 {sB}, {sB}, {sE}')
    a(f's_add_u32 {sB}, {sB}, {sC}')
    a(f's_lshl_b32 {sB}, {sB}, 10')
    a(f's_add_u32 {sSD}, {sSD}, {sB}')
    a(f's_mul_i32 {sC}, {sC}, {sF}')
    a(f's_lshl_b32 {sC}, {sC}, 5')
    a(f's_lshl_b32 {sD}, {sD}, 7')
    a(f's_add_u32 {sC}, {sC}, {sD}')
    a('v_lshrrev_b32 v100, 3, v1')
    a(f'v_mul_lo_u32 v100, v100, {sF}')
    a('v_and_b32 v101, 7, v1')
    a('v_lshl_add_u32 v102, v101, 4, v100')
    a(f's_lshl_b32 {sB}, {sWV}, 12')
    a(f's_add_u32 {sSB}, {sB}, {L_STG}')
    a(f's_lshl_b32 {sSR}, {sF}, 3')
    a(f's_mov_b32 {sSO}, {sC}')


def swz_dma():
    a(f's_mov_b32 {sC}, {sSO}')
    for q in range(4):
        if q:
            a(f's_add_u32 {sC}, {sC}, {sSR}')
        a(f's_add_u32 {sB}, {sSB}, {q * 1024}')
        dma(4, 14, TSRD, sB, soff=sC)


def swz_finish():
    a('v_lshrrev_b32 v46, 2, v2')
    a('v_lshl_add_u32 v46, v3, 3, v46')
    a('v_lshlrev_b32 v46, 7, v46')
    a('v_and_b32 v47, 3, v2')
    a('v_lshl_add_u32 v46, v47, 3, v46')
    a(f'v_add_u32 v46, {sSB}, v46')
    for nt in range(4):
        a(f'ds_read_b64_tr_b16 {vr(48 + 4 * nt, 2)}, v46 offset:{32 * nt}')
        a(f'ds_read_b64_tr_b16 {vr(50 + 4 * nt, 2)}, v46 offset:{32 * nt + 512}')
    a('s_waitcnt lgkmcnt(0)')
    a(f's_mov_b32 {sA}, {sSD}')
    a(f's_mov_b32 {sB}, 0x7ff00000')
    for nt in range(4):
        a(f's_cmp_gt_u32 {sSN}, {nt}')
        a(f's_cselect_b32 {sC}, {sA}, {sB}')
        bstore(48 + 4 * nt, 4, vL16, WS, soff=sC, mods='sc1')
        a(f's_add_u32 {sA}, {sA}, {sSS}')


def role_stats():
    a(f's_lshl_b32 {sA}, s2, 13')
    a(f's_add_u32 {sB}, {sA}, 4096')
    for i in range(8):
        bload(24 + 4 * i, 4, vL16, U, imm=(i & 3) * 1024, soff=(sA if i < 4 else sB))
    precompute()
    a('v_mov_b32 v23, 0x3f803f80')
    a('s_waitcnt vmcnt(7)')
    stamp('r_loaded')
    for i in range(8):
        a(f's_waitcnt vmcnt({7 - i})')
        b = 24 + 4 * i
        a(f'v_dot2_f32_bf16 {vr(60 + i)}, {vr(b)}, v23, 0')
        a(f'v_dot2_f32_bf16 {vr(68 + i)}, {vr(b)}, {vr(b)}, 0')
        for k in range(1, 4):
            a(f'v_dot2c_f32_bf16 {vr(60 + i)}, {vr(b + k)}, v23')
            a(f'v_dot2c_f32_bf16 {vr(68 + i)}, {vr(b + k)}, {vr(b + k)}')
    for base in (60, 68):
        for i in range(4):
            a(f'v_permlane32_swap_b32 {vr(base + i)}, {vr(base + i + 4)}')
        for i in range(4):
            a(f'v_add_f32 {vr(base + i)}, {vr(base + i)}, {vr(base + i + 4)}')
    for base in (60, 68):
        for i in range(2):
            a(f'v_permlane16_swap_b32 {vr(base + i)}, {vr(base + i + 2)}')
        for i in range(2):
            a(f'v_add_f32 {vr(base + i)}, {vr(base + i)}, {vr(base + i + 2)}')
    for sh in (1, 2, 4, 8):
        for r in (60, 61, 68, 69):
            a(f'v_add_f32_dpp {vr(r)}, {vr(r)}, {vr(r)} row_ror:{sh} row_mask:0xf bank_mask:0xf')
    for p in range(2):
        S, Q = 60 + p, 68 + p
        d = 72 + 4 * p
        a(f'v_mul_f32 {vr(S)}, {fconst(1.0 / 512)}, {vr(S)}')
        a(f'v_mul_f32 {vr(Q)}, {fconst(1.0 / 512)}, {vr(Q)}')
        a(f'v_fma_f32 {vr(Q)}, -{vr(S)}, {vr(S)}, {vr(Q)}')
        a(f'v_max_f32 {vr(Q)}, 0, {vr(Q)}')
        a(f'v_add_f32 {vr(Q)}, {fconst(1e-5)}, {vr(Q)}')
        a(f'v_rsq_f32 {vr(d)}, {vr(Q)}')
        a(f'v_mov_b32 {vr(d + 1)}, {sT}')
        a(f'v_mov_b32 {vr(d + 3)}, {sT}')
        a(f'v_mul_f32 {vr(d + 2)}, {vr(S)}, {vr(d)}')
    a(f's_lshl_b32 {sA}, s2, 7')
    a(f's_add_u32 {sA}, {sA}, {WS_STATS}')
    a('v_lshlrev_b32 v21, 5, v3')
    save_exec_mask(0x0001000100010001)
    bstore(72, 4, 21, WS, soff=sA, mods='sc1')
    bstore(76, 4, 21, WS, imm=16, soff=sA, mods='sc1')
    restore_exec()
    a(f's_getreg_b32 {sB}, hwreg(HW_REG_XCC_ID)')
    a(f's_lshl_b32 {sA}, {sRB}, 3'); a(f's_add_u32 {sA}, {sA}, {sCS}'); a(f's_lshl_b32 {sA}, {sA}, 2')
    a(f's_add_u32 {sA}, {sA}, {WS_XID}')
    a(f'v_mov_b32 v14, {sB}')
    a('v_mov_b32 v15, 0')
    save_exec_mask('1')
    bstore(14, 1, 15, WS, soff=sA, mods='sc1')
    restore_exec()
    stamp('r_pub')


L_SIL = 139264


def role_mod():
    lskip = a.newlabel('L_nomod'); ldone = a.newlabel('L_moddone')
    a('s_cmp_ge_u32 s2, 192')
    a(f's_cbranch_scc1 {lskip}')
    a(f's_mul_i32 {sA}, {sJ}, 43')
    a(f's_lshr_b32 {sA}, {sA}, 8')
    a(f's_mul_i32 {sB}, {sA}, 6')
    a(f's_sub_u32 {sB}, {sJ}, {sB}')
    a(f's_lshl_b32 {sB}, {sB}, 3')
    a(f's_add_u32 {sNV}, {sB}, {sX}')
    a(f's_lshl_b32 {sA}, {sA}, 1')
    a(f's_add_u32 {sA}, {sA}, {sWV}')
    a(f's_sub_u32 {sNT3}, {sA}, 5')
    a('v_lshlrev_b32 v22, 1, v1')
    a(f's_lshl_b32 {sA}, {sNT3}, 7')
    bload(24, 'u16', 22, CC, soff=sA)
    a('v_lshrrev_b32 v21, 3, v1')
    a('v_mul_u32_u24 v23, 6144, v21')
    a('v_and_b32 v40, 7, v1')
    a('v_lshl_add_u32 v23, v40, 4, v23')
    a(f's_mul_i32 {sA}, {sNT3}, {64 * 6144}')
    a(f's_lshl_b32 {sB}, {sNV}, 7')
    a(f's_add_u32 {sA}, {sA}, {sB}')
    for i in range(8):
        if i:
            a(f's_add_u32 {sA}, {sA}, {8 * 6144}')
        bload(64 + 4 * i, 4, 23, WMOD, soff=sA)
    precompute()
    a('s_waitcnt vmcnt(8)')
    stamp('r_loaded')
    a('v_lshlrev_b32 v24, 16, v24')
    a(f'v_mul_f32 v58, {fconst(-1.4426950408889634)}, v24')
    a('v_exp_f32 v58, v58')
    a('v_add_f32 v58, 1.0, v58')
    a('v_rcp_f32 v58, v58')
    a('v_mul_f32 v58, v58, v24')
    a('v_cvt_pk_bf16_f32 v58, v58, v58')
    a('v_and_b32 v56, 0xffff, v58')
    a('v_and_b32 v57, 0xffff0000, v58')
    a(f's_sub_u32 {sA}, {sWV}, 5')
    a(f's_lshl_b32 {sA}, {sA}, 9')
    a(f's_add_u32 {sA}, {sA}, {L_SIL}')
    a('v_and_b32 v25, 7, v1')
    a('v_lshlrev_b32 v25, 5, v25')
    a('v_lshrrev_b32 v26, 3, v1')
    a('v_lshl_add_u32 v25, v26, 2, v25')
    a(f'v_add_u32 v25, {sA}, v25')
    a('ds_write_b32 v25, v56')
    a('ds_write_b32 v25, v57 offset:256')
    a(f'v_lshl_add_u32 v25, v21, 5, {sA}')
    a('s_waitcnt lgkmcnt(0)')
    a('ds_read_b128 v[24:27], v25') if False else None
    a('ds_read_b128 v[28:31], v25')
    a('ds_read_b128 v[32:35], v25 offset:16')
    a('ds_read_b128 v[40:43], v25 offset:256')
    a('ds_read_b128 v[44:47], v25 offset:272')
    a('s_waitcnt lgkmcnt(0)')
    ACC = 48
    for i in range(8):
        a(f's_waitcnt vmcnt({7 - i})')
        b = 64 + 4 * i
        for k in range(4):
            if i == 0:
                a(f'v_dot2_f32_bf16 {vr(ACC + 2 * k)}, {vr(b + k)}, {vr(28 + i)}, 0')
                a(f'v_dot2_f32_bf16 {vr(ACC + 1 + 2 * k)}, {vr(b + k)}, {vr(40 + i)}, 0')
            else:
                a(f'v_dot2c_f32_bf16 {vr(ACC + 2 * k)}, {vr(b + k)}, {vr(28 + i)}')
                a(f'v_dot2c_f32_bf16 {vr(ACC + 1 + 2 * k)}, {vr(b + k)}, {vr(40 + i)}')
    for i in range(4):
        a(f'v_permlane32_swap_b32 {vr(ACC + i)}, {vr(ACC + 4 + i)}')
    for i in range(4):
        a(f'v_add_f32 {vr(ACC + i)}, {vr(ACC + i)}, {vr(ACC + 4 + i)}')
    for i in range(2):
        a(f'v_permlane16_swap_b32 {vr(ACC + i)}, {vr(ACC + 2 + i)}')
    for i in range(2):
        a(f'v_add_f32 {vr(ACC + i)}, {vr(ACC + i)}, {vr(ACC + 2 + i)}')
    for r in (ACC, ACC + 1):
        a(f'v_add_f32_dpp {vr(r)}, {vr(r)}, {vr(r)} row_ror:8 row_mask:0xf bank_mask:0xf')
    a('v_and_b32 v21, 1, v3')
    a('v_lshlrev_b32 v21, 1, v21')
    a('v_lshrrev_b32 v22, 1, v3')
    a('v_lshl_add_u32 v21, v22, 2, v21')
    a('v_and_b32 v22, 7, v1')
    a('v_lshl_add_u32 v21, v22, 3, v21')
    a('v_lshlrev_b32 v21, 3, v21')
    a(f's_mul_i32 {sA}, {sNT3}, 3072')
    a(f's_lshl_b32 {sB}, {sNV}, 6')
    a(f's_add_u32 {sA}, {sA}, {sB}')
    a(f's_lshl_b32 {sA}, {sA}, 3')
    a(f's_add_u32 {sA}, {sA}, {WS_MODG}')
    a(f'v_mov_b32 {vr(ACC + 2)}, {vr(ACC + 1)}')
    a(f'v_mov_b32 {vr(ACC + 1)}, {sT}')
    a(f'v_mov_b32 {vr(ACC + 3)}, {sT}')
    save_exec_mask(0x00ff00ff00ff00ff)
    bstore(ACC, 4, 21, WS, soff=sA, mods='sc1')
    restore_exec()
    stamp('r_pub')
    a(f's_branch {ldone}')
    a.label(lskip)
    precompute()
    a.label(ldone)


def role_xt():
    a('v_lshlrev_b32 v21, 10, v1')
    a(f's_lshl_b32 {sA}, {sJ}, 16')
    a(f's_lshl_b32 {sB}, {sX}, 7')
    a(f's_add_u32 {sA}, {sA}, {sB}')
    for i in range(8):
        bload(24 + 4 * i, 4, 21, U, imm=16 * i, soff=sA)
    precompute()
    for k in range(4):
        a(f'v_mov_b32 {vr(57 + 2 * k)}, {sT}')
    a('v_lshlrev_b32 v21, 3, v1')
    a(f's_lshl_b32 {sA}, {sX}, 19')
    a(f's_lshl_b32 {sB}, {sJ}, 9')
    a(f's_add_u32 {sA}, {sA}, {sB}')
    a(f's_add_u32 {sA}, {sA}, {WS_XT}')
    for p in range(32):
        if p % 4 == 0:
            a(f's_waitcnt vmcnt({7 - p // 4 + p})')
            if p == 0:
                stamp('r_loaded')
        t = 56 + 2 * (p % 4)
        a(f'v_mov_b32 {vr(t)}, {vr(24 + p)}')
        bstore(t, 2, 21, WS, soff=sA, mods='sc1')
        if p < 31:
            a(f's_add_u32 {sA}, {sA}, 16384')
    stamp('r_pub')


def phase_a():
    lk = 'L_roleK'; l56 = 'L_role56'; l7 = 'L_role7'; lj = 'L_A_join'
    stamp('entry')
    a(f's_cmp_lt_u32 {sWV}, 4')
    a(f's_cbranch_scc1 {lk}')
    a('s_setprio 2')
    a(f's_cmp_eq_u32 {sWV}, 7')
    a(f's_cbranch_scc1 {l7}')
    a(f's_cmp_ge_u32 {sWV}, 5')
    a(f's_cbranch_scc1 {l56}')
    role_stats()
    a(f's_branch {lj}')
    a.label(l56)
    role_mod()
    a(f's_branch {lj}')
    a.label(l7)
    role_xt()
    a(f's_branch {lj}')
    a.label(lk)
    role_k()
    a.label(lj)
    a('s_setprio 0')
    for k in range(4):
        a(f'v_mov_b32 {vr(24 + k)}, 0')
    a('v_lshrrev_b32 v21, 5, v0')
    a(f'v_mul_u32_u24 v21, {H_CH}, v21')
    a('v_and_b32 v22, 31, v0')
    a('v_lshl_add_u32 v21, v22, 4, v21')
    a(f'v_add_u32 v21, {L_H}, v21')
    a('v_subrev_u32 v22, 64, v0')
    a('v_lshrrev_b32 v23, 1, v22')
    a(f'v_mul_u32_u24 v23, {CP_R}, v23')
    a('v_and_b32 v22, 1, v0')
    a('v_lshl_add_u32 v23, v22, 4, v23')
    a(f'v_add_u32 v23, {L_COPY}, v23')
    a('v_cmp_gt_u32 vcc, 64, v0')
    a('v_cndmask_b32 v21, v23, v21, vcc')
    a(f'v_mul_u32_u24 v22, {KT_CH}, v22')
    a(f'v_add_u32 v22, {L_KT + 2 * KT_ZERO}, v22')
    lz = a.newlabel('L_z')
    a(f's_cmp_ge_u32 {sWV}, 2')
    a(f's_cbranch_scc1 {lz}')
    a('v_cmp_gt_u32 vcc, 80, v0')
    a(f's_and_saveexec_b64 s[{sX0}:{sX0 + 1}], vcc')
    a('ds_write_b128 v21, v[24:27]')
    a('ds_write_b16 v22, v24')
    restore_exec()
    a.label(lz)
    a('s_waitcnt lgkmcnt(0)')
    stamp('role_done')
    a('s_barrier')
    stamp('B1')
    lsk = a.newlabel('L_kmf')
    a(f's_cmp_ge_u32 {sWV}, 6')
    a(f's_cbranch_scc1 {lsk}')
    for ks in range(8):
        a(f'ds_read_b128 {vr(24 + 8 * ks, 4)}, {vr(KMA)} offset:{64 * ks}')
        a(f'ds_read_b128 {vr(28 + 8 * ks, 4)}, {vr(KMB)} offset:{64 * ks}')
    for ks in range(8):
        a(f's_waitcnt lgkmcnt({14 - 2 * ks})')
        acc = 88 + 4 * (ks & 1)
        mfma(acc, 24 + 8 * ks, 28 + 8 * ks, None if ks < 2 else acc)
    for k in range(4):
        a(f'v_add_f32 {vr(88 + k)}, {vr(88 + k)}, {vr(92 + k)}')
    a('v_cvt_pk_bf16_f32 v96, v88, v89')
    a('v_cvt_pk_bf16_f32 v97, v90, v91')
    a(f'ds_write_b16 {vr(KMD)}, v96')
    a(f'ds_write_b16_d16_hi {vr(KMD + 1)}, v96')
    a(f'ds_write_b16 {vr(KMD + 2)}, v97')
    a(f'ds_write_b16_d16_hi {vr(KMD + 3)}, v97')
    a('s_waitcnt lgkmcnt(0)')
    a.label(lsk)
    a('s_barrier')
    stamp('B2')
    for d in range(1, 12):
        a(f'ds_read_u16 {vr(24 + d)}, {vr(EXA + d)}')
    a(f's_lshr_b32 {sA}, {sWV}, 2')
    a(f's_mul_i32 {sA}, {sA}, {CP_CH}')
    a(f's_add_u32 {sA}, {sA}, {L_COPY + 32}')
    a('v_and_b32 v22, 255, v0')
    a(f'v_lshl_add_u32 v21, v22, 4, {sA}')
    a('s_waitcnt lgkmcnt(0)')
    for r in range(4):
        d = 36 + 4 * r
        for p in range(4):
            a(f'v_lshl_or_b32 {vr(d + p)}, {vr(24 + 5 + 2 * p - r)}, 16, {vr(24 + 4 + 2 * p - r)}')
        a(f'ds_write_b128 v21, {vr(d, 4)} offset:{r * CP_R}')
    stamp('expanded')


def spin_guard(label_retry):
    a(f's_add_u32 {sSPIN}, {sSPIN}, 1')
    a(f's_cmp_lt_u32 {sSPIN}, {SPIN_MAX}')
    a(f's_cbranch_scc1 {label_retry}')


def tags_check(tags, lo, hi):
    a(f'v_min3_u32 {vr(lo)}, {vr(tags[0])}, {vr(tags[1])}, {vr(tags[2])}')
    a(f'v_max3_u32 {vr(hi)}, {vr(tags[0])}, {vr(tags[1])}, {vr(tags[2])}')
    k = 3
    while k < len(tags):
        t2 = tags[k + 1] if k + 1 < len(tags) else tags[k]
        a(f'v_min3_u32 {vr(lo)}, {vr(lo)}, {vr(tags[k])}, {vr(t2)}')
        a(f'v_max3_u32 {vr(hi)}, {vr(hi)}, {vr(tags[k])}, {vr(t2)}')
        k += 2
    a(f'v_cmp_ne_u32 vcc, {sT}, {vr(lo)}')
    a(f'v_cmp_ne_u32 s[{sX0}:{sX0 + 1}], {sT}, {vr(hi)}')
    a('s_nop 0')
    a(f's_or_b64 vcc, vcc, s[{sX0}:{sX0 + 1}]')


def phase_b():
    a(f's_lshl_b32 {sA}, {sWV}, 12')
    a(f'v_add_u32 v21, {sA}, {vr(vL16)}')
    a('v_lshrrev_b32 v14, 3, v1')
    a('v_cmp_gt_u32 vcc, 6, v14')
    a('v_cndmask_b32 v14, 0, v14, vcc') if False else None
    a('v_mov_b32 v15, 0')
    a('v_cndmask_b32 v14, v15, v14, vcc')
    a('v_lshrrev_b32 v15, 1, v14')
    a('v_lshlrev_b32 v15, 9, v15')
    a('v_and_b32 v14, 1, v14')
    a('v_add_u32 v15, v15, v14')
    a(f'v_add_u32 v15, {sCH0}, v15')
    a('v_and_b32 v14, 7, v1')
    a('v_mul_u32_u24 v14, 3072, v14')
    a('v_add_u32 v15, v15, v14')
    a('v_lshlrev_b32 v22, 3, v15')
    a(f's_mov_b32 {sB}, {WS_STATS}')
    a('v_lshrrev_b32 v20, 1, v21')
    a(f's_lshl_b32 {sD}, {sX}, 5'); a(f's_add_u32 {sD}, {sD}, {sJ}'); a(f's_lshl_b32 {sD}, {sD}, 14')
    a(f's_add_u32 {sD}, {sD}, {WS_XT}')
    if not NOSCOUT:
        lsk = a.newlabel('L_scoutskip'); lsp = a.newlabel('L_scout'); lso = a.newlabel('L_scoutok')
        a(f's_cmp_lg_u32 {sWV}, 0')
        a(f's_cbranch_scc1 {lsk}')
        a('v_lshlrev_b32 v24, 7, v1')
        a('v_and_b32 v25, 31, v1')
        a('v_lshlrev_b32 v25, 9, v25')
        a(f's_mov_b32 {sSPIN}, 0')
        a.label(lsp)
        for i in range(4):
            a(f's_mov_b32 {sC}, {WS_STATS + 8192 * i}')
            bload(28 + i, 1, 24, WS, imm=4, soff=sC, mods='sc1')
        bload(32, 1, 25, WS, imm=4, soff=sD, mods='sc1')
        a(f's_mov_b32 {sC}, {WS_MODG}')
        bload(33, 1, 22, WS, imm=4, soff=sC, mods='sc1')
        a('s_waitcnt vmcnt(0)')
        tags_check([28, 29, 30, 31, 32, 33], 34, 35)
        a(f's_cbranch_vccz {lso}')
        spin_guard(lsp)
        a.label(lso)
        a.label(lsk)
        a('s_barrier')
        stamp('scout')
    a(f's_mov_b32 {sSPIN}, 0')
    lp = 'L_S1_poll'; lok = 'L_S1_ok'
    a.label(lp)
    for i in range(4):
        bload(44 + 4 * i, 4, 21, WS, imm=1024 * i, soff=sB, mods='sc1')
        bload(88 + 2 * i, 2, 20, WS, imm=512 * i, soff=sD, mods='sc1')
    a(f's_mov_b32 {sC}, {WS_MODG}')
    bload(60, 2, 22, WS, soff=sC, mods='sc1')
    a('s_waitcnt vmcnt(0)')
    tags = [45, 47, 49, 51, 53, 55, 57, 59, 61, 89, 91, 93, 95]
    tags_check(tags, 84, 85)
    a(f's_cbranch_vccz {lok}')
    spin_guard(lp)
    a.label(lok)
    stamp('S1ok')
    a('v_lshrrev_b32 v23, 2, v21')
    a(f'v_add_u32 v23, {L_XC}, v23')
    for i in range(4):
        a(f'ds_write_b32 v23, {vr(88 + 2 * i)} offset:{256 * i}')
    a('v_add_f32_dpp v60, v60, v60 quad_perm:[1,0,3,2] row_mask:0xf bank_mask:0xf')
    a('v_add_f32_dpp v60, v60, v60 quad_perm:[2,3,0,1] row_mask:0xf bank_mask:0xf')
    a('v_add_f32_dpp v60, v60, v60 row_half_mirror row_mask:0xf bank_mask:0xf')
    for i, dst in enumerate((60, 62, 64, 66, 68, 70)):
        a(f'v_readlane_b32 s{64 + i}, v60, {8 * i}')
    for i, dst in enumerate((60, 62, 64, 66, 68, 70)):
        a(f'v_mov_b32 {vr(dst)}, s{64 + i}')
    a('v_add_f32 v64, 1.0, v64'); a('v_add_f32 v66, 1.0, v66')
    a(f's_lshr_b32 {sHI}, {sWV}, 2'); a(f's_and_b32 {sLO}, {sWV}, 3')
    a(f's_lshl_b32 {sA}, {sCH0}, 1')
    a(f'v_mov_b32 v77, {sA}')
    bload(76, 1, 77, DSK)
    for i in range(4):
        r, mr = 44 + 4 * i, 46 + 4 * i
        a(f'v_lshlrev_b32 v80, 16, {vr(88 + 2 * i)}')
        a(f'v_and_b32 v81, 0xffff0000, {vr(88 + 2 * i)}')
        a(f'v_fma_f32 v80, v80, {vr(r)}, -{vr(mr)}')
        a(f'v_fma_f32 v81, v81, {vr(r)}, -{vr(mr)}')
        a('v_fma_f32 v80, v80, v64, v60')
        a('v_fma_f32 v81, v81, v66, v62')
        a(f'v_cvt_pk_bf16_f32 {vr(96 + i)}, v80, v81')
    a('v_lshrrev_b32 v23, 3, v21')
    a(f'v_add_u32 v23, {L_H + 512}, v23')
    for i in range(4):
        a(f'ds_write_b16 v23, {vr(96 + i)} offset:{128 * i}')
        a(f'ds_write_b16_d16_hi v23, {vr(96 + i)} offset:{H_CH + 128 * i}')
    a(f's_mul_i32 {sA}, {sHI}, {H_CH}')
    a(f's_lshl_b32 {sB}, {sLO}, 6')
    a(f's_sub_u32 {sA}, {sA}, {sB}')
    a(f's_add_u32 {sA}, {sA}, {L_H + 480 - 256}')
    a('v_lshlrev_b32 v21, 5, v2')
    a('v_lshl_add_u32 v21, v3, 4, v21')
    a(f'v_add_u32 v21, {sA}, v21')
    a(f's_mul_i32 {sA}, {sHI}, {CP_CH}')
    a(f's_add_u32 {sA}, {sA}, {sB}')
    a(f's_add_u32 {sA}, {sA}, {L_COPY + 64 - 8}')
    a('v_lshrrev_b32 v22, 2, v2')
    a(f'v_mul_u32_u24 v22, {CP_R}, v22')
    a('v_and_b32 v23, 3, v2')
    a('v_lshl_add_u32 v22, v23, 3, v22')
    a('v_lshlrev_b32 v23, 4, v3')
    a('v_sub_u32 v22, v22, v23')
    a(f'v_add_u32 v22, {sA}, v22')
    a(f's_lshl_b32 {sA}, {sWV}, 13')
    a(f'v_add_u32 v23, {sA}, {vr(vL16)}')
    mod_final_issue()
    lsw = a.newlabel('L_swzfin')
    a(f's_cmp_ge_u32 {sWV}, 4')
    a(f's_cbranch_scc1 {lsw}')
    swz_finish()
    a.label(lsw)
    a('s_waitcnt lgkmcnt(0)')
    a('s_barrier')
    stamp('B3')
    conv_touches()
    BF = 96; AF = 160; ACC = 224

    def ldA(i):
        r = AF + 4 * i
        a(f'ds_read_b64_tr_b16 {vr(r, 2)}, v22 offset:{256 * i + 8}')
        a(f'ds_read_b64_tr_b16 {vr(r + 2, 2)}, v22 offset:{256 * i}')

    def ldB(u):
        a(f'ds_read_b128 {vr(BF + 4 * u, 4)}, v21 offset:{256 * u}')
    seq = ['A0', 'B1', 'B3', 'B5', 'B7', 'B9', 'B11', 'B13', 'B15', 'A1', 'B0', 'B2', 'B4', 'B6', 'B8', 'B10', 'B12', 'B14'] + \
          [f'A{i}' for i in range(2, 16)]
    pos = {}
    n = 0
    for s_ in seq:
        n += 2 if s_[0] == 'A' else 1
        pos[s_] = n
    total = n
    issued = 0
    it = iter(seq)

    def issue_until(cnt):
        nonlocal issued
        while issued < min(cnt, total):
            s_ = next(it)
            if s_[0] == 'A':
                ldA(int(s_[1:])); issued += 2
            else:
                ldB(int(s_[1:])); issued += 1
    writes = 0
    issue_until(12)
    order = []
    stream = []
    q = []
    for s_ in seq:
        q += [s_] * (2 if s_[0] == 'A' else 1)
    ops = list(q[:issued])
    for i in range(16):
        nmin = i // 2 if i >= 1 else 0
        for nn in range(nmin, 8):
            u = 2 * nn - i + 1
            needs = [f'A{i}', f'B{u}']
            last_needed = max(idx for idx, o in enumerate(q) if o in needs)
            tgt = max(last_needed + 1, min(total, len([o for o in ops if o != 'W']) + 2))
            while len([o for o in ops if o != 'W']) < tgt:
                before = issued
                issue_until(issued + 1)
                ops += q[before:issued]
            lastidx = max(idx for idx, o in enumerate(ops) if o in needs)
            pend = len(ops) - 1 - lastidx
            key = ('wait', pend)
            if not hasattr(phase_b, 'done') or True:
                done_upto = getattr(phase_b, 'done_upto', -1)
                if lastidx > done_upto:
                    a(f's_waitcnt lgkmcnt({min(pend, 15)})')
                    phase_b.done_upto = lastidx if pend <= 15 else len(ops) - 1 - 15
            mfma(ACC + 4 * nn, AF + 4 * i, BF + 4 * u, None if i == 0 else ACC + 4 * nn)
        if i >= 3 and i % 2 == 1:
            nn = (i - 1) // 2 - 1
            a(f'ds_write_b128 v23, {vr(ACC + 4 * nn, 4)} offset:{1024 * nn}')
            ops.append('W')
    a(f'ds_write_b128 v23, {vr(ACC + 28, 4)} offset:{1024 * 7}')
    mod_final_finish()
    a('s_waitcnt lgkmcnt(0)')
    a('s_barrier')
    stamp('B4')

    a(f's_lshl_b32 {sA}, {sWV}, 10')
    a(f'v_add_u32 v23, {sA}, {vr(vL16)}')
    for c in range(2):
        for qq in range(4):
            a(f'ds_read_b128 {vr(96 + 16 * c + 4 * qq, 4)}, v23 offset:{32768 * c + 8192 * qq}')
    a('v_lshlrev_b32 v21, 4, v2')
    a('v_lshl_add_u32 v21, v3, 2, v21')
    a(f's_lshl_b32 {sA}, {sWV}, 8')
    a(f'v_add_u32 v21, {sA}, v21')
    a('v_lshlrev_b32 v22, 2, v21')
    a('v_lshlrev_b32 v24, 1, v21')
    a(f'ds_read_b128 v[128:131], v22 offset:{L_XC}') if L_XC < 65536 else None
    if L_XC >= 65536:
        a(f'v_add_u32 v22, {L_XC}, v22')
        a('ds_read_b128 v[128:131], v22')
    a(f'v_add_u32 v24, {L_H + 512}, v24')
    a('ds_read_b64 v[136:137], v24')
    a(f'ds_read_b64 v[138:139], v24 offset:{H_CH}')
    a('v_lshrrev_b32 v25, 1, v2')
    a('v_lshlrev_b32 v25, 15, v25')
    a('v_and_b32 v26, 1, v2')
    a('v_lshl_add_u32 v25, v26, 5, v25')
    a('v_and_b32 v26, 1, v3')
    a('v_lshl_add_u32 v25, v26, 6, v25')
    a('v_lshrrev_b32 v26, 1, v3')
    a('v_lshl_add_u32 v25, v26, 4, v25')
    a(f's_lshl_b32 {sA}, {sWV}, 18')
    a(f's_lshl_b32 {sB}, {sCH0}, 6')
    a(f's_add_u32 {sA}, {sA}, {sB}')
    a(f's_add_u32 {sE}, {sA}, {WS_X2B}')
    a('s_waitcnt vmcnt(0)')
    a('v_lshlrev_b32 v77, 16, v76')
    a('v_and_b32 v76, 0xffff0000, v76')
    a('s_waitcnt lgkmcnt(0)')
    for c in range(2):
        y = 96 + 16 * c
        for k in range(0, 4, 2):
            a(f'v_pk_add_f32 {vr(y + k, 2)}, {vr(y + k, 2)}, {vr(y + 4 + k, 2)}')
            a(f'v_pk_add_f32 {vr(y + 8 + k, 2)}, {vr(y + 8 + k, 2)}, {vr(y + 12 + k, 2)}')
            a(f'v_pk_add_f32 {vr(y + k, 2)}, {vr(y + k, 2)}, {vr(y + 8 + k, 2)}')
        dsk = 77 if c == 0 else 76
        ga = 68 if c == 0 else 70
        for k in range(4):
            hreg = 136 + 2 * c + (k >> 1)
            if k & 1:
                a(f'v_and_b32 v26, 0xffff0000, {vr(hreg)}')
            else:
                a(f'v_lshlrev_b32 v26, 16, {vr(hreg)}')
            a(f'v_fma_f32 {vr(y + k)}, v26, {vr(dsk)}, {vr(y + k)}')
            if c == 0:
                a(f'v_lshlrev_b32 v27, 16, {vr(128 + k)}')
            else:
                a(f'v_and_b32 v27, 0xffff0000, {vr(128 + k)}')
            a(f'v_fma_f32 {vr(y + k)}, {vr(ga)}, {vr(y + k)}, v27')
        a(f'v_cvt_pk_bf16_f32 {vr(28 + 2 * c)}, {vr(y)}, {vr(y + 1)}')
        a(f'v_cvt_pk_bf16_f32 {vr(29 + 2 * c)}, {vr(y + 2)}, {vr(y + 3)}')
    a('v_permlane16_swap_b32 v28, v30')
    a('v_permlane16_swap_b32 v29, v31')
    bstore(28, 4, 25, WS, soff=sE, mods='sc1')
    a('s_waitcnt vmcnt(0)')
    stamp('x2stored')
    a('s_barrier')
    set_flag(WS_F2, 's2')


def mod_final_issue():
    ls = a.newlabel('L_modf')
    a(f's_cmp_lg_u32 {sWV}, 7')
    a(f's_cbranch_scc1 {ls}')
    a('v_lshrrev_b32 v14, 3, v1')
    a(f's_mul_i32 {sA}, s2, 12')
    a(f'v_add_u32 v14, {sA}, v14')
    a('v_and_b32 v15, 7, v1')
    a('v_mul_u32_u24 v15, 3072, v15')
    a('v_add_u32 v15, v15, v14')
    a('v_lshlrev_b32 v24, 3, v15')
    a('v_lshrrev_b32 v14, 3, v1')
    a('v_and_b32 v15, 3, v14')
    a('v_sub_u32 v14, v15, v14')
    a('v_add_u32 v14, 8, v14')
    a('v_lshl_add_u32 v25, v14, 3, v24')
    a(f's_mov_b32 {sC}, {WS_MODG}')
    bload(26, 2, 24, WS, soff=sC, mods='sc1')
    bload(28, 2, 25, WS, soff=sC, mods='sc1')
    a.label(ls)


def mod_final_finish():
    ls = a.newlabel('L_modf'); lp = a.newlabel('L_modp'); lok = a.newlabel('L_modok')
    a(f's_cmp_lg_u32 {sWV}, 7')
    a(f's_cbranch_scc1 {ls}')
    a('s_waitcnt vmcnt(0)')
    tags_check([27, 29, 29], 30, 31)
    a(f's_cbranch_vccz {lok}')
    a(f's_mov_b32 {sSPIN}, 0')
    a.label(lp)
    a(f's_mov_b32 {sC}, {WS_MODG}')
    bload(26, 2, 24, WS, soff=sC, mods='sc1')
    bload(28, 2, 25, WS, soff=sC, mods='sc1')
    a('s_waitcnt vmcnt(0)')
    tags_check([27, 29, 29], 30, 31)
    a(f's_cbranch_vccz {lok}')
    spin_guard(lp)
    a.label(lok)
    for r in (26, 28):
        a(f'v_add_f32_dpp {vr(r)}, {vr(r)}, {vr(r)} quad_perm:[1,0,3,2] row_mask:0xf bank_mask:0xf')
        a(f'v_add_f32_dpp {vr(r)}, {vr(r)}, {vr(r)} quad_perm:[2,3,0,1] row_mask:0xf bank_mask:0xf')
        a(f'v_add_f32_dpp {vr(r)}, {vr(r)}, {vr(r)} row_half_mirror row_mask:0xf bank_mask:0xf')
    a('v_lshrrev_b32 v14, 3, v1')
    a('v_lshlrev_b32 v14, 2, v14')
    a(f's_mul_i32 {sA}, s2, 48')
    a(f's_add_u32 {sA}, {sA}, {WS_MODF}')
    save_exec_mask(0x0101010101010101)
    bstore(26, 1, 14, WS, soff=sA, mods='sc1')
    a('s_mov_b32 exec_hi, 0')
    bstore(28, 1, 14, WS, imm=32, soff=sA, mods='sc1')
    restore_exec()
    a.label(ls)


def wfrags(dst, base, n, nt_sgpr=None, stride=16, first=0):
    if nt_sgpr is None:
        a(f's_lshl_b32 {sA}, {sCQ}, 3')
        a(f's_add_u32 {sA}, {sA}, {sWV}')
    else:
        a(f's_mov_b32 {sA}, {nt_sgpr}')
    a(f's_mul_i32 {sA}, {sA}, {stride * 1024}')
    a(f's_add_u32 {sA}, {sA}, {base + first * 1024}')
    for k in range(n):
        if k and k % 4 == 0:
            a(f's_add_u32 {sA}, {sA}, 4096')
        bload(dst + 4 * k, 4, vL16, WS, imm=(k % 4) * 1024, soff=sA, mods='sc1')


def wfrag_base(sreg, base, nt_sgpr=None, stride=16, first=0):
    if nt_sgpr is None:
        a(f's_lshl_b32 {sreg}, {sCQ}, 3')
        a(f's_add_u32 {sreg}, {sreg}, {sWV}')
    else:
        a(f's_mov_b32 {sreg}, {nt_sgpr}')
    a(f's_mul_i32 {sreg}, {sreg}, {stride * 1024}')
    a(f's_add_u32 {sreg}, {sreg}, {base + first * 1024}')


def wfrag_one(dst, sreg, k):
    if k and k % 4 == 0:
        a(f's_add_u32 {sreg}, {sreg}, 4096')
    bload(dst + 4 * k, 4, vL16, WS, imm=(k % 4) * 1024, soff=sreg, mods='sc1')


def not_poller(fn):
    l = a.newlabel('L_np')
    a(f's_cmp_eq_u32 {sWV}, 7')
    a(f's_cbranch_scc1 {l}')
    fn()
    a.label(l)


def only_poller(fn):
    l = a.newlabel('L_op')
    a(f's_cmp_lg_u32 {sWV}, 7')
    a(f's_cbranch_scc1 {l}')
    fn()
    a.label(l)


def pretouch(which, dst=31):
    if NOFAST or os.environ.get('NOTOUCH'):
        return
    a('v_lshrrev_b32 v14, 2, v1')
    a('v_and_b32 v15, 3, v1')
    a('v_lshlrev_b32 v15, 7, v15')
    if which in ('h1', 'x1'):
        if which == 'h1':
            a('v_mul_u32_u24 v14, 768, v14')
            a('v_add_u32 v14, v14, v15')
            a(f's_mul_i32 {sA}, {sT32}, 49152'); a(f's_mul_i32 {sB}, {sCQ}, {16 * 768}'); a(f's_add_u32 {sA}, {sA}, {sB}')
            a(f's_add_u32 {sA}, {sA}, {WS_H1 + 128}')
        else:
            a('v_lshl_add_u32 v14, v14, 9, v15')
            a(f's_lshl_b32 {sA}, {sT32}, 15'); a(f's_lshl_b32 {sC}, {sCQ}, 13'); a(f's_add_u32 {sA}, {sA}, {sC}')
            a(f's_add_u32 {sA}, {sA}, {WS_X1}')
        bload(dst, 1, 14, WS, soff=sA)
        return
    else:
        a('v_lshl_add_u32 v14, v14, 9, v15')
        a(f's_sub_u32 {sA}, {sNT3}, {sWV}')
        a(f's_lshl_b32 {sA}, {sA}, 10')
        a(f's_lshl_b32 {sB}, {sRB}, 1'); a(f's_lshr_b32 {sC}, {sWV}, 1'); a(f's_add_u32 {sB}, {sB}, {sC}')
        a(f's_mul_i32 {sB}, {sB}, {86 * 1024}'); a(f's_add_u32 {sA}, {sA}, {sB}')
        a(f's_and_b32 {sB}, {sWV}, 1'); a(f's_lshl_b32 {sC}, {sB}, 13'); a(f's_add_u32 {sA}, {sA}, {sC}')
        a(f's_add_u32 {sA}, {sA}, {WS_H3}')
        a(f's_movk_i32 {sC}, {63 * 128}')
        a(f's_cmp_eq_u32 {sB}, 1')
        a(f's_cselect_b32 {sB}, {23 * 128}, {sC}')
        a(f'v_min_u32 v14, {sB}, v14')
        a(f's_cmp_lt_u32 {sWV}, 4')
    a('s_cselect_b64 exec, -1, 0')
    bload(dst, 1, 14, WS, soff=sA)
    a('s_mov_b64 exec, -1')


def conv_touches():
    if os.environ.get('NOCT'):
        return
    a('v_lshrrev_b32 v14, 2, v1')
    a('v_and_b32 v15, 3, v1')
    a('v_lshlrev_b32 v15, 7, v15')
    a(f's_movk_i32 {sB}, 512')
    a(f's_cmp_eq_u32 {sWV}, 4')
    a(f's_cselect_b32 {sB}, 768, {sB}')
    a(f'v_mad_u32_u24 v14, v14, {sB}, v15')
    a(f's_mul_i32 {sA}, {sT32}, 49152'); a(f's_mul_i32 {sB}, {sCQ}, {16 * 768}'); a(f's_add_u32 {sA}, {sA}, {sB}')
    a(f's_add_u32 {sA}, {sA}, {WS_H1 + 128}')
    a(f's_lshl_b32 {sB}, {sT32}, 15'); a(f's_lshl_b32 {sC}, {sCQ}, 13'); a(f's_add_u32 {sB}, {sB}, {sC}')
    a(f's_add_u32 {sB}, {sB}, {WS_X1}')
    a(f's_cmp_eq_u32 {sWV}, 4')
    a(f's_cselect_b32 {sA}, {sA}, {sB}')
    a(f's_lshr_b32 {sB}, {sWV}, 1')
    a(f's_cmp_eq_u32 {sB}, 2')
    a('s_cselect_b64 exec, -1, 0')
    if not NOFAST:
        bload(15, 1, 14, WS, soff=sA)
    a(f's_lshl_b32 {sA}, {sJ}, 14'); a(f's_and_b32 {sC}, {sWV}, 1'); a(f's_lshl_b32 {sC}, {sC}, 13'); a(f's_add_u32 {sA}, {sA}, {sC}')
    a(f's_cmp_eq_u32 {sB}, 3')
    a('s_cselect_b64 exec, -1, 0')
    bload(15, 1, 14, W1, soff=sA)
    a('s_mov_b64 exec, -1')


def wtouch(kind, dst):
    if os.environ.get('NOWT'):
        return
    a('v_lshlrev_b32 v14, 7, v1')
    a(f's_mul_i32 {sA}, {sJ}, {43 * 1024}')
    a(f's_sub_u32 {sB}, {sWV}, 2'); a(f's_lshl_b32 {sB}, {sB}, 13'); a(f's_add_u32 {sA}, {sA}, {sB}')
    if kind == 'w23':
        a(f's_add_u32 {sA}, {sA}, {WS_W3S}')
        a(f's_lshl_b32 {sB}, {sJ}, 14'); a(f's_lshl_b32 {sC}, {sWV}, 13'); a(f's_add_u32 {sB}, {sB}, {sC}')
        a(f's_add_u32 {sB}, {sB}, {WS_W2S}')
        a(f's_cmp_lt_u32 {sWV}, 2')
        a(f's_cselect_b32 {sA}, {sB}, {sA}')
        bload(dst, 1, 14, WS, soff=sA)
    else:
        a(f's_add_u32 {sA}, {sA}, {WS_W4S}')
        a(f's_cmp_ge_u32 {sWV}, 2')
        a('s_cselect_b64 exec, -1, 0')
        bload(dst, 1, 14, WS, soff=sA)
        a('s_mov_b64 exec, -1')


def set_flag(off, idx_sgpr, cluster=False):
    a(f's_lshl_b32 {sA}, {idx_sgpr}, 6')
    a(f's_add_u32 {sA}, {sA}, {off}')
    a(f'v_mov_b32 v14, {sT}')
    a('v_mov_b32 v15, 0')
    a(f's_cmp_eq_u32 {sWV}, 0')
    if cluster and not NOFAST:
        a(f's_cselect_b64 s[{sX0}:{sX0 + 1}], 1, 0')
        a(f's_and_b64 exec, s[{sX0}:{sX0 + 1}], s[{mFA}:{mFA + 1}]')
        bstore(14, 1, 15, WS, soff=sA)
        a(f's_and_b64 exec, s[{sX0}:{sX0 + 1}], s[{mSL}:{mSL + 1}]')
        bstore(14, 1, 15, WS, soff=sA, mods='sc1')
    else:
        a('s_cselect_b64 exec, 1, 0')
        bstore(14, 1, 15, WS, soff=sA, mods='sc1')
    a('s_mov_b64 exec, -1')


PV = 116


def poll(off, kind):
    lf = a.newlabel('L_pollskip'); lp = a.newlabel('L_poll'); lok = a.newlabel('L_pollok')
    a(f's_cmp_lg_u32 {sWV}, 7')
    a(f's_cbranch_scc1 {lf}')
    if kind == 'all':
        a(f'v_lshlrev_b32 {vr(PV)}, 6, v1')
    elif kind == 'own':
        a(f'v_and_b32 {vr(PV)}, 7, v1')
        a(f's_lshl_b32 {sA}, {sRB}, 3')
        a(f'v_add_u32 {vr(PV)}, {sA}, {vr(PV)}')
        a(f'v_lshlrev_b32 {vr(PV)}, 6, {vr(PV)}')
    else:
        a(f'v_min_u32 {vr(PV)}, 11, v1')
        a(f's_lshl_b32 {sA}, {sT32}, 2')
        a(f's_sub_u32 {sB}, {sA}, 4')
        a(f'v_add_u32 {vr(PV)}, {sB}, {vr(PV)}')
        a(f'v_cmp_gt_u32 vcc, 256, {vr(PV)}')
        a(f'v_mov_b32 {vr(PV + 1)}, {sA}')
        a(f'v_cndmask_b32 {vr(PV)}, {vr(PV + 1)}, {vr(PV)}, vcc')
        a(f'v_lshlrev_b32 {vr(PV)}, 6, {vr(PV)}')
    a(f's_mov_b32 {sSPIN}, 0')
    a.label(lp)
    if kind == 'all':
        for i in range(4):
            a(f's_mov_b32 {sB}, {off + 4096 * i}')
            bload(PV + 2 + i, 1, PV, WS, soff=sB, mods='sc1')
        a('s_waitcnt vmcnt(0)')
        tags_check([PV + 2, PV + 3, PV + 4, PV + 5], PV + 6, PV + 7)
    else:
        a(f's_mov_b32 {sB}, {off}')
        bload(PV + 2, 1, PV, WS, soff=sB, mods='sc1')
        a('s_waitcnt vmcnt(0)')
        a(f'v_cmp_ne_u32 vcc, {sT}, {vr(PV + 2)}')
        a('s_nop 0')
    a(f's_cbranch_vccz {lok}')
    spin_guard(lp)
    a.label(lok)
    a.label(lf)
    a('s_barrier')


def lane_masks():
    a('v_and_b32 v15, 3, v2')
    a(f'v_cmp_eq_u32 s[{mK1}:{mK1 + 1}], 1, v15')
    a(f'v_cmp_eq_u32 s[{mK2}:{mK2 + 1}], 2, v15')
    a(f'v_cmp_eq_u32 s[{mK3}:{mK3 + 1}], 3, v15')
    a('v_lshrrev_b32 v14, 2, v2')
    a(f'v_cmp_eq_u32 s[{mDG}:{mDG + 1}], v14, v3')


def stats_publish(addr, S, Q, t0):
    a(f'v_cndmask_b32 {vr(t0 + 1)}, {vr(Q)}, {vr(Q + 1)}, s[{mK1}:{mK1 + 1}]')
    a(f'v_mov_b32 {vr(t0)}, {vr(S)}')
    a(f'v_cndmask_b32 {vr(t0 + 1)}, {vr(t0 + 1)}, {vr(Q + 2)}, s[{mK2}:{mK2 + 1}]')
    a(f'v_cndmask_b32 {vr(t0 + 1)}, {vr(t0 + 1)}, {vr(Q + 3)}, s[{mK3}:{mK3 + 1}]')
    save_exec_mask(f's[{mDG}:{mDG + 1}]')
    a(f'ds_write_b64 {vr(addr)}, {vr(t0, 2)}')
    restore_exec()


def stats_finish(S, Q, m, r):
    a(f'v_mul_f32 {vr(m)}, {fconst(1.0 / 512)}, {vr(S)}')
    a(f'v_mul_f32 {vr(r)}, {fconst(1.0 / 512)}, {vr(Q)}')
    a(f'v_fma_f32 {vr(r)}, -{vr(m)}, {vr(m)}, {vr(r)}')
    a(f'v_max_f32 {vr(r)}, 0, {vr(r)}')
    a(f'v_add_f32 {vr(r)}, {fconst(1e-5)}, {vr(r)}')
    a(f'v_rsq_f32 {vr(r)}, {vr(r)}')


GC0 = -2.0 * 1.4426950408889634 * 0.7978845608028654
GC1 = GC0 * 0.044715


def gelu_consts(gk):
    for r, c in ((gk, GC0), (gk + 2, GC1), (gk + 4, 1.0)):
        a(f'v_mov_b32 {vr(r)}, {fconst(c)}')


def gelu(regs, tmp, gk):
    n = len(regs)
    for i in range(0, n, 2):
        x = regs[i]
        t = tmp + 2 * ((i // 2) & 1)
        a(f'v_pk_mul_f32 {vr(t, 2)}, {vr(x, 2)}, {vr(x, 2)}')
        a(f'v_pk_fma_f32 {vr(t, 2)}, {vr(t, 2)}, {vr(gk + 2, 2)}, {vr(gk, 2)} op_sel_hi:[1,0,0]')
        a(f'v_pk_mul_f32 {vr(t, 2)}, {vr(t, 2)}, {vr(x, 2)}')
        a(f'v_exp_f32 {vr(t)}, {vr(t)}')
        a(f'v_exp_f32 {vr(t + 1)}, {vr(t + 1)}')
        a(f'v_pk_add_f32 {vr(t, 2)}, {vr(t, 2)}, {vr(gk + 4, 2)} op_sel_hi:[1,0]')
        a(f'v_rcp_f32 {vr(t)}, {vr(t)}')
        a(f'v_rcp_f32 {vr(t + 1)}, {vr(t + 1)}')
        a(f'v_pk_mul_f32 {vr(x, 2)}, {vr(x, 2)}, {vr(t, 2)}')


def ln_apply(acc, cs, m, r, tmp):
    for k in (0, 2):
        a(f'v_pk_fma_f32 {vr(acc + k, 2)}, {vr(cs + k, 2)}, {vr(m, 2)}, {vr(acc + k, 2)} op_sel_hi:[1,0,1] neg_lo:[0,1,0] neg_hi:[0,1,0]')
        a(f'v_pk_mul_f32 {vr(acc + k, 2)}, {vr(acc + k, 2)}, {vr(r, 2)} op_sel_hi:[1,0]')


def pack_swap(dst, t0, t1):
    a(f'v_cvt_pk_bf16_f32 {vr(dst)}, {vr(t0)}, {vr(t0 + 1)}')
    a(f'v_cvt_pk_bf16_f32 {vr(dst + 2)}, {vr(t1)}, {vr(t1 + 1)}')
    a(f'v_cvt_pk_bf16_f32 {vr(dst + 1)}, {vr(t0 + 2)}, {vr(t0 + 3)}')
    a(f'v_cvt_pk_bf16_f32 {vr(dst + 3)}, {vr(t1 + 2)}, {vr(t1 + 3)}')
    a(f'v_permlane16_swap_b32 {vr(dst)}, {vr(dst + 2)}')
    a(f'v_permlane16_swap_b32 {vr(dst + 1)}, {vr(dst + 3)}')


ONES = 16
CS1 = 20


def phase3():
    W1R, W2R = 128, 192
    W1o = W1
    lane_masks()
    for k in range(4):
        a(f'v_mov_b32 {vr(ONES + k)}, 0x3f803f80')
    a(f's_and_b32 {sLO}, {sWV}, 1')
    a(f's_lshr_b32 {sHI}, {sWV}, 1')
    a('v_lshrrev_b32 v24, 5, v1')
    a('v_lshlrev_b32 v24, 5, v24')
    a(f'v_xor_b32 v24, v24, {vr(vL16)}')
    a('v_lshrrev_b32 v14, 2, v2')
    a('v_lshl_add_u32 v25, v3, 3, v14')
    a('v_lshlrev_b32 v25, 6, v25')
    a('v_and_b32 v14, 3, v2')
    a('v_lshl_add_u32 v25, v14, 3, v25')
    a('v_and_b32 v14, 1, v3')
    a(f'v_xor_b32 v14, {sLO}, v14')
    a('v_lshl_add_u32 v25, v14, 5, v25')
    a(f's_lshl_b32 {sA}, {sHI}, 13')
    a(f'v_add_u32 v25, {sA}, v25')
    a(f's_lshl_b32 {sA}, {sHI}, 9')
    a(f's_add_u32 {sA}, {sA}, {L_CB}')
    a(f'v_lshl_add_u32 v26, v3, 5, {sA}')
    a(f's_lshl_b32 {sA}, {sWV}, 7')
    a(f's_add_u32 {sA}, {sA}, {L_ST}')
    a(f'v_lshl_add_u32 v27, v2, 3, {sA}')
    a(f's_lshl_b32 {sA}, {sLO}, 7')
    a(f's_add_u32 {sA}, {sA}, {L_ST}')
    a(f'v_lshl_add_u32 v28, v2, 3, {sA}')
    a(f's_lshl_b32 {sA}, {sHI}, 13')
    a(f's_lshl_b32 {sB}, {sLO}, 10')
    a(f's_add_u32 {sA}, {sA}, {sB}')
    a(f's_add_u32 {sA}, {sA}, {L_HF}')
    a(f'v_add_u32 v29, {sA}, {vr(vL16)}')
    a(f'v_add_u32 v30, {L_HF}, {vr(vL16)}')
    L_SLAB = 32768
    a('v_lshrrev_b32 v32, 4, v1')
    a('v_lshlrev_b32 v32, 10, v32')
    a('v_and_b32 v33, 15, v1')
    a('v_lshrrev_b32 v34, 1, v33')
    a('v_lshrrev_b32 v35, 4, v1')
    a('v_xor_b32 v34, v34, v35')
    a('v_and_b32 v33, 1, v33')
    a('v_lshlrev_b32 v33, 4, v33')
    a('v_lshl_add_u32 v36, v34, 5, v33')
    a('v_add_u32 v36, v36, v32')
    a('v_xor_b32 v34, 4, v34')
    a('v_lshl_add_u32 v37, v34, 5, v33')
    a('v_add_u32 v37, v37, v32')
    a(f's_lshr_b32 {sA}, {sWV}, 1'); a(f's_and_b32 {sA}, {sA}, 1'); a(f's_cmp_eq_u32 {sA}, 1')
    a('s_cselect_b64 vcc, -1, 0')
    a('v_cndmask_b32 v36, v36, v37, vcc')
    a(f's_lshl_b32 {sA}, {sWV}, 12'); a(f's_lshl_b32 {sB}, {sCQ}, 8'); a(f's_add_u32 {sA}, {sA}, {sB}')
    a(f's_lshl_b32 {sB}, {sWV}, 10'); a(f's_add_u32 {sB}, {sB}, {L_SLAB}')
    for k in range(16):
        if k:
            a(f's_add_u32 {sA}, {sA}, 32768'); a(f's_add_u32 {sB}, {sB}, 8192')
        dma(4, 36, W1o, sB, soff=sA)
    a('v_lshrrev_b32 v33, 2, v2')
    a('v_and_b32 v34, 1, v3')
    a('v_lshl_or_b32 v34, v34, 2, v33')
    a(f'v_xor_b32 v34, {sWV}, v34')
    a('v_lshl_add_u32 v35, v3, 3, v33')
    a('v_lshlrev_b32 v35, 8, v35')
    a('v_lshl_add_u32 v35, v34, 5, v35')
    a('v_and_b32 v33, 3, v2')
    a('v_lshl_add_u32 v35, v33, 3, v35')
    a(f'v_add_u32 v35, {L_SLAB}, v35')
    a('v_add_u32 v37, 65536, v35')
    a('s_waitcnt vmcnt(0)')
    a('s_barrier')
    for ks in range(16):
        ad, off = (35, 8192 * ks) if ks < 8 else (37, 8192 * (ks - 8))
        a(f'ds_read_b64_tr_b16 {vr(W1R + 4 * ks, 2)}, {vr(ad)} offset:{off}')
        a(f'ds_read_b64_tr_b16 {vr(W1R + 4 * ks + 2, 2)}, {vr(ad)} offset:{off + 1024}')
    a('s_waitcnt lgkmcnt(0)')
    stamp('W1regs')
    poll(WS_F2, 'all')
    stamp('S2ok')
    a(f's_lshl_b32 {sA}, {sT32}, 15')
    a(f's_lshl_b32 {sB}, {sWV}, 10')
    a(f's_add_u32 {sA}, {sA}, {sB}')
    a(f's_add_u32 {sA}, {sA}, {WS_X2B}')
    for k in range(4):
        if k:
            a(f's_add_u32 {sA}, {sA}, 8192')
        a(f's_add_u32 {sD}, {sB}, {L_X + k * 8192}')
        dma(4, 24, WS, sD, soff=sA, mods='sc1')
    a('v_lshlrev_b32 v14, 2, v0')
    a(f's_mov_b32 {sA}, {WS_MODF + 4 * 2048}')
    bload(32, 1, 14, WS, soff=sA, mods='sc1')
    a(f's_mov_b32 {sA}, {WS_MODF + 3 * 2048}')
    bload(36, 1, 14, WS, soff=sA, mods='sc1')
    a('v_and_b32 v41, 7, v1')
    a('v_lshlrev_b32 v41, 2, v41')
    a(f's_lshl_b32 {sA}, {sRB}, 5'); a(f's_add_u32 {sA}, {sA}, {WS_XID}')
    bload(40, 1, 41, WS, soff=sA, mods='sc1')
    a(f's_lshl_b32 {sA}, {sRB}, 16')
    a(f's_lshr_b32 {sB}, {sWV}, 2'); a(f's_lshl_b32 {sB}, {sB}, 15'); a(f's_add_u32 {sA}, {sA}, {sB}')
    a(f's_lshl_b32 {sB}, {sCS}, 12'); a(f's_add_u32 {sA}, {sA}, {sB}')
    a(f's_and_b32 {sB}, {sWV}, 3'); a(f's_lshl_b32 {sB}, {sB}, 10'); a(f's_add_u32 {sA}, {sA}, {sB}')
    a(f's_add_u32 {sA}, {sA}, {WS_X2B}')
    a(f's_lshl_b32 {sB}, {sWV}, 10')
    a(f's_add_u32 {sB}, {sB}, {L_XS}')
    dma(4, vL16, WS, sB, soff=sA, mods='sc1')
    a('v_lshlrev_b32 v15, 2, v0')
    a(f'v_add_u32 v15, {L_CB}, v15')
    a('s_waitcnt vmcnt(1)')
    a(f's_getreg_b32 {sA}, hwreg(HW_REG_XCC_ID)')
    a(f'v_cmp_ne_u32 vcc, {sA}, v40')
    a('v_add_f32 v32, 1.0, v32')
    a('s_cmp_eq_u64 vcc, 0')
    a(f's_cselect_b64 s[{mFA}:{mFA + 1}], -1, 0')
    a(f's_cselect_b64 s[{mSL}:{mSL + 1}], 0, -1')
    a('ds_write_b32 v15, v32')
    a('ds_write_b32 v15, v36 offset:2048')
    a('s_waitcnt lgkmcnt(0)')
    a('s_barrier')
    stamp('Xlanded')
    wfrag_base(sF, WS_W2S)
    wq = list(range(16))

    def w1n(n):
        for _ in range(n):
            if wq:
                wfrag_one(W2R, sF, wq.pop(0))
    XF = 32
    for i in range(4):
        a(f'ds_read_b64_tr_b16 {vr(XF + 4 * i, 2)}, v25 offset:{2048 * i}')
        a(f'ds_read_b64_tr_b16 {vr(XF + 2 + 4 * i, 2)}, v25 offset:{2048 * i + 256}')
    CO = 64

    def ldc(i):
        b = CO + 16 * i
        a(f'ds_read_b128 {vr(b, 4)}, v26 offset:{128 * i}')
        a(f'ds_read_b128 {vr(b + 4, 4)}, v26 offset:{128 * i + 16}')
        a(f'ds_read_b128 {vr(b + 8, 4)}, v26 offset:{2048 + 128 * i}')
        a(f'ds_read_b128 {vr(b + 12, 4)}, v26 offset:{2048 + 128 * i + 16}')
    ldc(0)
    SA, QA = 48, 52
    for i in range(4):
        if i == 0:
            a('s_waitcnt lgkmcnt(10)')
        elif i == 1:
            a('s_waitcnt lgkmcnt(8)')
        elif i == 2:
            a('s_waitcnt lgkmcnt(6)')
        else:
            a('s_waitcnt lgkmcnt(4)')
        f = XF + 4 * i
        mfma(SA, ONES, f, None if i == 0 else SA)
        mfma(QA, f, f, None if i == 0 else QA)
        w1n(1)
    ldc(1); ldc(2)
    stats_publish(27, SA, QA, 56)
    ldc(3)
    a('s_waitcnt lgkmcnt(4)')
    a('s_barrier')
    a('ds_read2st64_b64 v[48:51], v28 offset0:0 offset1:1') if False else None
    a('ds_read_b64 v[48:49], v28')
    a('ds_read_b64 v[50:51], v28 offset:256')
    a('ds_read_b64 v[52:53], v28 offset:512')
    a('ds_read_b64 v[54:55], v28 offset:768')
    a('s_waitcnt lgkmcnt(0)')
    a('v_pk_add_f32 v[48:49], v[48:49], v[50:51]')
    a('v_pk_add_f32 v[52:53], v[52:53], v[54:55]')
    a('v_pk_add_f32 v[48:49], v[48:49], v[52:53]')
    stats_finish(48, 49, 58, 56)
    a('v_mul_f32 v58, v58, v56')
    stamp('stats2')
    SA, QA = 48, 52
    for i in range(4):
        f = XF + 4 * i
        b = CO + 16 * i
        for p in range(4):
            z = 60 + 2 * (p & 1)
            a(f'v_lshlrev_b32 {vr(z)}, 16, {vr(f + p)}')
            a(f'v_and_b32 {vr(z + 1)}, 0xffff0000, {vr(f + p)}')
            a(f'v_pk_fma_f32 {vr(z, 2)}, {vr(z, 2)}, v[56:57], v[58:59] op_sel_hi:[1,0,0] neg_lo:[0,0,1] neg_hi:[0,0,1]')
            a(f'v_pk_fma_f32 {vr(z, 2)}, {vr(z, 2)}, {vr(b + 2 * p, 2)}, {vr(b + 8 + 2 * p, 2)}')
            a(f'v_cvt_pk_bf16_f32 {vr(f + p)}, {vr(z)}, {vr(z + 1)}')
            if p == 1:
                w1n(1)
        a(f'ds_write_b128 v29, {vr(f, 4)} offset:{2048 * i}')
        if i > 0:
            fp = f - 4
            mfma(SA, ONES, fp, None if i == 1 else SA)
            mfma(QA, fp, fp, None if i == 1 else QA)
    f = XF + 12
    mfma(SA, ONES, f, SA)
    mfma(QA, f, f, QA)
    a(f'v_add_u32 v27, {L_ST3 - L_ST}, v27')
    stats_publish(27, SA, QA, 60)
    a('s_waitcnt lgkmcnt(0)')
    a('s_barrier')
    stamp('norm')
    AR = 64

    def lda(ks):
        b = AR + 8 * (ks % 8)
        a(f'ds_read_b128 {vr(b, 4)}, v30 offset:{2048 * ks}')
        a(f'ds_read_b128 {vr(b + 4, 4)}, v30 offset:{2048 * ks + 1024}')
    for ks in range(6):
        lda(ks)
    a(f'v_lshlrev_b32 v14, 3, v2')
    a(f'v_add_u32 v14, {L_ST3}, v14')
    for ks in range(16):
        pend = min(15 - ks, 5) * 2
        a(f's_waitcnt lgkmcnt({pend})')
        b = AR + 8 * (ks % 8)
        mfma(32, W1R + 4 * ks, b, None if ks == 0 else 32)
        mfma(36, W1R + 4 * ks, b + 4, None if ks == 0 else 36)
        mfma(CS1, W1R + 4 * ks, ONES, None if ks == 0 else CS1)
        if ks % 2 == 0:
            w1n(1)
        if ks + 6 < 16:
            lda(ks + 6)
    for tt in range(2):
        for kq in range(4):
            a(f'ds_read_b64 {vr(40 + 8 * tt + 2 * kq, 2)}, v14 offset:{256 * kq + 128 * tt}')
    GK = 56
    gelu_consts(GK)
    a('s_waitcnt lgkmcnt(0)')
    for tt in range(2):
        b = 40 + 8 * tt
        a(f'v_pk_add_f32 {vr(b, 2)}, {vr(b, 2)}, {vr(b + 2, 2)}')
        a(f'v_pk_add_f32 {vr(b + 4, 2)}, {vr(b + 4, 2)}, {vr(b + 6, 2)}')
        a(f'v_pk_add_f32 {vr(b, 2)}, {vr(b, 2)}, {vr(b + 4, 2)}')
        stats_finish(b, b + 1, b + 2, b + 4)
        ln_apply(32 + 4 * tt, CS1, b + 2, b + 4, None)
    stamp('gemm1')
    gelu(list(range(32, 40)), 62, GK)
    pack_swap(40, 32, 36)
    a('v_lshrrev_b32 v14, 5, v1')
    a('v_mul_u32_u24 v14, 768, v14')
    a('v_and_b32 v15, 31, v1')
    a('v_lshl_add_u32 v14, v15, 4, v14')
    a(f's_mul_i32 {sA}, {sT32}, {64 * 768}')
    a(f's_lshl_b32 {sB}, {sCQ}, 3'); a(f's_add_u32 {sB}, {sB}, {sWV}'); a(f's_mul_i32 {sB}, {sB}, {2 * 768}')
    a(f's_add_u32 {sA}, {sA}, {sB}')
    a(f's_add_u32 {sE}, {sA}, {WS_H1 + 128}')
    cstore(40, 4, 14, sE)
    a('v_cmp_gt_u32 vcc, 2, v15')
    a(f'v_mov_b32 v44, {49152 - 512}')
    a(f'v_mov_b32 v45, {(-(49152 - 512)) & 0xffffffff}')
    a('v_cndmask_b32 v44, v44, v45, vcc')
    a('v_add_u32 v44, v44, v14')
    a(f'v_add_u32 v44, {sE}, v44')
    a('v_mov_b32 v48, v40'); a('v_mov_b32 v49, v41'); a('v_mov_b32 v50, v42'); a('v_mov_b32 v51, v43')
    le = a.newlabel('L_edge'); led = a.newlabel('L_edged')
    a(f's_cmp_eq_u32 {sT32}, 0')
    a(f's_cbranch_scc1 {le}')
    a(f's_cmp_lg_u32 {sT32}, 63')
    a(f's_cbranch_scc1 {led}')
    a('v_cmp_lt_u32 vcc, 29, v15')
    a(f'v_add_u32 v45, {sE}, v14'); a('v_add_u32 v45, 32, v45')
    a('v_cndmask_b32 v44, v44, v45, vcc')
    for k in range(4):
        a(f'v_cndmask_b32 {vr(48 + k)}, {vr(48 + k)}, 0, vcc') if False else None
    a('v_mov_b32 v46, 0')
    for k in range(4):
        a(f'v_cndmask_b32 {vr(48 + k)}, {vr(48 + k)}, v46, vcc')
    a(f's_branch {led}')
    a.label(le)
    a('v_cmp_gt_u32 vcc, 2, v15')
    a(f'v_add_u32 v45, {sE}, v14'); a('v_subrev_u32 v45, 32, v45')
    a('v_cndmask_b32 v44, v44, v45, vcc')
    a('v_mov_b32 v46, 0')
    for k in range(4):
        a(f'v_cndmask_b32 {vr(48 + k)}, {vr(48 + k)}, v46, vcc')
    a.label(led)
    save_exec_mask(0xc0000003c0000003)
    bstore(48, 4, 44, WS, mods='sc1')
    restore_exec()
    p5_tiles()
    a('s_waitcnt vmcnt(0)')
    stamp('h1stored')
    a('s_barrier')
    a(f's_lshl_b32 {sE}, {sT32}, 2'); a(f's_add_u32 {sE}, {sE}, {sCQ}')
    assert not wq
    set_flag(WS_F3, sE)
    wfrags(128, WS_W3S, 8, nt_sgpr=sNT3)


def p5_tiles():
    a(f's_mul_i32 {sNT3}, {sCS}, 11')
    a(f's_cmp_eq_u32 {sCS}, 7')
    a(f's_cselect_b32 {sA}, 1, 0')
    a(f's_sub_u32 {sNT3}, {sNT3}, {sA}')
    a(f's_add_u32 {sNT3}, {sNT3}, {sWV}')
    a(f's_cmp_ge_u32 {sCS}, 6')
    a(f's_cselect_b32 {sA}, 2, 3')
    a(f's_cmp_lt_u32 {sWV}, {sA}')
    a(f's_cselect_b32 {sNV}, 2, 1')


def phase4():
    W2R = 192
    poll(WS_F3, 'halo')
    stamp('S3ok')
    a(f's_mul_i32 {sA}, {sT32}, {64 * 768}')
    a(f's_lshl_b32 {sB}, {sWV}, 10')
    a(f's_add_u32 {sA}, {sA}, {sB}')
    a(f's_add_u32 {sA}, {sA}, {WS_H1}')
    for k in range(6):
        if k:
            a(f's_add_u32 {sA}, {sA}, 8192')
        a(f's_add_u32 {sD}, {sB}, {L_A4 + k * 8192}')
        dma(4, vL16, WS, sD, soff=sA, mods=LDM)
    a('v_mul_u32_u24 v24, 768, v3')
    a('v_lshl_add_u32 v24, v2, 4, v24')
    a(f'v_add_u32 v24, {L_A4 + 128 - 32}, v24')
    a(f's_lshl_b32 {sA}, {sCQ}, 2'); a(f's_lshr_b32 {sB}, {sWV}, 1'); a(f's_add_u32 {sA}, {sA}, {sB}')
    a(f's_lshl_b32 {sA}, {sA}, 11')
    a(f's_and_b32 {sB}, {sWV}, 1'); a(f's_lshl_b32 {sB}, {sB}, 9'); a(f's_add_u32 {sA}, {sA}, {sB}')
    a(f's_add_u32 {sA}, {sA}, {L_HF}')
    a('v_lshrrev_b32 v25, 1, v3')
    a('v_lshlrev_b32 v25, 8, v25')
    a('v_lshl_add_u32 v25, v2, 4, v25')
    a('v_and_b32 v14, 1, v3')
    a('v_lshl_add_u32 v25, v14, 3, v25')
    a(f'v_add_u32 v25, {sA}, v25')
    a('ds_read_b64 v[40:41], v25')
    a('ds_read_b64 v[42:43], v25 offset:1024')
    AR = 64
    shifts = [-1, 1, -2, 2]

    def lda(ks):
        b = AR + 8 * (ks % 8)
        s_ = shifts[ks >> 2]
        off = 3072 * ks + 32 + 16 * s_
        a(f'ds_read_b128 {vr(b, 4)}, v24 offset:{off}')
        a(f'ds_read_b128 {vr(b + 4, 4)}, v24 offset:{off + 256}')
    a('s_waitcnt vmcnt(3)')
    a('s_barrier')
    stamp('A4landed')
    wfrag_base(sF, WS_W3S, nt_sgpr=sNT3, first=8)
    for ks in range(6):
        lda(ks)
    for ks in range(16):
        if ks == 2:
            a('s_waitcnt vmcnt(1)')
            a('s_barrier')
        pend = min(15 - ks, 5) * 2
        a(f's_waitcnt lgkmcnt({pend})')
        b = AR + 8 * (ks % 8)
        mfma(32, W2R + 4 * ks, b, None if ks == 0 else 32)
        mfma(36, W2R + 4 * ks, b + 4, None if ks == 0 else 36)
        if ks % 2 == 0:
            wfrag_one(128 + 32, sF, ks // 2)
        if ks + 6 < 16:
            lda(ks + 6)
    stamp('gemm2')
    for tt in range(2):
        for k in range(4):
            h = 40 + 2 * tt + (k >> 1)
            if k & 1:
                a(f'v_and_b32 {vr(44 + k)}, 0xffff0000, {vr(h)}')
            else:
                a(f'v_lshlrev_b32 {vr(44 + k)}, 16, {vr(h)}')
        a(f'v_pk_add_f32 {vr(32 + 4 * tt, 2)}, {vr(32 + 4 * tt, 2)}, v[44:45]')
        a(f'v_pk_add_f32 {vr(34 + 4 * tt, 2)}, {vr(34 + 4 * tt, 2)}, v[46:47]')
    pack_swap(40, 32, 36)
    a(f's_lshl_b32 {sA}, {sT32}, 15')
    a(f's_lshl_b32 {sB}, {sCQ}, 3'); a(f's_add_u32 {sB}, {sB}, {sWV}'); a(f's_lshl_b32 {sB}, {sB}, 10')
    a(f's_add_u32 {sA}, {sA}, {sB}')
    a(f's_add_u32 {sA}, {sA}, {WS_X1}')
    cstore(40, 4, vL16, sA)
    a('s_waitcnt vmcnt(0)')
    stamp('x1stored')
    a('s_barrier')
    a(f's_lshl_b32 {sE}, {sRB}, 3'); a(f's_add_u32 {sE}, {sE}, {sCS}')
    set_flag(WS_F4, sE, cluster=True)

    l1 = a.newlabel('L_p4one'); l2 = a.newlabel('L_p4j')
    a(f's_cmp_eq_u32 {sNV}, 1')
    a(f's_cbranch_scc1 {l1}')
    a(f's_add_u32 {sE}, {sNT3}, 8')
    wfrags(192, WS_W3S, 16, nt_sgpr=sE)
    a.label(l1)


def w4reg(s_):
    return 192 + 4 * s_ if s_ < 16 else 128 + 4 * (s_ - 16)


def w4_base(sreg, first):
    a(f's_and_b32 {sB}, {sWV}, 3')
    a(f's_lshl_b32 {sreg}, {sCS}, 2'); a(f's_add_u32 {sreg}, {sreg}, {sB}'); a(f's_mul_i32 {sreg}, {sreg}, 43')
    a(f's_lshr_b32 {sB}, {sWV}, 2'); a(f's_mul_i32 {sB}, {sB}, 22'); a(f's_add_u32 {sreg}, {sreg}, {sB}')
    a(f's_lshl_b32 {sreg}, {sreg}, 10'); a(f's_add_u32 {sreg}, {sreg}, {WS_W4S + first * 1024}')


def w4_one(sreg, first, k):
    s_ = first + k
    if k and k % 4 == 0:
        a(f's_add_u32 {sreg}, {sreg}, 4096')
    so = sreg
    if s_ == 21:
        a(f's_cmp_ge_u32 {sWV}, 4')
        a(f's_cselect_b32 {sC}, 0x7ff00000, {sreg}')
        so = sC
    bload(w4reg(s_), 4, vL16, WS, imm=(k % 4) * 1024, soff=so, mods='sc1')


def w4_loads(first, n):
    w4_base(sA, first)
    for k in range(n):
        w4_one(sA, first, k)


def phase5():
    W3A, W3B = 128, 192
    CSA, CSB = 24, 28
    for k in range(4):
        a(f'v_mov_b32 {vr(ONES + k)}, 0x3f803f80')
    a(f's_and_b32 {sLO}, {sWV}, 3')
    a(f's_lshr_b32 {sHI}, {sWV}, 2')
    a('v_lshrrev_b32 v14, 2, v2')
    a('v_lshl_add_u32 v14, v3, 2, v14')
    a('v_lshlrev_b32 v14, 6, v14')
    a('v_and_b32 v15, 3, v2')
    a('v_lshl_add_u32 v14, v15, 3, v14')
    a(f's_lshl_b32 {sA}, {sHI}, 12'); a(f's_lshl_b32 {sB}, {sLO}, 10'); a(f's_add_u32 {sA}, {sA}, {sB}')
    a(f's_add_u32 {sA}, {sA}, {L_XS}')
    a(f'v_add_u32 v14, {sA}, v14')
    a(f'ds_read_b64_tr_b16 {vr(XS, 2)}, v14')
    a(f'ds_read_b64_tr_b16 {vr(XS + 2, 2)}, v14 offset:32')
    a(f's_lshr_b32 {sA}, {sLO}, 1'); a(f's_lshl_b32 {sA}, {sA}, 15')
    a(f's_and_b32 {sB}, {sLO}, 1'); a(f's_lshl_b32 {sB}, {sB}, 8'); a(f's_add_u32 {sA}, {sA}, {sB}')
    a(f's_lshl_b32 {sB}, {sHI}, 14'); a(f's_add_u32 {sA}, {sA}, {sB}')
    a(f'v_add_u32 v20, {sA}, {vr(vVB)}')
    a(f's_lshl_b32 {sA}, {sWV}, 7'); a(f's_add_u32 {sA}, {sA}, {L_ST5}')
    a(f'v_lshl_add_u32 v21, v2, 3, {sA}')
    a(f's_lshl_b32 {sA}, {sHI}, 15'); a(f's_lshl_b32 {sB}, {sCS}, 12'); a(f's_add_u32 {sA}, {sA}, {sB}')
    a(f's_lshl_b32 {sB}, {sLO}, 10'); a(f's_add_u32 {sA}, {sA}, {sB}')
    a('v_lshrrev_b32 v22, 1, v3'); a('v_lshlrev_b32 v22, 9, v22')
    a('v_lshl_add_u32 v22, v2, 4, v22')
    a('v_and_b32 v14, 1, v3'); a('v_lshl_add_u32 v22, v14, 3, v22')
    a(f'v_add_u32 v22, {sA}, v22')
    a('v_lshlrev_b32 v23, 3, v2')
    a(f'v_add_u32 v23, {L_ST5}, v23')
    lnb = a.newlabel('L_nob')
    a(f's_cmp_lt_u32 {sNV}, 2')
    a(f's_cbranch_scc1 {lnb}')
    a('s_waitcnt vmcnt(0)')
    for ks in range(16):
        mfma(CSA, W3A + 4 * ks, ONES, None if ks == 0 else CSA)
        mfma(CSB, W3B + 4 * ks, ONES, None if ks == 0 else CSB)
    a.label(lnb)
    a('s_waitcnt lgkmcnt(0)')
    stamp('W3landed')
    poll(WS_F4, 'own')
    stamp('S4ok')
    a(f's_lshl_b32 {sA}, {sRB}, 16')
    a(f's_lshl_b32 {sB}, {sHI}, 15'); a(f's_lshl_b32 {sC}, {sLO}, 10'); a(f's_add_u32 {sB}, {sB}, {sC}')
    a(f's_add_u32 {sA}, {sA}, {sB}'); a(f's_add_u32 {sA}, {sA}, {WS_X1}')
    for j in range(8):
        if j:
            a(f's_add_u32 {sA}, {sA}, 4096')
        a(f's_add_u32 {sD}, {sB}, {L_X1 + 4096 * j}')
        dma(4, vL16, WS, sD, soff=sA, mods=LDM)
    AR = 64
    ACA, ACB = 32, 48
    SA, QA, TP, MR = 112, 116, 120, 120
    a(f's_lshl_b32 {sA}, {sRB}, 1'); a(f's_mul_i32 {sA}, {sA}, {86 * 1024}')
    a(f's_lshl_b32 {sB}, {sNT3}, 10'); a(f's_add_u32 {sA}, {sA}, {sB}'); a(f's_add_u32 {sE}, {sA}, {WS_H3}')

    def lda(ks, q):
        b = AR + 16 * (ks % 3)
        for tt in range(4):
            a(f'ds_read_b128 {vr(b + 4 * tt, 4)}, {vr(vVB)} offset:{32768 * (tt >> 1) + 2048 * ks + 256 * (tt & 1)}')
        q += [('a', ks)] * 4

    def wait_for(q, key):
        last = max(i for i, o in enumerate(q) if o == key)
        a(f's_waitcnt lgkmcnt({min(15, len(q) - 1 - last)})')

    def epi_steps(acc, cs, tileoff, tmp, gk, pk):
        steps = []
        for tt in range(4):
            mr = MR + 2 * tt
            def f(tt=tt, mr=mr):
                for k in (0, 2):
                    r = acc + 4 * tt + k
                    a(f'v_pk_fma_f32 {vr(r, 2)}, {vr(cs + k, 2)}, {vr(mr, 2)}, {vr(r, 2)} op_sel_hi:[1,0,1] neg_lo:[0,1,0] neg_hi:[0,1,0]')
                    a(f'v_pk_mul_f32 {vr(r, 2)}, {vr(r, 2)}, {vr(mr, 2)} op_sel:[0,1] op_sel_hi:[1,1]')
            steps.append(f)
        for i in range(8):
            steps.append(lambda i=i: gelu([acc + 2 * i, acc + 2 * i + 1], tmp + 2 * (i & 1), gk))
        for T in range(2):
            def f(T=T):
                d = pk + 4 * T
                pack_swap(d, acc + 8 * T, acc + 8 * T + 4)
                a(f's_add_u32 {sA}, {sE}, {tileoff + T * 86 * 1024}')
                bstore(d, 4, vL16, WS, soff=sA, mods='sc1')
            steps.append(f)
        return steps

    def loop1(two):
        q = []
        vm_after = 0
        if not two:
            w4_base(sF, 0)
        a('s_waitcnt vmcnt(4)')
        a('s_barrier')
        stamp('x1landed')
        lda(0, q); lda(1, q)
        nxt = 2
        for ks in range(16):
            if ks == 5:
                stamp('k5a')
                a(f's_waitcnt vmcnt({vm_after})')
                a('s_barrier')
                stamp('k5b')

            if ks in (5, 7):
                h = 0 if ks == 5 else 4
                for k in range(4):
                    a(f'ds_read_b128 {vr(ACB + 4 * k, 4)}, v20 offset:{2048 * (h + k)}')
                q += [('s', ks)] * 4
            if ks == 12:
                a('s_waitcnt lgkmcnt(0)')
                stamp('k12a')
                a('s_barrier')
                stamp('k12b')
                for tt in range(4):
                    a(f'ds_read_b64 {vr(ACB + 4 * tt, 2)}, v23 offset:{128 * tt}')
                    a(f'ds_read_b64 {vr(ACB + 4 * tt + 2, 2)}, v23 offset:{512 + 128 * tt}')
                q += [('f', 0)] * 8
            wait_for(q, ('a', ks))
            b = AR + 16 * (ks % 3)
            for tt in range(4):
                mfma(ACA + 4 * tt, W3A + 4 * ks, b + 4 * tt, None if ks == 0 else ACA + 4 * tt)
            if not two:
                mfma(CSA, W3A + 4 * ks, ONES, None if ks == 0 else CSA)
                w4_one(sF, 0, ks); vm_after += 1
            while nxt < 16 and nxt <= ks + 2 and (nxt < 8 or ks >= 5):
                lda(nxt, q); nxt += 1
            if ks in (6, 8):
                wait_for(q, ('s', ks - 1))
                for k in range(4):
                    f = ACB + 4 * k
                    first = (ks == 6 and k == 0)
                    mfma(SA, ONES, f, None if first else SA)
                    mfma(QA, f, f, None if first else QA)
            if ks == 12:
                wtouch('w4', 15)
            if ks == 10:
                stats_publish(21, SA, QA, TP)
                q += [('p', 0)]
            if ks in (13, 14):
                wait_for(q, ('f', 0))
                for tt in ((0, 1) if ks == 13 else (2, 3)):
                    bb = ACB + 4 * tt
                    mr = MR + 2 * tt
                    a(f'v_pk_add_f32 {vr(bb, 2)}, {vr(bb, 2)}, {vr(bb + 2, 2)}')
                    stats_finish(bb, bb + 1, mr, mr + 1)
        a(f'ds_read_b64 {vr(X1R, 2)}, v22')
        a(f'ds_read_b64 {vr(X1R + 2, 2)}, v22 offset:256')

    l1 = a.newlabel('L_one'); lj = a.newlabel('L_p5j')
    a(f's_cmp_eq_u32 {sNV}, 1')
    a(f's_cbranch_scc1 {l1}')
    loop1(True)
    stamp('gemm3')
    GK, TMP, PK = 128, 136, 140
    gelu_consts(GK)
    steps = epi_steps(ACA, CSA, 0, TMP, GK, PK)
    q = []
    lda(0, q); lda(1, q)
    nxt = 2
    for ks in range(16):
        wait_for(q, ('a', ks))
        b = AR + 16 * (ks % 3)
        for tt in range(4):
            mfma(ACB + 4 * tt, W3B + 4 * ks, b + 4 * tt, None if ks == 0 else ACB + 4 * tt)
        while nxt < 16 and nxt <= ks + 2:
            lda(nxt, q); nxt += 1
        if steps and ks >= 1:
            steps.pop(0)()
    for f in steps:
        f()
    stamp('loop2')
    for f in epi_steps(ACB, CSB, 8 * 1024, TMP, GK, PK + 8):
        f()
    stamp('epiB')
    a('s_waitcnt vmcnt(0) lgkmcnt(0)')
    a(f's_branch {lj}')
    a.label(l1)
    loop1(False)
    w4_loads(16, 6)
    stamp('gemm3')
    GK, TMP, PK = 64, 72, 76
    gelu_consts(GK)
    for f in epi_steps(ACA, CSA, 0, TMP, GK, PK):
        f()
    stamp('epiB')
    a('s_waitcnt vmcnt(0) lgkmcnt(0)')
    a.label(lj)
    stamp('h3stored')
    a('s_barrier')
    a(f's_lshl_b32 {sE}, {sRB}, 3'); a(f's_add_u32 {sE}, {sE}, {sCS}')
    set_flag(WS_F5, sE)

    l1 = a.newlabel('L_w4one')
    a(f's_cmp_eq_u32 {sNV}, 1')
    a(f's_cbranch_scc1 {l1}')
    w4_loads(0, 16)
    w4_loads(16, 6)
    a.label(l1)


def phase6():
    a(f's_lshl_b32 {sA}, {sCS}, 6'); a(f's_lshl_b32 {sB}, {sLO}, 4'); a(f's_add_u32 {sA}, {sA}, {sB}')
    a(f's_lshl_b32 {sA}, {sA}, 2'); a(f's_add_u32 {sA}, {sA}, {WS_MODF + 5 * 2048}')
    a('v_lshlrev_b32 v14, 4, v3')
    bload(16, 4, 14, WS, soff=sA, mods='sc1')
    poll(WS_F5, 'own')
    stamp('S5ok')
    a(f's_lshl_b32 {sA}, {sRB}, 1'); a(f's_lshr_b32 {sB}, {sWV}, 1'); a(f's_and_b32 {sB}, {sB}, 1')
    a(f's_add_u32 {sA}, {sA}, {sB}'); a(f's_mul_i32 {sA}, {sA}, {86 * 1024}')
    a(f's_mul_i32 {sB}, {sHI}, {44 * 1024}'); a(f's_add_u32 {sA}, {sA}, {sB}')
    a(f's_and_b32 {sB}, {sWV}, 1'); a(f's_lshl_b32 {sB}, {sB}, 10'); a(f's_add_u32 {sA}, {sA}, {sB}')
    a(f's_add_u32 {sE}, {sA}, {WS_H3}')
    a(f's_lshl_b32 {sF}, {sWV}, 10')

    def ring(s_):
        if 'nodma' in XP and s_ >= 3:
            return
        a(f's_add_u32 {sC}, {sE}, {2048 * s_}')
        if s_ == 21:
            a(f's_cmp_eq_u32 {sHI}, 1')
            a(f's_cselect_b32 {sC}, 0x7ff00000, {sC}')
        a(f's_add_u32 {sD}, {sF}, {8192 * (s_ % NSLOT)}')
        dma(4, vL16, WS, sD, soff=sC, mods=LDM)
    AHEAD = int(os.environ.get('AHEAD', '6'))
    RAMP = int(os.environ.get('RAMP', '14'))
    for s_ in range(AHEAD):
        ring(s_)
    a(f's_lshl_b32 {sA}, {sHI}, 12')
    a(f'v_add_u32 v32, {sA}, {vr(vVB)}')
    a('v_add_u32 v33, 65536, v32')
    a('v_add_u32 v34, 131072, v32')
    AR = 64
    ACC = 40

    def lda(s_):
        b = AR + 16 * (s_ % 4)
        off = 8192 * (s_ % NSLOT)
        ad, base = (32, 0) if off < 65536 else (33, 65536) if off < 131072 else (34, 131072)
        for tt in range(4):
            if 'nord' in XP and s_ > 3:
                continue
            a(f'ds_read_b128 {vr(b + 4 * tt, 4)}, {vr(ad)} offset:{off - base + 2048 * (tt >> 1) + 256 * (tt & 1)}')
    guar = {0: 3, 2: 7, 6: 11, 10: 15, 14: 19, 18: 22}
    issued = AHEAD
    q = []
    nxt = 0
    bound = 0
    gi = 0
    for s_ in range(22):
        if s_ in guar:
            bound = guar[s_]
            while issued < bound:
                ring(issued); issued += 1
            if 'novm' not in XP or s_ == 0:
                a(f's_waitcnt vmcnt({issued - bound})')
            if 'nobar' not in XP or s_ == 0:
                a('s_barrier')
            stamp(f'g{gi}'); gi += 1
            last_barrier = s_
        while nxt < bound and nxt <= s_ + 2:
            lda(nxt); q += [nxt] * 4; nxt += 1
        nper = 2 if issued < RAMP else 1
        for _ in range(nper):
            if issued < 22 and (issued < NSLOT or issued - NSLOT < last_barrier):
                ring(issued); issued += 1
        last = max(i for i, o in enumerate(q) if o == s_)
        a(f's_waitcnt lgkmcnt({min(15, len(q) - 1 - last)})')
        b = AR + 16 * (s_ % 4)
        for tt in range(4):
            mfma(ACC + 4 * tt, w4reg(s_), b + 4 * tt, None if s_ == 0 else ACC + 4 * tt)
        while nxt < bound and nxt <= s_ + 3:
            lda(nxt); q += [nxt] * 4; nxt += 1
    assert issued == 22
    stamp('gemm4')
    a(f's_lshl_b32 {sA}, {sWV}, 11')
    a(f's_add_u32 {sA}, {sA}, {L_EX}')
    a(f'v_add_u32 v35, {sA}, {vr(vL16)}')
    lk1 = a.newlabel('L_k1'); lkd = a.newlabel('L_kd')
    a(f's_cmp_eq_u32 {sHI}, 1')
    a(f's_cbranch_scc1 {lk1}')
    a(f'ds_write_b128 v35, {vr(ACC + 8, 4)}')
    a(f'ds_write_b128 v35, {vr(ACC + 12, 4)} offset:1024')
    a(f's_branch {lkd}')
    a.label(lk1)
    a(f'ds_write_b128 v35, {vr(ACC, 4)}')
    a(f'ds_write_b128 v35, {vr(ACC + 4, 4)} offset:1024')
    for k in range(8):
        a(f'v_mov_b32 {vr(ACC + k)}, {vr(ACC + 8 + k)}')
    a.label(lkd)
    a(f's_lshl_b32 {sA}, {sRB}, 6'); a(f's_lshl_b32 {sB}, {sHI}, 5'); a(f's_add_u32 {sA}, {sA}, {sB}')
    a(f's_lshl_b32 {sA}, {sA}, 10')
    a(f's_lshl_b32 {sB}, {sCS}, 7'); a(f's_add_u32 {sA}, {sA}, {sB}')
    a(f's_lshl_b32 {sB}, {sLO}, 5'); a(f's_add_u32 {sE}, {sA}, {sB}')
    a('v_lshlrev_b32 v36, 10, v2')
    a('v_lshl_add_u32 v36, v3, 3, v36')
    a('s_waitcnt lgkmcnt(0)')
    a('s_barrier')
    a(f's_xor_b32 {sA}, {sWV}, 4')
    a(f's_lshl_b32 {sA}, {sA}, 11')
    a(f's_add_u32 {sA}, {sA}, {L_EX}')
    a(f'v_add_u32 v35, {sA}, {vr(vL16)}')
    stamp('exch')
    a('ds_read_b128 v[64:67], v35')
    a('ds_read_b128 v[68:71], v35 offset:1024')
    for e in range(2):
        for k in range(4):
            for (src, dst) in ((X1R + 2 * e + (k >> 1), 72 + 8 * e + k), (XS + 2 * e + (k >> 1), 76 + 8 * e + k)):
                if k & 1:
                    a(f'v_and_b32 {vr(dst)}, 0xffff0000, {vr(src)}')
                else:
                    a(f'v_lshlrev_b32 {vr(dst)}, 16, {vr(src)}')
    a('s_waitcnt lgkmcnt(0)')
    for e in range(2):
        for k in range(4):
            r = ACC + 4 * e + k
            a(f'v_add_f32 {vr(r)}, {vr(r)}, {vr(64 + 4 * e + k)}')
            a(f'v_add_f32 {vr(r)}, {vr(r)}, {vr(72 + 8 * e + k)}')
            a(f'v_fma_f32 {vr(r)}, {vr(16 + k)}, {vr(r)}, {vr(76 + 8 * e + k)}')
        a(f'v_cvt_pk_bf16_f32 {vr(88 + 2 * e)}, {vr(ACC + 4 * e)}, {vr(ACC + 4 * e + 1)}')
        a(f'v_cvt_pk_bf16_f32 {vr(89 + 2 * e)}, {vr(ACC + 4 * e + 2)}, {vr(ACC + 4 * e + 3)}')
    bstore(88, 2, 36, OUT, soff=sE)
    a(f's_add_u32 {sE}, {sE}, 16384')
    bstore(90, 2, 36, OUT, soff=sE)


def finish():
    lf = a.newlabel('L_fin')
    a('s_cmp_lg_u32 s2, 0')
    a(f's_cbranch_scc1 {lf}')
    a(f's_cmp_lg_u32 {sWV}, 0')
    a(f's_cbranch_scc1 {lf}')
    a(f'v_mov_b32 v14, {sT}')
    a(f'v_mov_b32 v15, {WS_EPOCH}')
    save_exec_mask('1')
    bstore(14, 1, 15, WS, mods='sc1')
    restore_exec()
    a.label(lf)
    if PADTO or STAMPS:
        a('s_waitcnt vmcnt(0)')
    if PADTO:
        lp = a.newlabel('L_pad'); lq = a.newlabel('L_padq')
        a('s_cmp_lg_u32 s2, 0')
        a(f's_cbranch_scc1 {lq}')
        a.label(lp)
        a('s_memrealtime s[98:99]')
        a('s_waitcnt lgkmcnt(0)')
        a('s_sub_u32 s98, s98, s3')
        a(f's_cmp_lt_u32 s98, {PADTO * 100}')
        a(f's_cbranch_scc1 {lp}')
        a.label(lq)
    stamp('end')
    if STAMPS:
        for i in range(len(stamp_names)):
            a(f'v_writelane_b32 v255, s{STAMP_REGS[i]}, {i}')
        a(f's_lshl_b32 {sA}, s2, 3')
        a(f's_add_u32 {sA}, {sA}, {sWV}')
        a(f's_lshl_b32 {sA}, {sA}, 8')
        a(f's_add_u32 {sA}, {sA}, {WS_DBG}')
        a(f'v_lshl_add_u32 v20, v1, 2, {sA}')
        bstore(255, 1, 20, WS)
        a('s_waitcnt vmcnt(0)')
        open('stamps.txt', 'w').write('\n'.join(stamp_names) + '\n')
    a.label('L_END')
    a('s_endpgm')


def build(debug=True):
    global DEBUG
    DEBUG = debug
    prologue()
    phase_a()
    phase_b()
    for name, fn in (('3', phase3), ('4', phase4), ('5', phase5), ('6', phase6)):
        if STOP_AFTER and STOP_AFTER < name and STOP_AFTER != '':
            break
        fn()
    finish()
    nops = a.fast_hazard_pass()
    errs = a.check_waits([{'s5': w, 's89': nv} for w in range(8) for nv in ((1, 2) if w < 3 else (1,))])
    for e in errs:
        print('WAIT-CHECK:', e, file=sys.stderr)
    hdr = open('adaLN_cond__ssm_conv_s4__mixer_s_mlp__prompt.s.ref').read().split('\n')
    head = [l for l in hdr if l.startswith(';') and '@launch' not in l and 'Override' not in l and 'grid=ceil' not in l]
    txt = '\n'.join(head) + '\n; @launch grid=(256,1,1) block=(512,1,1) lds=163840\n'
    txt += '.amdgcn_target "amdgcn-amd-amdhsa--gfx950"\n.text\n'
    txt += f'.globl {KNAME}\n.p2align 8\n.type {KNAME},@function\n{KNAME}:\n'
    txt += a.text()
    txt += f'''.section .rodata,"a"
.p2align 6
.amdhsa_kernel {KNAME}
  .amdhsa_next_free_vgpr 256
  .amdhsa_next_free_sgpr 102
  .amdhsa_accum_offset 256
  .amdhsa_group_segment_fixed_size 0
  .amdhsa_kernarg_size 152
  .amdhsa_user_sgpr_count 2
  .amdhsa_user_sgpr_kernarg_segment_ptr 1
  .amdhsa_system_sgpr_workgroup_id_x 1
  .amdhsa_float_denorm_mode_32 3
.end_amdhsa_kernel
'''
    print(f'instructions: {len(a.lines)}  hazard nops: {nops}', file=sys.stderr)
    return txt


if __name__ == '__main__':
    out = sys.argv[1] if len(sys.argv) > 1 else 'k.s'
    open(out, 'w').write(build(debug=os.environ.get('NODEBUG') is None))
```

```python
import sys, os, struct
sys.path.insert(0, os.path.dirname(os.path.abspath(__file__)))
from asmlib import Asm
from layout import *

KNAME = 'adaLN_cond__ssm_conv_s4__mixer_s_mlp__prompt_kernel'
STOP_AFTER = os.environ.get('STOP_AFTER', '')
STAMPS = os.environ.get('STAMPS') is not None
PADTO = int(os.environ.get('PADTO', '0'))
SPIN_MAX = 20000
XP = os.environ.get('XP', '').split(',')
NOFAST = True
LDM = os.environ.get('LDM', 'sc1')
PRETOUCH = int(os.environ.get('PRETOUCH', '0'))
NOSCOUT = os.environ.get('NOSCOUT') is not None
FASTX = os.environ.get('FASTX') is not None
CM = '' if FASTX else 'sc1'

sT = 's4'; sWV = 's5'; sX = 's6'; sJ = 's7'
U, WS, OUT = 8, 12, 16
ARE, AIM, BRE, BIM, CRE, CIM = 20, 24, 28, 32, 36, 40
LDT, DSK, CC, WMOD, W1, W2, W3, W4 = 44, 48, 52, 56, 60, 64, 68, 72
sCH0 = 's76'; sRB = 's77'; sCS = 's78'; sNT3 = 's79'
sA, sB, sC, sD = 's80', 's81', 's82', 's83'
sSPIN = 's84'; sLO = 's85'; sHI = 's86'
sE, sF = 's87', 's88'; sNV = 's89'
mK1, mK2, mK3, mDG = 90, 92, 94, 96
sX0 = 98
sT32 = 's100'; sCQ = 's101'
sROT = 's68'
mFA, mSL = 64, 66
TSRD = 92
sSD, sSN, sSS, sSB = 's90', 's91', 's96', 's97'
sSR, sSO = 's74', 's75'

vL16, vVB = 4, 5
XS, X1R = 6, 10


def srd(n):
    return f's[{n}:{n + 3}]'


def vr(a, n=1):
    return f'v{a}' if n == 1 else f'v[{a}:{a + n - 1}]'


def fconst(x):
    return hex(struct.unpack('<I', struct.pack('<f', x))[0])


L_G = 0; G_ROW = 544; G_CH = 48 * G_ROW
L_E = 2 * G_CH; E_CH = 16 * G_ROW
L_KT = L_E + 2 * E_CH; KT_CH = 5120; KT_ZERO = 2559
L_COPY = L_KT + 2 * KT_CH; CP_R = 4160; CP_CH = 4 * CP_R
L_STG = L_COPY + 2 * CP_CH
L_PART = 0
L_XC = 143360
L_H = L_XC + 8192; H_CH = 4672
assert L_STG + 4 * 4096 <= L_XC and L_H + 2 * H_CH <= 163840
L_X = 0
L_HF = 32768
L_A4 = 65536
L_XS = 114688
L_CB = 122880
L_ST = L_CB + 4096
L_ST3 = L_ST + 1024
L_X1 = 0
L_ST5 = 147456
NSLOT = 18
L_EX = 147456

a = Asm()
stamp_names = []
STAMP_REGS = [3] + list(range(20, 48)) + list(range(52, 60))
STAMPSET = os.environ.get('STAMPSET', 'all')
LATE_ONLY = ('entry', 'S4ok', 'x1landed', 'k5a', 'k5b', 'k12a', 'k12b', 'gemm3', 'loop2', 'epiB', 'h3stored', 'S5ok', 'g0', 'g1', 'g2', 'g3', 'g4', 'g5', 'g6', 'g7', 'gemm4', 'exch', 'end')


def stamp(name):
    if not STAMPS:
        return
    if STAMPSET == 'late' and name not in LATE_ONLY:
        return
    if STAMPSET == 'all' and name in ('k5a', 'k5b', 'k12a', 'k12b', 'loop2', 'epiB', 'g0', 'g1', 'g2', 'g3', 'g4', 'g5', 'g6', 'g7', 'exch'):
        return
    if name in stamp_names:
        i = stamp_names.index(name)
    else:
        i = len(stamp_names)
        stamp_names.append(name)
    a(f's_memtime s[{sX0}:{sX0 + 1}]' if os.environ.get('CYC') else f's_memrealtime s[{sX0}:{sX0 + 1}]')
    a('s_waitcnt lgkmcnt(0)')
    a(f's_mov_b32 s{STAMP_REGS[i]}, s{sX0}')


def bload(dst, n, voff, s, imm=0, soff='0', mods=''):
    op = {1: 'buffer_load_dword', 2: 'buffer_load_dwordx2', 4: 'buffer_load_dwordx4', 'u16': 'buffer_load_ushort'}[n]
    cnt = 1 if n == 'u16' else n
    a(f'{op} {vr(dst, cnt)}, {vr(voff)}, {srd(s)}, {soff} offen' + (f' offset:{imm}' if imm else '') + (' ' + mods if mods else ''))


def bstore(src, n, voff, s, imm=0, soff='0', mods=''):
    op = {1: 'buffer_store_dword', 2: 'buffer_store_dwordx2', 4: 'buffer_store_dwordx4'}[n]
    a(f'{op} {vr(src, n)}, {vr(voff)}, {srd(s)}, {soff} offen' + (f' offset:{imm}' if imm else '') + (' ' + mods if mods else ''))


def dma(n, voff, s, m0, soff='0', mods=''):
    a(f's_mov_b32 m0, {m0}')
    op = {1: 'buffer_load_dword', 4: 'buffer_load_dwordx4'}[n]
    a(f'{op} {vr(voff)}, {srd(s)}, {soff} offen' + (' ' + mods if mods else '') + ' lds')


def cstore(src, n, voff, soff):
    if NOFAST:
        bstore(src, n, voff, WS, soff=soff, mods='sc1')
        return
    a(f's_mov_b64 exec, s[{mFA}:{mFA + 1}]')
    bstore(src, n, voff, WS, soff=soff)
    a(f's_mov_b64 exec, s[{mSL}:{mSL + 1}]')
    bstore(src, n, voff, WS, soff=soff, mods='sc1')
    a('s_mov_b64 exec, -1')


def mfma(d, x, y, c=None):
    cc = '0' if c is None else vr(c, 4)
    a(f'v_mfma_f32_16x16x32_bf16 {vr(d, 4)}, {vr(x, 4)}, {vr(y, 4)}, {cc}')


def cmul(d, x, y):
    a(f'v_pk_mul_f32 {vr(d, 2)}, {vr(x, 2)}, {vr(y, 2)} op_sel:[0,0] op_sel_hi:[0,1]')
    a(f'v_pk_fma_f32 {vr(d, 2)}, {vr(x, 2)}, {vr(y, 2)}, {vr(d, 2)} op_sel:[1,1,0] op_sel_hi:[1,0,1] neg_lo:[1,0,0]')


def save_exec_mask(mask):
    a(f's_mov_b64 s[{sX0}:{sX0 + 1}], exec')
    if isinstance(mask, int) and mask > 64:
        a(f's_mov_b32 exec_lo, {hex(mask & 0xffffffff)}')
        a(f's_mov_b32 exec_hi, {hex(mask >> 32)}')
    else:
        a(f's_mov_b64 exec, {mask}')


def restore_exec():
    a(f's_mov_b64 exec, s[{sX0}:{sX0 + 1}]')


def prologue():
    if PADTO:
        a('s_memrealtime s[78:79]')
        a('s_waitcnt lgkmcnt(0)')
        a('s_mov_b32 s3, s78')
    a('s_cmp_ge_u32 s2, 256')
    a('s_cbranch_scc1 L_END')
    ptrs = [(U, 0), (WS, 144), (ARE, 8), (AIM, 16), (BRE, 24), (BIM, 32), (CRE, 40), (CIM, 48), (LDT, 56), (CC, 112),
            (WMOD, 120), (W1, 80), (W2, 88), (W3, 96), (W4, 104), (DSK, 64), (OUT, 128)]
    for r, off in ptrs:
        a(f's_load_dwordx2 s[{r}:{r + 1}], s[0:1], {off}')
    sizes = {U: 2 * 1024 * 1024, ARE: 131072, AIM: 131072, BRE: 131072, BIM: 131072, CRE: 131072, CIM: 131072,
             LDT: 1024, DSK: 1024, W1: 524288, W2: 524288, W3: 512 * F_ * 2, W4: 512 * F_ * 2, CC: 1024,
             WMOD: 512 * 3072 * 2, OUT: 2 * 1024 * 1024, WS: WS_USED + (WS_DBG_SIZE if DEBUG else 0)}
    a('v_lshrrev_b32 v2, 6, v0')
    a('v_and_b32 v1, 63, v0')
    a(f'v_readfirstlane_b32 {sWV}, v2')
    for r, sz in sizes.items():
        a(f's_mov_b32 s{r + 2}, {sz}')
        a(f's_mov_b32 s{r + 3}, 0x20000')
    a('v_and_b32 v2, 15, v1')
    a('v_lshrrev_b32 v3, 4, v1')
    a(f'v_lshlrev_b32 {vr(vL16)}, 4, v1')
    a(f's_and_b32 {sX}, s2, 7')
    if os.environ.get('XROT'):
        a(f's_add_u32 {sX}, {sX}, {os.environ["XROT"]}')
        a(f's_and_b32 {sX}, {sX}, 7')
    a(f's_lshr_b32 {sJ}, s2, 3')
    a(f's_lshl_b32 {sCH0}, {sX}, 6')
    a(f's_lshl_b32 {sA}, {sJ}, 1')
    a(f's_add_u32 {sCH0}, {sCH0}, {sA}')
    a(f's_lshl_b32 {sRB}, {sX}, 2')
    a(f's_lshr_b32 {sA}, {sJ}, 3')
    a(f's_add_u32 {sRB}, {sRB}, {sA}')
    a(f's_and_b32 {sCS}, {sJ}, 7')
    a(f's_lshl_b32 {sT32}, {sRB}, 1')
    a(f's_and_b32 {sA}, {sCS}, 1')
    a(f's_add_u32 {sT32}, {sT32}, {sA}')
    a(f's_lshr_b32 {sCQ}, {sCS}, 1')
    a('v_mov_b32 v102, 0')
    a('s_waitcnt lgkmcnt(0)')
    a(f's_mov_b64 s[{TSRD}:{TSRD + 1}], s[{W1}:{W1 + 1}]')
    a(f's_mov_b32 s{TSRD + 2}, 524288')
    a(f's_mov_b32 s{TSRD + 3}, 0x20000')


EXA = 112
KMA, KMB, KMD = 108, 109, 104


def precompute():
    a(f's_load_dword {sT}, s[{WS}:{WS + 1}], {WS_EPOCH}')
    a(f'v_lshlrev_b32 {vr(vVB)}, 4, v2')
    a(f'v_lshl_add_u32 {vr(vVB)}, v3, 9, {vr(vVB)}')
    a('v_and_b32 v16, 255, v0')
    a('v_lshlrev_b32 v16, 3, v16')
    a(f's_lshr_b32 {sA}, {sWV}, 2')
    a(f's_mul_i32 {sA}, {sA}, {KT_CH}')
    a(f's_add_u32 {sA}, {sA}, {L_KT}')
    a(f'v_cvt_f32_u32 v17, {sA}')
    a(f's_add_u32 {sA}, {sA}, {2 * KT_ZERO}')
    a(f'v_mov_b32 v18, {sA}')
    a('v_cvt_f32_u32 v19, v16')
    a('v_cmp_eq_u32 vcc, 0, v16')
    for d in range(1, 12):
        dd = d - 4
        r = EXA + d
        a(f'v_add_f32 v20, {float(dd)}, v19' if -16 <= dd <= 4 and float(dd) in (-4.0, -2.0, -1.0, 1.0, 2.0, 4.0, 0.5) else
          f'v_add_f32 v20, {fconst(float(dd))}, v19')
        a('v_cvt_pk_bf16_f32 v20, v20, v20')
        a('v_and_b32 v20, 0xffff0000, v20')
        a('v_fma_f32 v20, v20, 2.0, v17')
        a(f'v_cvt_u32_f32 {vr(r)}, v20')
        if dd < 0:
            a(f'v_cndmask_b32 {vr(r)}, {vr(r)}, v18, vcc')
    a(f's_cmp_ge_u32 {sWV}, 3')
    a(f's_cselect_b32 {sA}, 1, 0')
    a(f's_mul_i32 {sB}, {sA}, 3')
    a(f's_sub_u32 {sB}, {sWV}, {sB}')
    a(f's_mul_i32 {sC}, {sA}, {G_CH}')
    a(f's_mul_i32 {sD}, {sB}, {16 * G_ROW}')
    a(f's_add_u32 {sC}, {sC}, {sD}')
    a(f'v_mul_u32_u24 v16, {G_ROW}, v2')
    a('v_lshl_add_u32 v16, v3, 4, v16')
    a(f'v_add_u32 {vr(KMA)}, {sC}, v16')
    a(f's_mul_i32 {sC}, {sA}, {E_CH}')
    a(f's_add_u32 {sC}, {sC}, {L_E}')
    a(f'v_add_u32 {vr(KMB)}, {sC}, v16')
    bases = [(0, 4, 128, 132), (256, 384, 512, 516), (1024, 1536, 2048, 2049)]
    steps = [(1, 1, 1, 1), (2, 2, 128, 128), (128, 128, 128, 128)]
    pk2 = lambda x, y: x | (y << 16)
    pk4 = lambda t: t[0] | (t[1] << 8) | (t[2] << 16) | (t[3] << 24)
    for reg, vals in ((sC, [pk2(b[0], b[1]) for b in bases]), (sD, [pk2(b[2], b[3]) for b in bases]),
                      (sE, [pk4(s) for s in steps])):
        a(f's_mov_b32 {reg}, {vals[0]}')
        a(f's_cmp_eq_u32 {sB}, 1')
        a(f's_cselect_b32 {reg}, {vals[1]}, {reg}')
        a(f's_cmp_eq_u32 {sB}, 2')
        a(f's_cselect_b32 {reg}, {vals[2]}, {reg}')
    a('v_cmp_gt_u32 vcc, 2, v3')
    a(f'v_mov_b32 v16, {sD}')
    a(f'v_mov_b32 v17, {sC}')
    a('v_cndmask_b32 v16, v16, v17, vcc')
    a('v_and_b32 v17, 1, v3')
    a('v_lshlrev_b32 v17, 4, v17')
    a('v_bfe_u32 v16, v16, v17, 16')
    a('v_lshlrev_b32 v17, 3, v3')
    a(f'v_bfe_u32 v17, {sE}, v17, 8')
    a('v_lshl_add_u32 v16, v2, 3, v16')
    a(f's_mul_i32 {sC}, {sA}, {KT_CH}')
    a(f's_add_u32 {sC}, {sC}, {L_KT}')
    a(f'v_lshlrev_b32 v16, 1, v16')
    a(f'v_add_u32 {vr(KMD)}, {sC}, v16')
    a('v_lshlrev_b32 v17, 1, v17')
    for r in range(1, 4):
        a(f'v_add_u32 {vr(KMD + r)}, {vr(KMD + r - 1)}, v17')
    a('s_waitcnt lgkmcnt(0)')
    a(f's_add_u32 {sT}, {sT}, 1')


def role_k():
    a(f's_lshr_b32 {sA}, {sWV}, 1')
    a(f's_add_u32 {sB}, {sCH0}, {sA}')
    a(f's_and_b32 {sC}, {sWV}, 1')
    a(f's_lshl_b32 {sC}, {sC}, 6')
    a(f's_lshl_b32 {sD}, {sB}, 7')
    a(f's_add_u32 {sD}, {sD}, {sC}')
    a(f'v_add_u32 v21, {sD}, v1')
    a('v_lshlrev_b32 v21, 1, v21')
    a(f's_lshl_b32 {sB}, {sB}, 1')
    a(f'v_mov_b32 v22, {sB}')
    for i, s in enumerate((ARE, AIM, BRE, BIM, CRE, CIM)):
        bload(24 + i, 'u16', 21, s)
    bload(30, 'u16', 22, LDT)
    if PRETOUCH:
        a(f'v_lshlrev_b32 v126, {PRETOUCH}, v1')
        a('v_min_u32 v126, ' + str(WS_USED - 4) + ', v126')
        bload(127, 1, 126, WS)
    a(f's_mul_i32 {sB}, {sA}, {G_CH}')
    a(f'v_add_u32 v22, {sC}, v1')
    a('v_lshlrev_b32 v22, 2, v22')
    a(f'v_add_u32 v23, {sB}, v22')
    a(f's_mul_i32 {sB}, {sA}, {E_CH}')
    a(f's_add_u32 {sB}, {sB}, {L_E}')
    a(f'v_add_u32 v22, {sB}, v22')
    precompute()
    swz_issue()
    a('s_waitcnt vmcnt(0)')
    stamp('r_loaded')
    for i in range(7):
        a(f'v_lshlrev_b32 {vr(24 + i)}, 16, {vr(24 + i)}')
    LOG2E = 1.4426950408889634
    hi = struct.unpack('<f', struct.pack('<f', LOG2E))[0]
    lo = LOG2E - hi
    a(f'v_mul_f32 v32, {fconst(hi)}, v30')
    a(f'v_mov_b32 v31, {fconst(hi)}')
    a('v_fma_f32 v33, v30, v31, -v32')
    a(f'v_fmamk_f32 v33, v30, {fconst(lo)}, v33')
    a('v_exp_f32 v32, v32')
    a(f'v_mul_f32 v33, {fconst(0.6931471805599453)}, v33')
    a('v_fma_f32 v32, v32, v33, v32')
    a('v_cvt_pk_bf16_f32 v32, v32, v32')
    a('v_lshlrev_b32 v30, 16, v32')
    a('v_mul_f32 v24, v24, v30')
    a('v_mul_f32 v25, v25, v30')
    a(f'v_mul_f32 v24, {fconst(hi)}, v24')
    a(f'v_mul_f32 v25, {fconst(1.0 / (2 * 3.141592653589793))}, v25')
    a('v_mul_f32 v26, v26, v30')
    a('v_mul_f32 v27, v27, v30')
    cmul(32, 26, 28)
    for d, m in ((34, 1.0), (36, 8.0), (38, 128.0)):
        if m == 1.0:
            a('v_exp_f32 v40, v24'); a('v_fract_f32 v41, v25')
        else:
            a(f'v_mul_f32 v40, {fconst(m)}, v24')
            a(f'v_mul_f32 v41, {fconst(m)}, v25')
            a('v_exp_f32 v40, v40'); a('v_fract_f32 v41, v41')
        a('v_cos_f32 v42, v41')
        a('v_sin_f32 v43, v41')
        a(f'v_mul_f32 {vr(d)}, v40, v42')
        a(f'v_mul_f32 {vr(d + 1)}, v40, v43')
    P = {1: 34, 2: 44, 3: 46, 4: 48, 5: 50, 6: 52, 7: 54}
    cmul(P[2], P[1], P[1])
    cmul(P[3], P[2], P[1])
    cmul(P[4], P[2], P[2])
    cmul(P[5], P[4], P[1])
    cmul(P[6], P[4], P[2])
    cmul(P[7], P[4], P[3])

    def putG(rho, x):
        a(f'v_cvt_pk_bf16_f32 v31, {vr(x)}, -{vr(x + 1)}')
        a(f'ds_write_b32 v23, v31 offset:{rho * G_ROW}')

    def putE(j, x):
        a(f'v_cvt_pk_bf16_f32 v29, {vr(x)}, {vr(x + 1)}')
        a(f'ds_write_b32 v22, v29 offset:{j * G_ROW}')

    rows = {}
    for rho in range(41):
        if rho < 16:
            i, b = rho >> 3, rho & 7
        elif rho < 24:
            i, b = 2 + ((rho - 16) >> 2), 2 * ((rho - 16) & 3)
        elif rho < 32:
            i, b = 4 + ((rho - 24) & 3), 4 * ((rho - 24) >> 2)
        else:
            i, b = 8 + (rho - 32), 0
        rows.setdefault(i, []).append((rho, b))
    a('v_mov_b32 v29, 0x00003f80')
    a('ds_write_b32 v22, v29 offset:0')
    putE(1, 36)
    Ecur = 36
    Q = 32
    for i in range(17):
        for n_, (rho, b) in enumerate(rows[i]):
            if b == 0:
                putG(rho, Q)
            else:
                t = 64 + 2 * (n_ & 1)
                cmul(t, Q, P[b])
                putG(rho, t)
        if i < 16:
            nq = 60 if Q != 60 else 62
            cmul(nq, Q, 38)
            Q = nq
        j = i + 2
        if j < 16:
            ne = 56 if Ecur != 56 else 58
            cmul(ne, Ecur, 36)
            putE(j, ne)
            Ecur = ne
    a('v_mov_b32 v14, v102')
    swz_dma()


def swz_issue():
    a(f's_lshl_b32 {sA}, s2, 2')
    a(f's_add_u32 {sA}, {sA}, {sWV}')
    a(f's_add_u32 {sA}, {sA}, 128')
    a(f's_cmp_lt_u32 {sA}, 952')
    a(f's_cselect_b32 {sSN}, 4, 0')
    a(f's_cselect_b32 {sA}, {sA}, 128')
    a(f's_mov_b64 s[{TSRD}:{TSRD + 1}], s[{W1}:{W1 + 1}]')
    a(f's_mov_b32 s{TSRD + 2}, 524288')
    a(f's_mov_b32 s{TSRD + 3}, 0x20000')
    a(f's_mov_b32 {sSD}, {WS_W1S}')
    a(f's_mov_b32 {sSS}, 16384')
    a(f's_mov_b32 {sF}, 1024')
    a(f's_mov_b32 {sB}, {sA}')
    a(f's_cmp_ge_u32 {sA}, 128')
    a(f's_cselect_b64 s[{TSRD}:{TSRD + 1}], s[{W2}:{W2 + 1}], s[{TSRD}:{TSRD + 1}]')
    a(f's_cselect_b32 {sSD}, {WS_W2S}, {sSD}')
    a(f's_cselect_b32 {sC}, 128, 0')
    a(f's_sub_u32 {sB}, {sA}, {sC}')
    a(f's_cmp_ge_u32 {sA}, 256')
    a(f's_cselect_b64 s[{TSRD}:{TSRD + 1}], s[{W3}:{W3 + 1}], s[{TSRD}:{TSRD + 1}]')
    a(f's_cselect_b32 s{TSRD + 2}, {512 * F_ * 2}, s{TSRD + 2}')
    a(f's_cselect_b32 {sSD}, {WS_W3S}, {sSD}')
    a(f's_cselect_b32 {sF}, {F_ * 2}, {sF}')
    a(f's_cselect_b32 {sC}, 256, 0')
    a(f's_cselect_b32 {sD}, 1, 0')
    a(f's_cmp_lg_u32 {sD}, 0')
    a(f's_sub_u32 {sC}, {sA}, {sC}')
    a(f's_cmp_lg_u32 {sD}, 0')
    a(f's_cselect_b32 {sB}, {sC}, {sB}')
    a(f's_and_b32 {sC}, {sB}, 15')
    a(f's_lshr_b32 {sD}, {sB}, 4')
    a(f's_mov_b32 {sE}, 16')
    a(f's_cmp_ge_u32 {sA}, 608')
    a(f's_cselect_b64 s[{TSRD}:{TSRD + 1}], s[{W4}:{W4 + 1}], s[{TSRD}:{TSRD + 1}]')
    a(f's_cselect_b32 {sSD}, {WS_W4S}, {sSD}')
    a(f's_cselect_b32 {sF}, 1024, {sF}')
    a(f's_cselect_b32 {sE}, 43, {sE}')
    a(f's_cselect_b32 {sSS}, {43 * 1024}, {sSS}')
    a(f's_sub_u32 {sB}, {sA}, 608')
    a(f's_lshr_b32 {sSB}, {sB}, 3')
    a(f's_and_b32 {sB}, {sB}, 7')
    a(f's_cmp_ge_u32 {sA}, 608')
    a(f's_cselect_b32 {sC}, {sSB}, {sC}')
    a(f's_cselect_b32 {sD}, {sB}, {sD}')
    a(f's_cselect_b32 {sB}, 0, {sD}')
    a(f's_cmp_eq_u32 {sB}, 21')
    a(f's_cselect_b32 {sB}, 2, 4')
    a(f's_min_u32 {sSN}, {sSN}, {sB}')
    a(f's_lshl_b32 {sB}, {sD}, 2')
    a(f's_mul_i32 {sB}, {sB}, {sE}')
    a(f's_add_u32 {sB}, {sB}, {sC}')
    a(f's_lshl_b32 {sB}, {sB}, 10')
    a(f's_add_u32 {sSD}, {sSD}, {sB}')
    a(f's_mul_i32 {sC}, {sC}, {sF}')
    a(f's_lshl_b32 {sC}, {sC}, 5')
    a(f's_lshl_b32 {sD}, {sD}, 7')
    a(f's_add_u32 {sC}, {sC}, {sD}')
    a('v_lshrrev_b32 v100, 3, v1')
    a(f'v_mul_lo_u32 v100, v100, {sF}')
    a('v_and_b32 v101, 7, v1')
    a('v_lshl_add_u32 v102, v101, 4, v100')
    a(f's_lshl_b32 {sB}, {sWV}, 12')
    a(f's_add_u32 {sSB}, {sB}, {L_STG}')
    a(f's_lshl_b32 {sSR}, {sF}, 3')
    a(f's_mov_b32 {sSO}, {sC}')


def swz_dma():
    a(f's_mov_b32 {sC}, {sSO}')
    for q in range(4):
        if q:
            a(f's_add_u32 {sC}, {sC}, {sSR}')
        a(f's_add_u32 {sB}, {sSB}, {q * 1024}')
        dma(4, 14, TSRD, sB, soff=sC)


def swz_finish():
    a('v_lshrrev_b32 v46, 2, v2')
    a('v_lshl_add_u32 v46, v3, 3, v46')
    a('v_lshlrev_b32 v46, 7, v46')
    a('v_and_b32 v47, 3, v2')
    a('v_lshl_add_u32 v46, v47, 3, v46')
    a(f'v_add_u32 v46, {sSB}, v46')
    for nt in range(4):
        a(f'ds_read_b64_tr_b16 {vr(48 + 4 * nt, 2)}, v46 offset:{32 * nt}')
        a(f'ds_read_b64_tr_b16 {vr(50 + 4 * nt, 2)}, v46 offset:{32 * nt + 512}')
    a('s_waitcnt lgkmcnt(0)')
    a(f's_mov_b32 {sA}, {sSD}')
    a(f's_mov_b32 {sB}, 0x7ff00000')
    for nt in range(4):
        a(f's_cmp_gt_u32 {sSN}, {nt}')
        a(f's_cselect_b32 {sC}, {sA}, {sB}')
        bstore(48 + 4 * nt, 4, vL16, WS, soff=sC, mods='sc1')
        a(f's_add_u32 {sA}, {sA}, {sSS}')


def role_stats():
    a(f's_lshl_b32 {sA}, s2, 13')
    a(f's_add_u32 {sB}, {sA}, 4096')
    for i in range(8):
        bload(24 + 4 * i, 4, vL16, U, imm=(i & 3) * 1024, soff=(sA if i < 4 else sB))
    precompute()
    a('v_mov_b32 v23, 0x3f803f80')
    a('s_waitcnt vmcnt(7)')
    stamp('r_loaded')
    for i in range(8):
        a(f's_waitcnt vmcnt({7 - i})')
        b = 24 + 4 * i
        a(f'v_dot2_f32_bf16 {vr(60 + i)}, {vr(b)}, v23, 0')
        a(f'v_dot2_f32_bf16 {vr(68 + i)}, {vr(b)}, {vr(b)}, 0')
        for k in range(1, 4):
            a(f'v_dot2c_f32_bf16 {vr(60 + i)}, {vr(b + k)}, v23')
            a(f'v_dot2c_f32_bf16 {vr(68 + i)}, {vr(b + k)}, {vr(b + k)}')
    for base in (60, 68):
        for i in range(4):
            a(f'v_permlane32_swap_b32 {vr(base + i)}, {vr(base + i + 4)}')
        for i in range(4):
            a(f'v_add_f32 {vr(base + i)}, {vr(base + i)}, {vr(base + i + 4)}')
    for base in (60, 68):
        for i in range(2):
            a(f'v_permlane16_swap_b32 {vr(base + i)}, {vr(base + i + 2)}')
        for i in range(2):
            a(f'v_add_f32 {vr(base + i)}, {vr(base + i)}, {vr(base + i + 2)}')
    for sh in (1, 2, 4, 8):
        for r in (60, 61, 68, 69):
            a(f'v_add_f32_dpp {vr(r)}, {vr(r)}, {vr(r)} row_ror:{sh} row_mask:0xf bank_mask:0xf')
    for p in range(2):
        S, Q = 60 + p, 68 + p
        d = 72 + 4 * p
        a(f'v_mul_f32 {vr(S)}, {fconst(1.0 / 512)}, {vr(S)}')
        a(f'v_mul_f32 {vr(Q)}, {fconst(1.0 / 512)}, {vr(Q)}')
        a(f'v_fma_f32 {vr(Q)}, -{vr(S)}, {vr(S)}, {vr(Q)}')
        a(f'v_max_f32 {vr(Q)}, 0, {vr(Q)}')
        a(f'v_add_f32 {vr(Q)}, {fconst(1e-5)}, {vr(Q)}')
        a(f'v_rsq_f32 {vr(d)}, {vr(Q)}')
        a(f'v_mov_b32 {vr(d + 1)}, {sT}')
        a(f'v_mov_b32 {vr(d + 3)}, {sT}')
        a(f'v_mul_f32 {vr(d + 2)}, {vr(S)}, {vr(d)}')
    a(f's_lshl_b32 {sA}, s2, 7')
    a(f's_add_u32 {sA}, {sA}, {WS_STATS}')
    a('v_lshlrev_b32 v21, 5, v3')
    save_exec_mask(0x0001000100010001)
    bstore(72, 4, 21, WS, soff=sA, mods='sc1')
    bstore(76, 4, 21, WS, imm=16, soff=sA, mods='sc1')
    restore_exec()
    stamp('r_pub')


L_SIL = 139264


def role_mod():
    lskip = a.newlabel('L_nomod'); ldone = a.newlabel('L_moddone')
    a('s_cmp_ge_u32 s2, 192')
    a(f's_cbranch_scc1 {lskip}')
    a(f's_mul_i32 {sA}, {sJ}, 43')
    a(f's_lshr_b32 {sA}, {sA}, 8')
    a(f's_mul_i32 {sB}, {sA}, 6')
    a(f's_sub_u32 {sB}, {sJ}, {sB}')
    a(f's_lshl_b32 {sB}, {sB}, 3')
    a(f's_add_u32 {sNV}, {sB}, {sX}')
    a(f's_lshl_b32 {sA}, {sA}, 1')
    a(f's_add_u32 {sA}, {sA}, {sWV}')
    a(f's_sub_u32 {sNT3}, {sA}, 5')
    a('v_lshlrev_b32 v22, 1, v1')
    a(f's_lshl_b32 {sA}, {sNT3}, 7')
    bload(24, 'u16', 22, CC, soff=sA)
    a('v_lshrrev_b32 v21, 3, v1')
    a('v_mul_u32_u24 v23, 6144, v21')
    a('v_and_b32 v40, 7, v1')
    a('v_lshl_add_u32 v23, v40, 4, v23')
    a(f's_mul_i32 {sA}, {sNT3}, {64 * 6144}')
    a(f's_lshl_b32 {sB}, {sNV}, 7')
    a(f's_add_u32 {sA}, {sA}, {sB}')
    for i in range(8):
        if i:
            a(f's_add_u32 {sA}, {sA}, {8 * 6144}')
        bload(64 + 4 * i, 4, 23, WMOD, soff=sA)
    precompute()
    a('s_waitcnt vmcnt(8)')
    stamp('r_loaded')
    a('v_lshlrev_b32 v24, 16, v24')
    a(f'v_mul_f32 v58, {fconst(-1.4426950408889634)}, v24')
    a('v_exp_f32 v58, v58')
    a('v_add_f32 v58, 1.0, v58')
    a('v_rcp_f32 v58, v58')
    a('v_mul_f32 v58, v58, v24')
    a('v_cvt_pk_bf16_f32 v58, v58, v58')
    a('v_and_b32 v56, 0xffff, v58')
    a('v_and_b32 v57, 0xffff0000, v58')
    a(f's_sub_u32 {sA}, {sWV}, 5')
    a(f's_lshl_b32 {sA}, {sA}, 9')
    a(f's_add_u32 {sA}, {sA}, {L_SIL}')
    a('v_and_b32 v25, 7, v1')
    a('v_lshlrev_b32 v25, 5, v25')
    a('v_lshrrev_b32 v26, 3, v1')
    a('v_lshl_add_u32 v25, v26, 2, v25')
    a(f'v_add_u32 v25, {sA}, v25')
    a('ds_write_b32 v25, v56')
    a('ds_write_b32 v25, v57 offset:256')
    a(f'v_lshl_add_u32 v25, v21, 5, {sA}')
    a('s_waitcnt lgkmcnt(0)')
    a('ds_read_b128 v[24:27], v25') if False else None
    a('ds_read_b128 v[28:31], v25')
    a('ds_read_b128 v[32:35], v25 offset:16')
    a('ds_read_b128 v[40:43], v25 offset:256')
    a('ds_read_b128 v[44:47], v25 offset:272')
    a('s_waitcnt lgkmcnt(0)')
    ACC = 48
    for i in range(8):
        a(f's_waitcnt vmcnt({7 - i})')
        b = 64 + 4 * i
        for k in range(4):
            if i == 0:
                a(f'v_dot2_f32_bf16 {vr(ACC + 2 * k)}, {vr(b + k)}, {vr(28 + i)}, 0')
                a(f'v_dot2_f32_bf16 {vr(ACC + 1 + 2 * k)}, {vr(b + k)}, {vr(40 + i)}, 0')
            else:
                a(f'v_dot2c_f32_bf16 {vr(ACC + 2 * k)}, {vr(b + k)}, {vr(28 + i)}')
                a(f'v_dot2c_f32_bf16 {vr(ACC + 1 + 2 * k)}, {vr(b + k)}, {vr(40 + i)}')
    for i in range(4):
        a(f'v_permlane32_swap_b32 {vr(ACC + i)}, {vr(ACC + 4 + i)}')
    for i in range(4):
        a(f'v_add_f32 {vr(ACC + i)}, {vr(ACC + i)}, {vr(ACC + 4 + i)}')
    for i in range(2):
        a(f'v_permlane16_swap_b32 {vr(ACC + i)}, {vr(ACC + 2 + i)}')
    for i in range(2):
        a(f'v_add_f32 {vr(ACC + i)}, {vr(ACC + i)}, {vr(ACC + 2 + i)}')
    for r in (ACC, ACC + 1):
        a(f'v_add_f32_dpp {vr(r)}, {vr(r)}, {vr(r)} row_ror:8 row_mask:0xf bank_mask:0xf')
    a('v_and_b32 v21, 1, v3')
    a('v_lshlrev_b32 v21, 1, v21')
    a('v_lshrrev_b32 v22, 1, v3')
    a('v_lshl_add_u32 v21, v22, 2, v21')
    a('v_and_b32 v22, 7, v1')
    a('v_lshl_add_u32 v21, v22, 3, v21')
    a('v_lshlrev_b32 v21, 3, v21')
    a(f's_mul_i32 {sA}, {sNT3}, 3072')
    a(f's_lshl_b32 {sB}, {sNV}, 6')
    a(f's_add_u32 {sA}, {sA}, {sB}')
    a(f's_lshl_b32 {sA}, {sA}, 3')
    a(f's_add_u32 {sA}, {sA}, {WS_MODG}')
    a(f'v_mov_b32 {vr(ACC + 2)}, {vr(ACC + 1)}')
    a(f'v_mov_b32 {vr(ACC + 1)}, {sT}')
    a(f'v_mov_b32 {vr(ACC + 3)}, {sT}')
    save_exec_mask(0x00ff00ff00ff00ff)
    bstore(ACC, 4, 21, WS, soff=sA, mods='sc1')
    restore_exec()
    stamp('r_pub')
    a(f's_branch {ldone}')
    a.label(lskip)
    precompute()
    a.label(ldone)


def role_xt():
    a('v_lshlrev_b32 v21, 10, v1')
    a(f's_lshl_b32 {sA}, {sJ}, 16')
    a(f's_lshl_b32 {sB}, {sX}, 7')
    a(f's_add_u32 {sA}, {sA}, {sB}')
    for i in range(8):
        bload(24 + 4 * i, 4, 21, U, imm=16 * i, soff=sA)
    precompute()
    for k in range(4):
        a(f'v_mov_b32 {vr(57 + 2 * k)}, {sT}')
    a('v_lshlrev_b32 v21, 3, v1')
    a(f's_lshl_b32 {sA}, {sX}, 19')
    a(f's_lshl_b32 {sB}, {sJ}, 9')
    a(f's_add_u32 {sA}, {sA}, {sB}')
    a(f's_add_u32 {sA}, {sA}, {WS_XT}')
    for p in range(32):
        if p % 4 == 0:
            a(f's_waitcnt vmcnt({7 - p // 4 + p})')
            if p == 0:
                stamp('r_loaded')
        t = 56 + 2 * (p % 4)
        a(f'v_mov_b32 {vr(t)}, {vr(24 + p)}')
        bstore(t, 2, 21, WS, soff=sA, mods='sc1')
        if p < 31:
            a(f's_add_u32 {sA}, {sA}, 16384')
    stamp('r_pub')


def phase_a():
    lk = 'L_roleK'; l56 = 'L_role56'; l7 = 'L_role7'; lj = 'L_A_join'
    stamp('entry')
    a(f's_cmp_lt_u32 {sWV}, 4')
    a(f's_cbranch_scc1 {lk}')
    a('s_setprio 2')
    a(f's_cmp_eq_u32 {sWV}, 7')
    a(f's_cbranch_scc1 {l7}')
    a(f's_cmp_ge_u32 {sWV}, 5')
    a(f's_cbranch_scc1 {l56}')
    role_stats()
    a(f's_branch {lj}')
    a.label(l56)
    role_mod()
    a(f's_branch {lj}')
    a.label(l7)
    role_xt()
    a(f's_branch {lj}')
    a.label(lk)
    role_k()
    a.label(lj)
    a('s_setprio 0')
    for k in range(4):
        a(f'v_mov_b32 {vr(24 + k)}, 0')
    a('v_lshrrev_b32 v21, 5, v0')
    a(f'v_mul_u32_u24 v21, {H_CH}, v21')
    a('v_and_b32 v22, 31, v0')
    a('v_lshl_add_u32 v21, v22, 4, v21')
    a(f'v_add_u32 v21, {L_H}, v21')
    a('v_subrev_u32 v22, 64, v0')
    a('v_lshrrev_b32 v23, 1, v22')
    a(f'v_mul_u32_u24 v23, {CP_R}, v23')
    a('v_and_b32 v22, 1, v0')
    a('v_lshl_add_u32 v23, v22, 4, v23')
    a(f'v_add_u32 v23, {L_COPY}, v23')
    a('v_cmp_gt_u32 vcc, 64, v0')
    a('v_cndmask_b32 v21, v23, v21, vcc')
    a(f'v_mul_u32_u24 v22, {KT_CH}, v22')
    a(f'v_add_u32 v22, {L_KT + 2 * KT_ZERO}, v22')
    lz = a.newlabel('L_z')
    a(f's_cmp_ge_u32 {sWV}, 2')
    a(f's_cbranch_scc1 {lz}')
    a('v_cmp_gt_u32 vcc, 80, v0')
    a(f's_and_saveexec_b64 s[{sX0}:{sX0 + 1}], vcc')
    a('ds_write_b128 v21, v[24:27]')
    a('ds_write_b16 v22, v24')
    restore_exec()
    a.label(lz)
    a('s_waitcnt lgkmcnt(0)')
    stamp('role_done')
    a('s_barrier')
    stamp('B1')
    lsk = a.newlabel('L_kmf')
    a(f's_cmp_ge_u32 {sWV}, 6')
    a(f's_cbranch_scc1 {lsk}')
    for ks in range(8):
        a(f'ds_read_b128 {vr(24 + 8 * ks, 4)}, {vr(KMA)} offset:{64 * ks}')
        a(f'ds_read_b128 {vr(28 + 8 * ks, 4)}, {vr(KMB)} offset:{64 * ks}')
    for ks in range(8):
        a(f's_waitcnt lgkmcnt({14 - 2 * ks})')
        acc = 88 + 4 * (ks & 1)
        mfma(acc, 24 + 8 * ks, 28 + 8 * ks, None if ks < 2 else acc)
    for k in range(4):
        a(f'v_add_f32 {vr(88 + k)}, {vr(88 + k)}, {vr(92 + k)}')
    a('v_cvt_pk_bf16_f32 v96, v88, v89')
    a('v_cvt_pk_bf16_f32 v97, v90, v91')
    a(f'ds_write_b16 {vr(KMD)}, v96')
    a(f'ds_write_b16_d16_hi {vr(KMD + 1)}, v96')
    a(f'ds_write_b16 {vr(KMD + 2)}, v97')
    a(f'ds_write_b16_d16_hi {vr(KMD + 3)}, v97')
    a('s_waitcnt lgkmcnt(0)')
    a.label(lsk)
    a('s_barrier')
    stamp('B2')
    for d in range(1, 12):
        a(f'ds_read_u16 {vr(24 + d)}, {vr(EXA + d)}')
    a(f's_lshr_b32 {sA}, {sWV}, 2')
    a(f's_mul_i32 {sA}, {sA}, {CP_CH}')
    a(f's_add_u32 {sA}, {sA}, {L_COPY + 32}')
    a('v_and_b32 v22, 255, v0')
    a(f'v_lshl_add_u32 v21, v22, 4, {sA}')
    a('s_waitcnt lgkmcnt(0)')
    for r in range(4):
        d = 36 + 4 * r
        for p in range(4):
            a(f'v_lshl_or_b32 {vr(d + p)}, {vr(24 + 5 + 2 * p - r)}, 16, {vr(24 + 4 + 2 * p - r)}')
        a(f'ds_write_b128 v21, {vr(d, 4)} offset:{r * CP_R}')
    if os.environ.get('SWZEARLY'):
        lsw = a.newlabel('L_swzfin')
        a(f's_cmp_ge_u32 {sWV}, 4')
        a(f's_cbranch_scc1 {lsw}')
        a('s_waitcnt vmcnt(0)')
        swz_finish()
        a.label(lsw)
    stamp('expanded')


def spin_guard(label_retry):
    a(f's_add_u32 {sSPIN}, {sSPIN}, 1')
    a(f's_cmp_lt_u32 {sSPIN}, {SPIN_MAX}')
    a(f's_cbranch_scc1 {label_retry}')


def tags_check(tags, lo, hi):
    a(f'v_min3_u32 {vr(lo)}, {vr(tags[0])}, {vr(tags[1])}, {vr(tags[2])}')
    a(f'v_max3_u32 {vr(hi)}, {vr(tags[0])}, {vr(tags[1])}, {vr(tags[2])}')
    k = 3
    while k < len(tags):
        t2 = tags[k + 1] if k + 1 < len(tags) else tags[k]
        a(f'v_min3_u32 {vr(lo)}, {vr(lo)}, {vr(tags[k])}, {vr(t2)}')
        a(f'v_max3_u32 {vr(hi)}, {vr(hi)}, {vr(tags[k])}, {vr(t2)}')
        k += 2
    a(f'v_cmp_ne_u32 vcc, {sT}, {vr(lo)}')
    a(f'v_cmp_ne_u32 s[{sX0}:{sX0 + 1}], {sT}, {vr(hi)}')
    a('s_nop 0')
    a(f's_or_b64 vcc, vcc, s[{sX0}:{sX0 + 1}]')


def phase_b():
    a(f's_lshl_b32 {sA}, {sWV}, 12')
    a(f'v_add_u32 v21, {sA}, {vr(vL16)}')
    a('v_lshrrev_b32 v14, 3, v1')
    a('v_cmp_gt_u32 vcc, 6, v14')
    a('v_cndmask_b32 v14, 0, v14, vcc') if False else None
    a('v_mov_b32 v15, 0')
    a('v_cndmask_b32 v14, v15, v14, vcc')
    a('v_lshrrev_b32 v15, 1, v14')
    a('v_lshlrev_b32 v15, 9, v15')
    a('v_and_b32 v14, 1, v14')
    a('v_add_u32 v15, v15, v14')
    a(f'v_add_u32 v15, {sCH0}, v15')
    a('v_and_b32 v14, 7, v1')
    a('v_mul_u32_u24 v14, 3072, v14')
    a('v_add_u32 v15, v15, v14')
    a('v_lshlrev_b32 v22, 3, v15')
    a(f's_mov_b32 {sB}, {WS_STATS}')
    a('v_lshrrev_b32 v20, 1, v21')
    a(f's_lshl_b32 {sD}, {sX}, 5'); a(f's_add_u32 {sD}, {sD}, {sJ}'); a(f's_lshl_b32 {sD}, {sD}, 14')
    a(f's_add_u32 {sD}, {sD}, {WS_XT}')
    if not NOSCOUT:
        lsk = a.newlabel('L_scoutskip'); lsp = a.newlabel('L_scout'); lso = a.newlabel('L_scoutok')
        a(f's_cmp_lg_u32 {sWV}, 0')
        a(f's_cbranch_scc1 {lsk}')
        a('v_lshlrev_b32 v24, 7, v1')
        a('v_and_b32 v25, 31, v1')
        a('v_lshlrev_b32 v25, 9, v25')
        a(f's_mov_b32 {sSPIN}, 0')
        a.label(lsp)
        for i in range(4):
            a(f's_mov_b32 {sC}, {WS_STATS + 8192 * i}')
            bload(28 + i, 1, 24, WS, imm=4, soff=sC, mods='sc1')
        bload(32, 1, 25, WS, imm=4, soff=sD, mods='sc1')
        a(f's_mov_b32 {sC}, {WS_MODG}')
        bload(33, 1, 22, WS, imm=4, soff=sC, mods='sc1')
        a('s_waitcnt vmcnt(0)')
        tags_check([28, 29, 30, 31, 32, 33], 34, 35)
        a(f's_cbranch_vccz {lso}')
        spin_guard(lsp)
        a.label(lso)
        a.label(lsk)
        a('s_barrier')
        stamp('scout')
    a(f's_mov_b32 {sSPIN}, 0')
    lp = 'L_S1_poll'; lok = 'L_S1_ok'
    a.label(lp)
    for i in range(4):
        bload(44 + 4 * i, 4, 21, WS, imm=1024 * i, soff=sB, mods='sc1')
        bload(88 + 2 * i, 2, 20, WS, imm=512 * i, soff=sD, mods='sc1')
    a(f's_mov_b32 {sC}, {WS_MODG}')
    bload(60, 2, 22, WS, soff=sC, mods='sc1')
    a('s_waitcnt vmcnt(0)')
    tags = [45, 47, 49, 51, 53, 55, 57, 59, 61, 89, 91, 93, 95]
    if 'noxt' in XP: tags = [45, 47, 49, 51, 53, 55, 57, 59, 61]
    if 'nomod' in XP: tags = [45, 47, 49, 51, 53, 55, 57, 59, 89, 91, 93, 95]
    if 'nostat' in XP: tags = [61, 89, 91, 93, 95]
    tags_check(tags, 84, 85)
    a(f's_cbranch_vccz {lok}')
    spin_guard(lp)
    a.label(lok)
    stamp('S1ok')
    a('v_lshrrev_b32 v23, 2, v21')
    a(f'v_add_u32 v23, {L_XC}, v23')
    for i in range(4):
        a(f'ds_write_b32 v23, {vr(88 + 2 * i)} offset:{256 * i}')
    a('v_add_f32_dpp v60, v60, v60 quad_perm:[1,0,3,2] row_mask:0xf bank_mask:0xf')
    a('v_add_f32_dpp v60, v60, v60 quad_perm:[2,3,0,1] row_mask:0xf bank_mask:0xf')
    a('v_add_f32_dpp v60, v60, v60 row_half_mirror row_mask:0xf bank_mask:0xf')
    for i, dst in enumerate((60, 62, 64, 66, 68, 70)):
        a(f'v_readlane_b32 s{64 + i}, v60, {8 * i}')
    for i, dst in enumerate((60, 62, 64, 66, 68, 70)):
        a(f'v_mov_b32 {vr(dst)}, s{64 + i}')
    a('v_add_f32 v64, 1.0, v64'); a('v_add_f32 v66, 1.0, v66')
    a(f's_lshr_b32 {sHI}, {sWV}, 2'); a(f's_and_b32 {sLO}, {sWV}, 3')
    a(f's_lshl_b32 {sA}, {sCH0}, 1')
    a(f'v_mov_b32 v77, {sA}')
    bload(76, 1, 77, DSK)
    for i in range(4):
        r, mr = 44 + 4 * i, 46 + 4 * i
        a(f'v_lshlrev_b32 v80, 16, {vr(88 + 2 * i)}')
        a(f'v_and_b32 v81, 0xffff0000, {vr(88 + 2 * i)}')
        a(f'v_fma_f32 v80, v80, {vr(r)}, -{vr(mr)}')
        a(f'v_fma_f32 v81, v81, {vr(r)}, -{vr(mr)}')
        a('v_fma_f32 v80, v80, v64, v60')
        a('v_fma_f32 v81, v81, v66, v62')
        a(f'v_cvt_pk_bf16_f32 {vr(96 + i)}, v80, v81')
    a('v_lshrrev_b32 v23, 3, v21')
    a(f'v_add_u32 v23, {L_H + 512}, v23')
    for i in range(4):
        a(f'ds_write_b16 v23, {vr(96 + i)} offset:{128 * i}')
        a(f'ds_write_b16_d16_hi v23, {vr(96 + i)} offset:{H_CH + 128 * i}')
    a(f's_mul_i32 {sA}, {sHI}, {H_CH}')
    a(f's_lshl_b32 {sB}, {sLO}, 6')
    a(f's_sub_u32 {sA}, {sA}, {sB}')
    a(f's_add_u32 {sA}, {sA}, {L_H + 480 - 256}')
    a('v_lshlrev_b32 v21, 5, v2')
    a('v_lshl_add_u32 v21, v3, 4, v21')
    a(f'v_add_u32 v21, {sA}, v21')
    a(f's_mul_i32 {sA}, {sHI}, {CP_CH}')
    a(f's_add_u32 {sA}, {sA}, {sB}')
    a(f's_add_u32 {sA}, {sA}, {L_COPY + 64 - 8}')
    a('v_lshrrev_b32 v22, 2, v2')
    a(f'v_mul_u32_u24 v22, {CP_R}, v22')
    a('v_and_b32 v23, 3, v2')
    a('v_lshl_add_u32 v22, v23, 3, v22')
    a('v_lshlrev_b32 v23, 4, v3')
    a('v_sub_u32 v22, v22, v23')
    a(f'v_add_u32 v22, {sA}, v22')
    a(f's_lshl_b32 {sA}, {sWV}, 13')
    a(f'v_add_u32 v23, {sA}, {vr(vL16)}')
    mod_final_issue()
    if not os.environ.get('SWZEARLY'):
        lsw = a.newlabel('L_swzfin')
        a(f's_cmp_ge_u32 {sWV}, 4')
        a(f's_cbranch_scc1 {lsw}')
        swz_finish()
        a.label(lsw)
    a('s_waitcnt lgkmcnt(0)')
    a('s_barrier')
    stamp('B3')
    conv_touches()
    BF = 96; AF = 160; ACC = 224

    def ldA(i):
        r = AF + 4 * i
        a(f'ds_read_b64_tr_b16 {vr(r, 2)}, v22 offset:{256 * i + 8}')
        a(f'ds_read_b64_tr_b16 {vr(r + 2, 2)}, v22 offset:{256 * i}')

    def ldB(u):
        a(f'ds_read_b128 {vr(BF + 4 * u, 4)}, v21 offset:{256 * u}')
    seq = ['A0', 'B1', 'B3', 'B5', 'B7', 'B9', 'B11', 'B13', 'B15', 'A1', 'B0', 'B2', 'B4', 'B6', 'B8', 'B10', 'B12', 'B14'] + \
          [f'A{i}' for i in range(2, 16)]
    pos = {}
    n = 0
    for s_ in seq:
        n += 2 if s_[0] == 'A' else 1
        pos[s_] = n
    total = n
    issued = 0
    it = iter(seq)

    def issue_until(cnt):
        nonlocal issued
        while issued < min(cnt, total):
            s_ = next(it)
            if s_[0] == 'A':
                ldA(int(s_[1:])); issued += 2
            else:
                ldB(int(s_[1:])); issued += 1
    writes = 0
    issue_until(12)
    order = []
    stream = []
    q = []
    for s_ in seq:
        q += [s_] * (2 if s_[0] == 'A' else 1)
    ops = list(q[:issued])
    for i in range(16):
        nmin = i // 2 if i >= 1 else 0
        for nn in range(nmin, 8):
            u = 2 * nn - i + 1
            needs = [f'A{i}', f'B{u}']
            last_needed = max(idx for idx, o in enumerate(q) if o in needs)
            tgt = max(last_needed + 1, min(total, len([o for o in ops if o != 'W']) + 2))
            while len([o for o in ops if o != 'W']) < tgt:
                before = issued
                issue_until(issued + 1)
                ops += q[before:issued]
            lastidx = max(idx for idx, o in enumerate(ops) if o in needs)
            pend = len(ops) - 1 - lastidx
            key = ('wait', pend)
            if not hasattr(phase_b, 'done') or True:
                done_upto = getattr(phase_b, 'done_upto', -1)
                if lastidx > done_upto:
                    a(f's_waitcnt lgkmcnt({min(pend, 15)})')
                    phase_b.done_upto = lastidx if pend <= 15 else len(ops) - 1 - 15
            mfma(ACC + 4 * nn, AF + 4 * i, BF + 4 * u, None if i == 0 else ACC + 4 * nn)
        if i >= 3 and i % 2 == 1:
            nn = (i - 1) // 2 - 1
            a(f'ds_write_b128 v23, {vr(ACC + 4 * nn, 4)} offset:{1024 * nn}')
            ops.append('W')
    a(f'ds_write_b128 v23, {vr(ACC + 28, 4)} offset:{1024 * 7}')
    mod_final_finish()
    a('s_waitcnt lgkmcnt(0)')
    a('s_barrier')
    stamp('B4')

    a(f's_lshl_b32 {sA}, {sWV}, 10')
    a(f'v_add_u32 v23, {sA}, {vr(vL16)}')
    for c in range(2):
        for qq in range(4):
            a(f'ds_read_b128 {vr(96 + 16 * c + 4 * qq, 4)}, v23 offset:{32768 * c + 8192 * qq}')
    a('v_lshlrev_b32 v21, 4, v2')
    a('v_lshl_add_u32 v21, v3, 2, v21')
    a(f's_lshl_b32 {sA}, {sWV}, 8')
    a(f'v_add_u32 v21, {sA}, v21')
    a('v_lshlrev_b32 v22, 2, v21')
    a('v_lshlrev_b32 v24, 1, v21')
    a(f'ds_read_b128 v[128:131], v22 offset:{L_XC}') if L_XC < 65536 else None
    if L_XC >= 65536:
        a(f'v_add_u32 v22, {L_XC}, v22')
        a('ds_read_b128 v[128:131], v22')
    a(f'v_add_u32 v24, {L_H + 512}, v24')
    a('ds_read_b64 v[136:137], v24')
    a(f'ds_read_b64 v[138:139], v24 offset:{H_CH}')
    a('v_lshrrev_b32 v25, 1, v2')
    a('v_lshlrev_b32 v25, 15, v25')
    a('v_and_b32 v26, 1, v2')
    a('v_lshl_add_u32 v25, v26, 5, v25')
    a('v_and_b32 v26, 1, v3')
    a('v_lshl_add_u32 v25, v26, 6, v25')
    a('v_lshrrev_b32 v26, 1, v3')
    a('v_lshl_add_u32 v25, v26, 4, v25')
    a(f's_lshl_b32 {sA}, {sWV}, 18')
    a(f's_lshl_b32 {sB}, {sCH0}, 6')
    a(f's_add_u32 {sA}, {sA}, {sB}')
    a(f's_add_u32 {sE}, {sA}, {WS_X2B}')
    a('s_waitcnt vmcnt(0)')
    a('v_lshlrev_b32 v77, 16, v76')
    a('v_and_b32 v76, 0xffff0000, v76')
    a('s_waitcnt lgkmcnt(0)')
    for c in range(2):
        y = 96 + 16 * c
        for k in range(0, 4, 2):
            a(f'v_pk_add_f32 {vr(y + k, 2)}, {vr(y + k, 2)}, {vr(y + 4 + k, 2)}')
            a(f'v_pk_add_f32 {vr(y + 8 + k, 2)}, {vr(y + 8 + k, 2)}, {vr(y + 12 + k, 2)}')
            a(f'v_pk_add_f32 {vr(y + k, 2)}, {vr(y + k, 2)}, {vr(y + 8 + k, 2)}')
        dsk = 77 if c == 0 else 76
        ga = 68 if c == 0 else 70
        for k in range(4):
            hreg = 136 + 2 * c + (k >> 1)
            if k & 1:
                a(f'v_and_b32 v26, 0xffff0000, {vr(hreg)}')
            else:
                a(f'v_lshlrev_b32 v26, 16, {vr(hreg)}')
            a(f'v_fma_f32 {vr(y + k)}, v26, {vr(dsk)}, {vr(y + k)}')
            if c == 0:
                a(f'v_lshlrev_b32 v27, 16, {vr(128 + k)}')
            else:
                a(f'v_and_b32 v27, 0xffff0000, {vr(128 + k)}')
            a(f'v_fma_f32 {vr(y + k)}, {vr(ga)}, {vr(y + k)}, v27')
        a(f'v_cvt_pk_bf16_f32 {vr(28 + 2 * c)}, {vr(y)}, {vr(y + 1)}')
        a(f'v_cvt_pk_bf16_f32 {vr(29 + 2 * c)}, {vr(y + 2)}, {vr(y + 3)}')
    a('v_permlane16_swap_b32 v28, v30')
    a('v_permlane16_swap_b32 v29, v31')
    bstore(28, 4, 25, WS, soff=sE, mods='sc1')
    a('s_waitcnt vmcnt(0)')
    stamp('x2stored')
    a('s_barrier')
    set_flag(WS_F2, 's2')


def mod_final_issue():
    ls = a.newlabel('L_modf')
    a(f's_cmp_lg_u32 {sWV}, 7')
    a(f's_cbranch_scc1 {ls}')
    a('v_lshrrev_b32 v14, 3, v1')
    a(f's_mul_i32 {sA}, s2, 12')
    a(f'v_add_u32 v14, {sA}, v14')
    a('v_and_b32 v15, 7, v1')
    a('v_mul_u32_u24 v15, 3072, v15')
    a('v_add_u32 v15, v15, v14')
    a('v_lshlrev_b32 v24, 3, v15')
    a('v_lshrrev_b32 v14, 3, v1')
    a('v_and_b32 v15, 3, v14')
    a('v_sub_u32 v14, v15, v14')
    a('v_add_u32 v14, 8, v14')
    a('v_lshl_add_u32 v25, v14, 3, v24')
    a(f's_mov_b32 {sC}, {WS_MODG}')
    bload(26, 2, 24, WS, soff=sC, mods='sc1')
    bload(28, 2, 25, WS, soff=sC, mods='sc1')
    a.label(ls)


def mod_final_finish():
    ls = a.newlabel('L_modf'); lp = a.newlabel('L_modp'); lok = a.newlabel('L_modok')
    a(f's_cmp_lg_u32 {sWV}, 7')
    a(f's_cbranch_scc1 {ls}')
    a('s_waitcnt vmcnt(0)')
    tags_check([27, 29, 29], 30, 31)
    a(f's_cbranch_vccz {lok}')
    a(f's_mov_b32 {sSPIN}, 0')
    a.label(lp)
    a(f's_mov_b32 {sC}, {WS_MODG}')
    bload(26, 2, 24, WS, soff=sC, mods='sc1')
    bload(28, 2, 25, WS, soff=sC, mods='sc1')
    a('s_waitcnt vmcnt(0)')
    tags_check([27, 29, 29], 30, 31)
    a(f's_cbranch_vccz {lok}')
    spin_guard(lp)
    a.label(lok)
    for r in (26, 28):
        a(f'v_add_f32_dpp {vr(r)}, {vr(r)}, {vr(r)} quad_perm:[1,0,3,2] row_mask:0xf bank_mask:0xf')
        a(f'v_add_f32_dpp {vr(r)}, {vr(r)}, {vr(r)} quad_perm:[2,3,0,1] row_mask:0xf bank_mask:0xf')
        a(f'v_add_f32_dpp {vr(r)}, {vr(r)}, {vr(r)} row_half_mirror row_mask:0xf bank_mask:0xf')
    a('v_lshrrev_b32 v14, 3, v1')
    a('v_lshlrev_b32 v14, 2, v14')
    a(f's_mul_i32 {sA}, s2, 48')
    a(f's_add_u32 {sA}, {sA}, {WS_MODF}')
    save_exec_mask(0x0101010101010101)
    bstore(26, 1, 14, WS, soff=sA, mods='sc1')
    a('s_mov_b32 exec_hi, 0')
    bstore(28, 1, 14, WS, imm=32, soff=sA, mods='sc1')
    restore_exec()
    a.label(ls)


def wfrags(dst, base, n, nt_sgpr=None, stride=16, first=0):
    if nt_sgpr is None:
        a(f's_lshl_b32 {sA}, {sCQ}, 3')
        a(f's_add_u32 {sA}, {sA}, {sWV}')
    else:
        a(f's_mov_b32 {sA}, {nt_sgpr}')
    a(f's_mul_i32 {sA}, {sA}, {stride * 1024}')
    a(f's_add_u32 {sA}, {sA}, {base + first * 1024}')
    for k in range(n):
        if k and k % 4 == 0:
            a(f's_add_u32 {sA}, {sA}, 4096')
        bload(dst + 4 * k, 4, vL16, WS, imm=(k % 4) * 1024, soff=sA, mods='sc1')


def wfrag_base(sreg, base, nt_sgpr=None, stride=16, first=0):
    if nt_sgpr is None:
        a(f's_lshl_b32 {sreg}, {sCQ}, 3')
        a(f's_add_u32 {sreg}, {sreg}, {sWV}')
    else:
        a(f's_mov_b32 {sreg}, {nt_sgpr}')
    a(f's_mul_i32 {sreg}, {sreg}, {stride * 1024}')
    a(f's_add_u32 {sreg}, {sreg}, {base + first * 1024}')


def wfrag_one(dst, sreg, k):
    if k and k % 4 == 0:
        a(f's_add_u32 {sreg}, {sreg}, 4096')
    bload(dst + 4 * k, 4, vL16, WS, imm=(k % 4) * 1024, soff=sreg, mods='sc1')


def not_poller(fn):
    l = a.newlabel('L_np')
    a(f's_cmp_eq_u32 {sWV}, 7')
    a(f's_cbranch_scc1 {l}')
    fn()
    a.label(l)


def only_poller(fn):
    l = a.newlabel('L_op')
    a(f's_cmp_lg_u32 {sWV}, 7')
    a(f's_cbranch_scc1 {l}')
    fn()
    a.label(l)


def pretouch(which, dst=31):
    if NOFAST or os.environ.get('NOTOUCH'):
        return
    a('v_lshrrev_b32 v14, 2, v1')
    a('v_and_b32 v15, 3, v1')
    a('v_lshlrev_b32 v15, 7, v15')
    if which in ('h1', 'x1'):
        if which == 'h1':
            a('v_mul_u32_u24 v14, 768, v14')
            a('v_add_u32 v14, v14, v15')
            a(f's_mul_i32 {sA}, {sT32}, 49152'); a(f's_mul_i32 {sB}, {sCQ}, {16 * 768}'); a(f's_add_u32 {sA}, {sA}, {sB}')
            a(f's_add_u32 {sA}, {sA}, {WS_H1 + 128}')
        else:
            a('v_lshl_add_u32 v14, v14, 9, v15')
            a(f's_lshl_b32 {sA}, {sT32}, 15'); a(f's_lshl_b32 {sC}, {sCQ}, 13'); a(f's_add_u32 {sA}, {sA}, {sC}')
            a(f's_add_u32 {sA}, {sA}, {WS_X1}')
        bload(dst, 1, 14, WS, soff=sA)
        return
    else:
        a('v_lshl_add_u32 v14, v14, 9, v15')
        a(f's_sub_u32 {sA}, {sNT3}, {sWV}')
        a(f's_lshl_b32 {sA}, {sA}, 10')
        a(f's_lshl_b32 {sB}, {sRB}, 1'); a(f's_lshr_b32 {sC}, {sWV}, 1'); a(f's_add_u32 {sB}, {sB}, {sC}')
        a(f's_mul_i32 {sB}, {sB}, {86 * 1024}'); a(f's_add_u32 {sA}, {sA}, {sB}')
        a(f's_and_b32 {sB}, {sWV}, 1'); a(f's_lshl_b32 {sC}, {sB}, 13'); a(f's_add_u32 {sA}, {sA}, {sC}')
        a(f's_add_u32 {sA}, {sA}, {WS_H3}')
        a(f's_movk_i32 {sC}, {63 * 128}')
        a(f's_cmp_eq_u32 {sB}, 1')
        a(f's_cselect_b32 {sB}, {23 * 128}, {sC}')
        a(f'v_min_u32 v14, {sB}, v14')
        a(f's_cmp_lt_u32 {sWV}, 4')
    a('s_cselect_b64 exec, -1, 0')
    bload(dst, 1, 14, WS, soff=sA)
    a('s_mov_b64 exec, -1')


def conv_touches():
    if os.environ.get('NOCT'):
        return
    a('v_lshlrev_b32 v14, 7, v1')
    a(f's_sub_u32 {sC}, {sWV}, 5')
    a(f's_lshl_b32 {sA}, {sJ}, 14'); a(f's_lshl_b32 {sB}, {sC}, 13'); a(f's_add_u32 {sA}, {sA}, {sB}')
    a(f's_cmp_lt_u32 {sC}, 2')
    a('s_cselect_b64 exec, -1, 0')
    bload(15, 1, 14, W1, soff=sA)
    a('s_mov_b64 exec, -1')


def wtouch(kind, dst):
    if os.environ.get('NOWT'):
        return
    a('v_lshlrev_b32 v14, 7, v1')
    a(f's_mul_i32 {sA}, {sJ}, {43 * 1024}')
    a(f's_sub_u32 {sB}, {sWV}, 2'); a(f's_lshl_b32 {sB}, {sB}, 13'); a(f's_add_u32 {sA}, {sA}, {sB}')
    if kind == 'w23':
        a(f's_add_u32 {sA}, {sA}, {WS_W3S}')
        a(f's_lshl_b32 {sB}, {sJ}, 14'); a(f's_lshl_b32 {sC}, {sWV}, 13'); a(f's_add_u32 {sB}, {sB}, {sC}')
        a(f's_add_u32 {sB}, {sB}, {WS_W2S}')
        a(f's_cmp_lt_u32 {sWV}, 2')
        a(f's_cselect_b32 {sA}, {sB}, {sA}')
        bload(dst, 1, 14, WS, soff=sA)
    else:
        a(f's_add_u32 {sA}, {sA}, {WS_W4S}')
        a(f's_cmp_ge_u32 {sWV}, 2')
        a('s_cselect_b64 exec, -1, 0')
        bload(dst, 1, 14, WS, soff=sA)
        a('s_mov_b64 exec, -1')


def set_flag(off, idx_sgpr, cluster=False):
    a(f's_lshl_b32 {sA}, {idx_sgpr}, 6')
    a(f's_add_u32 {sA}, {sA}, {off}')
    a(f'v_mov_b32 v14, {sT}')
    a('v_mov_b32 v15, 0')
    a(f's_cmp_eq_u32 {sWV}, 0')
    if cluster and not NOFAST:
        a(f's_cselect_b64 s[{sX0}:{sX0 + 1}], 1, 0')
        a(f's_and_b64 exec, s[{sX0}:{sX0 + 1}], s[{mFA}:{mFA + 1}]')
        bstore(14, 1, 15, WS, soff=sA)
        a(f's_and_b64 exec, s[{sX0}:{sX0 + 1}], s[{mSL}:{mSL + 1}]')
        bstore(14, 1, 15, WS, soff=sA, mods='sc1')
    else:
        a('s_cselect_b64 exec, 1, 0')
        bstore(14, 1, 15, WS, soff=sA, mods='sc1')
    a('s_mov_b64 exec, -1')


PV = 116


def poll(off, kind):
    lf = a.newlabel('L_pollskip'); lp = a.newlabel('L_poll'); lok = a.newlabel('L_pollok')
    a(f's_cmp_lg_u32 {sWV}, 7')
    a(f's_cbranch_scc1 {lf}')
    if kind == 'all':
        a(f'v_lshlrev_b32 {vr(PV)}, 6, v1')
    elif kind == 'own':
        a(f'v_and_b32 {vr(PV)}, 7, v1')
        a(f's_lshl_b32 {sA}, {sRB}, 3')
        a(f'v_add_u32 {vr(PV)}, {sA}, {vr(PV)}')
        a(f'v_lshlrev_b32 {vr(PV)}, 6, {vr(PV)}')
    else:
        a(f'v_min_u32 {vr(PV)}, 11, v1')
        a(f's_lshl_b32 {sA}, {sT32}, 2')
        a(f's_sub_u32 {sB}, {sA}, 4')
        a(f'v_add_u32 {vr(PV)}, {sB}, {vr(PV)}')
        a(f'v_cmp_gt_u32 vcc, 256, {vr(PV)}')
        a(f'v_mov_b32 {vr(PV + 1)}, {sA}')
        a(f'v_cndmask_b32 {vr(PV)}, {vr(PV + 1)}, {vr(PV)}, vcc')
        a(f'v_lshlrev_b32 {vr(PV)}, 6, {vr(PV)}')
    a(f's_mov_b32 {sSPIN}, 0')
    a.label(lp)
    if kind == 'all':
        for i in range(4):
            a(f's_mov_b32 {sB}, {off + 4096 * i}')
            bload(PV + 2 + i, 1, PV, WS, soff=sB, mods='sc1')
        a('s_waitcnt vmcnt(0)')
        tags_check([PV + 2, PV + 3, PV + 4, PV + 5], PV + 6, PV + 7)
    else:
        a(f's_mov_b32 {sB}, {off}')
        bload(PV + 2, 1, PV, WS, soff=sB, mods='sc1')
        a('s_waitcnt vmcnt(0)')
        a(f'v_cmp_ne_u32 vcc, {sT}, {vr(PV + 2)}')
        a('s_nop 0')
    a(f's_cbranch_vccz {lok}')
    spin_guard(lp)
    a.label(lok)
    a.label(lf)
    a('s_barrier')


def lane_masks():
    a('v_and_b32 v15, 3, v2')
    a(f'v_cmp_eq_u32 s[{mK1}:{mK1 + 1}], 1, v15')
    a(f'v_cmp_eq_u32 s[{mK2}:{mK2 + 1}], 2, v15')
    a(f'v_cmp_eq_u32 s[{mK3}:{mK3 + 1}], 3, v15')
    a('v_lshrrev_b32 v14, 2, v2')
    a(f'v_cmp_eq_u32 s[{mDG}:{mDG + 1}], v14, v3')


def stats_publish(addr, S, Q, t0):
    a(f'v_cndmask_b32 {vr(t0 + 1)}, {vr(Q)}, {vr(Q + 1)}, s[{mK1}:{mK1 + 1}]')
    a(f'v_mov_b32 {vr(t0)}, {vr(S)}')
    a(f'v_cndmask_b32 {vr(t0 + 1)}, {vr(t0 + 1)}, {vr(Q + 2)}, s[{mK2}:{mK2 + 1}]')
    a(f'v_cndmask_b32 {vr(t0 + 1)}, {vr(t0 + 1)}, {vr(Q + 3)}, s[{mK3}:{mK3 + 1}]')
    save_exec_mask(f's[{mDG}:{mDG + 1}]')
    a(f'ds_write_b64 {vr(addr)}, {vr(t0, 2)}')
    restore_exec()


def stats_finish(S, Q, m, r):
    a(f'v_mul_f32 {vr(m)}, {fconst(1.0 / 512)}, {vr(S)}')
    a(f'v_mul_f32 {vr(r)}, {fconst(1.0 / 512)}, {vr(Q)}')
    a(f'v_fma_f32 {vr(r)}, -{vr(m)}, {vr(m)}, {vr(r)}')
    a(f'v_max_f32 {vr(r)}, 0, {vr(r)}')
    a(f'v_add_f32 {vr(r)}, {fconst(1e-5)}, {vr(r)}')
    a(f'v_rsq_f32 {vr(r)}, {vr(r)}')


GC0 = -2.0 * 1.4426950408889634 * 0.7978845608028654
GC1 = GC0 * 0.044715


def gelu_consts(gk):
    for r, c in ((gk, GC0), (gk + 2, GC1), (gk + 4, 1.0)):
        a(f'v_mov_b32 {vr(r)}, {fconst(c)}')


def gelu(regs, tmp, gk):
    n = len(regs)
    for i in range(0, n, 2):
        x = regs[i]
        t = tmp + 2 * ((i // 2) & 1)
        a(f'v_pk_mul_f32 {vr(t, 2)}, {vr(x, 2)}, {vr(x, 2)}')
        a(f'v_pk_fma_f32 {vr(t, 2)}, {vr(t, 2)}, {vr(gk + 2, 2)}, {vr(gk, 2)} op_sel_hi:[1,0,0]')
        a(f'v_pk_mul_f32 {vr(t, 2)}, {vr(t, 2)}, {vr(x, 2)}')
        a(f'v_exp_f32 {vr(t)}, {vr(t)}')
        a(f'v_exp_f32 {vr(t + 1)}, {vr(t + 1)}')
        a(f'v_pk_add_f32 {vr(t, 2)}, {vr(t, 2)}, {vr(gk + 4, 2)} op_sel_hi:[1,0]')
        a(f'v_rcp_f32 {vr(t)}, {vr(t)}')
        a(f'v_rcp_f32 {vr(t + 1)}, {vr(t + 1)}')
        a(f'v_pk_mul_f32 {vr(x, 2)}, {vr(x, 2)}, {vr(t, 2)}')


def ln_apply(acc, cs, m, r, tmp):
    for k in (0, 2):
        a(f'v_pk_fma_f32 {vr(acc + k, 2)}, {vr(cs + k, 2)}, {vr(m, 2)}, {vr(acc + k, 2)} op_sel_hi:[1,0,1] neg_lo:[0,1,0] neg_hi:[0,1,0]')
        a(f'v_pk_mul_f32 {vr(acc + k, 2)}, {vr(acc + k, 2)}, {vr(r, 2)} op_sel_hi:[1,0]')


def pack_swap(dst, t0, t1):
    a(f'v_cvt_pk_bf16_f32 {vr(dst)}, {vr(t0)}, {vr(t0 + 1)}')
    a(f'v_cvt_pk_bf16_f32 {vr(dst + 2)}, {vr(t1)}, {vr(t1 + 1)}')
    a(f'v_cvt_pk_bf16_f32 {vr(dst + 1)}, {vr(t0 + 2)}, {vr(t0 + 3)}')
    a(f'v_cvt_pk_bf16_f32 {vr(dst + 3)}, {vr(t1 + 2)}, {vr(t1 + 3)}')
    a(f'v_permlane16_swap_b32 {vr(dst)}, {vr(dst + 2)}')
    a(f'v_permlane16_swap_b32 {vr(dst + 1)}, {vr(dst + 3)}')


ONES = 16
CS1 = 20


H1A, H1B = 12, 13
mZH = 70


def h1_addresses():
    a('v_lshrrev_b32 v14, 5, v1')
    a('v_mul_u32_u24 v14, 768, v14')
    a('v_and_b32 v15, 31, v1')
    a('v_lshl_add_u32 v14, v15, 4, v14')
    a(f's_mul_i32 {sA}, {sT32}, {64 * 768}')
    a(f's_lshl_b32 {sB}, {sCQ}, 3'); a(f's_add_u32 {sB}, {sB}, {sWV}'); a(f's_mul_i32 {sB}, {sB}, {2 * 768}')
    a(f's_add_u32 {sA}, {sA}, {sB}')
    a(f's_add_u32 {sA}, {sA}, {WS_H1 + 128}')
    a(f'v_add_u32 {vr(H1A)}, {sA}, v14')
    a(f's_cmp_eq_u32 {sT32}, 0')
    a(f's_cselect_b32 {sA}, {(-32) & 0xffffffff}, {(-(49152 - 512)) & 0xffffffff}') if False else None
    a(f's_mov_b32 {sA}, {hex((-(49152 - 512)) & 0xffffffff)}')
    a(f's_cmp_eq_u32 {sT32}, 0')
    a(f's_cselect_b32 {sA}, -32, {sA}')
    a(f's_cselect_b32 s{mZH}, 3, 0')
    a(f's_mov_b32 {sB}, {49152 - 512}')
    a(f's_cmp_eq_u32 {sT32}, 63')
    a(f's_cselect_b32 {sB}, 32, {sB}')
    a(f's_cselect_b32 s{mZH}, 0xc0000000, s{mZH}')
    a(f's_mov_b32 s{mZH + 1}, s{mZH}')
    a('v_cmp_gt_u32 vcc, 2, v15')
    a(f'v_mov_b32 v14, {sB}')
    a(f'v_mov_b32 v15, {sA}')
    a('v_cndmask_b32 v14, v14, v15, vcc')
    a(f'v_add_u32 {vr(H1B)}, {vr(H1A)}, v14')
    a('v_mov_b32 v31, 0')


def phase3():
    W1R, W2R = 128, 192
    W1o = W1
    lane_masks()
    for k in range(4):
        a(f'v_mov_b32 {vr(ONES + k)}, 0x3f803f80')
    a(f's_and_b32 {sLO}, {sWV}, 1')
    a(f's_lshr_b32 {sHI}, {sWV}, 1')
    a('v_lshrrev_b32 v24, 5, v1')
    a('v_lshlrev_b32 v24, 5, v24')
    a(f'v_xor_b32 v24, v24, {vr(vL16)}')
    a('v_lshrrev_b32 v14, 2, v2')
    a('v_lshl_add_u32 v25, v3, 3, v14')
    a('v_lshlrev_b32 v25, 6, v25')
    a('v_and_b32 v14, 3, v2')
    a('v_lshl_add_u32 v25, v14, 3, v25')
    a('v_and_b32 v14, 1, v3')
    a(f'v_xor_b32 v14, {sLO}, v14')
    a('v_lshl_add_u32 v25, v14, 5, v25')
    a(f's_lshl_b32 {sA}, {sHI}, 13')
    a(f'v_add_u32 v25, {sA}, v25')
    a(f's_lshl_b32 {sA}, {sHI}, 9')
    a(f's_add_u32 {sA}, {sA}, {L_CB}')
    a(f'v_lshl_add_u32 v26, v3, 5, {sA}')
    a(f's_lshl_b32 {sA}, {sWV}, 7')
    a(f's_add_u32 {sA}, {sA}, {L_ST}')
    a(f'v_lshl_add_u32 v27, v2, 3, {sA}')
    a(f's_lshl_b32 {sA}, {sLO}, 7')
    a(f's_add_u32 {sA}, {sA}, {L_ST}')
    a(f'v_lshl_add_u32 v28, v2, 3, {sA}')
    a(f's_lshl_b32 {sA}, {sHI}, 13')
    a(f's_lshl_b32 {sB}, {sLO}, 10')
    a(f's_add_u32 {sA}, {sA}, {sB}')
    a(f's_add_u32 {sA}, {sA}, {L_HF}')
    a(f'v_add_u32 v29, {sA}, {vr(vL16)}')
    a(f'v_add_u32 v30, {L_HF}, {vr(vL16)}')
    L_SLAB = 32768
    a('v_lshrrev_b32 v32, 4, v1')
    a('v_lshlrev_b32 v32, 10, v32')
    a('v_and_b32 v33, 15, v1')
    a('v_lshrrev_b32 v34, 1, v33')
    a('v_lshrrev_b32 v35, 4, v1')
    a('v_xor_b32 v34, v34, v35')
    a('v_and_b32 v33, 1, v33')
    a('v_lshlrev_b32 v33, 4, v33')
    a('v_lshl_add_u32 v36, v34, 5, v33')
    a('v_add_u32 v36, v36, v32')
    a('v_xor_b32 v34, 4, v34')
    a('v_lshl_add_u32 v37, v34, 5, v33')
    a('v_add_u32 v37, v37, v32')
    a(f's_lshr_b32 {sA}, {sWV}, 1'); a(f's_and_b32 {sA}, {sA}, 1'); a(f's_cmp_eq_u32 {sA}, 1')
    a('s_cselect_b64 vcc, -1, 0')
    a('v_cndmask_b32 v36, v36, v37, vcc')
    a(f's_lshl_b32 {sA}, {sWV}, 12'); a(f's_lshl_b32 {sB}, {sCQ}, 8'); a(f's_add_u32 {sA}, {sA}, {sB}')
    a(f's_lshl_b32 {sB}, {sWV}, 10'); a(f's_add_u32 {sB}, {sB}, {L_SLAB}')
    for k in range(16):
        if k:
            a(f's_add_u32 {sA}, {sA}, 32768'); a(f's_add_u32 {sB}, {sB}, 8192')
        dma(4, 36, W1o, sB, soff=sA)
    a('v_lshrrev_b32 v33, 2, v2')
    a('v_and_b32 v34, 1, v3')
    a('v_lshl_or_b32 v34, v34, 2, v33')
    a(f'v_xor_b32 v34, {sWV}, v34')
    a('v_lshl_add_u32 v35, v3, 3, v33')
    a('v_lshlrev_b32 v35, 8, v35')
    a('v_lshl_add_u32 v35, v34, 5, v35')
    a('v_and_b32 v33, 3, v2')
    a('v_lshl_add_u32 v35, v33, 3, v35')
    a(f'v_add_u32 v35, {L_SLAB}, v35')
    a('v_add_u32 v37, 65536, v35')
    a('s_waitcnt vmcnt(0)')
    a('s_barrier')
    for ks in range(16):
        ad, off = (35, 8192 * ks) if ks < 8 else (37, 8192 * (ks - 8))
        a(f'ds_read_b64_tr_b16 {vr(W1R + 4 * ks, 2)}, {vr(ad)} offset:{off}')
        a(f'ds_read_b64_tr_b16 {vr(W1R + 4 * ks + 2, 2)}, {vr(ad)} offset:{off + 1024}')
    a('s_waitcnt lgkmcnt(0)')
    for ks in range(16):
        acc = CS1 if ks % 2 == 0 else 32
        mfma(acc, W1R + 4 * ks, ONES, None if ks < 2 else acc)
    for k in range(4):
        a(f'v_add_f32 {vr(CS1 + k)}, {vr(CS1 + k)}, {vr(32 + k)}')
    h1_addresses()
    stamp('W1regs')
    poll(WS_F2, 'all')
    stamp('S2ok')
    a(f's_lshl_b32 {sA}, {sT32}, 15')
    a(f's_lshl_b32 {sB}, {sWV}, 10')
    a(f's_add_u32 {sA}, {sA}, {sB}')
    a(f's_add_u32 {sA}, {sA}, {WS_X2B}')
    for k in range(4):
        if k:
            a(f's_add_u32 {sA}, {sA}, 8192')
        a(f's_add_u32 {sD}, {sB}, {L_X + k * 8192}')
        dma(4, 24, WS, sD, soff=sA, mods='sc1')
    a('v_lshlrev_b32 v14, 2, v0')
    a(f's_mov_b32 {sA}, {WS_MODF + 4 * 2048}')
    bload(32, 1, 14, WS, soff=sA, mods='sc1')
    a(f's_mov_b32 {sA}, {WS_MODF + 3 * 2048}')
    bload(36, 1, 14, WS, soff=sA, mods='sc1')
    a(f's_lshl_b32 {sA}, {sRB}, 16')
    a(f's_lshr_b32 {sB}, {sWV}, 2'); a(f's_lshl_b32 {sB}, {sB}, 15'); a(f's_add_u32 {sA}, {sA}, {sB}')
    a(f's_lshl_b32 {sB}, {sCS}, 12'); a(f's_add_u32 {sA}, {sA}, {sB}')
    a(f's_and_b32 {sB}, {sWV}, 3'); a(f's_lshl_b32 {sB}, {sB}, 10'); a(f's_add_u32 {sA}, {sA}, {sB}')
    a(f's_add_u32 {sA}, {sA}, {WS_X2B}')
    a(f's_lshl_b32 {sB}, {sWV}, 10')
    a(f's_add_u32 {sB}, {sB}, {L_XS}')
    dma(4, vL16, WS, sB, soff=sA, mods='sc1')
    a('v_lshlrev_b32 v15, 2, v0')
    a(f'v_add_u32 v15, {L_CB}, v15')
    a('s_waitcnt vmcnt(1)')
    a('v_add_f32 v32, 1.0, v32')
    a('ds_write_b32 v15, v32')
    a('ds_write_b32 v15, v36 offset:2048')
    a('s_waitcnt lgkmcnt(0)')
    a('s_barrier')
    stamp('Xlanded')
    wfrag_base(sF, WS_W2S)
    wq = list(range(16))

    def w1n(n):
        for _ in range(n):
            if wq:
                wfrag_one(W2R, sF, wq.pop(0))
    XF = 32
    for i in range(4):
        a(f'ds_read_b64_tr_b16 {vr(XF + 4 * i, 2)}, v25 offset:{2048 * i}')
        a(f'ds_read_b64_tr_b16 {vr(XF + 2 + 4 * i, 2)}, v25 offset:{2048 * i + 256}')
    CO = 64

    def ldc(i):
        b = CO + 16 * i
        a(f'ds_read_b128 {vr(b, 4)}, v26 offset:{128 * i}')
        a(f'ds_read_b128 {vr(b + 4, 4)}, v26 offset:{128 * i + 16}')
        a(f'ds_read_b128 {vr(b + 8, 4)}, v26 offset:{2048 + 128 * i}')
        a(f'ds_read_b128 {vr(b + 12, 4)}, v26 offset:{2048 + 128 * i + 16}')
    ldc(0)
    SA, QA = 48, 52
    for i in range(4):
        if i == 0:
            a('s_waitcnt lgkmcnt(10)')
        elif i == 1:
            a('s_waitcnt lgkmcnt(8)')
        elif i == 2:
            a('s_waitcnt lgkmcnt(6)')
        else:
            a('s_waitcnt lgkmcnt(4)')
        f = XF + 4 * i
        mfma(SA, ONES, f, None if i == 0 else SA)
        mfma(QA, f, f, None if i == 0 else QA)
        w1n(1)
    ldc(1); ldc(2)
    stats_publish(27, SA, QA, 56)
    ldc(3)
    a('s_waitcnt lgkmcnt(4)')
    a('s_barrier')
    a('ds_read2st64_b64 v[48:51], v28 offset0:0 offset1:1') if False else None
    a('ds_read_b64 v[48:49], v28')
    a('ds_read_b64 v[50:51], v28 offset:256')
    a('ds_read_b64 v[52:53], v28 offset:512')
    a('ds_read_b64 v[54:55], v28 offset:768')
    a('s_waitcnt lgkmcnt(0)')
    a('v_pk_add_f32 v[48:49], v[48:49], v[50:51]')
    a('v_pk_add_f32 v[52:53], v[52:53], v[54:55]')
    a('v_pk_add_f32 v[48:49], v[48:49], v[52:53]')
    stats_finish(48, 49, 58, 56)
    a('v_mul_f32 v58, v58, v56')
    stamp('stats2')
    SA, QA = 48, 52
    for i in range(4):
        f = XF + 4 * i
        b = CO + 16 * i
        for p in range(4):
            z = 60 + 2 * (p & 1)
            a(f'v_lshlrev_b32 {vr(z)}, 16, {vr(f + p)}')
            a(f'v_and_b32 {vr(z + 1)}, 0xffff0000, {vr(f + p)}')
            a(f'v_pk_fma_f32 {vr(z, 2)}, {vr(z, 2)}, v[56:57], v[58:59] op_sel_hi:[1,0,0] neg_lo:[0,0,1] neg_hi:[0,0,1]')
            a(f'v_pk_fma_f32 {vr(z, 2)}, {vr(z, 2)}, {vr(b + 2 * p, 2)}, {vr(b + 8 + 2 * p, 2)}')
            a(f'v_cvt_pk_bf16_f32 {vr(f + p)}, {vr(z)}, {vr(z + 1)}')
            if p == 1:
                w1n(1)
        a(f'ds_write_b128 v29, {vr(f, 4)} offset:{2048 * i}')
        if i > 0:
            fp = f - 4
            mfma(SA, ONES, fp, None if i == 1 else SA)
            mfma(QA, fp, fp, None if i == 1 else QA)
    f = XF + 12
    mfma(SA, ONES, f, SA)
    mfma(QA, f, f, QA)
    a(f'v_add_u32 v27, {L_ST3 - L_ST}, v27')
    stats_publish(27, SA, QA, 60)
    a('s_waitcnt lgkmcnt(0)')
    a('s_barrier')
    stamp('norm')
    AR = 64

    def lda(ks):
        b = AR + 8 * (ks % 8)
        a(f'ds_read_b128 {vr(b, 4)}, v30 offset:{2048 * ks}')
        a(f'ds_read_b128 {vr(b + 4, 4)}, v30 offset:{2048 * ks + 1024}')
    for ks in range(6):
        lda(ks)
    a(f'v_lshlrev_b32 v14, 3, v2')
    a(f'v_add_u32 v14, {L_ST3}, v14')
    for ks in range(16):
        pend = min(15 - ks, 5) * 2
        a(f's_waitcnt lgkmcnt({pend})')
        b = AR + 8 * (ks % 8)
        mfma(32, W1R + 4 * ks, b, None if ks == 0 else 32)
        mfma(36, W1R + 4 * ks, b + 4, None if ks == 0 else 36)
        if ks % 2 == 0:
            w1n(1)
        if ks + 6 < 16:
            lda(ks + 6)
    for tt in range(2):
        for kq in range(4):
            a(f'ds_read_b64 {vr(40 + 8 * tt + 2 * kq, 2)}, v14 offset:{256 * kq + 128 * tt}')
    GK = 56
    gelu_consts(GK)
    a('s_waitcnt lgkmcnt(0)')
    for tt in range(2):
        b = 40 + 8 * tt
        a(f'v_pk_add_f32 {vr(b, 2)}, {vr(b, 2)}, {vr(b + 2, 2)}')
        a(f'v_pk_add_f32 {vr(b + 4, 2)}, {vr(b + 4, 2)}, {vr(b + 6, 2)}')
        a(f'v_pk_add_f32 {vr(b, 2)}, {vr(b, 2)}, {vr(b + 4, 2)}')
        stats_finish(b, b + 1, b + 2, b + 4)
        ln_apply(32 + 4 * tt, CS1, b + 2, b + 4, None)
    stamp('gemm1')
    gelu(list(range(32, 40)), 62, GK)
    pack_swap(40, 32, 36)
    bstore(40, 4, H1A, WS, mods='sc1')
    for k in range(4):
        a(f'v_cndmask_b32 {vr(48 + k)}, {vr(40 + k)}, v31, s[{mZH}:{mZH + 1}]')
    save_exec_mask(0xc0000003c0000003)
    bstore(48, 4, H1B, WS, mods='sc1')
    restore_exec()
    p5_tiles()
    a('s_waitcnt vmcnt(0)')
    stamp('h1stored')
    a('s_barrier')
    a(f's_lshl_b32 {sE}, {sT32}, 2'); a(f's_add_u32 {sE}, {sE}, {sCQ}')
    assert not wq
    set_flag(WS_F3, sE)
    wfrags(128, WS_W3S, 8, nt_sgpr=sNT3)


def p5_tiles():
    a(f's_mul_i32 {sNT3}, {sCS}, 11')
    a(f's_cmp_eq_u32 {sCS}, 7')
    a(f's_cselect_b32 {sA}, 1, 0')
    a(f's_sub_u32 {sNT3}, {sNT3}, {sA}')
    a(f's_add_u32 {sNT3}, {sNT3}, {sWV}')
    a(f's_cmp_ge_u32 {sCS}, 6')
    a(f's_cselect_b32 {sA}, 2, 3')
    a(f's_cmp_lt_u32 {sWV}, {sA}')
    a(f's_cselect_b32 {sNV}, 2, 1')
    rot_setup()


def phase4():
    W2R = 192
    poll(WS_F3, 'halo')
    stamp('S3ok')
    a(f's_mul_i32 {sA}, {sT32}, {64 * 768}')
    a(f's_lshl_b32 {sB}, {sWV}, 10')
    a(f's_add_u32 {sA}, {sA}, {sB}')
    a(f's_add_u32 {sA}, {sA}, {WS_H1}')
    for k in range(6):
        if k:
            a(f's_add_u32 {sA}, {sA}, 8192')
        a(f's_add_u32 {sD}, {sB}, {L_A4 + k * 8192}')
        dma(4, vL16, WS, sD, soff=sA, mods=LDM)
    a('v_mul_u32_u24 v24, 768, v3')
    a('v_lshl_add_u32 v24, v2, 4, v24')
    a(f'v_add_u32 v24, {L_A4 + 128 - 32}, v24')
    a(f's_lshl_b32 {sA}, {sCQ}, 2'); a(f's_lshr_b32 {sB}, {sWV}, 1'); a(f's_add_u32 {sA}, {sA}, {sB}')
    a(f's_lshl_b32 {sA}, {sA}, 11')
    a(f's_and_b32 {sB}, {sWV}, 1'); a(f's_lshl_b32 {sB}, {sB}, 9'); a(f's_add_u32 {sA}, {sA}, {sB}')
    a(f's_add_u32 {sA}, {sA}, {L_HF}')
    a('v_lshrrev_b32 v25, 1, v3')
    a('v_lshlrev_b32 v25, 8, v25')
    a('v_lshl_add_u32 v25, v2, 4, v25')
    a('v_and_b32 v14, 1, v3')
    a('v_lshl_add_u32 v25, v14, 3, v25')
    a(f'v_add_u32 v25, {sA}, v25')
    a('ds_read_b64 v[40:41], v25')
    a('ds_read_b64 v[42:43], v25 offset:1024')
    AR = 64
    shifts = [-1, 1, -2, 2]

    def lda(ks):
        b = AR + 8 * (ks % 8)
        s_ = shifts[ks >> 2]
        off = 3072 * ks + 32 + 16 * s_
        a(f'ds_read_b128 {vr(b, 4)}, v24 offset:{off}')
        a(f'ds_read_b128 {vr(b + 4, 4)}, v24 offset:{off + 256}')
    a('s_waitcnt vmcnt(3)')
    a('s_barrier')
    stamp('A4landed')
    wfrag_base(sF, WS_W3S, nt_sgpr=sNT3, first=8)
    for ks in range(6):
        lda(ks)
    for ks in range(16):
        if ks == 2:
            a('s_waitcnt vmcnt(1)')
            a('s_barrier')
        pend = min(15 - ks, 5) * 2
        a(f's_waitcnt lgkmcnt({pend})')
        b = AR + 8 * (ks % 8)
        mfma(32, W2R + 4 * ks, b, None if ks == 0 else 32)
        mfma(36, W2R + 4 * ks, b + 4, None if ks == 0 else 36)
        if ks % 2 == 0:
            wfrag_one(128 + 32, sF, ks // 2)
        if ks + 6 < 16:
            lda(ks + 6)
    stamp('gemm2')
    for tt in range(2):
        for k in range(4):
            h = 40 + 2 * tt + (k >> 1)
            if k & 1:
                a(f'v_and_b32 {vr(44 + k)}, 0xffff0000, {vr(h)}')
            else:
                a(f'v_lshlrev_b32 {vr(44 + k)}, 16, {vr(h)}')
        a(f'v_pk_add_f32 {vr(32 + 4 * tt, 2)}, {vr(32 + 4 * tt, 2)}, v[44:45]')
        a(f'v_pk_add_f32 {vr(34 + 4 * tt, 2)}, {vr(34 + 4 * tt, 2)}, v[46:47]')
    pack_swap(40, 32, 36)
    a(f's_lshl_b32 {sA}, {sT32}, 15')
    a(f's_lshl_b32 {sB}, {sCQ}, 3'); a(f's_add_u32 {sB}, {sB}, {sWV}'); a(f's_lshl_b32 {sB}, {sB}, 10')
    a(f's_add_u32 {sA}, {sA}, {sB}')
    a(f's_add_u32 {sA}, {sA}, {WS_X1}')
    cstore(40, 4, vL16, sA)
    a('s_waitcnt vmcnt(0)')
    stamp('x1stored')
    a('s_barrier')
    a(f's_lshl_b32 {sE}, {sRB}, 3'); a(f's_add_u32 {sE}, {sE}, {sCS}')
    set_flag(WS_F4, sE, cluster=True)

    l1 = a.newlabel('L_p4one'); l2 = a.newlabel('L_p4j')
    a(f's_cmp_eq_u32 {sNV}, 1')
    a(f's_cbranch_scc1 {l1}')
    a(f's_add_u32 {sE}, {sNT3}, 8')
    wfrags(192, WS_W3S, 16, nt_sgpr=sE)
    a.label(l1)


def w4reg(s_):
    return 192 + 4 * s_ if s_ < 16 else 128 + 4 * (s_ - 16)


sWO, sWLIM, sWB, sRO, sRBAD = 's69', 's70', 's71', 's72', 's73'


def rot_setup():
    a(f's_movk_i32 {sWLIM}, {21 * 1024}')
    a(f's_cmp_ge_u32 {sWV}, 4')
    a(f's_cselect_b32 {sWLIM}, {20 * 1024}, {sWLIM}')
    a(f's_cselect_b32 {sRBAD}, {21 * 2048}, -1')
    a(f's_and_b32 {sB}, {sWV}, 3')
    a(f's_lshl_b32 {sWB}, {sCS}, 2'); a(f's_add_u32 {sWB}, {sWB}, {sB}'); a(f's_mul_i32 {sWB}, {sWB}, 43')
    a(f's_lshr_b32 {sB}, {sWV}, 2'); a(f's_mul_i32 {sB}, {sB}, 22'); a(f's_add_u32 {sWB}, {sWB}, {sB}')
    a(f's_lshl_b32 {sWB}, {sWB}, 10'); a(f's_add_u32 {sWB}, {sWB}, {WS_W4S}')


def w4_base(sreg, first=0):
    pass


def w4_one(sreg, first, k):
    s_ = first + k
    if s_ == 21:
        a(f's_add_u32 {sC}, {sWB}, {sWLIM}')
        bload(w4reg(s_), 4, vL16, WS, soff=sC, mods='sc1')
    else:
        base4 = (s_ // 4) * 4
        if s_ % 4 == 0 or k == 0:
            a(f's_add_u32 {sWO}, {sWB}, {base4 * 1024}')
        bload(w4reg(s_), 4, vL16, WS, imm=(s_ % 4) * 1024, soff=sWO, mods='sc1')


def w4_loads(first, n):
    for k in range(n):
        w4_one(None, first, k)


def phase5():
    W3A, W3B = 128, 192
    CSA, CSB = 24, 28
    for k in range(4):
        a(f'v_mov_b32 {vr(ONES + k)}, 0x3f803f80')
    a(f's_and_b32 {sLO}, {sWV}, 3')
    a(f's_lshr_b32 {sHI}, {sWV}, 2')
    a('v_lshrrev_b32 v14, 2, v2')
    a('v_lshl_add_u32 v14, v3, 2, v14')
    a('v_lshlrev_b32 v14, 6, v14')
    a('v_and_b32 v15, 3, v2')
    a('v_lshl_add_u32 v14, v15, 3, v14')
    a(f's_lshl_b32 {sA}, {sHI}, 12'); a(f's_lshl_b32 {sB}, {sLO}, 10'); a(f's_add_u32 {sA}, {sA}, {sB}')
    a(f's_add_u32 {sA}, {sA}, {L_XS}')
    a(f'v_add_u32 v14, {sA}, v14')
    a(f'ds_read_b64_tr_b16 {vr(XS, 2)}, v14')
    a(f'ds_read_b64_tr_b16 {vr(XS + 2, 2)}, v14 offset:32')
    a(f's_lshr_b32 {sA}, {sLO}, 1'); a(f's_lshl_b32 {sA}, {sA}, 15')
    a(f's_and_b32 {sB}, {sLO}, 1'); a(f's_lshl_b32 {sB}, {sB}, 8'); a(f's_add_u32 {sA}, {sA}, {sB}')
    a(f's_lshl_b32 {sB}, {sHI}, 14'); a(f's_add_u32 {sA}, {sA}, {sB}')
    a(f'v_add_u32 v20, {sA}, {vr(vVB)}')
    a(f's_lshl_b32 {sA}, {sWV}, 7'); a(f's_add_u32 {sA}, {sA}, {L_ST5}')
    a(f'v_lshl_add_u32 v21, v2, 3, {sA}')
    a(f's_lshl_b32 {sA}, {sHI}, 15'); a(f's_lshl_b32 {sB}, {sCS}, 12'); a(f's_add_u32 {sA}, {sA}, {sB}')
    a(f's_lshl_b32 {sB}, {sLO}, 10'); a(f's_add_u32 {sA}, {sA}, {sB}')
    a('v_lshrrev_b32 v22, 1, v3'); a('v_lshlrev_b32 v22, 9, v22')
    a('v_lshl_add_u32 v22, v2, 4, v22')
    a('v_and_b32 v14, 1, v3'); a('v_lshl_add_u32 v22, v14, 3, v22')
    a(f'v_add_u32 v22, {sA}, v22')
    a('v_lshlrev_b32 v23, 3, v2')
    a(f'v_add_u32 v23, {L_ST5}, v23')
    a('s_waitcnt lgkmcnt(0)')
    stamp('W3landed')
    poll(WS_F4, 'own')
    stamp('S4ok')
    a(f's_lshl_b32 {sA}, {sRB}, 16')
    a(f's_lshl_b32 {sB}, {sHI}, 15'); a(f's_lshl_b32 {sC}, {sLO}, 10'); a(f's_add_u32 {sB}, {sB}, {sC}')
    a(f's_add_u32 {sA}, {sA}, {sB}'); a(f's_add_u32 {sA}, {sA}, {WS_X1}')
    for j in range(8):
        if j:
            a(f's_add_u32 {sA}, {sA}, 4096')
        a(f's_add_u32 {sD}, {sB}, {L_X1 + 4096 * j}')
        dma(4, vL16, WS, sD, soff=sA, mods=LDM)
    a('s_waitcnt vmcnt(8)')
    for ks in range(16):
        acc = CSA if ks % 2 == 0 else 32
        mfma(acc, W3A + 4 * ks, ONES, None if ks < 2 else acc)
    lnb = a.newlabel('L_nob')
    a(f's_cmp_lt_u32 {sNV}, 2')
    a(f's_cbranch_scc1 {lnb}')
    for ks in range(16):
        acc = CSB if ks % 2 == 0 else 36
        mfma(acc, W3B + 4 * ks, ONES, None if ks < 2 else acc)
    for k in range(4):
        a(f'v_add_f32 {vr(CSB + k)}, {vr(CSB + k)}, {vr(36 + k)}')
    a.label(lnb)
    for k in range(4):
        a(f'v_add_f32 {vr(CSA + k)}, {vr(CSA + k)}, {vr(32 + k)}')
    AR = 64
    ACA, ACB = 32, 48
    SA, QA, TP, MR = 112, 116, 120, 120
    a(f's_lshl_b32 {sA}, {sRB}, 1'); a(f's_mul_i32 {sA}, {sA}, {86 * 1024}')
    a(f's_lshl_b32 {sB}, {sNT3}, 10'); a(f's_add_u32 {sA}, {sA}, {sB}'); a(f's_add_u32 {sE}, {sA}, {WS_H3}')

    def lda(ks, q):
        b = AR + 16 * (ks % 3)
        for tt in range(4):
            a(f'ds_read_b128 {vr(b + 4 * tt, 4)}, {vr(vVB)} offset:{32768 * (tt >> 1) + 2048 * ks + 256 * (tt & 1)}')
        q += [('a', ks)] * 4

    def wait_for(q, key):
        last = max(i for i, o in enumerate(q) if o == key)
        a(f's_waitcnt lgkmcnt({min(15, len(q) - 1 - last)})')

    def epi_steps(acc, cs, tileoff, tmp, gk, pk):
        steps = []
        for tt in range(4):
            mr = MR + 2 * tt
            def f(tt=tt, mr=mr):
                for k in (0, 2):
                    r = acc + 4 * tt + k
                    a(f'v_pk_fma_f32 {vr(r, 2)}, {vr(cs + k, 2)}, {vr(mr, 2)}, {vr(r, 2)} op_sel_hi:[1,0,1] neg_lo:[0,1,0] neg_hi:[0,1,0]')
                    a(f'v_pk_mul_f32 {vr(r, 2)}, {vr(r, 2)}, {vr(mr, 2)} op_sel:[0,1] op_sel_hi:[1,1]')
            steps.append(f)
        for i in range(8):
            steps.append(lambda i=i: gelu([acc + 2 * i, acc + 2 * i + 1], tmp + 2 * (i & 1), gk))
        for T in range(2):
            def f(T=T):
                d = pk + 4 * T
                pack_swap(d, acc + 8 * T, acc + 8 * T + 4)
                a(f's_add_u32 {sA}, {sE}, {tileoff + T * 86 * 1024}')
                bstore(d, 4, vL16, WS, soff=sA, mods='sc1')
            steps.append(f)
        return steps

    def stats_pass():
        a('s_waitcnt vmcnt(0)')
        a('s_barrier')
        stamp('x1landed')
        for k in range(8):
            a(f'ds_read_b128 {vr(AR + 4 * k, 4)}, v20 offset:{2048 * k}')
        a(f'ds_read_b64 {vr(X1R, 2)}, v22')
        a(f'ds_read_b64 {vr(X1R + 2, 2)}, v22 offset:256')
        for k in range(8):
            a(f's_waitcnt lgkmcnt({9 - k})')
            f = AR + 4 * k
            sa, qa = (SA, QA) if k % 2 == 0 else (ACB, ACB + 4)
            mfma(sa, ONES, f, None if k < 2 else sa)
            mfma(qa, f, f, None if k < 2 else qa)
        for k in range(4):
            a(f'v_add_f32 {vr(SA + k)}, {vr(SA + k)}, {vr(ACB + k)}') if k == 0 else None
            a(f'v_add_f32 {vr(QA + k)}, {vr(QA + k)}, {vr(ACB + 4 + k)}')
        stats_publish(21, SA, QA, TP)
        a('s_waitcnt lgkmcnt(0)')
        a('s_barrier')
        stamp('k5b')

    def loop1(two):
        q = []
        SF = AR + 32
        for tt in range(4):
            a(f'ds_read_b64 {vr(SF + 4 * tt, 2)}, v23 offset:{128 * tt}')
            a(f'ds_read_b64 {vr(SF + 4 * tt + 2, 2)}, v23 offset:{512 + 128 * tt}')
        q += [('f', 0)] * 8
        lda(0, q); lda(1, q)
        wait_for(q, ('f', 0))
        for tt in range(4):
            bb = SF + 4 * tt
            mr = MR + 2 * tt
            a(f'v_pk_add_f32 {vr(bb, 2)}, {vr(bb, 2)}, {vr(bb + 2, 2)}')
            stats_finish(bb, bb + 1, mr, mr + 1)
        nxt = 2
        for ks in range(16):
            wait_for(q, ('a', ks))
            b = AR + 16 * (ks % 3)
            for tt in range(4):
                mfma(ACA + 4 * tt, W3A + 4 * ks, b + 4 * tt, None if ks == 0 else ACA + 4 * tt)
                if two:
                    mfma(ACB + 4 * tt, W3B + 4 * ks, b + 4 * tt, None if ks == 0 else ACB + 4 * tt)
            if not two:
                w4_one(None, 0, ks)
            while nxt < 16 and nxt <= ks + 2:
                lda(nxt, q); nxt += 1
            if ks == 8:
                wtouch('w4', 15)

    stats_pass()
    a(f's_cmp_ge_u32 {sWV}, 4')
    lpr = a.newlabel('L_prio')
    a(f's_cbranch_scc0 {lpr}')
    a('s_setprio 1')
    a.label(lpr)
    l1 = a.newlabel('L_one'); lj = a.newlabel('L_p5j')
    a(f's_cmp_eq_u32 {sNV}, 1')
    a(f's_cbranch_scc1 {l1}')
    loop1(True)
    stamp('gemm3')
    GK, TMP, PK = 64, 72, 76
    gelu_consts(GK)
    for f in epi_steps(ACA, CSA, 0, TMP, GK, PK):
        f()
    stamp('loop2')
    for f in epi_steps(ACB, CSB, 8 * 1024, TMP, GK, PK + 8):
        f()
    stamp('epiB')
    a('s_waitcnt vmcnt(0) lgkmcnt(0)')
    a(f's_branch {lj}')
    a.label(l1)
    loop1(False)
    w4_loads(16, 6)
    stamp('gemm3')
    GK, TMP, PK = 64, 72, 76
    gelu_consts(GK)
    for f in epi_steps(ACA, CSA, 0, TMP, GK, PK):
        f()
    stamp('epiB')
    a('s_waitcnt vmcnt(0) lgkmcnt(0)')
    a.label(lj)
    a('s_setprio 0')
    stamp('h3stored')
    a('s_barrier')
    a(f's_lshl_b32 {sE}, {sRB}, 3'); a(f's_add_u32 {sE}, {sE}, {sCS}')
    set_flag(WS_F5, sE)

    l1 = a.newlabel('L_w4one')
    a(f's_cmp_eq_u32 {sNV}, 1')
    a(f's_cbranch_scc1 {l1}')
    w4_loads(0, 16)
    w4_loads(16, 6)
    a.label(l1)


def phase6():
    a(f's_lshl_b32 {sA}, {sCS}, 6'); a(f's_lshl_b32 {sB}, {sLO}, 4'); a(f's_add_u32 {sA}, {sA}, {sB}')
    a(f's_lshl_b32 {sA}, {sA}, 2'); a(f's_add_u32 {sA}, {sA}, {WS_MODF + 5 * 2048}')
    a('v_lshlrev_b32 v14, 4, v3')
    bload(16, 4, 14, WS, soff=sA, mods='sc1')
    poll(WS_F5, 'own')
    stamp('S5ok')
    a(f's_lshl_b32 {sA}, {sRB}, 1'); a(f's_lshr_b32 {sB}, {sWV}, 1'); a(f's_and_b32 {sB}, {sB}, 1')
    a(f's_add_u32 {sA}, {sA}, {sB}'); a(f's_mul_i32 {sA}, {sA}, {86 * 1024}')
    a(f's_mul_i32 {sB}, {sHI}, {44 * 1024}'); a(f's_add_u32 {sA}, {sA}, {sB}')
    a(f's_and_b32 {sB}, {sWV}, 1'); a(f's_lshl_b32 {sB}, {sB}, 10'); a(f's_add_u32 {sA}, {sA}, {sB}')
    a(f's_add_u32 {sE}, {sA}, {WS_H3}')
    a(f's_lshl_b32 {sF}, {sWV}, 10')

    def ring(s_):
        if 'nodma' in XP and s_ >= 3:
            return
        a(f's_add_u32 {sC}, {sE}, {2048 * s_}')
        if s_ == 21:
            a(f's_cmp_eq_u32 {sHI}, 1')
            a(f's_cselect_b32 {sC}, 0x7ff00000, {sC}')
        a(f's_add_u32 {sD}, {sF}, {8192 * (s_ % NSLOT)}')
        dma(4, vL16, WS, sD, soff=sC, mods=LDM)
    AHEAD = int(os.environ.get('AHEAD', '6'))
    RAMP = int(os.environ.get('RAMP', '14'))
    for s_ in range(AHEAD):
        ring(s_)
    a(f's_lshl_b32 {sA}, {sHI}, 12')
    a(f'v_add_u32 v32, {sA}, {vr(vVB)}')
    a('v_add_u32 v33, 65536, v32')
    a('v_add_u32 v34, 131072, v32')
    AR = 64
    ACC = 40

    def lda(s_):
        b = AR + 16 * (s_ % 4)
        off = 8192 * (s_ % NSLOT)
        ad, base = (32, 0) if off < 65536 else (33, 65536) if off < 131072 else (34, 131072)
        for tt in range(4):
            if 'nord' in XP and s_ > 3:
                continue
            a(f'ds_read_b128 {vr(b + 4 * tt, 4)}, {vr(ad)} offset:{off - base + 2048 * (tt >> 1) + 256 * (tt & 1)}')
    guar = {0: 3, 2: 7, 6: 11, 10: 15, 14: 19, 18: 22}
    issued = AHEAD
    q = []
    nxt = 0
    bound = 0
    gi = 0
    for s_ in range(22):
        if s_ in guar:
            bound = guar[s_]
            while issued < bound:
                ring(issued); issued += 1
            if 'novm' not in XP or s_ == 0:
                a(f's_waitcnt vmcnt({issued - bound})')
            if 'nobar' not in XP or s_ == 0:
                a('s_barrier')
            stamp(f'g{gi}'); gi += 1
            last_barrier = s_
        while nxt < bound and nxt <= s_ + 2:
            lda(nxt); q += [nxt] * 4; nxt += 1
        nper = 2 if issued < RAMP else 1
        for _ in range(nper):
            if issued < 22 and (issued < NSLOT or issued - NSLOT < last_barrier):
                ring(issued); issued += 1
        last = max(i for i, o in enumerate(q) if o == s_)
        a(f's_waitcnt lgkmcnt({min(15, len(q) - 1 - last)})')
        b = AR + 16 * (s_ % 4)
        for tt in range(4):
            mfma(ACC + 4 * tt, w4reg(s_), b + 4 * tt, None if s_ == 0 else ACC + 4 * tt)
        while nxt < bound and nxt <= s_ + 3:
            lda(nxt); q += [nxt] * 4; nxt += 1
    assert issued == 22
    stamp('gemm4')
    a(f's_lshl_b32 {sA}, {sWV}, 11')
    a(f's_add_u32 {sA}, {sA}, {L_EX}')
    a(f'v_add_u32 v35, {sA}, {vr(vL16)}')
    lk1 = a.newlabel('L_k1'); lkd = a.newlabel('L_kd')
    a(f's_cmp_eq_u32 {sHI}, 1')
    a(f's_cbranch_scc1 {lk1}')
    a(f'ds_write_b128 v35, {vr(ACC + 8, 4)}')
    a(f'ds_write_b128 v35, {vr(ACC + 12, 4)} offset:1024')
    a(f's_branch {lkd}')
    a.label(lk1)
    a(f'ds_write_b128 v35, {vr(ACC, 4)}')
    a(f'ds_write_b128 v35, {vr(ACC + 4, 4)} offset:1024')
    for k in range(8):
        a(f'v_mov_b32 {vr(ACC + k)}, {vr(ACC + 8 + k)}')
    a.label(lkd)
    a(f's_lshl_b32 {sA}, {sRB}, 6'); a(f's_lshl_b32 {sB}, {sHI}, 5'); a(f's_add_u32 {sA}, {sA}, {sB}')
    a(f's_lshl_b32 {sA}, {sA}, 10')
    a(f's_lshl_b32 {sB}, {sCS}, 7'); a(f's_add_u32 {sA}, {sA}, {sB}')
    a(f's_lshl_b32 {sB}, {sLO}, 5'); a(f's_add_u32 {sE}, {sA}, {sB}')
    a('v_lshlrev_b32 v36, 10, v2')
    a('v_lshl_add_u32 v36, v3, 3, v36')
    a('s_waitcnt lgkmcnt(0)')
    a('s_barrier')
    a(f's_xor_b32 {sA}, {sWV}, 4')
    a(f's_lshl_b32 {sA}, {sA}, 11')
    a(f's_add_u32 {sA}, {sA}, {L_EX}')
    a(f'v_add_u32 v35, {sA}, {vr(vL16)}')
    stamp('exch')
    a('ds_read_b128 v[64:67], v35')
    a('ds_read_b128 v[68:71], v35 offset:1024')
    for e in range(2):
        for k in range(4):
            for (src, dst) in ((X1R + 2 * e + (k >> 1), 72 + 8 * e + k), (XS + 2 * e + (k >> 1), 76 + 8 * e + k)):
                if k & 1:
                    a(f'v_and_b32 {vr(dst)}, 0xffff0000, {vr(src)}')
                else:
                    a(f'v_lshlrev_b32 {vr(dst)}, 16, {vr(src)}')
    a('s_waitcnt lgkmcnt(0)')
    for e in range(2):
        for k in range(4):
            r = ACC + 4 * e + k
            a(f'v_add_f32 {vr(r)}, {vr(r)}, {vr(64 + 4 * e + k)}')
            a(f'v_add_f32 {vr(r)}, {vr(r)}, {vr(72 + 8 * e + k)}')
            a(f'v_fma_f32 {vr(r)}, {vr(16 + k)}, {vr(r)}, {vr(76 + 8 * e + k)}')
        a(f'v_cvt_pk_bf16_f32 {vr(88 + 2 * e)}, {vr(ACC + 4 * e)}, {vr(ACC + 4 * e + 1)}')
        a(f'v_cvt_pk_bf16_f32 {vr(89 + 2 * e)}, {vr(ACC + 4 * e + 2)}, {vr(ACC + 4 * e + 3)}')
    bstore(88, 2, 36, OUT, soff=sE)
    a(f's_add_u32 {sE}, {sE}, 16384')
    bstore(90, 2, 36, OUT, soff=sE)


def finish():
    lf = a.newlabel('L_fin')
    a('s_cmp_lg_u32 s2, 0')
    a(f's_cbranch_scc1 {lf}')
    a(f's_cmp_lg_u32 {sWV}, 0')
    a(f's_cbranch_scc1 {lf}')
    a(f'v_mov_b32 v14, {sT}')
    a(f'v_mov_b32 v15, {WS_EPOCH}')
    save_exec_mask('1')
    bstore(14, 1, 15, WS, mods='sc1')
    restore_exec()
    a.label(lf)
    if PADTO or STAMPS:
        a('s_waitcnt vmcnt(0)')
    if PADTO:
        lp = a.newlabel('L_pad'); lq = a.newlabel('L_padq')
        a('s_cmp_lg_u32 s2, 0')
        a(f's_cbranch_scc1 {lq}')
        a.label(lp)
        a('s_memrealtime s[98:99]')
        a('s_waitcnt lgkmcnt(0)')
        a('s_sub_u32 s98, s98, s3')
        a(f's_cmp_lt_u32 s98, {PADTO * 100}')
        a(f's_cbranch_scc1 {lp}')
        a.label(lq)
    stamp('end')
    if STAMPS:
        for i in range(len(stamp_names)):
            a(f'v_writelane_b32 v255, s{STAMP_REGS[i]}, {i}')
        a(f's_lshl_b32 {sA}, s2, 3')
        a(f's_add_u32 {sA}, {sA}, {sWV}')
        a(f's_lshl_b32 {sA}, {sA}, 8')
        a(f's_add_u32 {sA}, {sA}, {WS_DBG}')
        a(f'v_lshl_add_u32 v20, v1, 2, {sA}')
        bstore(255, 1, 20, WS)
        a('s_waitcnt vmcnt(0)')
        open('stamps.txt', 'w').write('\n'.join(stamp_names) + '\n')
    a.label('L_END')
    a('s_endpgm')


def build(debug=True):
    global DEBUG
    DEBUG = debug
    prologue()
    phase_a()
    phase_b()
    for name, fn in (('3', phase3), ('4', phase4), ('5', phase5), ('6', phase6)):
        if STOP_AFTER and STOP_AFTER < name and STOP_AFTER != '':
            break
        fn()
    finish()
    nops = a.fast_hazard_pass()
    errs = a.check_waits([{'s5': w, 's89': nv} for w in range(8) for nv in ((1, 2) if w < 3 else (1,))])
    for e in errs:
        print('WAIT-CHECK:', e, file=sys.stderr)
    hdr = open('adaLN_cond__ssm_conv_s4__mixer_s_mlp__prompt.s.ref').read().split('\n')
    head = [l for l in hdr if l.startswith(';') and '@launch' not in l and 'Override' not in l and 'grid=ceil' not in l]
    txt = '\n'.join(head) + '\n; @launch grid=(256,1,1) block=(512,1,1) lds=163840\n'
    txt += '.amdgcn_target "amdgcn-amd-amdhsa--gfx950"\n.text\n'
    txt += f'.globl {KNAME}\n.p2align 8\n.type {KNAME},@function\n{KNAME}:\n'
    txt += a.text()
    txt += f'''.section .rodata,"a"
.p2align 6
.amdhsa_kernel {KNAME}
  .amdhsa_next_free_vgpr 256
  .amdhsa_next_free_sgpr 102
  .amdhsa_accum_offset 256
  .amdhsa_group_segment_fixed_size 0
  .amdhsa_kernarg_size 152
  .amdhsa_user_sgpr_count 2
  .amdhsa_user_sgpr_kernarg_segment_ptr 1
  .amdhsa_system_sgpr_workgroup_id_x 1
  .amdhsa_float_denorm_mode_32 3
.end_amdhsa_kernel
'''
    print(f'instructions: {len(a.lines)}  hazard nops: {nops}', file=sys.stderr)
    return txt


if __name__ == '__main__':
    out = sys.argv[1] if len(sys.argv) > 1 else 'k.s'
    open(out, 'w').write(build(debug=os.environ.get('NODEBUG') is None))
```

```python
import sys, os, struct
sys.path.insert(0, os.path.dirname(os.path.abspath(__file__)))
from asmlib import Asm
from layout import *

KNAME = 'adaLN_cond__ssm_conv_s4__mixer_s_mlp__prompt_kernel'
STOP_AFTER = os.environ.get('STOP_AFTER', '')
STAMPS = os.environ.get('STAMPS') is not None
PADTO = int(os.environ.get('PADTO', '0'))
SPIN_MAX = 20000
XP = os.environ.get('XP', '').split(',')
NOFAST = True
LDM = os.environ.get('LDM', 'sc1')
PRETOUCH = int(os.environ.get('PRETOUCH', '0'))
NOSCOUT = os.environ.get('NOSCOUT') is not None
FASTX = os.environ.get('FASTX') is not None
CM = '' if FASTX else 'sc1'

sT = 's4'; sWV = 's5'; sX = 's6'; sJ = 's7'
U, WS, OUT = 8, 12, 16
ARE, AIM, BRE, BIM, CRE, CIM = 20, 24, 28, 32, 36, 40
LDT, DSK, CC, WMOD, W1, W2, W3, W4 = 44, 48, 52, 56, 60, 64, 68, 72
sCH0 = 's76'; sRB = 's77'; sCS = 's78'; sNT3 = 's79'
sA, sB, sC, sD = 's80', 's81', 's82', 's83'
sSPIN = 's84'; sLO = 's85'; sHI = 's86'
sE, sF = 's87', 's88'; sNV = 's89'
mK1, mK2, mK3, mDG = 90, 92, 94, 96
sX0 = 98
sT32 = 's100'; sCQ = 's101'
sROT = 's68'
mFA, mSL = 64, 66
TSRD = 92
sSD, sSN, sSS, sSB = 's90', 's91', 's96', 's97'
sSR, sSO = 's74', 's75'

vL16, vVB = 4, 5
XS, X1R = 6, 10


def srd(n):
    return f's[{n}:{n + 3}]'


def vr(a, n=1):
    return f'v{a}' if n == 1 else f'v[{a}:{a + n - 1}]'


def fconst(x):
    return hex(struct.unpack('<I', struct.pack('<f', x))[0])


L_G = 0; G_ROW = 544; G_CH = 48 * G_ROW
L_E = 2 * G_CH; E_CH = 16 * G_ROW
L_KT = L_E + 2 * E_CH; KT_CH = 5120; KT_ZERO = 2559
L_COPY = L_KT + 2 * KT_CH; CP_R = 4160; CP_CH = 4 * CP_R
L_STG = L_COPY + 2 * CP_CH
L_PART = 0
L_XC = 143360
L_H = L_XC + 8192; H_CH = 4672
assert L_STG + 4 * 4096 <= L_XC and L_H + 2 * H_CH <= 163840
L_X = 0
L_HF = 32768
L_A4 = 65536
L_XS = 114688
L_CB = 122880
L_ST = L_CB + 4096
L_ST3 = L_ST + 1024
L_X1 = 0
L_ST5 = 147456
NSLOT = 18
L_EX = 147456

a = Asm()
stamp_names = []
STAMP_REGS = [3] + list(range(20, 48)) + list(range(52, 60))
STAMPSET = os.environ.get('STAMPSET', 'all')
LATE_ONLY = ('entry', 'S4ok', 'x1landed', 'k5a', 'k5b', 'k12a', 'k12b', 'gemm3', 'loop2', 'epiB', 'h3stored', 'S5ok', 'g0', 'g1', 'g2', 'g3', 'g4', 'g5', 'g6', 'g7', 'gemm4', 'exch', 'end')


def stamp(name):
    if not STAMPS:
        return
    if STAMPSET == 'late' and name not in LATE_ONLY:
        return
    if STAMPSET == 'all' and name in ('k5a', 'k5b', 'k12a', 'k12b', 'loop2', 'epiB', 'g0', 'g1', 'g2', 'g3', 'g4', 'g5', 'g6', 'g7', 'exch'):
        return
    if name in stamp_names:
        i = stamp_names.index(name)
    else:
        i = len(stamp_names)
        stamp_names.append(name)
    a(f's_memtime s[{sX0}:{sX0 + 1}]' if os.environ.get('CYC') else f's_memrealtime s[{sX0}:{sX0 + 1}]')
    a('s_waitcnt lgkmcnt(0)')
    a(f's_mov_b32 s{STAMP_REGS[i]}, s{sX0}')


def bload(dst, n, voff, s, imm=0, soff='0', mods=''):
    op = {1: 'buffer_load_dword', 2: 'buffer_load_dwordx2', 4: 'buffer_load_dwordx4', 'u16': 'buffer_load_ushort'}[n]
    cnt = 1 if n == 'u16' else n
    a(f'{op} {vr(dst, cnt)}, {vr(voff)}, {srd(s)}, {soff} offen' + (f' offset:{imm}' if imm else '') + (' ' + mods if mods else ''))


def bstore(src, n, voff, s, imm=0, soff='0', mods=''):
    op = {1: 'buffer_store_dword', 2: 'buffer_store_dwordx2', 4: 'buffer_store_dwordx4'}[n]
    a(f'{op} {vr(src, n)}, {vr(voff)}, {srd(s)}, {soff} offen' + (f' offset:{imm}' if imm else '') + (' ' + mods if mods else ''))


def dma(n, voff, s, m0, soff='0', mods=''):
    a(f's_mov_b32 m0, {m0}')
    op = {1: 'buffer_load_dword', 4: 'buffer_load_dwordx4'}[n]
    a(f'{op} {vr(voff)}, {srd(s)}, {soff} offen' + (' ' + mods if mods else '') + ' lds')


def cstore(src, n, voff, soff):
    if NOFAST:
        bstore(src, n, voff, WS, soff=soff, mods='sc1')
        return
    a(f's_mov_b64 exec, s[{mFA}:{mFA + 1}]')
    bstore(src, n, voff, WS, soff=soff)
    a(f's_mov_b64 exec, s[{mSL}:{mSL + 1}]')
    bstore(src, n, voff, WS, soff=soff, mods='sc1')
    a('s_mov_b64 exec, -1')


def mfma(d, x, y, c=None):
    cc = '0' if c is None else vr(c, 4)
    a(f'v_mfma_f32_16x16x32_bf16 {vr(d, 4)}, {vr(x, 4)}, {vr(y, 4)}, {cc}')


def cmul(d, x, y):
    a(f'v_pk_mul_f32 {vr(d, 2)}, {vr(x, 2)}, {vr(y, 2)} op_sel:[0,0] op_sel_hi:[0,1]')
    a(f'v_pk_fma_f32 {vr(d, 2)}, {vr(x, 2)}, {vr(y, 2)}, {vr(d, 2)} op_sel:[1,1,0] op_sel_hi:[1,0,1] neg_lo:[1,0,0]')


def save_exec_mask(mask):
    a(f's_mov_b64 s[{sX0}:{sX0 + 1}], exec')
    if isinstance(mask, int) and mask > 64:
        a(f's_mov_b32 exec_lo, {hex(mask & 0xffffffff)}')
        a(f's_mov_b32 exec_hi, {hex(mask >> 32)}')
    else:
        a(f's_mov_b64 exec, {mask}')


def restore_exec():
    a(f's_mov_b64 exec, s[{sX0}:{sX0 + 1}]')


def prologue():
    if PADTO:
        a('s_memrealtime s[78:79]')
        a('s_waitcnt lgkmcnt(0)')
        a('s_mov_b32 s3, s78')
    a('s_cmp_ge_u32 s2, 256')
    a('s_cbranch_scc1 L_END')
    ptrs = [(U, 0), (WS, 144), (ARE, 8), (AIM, 16), (BRE, 24), (BIM, 32), (CRE, 40), (CIM, 48), (LDT, 56), (CC, 112),
            (WMOD, 120), (W1, 80), (W2, 88), (W3, 96), (W4, 104), (DSK, 64), (OUT, 128)]
    for r, off in ptrs:
        a(f's_load_dwordx2 s[{r}:{r + 1}], s[0:1], {off}')
    sizes = {U: 2 * 1024 * 1024, ARE: 131072, AIM: 131072, BRE: 131072, BIM: 131072, CRE: 131072, CIM: 131072,
             LDT: 1024, DSK: 1024, W1: 524288, W2: 524288, W3: 512 * F_ * 2, W4: 512 * F_ * 2, CC: 1024,
             WMOD: 512 * 3072 * 2, OUT: 2 * 1024 * 1024, WS: WS_USED + (WS_DBG_SIZE if DEBUG else 0)}
    a('v_lshrrev_b32 v2, 6, v0')
    a('v_and_b32 v1, 63, v0')
    a(f'v_readfirstlane_b32 {sWV}, v2')
    for r, sz in sizes.items():
        a(f's_mov_b32 s{r + 2}, {sz}')
        a(f's_mov_b32 s{r + 3}, 0x20000')
    a('v_and_b32 v2, 15, v1')
    a('v_lshrrev_b32 v3, 4, v1')
    a(f'v_lshlrev_b32 {vr(vL16)}, 4, v1')
    a(f's_and_b32 {sX}, s2, 7')
    if os.environ.get('XROT'):
        a(f's_add_u32 {sX}, {sX}, {os.environ["XROT"]}')
        a(f's_and_b32 {sX}, {sX}, 7')
    a(f's_lshr_b32 {sJ}, s2, 3')
    a(f's_lshl_b32 {sCH0}, {sX}, 6')
    a(f's_lshl_b32 {sA}, {sJ}, 1')
    a(f's_add_u32 {sCH0}, {sCH0}, {sA}')
    a(f's_lshl_b32 {sRB}, {sX}, 2')
    a(f's_lshr_b32 {sA}, {sJ}, 3')
    a(f's_add_u32 {sRB}, {sRB}, {sA}')
    a(f's_and_b32 {sCS}, {sJ}, 7')
    a(f's_lshl_b32 {sT32}, {sRB}, 1')
    a(f's_and_b32 {sA}, {sCS}, 1')
    a(f's_add_u32 {sT32}, {sT32}, {sA}')
    a(f's_lshr_b32 {sCQ}, {sCS}, 1')
    a('v_mov_b32 v102, 0')
    a('s_waitcnt lgkmcnt(0)')
    a(f's_mov_b64 s[{TSRD}:{TSRD + 1}], s[{W1}:{W1 + 1}]')
    a(f's_mov_b32 s{TSRD + 2}, 524288')
    a(f's_mov_b32 s{TSRD + 3}, 0x20000')


EXA = 112
KMA, KMB, KMD = 108, 109, 104


def precompute():
    a(f's_load_dword {sT}, s[{WS}:{WS + 1}], {WS_EPOCH}')
    a(f'v_lshlrev_b32 {vr(vVB)}, 4, v2')
    a(f'v_lshl_add_u32 {vr(vVB)}, v3, 9, {vr(vVB)}')
    a('v_and_b32 v16, 255, v0')
    a('v_lshlrev_b32 v16, 3, v16')
    a(f's_lshr_b32 {sA}, {sWV}, 2')
    a(f's_mul_i32 {sA}, {sA}, {KT_CH}')
    a(f's_add_u32 {sA}, {sA}, {L_KT}')
    a(f'v_cvt_f32_u32 v17, {sA}')
    a(f's_add_u32 {sA}, {sA}, {2 * KT_ZERO}')
    a(f'v_mov_b32 v18, {sA}')
    a('v_cvt_f32_u32 v19, v16')
    a('v_cmp_eq_u32 vcc, 0, v16')
    for d in range(1, 12):
        dd = d - 4
        r = EXA + d
        a(f'v_add_f32 v20, {float(dd)}, v19' if -16 <= dd <= 4 and float(dd) in (-4.0, -2.0, -1.0, 1.0, 2.0, 4.0, 0.5) else
          f'v_add_f32 v20, {fconst(float(dd))}, v19')
        a('v_cvt_pk_bf16_f32 v20, v20, v20')
        a('v_and_b32 v20, 0xffff0000, v20')
        a('v_fma_f32 v20, v20, 2.0, v17')
        a(f'v_cvt_u32_f32 {vr(r)}, v20')
        if dd < 0:
            a(f'v_cndmask_b32 {vr(r)}, {vr(r)}, v18, vcc')
    a(f's_cmp_ge_u32 {sWV}, 3')
    a(f's_cselect_b32 {sA}, 1, 0')
    a(f's_mul_i32 {sB}, {sA}, 3')
    a(f's_sub_u32 {sB}, {sWV}, {sB}')
    a(f's_mul_i32 {sC}, {sA}, {G_CH}')
    a(f's_mul_i32 {sD}, {sB}, {16 * G_ROW}')
    a(f's_add_u32 {sC}, {sC}, {sD}')
    a(f'v_mul_u32_u24 v16, {G_ROW}, v2')
    a('v_lshl_add_u32 v16, v3, 4, v16')
    a(f'v_add_u32 {vr(KMA)}, {sC}, v16')
    a(f's_mul_i32 {sC}, {sA}, {E_CH}')
    a(f's_add_u32 {sC}, {sC}, {L_E}')
    a(f'v_add_u32 {vr(KMB)}, {sC}, v16')
    bases = [(0, 4, 128, 132), (256, 384, 512, 516), (1024, 1536, 2048, 2049)]
    steps = [(1, 1, 1, 1), (2, 2, 128, 128), (128, 128, 128, 128)]
    pk2 = lambda x, y: x | (y << 16)
    pk4 = lambda t: t[0] | (t[1] << 8) | (t[2] << 16) | (t[3] << 24)
    for reg, vals in ((sC, [pk2(b[0], b[1]) for b in bases]), (sD, [pk2(b[2], b[3]) for b in bases]),
                      (sE, [pk4(s) for s in steps])):
        a(f's_mov_b32 {reg}, {vals[0]}')
        a(f's_cmp_eq_u32 {sB}, 1')
        a(f's_cselect_b32 {reg}, {vals[1]}, {reg}')
        a(f's_cmp_eq_u32 {sB}, 2')
        a(f's_cselect_b32 {reg}, {vals[2]}, {reg}')
    a('v_cmp_gt_u32 vcc, 2, v3')
    a(f'v_mov_b32 v16, {sD}')
    a(f'v_mov_b32 v17, {sC}')
    a('v_cndmask_b32 v16, v16, v17, vcc')
    a('v_and_b32 v17, 1, v3')
    a('v_lshlrev_b32 v17, 4, v17')
    a('v_bfe_u32 v16, v16, v17, 16')
    a('v_lshlrev_b32 v17, 3, v3')
    a(f'v_bfe_u32 v17, {sE}, v17, 8')
    a('v_lshl_add_u32 v16, v2, 3, v16')
    a(f's_mul_i32 {sC}, {sA}, {KT_CH}')
    a(f's_add_u32 {sC}, {sC}, {L_KT}')
    a(f'v_lshlrev_b32 v16, 1, v16')
    a(f'v_add_u32 {vr(KMD)}, {sC}, v16')
    a('v_lshlrev_b32 v17, 1, v17')
    for r in range(1, 4):
        a(f'v_add_u32 {vr(KMD + r)}, {vr(KMD + r - 1)}, v17')
    a('s_waitcnt lgkmcnt(0)')
    a(f's_add_u32 {sT}, {sT}, 1')


def role_k():
    a(f's_lshr_b32 {sA}, {sWV}, 1')
    a(f's_add_u32 {sB}, {sCH0}, {sA}')
    a(f's_and_b32 {sC}, {sWV}, 1')
    a(f's_lshl_b32 {sC}, {sC}, 6')
    a(f's_lshl_b32 {sD}, {sB}, 7')
    a(f's_add_u32 {sD}, {sD}, {sC}')
    a(f'v_add_u32 v21, {sD}, v1')
    a('v_lshlrev_b32 v21, 1, v21')
    a(f's_lshl_b32 {sB}, {sB}, 1')
    a(f'v_mov_b32 v22, {sB}')
    for i, s in enumerate((ARE, AIM, BRE, BIM, CRE, CIM)):
        bload(24 + i, 'u16', 21, s)
    bload(30, 'u16', 22, LDT)
    if PRETOUCH:
        a(f'v_lshlrev_b32 v126, {PRETOUCH}, v1')
        a('v_min_u32 v126, ' + str(WS_USED - 4) + ', v126')
        bload(127, 1, 126, WS)
    a(f's_mul_i32 {sB}, {sA}, {G_CH}')
    a(f'v_add_u32 v22, {sC}, v1')
    a('v_lshlrev_b32 v22, 2, v22')
    a(f'v_add_u32 v23, {sB}, v22')
    a(f's_mul_i32 {sB}, {sA}, {E_CH}')
    a(f's_add_u32 {sB}, {sB}, {L_E}')
    a(f'v_add_u32 v22, {sB}, v22')
    precompute()
    swz_issue()
    a('s_waitcnt vmcnt(0)')
    stamp('r_loaded')
    for i in range(7):
        a(f'v_lshlrev_b32 {vr(24 + i)}, 16, {vr(24 + i)}')
    LOG2E = 1.4426950408889634
    hi = struct.unpack('<f', struct.pack('<f', LOG2E))[0]
    lo = LOG2E - hi
    a(f'v_mul_f32 v32, {fconst(hi)}, v30')
    a(f'v_mov_b32 v31, {fconst(hi)}')
    a('v_fma_f32 v33, v30, v31, -v32')
    a(f'v_fmamk_f32 v33, v30, {fconst(lo)}, v33')
    a('v_exp_f32 v32, v32')
    a(f'v_mul_f32 v33, {fconst(0.6931471805599453)}, v33')
    a('v_fma_f32 v32, v32, v33, v32')
    a('v_cvt_pk_bf16_f32 v32, v32, v32')
    a('v_lshlrev_b32 v30, 16, v32')
    a('v_mul_f32 v24, v24, v30')
    a('v_mul_f32 v25, v25, v30')
    a(f'v_mul_f32 v24, {fconst(hi)}, v24')
    a(f'v_mul_f32 v25, {fconst(1.0 / (2 * 3.141592653589793))}, v25')
    a('v_mul_f32 v26, v26, v30')
    a('v_mul_f32 v27, v27, v30')
    cmul(32, 26, 28)
    for d, m in ((34, 1.0), (36, 8.0), (38, 128.0)):
        if m == 1.0:
            a('v_exp_f32 v40, v24'); a('v_fract_f32 v41, v25')
        else:
            a(f'v_mul_f32 v40, {fconst(m)}, v24')
            a(f'v_mul_f32 v41, {fconst(m)}, v25')
            a('v_exp_f32 v40, v40'); a('v_fract_f32 v41, v41')
        a('v_cos_f32 v42, v41')
        a('v_sin_f32 v43, v41')
        a(f'v_mul_f32 {vr(d)}, v40, v42')
        a(f'v_mul_f32 {vr(d + 1)}, v40, v43')
    P = {1: 34, 2: 44, 3: 46, 4: 48, 5: 50, 6: 52, 7: 54}
    cmul(P[2], P[1], P[1])
    cmul(P[3], P[2], P[1])
    cmul(P[4], P[2], P[2])
    cmul(P[5], P[4], P[1])
    cmul(P[6], P[4], P[2])
    cmul(P[7], P[4], P[3])

    def putG(rho, x):
        a(f'v_cvt_pk_bf16_f32 v31, {vr(x)}, -{vr(x + 1)}')
        a(f'ds_write_b32 v23, v31 offset:{rho * G_ROW}')

    def putE(j, x):
        a(f'v_cvt_pk_bf16_f32 v29, {vr(x)}, {vr(x + 1)}')
        a(f'ds_write_b32 v22, v29 offset:{j * G_ROW}')

    rows = {}
    for rho in range(41):
        if rho < 16:
            i, b = rho >> 3, rho & 7
        elif rho < 24:
            i, b = 2 + ((rho - 16) >> 2), 2 * ((rho - 16) & 3)
        elif rho < 32:
            i, b = 4 + ((rho - 24) & 3), 4 * ((rho - 24) >> 2)
        else:
            i, b = 8 + (rho - 32), 0
        rows.setdefault(i, []).append((rho, b))
    a('v_mov_b32 v29, 0x00003f80')
    a('ds_write_b32 v22, v29 offset:0')
    putE(1, 36)
    Ecur = 36
    Q = 32
    for i in range(17):
        for n_, (rho, b) in enumerate(rows[i]):
            if b == 0:
                putG(rho, Q)
            else:
                t = 64 + 2 * (n_ & 1)
                cmul(t, Q, P[b])
                putG(rho, t)
        if i < 16:
            nq = 60 if Q != 60 else 62
            cmul(nq, Q, 38)
            Q = nq
        j = i + 2
        if j < 16:
            ne = 56 if Ecur != 56 else 58
            cmul(ne, Ecur, 36)
            putE(j, ne)
            Ecur = ne
    if not os.environ.get('SWZLATE'):
        a('v_mov_b32 v14, v102')
        swz_dma()


def swz_issue():
    a(f's_lshl_b32 {sA}, s2, 2')
    a(f's_add_u32 {sA}, {sA}, {sWV}')
    a(f's_add_u32 {sA}, {sA}, 128')
    a(f's_cmp_lt_u32 {sA}, 952')
    a(f's_cselect_b32 {sSN}, 4, 0')
    a(f's_cselect_b32 {sA}, {sA}, 128')
    a(f's_mov_b64 s[{TSRD}:{TSRD + 1}], s[{W1}:{W1 + 1}]')
    a(f's_mov_b32 s{TSRD + 2}, 524288')
    a(f's_mov_b32 s{TSRD + 3}, 0x20000')
    a(f's_mov_b32 {sSD}, {WS_W1S}')
    a(f's_mov_b32 {sSS}, 16384')
    a(f's_mov_b32 {sF}, 1024')
    a(f's_mov_b32 {sB}, {sA}')
    a(f's_cmp_ge_u32 {sA}, 128')
    a(f's_cselect_b64 s[{TSRD}:{TSRD + 1}], s[{W2}:{W2 + 1}], s[{TSRD}:{TSRD + 1}]')
    a(f's_cselect_b32 {sSD}, {WS_W2S}, {sSD}')
    a(f's_cselect_b32 {sC}, 128, 0')
    a(f's_sub_u32 {sB}, {sA}, {sC}')
    a(f's_cmp_ge_u32 {sA}, 256')
    a(f's_cselect_b64 s[{TSRD}:{TSRD + 1}], s[{W3}:{W3 + 1}], s[{TSRD}:{TSRD + 1}]')
    a(f's_cselect_b32 s{TSRD + 2}, {512 * F_ * 2}, s{TSRD + 2}')
    a(f's_cselect_b32 {sSD}, {WS_W3S}, {sSD}')
    a(f's_cselect_b32 {sF}, {F_ * 2}, {sF}')
    a(f's_cselect_b32 {sC}, 256, 0')
    a(f's_cselect_b32 {sD}, 1, 0')
    a(f's_cmp_lg_u32 {sD}, 0')
    a(f's_sub_u32 {sC}, {sA}, {sC}')
    a(f's_cmp_lg_u32 {sD}, 0')
    a(f's_cselect_b32 {sB}, {sC}, {sB}')
    a(f's_and_b32 {sC}, {sB}, 15')
    a(f's_lshr_b32 {sD}, {sB}, 4')
    a(f's_mov_b32 {sE}, 16')
    a(f's_cmp_ge_u32 {sA}, 608')
    a(f's_cselect_b64 s[{TSRD}:{TSRD + 1}], s[{W4}:{W4 + 1}], s[{TSRD}:{TSRD + 1}]')
    a(f's_cselect_b32 {sSD}, {WS_W4S}, {sSD}')
    a(f's_cselect_b32 {sF}, 1024, {sF}')
    a(f's_cselect_b32 {sE}, 43, {sE}')
    a(f's_cselect_b32 {sSS}, {43 * 1024}, {sSS}')
    a(f's_sub_u32 {sB}, {sA}, 608')
    a(f's_lshr_b32 {sSB}, {sB}, 3')
    a(f's_and_b32 {sB}, {sB}, 7')
    a(f's_cmp_ge_u32 {sA}, 608')
    a(f's_cselect_b32 {sC}, {sSB}, {sC}')
    a(f's_cselect_b32 {sD}, {sB}, {sD}')
    a(f's_cselect_b32 {sB}, 0, {sD}')
    a(f's_cmp_eq_u32 {sB}, 21')
    a(f's_cselect_b32 {sB}, 2, 4')
    a(f's_min_u32 {sSN}, {sSN}, {sB}')
    a(f's_lshl_b32 {sB}, {sD}, 2')
    a(f's_mul_i32 {sB}, {sB}, {sE}')
    a(f's_add_u32 {sB}, {sB}, {sC}')
    a(f's_lshl_b32 {sB}, {sB}, 10')
    a(f's_add_u32 {sSD}, {sSD}, {sB}')
    a(f's_mul_i32 {sC}, {sC}, {sF}')
    a(f's_lshl_b32 {sC}, {sC}, 5')
    a(f's_lshl_b32 {sD}, {sD}, 7')
    a(f's_add_u32 {sC}, {sC}, {sD}')
    a('v_lshrrev_b32 v100, 3, v1')
    a(f'v_mul_lo_u32 v100, v100, {sF}')
    a('v_and_b32 v101, 7, v1')
    a('v_lshl_add_u32 v102, v101, 4, v100')
    a(f's_lshl_b32 {sB}, {sWV}, 12')
    a(f's_add_u32 {sSB}, {sB}, {L_STG}')
    a(f's_lshl_b32 {sSR}, {sF}, 3')
    a(f's_mov_b32 {sSO}, {sC}')


def swz_dma():
    a(f's_mov_b32 {sC}, {sSO}')
    for q in range(4):
        if q:
            a(f's_add_u32 {sC}, {sC}, {sSR}')
        a(f's_add_u32 {sB}, {sSB}, {q * 1024}')
        dma(4, 14, TSRD, sB, soff=sC)


def swz_finish():
    a('v_lshrrev_b32 v46, 2, v2')
    a('v_lshl_add_u32 v46, v3, 3, v46')
    a('v_lshlrev_b32 v46, 7, v46')
    a('v_and_b32 v47, 3, v2')
    a('v_lshl_add_u32 v46, v47, 3, v46')
    a(f'v_add_u32 v46, {sSB}, v46')
    for nt in range(4):
        a(f'ds_read_b64_tr_b16 {vr(48 + 4 * nt, 2)}, v46 offset:{32 * nt}')
        a(f'ds_read_b64_tr_b16 {vr(50 + 4 * nt, 2)}, v46 offset:{32 * nt + 512}')
    a('s_waitcnt lgkmcnt(0)')
    a(f's_mov_b32 {sA}, {sSD}')
    a(f's_mov_b32 {sB}, 0x7ff00000')
    for nt in range(4):
        a(f's_cmp_gt_u32 {sSN}, {nt}')
        a(f's_cselect_b32 {sC}, {sA}, {sB}')
        bstore(48 + 4 * nt, 4, vL16, WS, soff=sC, mods='sc1')
        a(f's_add_u32 {sA}, {sA}, {sSS}')


def role_stats():
    a(f's_lshl_b32 {sA}, s2, 13')
    a(f's_add_u32 {sB}, {sA}, 4096')
    for i in range(8):
        bload(24 + 4 * i, 4, vL16, U, imm=(i & 3) * 1024, soff=(sA if i < 4 else sB))
    precompute()
    a('v_mov_b32 v23, 0x3f803f80')
    a('s_waitcnt vmcnt(7)')
    stamp('r_loaded')
    for i in range(8):
        a(f's_waitcnt vmcnt({7 - i})')
        b = 24 + 4 * i
        a(f'v_dot2_f32_bf16 {vr(60 + i)}, {vr(b)}, v23, 0')
        a(f'v_dot2_f32_bf16 {vr(68 + i)}, {vr(b)}, {vr(b)}, 0')
        for k in range(1, 4):
            a(f'v_dot2c_f32_bf16 {vr(60 + i)}, {vr(b + k)}, v23')
            a(f'v_dot2c_f32_bf16 {vr(68 + i)}, {vr(b + k)}, {vr(b + k)}')
    for base in (60, 68):
        for i in range(4):
            a(f'v_permlane32_swap_b32 {vr(base + i)}, {vr(base + i + 4)}')
        for i in range(4):
            a(f'v_add_f32 {vr(base + i)}, {vr(base + i)}, {vr(base + i + 4)}')
    for base in (60, 68):
        for i in range(2):
            a(f'v_permlane16_swap_b32 {vr(base + i)}, {vr(base + i + 2)}')
        for i in range(2):
            a(f'v_add_f32 {vr(base + i)}, {vr(base + i)}, {vr(base + i + 2)}')
    for sh in (1, 2, 4, 8):
        for r in (60, 61, 68, 69):
            a(f'v_add_f32_dpp {vr(r)}, {vr(r)}, {vr(r)} row_ror:{sh} row_mask:0xf bank_mask:0xf')
    for p in range(2):
        S, Q = 60 + p, 68 + p
        d = 72 + 4 * p
        a(f'v_mul_f32 {vr(S)}, {fconst(1.0 / 512)}, {vr(S)}')
        a(f'v_mul_f32 {vr(Q)}, {fconst(1.0 / 512)}, {vr(Q)}')
        a(f'v_fma_f32 {vr(Q)}, -{vr(S)}, {vr(S)}, {vr(Q)}')
        a(f'v_max_f32 {vr(Q)}, 0, {vr(Q)}')
        a(f'v_add_f32 {vr(Q)}, {fconst(1e-5)}, {vr(Q)}')
        a(f'v_rsq_f32 {vr(d)}, {vr(Q)}')
        a(f'v_mov_b32 {vr(d + 1)}, {sT}')
        a(f'v_mov_b32 {vr(d + 3)}, {sT}')
        a(f'v_mul_f32 {vr(d + 2)}, {vr(S)}, {vr(d)}')
    a(f's_lshl_b32 {sA}, s2, 7')
    a(f's_add_u32 {sA}, {sA}, {WS_STATS}')
    a('v_lshlrev_b32 v21, 5, v3')
    save_exec_mask(0x0001000100010001)
    bstore(72, 4, 21, WS, soff=sA, mods='sc1')
    bstore(76, 4, 21, WS, imm=16, soff=sA, mods='sc1')
    restore_exec()
    stamp('r_pub')


L_SIL = 139264


def role_mod():
    lskip = a.newlabel('L_nomod'); ldone = a.newlabel('L_moddone')
    a('s_cmp_ge_u32 s2, 192')
    a(f's_cbranch_scc1 {lskip}')
    a(f's_mul_i32 {sA}, {sJ}, 43')
    a(f's_lshr_b32 {sA}, {sA}, 8')
    a(f's_mul_i32 {sB}, {sA}, 6')
    a(f's_sub_u32 {sB}, {sJ}, {sB}')
    a(f's_lshl_b32 {sB}, {sB}, 3')
    a(f's_add_u32 {sNV}, {sB}, {sX}')
    a(f's_lshl_b32 {sA}, {sA}, 1')
    a(f's_add_u32 {sA}, {sA}, {sWV}')
    a(f's_sub_u32 {sNT3}, {sA}, 5')
    a('v_lshlrev_b32 v22, 1, v1')
    a(f's_lshl_b32 {sA}, {sNT3}, 7')
    bload(24, 'u16', 22, CC, soff=sA)
    a('v_lshrrev_b32 v21, 3, v1')
    a('v_mul_u32_u24 v23, 6144, v21')
    a('v_and_b32 v40, 7, v1')
    a('v_lshl_add_u32 v23, v40, 4, v23')
    a(f's_mul_i32 {sA}, {sNT3}, {64 * 6144}')
    a(f's_lshl_b32 {sB}, {sNV}, 7')
    a(f's_add_u32 {sA}, {sA}, {sB}')
    for i in range(8):
        if i:
            a(f's_add_u32 {sA}, {sA}, {8 * 6144}')
        bload(64 + 4 * i, 4, 23, WMOD, soff=sA)
    precompute()
    a('s_waitcnt vmcnt(8)')
    stamp('r_loaded')
    a('v_lshlrev_b32 v24, 16, v24')
    a(f'v_mul_f32 v58, {fconst(-1.4426950408889634)}, v24')
    a('v_exp_f32 v58, v58')
    a('v_add_f32 v58, 1.0, v58')
    a('v_rcp_f32 v58, v58')
    a('v_mul_f32 v58, v58, v24')
    a('v_cvt_pk_bf16_f32 v58, v58, v58')
    a('v_and_b32 v56, 0xffff, v58')
    a('v_and_b32 v57, 0xffff0000, v58')
    a(f's_sub_u32 {sA}, {sWV}, 5')
    a(f's_lshl_b32 {sA}, {sA}, 9')
    a(f's_add_u32 {sA}, {sA}, {L_SIL}')
    a('v_and_b32 v25, 7, v1')
    a('v_lshlrev_b32 v25, 5, v25')
    a('v_lshrrev_b32 v26, 3, v1')
    a('v_lshl_add_u32 v25, v26, 2, v25')
    a(f'v_add_u32 v25, {sA}, v25')
    a('ds_write_b32 v25, v56')
    a('ds_write_b32 v25, v57 offset:256')
    a(f'v_lshl_add_u32 v25, v21, 5, {sA}')
    a('s_waitcnt lgkmcnt(0)')
    a('ds_read_b128 v[24:27], v25') if False else None
    a('ds_read_b128 v[28:31], v25')
    a('ds_read_b128 v[32:35], v25 offset:16')
    a('ds_read_b128 v[40:43], v25 offset:256')
    a('ds_read_b128 v[44:47], v25 offset:272')
    a('s_waitcnt lgkmcnt(0)')
    ACC = 48
    for i in range(8):
        a(f's_waitcnt vmcnt({7 - i})')
        b = 64 + 4 * i
        for k in range(4):
            if i == 0:
                a(f'v_dot2_f32_bf16 {vr(ACC + 2 * k)}, {vr(b + k)}, {vr(28 + i)}, 0')
                a(f'v_dot2_f32_bf16 {vr(ACC + 1 + 2 * k)}, {vr(b + k)}, {vr(40 + i)}, 0')
            else:
                a(f'v_dot2c_f32_bf16 {vr(ACC + 2 * k)}, {vr(b + k)}, {vr(28 + i)}')
                a(f'v_dot2c_f32_bf16 {vr(ACC + 1 + 2 * k)}, {vr(b + k)}, {vr(40 + i)}')
    for i in range(4):
        a(f'v_permlane32_swap_b32 {vr(ACC + i)}, {vr(ACC + 4 + i)}')
    for i in range(4):
        a(f'v_add_f32 {vr(ACC + i)}, {vr(ACC + i)}, {vr(ACC + 4 + i)}')
    for i in range(2):
        a(f'v_permlane16_swap_b32 {vr(ACC + i)}, {vr(ACC + 2 + i)}')
    for i in range(2):
        a(f'v_add_f32 {vr(ACC + i)}, {vr(ACC + i)}, {vr(ACC + 2 + i)}')
    for r in (ACC, ACC + 1):
        a(f'v_add_f32_dpp {vr(r)}, {vr(r)}, {vr(r)} row_ror:8 row_mask:0xf bank_mask:0xf')
    a('v_and_b32 v21, 1, v3')
    a('v_lshlrev_b32 v21, 1, v21')
    a('v_lshrrev_b32 v22, 1, v3')
    a('v_lshl_add_u32 v21, v22, 2, v21')
    a('v_and_b32 v22, 7, v1')
    a('v_lshl_add_u32 v21, v22, 3, v21')
    a('v_lshlrev_b32 v21, 3, v21')
    a(f's_mul_i32 {sA}, {sNT3}, 3072')
    a(f's_lshl_b32 {sB}, {sNV}, 6')
    a(f's_add_u32 {sA}, {sA}, {sB}')
    a(f's_lshl_b32 {sA}, {sA}, 3')
    a(f's_add_u32 {sA}, {sA}, {WS_MODG}')
    a(f'v_mov_b32 {vr(ACC + 2)}, {vr(ACC + 1)}')
    a(f'v_mov_b32 {vr(ACC + 1)}, {sT}')
    a(f'v_mov_b32 {vr(ACC + 3)}, {sT}')
    save_exec_mask(0x00ff00ff00ff00ff)
    bstore(ACC, 4, 21, WS, soff=sA, mods='sc1')
    restore_exec()
    stamp('r_pub')
    a(f's_branch {ldone}')
    a.label(lskip)
    precompute()
    a.label(ldone)


def role_xt():
    a('v_lshlrev_b32 v21, 10, v1')
    a(f's_lshl_b32 {sA}, {sJ}, 16')
    a(f's_lshl_b32 {sB}, {sX}, 7')
    a(f's_add_u32 {sA}, {sA}, {sB}')
    for i in range(8):
        bload(24 + 4 * i, 4, 21, U, imm=16 * i, soff=sA)
    precompute()
    for k in range(4):
        a(f'v_mov_b32 {vr(57 + 2 * k)}, {sT}')
    a('v_lshlrev_b32 v21, 3, v1')
    a(f's_lshl_b32 {sA}, {sX}, 19')
    a(f's_lshl_b32 {sB}, {sJ}, 9')
    a(f's_add_u32 {sA}, {sA}, {sB}')
    a(f's_add_u32 {sA}, {sA}, {WS_XT}')
    for p in range(32):
        if p % 4 == 0:
            a(f's_waitcnt vmcnt({7 - p // 4 + p})')
            if p == 0:
                stamp('r_loaded')
        t = 56 + 2 * (p % 4)
        a(f'v_mov_b32 {vr(t)}, {vr(24 + p)}')
        bstore(t, 2, 21, WS, soff=sA, mods='sc1')
        if p < 31:
            a(f's_add_u32 {sA}, {sA}, 16384')
    stamp('r_pub')


def phase_a():
    lk = 'L_roleK'; l56 = 'L_role56'; l7 = 'L_role7'; lj = 'L_A_join'
    stamp('entry')
    a(f's_cmp_lt_u32 {sWV}, 4')
    a(f's_cbranch_scc1 {lk}')
    a('s_setprio 2')
    a(f's_cmp_eq_u32 {sWV}, 7')
    a(f's_cbranch_scc1 {l7}')
    a(f's_cmp_ge_u32 {sWV}, 5')
    a(f's_cbranch_scc1 {l56}')
    role_stats()
    a(f's_branch {lj}')
    a.label(l56)
    role_mod()
    a(f's_branch {lj}')
    a.label(l7)
    role_xt()
    a(f's_branch {lj}')
    a.label(lk)
    role_k()
    a.label(lj)
    a('s_setprio 0')
    for k in range(4):
        a(f'v_mov_b32 {vr(24 + k)}, 0')
    a('v_lshrrev_b32 v21, 5, v0')
    a(f'v_mul_u32_u24 v21, {H_CH}, v21')
    a('v_and_b32 v22, 31, v0')
    a('v_lshl_add_u32 v21, v22, 4, v21')
    a(f'v_add_u32 v21, {L_H}, v21')
    a('v_subrev_u32 v22, 64, v0')
    a('v_lshrrev_b32 v23, 1, v22')
    a(f'v_mul_u32_u24 v23, {CP_R}, v23')
    a('v_and_b32 v22, 1, v0')
    a('v_lshl_add_u32 v23, v22, 4, v23')
    a(f'v_add_u32 v23, {L_COPY}, v23')
    a('v_cmp_gt_u32 vcc, 64, v0')
    a('v_cndmask_b32 v21, v23, v21, vcc')
    a(f'v_mul_u32_u24 v22, {KT_CH}, v22')
    a(f'v_add_u32 v22, {L_KT + 2 * KT_ZERO}, v22')
    lz = a.newlabel('L_z')
    a(f's_cmp_ge_u32 {sWV}, 2')
    a(f's_cbranch_scc1 {lz}')
    a('v_cmp_gt_u32 vcc, 80, v0')
    a(f's_and_saveexec_b64 s[{sX0}:{sX0 + 1}], vcc')
    a('ds_write_b128 v21, v[24:27]')
    a('ds_write_b16 v22, v24')
    restore_exec()
    a.label(lz)
    a('s_waitcnt lgkmcnt(0)')
    stamp('role_done')
    a('s_barrier')
    stamp('B1')
    lsk = a.newlabel('L_kmf')
    a(f's_cmp_ge_u32 {sWV}, 6')
    a(f's_cbranch_scc1 {lsk}')
    for ks in range(8):
        a(f'ds_read_b128 {vr(24 + 8 * ks, 4)}, {vr(KMA)} offset:{64 * ks}')
        a(f'ds_read_b128 {vr(28 + 8 * ks, 4)}, {vr(KMB)} offset:{64 * ks}')
    for ks in range(8):
        a(f's_waitcnt lgkmcnt({14 - 2 * ks})')
        acc = 88 + 4 * (ks & 1)
        mfma(acc, 24 + 8 * ks, 28 + 8 * ks, None if ks < 2 else acc)
    for k in range(4):
        a(f'v_add_f32 {vr(88 + k)}, {vr(88 + k)}, {vr(92 + k)}')
    a('v_cvt_pk_bf16_f32 v96, v88, v89')
    a('v_cvt_pk_bf16_f32 v97, v90, v91')
    a(f'ds_write_b16 {vr(KMD)}, v96')
    a(f'ds_write_b16_d16_hi {vr(KMD + 1)}, v96')
    a(f'ds_write_b16 {vr(KMD + 2)}, v97')
    a(f'ds_write_b16_d16_hi {vr(KMD + 3)}, v97')
    a('s_waitcnt lgkmcnt(0)')
    a.label(lsk)
    a('s_barrier')
    stamp('B2')
    for d in range(1, 12):
        a(f'ds_read_u16 {vr(24 + d)}, {vr(EXA + d)}')
    a(f's_lshr_b32 {sA}, {sWV}, 2')
    a(f's_mul_i32 {sA}, {sA}, {CP_CH}')
    a(f's_add_u32 {sA}, {sA}, {L_COPY + 32}')
    a('v_and_b32 v22, 255, v0')
    a(f'v_lshl_add_u32 v21, v22, 4, {sA}')
    a('s_waitcnt lgkmcnt(0)')
    for r in range(4):
        d = 36 + 4 * r
        for p in range(4):
            a(f'v_lshl_or_b32 {vr(d + p)}, {vr(24 + 5 + 2 * p - r)}, 16, {vr(24 + 4 + 2 * p - r)}')
        a(f'ds_write_b128 v21, {vr(d, 4)} offset:{r * CP_R}')
    if os.environ.get('SWZEARLY'):
        lsw = a.newlabel('L_swzfin')
        a(f's_cmp_ge_u32 {sWV}, 4')
        a(f's_cbranch_scc1 {lsw}')
        a('s_waitcnt vmcnt(0)')
        swz_finish()
        a.label(lsw)
    stamp('expanded')


def spin_guard(label_retry):
    a(f's_add_u32 {sSPIN}, {sSPIN}, 1')
    a(f's_cmp_lt_u32 {sSPIN}, {SPIN_MAX}')
    a(f's_cbranch_scc1 {label_retry}')


def tags_check(tags, lo, hi):
    a(f'v_min3_u32 {vr(lo)}, {vr(tags[0])}, {vr(tags[1])}, {vr(tags[2])}')
    a(f'v_max3_u32 {vr(hi)}, {vr(tags[0])}, {vr(tags[1])}, {vr(tags[2])}')
    k = 3
    while k < len(tags):
        t2 = tags[k + 1] if k + 1 < len(tags) else tags[k]
        a(f'v_min3_u32 {vr(lo)}, {vr(lo)}, {vr(tags[k])}, {vr(t2)}')
        a(f'v_max3_u32 {vr(hi)}, {vr(hi)}, {vr(tags[k])}, {vr(t2)}')
        k += 2
    a(f'v_cmp_ne_u32 vcc, {sT}, {vr(lo)}')
    a(f'v_cmp_ne_u32 s[{sX0}:{sX0 + 1}], {sT}, {vr(hi)}')
    a('s_nop 0')
    a(f's_or_b64 vcc, vcc, s[{sX0}:{sX0 + 1}]')


def phase_b():
    a(f's_lshl_b32 {sA}, {sWV}, 12')
    a(f'v_add_u32 v21, {sA}, {vr(vL16)}')
    a('v_lshrrev_b32 v14, 3, v1')
    a('v_cmp_gt_u32 vcc, 6, v14')
    a('v_cndmask_b32 v14, 0, v14, vcc') if False else None
    a('v_mov_b32 v15, 0')
    a('v_cndmask_b32 v14, v15, v14, vcc')
    a('v_lshrrev_b32 v15, 1, v14')
    a('v_lshlrev_b32 v15, 9, v15')
    a('v_and_b32 v14, 1, v14')
    a('v_add_u32 v15, v15, v14')
    a(f'v_add_u32 v15, {sCH0}, v15')
    a('v_and_b32 v14, 7, v1')
    a('v_mul_u32_u24 v14, 3072, v14')
    a('v_add_u32 v15, v15, v14')
    a('v_lshlrev_b32 v22, 3, v15')
    a(f's_mov_b32 {sB}, {WS_STATS}')
    a('v_lshrrev_b32 v20, 1, v21')
    a(f's_lshl_b32 {sD}, {sX}, 5'); a(f's_add_u32 {sD}, {sD}, {sJ}'); a(f's_lshl_b32 {sD}, {sD}, 14')
    a(f's_add_u32 {sD}, {sD}, {WS_XT}')
    if not NOSCOUT:
        lsk = a.newlabel('L_scoutskip'); lsp = a.newlabel('L_scout'); lso = a.newlabel('L_scoutok')
        a(f's_cmp_lg_u32 {sWV}, 0')
        a(f's_cbranch_scc1 {lsk}')
        a('v_lshlrev_b32 v24, 7, v1')
        a('v_and_b32 v25, 31, v1')
        a('v_lshlrev_b32 v25, 9, v25')
        a(f's_mov_b32 {sSPIN}, 0')
        a.label(lsp)
        for i in range(4):
            a(f's_mov_b32 {sC}, {WS_STATS + 8192 * i}')
            bload(28 + i, 1, 24, WS, imm=4, soff=sC, mods='sc1')
        bload(32, 1, 25, WS, imm=4, soff=sD, mods='sc1')
        a(f's_mov_b32 {sC}, {WS_MODG}')
        bload(33, 1, 22, WS, imm=4, soff=sC, mods='sc1')
        a('s_waitcnt vmcnt(0)')
        tags_check([28, 29, 30, 31, 32, 33], 34, 35)
        a(f's_cbranch_vccz {lso}')
        spin_guard(lsp)
        a.label(lso)
        a.label(lsk)
        a('s_barrier')
        stamp('scout')
    a(f's_mov_b32 {sSPIN}, 0')
    lp = 'L_S1_poll'; lok = 'L_S1_ok'
    a.label(lp)
    for i in range(4):
        bload(44 + 4 * i, 4, 21, WS, imm=1024 * i, soff=sB, mods='sc1')
        bload(88 + 2 * i, 2, 20, WS, imm=512 * i, soff=sD, mods='sc1')
    a(f's_mov_b32 {sC}, {WS_MODG}')
    bload(60, 2, 22, WS, soff=sC, mods='sc1')
    a('s_waitcnt vmcnt(0)')
    tags = [45, 47, 49, 51, 53, 55, 57, 59, 61, 89, 91, 93, 95]
    if 'noxt' in XP: tags = [45, 47, 49, 51, 53, 55, 57, 59, 61]
    if 'nomod' in XP: tags = [45, 47, 49, 51, 53, 55, 57, 59, 89, 91, 93, 95]
    if 'nostat' in XP: tags = [61, 89, 91, 93, 95]
    tags_check(tags, 84, 85)
    a(f's_cbranch_vccz {lok}')
    spin_guard(lp)
    a.label(lok)
    stamp('S1ok')
    if os.environ.get('SWZLATE'):
        lsw = a.newlabel('L_swzdma')
        a(f's_cmp_ge_u32 {sWV}, 4')
        a(f's_cbranch_scc1 {lsw}')
        a('v_mov_b32 v14, v102')
        swz_dma()
        a.label(lsw)
    a('v_lshrrev_b32 v23, 2, v21')
    a(f'v_add_u32 v23, {L_XC}, v23')
    for i in range(4):
        a(f'ds_write_b32 v23, {vr(88 + 2 * i)} offset:{256 * i}')
    a('v_add_f32_dpp v60, v60, v60 quad_perm:[1,0,3,2] row_mask:0xf bank_mask:0xf')
    a('v_add_f32_dpp v60, v60, v60 quad_perm:[2,3,0,1] row_mask:0xf bank_mask:0xf')
    a('v_add_f32_dpp v60, v60, v60 row_half_mirror row_mask:0xf bank_mask:0xf')
    for i, dst in enumerate((60, 62, 64, 66, 68, 70)):
        a(f'v_readlane_b32 s{64 + i}, v60, {8 * i}')
    for i, dst in enumerate((60, 62, 64, 66, 68, 70)):
        a(f'v_mov_b32 {vr(dst)}, s{64 + i}')
    a('v_add_f32 v64, 1.0, v64'); a('v_add_f32 v66, 1.0, v66')
    a(f's_lshr_b32 {sHI}, {sWV}, 2'); a(f's_and_b32 {sLO}, {sWV}, 3')
    a(f's_lshl_b32 {sA}, {sCH0}, 1')
    a(f'v_mov_b32 v77, {sA}')
    bload(76, 1, 77, DSK)
    for i in range(4):
        r, mr = 44 + 4 * i, 46 + 4 * i
        a(f'v_lshlrev_b32 v80, 16, {vr(88 + 2 * i)}')
        a(f'v_and_b32 v81, 0xffff0000, {vr(88 + 2 * i)}')
        a(f'v_fma_f32 v80, v80, {vr(r)}, -{vr(mr)}')
        a(f'v_fma_f32 v81, v81, {vr(r)}, -{vr(mr)}')
        a('v_fma_f32 v80, v80, v64, v60')
        a('v_fma_f32 v81, v81, v66, v62')
        a(f'v_cvt_pk_bf16_f32 {vr(96 + i)}, v80, v81')
    a('v_lshrrev_b32 v23, 3, v21')
    a(f'v_add_u32 v23, {L_H + 512}, v23')
    for i in range(4):
        a(f'ds_write_b16 v23, {vr(96 + i)} offset:{128 * i}')
        a(f'ds_write_b16_d16_hi v23, {vr(96 + i)} offset:{H_CH + 128 * i}')
    a(f's_mul_i32 {sA}, {sHI}, {H_CH}')
    a(f's_lshl_b32 {sB}, {sLO}, 6')
    a(f's_sub_u32 {sA}, {sA}, {sB}')
    a(f's_add_u32 {sA}, {sA}, {L_H + 480 - 256}')
    a('v_lshlrev_b32 v21, 5, v2')
    a('v_lshl_add_u32 v21, v3, 4, v21')
    a(f'v_add_u32 v21, {sA}, v21')
    a(f's_mul_i32 {sA}, {sHI}, {CP_CH}')
    a(f's_add_u32 {sA}, {sA}, {sB}')
    a(f's_add_u32 {sA}, {sA}, {L_COPY + 64 - 8}')
    a('v_lshrrev_b32 v22, 2, v2')
    a(f'v_mul_u32_u24 v22, {CP_R}, v22')
    a('v_and_b32 v23, 3, v2')
    a('v_lshl_add_u32 v22, v23, 3, v22')
    a('v_lshlrev_b32 v23, 4, v3')
    a('v_sub_u32 v22, v22, v23')
    a(f'v_add_u32 v22, {sA}, v22')
    a(f's_lshl_b32 {sA}, {sWV}, 13')
    a(f'v_add_u32 v23, {sA}, {vr(vL16)}')
    mod_final_issue()
    if not os.environ.get('SWZEARLY') and not os.environ.get('SWZLATE'):
        lsw = a.newlabel('L_swzfin')
        a(f's_cmp_ge_u32 {sWV}, 4')
        a(f's_cbranch_scc1 {lsw}')
        swz_finish()
        a.label(lsw)
    a('s_waitcnt lgkmcnt(0)')
    a('s_barrier')
    stamp('B3')
    conv_touches()
    BF = 96; AF = 160; ACC = 224

    def ldA(i):
        r = AF + 4 * i
        a(f'ds_read_b64_tr_b16 {vr(r, 2)}, v22 offset:{256 * i + 8}')
        a(f'ds_read_b64_tr_b16 {vr(r + 2, 2)}, v22 offset:{256 * i}')

    def ldB(u):
        a(f'ds_read_b128 {vr(BF + 4 * u, 4)}, v21 offset:{256 * u}')
    seq = ['A0', 'B1', 'B3', 'B5', 'B7', 'B9', 'B11', 'B13', 'B15', 'A1', 'B0', 'B2', 'B4', 'B6', 'B8', 'B10', 'B12', 'B14'] + \
          [f'A{i}' for i in range(2, 16)]
    pos = {}
    n = 0
    for s_ in seq:
        n += 2 if s_[0] == 'A' else 1
        pos[s_] = n
    total = n
    issued = 0
    it = iter(seq)

    def issue_until(cnt):
        nonlocal issued
        while issued < min(cnt, total):
            s_ = next(it)
            if s_[0] == 'A':
                ldA(int(s_[1:])); issued += 2
            else:
                ldB(int(s_[1:])); issued += 1
    writes = 0
    issue_until(12)
    order = []
    stream = []
    q = []
    for s_ in seq:
        q += [s_] * (2 if s_[0] == 'A' else 1)
    ops = list(q[:issued])
    for i in range(16):
        nmin = i // 2 if i >= 1 else 0
        for nn in range(nmin, 8):
            u = 2 * nn - i + 1
            needs = [f'A{i}', f'B{u}']
            last_needed = max(idx for idx, o in enumerate(q) if o in needs)
            tgt = max(last_needed + 1, min(total, len([o for o in ops if o != 'W']) + 2))
            while len([o for o in ops if o != 'W']) < tgt:
                before = issued
                issue_until(issued + 1)
                ops += q[before:issued]
            lastidx = max(idx for idx, o in enumerate(ops) if o in needs)
            pend = len(ops) - 1 - lastidx
            key = ('wait', pend)
            if not hasattr(phase_b, 'done') or True:
                done_upto = getattr(phase_b, 'done_upto', -1)
                if lastidx > done_upto:
                    a(f's_waitcnt lgkmcnt({min(pend, 15)})')
                    phase_b.done_upto = lastidx if pend <= 15 else len(ops) - 1 - 15
            mfma(ACC + 4 * nn, AF + 4 * i, BF + 4 * u, None if i == 0 else ACC + 4 * nn)
        if os.environ.get('SWZLATE') and i == int(os.environ['SWZLATE']):
            lsw = a.newlabel('L_swzfin')
            a(f's_cmp_ge_u32 {sWV}, 4')
            a(f's_cbranch_scc1 {lsw}')
            a('s_waitcnt vmcnt(0)')
            swz_finish()
            a.label(lsw)
        if i >= 3 and i % 2 == 1:
            nn = (i - 1) // 2 - 1
            a(f'ds_write_b128 v23, {vr(ACC + 4 * nn, 4)} offset:{1024 * nn}')
            ops.append('W')
    a(f'ds_write_b128 v23, {vr(ACC + 28, 4)} offset:{1024 * 7}')
    mod_final_finish()
    a('s_waitcnt lgkmcnt(0)')
    a('s_barrier')
    stamp('B4')

    a(f's_lshl_b32 {sA}, {sWV}, 10')
    a(f'v_add_u32 v23, {sA}, {vr(vL16)}')
    for c in range(2):
        for qq in range(4):
            a(f'ds_read_b128 {vr(96 + 16 * c + 4 * qq, 4)}, v23 offset:{32768 * c + 8192 * qq}')
    a('v_lshlrev_b32 v21, 4, v2')
    a('v_lshl_add_u32 v21, v3, 2, v21')
    a(f's_lshl_b32 {sA}, {sWV}, 8')
    a(f'v_add_u32 v21, {sA}, v21')
    a('v_lshlrev_b32 v22, 2, v21')
    a('v_lshlrev_b32 v24, 1, v21')
    a(f'ds_read_b128 v[128:131], v22 offset:{L_XC}') if L_XC < 65536 else None
    if L_XC >= 65536:
        a(f'v_add_u32 v22, {L_XC}, v22')
        a('ds_read_b128 v[128:131], v22')
    a(f'v_add_u32 v24, {L_H + 512}, v24')
    a('ds_read_b64 v[136:137], v24')
    a(f'ds_read_b64 v[138:139], v24 offset:{H_CH}')
    a('v_lshrrev_b32 v25, 1, v2')
    a('v_lshlrev_b32 v25, 15, v25')
    a('v_and_b32 v26, 1, v2')
    a('v_lshl_add_u32 v25, v26, 5, v25')
    a('v_and_b32 v26, 1, v3')
    a('v_lshl_add_u32 v25, v26, 6, v25')
    a('v_lshrrev_b32 v26, 1, v3')
    a('v_lshl_add_u32 v25, v26, 4, v25')
    a(f's_lshl_b32 {sA}, {sWV}, 18')
    a(f's_lshl_b32 {sB}, {sCH0}, 6')
    a(f's_add_u32 {sA}, {sA}, {sB}')
    a(f's_add_u32 {sE}, {sA}, {WS_X2B}')
    a('s_waitcnt vmcnt(0)')
    a('v_lshlrev_b32 v77, 16, v76')
    a('v_and_b32 v76, 0xffff0000, v76')
    a('s_waitcnt lgkmcnt(0)')
    for c in range(2):
        y = 96 + 16 * c
        for k in range(0, 4, 2):
            a(f'v_pk_add_f32 {vr(y + k, 2)}, {vr(y + k, 2)}, {vr(y + 4 + k, 2)}')
            a(f'v_pk_add_f32 {vr(y + 8 + k, 2)}, {vr(y + 8 + k, 2)}, {vr(y + 12 + k, 2)}')
            a(f'v_pk_add_f32 {vr(y + k, 2)}, {vr(y + k, 2)}, {vr(y + 8 + k, 2)}')
        dsk = 77 if c == 0 else 76
        ga = 68 if c == 0 else 70
        for k in range(4):
            hreg = 136 + 2 * c + (k >> 1)
            if k & 1:
                a(f'v_and_b32 v26, 0xffff0000, {vr(hreg)}')
            else:
                a(f'v_lshlrev_b32 v26, 16, {vr(hreg)}')
            a(f'v_fma_f32 {vr(y + k)}, v26, {vr(dsk)}, {vr(y + k)}')
            if c == 0:
                a(f'v_lshlrev_b32 v27, 16, {vr(128 + k)}')
            else:
                a(f'v_and_b32 v27, 0xffff0000, {vr(128 + k)}')
            a(f'v_fma_f32 {vr(y + k)}, {vr(ga)}, {vr(y + k)}, v27')
        a(f'v_cvt_pk_bf16_f32 {vr(28 + 2 * c)}, {vr(y)}, {vr(y + 1)}')
        a(f'v_cvt_pk_bf16_f32 {vr(29 + 2 * c)}, {vr(y + 2)}, {vr(y + 3)}')
    a('v_permlane16_swap_b32 v28, v30')
    a('v_permlane16_swap_b32 v29, v31')
    bstore(28, 4, 25, WS, soff=sE, mods='sc1')
    a('s_waitcnt vmcnt(0)')
    stamp('x2stored')
    a('s_barrier')
    set_flag(WS_F2, 's2')


def mod_final_issue():
    ls = a.newlabel('L_modf')
    a(f's_cmp_lg_u32 {sWV}, 7')
    a(f's_cbranch_scc1 {ls}')
    a('v_lshrrev_b32 v14, 3, v1')
    a(f's_mul_i32 {sA}, s2, 12')
    a(f'v_add_u32 v14, {sA}, v14')
    a('v_and_b32 v15, 7, v1')
    a('v_mul_u32_u24 v15, 3072, v15')
    a('v_add_u32 v15, v15, v14')
    a('v_lshlrev_b32 v24, 3, v15')
    a('v_lshrrev_b32 v14, 3, v1')
    a('v_and_b32 v15, 3, v14')
    a('v_sub_u32 v14, v15, v14')
    a('v_add_u32 v14, 8, v14')
    a('v_lshl_add_u32 v25, v14, 3, v24')
    a(f's_mov_b32 {sC}, {WS_MODG}')
    bload(26, 2, 24, WS, soff=sC, mods='sc1')
    bload(28, 2, 25, WS, soff=sC, mods='sc1')
    a.label(ls)


def mod_final_finish():
    ls = a.newlabel('L_modf'); lp = a.newlabel('L_modp'); lok = a.newlabel('L_modok')
    a(f's_cmp_lg_u32 {sWV}, 7')
    a(f's_cbranch_scc1 {ls}')
    a('s_waitcnt vmcnt(0)')
    tags_check([27, 29, 29], 30, 31)
    a(f's_cbranch_vccz {lok}')
    a(f's_mov_b32 {sSPIN}, 0')
    a.label(lp)
    a(f's_mov_b32 {sC}, {WS_MODG}')
    bload(26, 2, 24, WS, soff=sC, mods='sc1')
    bload(28, 2, 25, WS, soff=sC, mods='sc1')
    a('s_waitcnt vmcnt(0)')
    tags_check([27, 29, 29], 30, 31)
    a(f's_cbranch_vccz {lok}')
    spin_guard(lp)
    a.label(lok)
    for r in (26, 28):
        a(f'v_add_f32_dpp {vr(r)}, {vr(r)}, {vr(r)} quad_perm:[1,0,3,2] row_mask:0xf bank_mask:0xf')
        a(f'v_add_f32_dpp {vr(r)}, {vr(r)}, {vr(r)} quad_perm:[2,3,0,1] row_mask:0xf bank_mask:0xf')
        a(f'v_add_f32_dpp {vr(r)}, {vr(r)}, {vr(r)} row_half_mirror row_mask:0xf bank_mask:0xf')
    a('v_lshrrev_b32 v14, 3, v1')
    a('v_lshlrev_b32 v14, 2, v14')
    a(f's_mul_i32 {sA}, s2, 48')
    a(f's_add_u32 {sA}, {sA}, {WS_MODF}')
    save_exec_mask(0x0101010101010101)
    bstore(26, 1, 14, WS, soff=sA, mods='sc1')
    a('s_mov_b32 exec_hi, 0')
    bstore(28, 1, 14, WS, imm=32, soff=sA, mods='sc1')
    restore_exec()
    a.label(ls)


def wfrags(dst, base, n, nt_sgpr=None, stride=16, first=0):
    if nt_sgpr is None:
        a(f's_lshl_b32 {sA}, {sCQ}, 3')
        a(f's_add_u32 {sA}, {sA}, {sWV}')
    else:
        a(f's_mov_b32 {sA}, {nt_sgpr}')
    a(f's_mul_i32 {sA}, {sA}, {stride * 1024}')
    a(f's_add_u32 {sA}, {sA}, {base + first * 1024}')
    for k in range(n):
        if k and k % 4 == 0:
            a(f's_add_u32 {sA}, {sA}, 4096')
        bload(dst + 4 * k, 4, vL16, WS, imm=(k % 4) * 1024, soff=sA, mods='sc1')


def wfrag_base(sreg, base, nt_sgpr=None, stride=16, first=0):
    if nt_sgpr is None:
        a(f's_lshl_b32 {sreg}, {sCQ}, 3')
        a(f's_add_u32 {sreg}, {sreg}, {sWV}')
    else:
        a(f's_mov_b32 {sreg}, {nt_sgpr}')
    a(f's_mul_i32 {sreg}, {sreg}, {stride * 1024}')
    a(f's_add_u32 {sreg}, {sreg}, {base + first * 1024}')


def wfrag_one(dst, sreg, k):
    if k and k % 4 == 0:
        a(f's_add_u32 {sreg}, {sreg}, 4096')
    bload(dst + 4 * k, 4, vL16, WS, imm=(k % 4) * 1024, soff=sreg, mods='sc1')


def not_poller(fn):
    l = a.newlabel('L_np')
    a(f's_cmp_eq_u32 {sWV}, 7')
    a(f's_cbranch_scc1 {l}')
    fn()
    a.label(l)


def only_poller(fn):
    l = a.newlabel('L_op')
    a(f's_cmp_lg_u32 {sWV}, 7')
    a(f's_cbranch_scc1 {l}')
    fn()
    a.label(l)


def pretouch(which, dst=31):
    if NOFAST or os.environ.get('NOTOUCH'):
        return
    a('v_lshrrev_b32 v14, 2, v1')
    a('v_and_b32 v15, 3, v1')
    a('v_lshlrev_b32 v15, 7, v15')
    if which in ('h1', 'x1'):
        if which == 'h1':
            a('v_mul_u32_u24 v14, 768, v14')
            a('v_add_u32 v14, v14, v15')
            a(f's_mul_i32 {sA}, {sT32}, 49152'); a(f's_mul_i32 {sB}, {sCQ}, {16 * 768}'); a(f's_add_u32 {sA}, {sA}, {sB}')
            a(f's_add_u32 {sA}, {sA}, {WS_H1 + 128}')
        else:
            a('v_lshl_add_u32 v14, v14, 9, v15')
            a(f's_lshl_b32 {sA}, {sT32}, 15'); a(f's_lshl_b32 {sC}, {sCQ}, 13'); a(f's_add_u32 {sA}, {sA}, {sC}')
            a(f's_add_u32 {sA}, {sA}, {WS_X1}')
        bload(dst, 1, 14, WS, soff=sA)
        return
    else:
        a('v_lshl_add_u32 v14, v14, 9, v15')
        a(f's_sub_u32 {sA}, {sNT3}, {sWV}')
        a(f's_lshl_b32 {sA}, {sA}, 10')
        a(f's_lshl_b32 {sB}, {sRB}, 1'); a(f's_lshr_b32 {sC}, {sWV}, 1'); a(f's_add_u32 {sB}, {sB}, {sC}')
        a(f's_mul_i32 {sB}, {sB}, {86 * 1024}'); a(f's_add_u32 {sA}, {sA}, {sB}')
        a(f's_and_b32 {sB}, {sWV}, 1'); a(f's_lshl_b32 {sC}, {sB}, 13'); a(f's_add_u32 {sA}, {sA}, {sC}')
        a(f's_add_u32 {sA}, {sA}, {WS_H3}')
        a(f's_movk_i32 {sC}, {63 * 128}')
        a(f's_cmp_eq_u32 {sB}, 1')
        a(f's_cselect_b32 {sB}, {23 * 128}, {sC}')
        a(f'v_min_u32 v14, {sB}, v14')
        a(f's_cmp_lt_u32 {sWV}, 4')
    a('s_cselect_b64 exec, -1, 0')
    bload(dst, 1, 14, WS, soff=sA)
    a('s_mov_b64 exec, -1')


def conv_touches():
    if os.environ.get('NOCT'):
        return
    a('v_lshlrev_b32 v14, 7, v1')
    a(f's_sub_u32 {sC}, {sWV}, 5')
    a(f's_lshl_b32 {sA}, {sJ}, 14'); a(f's_lshl_b32 {sB}, {sC}, 13'); a(f's_add_u32 {sA}, {sA}, {sB}')
    a(f's_cmp_lt_u32 {sC}, 2')
    a('s_cselect_b64 exec, -1, 0')
    bload(15, 1, 14, W1, soff=sA)
    a('s_mov_b64 exec, -1')


def wtouch(kind, dst):
    if os.environ.get('NOWT'):
        return
    a('v_lshlrev_b32 v14, 7, v1')
    a(f's_mul_i32 {sA}, {sJ}, {43 * 1024}')
    a(f's_sub_u32 {sB}, {sWV}, 2'); a(f's_lshl_b32 {sB}, {sB}, 13'); a(f's_add_u32 {sA}, {sA}, {sB}')
    if kind == 'w23':
        a(f's_add_u32 {sA}, {sA}, {WS_W3S}')
        a(f's_lshl_b32 {sB}, {sJ}, 14'); a(f's_lshl_b32 {sC}, {sWV}, 13'); a(f's_add_u32 {sB}, {sB}, {sC}')
        a(f's_add_u32 {sB}, {sB}, {WS_W2S}')
        a(f's_cmp_lt_u32 {sWV}, 2')
        a(f's_cselect_b32 {sA}, {sB}, {sA}')
        bload(dst, 1, 14, WS, soff=sA)
    else:
        a(f's_add_u32 {sA}, {sA}, {WS_W4S}')
        a(f's_cmp_ge_u32 {sWV}, 2')
        a('s_cselect_b64 exec, -1, 0')
        bload(dst, 1, 14, WS, soff=sA)
        a('s_mov_b64 exec, -1')


def set_flag(off, idx_sgpr, cluster=False):
    a(f's_lshl_b32 {sA}, {idx_sgpr}, 6')
    a(f's_add_u32 {sA}, {sA}, {off}')
    a(f'v_mov_b32 v14, {sT}')
    a('v_mov_b32 v15, 0')
    a(f's_cmp_eq_u32 {sWV}, 0')
    if cluster and not NOFAST:
        a(f's_cselect_b64 s[{sX0}:{sX0 + 1}], 1, 0')
        a(f's_and_b64 exec, s[{sX0}:{sX0 + 1}], s[{mFA}:{mFA + 1}]')
        bstore(14, 1, 15, WS, soff=sA)
        a(f's_and_b64 exec, s[{sX0}:{sX0 + 1}], s[{mSL}:{mSL + 1}]')
        bstore(14, 1, 15, WS, soff=sA, mods='sc1')
    else:
        a('s_cselect_b64 exec, 1, 0')
        bstore(14, 1, 15, WS, soff=sA, mods='sc1')
    a('s_mov_b64 exec, -1')


PV = 116


def poll(off, kind):
    lf = a.newlabel('L_pollskip'); lp = a.newlabel('L_poll'); lok = a.newlabel('L_pollok')
    a(f's_cmp_lg_u32 {sWV}, 7')
    a(f's_cbranch_scc1 {lf}')
    if kind == 'all':
        a(f'v_lshlrev_b32 {vr(PV)}, 6, v1')
    elif kind == 'own':
        a(f'v_and_b32 {vr(PV)}, 7, v1')
        a(f's_lshl_b32 {sA}, {sRB}, 3')
        a(f'v_add_u32 {vr(PV)}, {sA}, {vr(PV)}')
        a(f'v_lshlrev_b32 {vr(PV)}, 6, {vr(PV)}')
    else:
        a(f'v_min_u32 {vr(PV)}, 11, v1')
        a(f's_lshl_b32 {sA}, {sT32}, 2')
        a(f's_sub_u32 {sB}, {sA}, 4')
        a(f'v_add_u32 {vr(PV)}, {sB}, {vr(PV)}')
        a(f'v_cmp_gt_u32 vcc, 256, {vr(PV)}')
        a(f'v_mov_b32 {vr(PV + 1)}, {sA}')
        a(f'v_cndmask_b32 {vr(PV)}, {vr(PV + 1)}, {vr(PV)}, vcc')
        a(f'v_lshlrev_b32 {vr(PV)}, 6, {vr(PV)}')
    a(f's_mov_b32 {sSPIN}, 0')
    a.label(lp)
    if kind == 'all':
        for i in range(4):
            a(f's_mov_b32 {sB}, {off + 4096 * i}')
            bload(PV + 2 + i, 1, PV, WS, soff=sB, mods='sc1')
        a('s_waitcnt vmcnt(0)')
        tags_check([PV + 2, PV + 3, PV + 4, PV + 5], PV + 6, PV + 7)
    else:
        a(f's_mov_b32 {sB}, {off}')
        bload(PV + 2, 1, PV, WS, soff=sB, mods='sc1')
        a('s_waitcnt vmcnt(0)')
        a(f'v_cmp_ne_u32 vcc, {sT}, {vr(PV + 2)}')
        a('s_nop 0')
    a(f's_cbranch_vccz {lok}')
    spin_guard(lp)
    a.label(lok)
    a.label(lf)
    a('s_barrier')


def lane_masks():
    a('v_and_b32 v15, 3, v2')
    a(f'v_cmp_eq_u32 s[{mK1}:{mK1 + 1}], 1, v15')
    a(f'v_cmp_eq_u32 s[{mK2}:{mK2 + 1}], 2, v15')
    a(f'v_cmp_eq_u32 s[{mK3}:{mK3 + 1}], 3, v15')
    a('v_lshrrev_b32 v14, 2, v2')
    a(f'v_cmp_eq_u32 s[{mDG}:{mDG + 1}], v14, v3')


def stats_publish(addr, S, Q, t0):
    a(f'v_cndmask_b32 {vr(t0 + 1)}, {vr(Q)}, {vr(Q + 1)}, s[{mK1}:{mK1 + 1}]')
    a(f'v_mov_b32 {vr(t0)}, {vr(S)}')
    a(f'v_cndmask_b32 {vr(t0 + 1)}, {vr(t0 + 1)}, {vr(Q + 2)}, s[{mK2}:{mK2 + 1}]')
    a(f'v_cndmask_b32 {vr(t0 + 1)}, {vr(t0 + 1)}, {vr(Q + 3)}, s[{mK3}:{mK3 + 1}]')
    save_exec_mask(f's[{mDG}:{mDG + 1}]')
    a(f'ds_write_b64 {vr(addr)}, {vr(t0, 2)}')
    restore_exec()


def stats_finish(S, Q, m, r):
    a(f'v_mul_f32 {vr(m)}, {fconst(1.0 / 512)}, {vr(S)}')
    a(f'v_mul_f32 {vr(r)}, {fconst(1.0 / 512)}, {vr(Q)}')
    a(f'v_fma_f32 {vr(r)}, -{vr(m)}, {vr(m)}, {vr(r)}')
    a(f'v_max_f32 {vr(r)}, 0, {vr(r)}')
    a(f'v_add_f32 {vr(r)}, {fconst(1e-5)}, {vr(r)}')
    a(f'v_rsq_f32 {vr(r)}, {vr(r)}')


GC0 = -2.0 * 1.4426950408889634 * 0.7978845608028654
GC1 = GC0 * 0.044715


def gelu_consts(gk):
    for r, c in ((gk, GC0), (gk + 2, GC1), (gk + 4, 1.0)):
        a(f'v_mov_b32 {vr(r)}, {fconst(c)}')


def gelu(regs, tmp, gk):
    n = len(regs)
    for i in range(0, n, 2):
        x = regs[i]
        t = tmp + 2 * ((i // 2) & 1)
        a(f'v_pk_mul_f32 {vr(t, 2)}, {vr(x, 2)}, {vr(x, 2)}')
        a(f'v_pk_fma_f32 {vr(t, 2)}, {vr(t, 2)}, {vr(gk + 2, 2)}, {vr(gk, 2)} op_sel_hi:[1,0,0]')
        a(f'v_pk_mul_f32 {vr(t, 2)}, {vr(t, 2)}, {vr(x, 2)}')
        a(f'v_exp_f32 {vr(t)}, {vr(t)}')
        a(f'v_exp_f32 {vr(t + 1)}, {vr(t + 1)}')
        a(f'v_pk_add_f32 {vr(t, 2)}, {vr(t, 2)}, {vr(gk + 4, 2)} op_sel_hi:[1,0]')
        a(f'v_rcp_f32 {vr(t)}, {vr(t)}')
        a(f'v_rcp_f32 {vr(t + 1)}, {vr(t + 1)}')
        a(f'v_pk_mul_f32 {vr(x, 2)}, {vr(x, 2)}, {vr(t, 2)}')


def ln_apply(acc, cs, m, r, tmp):
    for k in (0, 2):
        a(f'v_pk_fma_f32 {vr(acc + k, 2)}, {vr(cs + k, 2)}, {vr(m, 2)}, {vr(acc + k, 2)} op_sel_hi:[1,0,1] neg_lo:[0,1,0] neg_hi:[0,1,0]')
        a(f'v_pk_mul_f32 {vr(acc + k, 2)}, {vr(acc + k, 2)}, {vr(r, 2)} op_sel_hi:[1,0]')


def pack_swap(dst, t0, t1):
    a(f'v_cvt_pk_bf16_f32 {vr(dst)}, {vr(t0)}, {vr(t0 + 1)}')
    a(f'v_cvt_pk_bf16_f32 {vr(dst + 2)}, {vr(t1)}, {vr(t1 + 1)}')
    a(f'v_cvt_pk_bf16_f32 {vr(dst + 1)}, {vr(t0 + 2)}, {vr(t0 + 3)}')
    a(f'v_cvt_pk_bf16_f32 {vr(dst + 3)}, {vr(t1 + 2)}, {vr(t1 + 3)}')
    a(f'v_permlane16_swap_b32 {vr(dst)}, {vr(dst + 2)}')
    a(f'v_permlane16_swap_b32 {vr(dst + 1)}, {vr(dst + 3)}')


ONES = 16
CS1 = 20


H1A, H1B = 12, 13
mZH = 70


def h1_addresses():
    a('v_lshrrev_b32 v14, 5, v1')
    a('v_mul_u32_u24 v14, 768, v14')
    a('v_and_b32 v15, 31, v1')
    a('v_lshl_add_u32 v14, v15, 4, v14')
    a(f's_mul_i32 {sA}, {sT32}, {64 * 768}')
    a(f's_lshl_b32 {sB}, {sCQ}, 3'); a(f's_add_u32 {sB}, {sB}, {sWV}'); a(f's_mul_i32 {sB}, {sB}, {2 * 768}')
    a(f's_add_u32 {sA}, {sA}, {sB}')
    a(f's_add_u32 {sA}, {sA}, {WS_H1 + 128}')
    a(f'v_add_u32 {vr(H1A)}, {sA}, v14')
    a(f's_cmp_eq_u32 {sT32}, 0')
    a(f's_cselect_b32 {sA}, {(-32) & 0xffffffff}, {(-(49152 - 512)) & 0xffffffff}') if False else None
    a(f's_mov_b32 {sA}, {hex((-(49152 - 512)) & 0xffffffff)}')
    a(f's_cmp_eq_u32 {sT32}, 0')
    a(f's_cselect_b32 {sA}, -32, {sA}')
    a(f's_cselect_b32 s{mZH}, 3, 0')
    a(f's_mov_b32 {sB}, {49152 - 512}')
    a(f's_cmp_eq_u32 {sT32}, 63')
    a(f's_cselect_b32 {sB}, 32, {sB}')
    a(f's_cselect_b32 s{mZH}, 0xc0000000, s{mZH}')
    a(f's_mov_b32 s{mZH + 1}, s{mZH}')
    a('v_cmp_gt_u32 vcc, 2, v15')
    a(f'v_mov_b32 v14, {sB}')
    a(f'v_mov_b32 v15, {sA}')
    a('v_cndmask_b32 v14, v14, v15, vcc')
    a(f'v_add_u32 {vr(H1B)}, {vr(H1A)}, v14')
    a('v_mov_b32 v31, 0')


def phase3():
    W1R, W2R = 128, 192
    W1o = W1
    lane_masks()
    for k in range(4):
        a(f'v_mov_b32 {vr(ONES + k)}, 0x3f803f80')
    a(f's_and_b32 {sLO}, {sWV}, 1')
    a(f's_lshr_b32 {sHI}, {sWV}, 1')
    a('v_lshrrev_b32 v24, 5, v1')
    a('v_lshlrev_b32 v24, 5, v24')
    a(f'v_xor_b32 v24, v24, {vr(vL16)}')
    a('v_lshrrev_b32 v14, 2, v2')
    a('v_lshl_add_u32 v25, v3, 3, v14')
    a('v_lshlrev_b32 v25, 6, v25')
    a('v_and_b32 v14, 3, v2')
    a('v_lshl_add_u32 v25, v14, 3, v25')
    a('v_and_b32 v14, 1, v3')
    a(f'v_xor_b32 v14, {sLO}, v14')
    a('v_lshl_add_u32 v25, v14, 5, v25')
    a(f's_lshl_b32 {sA}, {sHI}, 13')
    a(f'v_add_u32 v25, {sA}, v25')
    a(f's_lshl_b32 {sA}, {sHI}, 9')
    a(f's_add_u32 {sA}, {sA}, {L_CB}')
    a(f'v_lshl_add_u32 v26, v3, 5, {sA}')
    a(f's_lshl_b32 {sA}, {sWV}, 7')
    a(f's_add_u32 {sA}, {sA}, {L_ST}')
    a(f'v_lshl_add_u32 v27, v2, 3, {sA}')
    a(f's_lshl_b32 {sA}, {sLO}, 7')
    a(f's_add_u32 {sA}, {sA}, {L_ST}')
    a(f'v_lshl_add_u32 v28, v2, 3, {sA}')
    a(f's_lshl_b32 {sA}, {sHI}, 13')
    a(f's_lshl_b32 {sB}, {sLO}, 10')
    a(f's_add_u32 {sA}, {sA}, {sB}')
    a(f's_add_u32 {sA}, {sA}, {L_HF}')
    a(f'v_add_u32 v29, {sA}, {vr(vL16)}')
    a(f'v_add_u32 v30, {L_HF}, {vr(vL16)}')
    L_SLAB = 32768
    a('v_lshrrev_b32 v32, 4, v1')
    a('v_lshlrev_b32 v32, 10, v32')
    a('v_and_b32 v33, 15, v1')
    a('v_lshrrev_b32 v34, 1, v33')
    a('v_lshrrev_b32 v35, 4, v1')
    a('v_xor_b32 v34, v34, v35')
    a('v_and_b32 v33, 1, v33')
    a('v_lshlrev_b32 v33, 4, v33')
    a('v_lshl_add_u32 v36, v34, 5, v33')
    a('v_add_u32 v36, v36, v32')
    a('v_xor_b32 v34, 4, v34')
    a('v_lshl_add_u32 v37, v34, 5, v33')
    a('v_add_u32 v37, v37, v32')
    a(f's_lshr_b32 {sA}, {sWV}, 1'); a(f's_and_b32 {sA}, {sA}, 1'); a(f's_cmp_eq_u32 {sA}, 1')
    a('s_cselect_b64 vcc, -1, 0')
    a('v_cndmask_b32 v36, v36, v37, vcc')
    a(f's_lshl_b32 {sA}, {sWV}, 12'); a(f's_lshl_b32 {sB}, {sCQ}, 8'); a(f's_add_u32 {sA}, {sA}, {sB}')
    a(f's_lshl_b32 {sB}, {sWV}, 10'); a(f's_add_u32 {sB}, {sB}, {L_SLAB}')
    for k in range(16):
        if k:
            a(f's_add_u32 {sA}, {sA}, 32768'); a(f's_add_u32 {sB}, {sB}, 8192')
        dma(4, 36, W1o, sB, soff=sA)
    a('v_lshrrev_b32 v33, 2, v2')
    a('v_and_b32 v34, 1, v3')
    a('v_lshl_or_b32 v34, v34, 2, v33')
    a(f'v_xor_b32 v34, {sWV}, v34')
    a('v_lshl_add_u32 v35, v3, 3, v33')
    a('v_lshlrev_b32 v35, 8, v35')
    a('v_lshl_add_u32 v35, v34, 5, v35')
    a('v_and_b32 v33, 3, v2')
    a('v_lshl_add_u32 v35, v33, 3, v35')
    a(f'v_add_u32 v35, {L_SLAB}, v35')
    a('v_add_u32 v37, 65536, v35')
    a('s_waitcnt vmcnt(0)')
    a('s_barrier')
    for ks in range(16):
        ad, off = (35, 8192 * ks) if ks < 8 else (37, 8192 * (ks - 8))
        a(f'ds_read_b64_tr_b16 {vr(W1R + 4 * ks, 2)}, {vr(ad)} offset:{off}')
        a(f'ds_read_b64_tr_b16 {vr(W1R + 4 * ks + 2, 2)}, {vr(ad)} offset:{off + 1024}')
    a('s_waitcnt lgkmcnt(0)')
    for ks in range(16):
        acc = CS1 if ks % 2 == 0 else 32
        mfma(acc, W1R + 4 * ks, ONES, None if ks < 2 else acc)
    for k in range(4):
        a(f'v_add_f32 {vr(CS1 + k)}, {vr(CS1 + k)}, {vr(32 + k)}')
    h1_addresses()
    stamp('W1regs')
    poll(WS_F2, 'all')
    stamp('S2ok')
    a(f's_lshl_b32 {sA}, {sT32}, 15')
    a(f's_lshl_b32 {sB}, {sWV}, 10')
    a(f's_add_u32 {sA}, {sA}, {sB}')
    a(f's_add_u32 {sA}, {sA}, {WS_X2B}')
    for k in range(4):
        if k:
            a(f's_add_u32 {sA}, {sA}, 8192')
        a(f's_add_u32 {sD}, {sB}, {L_X + k * 8192}')
        dma(4, 24, WS, sD, soff=sA, mods='sc1')
    a('v_lshlrev_b32 v14, 2, v0')
    a(f's_mov_b32 {sA}, {WS_MODF + 4 * 2048}')
    bload(32, 1, 14, WS, soff=sA, mods='sc1')
    a(f's_mov_b32 {sA}, {WS_MODF + 3 * 2048}')
    bload(36, 1, 14, WS, soff=sA, mods='sc1')
    a(f's_lshl_b32 {sA}, {sRB}, 16')
    a(f's_lshr_b32 {sB}, {sWV}, 2'); a(f's_lshl_b32 {sB}, {sB}, 15'); a(f's_add_u32 {sA}, {sA}, {sB}')
    a(f's_lshl_b32 {sB}, {sCS}, 12'); a(f's_add_u32 {sA}, {sA}, {sB}')
    a(f's_and_b32 {sB}, {sWV}, 3'); a(f's_lshl_b32 {sB}, {sB}, 10'); a(f's_add_u32 {sA}, {sA}, {sB}')
    a(f's_add_u32 {sA}, {sA}, {WS_X2B}')
    a(f's_lshl_b32 {sB}, {sWV}, 10')
    a(f's_add_u32 {sB}, {sB}, {L_XS}')
    dma(4, vL16, WS, sB, soff=sA, mods='sc1')
    a('v_lshlrev_b32 v15, 2, v0')
    a(f'v_add_u32 v15, {L_CB}, v15')
    a('s_waitcnt vmcnt(1)')
    a('v_add_f32 v32, 1.0, v32')
    a('ds_write_b32 v15, v32')
    a('ds_write_b32 v15, v36 offset:2048')
    a('s_waitcnt lgkmcnt(0)')
    a('s_barrier')
    stamp('Xlanded')
    wfrag_base(sF, WS_W2S)
    wq = list(range(16))

    def w1n(n):
        for _ in range(n):
            if wq:
                wfrag_one(W2R, sF, wq.pop(0))
    XF = 32
    for i in range(4):
        a(f'ds_read_b64_tr_b16 {vr(XF + 4 * i, 2)}, v25 offset:{2048 * i}')
        a(f'ds_read_b64_tr_b16 {vr(XF + 2 + 4 * i, 2)}, v25 offset:{2048 * i + 256}')
    CO = 64

    def ldc(i):
        b = CO + 16 * i
        a(f'ds_read_b128 {vr(b, 4)}, v26 offset:{128 * i}')
        a(f'ds_read_b128 {vr(b + 4, 4)}, v26 offset:{128 * i + 16}')
        a(f'ds_read_b128 {vr(b + 8, 4)}, v26 offset:{2048 + 128 * i}')
        a(f'ds_read_b128 {vr(b + 12, 4)}, v26 offset:{2048 + 128 * i + 16}')
    ldc(0)
    SA, QA = 48, 52
    for i in range(4):
        if i == 0:
            a('s_waitcnt lgkmcnt(10)')
        elif i == 1:
            a('s_waitcnt lgkmcnt(8)')
        elif i == 2:
            a('s_waitcnt lgkmcnt(6)')
        else:
            a('s_waitcnt lgkmcnt(4)')
        f = XF + 4 * i
        mfma(SA, ONES, f, None if i == 0 else SA)
        mfma(QA, f, f, None if i == 0 else QA)
        w1n(1)
    ldc(1); ldc(2)
    stats_publish(27, SA, QA, 56)
    ldc(3)
    a('s_waitcnt lgkmcnt(4)')
    a('s_barrier')
    a('ds_read2st64_b64 v[48:51], v28 offset0:0 offset1:1') if False else None
    a('ds_read_b64 v[48:49], v28')
    a('ds_read_b64 v[50:51], v28 offset:256')
    a('ds_read_b64 v[52:53], v28 offset:512')
    a('ds_read_b64 v[54:55], v28 offset:768')
    a('s_waitcnt lgkmcnt(0)')
    a('v_pk_add_f32 v[48:49], v[48:49], v[50:51]')
    a('v_pk_add_f32 v[52:53], v[52:53], v[54:55]')
    a('v_pk_add_f32 v[48:49], v[48:49], v[52:53]')
    stats_finish(48, 49, 58, 56)
    a('v_mul_f32 v58, v58, v56')
    stamp('stats2')
    SA, QA = 48, 52
    for i in range(4):
        f = XF + 4 * i
        b = CO + 16 * i
        for p in range(4):
            z = 60 + 2 * (p & 1)
            a(f'v_lshlrev_b32 {vr(z)}, 16, {vr(f + p)}')
            a(f'v_and_b32 {vr(z + 1)}, 0xffff0000, {vr(f + p)}')
            a(f'v_pk_fma_f32 {vr(z, 2)}, {vr(z, 2)}, v[56:57], v[58:59] op_sel_hi:[1,0,0] neg_lo:[0,0,1] neg_hi:[0,0,1]')
            a(f'v_pk_fma_f32 {vr(z, 2)}, {vr(z, 2)}, {vr(b + 2 * p, 2)}, {vr(b + 8 + 2 * p, 2)}')
            a(f'v_cvt_pk_bf16_f32 {vr(f + p)}, {vr(z)}, {vr(z + 1)}')
            if p == 1:
                w1n(1)
        a(f'ds_write_b128 v29, {vr(f, 4)} offset:{2048 * i}')
        if i > 0:
            fp = f - 4
            mfma(SA, ONES, fp, None if i == 1 else SA)
            mfma(QA, fp, fp, None if i == 1 else QA)
    f = XF + 12
    mfma(SA, ONES, f, SA)
    mfma(QA, f, f, QA)
    a(f'v_add_u32 v27, {L_ST3 - L_ST}, v27')
    stats_publish(27, SA, QA, 60)
    a('s_waitcnt lgkmcnt(0)')
    a('s_barrier')
    stamp('norm')
    AR = 64

    def lda(ks):
        b = AR + 8 * (ks % 8)
        a(f'ds_read_b128 {vr(b, 4)}, v30 offset:{2048 * ks}')
        a(f'ds_read_b128 {vr(b + 4, 4)}, v30 offset:{2048 * ks + 1024}')
    for ks in range(6):
        lda(ks)
    a(f'v_lshlrev_b32 v14, 3, v2')
    a(f'v_add_u32 v14, {L_ST3}, v14')
    for ks in range(16):
        pend = min(15 - ks, 5) * 2
        a(f's_waitcnt lgkmcnt({pend})')
        b = AR + 8 * (ks % 8)
        mfma(32, W1R + 4 * ks, b, None if ks == 0 else 32)
        mfma(36, W1R + 4 * ks, b + 4, None if ks == 0 else 36)
        if ks % 2 == 0:
            w1n(1)
        if ks + 6 < 16:
            lda(ks + 6)
    for tt in range(2):
        for kq in range(4):
            a(f'ds_read_b64 {vr(40 + 8 * tt + 2 * kq, 2)}, v14 offset:{256 * kq + 128 * tt}')
    GK = 56
    gelu_consts(GK)
    a('s_waitcnt lgkmcnt(0)')
    for tt in range(2):
        b = 40 + 8 * tt
        a(f'v_pk_add_f32 {vr(b, 2)}, {vr(b, 2)}, {vr(b + 2, 2)}')
        a(f'v_pk_add_f32 {vr(b + 4, 2)}, {vr(b + 4, 2)}, {vr(b + 6, 2)}')
        a(f'v_pk_add_f32 {vr(b, 2)}, {vr(b, 2)}, {vr(b + 4, 2)}')
        stats_finish(b, b + 1, b + 2, b + 4)
        ln_apply(32 + 4 * tt, CS1, b + 2, b + 4, None)
    stamp('gemm1')
    gelu(list(range(32, 40)), 62, GK)
    pack_swap(40, 32, 36)
    bstore(40, 4, H1A, WS, mods='sc1')
    for k in range(4):
        a(f'v_cndmask_b32 {vr(48 + k)}, {vr(40 + k)}, v31, s[{mZH}:{mZH + 1}]')
    save_exec_mask(0xc0000003c0000003)
    bstore(48, 4, H1B, WS, mods='sc1')
    restore_exec()
    p5_tiles()
    a('s_waitcnt vmcnt(0)')
    stamp('h1stored')
    a('s_barrier')
    a(f's_lshl_b32 {sE}, {sT32}, 2'); a(f's_add_u32 {sE}, {sE}, {sCQ}')
    assert not wq
    set_flag(WS_F3, sE)
    wfrags(128, WS_W3S, 8, nt_sgpr=sNT3)


def p5_tiles():
    a(f's_mul_i32 {sNT3}, {sCS}, 11')
    a(f's_cmp_eq_u32 {sCS}, 7')
    a(f's_cselect_b32 {sA}, 1, 0')
    a(f's_sub_u32 {sNT3}, {sNT3}, {sA}')
    a(f's_add_u32 {sNT3}, {sNT3}, {sWV}')
    a(f's_cmp_ge_u32 {sCS}, 6')
    a(f's_cselect_b32 {sA}, 2, 3')
    a(f's_cmp_lt_u32 {sWV}, {sA}')
    a(f's_cselect_b32 {sNV}, 2, 1')
    rot_setup()


def phase4():
    W2R = 192
    poll(WS_F3, 'halo')
    stamp('S3ok')
    a(f's_mul_i32 {sA}, {sT32}, {64 * 768}')
    a(f's_lshl_b32 {sB}, {sWV}, 10')
    a(f's_add_u32 {sA}, {sA}, {sB}')
    a(f's_add_u32 {sA}, {sA}, {WS_H1}')
    for k in range(6):
        if k:
            a(f's_add_u32 {sA}, {sA}, 8192')
        a(f's_add_u32 {sD}, {sB}, {L_A4 + k * 8192}')
        dma(4, vL16, WS, sD, soff=sA, mods=LDM)
    a('v_mul_u32_u24 v24, 768, v3')
    a('v_lshl_add_u32 v24, v2, 4, v24')
    a(f'v_add_u32 v24, {L_A4 + 128 - 32}, v24')
    a(f's_lshl_b32 {sA}, {sCQ}, 2'); a(f's_lshr_b32 {sB}, {sWV}, 1'); a(f's_add_u32 {sA}, {sA}, {sB}')
    a(f's_lshl_b32 {sA}, {sA}, 11')
    a(f's_and_b32 {sB}, {sWV}, 1'); a(f's_lshl_b32 {sB}, {sB}, 9'); a(f's_add_u32 {sA}, {sA}, {sB}')
    a(f's_add_u32 {sA}, {sA}, {L_HF}')
    a('v_lshrrev_b32 v25, 1, v3')
    a('v_lshlrev_b32 v25, 8, v25')
    a('v_lshl_add_u32 v25, v2, 4, v25')
    a('v_and_b32 v14, 1, v3')
    a('v_lshl_add_u32 v25, v14, 3, v25')
    a(f'v_add_u32 v25, {sA}, v25')
    a('ds_read_b64 v[40:41], v25')
    a('ds_read_b64 v[42:43], v25 offset:1024')
    AR = 64
    shifts = [-1, 1, -2, 2]

    def lda(ks):
        b = AR + 8 * (ks % 8)
        s_ = shifts[ks >> 2]
        off = 3072 * ks + 32 + 16 * s_
        a(f'ds_read_b128 {vr(b, 4)}, v24 offset:{off}')
        a(f'ds_read_b128 {vr(b + 4, 4)}, v24 offset:{off + 256}')
    a('s_waitcnt vmcnt(3)')
    a('s_barrier')
    stamp('A4landed')
    wfrag_base(sF, WS_W3S, nt_sgpr=sNT3, first=8)
    for ks in range(6):
        lda(ks)
    for ks in range(16):
        if ks == 2:
            a('s_waitcnt vmcnt(1)')
            a('s_barrier')
        pend = min(15 - ks, 5) * 2
        a(f's_waitcnt lgkmcnt({pend})')
        b = AR + 8 * (ks % 8)
        mfma(32, W2R + 4 * ks, b, None if ks == 0 else 32)
        mfma(36, W2R + 4 * ks, b + 4, None if ks == 0 else 36)
        if ks % 2 == 0:
            wfrag_one(128 + 32, sF, ks // 2)
        if ks + 6 < 16:
            lda(ks + 6)
    stamp('gemm2')
    for tt in range(2):
        for k in range(4):
            h = 40 + 2 * tt + (k >> 1)
            if k & 1:
                a(f'v_and_b32 {vr(44 + k)}, 0xffff0000, {vr(h)}')
            else:
                a(f'v_lshlrev_b32 {vr(44 + k)}, 16, {vr(h)}')
        a(f'v_pk_add_f32 {vr(32 + 4 * tt, 2)}, {vr(32 + 4 * tt, 2)}, v[44:45]')
        a(f'v_pk_add_f32 {vr(34 + 4 * tt, 2)}, {vr(34 + 4 * tt, 2)}, v[46:47]')
    pack_swap(40, 32, 36)
    a(f's_lshl_b32 {sA}, {sT32}, 15')
    a(f's_lshl_b32 {sB}, {sCQ}, 3'); a(f's_add_u32 {sB}, {sB}, {sWV}'); a(f's_lshl_b32 {sB}, {sB}, 10')
    a(f's_add_u32 {sA}, {sA}, {sB}')
    a(f's_add_u32 {sA}, {sA}, {WS_X1}')
    cstore(40, 4, vL16, sA)
    a('s_waitcnt vmcnt(0)')
    stamp('x1stored')
    a('s_barrier')
    a(f's_lshl_b32 {sE}, {sRB}, 3'); a(f's_add_u32 {sE}, {sE}, {sCS}')
    set_flag(WS_F4, sE, cluster=True)

    l1 = a.newlabel('L_p4one'); l2 = a.newlabel('L_p4j')
    a(f's_cmp_eq_u32 {sNV}, 1')
    a(f's_cbranch_scc1 {l1}')
    a(f's_add_u32 {sE}, {sNT3}, 8')
    wfrags(192, WS_W3S, 16, nt_sgpr=sE)
    a.label(l1)


def w4reg(s_):
    return 192 + 4 * s_ if s_ < 16 else 128 + 4 * (s_ - 16)


sWO, sWLIM, sWB, sRO, sRBAD = 's69', 's70', 's71', 's72', 's73'


def rot_setup():
    a(f's_movk_i32 {sWLIM}, {21 * 1024}')
    a(f's_cmp_ge_u32 {sWV}, 4')
    a(f's_cselect_b32 {sWLIM}, {20 * 1024}, {sWLIM}')
    a(f's_cselect_b32 {sRBAD}, {21 * 2048}, -1')
    a(f's_and_b32 {sB}, {sWV}, 3')
    a(f's_lshl_b32 {sWB}, {sCS}, 2'); a(f's_add_u32 {sWB}, {sWB}, {sB}'); a(f's_mul_i32 {sWB}, {sWB}, 43')
    a(f's_lshr_b32 {sB}, {sWV}, 2'); a(f's_mul_i32 {sB}, {sB}, 22'); a(f's_add_u32 {sWB}, {sWB}, {sB}')
    a(f's_lshl_b32 {sWB}, {sWB}, 10'); a(f's_add_u32 {sWB}, {sWB}, {WS_W4S}')


def w4_base(sreg, first=0):
    pass


def w4_one(sreg, first, k):
    s_ = first + k
    if s_ == 21:
        a(f's_add_u32 {sC}, {sWB}, {sWLIM}')
        bload(w4reg(s_), 4, vL16, WS, soff=sC, mods='sc1')
    else:
        base4 = (s_ // 4) * 4
        if s_ % 4 == 0 or k == 0:
            a(f's_add_u32 {sWO}, {sWB}, {base4 * 1024}')
        bload(w4reg(s_), 4, vL16, WS, imm=(s_ % 4) * 1024, soff=sWO, mods='sc1')


def w4_loads(first, n):
    for k in range(n):
        w4_one(None, first, k)


def phase5():
    W3A, W3B = 128, 192
    CSA, CSB = 24, 28
    for k in range(4):
        a(f'v_mov_b32 {vr(ONES + k)}, 0x3f803f80')
    a(f's_and_b32 {sLO}, {sWV}, 3')
    a(f's_lshr_b32 {sHI}, {sWV}, 2')
    a('v_lshrrev_b32 v14, 2, v2')
    a('v_lshl_add_u32 v14, v3, 2, v14')
    a('v_lshlrev_b32 v14, 6, v14')
    a('v_and_b32 v15, 3, v2')
    a('v_lshl_add_u32 v14, v15, 3, v14')
    a(f's_lshl_b32 {sA}, {sHI}, 12'); a(f's_lshl_b32 {sB}, {sLO}, 10'); a(f's_add_u32 {sA}, {sA}, {sB}')
    a(f's_add_u32 {sA}, {sA}, {L_XS}')
    a(f'v_add_u32 v14, {sA}, v14')
    a(f'ds_read_b64_tr_b16 {vr(XS, 2)}, v14')
    a(f'ds_read_b64_tr_b16 {vr(XS + 2, 2)}, v14 offset:32')
    a(f's_lshr_b32 {sA}, {sLO}, 1'); a(f's_lshl_b32 {sA}, {sA}, 15')
    a(f's_and_b32 {sB}, {sLO}, 1'); a(f's_lshl_b32 {sB}, {sB}, 8'); a(f's_add_u32 {sA}, {sA}, {sB}')
    a(f's_lshl_b32 {sB}, {sHI}, 14'); a(f's_add_u32 {sA}, {sA}, {sB}')
    a(f'v_add_u32 v20, {sA}, {vr(vVB)}')
    a(f's_lshl_b32 {sA}, {sWV}, 7'); a(f's_add_u32 {sA}, {sA}, {L_ST5}')
    a(f'v_lshl_add_u32 v21, v2, 3, {sA}')
    a(f's_lshl_b32 {sA}, {sHI}, 15'); a(f's_lshl_b32 {sB}, {sCS}, 12'); a(f's_add_u32 {sA}, {sA}, {sB}')
    a(f's_lshl_b32 {sB}, {sLO}, 10'); a(f's_add_u32 {sA}, {sA}, {sB}')
    a('v_lshrrev_b32 v22, 1, v3'); a('v_lshlrev_b32 v22, 9, v22')
    a('v_lshl_add_u32 v22, v2, 4, v22')
    a('v_and_b32 v14, 1, v3'); a('v_lshl_add_u32 v22, v14, 3, v22')
    a(f'v_add_u32 v22, {sA}, v22')
    a('v_lshlrev_b32 v23, 3, v2')
    a(f'v_add_u32 v23, {L_ST5}, v23')
    a('s_waitcnt lgkmcnt(0)')
    stamp('W3landed')
    poll(WS_F4, 'own')
    stamp('S4ok')
    a(f's_lshl_b32 {sA}, {sRB}, 16')
    a(f's_lshl_b32 {sB}, {sHI}, 15'); a(f's_lshl_b32 {sC}, {sLO}, 10'); a(f's_add_u32 {sB}, {sB}, {sC}')
    a(f's_add_u32 {sA}, {sA}, {sB}'); a(f's_add_u32 {sA}, {sA}, {WS_X1}')
    for j in range(8):
        if j:
            a(f's_add_u32 {sA}, {sA}, 4096')
        a(f's_add_u32 {sD}, {sB}, {L_X1 + 4096 * j}')
        dma(4, vL16, WS, sD, soff=sA, mods=LDM)
    a('s_waitcnt vmcnt(8)')
    for ks in range(16):
        acc = CSA if ks % 2 == 0 else 32
        mfma(acc, W3A + 4 * ks, ONES, None if ks < 2 else acc)
    lnb = a.newlabel('L_nob')
    a(f's_cmp_lt_u32 {sNV}, 2')
    a(f's_cbranch_scc1 {lnb}')
    for ks in range(16):
        acc = CSB if ks % 2 == 0 else 36
        mfma(acc, W3B + 4 * ks, ONES, None if ks < 2 else acc)
    for k in range(4):
        a(f'v_add_f32 {vr(CSB + k)}, {vr(CSB + k)}, {vr(36 + k)}')
    a.label(lnb)
    for k in range(4):
        a(f'v_add_f32 {vr(CSA + k)}, {vr(CSA + k)}, {vr(32 + k)}')
    AR = 64
    ACA, ACB = 32, 48
    SA, QA, TP, MR = 112, 116, 120, 120
    a(f's_lshl_b32 {sA}, {sRB}, 1'); a(f's_mul_i32 {sA}, {sA}, {86 * 1024}')
    a(f's_lshl_b32 {sB}, {sNT3}, 10'); a(f's_add_u32 {sA}, {sA}, {sB}'); a(f's_add_u32 {sE}, {sA}, {WS_H3}')

    def lda(ks, q):
        b = AR + 16 * (ks % 3)
        for tt in range(4):
            a(f'ds_read_b128 {vr(b + 4 * tt, 4)}, {vr(vVB)} offset:{32768 * (tt >> 1) + 2048 * ks + 256 * (tt & 1)}')
        q += [('a', ks)] * 4

    def wait_for(q, key):
        last = max(i for i, o in enumerate(q) if o == key)
        a(f's_waitcnt lgkmcnt({min(15, len(q) - 1 - last)})')

    def epi_steps(acc, cs, tileoff, tmp, gk, pk):
        steps = []
        for tt in range(4):
            mr = MR + 2 * tt
            def f(tt=tt, mr=mr):
                for k in (0, 2):
                    r = acc + 4 * tt + k
                    a(f'v_pk_fma_f32 {vr(r, 2)}, {vr(cs + k, 2)}, {vr(mr, 2)}, {vr(r, 2)} op_sel_hi:[1,0,1] neg_lo:[0,1,0] neg_hi:[0,1,0]')
                    a(f'v_pk_mul_f32 {vr(r, 2)}, {vr(r, 2)}, {vr(mr, 2)} op_sel:[0,1] op_sel_hi:[1,1]')
            steps.append(f)
        for i in range(8):
            steps.append(lambda i=i: gelu([acc + 2 * i, acc + 2 * i + 1], tmp + 2 * (i & 1), gk))
        for T in range(2):
            def f(T=T):
                d = pk + 4 * T
                pack_swap(d, acc + 8 * T, acc + 8 * T + 4)
                a(f's_add_u32 {sA}, {sE}, {tileoff + T * 86 * 1024}')
                bstore(d, 4, vL16, WS, soff=sA, mods='sc1')
            steps.append(f)
        return steps

    def stats_pass():
        a('s_waitcnt vmcnt(0)')
        a('s_barrier')
        stamp('x1landed')
        for k in range(8):
            a(f'ds_read_b128 {vr(AR + 4 * k, 4)}, v20 offset:{2048 * k}')
        a(f'ds_read_b64 {vr(X1R, 2)}, v22')
        a(f'ds_read_b64 {vr(X1R + 2, 2)}, v22 offset:256')
        for k in range(8):
            a(f's_waitcnt lgkmcnt({9 - k})')
            f = AR + 4 * k
            sa, qa = (SA, QA) if k % 2 == 0 else (ACB, ACB + 4)
            mfma(sa, ONES, f, None if k < 2 else sa)
            mfma(qa, f, f, None if k < 2 else qa)
        for k in range(4):
            a(f'v_add_f32 {vr(SA + k)}, {vr(SA + k)}, {vr(ACB + k)}') if k == 0 else None
            a(f'v_add_f32 {vr(QA + k)}, {vr(QA + k)}, {vr(ACB + 4 + k)}')
        stats_publish(21, SA, QA, TP)
        a('s_waitcnt lgkmcnt(0)')
        a('s_barrier')
        stamp('k5b')

    def loop1(two):
        q = []
        SF = AR + 32
        for tt in range(4):
            a(f'ds_read_b64 {vr(SF + 4 * tt, 2)}, v23 offset:{128 * tt}')
            a(f'ds_read_b64 {vr(SF + 4 * tt + 2, 2)}, v23 offset:{512 + 128 * tt}')
        q += [('f', 0)] * 8
        lda(0, q); lda(1, q)
        wait_for(q, ('f', 0))
        for tt in range(4):
            bb = SF + 4 * tt
            mr = MR + 2 * tt
            a(f'v_pk_add_f32 {vr(bb, 2)}, {vr(bb, 2)}, {vr(bb + 2, 2)}')
            stats_finish(bb, bb + 1, mr, mr + 1)
        nxt = 2
        for ks in range(16):
            wait_for(q, ('a', ks))
            b = AR + 16 * (ks % 3)
            for tt in range(4):
                mfma(ACA + 4 * tt, W3A + 4 * ks, b + 4 * tt, None if ks == 0 else ACA + 4 * tt)
                if two:
                    mfma(ACB + 4 * tt, W3B + 4 * ks, b + 4 * tt, None if ks == 0 else ACB + 4 * tt)
            if not two:
                w4_one(None, 0, ks)
            while nxt < 16 and nxt <= ks + 2:
                lda(nxt, q); nxt += 1
            if ks == 8:
                wtouch('w4', 15)

    stats_pass()
    a(f's_cmp_ge_u32 {sWV}, 4')
    lpr = a.newlabel('L_prio')
    a(f's_cbranch_scc0 {lpr}')
    a('s_setprio 1')
    a.label(lpr)
    l1 = a.newlabel('L_one'); lj = a.newlabel('L_p5j')
    a(f's_cmp_eq_u32 {sNV}, 1')
    a(f's_cbranch_scc1 {l1}')
    loop1(True)
    stamp('gemm3')
    GK, TMP, PK = 64, 72, 76
    gelu_consts(GK)
    for f in epi_steps(ACA, CSA, 0, TMP, GK, PK):
        f()
    stamp('loop2')
    for f in epi_steps(ACB, CSB, 8 * 1024, TMP, GK, PK + 8):
        f()
    stamp('epiB')
    a('s_waitcnt vmcnt(0) lgkmcnt(0)')
    a(f's_branch {lj}')
    a.label(l1)
    loop1(False)
    w4_loads(16, 6)
    stamp('gemm3')
    GK, TMP, PK = 64, 72, 76
    gelu_consts(GK)
    for f in epi_steps(ACA, CSA, 0, TMP, GK, PK):
        f()
    stamp('epiB')
    a('s_waitcnt vmcnt(0) lgkmcnt(0)')
    a.label(lj)
    a('s_setprio 0')
    stamp('h3stored')
    a('s_barrier')
    a(f's_lshl_b32 {sE}, {sRB}, 3'); a(f's_add_u32 {sE}, {sE}, {sCS}')
    set_flag(WS_F5, sE)

    l1 = a.newlabel('L_w4one')
    a(f's_cmp_eq_u32 {sNV}, 1')
    a(f's_cbranch_scc1 {l1}')
    w4_loads(0, 16)
    w4_loads(16, 6)
    a.label(l1)


def phase6():
    a(f's_lshl_b32 {sA}, {sCS}, 6'); a(f's_lshl_b32 {sB}, {sLO}, 4'); a(f's_add_u32 {sA}, {sA}, {sB}')
    a(f's_lshl_b32 {sA}, {sA}, 2'); a(f's_add_u32 {sA}, {sA}, {WS_MODF + 5 * 2048}')
    a('v_lshlrev_b32 v14, 4, v3')
    bload(16, 4, 14, WS, soff=sA, mods='sc1')
    poll(WS_F5, 'own')
    stamp('S5ok')
    a(f's_lshl_b32 {sA}, {sRB}, 1'); a(f's_lshr_b32 {sB}, {sWV}, 1'); a(f's_and_b32 {sB}, {sB}, 1')
    a(f's_add_u32 {sA}, {sA}, {sB}'); a(f's_mul_i32 {sA}, {sA}, {86 * 1024}')
    a(f's_mul_i32 {sB}, {sHI}, {44 * 1024}'); a(f's_add_u32 {sA}, {sA}, {sB}')
    a(f's_and_b32 {sB}, {sWV}, 1'); a(f's_lshl_b32 {sB}, {sB}, 10'); a(f's_add_u32 {sA}, {sA}, {sB}')
    a(f's_add_u32 {sE}, {sA}, {WS_H3}')
    a(f's_lshl_b32 {sF}, {sWV}, 10')

    def ring(s_):
        if 'nodma' in XP and s_ >= 3:
            return
        a(f's_add_u32 {sC}, {sE}, {2048 * s_}')
        if s_ == 21:
            a(f's_cmp_eq_u32 {sHI}, 1')
            a(f's_cselect_b32 {sC}, 0x7ff00000, {sC}')
        a(f's_add_u32 {sD}, {sF}, {8192 * (s_ % NSLOT)}')
        dma(4, vL16, WS, sD, soff=sC, mods=LDM)
    AHEAD = int(os.environ.get('AHEAD', '6'))
    RAMP = int(os.environ.get('RAMP', '14'))
    for s_ in range(AHEAD):
        ring(s_)
    a(f's_lshl_b32 {sA}, {sHI}, 12')
    a(f'v_add_u32 v32, {sA}, {vr(vVB)}')
    a('v_add_u32 v33, 65536, v32')
    a('v_add_u32 v34, 131072, v32')
    AR = 64
    ACC = 40

    def lda(s_):
        b = AR + 16 * (s_ % 4)
        off = 8192 * (s_ % NSLOT)
        ad, base = (32, 0) if off < 65536 else (33, 65536) if off < 131072 else (34, 131072)
        for tt in range(4):
            if 'nord' in XP and s_ > 3:
                continue
            a(f'ds_read_b128 {vr(b + 4 * tt, 4)}, {vr(ad)} offset:{off - base + 2048 * (tt >> 1) + 256 * (tt & 1)}')
    guar = {0: 3, 2: 7, 6: 11, 10: 15, 14: 19, 18: 22}
    issued = AHEAD
    q = []
    nxt = 0
    bound = 0
    gi = 0
    for s_ in range(22):
        if s_ in guar:
            bound = guar[s_]
            while issued < bound:
                ring(issued); issued += 1
            if 'novm' not in XP or s_ == 0:
                a(f's_waitcnt vmcnt({issued - bound})')
            if 'nobar' not in XP or s_ == 0:
                a('s_barrier')
            stamp(f'g{gi}'); gi += 1
            last_barrier = s_
        while nxt < bound and nxt <= s_ + 2:
            lda(nxt); q += [nxt] * 4; nxt += 1
        nper = 2 if issued < RAMP else 1
        for _ in range(nper):
            if issued < 22 and (issued < NSLOT or issued - NSLOT < last_barrier):
                ring(issued); issued += 1
        last = max(i for i, o in enumerate(q) if o == s_)
        a(f's_waitcnt lgkmcnt({min(15, len(q) - 1 - last)})')
        b = AR + 16 * (s_ % 4)
        for tt in range(4):
            mfma(ACC + 4 * tt, w4reg(s_), b + 4 * tt, None if s_ == 0 else ACC + 4 * tt)
        while nxt < bound and nxt <= s_ + 3:
            lda(nxt); q += [nxt] * 4; nxt += 1
    assert issued == 22
    stamp('gemm4')
    a(f's_lshl_b32 {sA}, {sWV}, 11')
    a(f's_add_u32 {sA}, {sA}, {L_EX}')
    a(f'v_add_u32 v35, {sA}, {vr(vL16)}')
    lk1 = a.newlabel('L_k1'); lkd = a.newlabel('L_kd')
    a(f's_cmp_eq_u32 {sHI}, 1')
    a(f's_cbranch_scc1 {lk1}')
    a(f'ds_write_b128 v35, {vr(ACC + 8, 4)}')
    a(f'ds_write_b128 v35, {vr(ACC + 12, 4)} offset:1024')
    a(f's_branch {lkd}')
    a.label(lk1)
    a(f'ds_write_b128 v35, {vr(ACC, 4)}')
    a(f'ds_write_b128 v35, {vr(ACC + 4, 4)} offset:1024')
    for k in range(8):
        a(f'v_mov_b32 {vr(ACC + k)}, {vr(ACC + 8 + k)}')
    a.label(lkd)
    a(f's_lshl_b32 {sA}, {sRB}, 6'); a(f's_lshl_b32 {sB}, {sHI}, 5'); a(f's_add_u32 {sA}, {sA}, {sB}')
    a(f's_lshl_b32 {sA}, {sA}, 10')
    a(f's_lshl_b32 {sB}, {sCS}, 7'); a(f's_add_u32 {sA}, {sA}, {sB}')
    a(f's_lshl_b32 {sB}, {sLO}, 5'); a(f's_add_u32 {sE}, {sA}, {sB}')
    a('v_lshlrev_b32 v36, 10, v2')
    a('v_lshl_add_u32 v36, v3, 3, v36')
    a('s_waitcnt lgkmcnt(0)')
    a('s_barrier')
    a(f's_xor_b32 {sA}, {sWV}, 4')
    a(f's_lshl_b32 {sA}, {sA}, 11')
    a(f's_add_u32 {sA}, {sA}, {L_EX}')
    a(f'v_add_u32 v35, {sA}, {vr(vL16)}')
    stamp('exch')
    a('ds_read_b128 v[64:67], v35')
    a('ds_read_b128 v[68:71], v35 offset:1024')
    for e in range(2):
        for k in range(4):
            for (src, dst) in ((X1R + 2 * e + (k >> 1), 72 + 8 * e + k), (XS + 2 * e + (k >> 1), 76 + 8 * e + k)):
                if k & 1:
                    a(f'v_and_b32 {vr(dst)}, 0xffff0000, {vr(src)}')
                else:
                    a(f'v_lshlrev_b32 {vr(dst)}, 16, {vr(src)}')
    a('s_waitcnt lgkmcnt(0)')
    for e in range(2):
        for k in range(4):
            r = ACC + 4 * e + k
            a(f'v_add_f32 {vr(r)}, {vr(r)}, {vr(64 + 4 * e + k)}')
            a(f'v_add_f32 {vr(r)}, {vr(r)}, {vr(72 + 8 * e + k)}')
            a(f'v_fma_f32 {vr(r)}, {vr(16 + k)}, {vr(r)}, {vr(76 + 8 * e + k)}')
        a(f'v_cvt_pk_bf16_f32 {vr(88 + 2 * e)}, {vr(ACC + 4 * e)}, {vr(ACC + 4 * e + 1)}')
        a(f'v_cvt_pk_bf16_f32 {vr(89 + 2 * e)}, {vr(ACC + 4 * e + 2)}, {vr(ACC + 4 * e + 3)}')
    bstore(88, 2, 36, OUT, soff=sE)
    a(f's_add_u32 {sE}, {sE}, 16384')
    bstore(90, 2, 36, OUT, soff=sE)


def finish():
    lf = a.newlabel('L_fin')
    a('s_cmp_lg_u32 s2, 0')
    a(f's_cbranch_scc1 {lf}')
    a(f's_cmp_lg_u32 {sWV}, 0')
    a(f's_cbranch_scc1 {lf}')
    a(f'v_mov_b32 v14, {sT}')
    a(f'v_mov_b32 v15, {WS_EPOCH}')
    save_exec_mask('1')
    bstore(14, 1, 15, WS, mods='sc1')
    restore_exec()
    a.label(lf)
    if PADTO or STAMPS:
        a('s_waitcnt vmcnt(0)')
    if PADTO:
        lp = a.newlabel('L_pad'); lq = a.newlabel('L_padq')
        a('s_cmp_lg_u32 s2, 0')
        a(f's_cbranch_scc1 {lq}')
        a.label(lp)
        a('s_memrealtime s[98:99]')
        a('s_waitcnt lgkmcnt(0)')
        a('s_sub_u32 s98, s98, s3')
        a(f's_cmp_lt_u32 s98, {PADTO * 100}')
        a(f's_cbranch_scc1 {lp}')
        a.label(lq)
    stamp('end')
    if STAMPS:
        for i in range(len(stamp_names)):
            a(f'v_writelane_b32 v255, s{STAMP_REGS[i]}, {i}')
        a(f's_lshl_b32 {sA}, s2, 3')
        a(f's_add_u32 {sA}, {sA}, {sWV}')
        a(f's_lshl_b32 {sA}, {sA}, 8')
        a(f's_add_u32 {sA}, {sA}, {WS_DBG}')
        a(f'v_lshl_add_u32 v20, v1, 2, {sA}')
        bstore(255, 1, 20, WS)
        a('s_waitcnt vmcnt(0)')
        open('stamps.txt', 'w').write('\n'.join(stamp_names) + '\n')
    a.label('L_END')
    a('s_endpgm')


def build(debug=True):
    global DEBUG
    DEBUG = debug
    prologue()
    phase_a()
    phase_b()
    for name, fn in (('3', phase3), ('4', phase4), ('5', phase5), ('6', phase6)):
        if STOP_AFTER and STOP_AFTER < name and STOP_AFTER != '':
            break
        fn()
    finish()
    nops = a.fast_hazard_pass()
    errs = a.check_waits([{'s5': w, 's89': nv} for w in range(8) for nv in ((1, 2) if w < 3 else (1,))])
    for e in errs:
        print('WAIT-CHECK:', e, file=sys.stderr)
    hdr = open('adaLN_cond__ssm_conv_s4__mixer_s_mlp__prompt.s.ref').read().split('\n')
    head = [l for l in hdr if l.startswith(';') and '@launch' not in l and 'Override' not in l and 'grid=ceil' not in l]
    txt = '\n'.join(head) + '\n; @launch grid=(256,1,1) block=(512,1,1) lds=163840\n'
    txt += '.amdgcn_target "amdgcn-amd-amdhsa--gfx950"\n.text\n'
    txt += f'.globl {KNAME}\n.p2align 8\n.type {KNAME},@function\n{KNAME}:\n'
    txt += a.text()
    txt += f'''.section .rodata,"a"
.p2align 6
.amdhsa_kernel {KNAME}
  .amdhsa_next_free_vgpr 256
  .amdhsa_next_free_sgpr 102
  .amdhsa_accum_offset 256
  .amdhsa_group_segment_fixed_size 0
  .amdhsa_kernarg_size 152
  .amdhsa_user_sgpr_count 2
  .amdhsa_user_sgpr_kernarg_segment_ptr 1
  .amdhsa_system_sgpr_workgroup_id_x 1
  .amdhsa_float_denorm_mode_32 3
.end_amdhsa_kernel
'''
    print(f'instructions: {len(a.lines)}  hazard nops: {nops}', file=sys.stderr)
    return txt


if __name__ == '__main__':
    out = sys.argv[1] if len(sys.argv) > 1 else 'k.s'
    open(out, 'w').write(build(debug=os.environ.get('NODEBUG') is None))
```

```python
import sys, os, struct
sys.path.insert(0, os.path.dirname(os.path.abspath(__file__)))
from asmlib import Asm
from layout import *

KNAME = 'adaLN_cond__ssm_conv_s4__mixer_s_mlp__prompt_kernel'
STOP_AFTER = os.environ.get('STOP_AFTER', '')
STAMPS = os.environ.get('STAMPS') is not None
PADTO = int(os.environ.get('PADTO', '0'))
SPIN_MAX = 20000
XP = os.environ.get('XP', '').split(',')
NOFAST = True
LDM = os.environ.get('LDM', 'sc1')
PRETOUCH = int(os.environ.get('PRETOUCH', '0'))
NOSCOUT = os.environ.get('NOSCOUT') is not None
FASTX = os.environ.get('FASTX') is not None
CM = '' if FASTX else 'sc1'

sT = 's4'; sWV = 's5'; sX = 's6'; sJ = 's7'
U, WS, OUT = 8, 12, 16
ARE, AIM, BRE, BIM, CRE, CIM = 20, 24, 28, 32, 36, 40
LDT, DSK, CC, WMOD, W1, W2, W3, W4 = 44, 48, 52, 56, 60, 64, 68, 72
sCH0 = 's76'; sRB = 's77'; sCS = 's78'; sNT3 = 's79'
sA, sB, sC, sD = 's80', 's81', 's82', 's83'
sSPIN = 's84'; sLO = 's85'; sHI = 's86'
sE, sF = 's87', 's88'; sNV = 's89'
mK1, mK2, mK3, mDG = 90, 92, 94, 96
sX0 = 98
sT32 = 's100'; sCQ = 's101'
sROT = 's68'
mFA, mSL = 64, 66
TSRD = 92
sSD, sSN, sSS, sSB = 's90', 's91', 's96', 's97'
sSR, sSO = 's74', 's75'

vL16, vVB = 4, 5
XS, X1R = 6, 10


def srd(n):
    return f's[{n}:{n + 3}]'


def vr(a, n=1):
    return f'v{a}' if n == 1 else f'v[{a}:{a + n - 1}]'


def fconst(x):
    return hex(struct.unpack('<I', struct.pack('<f', x))[0])


L_G = 0; G_ROW = 544; G_CH = 48 * G_ROW
L_E = 2 * G_CH; E_CH = 16 * G_ROW
L_KT = L_E + 2 * E_CH; KT_CH = 5120; KT_ZERO = 2559
L_COPY = L_KT + 2 * KT_CH; CP_R = 4160; CP_CH = 4 * CP_R
L_STG = L_COPY + 2 * CP_CH
L_PART = 0
L_XC = 143360
L_H = L_XC + 8192; H_CH = 4672
assert L_STG + 4 * 4096 <= L_XC and L_H + 2 * H_CH <= 163840
L_X = 0
L_HF = 32768
L_A4 = 65536
L_XS = 114688
L_CB = 122880
L_ST = L_CB + 4096
L_ST3 = L_ST + 1024
L_X1 = 0
L_ST5 = 147456
NSLOT = 18
L_EX = 147456

a = Asm()
stamp_names = []
STAMP_REGS = [3] + list(range(20, 48)) + list(range(52, 60))
STAMPSET = os.environ.get('STAMPSET', 'all')
LATE_ONLY = ('entry', 'S4ok', 'x1landed', 'k5a', 'k5b', 'k12a', 'k12b', 'gemm3', 'loop2', 'epiB', 'h3stored', 'S5ok', 'g0', 'g1', 'g2', 'g3', 'g4', 'g5', 'g6', 'g7', 'gemm4', 'exch', 'end')


PROBE = os.environ.get('PROBE')


def stamp(name):
    if PROBE == name:
        a(f's_memrealtime s[{sX0}:{sX0 + 1}]')
        a('s_waitcnt lgkmcnt(0)')
        a(f's_mov_b32 s59, s{sX0}')
    if not STAMPS:
        return
    if STAMPSET == 'late' and name not in LATE_ONLY:
        return
    if STAMPSET == 'all' and name in ('k5a', 'k5b', 'k12a', 'k12b', 'loop2', 'epiB', 'g0', 'g1', 'g2', 'g3', 'g4', 'g5', 'g6', 'g7', 'exch'):
        return
    if name in stamp_names:
        i = stamp_names.index(name)
    else:
        i = len(stamp_names)
        stamp_names.append(name)
    a(f's_memtime s[{sX0}:{sX0 + 1}]' if os.environ.get('CYC') else f's_memrealtime s[{sX0}:{sX0 + 1}]')
    a('s_waitcnt lgkmcnt(0)')
    a(f's_mov_b32 s{STAMP_REGS[i]}, s{sX0}')


def bload(dst, n, voff, s, imm=0, soff='0', mods=''):
    op = {1: 'buffer_load_dword', 2: 'buffer_load_dwordx2', 4: 'buffer_load_dwordx4', 'u16': 'buffer_load_ushort'}[n]
    cnt = 1 if n == 'u16' else n
    a(f'{op} {vr(dst, cnt)}, {vr(voff)}, {srd(s)}, {soff} offen' + (f' offset:{imm}' if imm else '') + (' ' + mods if mods else ''))


def bstore(src, n, voff, s, imm=0, soff='0', mods=''):
    op = {1: 'buffer_store_dword', 2: 'buffer_store_dwordx2', 4: 'buffer_store_dwordx4'}[n]
    a(f'{op} {vr(src, n)}, {vr(voff)}, {srd(s)}, {soff} offen' + (f' offset:{imm}' if imm else '') + (' ' + mods if mods else ''))


def dma(n, voff, s, m0, soff='0', mods=''):
    a(f's_mov_b32 m0, {m0}')
    op = {1: 'buffer_load_dword', 4: 'buffer_load_dwordx4'}[n]
    a(f'{op} {vr(voff)}, {srd(s)}, {soff} offen' + (' ' + mods if mods else '') + ' lds')


def cstore(src, n, voff, soff):
    if NOFAST:
        bstore(src, n, voff, WS, soff=soff, mods='sc1')
        return
    a(f's_mov_b64 exec, s[{mFA}:{mFA + 1}]')
    bstore(src, n, voff, WS, soff=soff)
    a(f's_mov_b64 exec, s[{mSL}:{mSL + 1}]')
    bstore(src, n, voff, WS, soff=soff, mods='sc1')
    a('s_mov_b64 exec, -1')


def mfma(d, x, y, c=None):
    cc = '0' if c is None else vr(c, 4)
    a(f'v_mfma_f32_16x16x32_bf16 {vr(d, 4)}, {vr(x, 4)}, {vr(y, 4)}, {cc}')


def cmul(d, x, y):
    a(f'v_pk_mul_f32 {vr(d, 2)}, {vr(x, 2)}, {vr(y, 2)} op_sel:[0,0] op_sel_hi:[0,1]')
    a(f'v_pk_fma_f32 {vr(d, 2)}, {vr(x, 2)}, {vr(y, 2)}, {vr(d, 2)} op_sel:[1,1,0] op_sel_hi:[1,0,1] neg_lo:[1,0,0]')


def save_exec_mask(mask):
    a(f's_mov_b64 s[{sX0}:{sX0 + 1}], exec')
    if isinstance(mask, int) and mask > 64:
        a(f's_mov_b32 exec_lo, {hex(mask & 0xffffffff)}')
        a(f's_mov_b32 exec_hi, {hex(mask >> 32)}')
    else:
        a(f's_mov_b64 exec, {mask}')


def restore_exec():
    a(f's_mov_b64 exec, s[{sX0}:{sX0 + 1}]')


def prologue():
    if PADTO:
        a('s_memrealtime s[78:79]')
        a('s_waitcnt lgkmcnt(0)')
        a('s_mov_b32 s3, s78')
    a('s_cmp_ge_u32 s2, 256')
    a('s_cbranch_scc1 L_END')
    ptrs = [(U, 0), (WS, 144), (ARE, 8), (AIM, 16), (BRE, 24), (BIM, 32), (CRE, 40), (CIM, 48), (LDT, 56), (CC, 112),
            (WMOD, 120), (W1, 80), (W2, 88), (W3, 96), (W4, 104), (DSK, 64), (OUT, 128)]
    for r, off in ptrs:
        a(f's_load_dwordx2 s[{r}:{r + 1}], s[0:1], {off}')
    sizes = {U: 2 * 1024 * 1024, ARE: 131072, AIM: 131072, BRE: 131072, BIM: 131072, CRE: 131072, CIM: 131072,
             LDT: 1024, DSK: 1024, W1: 524288, W2: 524288, W3: 512 * F_ * 2, W4: 512 * F_ * 2, CC: 1024,
             WMOD: 512 * 3072 * 2, OUT: 2 * 1024 * 1024, WS: WS_USED + (WS_DBG_SIZE if DEBUG else 0)}
    a('v_lshrrev_b32 v2, 6, v0')
    a('v_and_b32 v1, 63, v0')
    a(f'v_readfirstlane_b32 {sWV}, v2')
    for r, sz in sizes.items():
        a(f's_mov_b32 s{r + 2}, {sz}')
        a(f's_mov_b32 s{r + 3}, 0x20000')
    a('v_and_b32 v2, 15, v1')
    a('v_lshrrev_b32 v3, 4, v1')
    a(f'v_lshlrev_b32 {vr(vL16)}, 4, v1')
    a(f's_and_b32 {sX}, s2, 7')
    if os.environ.get('XROT'):
        a(f's_add_u32 {sX}, {sX}, {os.environ["XROT"]}')
        a(f's_and_b32 {sX}, {sX}, 7')
    a(f's_lshr_b32 {sJ}, s2, 3')
    a(f's_lshl_b32 {sCH0}, {sX}, 6')
    a(f's_lshl_b32 {sA}, {sJ}, 1')
    a(f's_add_u32 {sCH0}, {sCH0}, {sA}')
    a(f's_lshl_b32 {sRB}, {sX}, 2')
    a(f's_lshr_b32 {sA}, {sJ}, 3')
    a(f's_add_u32 {sRB}, {sRB}, {sA}')
    a(f's_and_b32 {sCS}, {sJ}, 7')
    a(f's_lshl_b32 {sT32}, {sRB}, 1')
    a(f's_and_b32 {sA}, {sCS}, 1')
    a(f's_add_u32 {sT32}, {sT32}, {sA}')
    a(f's_lshr_b32 {sCQ}, {sCS}, 1')
    a('v_mov_b32 v102, 0')
    a('s_waitcnt lgkmcnt(0)')
    a(f's_mov_b64 s[{TSRD}:{TSRD + 1}], s[{W1}:{W1 + 1}]')
    a(f's_mov_b32 s{TSRD + 2}, 524288')
    a(f's_mov_b32 s{TSRD + 3}, 0x20000')


EXA = 112
KMA, KMB, KMD = 108, 109, 104


def precompute():
    a(f's_load_dword {sT}, s[{WS}:{WS + 1}], {WS_EPOCH}')
    a(f'v_lshlrev_b32 {vr(vVB)}, 4, v2')
    a(f'v_lshl_add_u32 {vr(vVB)}, v3, 9, {vr(vVB)}')
    a('v_and_b32 v16, 255, v0')
    a('v_lshlrev_b32 v16, 3, v16')
    a(f's_lshr_b32 {sA}, {sWV}, 2')
    a(f's_mul_i32 {sA}, {sA}, {KT_CH}')
    a(f's_add_u32 {sA}, {sA}, {L_KT}')
    a(f'v_cvt_f32_u32 v17, {sA}')
    a(f's_add_u32 {sA}, {sA}, {2 * KT_ZERO}')
    a(f'v_mov_b32 v18, {sA}')
    a('v_cvt_f32_u32 v19, v16')
    a('v_cmp_eq_u32 vcc, 0, v16')
    for d in range(1, 12):
        dd = d - 4
        r = EXA + d
        a(f'v_add_f32 v20, {float(dd)}, v19' if -16 <= dd <= 4 and float(dd) in (-4.0, -2.0, -1.0, 1.0, 2.0, 4.0, 0.5) else
          f'v_add_f32 v20, {fconst(float(dd))}, v19')
        a('v_cvt_pk_bf16_f32 v20, v20, v20')
        a('v_and_b32 v20, 0xffff0000, v20')
        a('v_fma_f32 v20, v20, 2.0, v17')
        a(f'v_cvt_u32_f32 {vr(r)}, v20')
        if dd < 0:
            a(f'v_cndmask_b32 {vr(r)}, {vr(r)}, v18, vcc')
    a(f's_cmp_ge_u32 {sWV}, 3')
    a(f's_cselect_b32 {sA}, 1, 0')
    a(f's_mul_i32 {sB}, {sA}, 3')
    a(f's_sub_u32 {sB}, {sWV}, {sB}')
    a(f's_mul_i32 {sC}, {sA}, {G_CH}')
    a(f's_mul_i32 {sD}, {sB}, {16 * G_ROW}')
    a(f's_add_u32 {sC}, {sC}, {sD}')
    a(f'v_mul_u32_u24 v16, {G_ROW}, v2')
    a('v_lshl_add_u32 v16, v3, 4, v16')
    a(f'v_add_u32 {vr(KMA)}, {sC}, v16')
    a(f's_mul_i32 {sC}, {sA}, {E_CH}')
    a(f's_add_u32 {sC}, {sC}, {L_E}')
    a(f'v_add_u32 {vr(KMB)}, {sC}, v16')
    bases = [(0, 4, 128, 132), (256, 384, 512, 516), (1024, 1536, 2048, 2049)]
    steps = [(1, 1, 1, 1), (2, 2, 128, 128), (128, 128, 128, 128)]
    pk2 = lambda x, y: x | (y << 16)
    pk4 = lambda t: t[0] | (t[1] << 8) | (t[2] << 16) | (t[3] << 24)
    for reg, vals in ((sC, [pk2(b[0], b[1]) for b in bases]), (sD, [pk2(b[2], b[3]) for b in bases]),
                      (sE, [pk4(s) for s in steps])):
        a(f's_mov_b32 {reg}, {vals[0]}')
        a(f's_cmp_eq_u32 {sB}, 1')
        a(f's_cselect_b32 {reg}, {vals[1]}, {reg}')
        a(f's_cmp_eq_u32 {sB}, 2')
        a(f's_cselect_b32 {reg}, {vals[2]}, {reg}')
    a('v_cmp_gt_u32 vcc, 2, v3')
    a(f'v_mov_b32 v16, {sD}')
    a(f'v_mov_b32 v17, {sC}')
    a('v_cndmask_b32 v16, v16, v17, vcc')
    a('v_and_b32 v17, 1, v3')
    a('v_lshlrev_b32 v17, 4, v17')
    a('v_bfe_u32 v16, v16, v17, 16')
    a('v_lshlrev_b32 v17, 3, v3')
    a(f'v_bfe_u32 v17, {sE}, v17, 8')
    a('v_lshl_add_u32 v16, v2, 3, v16')
    a(f's_mul_i32 {sC}, {sA}, {KT_CH}')
    a(f's_add_u32 {sC}, {sC}, {L_KT}')
    a(f'v_lshlrev_b32 v16, 1, v16')
    a(f'v_add_u32 {vr(KMD)}, {sC}, v16')
    a('v_lshlrev_b32 v17, 1, v17')
    for r in range(1, 4):
        a(f'v_add_u32 {vr(KMD + r)}, {vr(KMD + r - 1)}, v17')
    a('s_waitcnt lgkmcnt(0)')
    a(f's_add_u32 {sT}, {sT}, 1')


def role_k():
    a(f's_lshr_b32 {sA}, {sWV}, 1')
    a(f's_add_u32 {sB}, {sCH0}, {sA}')
    a(f's_and_b32 {sC}, {sWV}, 1')
    a(f's_lshl_b32 {sC}, {sC}, 6')
    a(f's_lshl_b32 {sD}, {sB}, 7')
    a(f's_add_u32 {sD}, {sD}, {sC}')
    a(f'v_add_u32 v21, {sD}, v1')
    a('v_lshlrev_b32 v21, 1, v21')
    a(f's_lshl_b32 {sB}, {sB}, 1')
    a(f'v_mov_b32 v22, {sB}')
    for i, s in enumerate((ARE, AIM, BRE, BIM, CRE, CIM)):
        bload(24 + i, 'u16', 21, s)
    bload(30, 'u16', 22, LDT)
    if PRETOUCH:
        a(f'v_lshlrev_b32 v126, {PRETOUCH}, v1')
        a('v_min_u32 v126, ' + str(WS_USED - 4) + ', v126')
        bload(127, 1, 126, WS)
    a(f's_mul_i32 {sB}, {sA}, {G_CH}')
    a(f'v_add_u32 v22, {sC}, v1')
    a('v_lshlrev_b32 v22, 2, v22')
    a(f'v_add_u32 v23, {sB}, v22')
    a(f's_mul_i32 {sB}, {sA}, {E_CH}')
    a(f's_add_u32 {sB}, {sB}, {L_E}')
    a(f'v_add_u32 v22, {sB}, v22')
    precompute()
    swz_issue()
    a('s_waitcnt vmcnt(0)')
    stamp('r_loaded')
    for i in range(7):
        a(f'v_lshlrev_b32 {vr(24 + i)}, 16, {vr(24 + i)}')
    LOG2E = 1.4426950408889634
    hi = struct.unpack('<f', struct.pack('<f', LOG2E))[0]
    lo = LOG2E - hi
    a(f'v_mul_f32 v32, {fconst(hi)}, v30')
    a(f'v_mov_b32 v31, {fconst(hi)}')
    a('v_fma_f32 v33, v30, v31, -v32')
    a(f'v_fmamk_f32 v33, v30, {fconst(lo)}, v33')
    a('v_exp_f32 v32, v32')
    a(f'v_mul_f32 v33, {fconst(0.6931471805599453)}, v33')
    a('v_fma_f32 v32, v32, v33, v32')
    a('v_cvt_pk_bf16_f32 v32, v32, v32')
    a('v_lshlrev_b32 v30, 16, v32')
    a('v_mul_f32 v24, v24, v30')
    a('v_mul_f32 v25, v25, v30')
    a(f'v_mul_f32 v24, {fconst(hi)}, v24')
    a(f'v_mul_f32 v25, {fconst(1.0 / (2 * 3.141592653589793))}, v25')
    a('v_mul_f32 v26, v26, v30')
    a('v_mul_f32 v27, v27, v30')
    cmul(32, 26, 28)
    for d, m in ((34, 1.0), (36, 8.0), (38, 128.0)):
        if m == 1.0:
            a('v_exp_f32 v40, v24'); a('v_fract_f32 v41, v25')
        else:
            a(f'v_mul_f32 v40, {fconst(m)}, v24')
            a(f'v_mul_f32 v41, {fconst(m)}, v25')
            a('v_exp_f32 v40, v40'); a('v_fract_f32 v41, v41')
        a('v_cos_f32 v42, v41')
        a('v_sin_f32 v43, v41')
        a(f'v_mul_f32 {vr(d)}, v40, v42')
        a(f'v_mul_f32 {vr(d + 1)}, v40, v43')
    P = {1: 34, 2: 44, 3: 46, 4: 48, 5: 50, 6: 52, 7: 54}
    cmul(P[2], P[1], P[1])
    cmul(P[3], P[2], P[1])
    cmul(P[4], P[2], P[2])
    cmul(P[5], P[4], P[1])
    cmul(P[6], P[4], P[2])
    cmul(P[7], P[4], P[3])

    def putG(rho, x):
        a(f'v_cvt_pk_bf16_f32 v31, {vr(x)}, -{vr(x + 1)}')
        a(f'ds_write_b32 v23, v31 offset:{rho * G_ROW}')

    def putE(j, x):
        a(f'v_cvt_pk_bf16_f32 v29, {vr(x)}, {vr(x + 1)}')
        a(f'ds_write_b32 v22, v29 offset:{j * G_ROW}')

    rows = {}
    for rho in range(41):
        if rho < 16:
            i, b = rho >> 3, rho & 7
        elif rho < 24:
            i, b = 2 + ((rho - 16) >> 2), 2 * ((rho - 16) & 3)
        elif rho < 32:
            i, b = 4 + ((rho - 24) & 3), 4 * ((rho - 24) >> 2)
        else:
            i, b = 8 + (rho - 32), 0
        rows.setdefault(i, []).append((rho, b))
    a('v_mov_b32 v29, 0x00003f80')
    a('ds_write_b32 v22, v29 offset:0')
    putE(1, 36)
    Ecur = 36
    Q = 32
    for i in range(17):
        for n_, (rho, b) in enumerate(rows[i]):
            if b == 0:
                putG(rho, Q)
            else:
                t = 64 + 2 * (n_ & 1)
                cmul(t, Q, P[b])
                putG(rho, t)
        if i < 16:
            nq = 60 if Q != 60 else 62
            cmul(nq, Q, 38)
            Q = nq
        j = i + 2
        if j < 16:
            ne = 56 if Ecur != 56 else 58
            cmul(ne, Ecur, 36)
            putE(j, ne)
            Ecur = ne
    if not os.environ.get('SWZLATE'):
        a('v_mov_b32 v14, v102')
        swz_dma()


def swz_issue():
    a(f's_lshl_b32 {sA}, s2, 2')
    a(f's_add_u32 {sA}, {sA}, {sWV}')
    a(f's_add_u32 {sA}, {sA}, 128')
    a(f's_cmp_lt_u32 {sA}, 952')
    a(f's_cselect_b32 {sSN}, 4, 0')
    a(f's_cselect_b32 {sA}, {sA}, 128')
    a(f's_mov_b64 s[{TSRD}:{TSRD + 1}], s[{W1}:{W1 + 1}]')
    a(f's_mov_b32 s{TSRD + 2}, 524288')
    a(f's_mov_b32 s{TSRD + 3}, 0x20000')
    a(f's_mov_b32 {sSD}, {WS_W1S}')
    a(f's_mov_b32 {sSS}, 16384')
    a(f's_mov_b32 {sF}, 1024')
    a(f's_mov_b32 {sB}, {sA}')
    a(f's_cmp_ge_u32 {sA}, 128')
    a(f's_cselect_b64 s[{TSRD}:{TSRD + 1}], s[{W2}:{W2 + 1}], s[{TSRD}:{TSRD + 1}]')
    a(f's_cselect_b32 {sSD}, {WS_W2S}, {sSD}')
    a(f's_cselect_b32 {sC}, 128, 0')
    a(f's_sub_u32 {sB}, {sA}, {sC}')
    a(f's_cmp_ge_u32 {sA}, 256')
    a(f's_cselect_b64 s[{TSRD}:{TSRD + 1}], s[{W3}:{W3 + 1}], s[{TSRD}:{TSRD + 1}]')
    a(f's_cselect_b32 s{TSRD + 2}, {512 * F_ * 2}, s{TSRD + 2}')
    a(f's_cselect_b32 {sSD}, {WS_W3S}, {sSD}')
    a(f's_cselect_b32 {sF}, {F_ * 2}, {sF}')
    a(f's_cselect_b32 {sC}, 256, 0')
    a(f's_cselect_b32 {sD}, 1, 0')
    a(f's_cmp_lg_u32 {sD}, 0')
    a(f's_sub_u32 {sC}, {sA}, {sC}')
    a(f's_cmp_lg_u32 {sD}, 0')
    a(f's_cselect_b32 {sB}, {sC}, {sB}')
    a(f's_and_b32 {sC}, {sB}, 15')
    a(f's_lshr_b32 {sD}, {sB}, 4')
    a(f's_mov_b32 {sE}, 16')
    a(f's_cmp_ge_u32 {sA}, 608')
    a(f's_cselect_b64 s[{TSRD}:{TSRD + 1}], s[{W4}:{W4 + 1}], s[{TSRD}:{TSRD + 1}]')
    a(f's_cselect_b32 {sSD}, {WS_W4S}, {sSD}')
    a(f's_cselect_b32 {sF}, 1024, {sF}')
    a(f's_cselect_b32 {sE}, 43, {sE}')
    a(f's_cselect_b32 {sSS}, {43 * 1024}, {sSS}')
    a(f's_sub_u32 {sB}, {sA}, 608')
    a(f's_lshr_b32 {sSB}, {sB}, 3')
    a(f's_and_b32 {sB}, {sB}, 7')
    a(f's_cmp_ge_u32 {sA}, 608')
    a(f's_cselect_b32 {sC}, {sSB}, {sC}')
    a(f's_cselect_b32 {sD}, {sB}, {sD}')
    a(f's_cselect_b32 {sB}, 0, {sD}')
    a(f's_cmp_eq_u32 {sB}, 21')
    a(f's_cselect_b32 {sB}, 2, 4')
    a(f's_min_u32 {sSN}, {sSN}, {sB}')
    a(f's_lshl_b32 {sB}, {sD}, 2')
    a(f's_mul_i32 {sB}, {sB}, {sE}')
    a(f's_add_u32 {sB}, {sB}, {sC}')
    a(f's_lshl_b32 {sB}, {sB}, 10')
    a(f's_add_u32 {sSD}, {sSD}, {sB}')
    a(f's_mul_i32 {sC}, {sC}, {sF}')
    a(f's_lshl_b32 {sC}, {sC}, 5')
    a(f's_lshl_b32 {sD}, {sD}, 7')
    a(f's_add_u32 {sC}, {sC}, {sD}')
    a('v_lshrrev_b32 v100, 3, v1')
    a(f'v_mul_lo_u32 v100, v100, {sF}')
    a('v_and_b32 v101, 7, v1')
    a('v_lshl_add_u32 v102, v101, 4, v100')
    a(f's_lshl_b32 {sB}, {sWV}, 12')
    a(f's_add_u32 {sSB}, {sB}, {L_STG}')
    a(f's_lshl_b32 {sSR}, {sF}, 3')
    a(f's_mov_b32 {sSO}, {sC}')


def swz_dma():
    a(f's_mov_b32 {sC}, {sSO}')
    for q in range(4):
        if q:
            a(f's_add_u32 {sC}, {sC}, {sSR}')
        a(f's_add_u32 {sB}, {sSB}, {q * 1024}')
        dma(4, 14, TSRD, sB, soff=sC)


def swz_finish():
    a('v_lshrrev_b32 v46, 2, v2')
    a('v_lshl_add_u32 v46, v3, 3, v46')
    a('v_lshlrev_b32 v46, 7, v46')
    a('v_and_b32 v47, 3, v2')
    a('v_lshl_add_u32 v46, v47, 3, v46')
    a(f'v_add_u32 v46, {sSB}, v46')
    for nt in range(4):
        a(f'ds_read_b64_tr_b16 {vr(48 + 4 * nt, 2)}, v46 offset:{32 * nt}')
        a(f'ds_read_b64_tr_b16 {vr(50 + 4 * nt, 2)}, v46 offset:{32 * nt + 512}')
    a('s_waitcnt lgkmcnt(0)')
    a(f's_mov_b32 {sA}, {sSD}')
    a(f's_mov_b32 {sB}, 0x7ff00000')
    for nt in range(4):
        a(f's_cmp_gt_u32 {sSN}, {nt}')
        a(f's_cselect_b32 {sC}, {sA}, {sB}')
        bstore(48 + 4 * nt, 4, vL16, WS, soff=sC, mods='sc1')
        a(f's_add_u32 {sA}, {sA}, {sSS}')


def role_stats():
    a(f's_lshl_b32 {sA}, s2, 13')
    a(f's_add_u32 {sB}, {sA}, 4096')
    for i in range(8):
        bload(24 + 4 * i, 4, vL16, U, imm=(i & 3) * 1024, soff=(sA if i < 4 else sB))
    precompute()
    a('v_mov_b32 v23, 0x3f803f80')
    a('s_waitcnt vmcnt(7)')
    stamp('r_loaded')
    for i in range(8):
        a(f's_waitcnt vmcnt({7 - i})')
        b = 24 + 4 * i
        a(f'v_dot2_f32_bf16 {vr(60 + i)}, {vr(b)}, v23, 0')
        a(f'v_dot2_f32_bf16 {vr(68 + i)}, {vr(b)}, {vr(b)}, 0')
        for k in range(1, 4):
            a(f'v_dot2c_f32_bf16 {vr(60 + i)}, {vr(b + k)}, v23')
            a(f'v_dot2c_f32_bf16 {vr(68 + i)}, {vr(b + k)}, {vr(b + k)}')
    for base in (60, 68):
        for i in range(4):
            a(f'v_permlane32_swap_b32 {vr(base + i)}, {vr(base + i + 4)}')
        for i in range(4):
            a(f'v_add_f32 {vr(base + i)}, {vr(base + i)}, {vr(base + i + 4)}')
    for base in (60, 68):
        for i in range(2):
            a(f'v_permlane16_swap_b32 {vr(base + i)}, {vr(base + i + 2)}')
        for i in range(2):
            a(f'v_add_f32 {vr(base + i)}, {vr(base + i)}, {vr(base + i + 2)}')
    for sh in (1, 2, 4, 8):
        for r in (60, 61, 68, 69):
            a(f'v_add_f32_dpp {vr(r)}, {vr(r)}, {vr(r)} row_ror:{sh} row_mask:0xf bank_mask:0xf')
    for p in range(2):
        S, Q = 60 + p, 68 + p
        d = 72 + 4 * p
        a(f'v_mul_f32 {vr(S)}, {fconst(1.0 / 512)}, {vr(S)}')
        a(f'v_mul_f32 {vr(Q)}, {fconst(1.0 / 512)}, {vr(Q)}')
        a(f'v_fma_f32 {vr(Q)}, -{vr(S)}, {vr(S)}, {vr(Q)}')
        a(f'v_max_f32 {vr(Q)}, 0, {vr(Q)}')
        a(f'v_add_f32 {vr(Q)}, {fconst(1e-5)}, {vr(Q)}')
        a(f'v_rsq_f32 {vr(d)}, {vr(Q)}')
        a(f'v_mov_b32 {vr(d + 1)}, {sT}')
        a(f'v_mov_b32 {vr(d + 3)}, {sT}')
        a(f'v_mul_f32 {vr(d + 2)}, {vr(S)}, {vr(d)}')
    a(f's_lshl_b32 {sA}, s2, 7')
    a(f's_add_u32 {sA}, {sA}, {WS_STATS}')
    a('v_lshlrev_b32 v21, 5, v3')
    save_exec_mask(0x0001000100010001)
    bstore(72, 4, 21, WS, soff=sA, mods='sc1')
    bstore(76, 4, 21, WS, imm=16, soff=sA, mods='sc1')
    restore_exec()
    stamp('r_pub')


L_SIL = 139264


def role_mod():
    lskip = a.newlabel('L_nomod'); ldone = a.newlabel('L_moddone')
    a('s_cmp_ge_u32 s2, 192')
    a(f's_cbranch_scc1 {lskip}')
    a(f's_mul_i32 {sA}, {sJ}, 43')
    a(f's_lshr_b32 {sA}, {sA}, 8')
    a(f's_mul_i32 {sB}, {sA}, 6')
    a(f's_sub_u32 {sB}, {sJ}, {sB}')
    a(f's_lshl_b32 {sB}, {sB}, 3')
    a(f's_add_u32 {sNV}, {sB}, {sX}')
    a(f's_lshl_b32 {sA}, {sA}, 1')
    a(f's_add_u32 {sA}, {sA}, {sWV}')
    a(f's_sub_u32 {sNT3}, {sA}, 5')
    a('v_lshlrev_b32 v22, 1, v1')
    a(f's_lshl_b32 {sA}, {sNT3}, 7')
    bload(24, 'u16', 22, CC, soff=sA)
    a('v_lshrrev_b32 v21, 3, v1')
    a('v_mul_u32_u24 v23, 6144, v21')
    a('v_and_b32 v40, 7, v1')
    a('v_lshl_add_u32 v23, v40, 4, v23')
    a(f's_mul_i32 {sA}, {sNT3}, {64 * 6144}')
    a(f's_lshl_b32 {sB}, {sNV}, 7')
    a(f's_add_u32 {sA}, {sA}, {sB}')
    for i in range(8):
        if i:
            a(f's_add_u32 {sA}, {sA}, {8 * 6144}')
        bload(64 + 4 * i, 4, 23, WMOD, soff=sA)
    precompute()
    a('s_waitcnt vmcnt(8)')
    stamp('r_loaded')
    a('v_lshlrev_b32 v24, 16, v24')
    a(f'v_mul_f32 v58, {fconst(-1.4426950408889634)}, v24')
    a('v_exp_f32 v58, v58')
    a('v_add_f32 v58, 1.0, v58')
    a('v_rcp_f32 v58, v58')
    a('v_mul_f32 v58, v58, v24')
    a('v_cvt_pk_bf16_f32 v58, v58, v58')
    a('v_and_b32 v56, 0xffff, v58')
    a('v_and_b32 v57, 0xffff0000, v58')
    a(f's_sub_u32 {sA}, {sWV}, 5')
    a(f's_lshl_b32 {sA}, {sA}, 9')
    a(f's_add_u32 {sA}, {sA}, {L_SIL}')
    a('v_and_b32 v25, 7, v1')
    a('v_lshlrev_b32 v25, 5, v25')
    a('v_lshrrev_b32 v26, 3, v1')
    a('v_lshl_add_u32 v25, v26, 2, v25')
    a(f'v_add_u32 v25, {sA}, v25')
    a('ds_write_b32 v25, v56')
    a('ds_write_b32 v25, v57 offset:256')
    a(f'v_lshl_add_u32 v25, v21, 5, {sA}')
    a('s_waitcnt lgkmcnt(0)')
    a('ds_read_b128 v[24:27], v25') if False else None
    a('ds_read_b128 v[28:31], v25')
    a('ds_read_b128 v[32:35], v25 offset:16')
    a('ds_read_b128 v[40:43], v25 offset:256')
    a('ds_read_b128 v[44:47], v25 offset:272')
    a('s_waitcnt lgkmcnt(0)')
    ACC = 48
    for i in range(8):
        a(f's_waitcnt vmcnt({7 - i})')
        b = 64 + 4 * i
        for k in range(4):
            if i == 0:
                a(f'v_dot2_f32_bf16 {vr(ACC + 2 * k)}, {vr(b + k)}, {vr(28 + i)}, 0')
                a(f'v_dot2_f32_bf16 {vr(ACC + 1 + 2 * k)}, {vr(b + k)}, {vr(40 + i)}, 0')
            else:
                a(f'v_dot2c_f32_bf16 {vr(ACC + 2 * k)}, {vr(b + k)}, {vr(28 + i)}')
                a(f'v_dot2c_f32_bf16 {vr(ACC + 1 + 2 * k)}, {vr(b + k)}, {vr(40 + i)}')
    for i in range(4):
        a(f'v_permlane32_swap_b32 {vr(ACC + i)}, {vr(ACC + 4 + i)}')
    for i in range(4):
        a(f'v_add_f32 {vr(ACC + i)}, {vr(ACC + i)}, {vr(ACC + 4 + i)}')
    for i in range(2):
        a(f'v_permlane16_swap_b32 {vr(ACC + i)}, {vr(ACC + 2 + i)}')
    for i in range(2):
        a(f'v_add_f32 {vr(ACC + i)}, {vr(ACC + i)}, {vr(ACC + 2 + i)}')
    for r in (ACC, ACC + 1):
        a(f'v_add_f32_dpp {vr(r)}, {vr(r)}, {vr(r)} row_ror:8 row_mask:0xf bank_mask:0xf')
    a('v_and_b32 v21, 1, v3')
    a('v_lshlrev_b32 v21, 1, v21')
    a('v_lshrrev_b32 v22, 1, v3')
    a('v_lshl_add_u32 v21, v22, 2, v21')
    a('v_and_b32 v22, 7, v1')
    a('v_lshl_add_u32 v21, v22, 3, v21')
    a('v_lshlrev_b32 v21, 3, v21')
    a(f's_mul_i32 {sA}, {sNT3}, 3072')
    a(f's_lshl_b32 {sB}, {sNV}, 6')
    a(f's_add_u32 {sA}, {sA}, {sB}')
    a(f's_lshl_b32 {sA}, {sA}, 3')
    a(f's_add_u32 {sA}, {sA}, {WS_MODG}')
    a(f'v_mov_b32 {vr(ACC + 2)}, {vr(ACC + 1)}')
    a(f'v_mov_b32 {vr(ACC + 1)}, {sT}')
    a(f'v_mov_b32 {vr(ACC + 3)}, {sT}')
    save_exec_mask(0x00ff00ff00ff00ff)
    bstore(ACC, 4, 21, WS, soff=sA, mods='sc1')
    restore_exec()
    stamp('r_pub')
    a(f's_branch {ldone}')
    a.label(lskip)
    precompute()
    a.label(ldone)


def role_xt():
    a('v_lshlrev_b32 v21, 10, v1')
    a(f's_lshl_b32 {sA}, {sJ}, 16')
    a(f's_lshl_b32 {sB}, {sX}, 7')
    a(f's_add_u32 {sA}, {sA}, {sB}')
    for i in range(8):
        bload(24 + 4 * i, 4, 21, U, imm=16 * i, soff=sA)
    precompute()
    for k in range(4):
        a(f'v_mov_b32 {vr(57 + 2 * k)}, {sT}')
    a('v_lshlrev_b32 v21, 3, v1')
    a(f's_lshl_b32 {sA}, {sX}, 19')
    a(f's_lshl_b32 {sB}, {sJ}, 9')
    a(f's_add_u32 {sA}, {sA}, {sB}')
    a(f's_add_u32 {sA}, {sA}, {WS_XT}')
    for p in range(32):
        if p % 4 == 0:
            a(f's_waitcnt vmcnt({7 - p // 4 + p})')
            if p == 0:
                stamp('r_loaded')
        t = 56 + 2 * (p % 4)
        a(f'v_mov_b32 {vr(t)}, {vr(24 + p)}')
        bstore(t, 2, 21, WS, soff=sA, mods='sc1')
        if p < 31:
            a(f's_add_u32 {sA}, {sA}, 16384')
    stamp('r_pub')


def phase_a():
    lk = 'L_roleK'; l56 = 'L_role56'; l7 = 'L_role7'; lj = 'L_A_join'
    stamp('entry')
    a(f's_cmp_lt_u32 {sWV}, 4')
    a(f's_cbranch_scc1 {lk}')
    a('s_setprio 2')
    a(f's_cmp_eq_u32 {sWV}, 7')
    a(f's_cbranch_scc1 {l7}')
    a(f's_cmp_ge_u32 {sWV}, 5')
    a(f's_cbranch_scc1 {l56}')
    role_stats()
    a(f's_branch {lj}')
    a.label(l56)
    role_mod()
    a(f's_branch {lj}')
    a.label(l7)
    role_xt()
    a(f's_branch {lj}')
    a.label(lk)
    role_k()
    a.label(lj)
    a('s_setprio 0')
    for k in range(4):
        a(f'v_mov_b32 {vr(24 + k)}, 0')
    a('v_lshrrev_b32 v21, 5, v0')
    a(f'v_mul_u32_u24 v21, {H_CH}, v21')
    a('v_and_b32 v22, 31, v0')
    a('v_lshl_add_u32 v21, v22, 4, v21')
    a(f'v_add_u32 v21, {L_H}, v21')
    a('v_subrev_u32 v22, 64, v0')
    a('v_lshrrev_b32 v23, 1, v22')
    a(f'v_mul_u32_u24 v23, {CP_R}, v23')
    a('v_and_b32 v22, 1, v0')
    a('v_lshl_add_u32 v23, v22, 4, v23')
    a(f'v_add_u32 v23, {L_COPY}, v23')
    a('v_cmp_gt_u32 vcc, 64, v0')
    a('v_cndmask_b32 v21, v23, v21, vcc')
    a(f'v_mul_u32_u24 v22, {KT_CH}, v22')
    a(f'v_add_u32 v22, {L_KT + 2 * KT_ZERO}, v22')
    lz = a.newlabel('L_z')
    a(f's_cmp_ge_u32 {sWV}, 2')
    a(f's_cbranch_scc1 {lz}')
    a('v_cmp_gt_u32 vcc, 80, v0')
    a(f's_and_saveexec_b64 s[{sX0}:{sX0 + 1}], vcc')
    a('ds_write_b128 v21, v[24:27]')
    a('ds_write_b16 v22, v24')
    restore_exec()
    a.label(lz)
    a('s_waitcnt lgkmcnt(0)')
    stamp('role_done')
    a('s_barrier')
    stamp('B1')
    lsk = a.newlabel('L_kmf')
    a(f's_cmp_ge_u32 {sWV}, 6')
    a(f's_cbranch_scc1 {lsk}')
    for ks in range(8):
        a(f'ds_read_b128 {vr(24 + 8 * ks, 4)}, {vr(KMA)} offset:{64 * ks}')
        a(f'ds_read_b128 {vr(28 + 8 * ks, 4)}, {vr(KMB)} offset:{64 * ks}')
    for ks in range(8):
        a(f's_waitcnt lgkmcnt({14 - 2 * ks})')
        acc = 88 + 4 * (ks & 1)
        mfma(acc, 24 + 8 * ks, 28 + 8 * ks, None if ks < 2 else acc)
    for k in range(4):
        a(f'v_add_f32 {vr(88 + k)}, {vr(88 + k)}, {vr(92 + k)}')
    a('v_cvt_pk_bf16_f32 v96, v88, v89')
    a('v_cvt_pk_bf16_f32 v97, v90, v91')
    a(f'ds_write_b16 {vr(KMD)}, v96')
    a(f'ds_write_b16_d16_hi {vr(KMD + 1)}, v96')
    a(f'ds_write_b16 {vr(KMD + 2)}, v97')
    a(f'ds_write_b16_d16_hi {vr(KMD + 3)}, v97')
    a('s_waitcnt lgkmcnt(0)')
    a.label(lsk)
    a('s_barrier')
    stamp('B2')
    for d in range(1, 12):
        a(f'ds_read_u16 {vr(24 + d)}, {vr(EXA + d)}')
    a(f's_lshr_b32 {sA}, {sWV}, 2')
    a(f's_mul_i32 {sA}, {sA}, {CP_CH}')
    a(f's_add_u32 {sA}, {sA}, {L_COPY + 32}')
    a('v_and_b32 v22, 255, v0')
    a(f'v_lshl_add_u32 v21, v22, 4, {sA}')
    a('s_waitcnt lgkmcnt(0)')
    for r in range(4):
        d = 36 + 4 * r
        for p in range(4):
            a(f'v_lshl_or_b32 {vr(d + p)}, {vr(24 + 5 + 2 * p - r)}, 16, {vr(24 + 4 + 2 * p - r)}')
        a(f'ds_write_b128 v21, {vr(d, 4)} offset:{r * CP_R}')
    if os.environ.get('SWZEARLY'):
        lsw = a.newlabel('L_swzfin')
        a(f's_cmp_ge_u32 {sWV}, 4')
        a(f's_cbranch_scc1 {lsw}')
        a('s_waitcnt vmcnt(0)')
        swz_finish()
        a.label(lsw)
    stamp('expanded')


def spin_guard(label_retry):
    a(f's_add_u32 {sSPIN}, {sSPIN}, 1')
    a(f's_cmp_lt_u32 {sSPIN}, {SPIN_MAX}')
    a(f's_cbranch_scc1 {label_retry}')


def tags_check(tags, lo, hi):
    a(f'v_min3_u32 {vr(lo)}, {vr(tags[0])}, {vr(tags[1])}, {vr(tags[2])}')
    a(f'v_max3_u32 {vr(hi)}, {vr(tags[0])}, {vr(tags[1])}, {vr(tags[2])}')
    k = 3
    while k < len(tags):
        t2 = tags[k + 1] if k + 1 < len(tags) else tags[k]
        a(f'v_min3_u32 {vr(lo)}, {vr(lo)}, {vr(tags[k])}, {vr(t2)}')
        a(f'v_max3_u32 {vr(hi)}, {vr(hi)}, {vr(tags[k])}, {vr(t2)}')
        k += 2
    a(f'v_cmp_ne_u32 vcc, {sT}, {vr(lo)}')
    a(f'v_cmp_ne_u32 s[{sX0}:{sX0 + 1}], {sT}, {vr(hi)}')
    a('s_nop 0')
    a(f's_or_b64 vcc, vcc, s[{sX0}:{sX0 + 1}]')


def phase_b():
    a(f's_lshl_b32 {sA}, {sWV}, 12')
    a(f'v_add_u32 v21, {sA}, {vr(vL16)}')
    a('v_lshrrev_b32 v14, 3, v1')
    a('v_cmp_gt_u32 vcc, 6, v14')
    a('v_cndmask_b32 v14, 0, v14, vcc') if False else None
    a('v_mov_b32 v15, 0')
    a('v_cndmask_b32 v14, v15, v14, vcc')
    a('v_lshrrev_b32 v15, 1, v14')
    a('v_lshlrev_b32 v15, 9, v15')
    a('v_and_b32 v14, 1, v14')
    a('v_add_u32 v15, v15, v14')
    a(f'v_add_u32 v15, {sCH0}, v15')
    a('v_and_b32 v14, 7, v1')
    a('v_mul_u32_u24 v14, 3072, v14')
    a('v_add_u32 v15, v15, v14')
    a('v_lshlrev_b32 v22, 3, v15')
    a(f's_mov_b32 {sB}, {WS_STATS}')
    a('v_lshrrev_b32 v20, 1, v21')
    a(f's_lshl_b32 {sD}, {sX}, 5'); a(f's_add_u32 {sD}, {sD}, {sJ}'); a(f's_lshl_b32 {sD}, {sD}, 14')
    a(f's_add_u32 {sD}, {sD}, {WS_XT}')
    if not NOSCOUT:
        lsk = a.newlabel('L_scoutskip'); lsp = a.newlabel('L_scout'); lso = a.newlabel('L_scoutok')
        a(f's_cmp_lg_u32 {sWV}, 0')
        a(f's_cbranch_scc1 {lsk}')
        a('v_lshlrev_b32 v24, 7, v1')
        a('v_and_b32 v25, 31, v1')
        a('v_lshlrev_b32 v25, 9, v25')
        a(f's_mov_b32 {sSPIN}, 0')
        a.label(lsp)
        for i in range(4):
            a(f's_mov_b32 {sC}, {WS_STATS + 8192 * i}')
            bload(28 + i, 1, 24, WS, imm=4, soff=sC, mods='sc1')
        bload(32, 1, 25, WS, imm=4, soff=sD, mods='sc1')
        a(f's_mov_b32 {sC}, {WS_MODG}')
        bload(33, 1, 22, WS, imm=4, soff=sC, mods='sc1')
        a('s_waitcnt vmcnt(0)')
        tags_check([28, 29, 30, 31, 32, 33], 34, 35)
        a(f's_cbranch_vccz {lso}')
        spin_guard(lsp)
        a.label(lso)
        a.label(lsk)
        a('s_barrier')
        stamp('scout')
    a(f's_mov_b32 {sSPIN}, 0')
    lp = 'L_S1_poll'; lok = 'L_S1_ok'
    a.label(lp)
    for i in range(4):
        bload(44 + 4 * i, 4, 21, WS, imm=1024 * i, soff=sB, mods='sc1')
        bload(88 + 2 * i, 2, 20, WS, imm=512 * i, soff=sD, mods='sc1')
    a(f's_mov_b32 {sC}, {WS_MODG}')
    bload(60, 2, 22, WS, soff=sC, mods='sc1')
    a('s_waitcnt vmcnt(0)')
    tags = [45, 47, 49, 51, 53, 55, 57, 59, 61, 89, 91, 93, 95]
    if 'noxt' in XP: tags = [45, 47, 49, 51, 53, 55, 57, 59, 61]
    if 'nomod' in XP: tags = [45, 47, 49, 51, 53, 55, 57, 59, 89, 91, 93, 95]
    if 'nostat' in XP: tags = [61, 89, 91, 93, 95]
    tags_check(tags, 84, 85)
    a(f's_cbranch_vccz {lok}')
    spin_guard(lp)
    a.label(lok)
    stamp('S1ok')
    if os.environ.get('SWZLATE'):
        lsw = a.newlabel('L_swzdma')
        a(f's_cmp_ge_u32 {sWV}, 4')
        a(f's_cbranch_scc1 {lsw}')
        a('v_mov_b32 v14, v102')
        swz_dma()
        a.label(lsw)
    a('v_lshrrev_b32 v23, 2, v21')
    a(f'v_add_u32 v23, {L_XC}, v23')
    for i in range(4):
        a(f'ds_write_b32 v23, {vr(88 + 2 * i)} offset:{256 * i}')
    a('v_add_f32_dpp v60, v60, v60 quad_perm:[1,0,3,2] row_mask:0xf bank_mask:0xf')
    a('v_add_f32_dpp v60, v60, v60 quad_perm:[2,3,0,1] row_mask:0xf bank_mask:0xf')
    a('v_add_f32_dpp v60, v60, v60 row_half_mirror row_mask:0xf bank_mask:0xf')
    for i, dst in enumerate((60, 62, 64, 66, 68, 70)):
        a(f'v_readlane_b32 s{64 + i}, v60, {8 * i}')
    for i, dst in enumerate((60, 62, 64, 66, 68, 70)):
        a(f'v_mov_b32 {vr(dst)}, s{64 + i}')
    a('v_add_f32 v64, 1.0, v64'); a('v_add_f32 v66, 1.0, v66')
    a(f's_lshr_b32 {sHI}, {sWV}, 2'); a(f's_and_b32 {sLO}, {sWV}, 3')
    a(f's_lshl_b32 {sA}, {sCH0}, 1')
    a(f'v_mov_b32 v77, {sA}')
    bload(76, 1, 77, DSK)
    for i in range(4):
        r, mr = 44 + 4 * i, 46 + 4 * i
        a(f'v_lshlrev_b32 v80, 16, {vr(88 + 2 * i)}')
        a(f'v_and_b32 v81, 0xffff0000, {vr(88 + 2 * i)}')
        a(f'v_fma_f32 v80, v80, {vr(r)}, -{vr(mr)}')
        a(f'v_fma_f32 v81, v81, {vr(r)}, -{vr(mr)}')
        a('v_fma_f32 v80, v80, v64, v60')
        a('v_fma_f32 v81, v81, v66, v62')
        a(f'v_cvt_pk_bf16_f32 {vr(96 + i)}, v80, v81')
    a('v_lshrrev_b32 v23, 3, v21')
    a(f'v_add_u32 v23, {L_H + 512}, v23')
    for i in range(4):
        a(f'ds_write_b16 v23, {vr(96 + i)} offset:{128 * i}')
        a(f'ds_write_b16_d16_hi v23, {vr(96 + i)} offset:{H_CH + 128 * i}')
    a(f's_mul_i32 {sA}, {sHI}, {H_CH}')
    a(f's_lshl_b32 {sB}, {sLO}, 6')
    a(f's_sub_u32 {sA}, {sA}, {sB}')
    a(f's_add_u32 {sA}, {sA}, {L_H + 480 - 256}')
    a('v_lshlrev_b32 v21, 5, v2')
    a('v_lshl_add_u32 v21, v3, 4, v21')
    a(f'v_add_u32 v21, {sA}, v21')
    a(f's_mul_i32 {sA}, {sHI}, {CP_CH}')
    a(f's_add_u32 {sA}, {sA}, {sB}')
    a(f's_add_u32 {sA}, {sA}, {L_COPY + 64 - 8}')
    a('v_lshrrev_b32 v22, 2, v2')
    a(f'v_mul_u32_u24 v22, {CP_R}, v22')
    a('v_and_b32 v23, 3, v2')
    a('v_lshl_add_u32 v22, v23, 3, v22')
    a('v_lshlrev_b32 v23, 4, v3')
    a('v_sub_u32 v22, v22, v23')
    a(f'v_add_u32 v22, {sA}, v22')
    a(f's_lshl_b32 {sA}, {sWV}, 13')
    a(f'v_add_u32 v23, {sA}, {vr(vL16)}')
    mod_final_issue()
    if not os.environ.get('SWZEARLY') and not os.environ.get('SWZLATE'):
        lsw = a.newlabel('L_swzfin')
        a(f's_cmp_ge_u32 {sWV}, 4')
        a(f's_cbranch_scc1 {lsw}')
        swz_finish()
        a.label(lsw)
    a('s_waitcnt lgkmcnt(0)')
    a('s_barrier')
    stamp('B3')
    conv_touches()
    BF = 96; AF = 160; ACC = 224

    def ldA(i):
        r = AF + 4 * i
        a(f'ds_read_b64_tr_b16 {vr(r, 2)}, v22 offset:{256 * i + 8}')
        a(f'ds_read_b64_tr_b16 {vr(r + 2, 2)}, v22 offset:{256 * i}')

    def ldB(u):
        a(f'ds_read_b128 {vr(BF + 4 * u, 4)}, v21 offset:{256 * u}')
    seq = ['A0', 'B1', 'B3', 'B5', 'B7', 'B9', 'B11', 'B13', 'B15', 'A1', 'B0', 'B2', 'B4', 'B6', 'B8', 'B10', 'B12', 'B14'] + \
          [f'A{i}' for i in range(2, 16)]
    pos = {}
    n = 0
    for s_ in seq:
        n += 2 if s_[0] == 'A' else 1
        pos[s_] = n
    total = n
    issued = 0
    it = iter(seq)

    def issue_until(cnt):
        nonlocal issued
        while issued < min(cnt, total):
            s_ = next(it)
            if s_[0] == 'A':
                ldA(int(s_[1:])); issued += 2
            else:
                ldB(int(s_[1:])); issued += 1
    writes = 0
    issue_until(12)
    order = []
    stream = []
    q = []
    for s_ in seq:
        q += [s_] * (2 if s_[0] == 'A' else 1)
    ops = list(q[:issued])
    for i in range(16):
        nmin = i // 2 if i >= 1 else 0
        for nn in range(nmin, 8):
            u = 2 * nn - i + 1
            needs = [f'A{i}', f'B{u}']
            last_needed = max(idx for idx, o in enumerate(q) if o in needs)
            tgt = max(last_needed + 1, min(total, len([o for o in ops if o != 'W']) + 2))
            while len([o for o in ops if o != 'W']) < tgt:
                before = issued
                issue_until(issued + 1)
                ops += q[before:issued]
            lastidx = max(idx for idx, o in enumerate(ops) if o in needs)
            pend = len(ops) - 1 - lastidx
            key = ('wait', pend)
            if not hasattr(phase_b, 'done') or True:
                done_upto = getattr(phase_b, 'done_upto', -1)
                if lastidx > done_upto:
                    a(f's_waitcnt lgkmcnt({min(pend, 15)})')
                    phase_b.done_upto = lastidx if pend <= 15 else len(ops) - 1 - 15
            mfma(ACC + 4 * nn, AF + 4 * i, BF + 4 * u, None if i == 0 else ACC + 4 * nn)
        if os.environ.get('SWZLATE') and i == int(os.environ['SWZLATE']):
            lsw = a.newlabel('L_swzfin')
            a(f's_cmp_ge_u32 {sWV}, 4')
            a(f's_cbranch_scc1 {lsw}')
            a('s_waitcnt vmcnt(0)')
            swz_finish()
            a.label(lsw)
        if i >= 3 and i % 2 == 1:
            nn = (i - 1) // 2 - 1
            a(f'ds_write_b128 v23, {vr(ACC + 4 * nn, 4)} offset:{1024 * nn}')
            ops.append('W')
    a(f'ds_write_b128 v23, {vr(ACC + 28, 4)} offset:{1024 * 7}')
    mod_final_finish()
    a('s_waitcnt lgkmcnt(0)')
    a('s_barrier')
    stamp('B4')

    a(f's_lshl_b32 {sA}, {sWV}, 10')
    a(f'v_add_u32 v23, {sA}, {vr(vL16)}')
    for c in range(2):
        for qq in range(4):
            a(f'ds_read_b128 {vr(96 + 16 * c + 4 * qq, 4)}, v23 offset:{32768 * c + 8192 * qq}')
    a('v_lshlrev_b32 v21, 4, v2')
    a('v_lshl_add_u32 v21, v3, 2, v21')
    a(f's_lshl_b32 {sA}, {sWV}, 8')
    a(f'v_add_u32 v21, {sA}, v21')
    a('v_lshlrev_b32 v22, 2, v21')
    a('v_lshlrev_b32 v24, 1, v21')
    a(f'ds_read_b128 v[128:131], v22 offset:{L_XC}') if L_XC < 65536 else None
    if L_XC >= 65536:
        a(f'v_add_u32 v22, {L_XC}, v22')
        a('ds_read_b128 v[128:131], v22')
    a(f'v_add_u32 v24, {L_H + 512}, v24')
    a('ds_read_b64 v[136:137], v24')
    a(f'ds_read_b64 v[138:139], v24 offset:{H_CH}')
    a('v_lshrrev_b32 v25, 1, v2')
    a('v_lshlrev_b32 v25, 15, v25')
    a('v_and_b32 v26, 1, v2')
    a('v_lshl_add_u32 v25, v26, 5, v25')
    a('v_and_b32 v26, 1, v3')
    a('v_lshl_add_u32 v25, v26, 6, v25')
    a('v_lshrrev_b32 v26, 1, v3')
    a('v_lshl_add_u32 v25, v26, 4, v25')
    a(f's_lshl_b32 {sA}, {sWV}, 18')
    a(f's_lshl_b32 {sB}, {sCH0}, 6')
    a(f's_add_u32 {sA}, {sA}, {sB}')
    a(f's_add_u32 {sE}, {sA}, {WS_X2B}')
    a('s_waitcnt vmcnt(0)')
    a('v_lshlrev_b32 v77, 16, v76')
    a('v_and_b32 v76, 0xffff0000, v76')
    a('s_waitcnt lgkmcnt(0)')
    for c in range(2):
        y = 96 + 16 * c
        for k in range(0, 4, 2):
            a(f'v_pk_add_f32 {vr(y + k, 2)}, {vr(y + k, 2)}, {vr(y + 4 + k, 2)}')
            a(f'v_pk_add_f32 {vr(y + 8 + k, 2)}, {vr(y + 8 + k, 2)}, {vr(y + 12 + k, 2)}')
            a(f'v_pk_add_f32 {vr(y + k, 2)}, {vr(y + k, 2)}, {vr(y + 8 + k, 2)}')
        dsk = 77 if c == 0 else 76
        ga = 68 if c == 0 else 70
        for k in range(4):
            hreg = 136 + 2 * c + (k >> 1)
            if k & 1:
                a(f'v_and_b32 v26, 0xffff0000, {vr(hreg)}')
            else:
                a(f'v_lshlrev_b32 v26, 16, {vr(hreg)}')
            a(f'v_fma_f32 {vr(y + k)}, v26, {vr(dsk)}, {vr(y + k)}')
            if c == 0:
                a(f'v_lshlrev_b32 v27, 16, {vr(128 + k)}')
            else:
                a(f'v_and_b32 v27, 0xffff0000, {vr(128 + k)}')
            a(f'v_fma_f32 {vr(y + k)}, {vr(ga)}, {vr(y + k)}, v27')
        a(f'v_cvt_pk_bf16_f32 {vr(28 + 2 * c)}, {vr(y)}, {vr(y + 1)}')
        a(f'v_cvt_pk_bf16_f32 {vr(29 + 2 * c)}, {vr(y + 2)}, {vr(y + 3)}')
    a('v_permlane16_swap_b32 v28, v30')
    a('v_permlane16_swap_b32 v29, v31')
    bstore(28, 4, 25, WS, soff=sE, mods='sc1')
    a('s_waitcnt vmcnt(0)')
    stamp('x2stored')
    a('s_barrier')
    set_flag(WS_F2, 's2')


def mod_final_issue():
    ls = a.newlabel('L_modf')
    a(f's_cmp_lg_u32 {sWV}, 7')
    a(f's_cbranch_scc1 {ls}')
    a('v_lshrrev_b32 v14, 3, v1')
    a(f's_mul_i32 {sA}, s2, 12')
    a(f'v_add_u32 v14, {sA}, v14')
    a('v_and_b32 v15, 7, v1')
    a('v_mul_u32_u24 v15, 3072, v15')
    a('v_add_u32 v15, v15, v14')
    a('v_lshlrev_b32 v24, 3, v15')
    a('v_lshrrev_b32 v14, 3, v1')
    a('v_and_b32 v15, 3, v14')
    a('v_sub_u32 v14, v15, v14')
    a('v_add_u32 v14, 8, v14')
    a('v_lshl_add_u32 v25, v14, 3, v24')
    a(f's_mov_b32 {sC}, {WS_MODG}')
    bload(26, 2, 24, WS, soff=sC, mods='sc1')
    bload(28, 2, 25, WS, soff=sC, mods='sc1')
    a.label(ls)


def mod_final_finish():
    ls = a.newlabel('L_modf'); lp = a.newlabel('L_modp'); lok = a.newlabel('L_modok')
    a(f's_cmp_lg_u32 {sWV}, 7')
    a(f's_cbranch_scc1 {ls}')
    a('s_waitcnt vmcnt(0)')
    tags_check([27, 29, 29], 30, 31)
    a(f's_cbranch_vccz {lok}')
    a(f's_mov_b32 {sSPIN}, 0')
    a.label(lp)
    a(f's_mov_b32 {sC}, {WS_MODG}')
    bload(26, 2, 24, WS, soff=sC, mods='sc1')
    bload(28, 2, 25, WS, soff=sC, mods='sc1')
    a('s_waitcnt vmcnt(0)')
    tags_check([27, 29, 29], 30, 31)
    a(f's_cbranch_vccz {lok}')
    spin_guard(lp)
    a.label(lok)
    for r in (26, 28):
        a(f'v_add_f32_dpp {vr(r)}, {vr(r)}, {vr(r)} quad_perm:[1,0,3,2] row_mask:0xf bank_mask:0xf')
        a(f'v_add_f32_dpp {vr(r)}, {vr(r)}, {vr(r)} quad_perm:[2,3,0,1] row_mask:0xf bank_mask:0xf')
        a(f'v_add_f32_dpp {vr(r)}, {vr(r)}, {vr(r)} row_half_mirror row_mask:0xf bank_mask:0xf')
    a('v_lshrrev_b32 v14, 3, v1')
    a('v_lshlrev_b32 v14, 2, v14')
    a(f's_mul_i32 {sA}, s2, 48')
    a(f's_add_u32 {sA}, {sA}, {WS_MODF}')
    save_exec_mask(0x0101010101010101)
    bstore(26, 1, 14, WS, soff=sA, mods='sc1')
    a('s_mov_b32 exec_hi, 0')
    bstore(28, 1, 14, WS, imm=32, soff=sA, mods='sc1')
    restore_exec()
    a.label(ls)


def wfrags(dst, base, n, nt_sgpr=None, stride=16, first=0):
    if nt_sgpr is None:
        a(f's_lshl_b32 {sA}, {sCQ}, 3')
        a(f's_add_u32 {sA}, {sA}, {sWV}')
    else:
        a(f's_mov_b32 {sA}, {nt_sgpr}')
    a(f's_mul_i32 {sA}, {sA}, {stride * 1024}')
    a(f's_add_u32 {sA}, {sA}, {base + first * 1024}')
    for k in range(n):
        if k and k % 4 == 0:
            a(f's_add_u32 {sA}, {sA}, 4096')
        bload(dst + 4 * k, 4, vL16, WS, imm=(k % 4) * 1024, soff=sA, mods='sc1')


def wfrag_base(sreg, base, nt_sgpr=None, stride=16, first=0):
    if nt_sgpr is None:
        a(f's_lshl_b32 {sreg}, {sCQ}, 3')
        a(f's_add_u32 {sreg}, {sreg}, {sWV}')
    else:
        a(f's_mov_b32 {sreg}, {nt_sgpr}')
    a(f's_mul_i32 {sreg}, {sreg}, {stride * 1024}')
    a(f's_add_u32 {sreg}, {sreg}, {base + first * 1024}')


def wfrag_one(dst, sreg, k):
    if k and k % 4 == 0:
        a(f's_add_u32 {sreg}, {sreg}, 4096')
    bload(dst + 4 * k, 4, vL16, WS, imm=(k % 4) * 1024, soff=sreg, mods='sc1')


def not_poller(fn):
    l = a.newlabel('L_np')
    a(f's_cmp_eq_u32 {sWV}, 7')
    a(f's_cbranch_scc1 {l}')
    fn()
    a.label(l)


def only_poller(fn):
    l = a.newlabel('L_op')
    a(f's_cmp_lg_u32 {sWV}, 7')
    a(f's_cbranch_scc1 {l}')
    fn()
    a.label(l)


def pretouch(which, dst=31):
    if NOFAST or os.environ.get('NOTOUCH'):
        return
    a('v_lshrrev_b32 v14, 2, v1')
    a('v_and_b32 v15, 3, v1')
    a('v_lshlrev_b32 v15, 7, v15')
    if which in ('h1', 'x1'):
        if which == 'h1':
            a('v_mul_u32_u24 v14, 768, v14')
            a('v_add_u32 v14, v14, v15')
            a(f's_mul_i32 {sA}, {sT32}, 49152'); a(f's_mul_i32 {sB}, {sCQ}, {16 * 768}'); a(f's_add_u32 {sA}, {sA}, {sB}')
            a(f's_add_u32 {sA}, {sA}, {WS_H1 + 128}')
        else:
            a('v_lshl_add_u32 v14, v14, 9, v15')
            a(f's_lshl_b32 {sA}, {sT32}, 15'); a(f's_lshl_b32 {sC}, {sCQ}, 13'); a(f's_add_u32 {sA}, {sA}, {sC}')
            a(f's_add_u32 {sA}, {sA}, {WS_X1}')
        bload(dst, 1, 14, WS, soff=sA)
        return
    else:
        a('v_lshl_add_u32 v14, v14, 9, v15')
        a(f's_sub_u32 {sA}, {sNT3}, {sWV}')
        a(f's_lshl_b32 {sA}, {sA}, 10')
        a(f's_lshl_b32 {sB}, {sRB}, 1'); a(f's_lshr_b32 {sC}, {sWV}, 1'); a(f's_add_u32 {sB}, {sB}, {sC}')
        a(f's_mul_i32 {sB}, {sB}, {86 * 1024}'); a(f's_add_u32 {sA}, {sA}, {sB}')
        a(f's_and_b32 {sB}, {sWV}, 1'); a(f's_lshl_b32 {sC}, {sB}, 13'); a(f's_add_u32 {sA}, {sA}, {sC}')
        a(f's_add_u32 {sA}, {sA}, {WS_H3}')
        a(f's_movk_i32 {sC}, {63 * 128}')
        a(f's_cmp_eq_u32 {sB}, 1')
        a(f's_cselect_b32 {sB}, {23 * 128}, {sC}')
        a(f'v_min_u32 v14, {sB}, v14')
        a(f's_cmp_lt_u32 {sWV}, 4')
    a('s_cselect_b64 exec, -1, 0')
    bload(dst, 1, 14, WS, soff=sA)
    a('s_mov_b64 exec, -1')


def conv_touches():
    if os.environ.get('NOCT'):
        return
    a('v_lshlrev_b32 v14, 7, v1')
    a(f's_sub_u32 {sC}, {sWV}, 5')
    a(f's_lshl_b32 {sA}, {sJ}, 14'); a(f's_lshl_b32 {sB}, {sC}, 13'); a(f's_add_u32 {sA}, {sA}, {sB}')
    a(f's_cmp_lt_u32 {sC}, 2')
    a('s_cselect_b64 exec, -1, 0')
    bload(15, 1, 14, W1, soff=sA)
    a('s_mov_b64 exec, -1')


def wtouch(kind, dst):
    if os.environ.get('NOWT'):
        return
    a('v_lshlrev_b32 v14, 7, v1')
    a(f's_mul_i32 {sA}, {sJ}, {43 * 1024}')
    a(f's_sub_u32 {sB}, {sWV}, 2'); a(f's_lshl_b32 {sB}, {sB}, 13'); a(f's_add_u32 {sA}, {sA}, {sB}')
    if kind == 'w23':
        a(f's_add_u32 {sA}, {sA}, {WS_W3S}')
        a(f's_lshl_b32 {sB}, {sJ}, 14'); a(f's_lshl_b32 {sC}, {sWV}, 13'); a(f's_add_u32 {sB}, {sB}, {sC}')
        a(f's_add_u32 {sB}, {sB}, {WS_W2S}')
        a(f's_cmp_lt_u32 {sWV}, 2')
        a(f's_cselect_b32 {sA}, {sB}, {sA}')
        bload(dst, 1, 14, WS, soff=sA)
    else:
        a(f's_add_u32 {sA}, {sA}, {WS_W4S}')
        a(f's_cmp_ge_u32 {sWV}, 2')
        a('s_cselect_b64 exec, -1, 0')
        bload(dst, 1, 14, WS, soff=sA)
        a('s_mov_b64 exec, -1')


def set_flag(off, idx_sgpr, cluster=False):
    a(f's_lshl_b32 {sA}, {idx_sgpr}, 6')
    a(f's_add_u32 {sA}, {sA}, {off}')
    a(f'v_mov_b32 v14, {sT}')
    a('v_mov_b32 v15, 0')
    a(f's_cmp_eq_u32 {sWV}, 0')
    if cluster and not NOFAST:
        a(f's_cselect_b64 s[{sX0}:{sX0 + 1}], 1, 0')
        a(f's_and_b64 exec, s[{sX0}:{sX0 + 1}], s[{mFA}:{mFA + 1}]')
        bstore(14, 1, 15, WS, soff=sA)
        a(f's_and_b64 exec, s[{sX0}:{sX0 + 1}], s[{mSL}:{mSL + 1}]')
        bstore(14, 1, 15, WS, soff=sA, mods='sc1')
    else:
        a('s_cselect_b64 exec, 1, 0')
        bstore(14, 1, 15, WS, soff=sA, mods='sc1')
    a('s_mov_b64 exec, -1')


PV = 116


def poll(off, kind):
    lf = a.newlabel('L_pollskip'); lp = a.newlabel('L_poll'); lok = a.newlabel('L_pollok')
    a(f's_cmp_lg_u32 {sWV}, 7')
    a(f's_cbranch_scc1 {lf}')
    if kind == 'all':
        a(f'v_lshlrev_b32 {vr(PV)}, 6, v1')
    elif kind == 'own':
        a(f'v_and_b32 {vr(PV)}, 7, v1')
        a(f's_lshl_b32 {sA}, {sRB}, 3')
        a(f'v_add_u32 {vr(PV)}, {sA}, {vr(PV)}')
        a(f'v_lshlrev_b32 {vr(PV)}, 6, {vr(PV)}')
    else:
        a(f'v_min_u32 {vr(PV)}, 11, v1')
        a(f's_lshl_b32 {sA}, {sT32}, 2')
        a(f's_sub_u32 {sB}, {sA}, 4')
        a(f'v_add_u32 {vr(PV)}, {sB}, {vr(PV)}')
        a(f'v_cmp_gt_u32 vcc, 256, {vr(PV)}')
        a(f'v_mov_b32 {vr(PV + 1)}, {sA}')
        a(f'v_cndmask_b32 {vr(PV)}, {vr(PV + 1)}, {vr(PV)}, vcc')
        a(f'v_lshlrev_b32 {vr(PV)}, 6, {vr(PV)}')
    a(f's_mov_b32 {sSPIN}, 0')
    a.label(lp)
    if kind == 'all':
        for i in range(4):
            a(f's_mov_b32 {sB}, {off + 4096 * i}')
            bload(PV + 2 + i, 1, PV, WS, soff=sB, mods='sc1')
        a('s_waitcnt vmcnt(0)')
        tags_check([PV + 2, PV + 3, PV + 4, PV + 5], PV + 6, PV + 7)
    else:
        a(f's_mov_b32 {sB}, {off}')
        bload(PV + 2, 1, PV, WS, soff=sB, mods='sc1')
        a('s_waitcnt vmcnt(0)')
        a(f'v_cmp_ne_u32 vcc, {sT}, {vr(PV + 2)}')
        a('s_nop 0')
    a(f's_cbranch_vccz {lok}')
    spin_guard(lp)
    a.label(lok)
    a.label(lf)
    a('s_barrier')


def lane_masks():
    a('v_and_b32 v15, 3, v2')
    a(f'v_cmp_eq_u32 s[{mK1}:{mK1 + 1}], 1, v15')
    a(f'v_cmp_eq_u32 s[{mK2}:{mK2 + 1}], 2, v15')
    a(f'v_cmp_eq_u32 s[{mK3}:{mK3 + 1}], 3, v15')
    a('v_lshrrev_b32 v14, 2, v2')
    a(f'v_cmp_eq_u32 s[{mDG}:{mDG + 1}], v14, v3')


def stats_publish(addr, S, Q, t0):
    a(f'v_cndmask_b32 {vr(t0 + 1)}, {vr(Q)}, {vr(Q + 1)}, s[{mK1}:{mK1 + 1}]')
    a(f'v_mov_b32 {vr(t0)}, {vr(S)}')
    a(f'v_cndmask_b32 {vr(t0 + 1)}, {vr(t0 + 1)}, {vr(Q + 2)}, s[{mK2}:{mK2 + 1}]')
    a(f'v_cndmask_b32 {vr(t0 + 1)}, {vr(t0 + 1)}, {vr(Q + 3)}, s[{mK3}:{mK3 + 1}]')
    save_exec_mask(f's[{mDG}:{mDG + 1}]')
    a(f'ds_write_b64 {vr(addr)}, {vr(t0, 2)}')
    restore_exec()


def stats_finish(S, Q, m, r):
    a(f'v_mul_f32 {vr(m)}, {fconst(1.0 / 512)}, {vr(S)}')
    a(f'v_mul_f32 {vr(r)}, {fconst(1.0 / 512)}, {vr(Q)}')
    a(f'v_fma_f32 {vr(r)}, -{vr(m)}, {vr(m)}, {vr(r)}')
    a(f'v_max_f32 {vr(r)}, 0, {vr(r)}')
    a(f'v_add_f32 {vr(r)}, {fconst(1e-5)}, {vr(r)}')
    a(f'v_rsq_f32 {vr(r)}, {vr(r)}')


GC0 = -2.0 * 1.4426950408889634 * 0.7978845608028654
GC1 = GC0 * 0.044715


def gelu_consts(gk):
    for r, c in ((gk, GC0), (gk + 2, GC1), (gk + 4, 1.0)):
        a(f'v_mov_b32 {vr(r)}, {fconst(c)}')


def gelu(regs, tmp, gk):
    n = len(regs)
    for i in range(0, n, 2):
        x = regs[i]
        t = tmp + 2 * ((i // 2) & 1)
        a(f'v_pk_mul_f32 {vr(t, 2)}, {vr(x, 2)}, {vr(x, 2)}')
        a(f'v_pk_fma_f32 {vr(t, 2)}, {vr(t, 2)}, {vr(gk + 2, 2)}, {vr(gk, 2)} op_sel_hi:[1,0,0]')
        a(f'v_pk_mul_f32 {vr(t, 2)}, {vr(t, 2)}, {vr(x, 2)}')
        a(f'v_exp_f32 {vr(t)}, {vr(t)}')
        a(f'v_exp_f32 {vr(t + 1)}, {vr(t + 1)}')
        a(f'v_pk_add_f32 {vr(t, 2)}, {vr(t, 2)}, {vr(gk + 4, 2)} op_sel_hi:[1,0]')
        a(f'v_rcp_f32 {vr(t)}, {vr(t)}')
        a(f'v_rcp_f32 {vr(t + 1)}, {vr(t + 1)}')
        a(f'v_pk_mul_f32 {vr(x, 2)}, {vr(x, 2)}, {vr(t, 2)}')


def ln_apply(acc, cs, m, r, tmp):
    for k in (0, 2):
        a(f'v_pk_fma_f32 {vr(acc + k, 2)}, {vr(cs + k, 2)}, {vr(m, 2)}, {vr(acc + k, 2)} op_sel_hi:[1,0,1] neg_lo:[0,1,0] neg_hi:[0,1,0]')
        a(f'v_pk_mul_f32 {vr(acc + k, 2)}, {vr(acc + k, 2)}, {vr(r, 2)} op_sel_hi:[1,0]')


def pack_swap(dst, t0, t1):
    a(f'v_cvt_pk_bf16_f32 {vr(dst)}, {vr(t0)}, {vr(t0 + 1)}')
    a(f'v_cvt_pk_bf16_f32 {vr(dst + 2)}, {vr(t1)}, {vr(t1 + 1)}')
    a(f'v_cvt_pk_bf16_f32 {vr(dst + 1)}, {vr(t0 + 2)}, {vr(t0 + 3)}')
    a(f'v_cvt_pk_bf16_f32 {vr(dst + 3)}, {vr(t1 + 2)}, {vr(t1 + 3)}')
    a(f'v_permlane16_swap_b32 {vr(dst)}, {vr(dst + 2)}')
    a(f'v_permlane16_swap_b32 {vr(dst + 1)}, {vr(dst + 3)}')


ONES = 16
CS1 = 20


H1A, H1B = 12, 13
mZH = 70


def h1_addresses():
    a('v_lshrrev_b32 v14, 5, v1')
    a('v_mul_u32_u24 v14, 768, v14')
    a('v_and_b32 v15, 31, v1')
    a('v_lshl_add_u32 v14, v15, 4, v14')
    a(f's_mul_i32 {sA}, {sT32}, {64 * 768}')
    a(f's_lshl_b32 {sB}, {sCQ}, 3'); a(f's_add_u32 {sB}, {sB}, {sWV}'); a(f's_mul_i32 {sB}, {sB}, {2 * 768}')
    a(f's_add_u32 {sA}, {sA}, {sB}')
    a(f's_add_u32 {sA}, {sA}, {WS_H1 + 128}')
    a(f'v_add_u32 {vr(H1A)}, {sA}, v14')
    a(f's_cmp_eq_u32 {sT32}, 0')
    a(f's_cselect_b32 {sA}, {(-32) & 0xffffffff}, {(-(49152 - 512)) & 0xffffffff}') if False else None
    a(f's_mov_b32 {sA}, {hex((-(49152 - 512)) & 0xffffffff)}')
    a(f's_cmp_eq_u32 {sT32}, 0')
    a(f's_cselect_b32 {sA}, -32, {sA}')
    a(f's_cselect_b32 s{mZH}, 3, 0')
    a(f's_mov_b32 {sB}, {49152 - 512}')
    a(f's_cmp_eq_u32 {sT32}, 63')
    a(f's_cselect_b32 {sB}, 32, {sB}')
    a(f's_cselect_b32 s{mZH}, 0xc0000000, s{mZH}')
    a(f's_mov_b32 s{mZH + 1}, s{mZH}')
    a('v_cmp_gt_u32 vcc, 2, v15')
    a(f'v_mov_b32 v14, {sB}')
    a(f'v_mov_b32 v15, {sA}')
    a('v_cndmask_b32 v14, v14, v15, vcc')
    a(f'v_add_u32 {vr(H1B)}, {vr(H1A)}, v14')
    a('v_mov_b32 v31, 0')


def phase3():
    W1R, W2R = 128, 192
    W1o = W1
    lane_masks()
    for k in range(4):
        a(f'v_mov_b32 {vr(ONES + k)}, 0x3f803f80')
    a(f's_and_b32 {sLO}, {sWV}, 1')
    a(f's_lshr_b32 {sHI}, {sWV}, 1')
    a('v_lshrrev_b32 v24, 5, v1')
    a('v_lshlrev_b32 v24, 5, v24')
    a(f'v_xor_b32 v24, v24, {vr(vL16)}')
    a('v_lshrrev_b32 v14, 2, v2')
    a('v_lshl_add_u32 v25, v3, 3, v14')
    a('v_lshlrev_b32 v25, 6, v25')
    a('v_and_b32 v14, 3, v2')
    a('v_lshl_add_u32 v25, v14, 3, v25')
    a('v_and_b32 v14, 1, v3')
    a(f'v_xor_b32 v14, {sLO}, v14')
    a('v_lshl_add_u32 v25, v14, 5, v25')
    a(f's_lshl_b32 {sA}, {sHI}, 13')
    a(f'v_add_u32 v25, {sA}, v25')
    a(f's_lshl_b32 {sA}, {sHI}, 9')
    a(f's_add_u32 {sA}, {sA}, {L_CB}')
    a(f'v_lshl_add_u32 v26, v3, 5, {sA}')
    a(f's_lshl_b32 {sA}, {sWV}, 7')
    a(f's_add_u32 {sA}, {sA}, {L_ST}')
    a(f'v_lshl_add_u32 v27, v2, 3, {sA}')
    a(f's_lshl_b32 {sA}, {sLO}, 7')
    a(f's_add_u32 {sA}, {sA}, {L_ST}')
    a(f'v_lshl_add_u32 v28, v2, 3, {sA}')
    a(f's_lshl_b32 {sA}, {sHI}, 13')
    a(f's_lshl_b32 {sB}, {sLO}, 10')
    a(f's_add_u32 {sA}, {sA}, {sB}')
    a(f's_add_u32 {sA}, {sA}, {L_HF}')
    a(f'v_add_u32 v29, {sA}, {vr(vL16)}')
    a(f'v_add_u32 v30, {L_HF}, {vr(vL16)}')
    L_SLAB = 32768
    a('v_lshrrev_b32 v32, 4, v1')
    a('v_lshlrev_b32 v32, 10, v32')
    a('v_and_b32 v33, 15, v1')
    a('v_lshrrev_b32 v34, 1, v33')
    a('v_lshrrev_b32 v35, 4, v1')
    a('v_xor_b32 v34, v34, v35')
    a('v_and_b32 v33, 1, v33')
    a('v_lshlrev_b32 v33, 4, v33')
    a('v_lshl_add_u32 v36, v34, 5, v33')
    a('v_add_u32 v36, v36, v32')
    a('v_xor_b32 v34, 4, v34')
    a('v_lshl_add_u32 v37, v34, 5, v33')
    a('v_add_u32 v37, v37, v32')
    a(f's_lshr_b32 {sA}, {sWV}, 1'); a(f's_and_b32 {sA}, {sA}, 1'); a(f's_cmp_eq_u32 {sA}, 1')
    a('s_cselect_b64 vcc, -1, 0')
    a('v_cndmask_b32 v36, v36, v37, vcc')
    a(f's_lshl_b32 {sA}, {sWV}, 12'); a(f's_lshl_b32 {sB}, {sCQ}, 8'); a(f's_add_u32 {sA}, {sA}, {sB}')
    a(f's_lshl_b32 {sB}, {sWV}, 10'); a(f's_add_u32 {sB}, {sB}, {L_SLAB}')
    for k in range(16):
        if k:
            a(f's_add_u32 {sA}, {sA}, 32768'); a(f's_add_u32 {sB}, {sB}, 8192')
        dma(4, 36, W1o, sB, soff=sA)
    a('v_lshrrev_b32 v33, 2, v2')
    a('v_and_b32 v34, 1, v3')
    a('v_lshl_or_b32 v34, v34, 2, v33')
    a(f'v_xor_b32 v34, {sWV}, v34')
    a('v_lshl_add_u32 v35, v3, 3, v33')
    a('v_lshlrev_b32 v35, 8, v35')
    a('v_lshl_add_u32 v35, v34, 5, v35')
    a('v_and_b32 v33, 3, v2')
    a('v_lshl_add_u32 v35, v33, 3, v35')
    a(f'v_add_u32 v35, {L_SLAB}, v35')
    a('v_add_u32 v37, 65536, v35')
    a('s_waitcnt vmcnt(0)')
    a('s_barrier')
    for ks in range(16):
        ad, off = (35, 8192 * ks) if ks < 8 else (37, 8192 * (ks - 8))
        a(f'ds_read_b64_tr_b16 {vr(W1R + 4 * ks, 2)}, {vr(ad)} offset:{off}')
        a(f'ds_read_b64_tr_b16 {vr(W1R + 4 * ks + 2, 2)}, {vr(ad)} offset:{off + 1024}')
    a('s_waitcnt lgkmcnt(0)')
    for ks in range(16):
        acc = CS1 if ks % 2 == 0 else 32
        mfma(acc, W1R + 4 * ks, ONES, None if ks < 2 else acc)
    for k in range(4):
        a(f'v_add_f32 {vr(CS1 + k)}, {vr(CS1 + k)}, {vr(32 + k)}')
    h1_addresses()
    stamp('W1regs')
    poll(WS_F2, 'all')
    stamp('S2ok')
    a(f's_lshl_b32 {sA}, {sT32}, 15')
    a(f's_lshl_b32 {sB}, {sWV}, 10')
    a(f's_add_u32 {sA}, {sA}, {sB}')
    a(f's_add_u32 {sA}, {sA}, {WS_X2B}')
    for k in range(4):
        if k:
            a(f's_add_u32 {sA}, {sA}, 8192')
        a(f's_add_u32 {sD}, {sB}, {L_X + k * 8192}')
        dma(4, 24, WS, sD, soff=sA, mods='sc1')
    a('v_lshlrev_b32 v14, 2, v0')
    a(f's_mov_b32 {sA}, {WS_MODF + 4 * 2048}')
    bload(32, 1, 14, WS, soff=sA, mods='sc1')
    a(f's_mov_b32 {sA}, {WS_MODF + 3 * 2048}')
    bload(36, 1, 14, WS, soff=sA, mods='sc1')
    a(f's_lshl_b32 {sA}, {sRB}, 16')
    a(f's_lshr_b32 {sB}, {sWV}, 2'); a(f's_lshl_b32 {sB}, {sB}, 15'); a(f's_add_u32 {sA}, {sA}, {sB}')
    a(f's_lshl_b32 {sB}, {sCS}, 12'); a(f's_add_u32 {sA}, {sA}, {sB}')
    a(f's_and_b32 {sB}, {sWV}, 3'); a(f's_lshl_b32 {sB}, {sB}, 10'); a(f's_add_u32 {sA}, {sA}, {sB}')
    a(f's_add_u32 {sA}, {sA}, {WS_X2B}')
    a(f's_lshl_b32 {sB}, {sWV}, 10')
    a(f's_add_u32 {sB}, {sB}, {L_XS}')
    dma(4, vL16, WS, sB, soff=sA, mods='sc1')
    a('v_lshlrev_b32 v15, 2, v0')
    a(f'v_add_u32 v15, {L_CB}, v15')
    a('s_waitcnt vmcnt(1)')
    a('v_add_f32 v32, 1.0, v32')
    a('ds_write_b32 v15, v32')
    a('ds_write_b32 v15, v36 offset:2048')
    a('s_waitcnt lgkmcnt(0)')
    a('s_barrier')
    stamp('Xlanded')
    wfrag_base(sF, WS_W2S)
    wq = list(range(16))

    def w1n(n):
        for _ in range(n):
            if wq:
                wfrag_one(W2R, sF, wq.pop(0))
    XF = 32
    for i in range(4):
        a(f'ds_read_b64_tr_b16 {vr(XF + 4 * i, 2)}, v25 offset:{2048 * i}')
        a(f'ds_read_b64_tr_b16 {vr(XF + 2 + 4 * i, 2)}, v25 offset:{2048 * i + 256}')
    CO = 64

    def ldc(i):
        b = CO + 16 * i
        a(f'ds_read_b128 {vr(b, 4)}, v26 offset:{128 * i}')
        a(f'ds_read_b128 {vr(b + 4, 4)}, v26 offset:{128 * i + 16}')
        a(f'ds_read_b128 {vr(b + 8, 4)}, v26 offset:{2048 + 128 * i}')
        a(f'ds_read_b128 {vr(b + 12, 4)}, v26 offset:{2048 + 128 * i + 16}')
    ldc(0)
    SA, QA = 48, 52
    for i in range(4):
        if i == 0:
            a('s_waitcnt lgkmcnt(10)')
        elif i == 1:
            a('s_waitcnt lgkmcnt(8)')
        elif i == 2:
            a('s_waitcnt lgkmcnt(6)')
        else:
            a('s_waitcnt lgkmcnt(4)')
        f = XF + 4 * i
        mfma(SA, ONES, f, None if i == 0 else SA)
        mfma(QA, f, f, None if i == 0 else QA)
        w1n(1)
    ldc(1); ldc(2)
    stats_publish(27, SA, QA, 56)
    ldc(3)
    a('s_waitcnt lgkmcnt(4)')
    a('s_barrier')
    a('ds_read2st64_b64 v[48:51], v28 offset0:0 offset1:1') if False else None
    a('ds_read_b64 v[48:49], v28')
    a('ds_read_b64 v[50:51], v28 offset:256')
    a('ds_read_b64 v[52:53], v28 offset:512')
    a('ds_read_b64 v[54:55], v28 offset:768')
    a('s_waitcnt lgkmcnt(0)')
    a('v_pk_add_f32 v[48:49], v[48:49], v[50:51]')
    a('v_pk_add_f32 v[52:53], v[52:53], v[54:55]')
    a('v_pk_add_f32 v[48:49], v[48:49], v[52:53]')
    stats_finish(48, 49, 58, 56)
    a('v_mul_f32 v58, v58, v56')
    stamp('stats2')
    SA, QA = 48, 52
    for i in range(4):
        f = XF + 4 * i
        b = CO + 16 * i
        for p in range(4):
            z = 60 + 2 * (p & 1)
            a(f'v_lshlrev_b32 {vr(z)}, 16, {vr(f + p)}')
            a(f'v_and_b32 {vr(z + 1)}, 0xffff0000, {vr(f + p)}')
            a(f'v_pk_fma_f32 {vr(z, 2)}, {vr(z, 2)}, v[56:57], v[58:59] op_sel_hi:[1,0,0] neg_lo:[0,0,1] neg_hi:[0,0,1]')
            a(f'v_pk_fma_f32 {vr(z, 2)}, {vr(z, 2)}, {vr(b + 2 * p, 2)}, {vr(b + 8 + 2 * p, 2)}')
            a(f'v_cvt_pk_bf16_f32 {vr(f + p)}, {vr(z)}, {vr(z + 1)}')
            if p == 1:
                w1n(1)
        a(f'ds_write_b128 v29, {vr(f, 4)} offset:{2048 * i}')
        if i > 0:
            fp = f - 4
            mfma(SA, ONES, fp, None if i == 1 else SA)
            mfma(QA, fp, fp, None if i == 1 else QA)
    f = XF + 12
    mfma(SA, ONES, f, SA)
    mfma(QA, f, f, QA)
    a(f'v_add_u32 v27, {L_ST3 - L_ST}, v27')
    stats_publish(27, SA, QA, 60)
    a('s_waitcnt lgkmcnt(0)')
    a('s_barrier')
    stamp('norm')
    AR = 64

    def lda(ks):
        b = AR + 8 * (ks % 8)
        a(f'ds_read_b128 {vr(b, 4)}, v30 offset:{2048 * ks}')
        a(f'ds_read_b128 {vr(b + 4, 4)}, v30 offset:{2048 * ks + 1024}')
    for ks in range(6):
        lda(ks)
    a(f'v_lshlrev_b32 v14, 3, v2')
    a(f'v_add_u32 v14, {L_ST3}, v14')
    for ks in range(16):
        pend = min(15 - ks, 5) * 2
        a(f's_waitcnt lgkmcnt({pend})')
        b = AR + 8 * (ks % 8)
        mfma(32, W1R + 4 * ks, b, None if ks == 0 else 32)
        mfma(36, W1R + 4 * ks, b + 4, None if ks == 0 else 36)
        if ks % 2 == 0:
            w1n(1)
        if ks + 6 < 16:
            lda(ks + 6)
    for tt in range(2):
        for kq in range(4):
            a(f'ds_read_b64 {vr(40 + 8 * tt + 2 * kq, 2)}, v14 offset:{256 * kq + 128 * tt}')
    GK = 56
    gelu_consts(GK)
    a('s_waitcnt lgkmcnt(0)')
    for tt in range(2):
        b = 40 + 8 * tt
        a(f'v_pk_add_f32 {vr(b, 2)}, {vr(b, 2)}, {vr(b + 2, 2)}')
        a(f'v_pk_add_f32 {vr(b + 4, 2)}, {vr(b + 4, 2)}, {vr(b + 6, 2)}')
        a(f'v_pk_add_f32 {vr(b, 2)}, {vr(b, 2)}, {vr(b + 4, 2)}')
        stats_finish(b, b + 1, b + 2, b + 4)
        ln_apply(32 + 4 * tt, CS1, b + 2, b + 4, None)
    stamp('gemm1')
    gelu(list(range(32, 40)), 62, GK)
    pack_swap(40, 32, 36)
    bstore(40, 4, H1A, WS, mods='sc1')
    for k in range(4):
        a(f'v_cndmask_b32 {vr(48 + k)}, {vr(40 + k)}, v31, s[{mZH}:{mZH + 1}]')
    save_exec_mask(0xc0000003c0000003)
    bstore(48, 4, H1B, WS, mods='sc1')
    restore_exec()
    p5_tiles()
    a('s_waitcnt vmcnt(0)')
    stamp('h1stored')
    a('s_barrier')
    a(f's_lshl_b32 {sE}, {sT32}, 2'); a(f's_add_u32 {sE}, {sE}, {sCQ}')
    assert not wq
    set_flag(WS_F3, sE)
    wfrags(128, WS_W3S, 8, nt_sgpr=sNT3)


def p5_tiles():
    a(f's_mul_i32 {sNT3}, {sCS}, 11')
    a(f's_cmp_eq_u32 {sCS}, 7')
    a(f's_cselect_b32 {sA}, 1, 0')
    a(f's_sub_u32 {sNT3}, {sNT3}, {sA}')
    a(f's_add_u32 {sNT3}, {sNT3}, {sWV}')
    a(f's_cmp_ge_u32 {sCS}, 6')
    a(f's_cselect_b32 {sA}, 2, 3')
    a(f's_cmp_lt_u32 {sWV}, {sA}')
    a(f's_cselect_b32 {sNV}, 2, 1')
    rot_setup()


def phase4():
    W2R = 192
    poll(WS_F3, 'halo')
    stamp('S3ok')
    a(f's_mul_i32 {sA}, {sT32}, {64 * 768}')
    a(f's_lshl_b32 {sB}, {sWV}, 10')
    a(f's_add_u32 {sA}, {sA}, {sB}')
    a(f's_add_u32 {sA}, {sA}, {WS_H1}')
    for k in range(6):
        if k:
            a(f's_add_u32 {sA}, {sA}, 8192')
        a(f's_add_u32 {sD}, {sB}, {L_A4 + k * 8192}')
        dma(4, vL16, WS, sD, soff=sA, mods=LDM)
    a('v_mul_u32_u24 v24, 768, v3')
    a('v_lshl_add_u32 v24, v2, 4, v24')
    a(f'v_add_u32 v24, {L_A4 + 128 - 32}, v24')
    a(f's_lshl_b32 {sA}, {sCQ}, 2'); a(f's_lshr_b32 {sB}, {sWV}, 1'); a(f's_add_u32 {sA}, {sA}, {sB}')
    a(f's_lshl_b32 {sA}, {sA}, 11')
    a(f's_and_b32 {sB}, {sWV}, 1'); a(f's_lshl_b32 {sB}, {sB}, 9'); a(f's_add_u32 {sA}, {sA}, {sB}')
    a(f's_add_u32 {sA}, {sA}, {L_HF}')
    a('v_lshrrev_b32 v25, 1, v3')
    a('v_lshlrev_b32 v25, 8, v25')
    a('v_lshl_add_u32 v25, v2, 4, v25')
    a('v_and_b32 v14, 1, v3')
    a('v_lshl_add_u32 v25, v14, 3, v25')
    a(f'v_add_u32 v25, {sA}, v25')
    a('ds_read_b64 v[40:41], v25')
    a('ds_read_b64 v[42:43], v25 offset:1024')
    AR = 64
    shifts = [-1, 1, -2, 2]

    def lda(ks):
        b = AR + 8 * (ks % 8)
        s_ = shifts[ks >> 2]
        off = 3072 * ks + 32 + 16 * s_
        a(f'ds_read_b128 {vr(b, 4)}, v24 offset:{off}')
        a(f'ds_read_b128 {vr(b + 4, 4)}, v24 offset:{off + 256}')
    a('s_waitcnt vmcnt(3)')
    a('s_barrier')
    stamp('A4landed')
    wfrag_base(sF, WS_W3S, nt_sgpr=sNT3, first=8)
    for ks in range(6):
        lda(ks)
    for ks in range(16):
        if ks == 2:
            a('s_waitcnt vmcnt(1)')
            a('s_barrier')
        pend = min(15 - ks, 5) * 2
        a(f's_waitcnt lgkmcnt({pend})')
        b = AR + 8 * (ks % 8)
        mfma(32, W2R + 4 * ks, b, None if ks == 0 else 32)
        mfma(36, W2R + 4 * ks, b + 4, None if ks == 0 else 36)
        if ks % 2 == 0:
            wfrag_one(128 + 32, sF, ks // 2)
        if ks + 6 < 16:
            lda(ks + 6)
    stamp('gemm2')
    for tt in range(2):
        for k in range(4):
            h = 40 + 2 * tt + (k >> 1)
            if k & 1:
                a(f'v_and_b32 {vr(44 + k)}, 0xffff0000, {vr(h)}')
            else:
                a(f'v_lshlrev_b32 {vr(44 + k)}, 16, {vr(h)}')
        a(f'v_pk_add_f32 {vr(32 + 4 * tt, 2)}, {vr(32 + 4 * tt, 2)}, v[44:45]')
        a(f'v_pk_add_f32 {vr(34 + 4 * tt, 2)}, {vr(34 + 4 * tt, 2)}, v[46:47]')
    pack_swap(40, 32, 36)
    a(f's_lshl_b32 {sA}, {sT32}, 15')
    a(f's_lshl_b32 {sB}, {sCQ}, 3'); a(f's_add_u32 {sB}, {sB}, {sWV}'); a(f's_lshl_b32 {sB}, {sB}, 10')
    a(f's_add_u32 {sA}, {sA}, {sB}')
    a(f's_add_u32 {sA}, {sA}, {WS_X1}')
    cstore(40, 4, vL16, sA)
    a('s_waitcnt vmcnt(0)')
    stamp('x1stored')
    a('s_barrier')
    a(f's_lshl_b32 {sE}, {sRB}, 3'); a(f's_add_u32 {sE}, {sE}, {sCS}')
    set_flag(WS_F4, sE, cluster=True)

    l1 = a.newlabel('L_p4one'); l2 = a.newlabel('L_p4j')
    a(f's_cmp_eq_u32 {sNV}, 1')
    a(f's_cbranch_scc1 {l1}')
    a(f's_add_u32 {sE}, {sNT3}, 8')
    wfrags(192, WS_W3S, 16, nt_sgpr=sE)
    a.label(l1)


def w4reg(s_):
    return 192 + 4 * s_ if s_ < 16 else 128 + 4 * (s_ - 16)


sWO, sWLIM, sWB, sRO, sRBAD = 's69', 's70', 's71', 's72', 's73'


def rot_setup():
    a(f's_movk_i32 {sWLIM}, {21 * 1024}')
    a(f's_cmp_ge_u32 {sWV}, 4')
    a(f's_cselect_b32 {sWLIM}, {20 * 1024}, {sWLIM}')
    a(f's_cselect_b32 {sRBAD}, {21 * 2048}, -1')
    a(f's_and_b32 {sB}, {sWV}, 3')
    a(f's_lshl_b32 {sWB}, {sCS}, 2'); a(f's_add_u32 {sWB}, {sWB}, {sB}'); a(f's_mul_i32 {sWB}, {sWB}, 43')
    a(f's_lshr_b32 {sB}, {sWV}, 2'); a(f's_mul_i32 {sB}, {sB}, 22'); a(f's_add_u32 {sWB}, {sWB}, {sB}')
    a(f's_lshl_b32 {sWB}, {sWB}, 10'); a(f's_add_u32 {sWB}, {sWB}, {WS_W4S}')


def w4_base(sreg, first=0):
    pass


def w4_one(sreg, first, k):
    s_ = first + k
    if s_ == 21:
        a(f's_add_u32 {sC}, {sWB}, {sWLIM}')
        bload(w4reg(s_), 4, vL16, WS, soff=sC, mods='sc1')
    else:
        base4 = (s_ // 4) * 4
        if s_ % 4 == 0 or k == 0:
            a(f's_add_u32 {sWO}, {sWB}, {base4 * 1024}')
        bload(w4reg(s_), 4, vL16, WS, imm=(s_ % 4) * 1024, soff=sWO, mods='sc1')


def w4_loads(first, n):
    for k in range(n):
        w4_one(None, first, k)


def phase5():
    W3A, W3B = 128, 192
    CSA, CSB = 24, 28
    for k in range(4):
        a(f'v_mov_b32 {vr(ONES + k)}, 0x3f803f80')
    a(f's_and_b32 {sLO}, {sWV}, 3')
    a(f's_lshr_b32 {sHI}, {sWV}, 2')
    a('v_lshrrev_b32 v14, 2, v2')
    a('v_lshl_add_u32 v14, v3, 2, v14')
    a('v_lshlrev_b32 v14, 6, v14')
    a('v_and_b32 v15, 3, v2')
    a('v_lshl_add_u32 v14, v15, 3, v14')
    a(f's_lshl_b32 {sA}, {sHI}, 12'); a(f's_lshl_b32 {sB}, {sLO}, 10'); a(f's_add_u32 {sA}, {sA}, {sB}')
    a(f's_add_u32 {sA}, {sA}, {L_XS}')
    a(f'v_add_u32 v14, {sA}, v14')
    a(f'ds_read_b64_tr_b16 {vr(XS, 2)}, v14')
    a(f'ds_read_b64_tr_b16 {vr(XS + 2, 2)}, v14 offset:32')
    a(f's_lshr_b32 {sA}, {sLO}, 1'); a(f's_lshl_b32 {sA}, {sA}, 15')
    a(f's_and_b32 {sB}, {sLO}, 1'); a(f's_lshl_b32 {sB}, {sB}, 8'); a(f's_add_u32 {sA}, {sA}, {sB}')
    a(f's_lshl_b32 {sB}, {sHI}, 14'); a(f's_add_u32 {sA}, {sA}, {sB}')
    a(f'v_add_u32 v20, {sA}, {vr(vVB)}')
    a(f's_lshl_b32 {sA}, {sWV}, 7'); a(f's_add_u32 {sA}, {sA}, {L_ST5}')
    a(f'v_lshl_add_u32 v21, v2, 3, {sA}')
    a(f's_lshl_b32 {sA}, {sHI}, 15'); a(f's_lshl_b32 {sB}, {sCS}, 12'); a(f's_add_u32 {sA}, {sA}, {sB}')
    a(f's_lshl_b32 {sB}, {sLO}, 10'); a(f's_add_u32 {sA}, {sA}, {sB}')
    a('v_lshrrev_b32 v22, 1, v3'); a('v_lshlrev_b32 v22, 9, v22')
    a('v_lshl_add_u32 v22, v2, 4, v22')
    a('v_and_b32 v14, 1, v3'); a('v_lshl_add_u32 v22, v14, 3, v22')
    a(f'v_add_u32 v22, {sA}, v22')
    a('v_lshlrev_b32 v23, 3, v2')
    a(f'v_add_u32 v23, {L_ST5}, v23')
    a('s_waitcnt lgkmcnt(0)')
    stamp('W3landed')
    poll(WS_F4, 'own')
    stamp('S4ok')
    a(f's_lshl_b32 {sA}, {sRB}, 16')
    a(f's_lshl_b32 {sB}, {sHI}, 15'); a(f's_lshl_b32 {sC}, {sLO}, 10'); a(f's_add_u32 {sB}, {sB}, {sC}')
    a(f's_add_u32 {sA}, {sA}, {sB}'); a(f's_add_u32 {sA}, {sA}, {WS_X1}')
    for j in range(8):
        if j:
            a(f's_add_u32 {sA}, {sA}, 4096')
        a(f's_add_u32 {sD}, {sB}, {L_X1 + 4096 * j}')
        dma(4, vL16, WS, sD, soff=sA, mods=LDM)
    a('s_waitcnt vmcnt(8)')
    for ks in range(16):
        acc = CSA if ks % 2 == 0 else 32
        mfma(acc, W3A + 4 * ks, ONES, None if ks < 2 else acc)
    lnb = a.newlabel('L_nob')
    a(f's_cmp_lt_u32 {sNV}, 2')
    a(f's_cbranch_scc1 {lnb}')
    for ks in range(16):
        acc = CSB if ks % 2 == 0 else 36
        mfma(acc, W3B + 4 * ks, ONES, None if ks < 2 else acc)
    for k in range(4):
        a(f'v_add_f32 {vr(CSB + k)}, {vr(CSB + k)}, {vr(36 + k)}')
    a.label(lnb)
    for k in range(4):
        a(f'v_add_f32 {vr(CSA + k)}, {vr(CSA + k)}, {vr(32 + k)}')
    AR = 64
    ACA, ACB = 32, 48
    SA, QA, TP, MR = 112, 116, 120, 120
    a(f's_lshl_b32 {sA}, {sRB}, 1'); a(f's_mul_i32 {sA}, {sA}, {86 * 1024}')
    a(f's_lshl_b32 {sB}, {sNT3}, 10'); a(f's_add_u32 {sA}, {sA}, {sB}'); a(f's_add_u32 {sE}, {sA}, {WS_H3}')

    def lda(ks, q):
        b = AR + 16 * (ks % 3)
        for tt in range(4):
            a(f'ds_read_b128 {vr(b + 4 * tt, 4)}, {vr(vVB)} offset:{32768 * (tt >> 1) + 2048 * ks + 256 * (tt & 1)}')
        q += [('a', ks)] * 4

    def wait_for(q, key):
        last = max(i for i, o in enumerate(q) if o == key)
        a(f's_waitcnt lgkmcnt({min(15, len(q) - 1 - last)})')

    def epi_steps(acc, cs, tileoff, tmp, gk, pk):
        steps = []
        for tt in range(4):
            mr = MR + 2 * tt
            def f(tt=tt, mr=mr):
                for k in (0, 2):
                    r = acc + 4 * tt + k
                    a(f'v_pk_fma_f32 {vr(r, 2)}, {vr(cs + k, 2)}, {vr(mr, 2)}, {vr(r, 2)} op_sel_hi:[1,0,1] neg_lo:[0,1,0] neg_hi:[0,1,0]')
                    a(f'v_pk_mul_f32 {vr(r, 2)}, {vr(r, 2)}, {vr(mr, 2)} op_sel:[0,1] op_sel_hi:[1,1]')
            steps.append(f)
        for i in range(8):
            steps.append(lambda i=i: gelu([acc + 2 * i, acc + 2 * i + 1], tmp + 2 * (i & 1), gk))
        for T in range(2):
            def f(T=T):
                d = pk + 4 * T
                pack_swap(d, acc + 8 * T, acc + 8 * T + 4)
                a(f's_add_u32 {sA}, {sE}, {tileoff + T * 86 * 1024}')
                bstore(d, 4, vL16, WS, soff=sA, mods='sc1')
            steps.append(f)
        return steps

    def stats_pass():
        a('s_waitcnt vmcnt(0)')
        a('s_barrier')
        stamp('x1landed')
        for k in range(8):
            a(f'ds_read_b128 {vr(AR + 4 * k, 4)}, v20 offset:{2048 * k}')
        a(f'ds_read_b64 {vr(X1R, 2)}, v22')
        a(f'ds_read_b64 {vr(X1R + 2, 2)}, v22 offset:256')
        for k in range(8):
            a(f's_waitcnt lgkmcnt({9 - k})')
            f = AR + 4 * k
            sa, qa = (SA, QA) if k % 2 == 0 else (ACB, ACB + 4)
            mfma(sa, ONES, f, None if k < 2 else sa)
            mfma(qa, f, f, None if k < 2 else qa)
        for k in range(4):
            a(f'v_add_f32 {vr(SA + k)}, {vr(SA + k)}, {vr(ACB + k)}') if k == 0 else None
            a(f'v_add_f32 {vr(QA + k)}, {vr(QA + k)}, {vr(ACB + 4 + k)}')
        stats_publish(21, SA, QA, TP)
        a('s_waitcnt lgkmcnt(0)')
        a('s_barrier')
        stamp('k5b')

    def loop1(two):
        q = []
        SF = AR + 32
        for tt in range(4):
            a(f'ds_read_b64 {vr(SF + 4 * tt, 2)}, v23 offset:{128 * tt}')
            a(f'ds_read_b64 {vr(SF + 4 * tt + 2, 2)}, v23 offset:{512 + 128 * tt}')
        q += [('f', 0)] * 8
        lda(0, q); lda(1, q)
        wait_for(q, ('f', 0))
        for tt in range(4):
            bb = SF + 4 * tt
            mr = MR + 2 * tt
            a(f'v_pk_add_f32 {vr(bb, 2)}, {vr(bb, 2)}, {vr(bb + 2, 2)}')
            stats_finish(bb, bb + 1, mr, mr + 1)
        nxt = 2
        for ks in range(16):
            wait_for(q, ('a', ks))
            b = AR + 16 * (ks % 3)
            for tt in range(4):
                mfma(ACA + 4 * tt, W3A + 4 * ks, b + 4 * tt, None if ks == 0 else ACA + 4 * tt)
                if two:
                    mfma(ACB + 4 * tt, W3B + 4 * ks, b + 4 * tt, None if ks == 0 else ACB + 4 * tt)
            if not two:
                w4_one(None, 0, ks)
            while nxt < 16 and nxt <= ks + 2:
                lda(nxt, q); nxt += 1
            if ks == 8:
                wtouch('w4', 15)

    stats_pass()
    a(f's_cmp_ge_u32 {sWV}, 4')
    lpr = a.newlabel('L_prio')
    a(f's_cbranch_scc0 {lpr}')
    a('s_setprio 1')
    a.label(lpr)
    l1 = a.newlabel('L_one'); lj = a.newlabel('L_p5j')
    a(f's_cmp_eq_u32 {sNV}, 1')
    a(f's_cbranch_scc1 {l1}')
    loop1(True)
    stamp('gemm3')
    GK, TMP, PK = 64, 72, 76
    gelu_consts(GK)
    for f in epi_steps(ACA, CSA, 0, TMP, GK, PK):
        f()
    stamp('loop2')
    for f in epi_steps(ACB, CSB, 8 * 1024, TMP, GK, PK + 8):
        f()
    stamp('epiB')
    a('s_waitcnt vmcnt(0) lgkmcnt(0)')
    a(f's_branch {lj}')
    a.label(l1)
    loop1(False)
    w4_loads(16, 6)
    stamp('gemm3')
    GK, TMP, PK = 64, 72, 76
    gelu_consts(GK)
    for f in epi_steps(ACA, CSA, 0, TMP, GK, PK):
        f()
    stamp('epiB')
    a('s_waitcnt vmcnt(0) lgkmcnt(0)')
    a.label(lj)
    a('s_setprio 0')
    stamp('h3stored')
    a('s_barrier')
    a(f's_lshl_b32 {sE}, {sRB}, 3'); a(f's_add_u32 {sE}, {sE}, {sCS}')
    set_flag(WS_F5, sE)

    l1 = a.newlabel('L_w4one')
    a(f's_cmp_eq_u32 {sNV}, 1')
    a(f's_cbranch_scc1 {l1}')
    w4_loads(0, 16)
    w4_loads(16, 6)
    a.label(l1)


def phase6():
    a(f's_lshl_b32 {sA}, {sCS}, 6'); a(f's_lshl_b32 {sB}, {sLO}, 4'); a(f's_add_u32 {sA}, {sA}, {sB}')
    a(f's_lshl_b32 {sA}, {sA}, 2'); a(f's_add_u32 {sA}, {sA}, {WS_MODF + 5 * 2048}')
    a('v_lshlrev_b32 v14, 4, v3')
    bload(16, 4, 14, WS, soff=sA, mods='sc1')
    poll(WS_F5, 'own')
    stamp('S5ok')
    a(f's_lshl_b32 {sA}, {sRB}, 1'); a(f's_lshr_b32 {sB}, {sWV}, 1'); a(f's_and_b32 {sB}, {sB}, 1')
    a(f's_add_u32 {sA}, {sA}, {sB}'); a(f's_mul_i32 {sA}, {sA}, {86 * 1024}')
    a(f's_mul_i32 {sB}, {sHI}, {44 * 1024}'); a(f's_add_u32 {sA}, {sA}, {sB}')
    a(f's_and_b32 {sB}, {sWV}, 1'); a(f's_lshl_b32 {sB}, {sB}, 10'); a(f's_add_u32 {sA}, {sA}, {sB}')
    a(f's_add_u32 {sE}, {sA}, {WS_H3}')
    a(f's_lshl_b32 {sF}, {sWV}, 10')

    def ring(s_):
        if 'nodma' in XP and s_ >= 3:
            return
        a(f's_add_u32 {sC}, {sE}, {2048 * s_}')
        if s_ == 21:
            a(f's_cmp_eq_u32 {sHI}, 1')
            a(f's_cselect_b32 {sC}, 0x7ff00000, {sC}')
        a(f's_add_u32 {sD}, {sF}, {8192 * (s_ % NSLOT)}')
        dma(4, vL16, WS, sD, soff=sC, mods=LDM)
    AHEAD = int(os.environ.get('AHEAD', '6'))
    RAMP = int(os.environ.get('RAMP', '14'))
    for s_ in range(AHEAD):
        ring(s_)
    a(f's_lshl_b32 {sA}, {sHI}, 12')
    a(f'v_add_u32 v32, {sA}, {vr(vVB)}')
    a('v_add_u32 v33, 65536, v32')
    a('v_add_u32 v34, 131072, v32')
    AR = 64
    ACC = 40

    def lda(s_):
        b = AR + 16 * (s_ % 4)
        off = 8192 * (s_ % NSLOT)
        ad, base = (32, 0) if off < 65536 else (33, 65536) if off < 131072 else (34, 131072)
        for tt in range(4):
            if 'nord' in XP and s_ > 3:
                continue
            a(f'ds_read_b128 {vr(b + 4 * tt, 4)}, {vr(ad)} offset:{off - base + 2048 * (tt >> 1) + 256 * (tt & 1)}')
    guar = {0: 3, 2: 7, 6: 11, 10: 15, 14: 19, 18: 22}
    issued = AHEAD
    q = []
    nxt = 0
    bound = 0
    gi = 0
    for s_ in range(22):
        if s_ in guar:
            bound = guar[s_]
            while issued < bound:
                ring(issued); issued += 1
            if 'novm' not in XP or s_ == 0:
                a(f's_waitcnt vmcnt({issued - bound})')
            if 'nobar' not in XP or s_ == 0:
                a('s_barrier')
            stamp(f'g{gi}'); gi += 1
            last_barrier = s_
        while nxt < bound and nxt <= s_ + 2:
            lda(nxt); q += [nxt] * 4; nxt += 1
        nper = 2 if issued < RAMP else 1
        for _ in range(nper):
            if issued < 22 and (issued < NSLOT or issued - NSLOT < last_barrier):
                ring(issued); issued += 1
        last = max(i for i, o in enumerate(q) if o == s_)
        a(f's_waitcnt lgkmcnt({min(15, len(q) - 1 - last)})')
        b = AR + 16 * (s_ % 4)
        for tt in range(4):
            mfma(ACC + 4 * tt, w4reg(s_), b + 4 * tt, None if s_ == 0 else ACC + 4 * tt)
        while nxt < bound and nxt <= s_ + 3:
            lda(nxt); q += [nxt] * 4; nxt += 1
    assert issued == 22
    stamp('gemm4')
    a(f's_lshl_b32 {sA}, {sWV}, 11')
    a(f's_add_u32 {sA}, {sA}, {L_EX}')
    a(f'v_add_u32 v35, {sA}, {vr(vL16)}')
    lk1 = a.newlabel('L_k1'); lkd = a.newlabel('L_kd')
    a(f's_cmp_eq_u32 {sHI}, 1')
    a(f's_cbranch_scc1 {lk1}')
    a(f'ds_write_b128 v35, {vr(ACC + 8, 4)}')
    a(f'ds_write_b128 v35, {vr(ACC + 12, 4)} offset:1024')
    a(f's_branch {lkd}')
    a.label(lk1)
    a(f'ds_write_b128 v35, {vr(ACC, 4)}')
    a(f'ds_write_b128 v35, {vr(ACC + 4, 4)} offset:1024')
    for k in range(8):
        a(f'v_mov_b32 {vr(ACC + k)}, {vr(ACC + 8 + k)}')
    a.label(lkd)
    a(f's_lshl_b32 {sA}, {sRB}, 6'); a(f's_lshl_b32 {sB}, {sHI}, 5'); a(f's_add_u32 {sA}, {sA}, {sB}')
    a(f's_lshl_b32 {sA}, {sA}, 10')
    a(f's_lshl_b32 {sB}, {sCS}, 7'); a(f's_add_u32 {sA}, {sA}, {sB}')
    a(f's_lshl_b32 {sB}, {sLO}, 5'); a(f's_add_u32 {sE}, {sA}, {sB}')
    a('v_lshlrev_b32 v36, 10, v2')
    a('v_lshl_add_u32 v36, v3, 3, v36')
    a('s_waitcnt lgkmcnt(0)')
    a('s_barrier')
    a(f's_xor_b32 {sA}, {sWV}, 4')
    a(f's_lshl_b32 {sA}, {sA}, 11')
    a(f's_add_u32 {sA}, {sA}, {L_EX}')
    a(f'v_add_u32 v35, {sA}, {vr(vL16)}')
    stamp('exch')
    a('ds_read_b128 v[64:67], v35')
    a('ds_read_b128 v[68:71], v35 offset:1024')
    for e in range(2):
        for k in range(4):
            for (src, dst) in ((X1R + 2 * e + (k >> 1), 72 + 8 * e + k), (XS + 2 * e + (k >> 1), 76 + 8 * e + k)):
                if k & 1:
                    a(f'v_and_b32 {vr(dst)}, 0xffff0000, {vr(src)}')
                else:
                    a(f'v_lshlrev_b32 {vr(dst)}, 16, {vr(src)}')
    a('s_waitcnt lgkmcnt(0)')
    for e in range(2):
        for k in range(4):
            r = ACC + 4 * e + k
            a(f'v_add_f32 {vr(r)}, {vr(r)}, {vr(64 + 4 * e + k)}')
            a(f'v_add_f32 {vr(r)}, {vr(r)}, {vr(72 + 8 * e + k)}')
            a(f'v_fma_f32 {vr(r)}, {vr(16 + k)}, {vr(r)}, {vr(76 + 8 * e + k)}')
        a(f'v_cvt_pk_bf16_f32 {vr(88 + 2 * e)}, {vr(ACC + 4 * e)}, {vr(ACC + 4 * e + 1)}')
        a(f'v_cvt_pk_bf16_f32 {vr(89 + 2 * e)}, {vr(ACC + 4 * e + 2)}, {vr(ACC + 4 * e + 3)}')
    bstore(88, 2, 36, OUT, soff=sE)
    a(f's_add_u32 {sE}, {sE}, 16384')
    bstore(90, 2, 36, OUT, soff=sE)


def finish():
    lf = a.newlabel('L_fin')
    a('s_cmp_lg_u32 s2, 0')
    a(f's_cbranch_scc1 {lf}')
    a(f's_cmp_lg_u32 {sWV}, 0')
    a(f's_cbranch_scc1 {lf}')
    a(f'v_mov_b32 v14, {sT}')
    a(f'v_mov_b32 v15, {WS_EPOCH}')
    save_exec_mask('1')
    bstore(14, 1, 15, WS, mods='sc1')
    restore_exec()
    a.label(lf)
    if PADTO or STAMPS:
        a('s_waitcnt vmcnt(0)')
    if PADTO:
        lp = a.newlabel('L_pad'); lq = a.newlabel('L_padq')
        a('s_cmp_lg_u32 s2, 0')
        a(f's_cbranch_scc1 {lq}')
        a(f's_cmp_lg_u32 {sWV}, 0')
        a(f's_cbranch_scc1 {lq}')
        a.label(lp)
        a('s_memrealtime s[98:99]')
        a('s_waitcnt lgkmcnt(0)')
        a('s_sub_u32 s98, s98, s3')
        if PROBE:
            a('s_sub_u32 s99, s59, s3')
            a('s_sub_u32 s98, s98, s99')
        a(f's_cmp_lt_u32 s98, {PADTO * 100}')
        a(f's_cbranch_scc1 {lp}')
        a.label(lq)
    stamp('end')
    if STAMPS:
        for i in range(len(stamp_names)):
            a(f'v_writelane_b32 v255, s{STAMP_REGS[i]}, {i}')
        a(f's_lshl_b32 {sA}, s2, 3')
        a(f's_add_u32 {sA}, {sA}, {sWV}')
        a(f's_lshl_b32 {sA}, {sA}, 8')
        a(f's_add_u32 {sA}, {sA}, {WS_DBG}')
        a(f'v_lshl_add_u32 v20, v1, 2, {sA}')
        bstore(255, 1, 20, WS)
        a('s_waitcnt vmcnt(0)')
        open('stamps.txt', 'w').write('\n'.join(stamp_names) + '\n')
    a.label('L_END')
    a('s_endpgm')


def build(debug=True):
    global DEBUG
    DEBUG = debug
    prologue()
    phase_a()
    phase_b()
    for name, fn in (('3', phase3), ('4', phase4), ('5', phase5), ('6', phase6)):
        if STOP_AFTER and STOP_AFTER < name and STOP_AFTER != '':
            break
        fn()
    finish()
    nops = a.fast_hazard_pass()
    errs = a.check_waits([{'s5': w, 's89': nv} for w in range(8) for nv in ((1, 2) if w < 3 else (1,))])
    for e in errs:
        print('WAIT-CHECK:', e, file=sys.stderr)
    hdr = open('adaLN_cond__ssm_conv_s4__mixer_s_mlp__prompt.s.ref').read().split('\n')
    head = [l for l in hdr if l.startswith(';') and '@launch' not in l and 'Override' not in l and 'grid=ceil' not in l]
    txt = '\n'.join(head) + '\n; @launch grid=(256,1,1) block=(512,1,1) lds=163840\n'
    txt += '.amdgcn_target "amdgcn-amd-amdhsa--gfx950"\n.text\n'
    txt += f'.globl {KNAME}\n.p2align 8\n.type {KNAME},@function\n{KNAME}:\n'
    txt += a.text()
    txt += f'''.section .rodata,"a"
.p2align 6
.amdhsa_kernel {KNAME}
  .amdhsa_next_free_vgpr 256
  .amdhsa_next_free_sgpr 102
  .amdhsa_accum_offset 256
  .amdhsa_group_segment_fixed_size 0
  .amdhsa_kernarg_size 152
  .amdhsa_user_sgpr_count 2
  .amdhsa_user_sgpr_kernarg_segment_ptr 1
  .amdhsa_system_sgpr_workgroup_id_x 1
  .amdhsa_float_denorm_mode_32 3
.end_amdhsa_kernel
'''
    print(f'instructions: {len(a.lines)}  hazard nops: {nops}', file=sys.stderr)
    return txt


if __name__ == '__main__':
    out = sys.argv[1] if len(sys.argv) > 1 else 'k.s'
    open(out, 'w').write(build(debug=os.environ.get('NODEBUG') is None))
```

```python
import sys, os, struct
sys.path.insert(0, os.path.dirname(os.path.abspath(__file__)))
from asmlib import Asm
from layout import *

KNAME = 'adaLN_cond__ssm_conv_s4__mixer_s_mlp__prompt_kernel'
STOP_AFTER = os.environ.get('STOP_AFTER', '')
STAMPS = os.environ.get('STAMPS') is not None
PADTO = int(os.environ.get('PADTO', '0'))
SPIN_MAX = 20000
XP = os.environ.get('XP', '').split(',')
NOFAST = True
LDM = os.environ.get('LDM', 'sc1')
PRETOUCH = int(os.environ.get('PRETOUCH', '0'))
NOSCOUT = os.environ.get('NOSCOUT') is not None
FASTX = os.environ.get('FASTX') is not None
CM = '' if FASTX else 'sc1'

sT = 's4'; sWV = 's5'; sX = 's6'; sJ = 's7'
U, WS, OUT = 8, 12, 16
ARE, AIM, BRE, BIM, CRE, CIM = 20, 24, 28, 32, 36, 40
LDT, DSK, CC, WMOD, W1, W2, W3, W4 = 44, 48, 52, 56, 60, 64, 68, 72
sCH0 = 's76'; sRB = 's77'; sCS = 's78'; sNT3 = 's79'
sA, sB, sC, sD = 's80', 's81', 's82', 's83'
sSPIN = 's84'; sLO = 's85'; sHI = 's86'
sE, sF = 's87', 's88'; sNV = 's89'
mK1, mK2, mK3, mDG = 90, 92, 94, 96
sX0 = 98
sT32 = 's100'; sCQ = 's101'
sROT = 's68'
mFA, mSL = 64, 66
TSRD = 92
sSD, sSN, sSS, sSB = 's90', 's91', 's96', 's97'
sSR, sSO = 's74', 's75'

vL16, vVB = 4, 5
XS, X1R = 6, 10


def srd(n):
    return f's[{n}:{n + 3}]'


def vr(a, n=1):
    return f'v{a}' if n == 1 else f'v[{a}:{a + n - 1}]'


def fconst(x):
    return hex(struct.unpack('<I', struct.pack('<f', x))[0])


L_G = 0; G_ROW = 544; G_CH = 48 * G_ROW
L_E = 2 * G_CH; E_CH = 16 * G_ROW
L_KT = L_E + 2 * E_CH; KT_CH = 5120; KT_ZERO = 2559
L_COPY = L_KT + 2 * KT_CH; CP_R = 4160; CP_CH = 4 * CP_R
L_STG = L_COPY + 2 * CP_CH
L_PART = 0
L_XC = 143360
L_H = L_XC + 8192; H_CH = 4672
assert L_STG + 4 * 4096 <= L_XC and L_H + 2 * H_CH <= 163840
L_X = 0
L_HF = 32768
L_A4 = 65536
L_XS = 114688
L_CB = 122880
L_ST = L_CB + 4096
L_ST3 = L_ST + 1024
L_X1 = 0
L_ST5 = 147456
NSLOT = 18
L_EX = 147456

a = Asm()
stamp_names = []
STAMP_REGS = [3] + list(range(20, 48)) + list(range(52, 60))
STAMPSET = os.environ.get('STAMPSET', 'all')
LATE_ONLY = ('entry', 'S4ok', 'x1landed', 'k5a', 'k5b', 'k12a', 'k12b', 'gemm3', 'loop2', 'epiB', 'h3stored', 'S5ok', 'g0', 'g1', 'g2', 'g3', 'g4', 'g5', 'g6', 'g7', 'gemm4', 'exch', 'end')


PROBE = os.environ.get('PROBE')


def stamp(name):
    if PROBE == name:
        a(f's_memrealtime s[{sX0}:{sX0 + 1}]')
        a('s_waitcnt lgkmcnt(0)')
        a(f's_mov_b32 s59, s{sX0}')
    if not STAMPS:
        return
    if STAMPSET == 'late' and name not in LATE_ONLY:
        return
    if STAMPSET == 'all' and name in ('k5a', 'k5b', 'k12a', 'k12b', 'loop2', 'epiB', 'g0', 'g1', 'g2', 'g3', 'g4', 'g5', 'g6', 'g7', 'exch'):
        return
    if name in stamp_names:
        i = stamp_names.index(name)
    else:
        i = len(stamp_names)
        stamp_names.append(name)
    a(f's_memtime s[{sX0}:{sX0 + 1}]' if os.environ.get('CYC') else f's_memrealtime s[{sX0}:{sX0 + 1}]')
    a('s_waitcnt lgkmcnt(0)')
    a(f's_mov_b32 s{STAMP_REGS[i]}, s{sX0}')


def bload(dst, n, voff, s, imm=0, soff='0', mods=''):
    op = {1: 'buffer_load_dword', 2: 'buffer_load_dwordx2', 4: 'buffer_load_dwordx4', 'u16': 'buffer_load_ushort'}[n]
    cnt = 1 if n == 'u16' else n
    a(f'{op} {vr(dst, cnt)}, {vr(voff)}, {srd(s)}, {soff} offen' + (f' offset:{imm}' if imm else '') + (' ' + mods if mods else ''))


def bstore(src, n, voff, s, imm=0, soff='0', mods=''):
    op = {1: 'buffer_store_dword', 2: 'buffer_store_dwordx2', 4: 'buffer_store_dwordx4'}[n]
    a(f'{op} {vr(src, n)}, {vr(voff)}, {srd(s)}, {soff} offen' + (f' offset:{imm}' if imm else '') + (' ' + mods if mods else ''))


def dma(n, voff, s, m0, soff='0', mods=''):
    a(f's_mov_b32 m0, {m0}')
    op = {1: 'buffer_load_dword', 4: 'buffer_load_dwordx4'}[n]
    a(f'{op} {vr(voff)}, {srd(s)}, {soff} offen' + (' ' + mods if mods else '') + ' lds')


def cstore(src, n, voff, soff):
    if NOFAST:
        bstore(src, n, voff, WS, soff=soff, mods='sc1')
        return
    a(f's_mov_b64 exec, s[{mFA}:{mFA + 1}]')
    bstore(src, n, voff, WS, soff=soff)
    a(f's_mov_b64 exec, s[{mSL}:{mSL + 1}]')
    bstore(src, n, voff, WS, soff=soff, mods='sc1')
    a('s_mov_b64 exec, -1')


def mfma(d, x, y, c=None):
    cc = '0' if c is None else vr(c, 4)
    a(f'v_mfma_f32_16x16x32_bf16 {vr(d, 4)}, {vr(x, 4)}, {vr(y, 4)}, {cc}')


def cmul(d, x, y):
    a(f'v_pk_mul_f32 {vr(d, 2)}, {vr(x, 2)}, {vr(y, 2)} op_sel:[0,0] op_sel_hi:[0,1]')
    a(f'v_pk_fma_f32 {vr(d, 2)}, {vr(x, 2)}, {vr(y, 2)}, {vr(d, 2)} op_sel:[1,1,0] op_sel_hi:[1,0,1] neg_lo:[1,0,0]')


def save_exec_mask(mask):
    a(f's_mov_b64 s[{sX0}:{sX0 + 1}], exec')
    if isinstance(mask, int) and mask > 64:
        a(f's_mov_b32 exec_lo, {hex(mask & 0xffffffff)}')
        a(f's_mov_b32 exec_hi, {hex(mask >> 32)}')
    else:
        a(f's_mov_b64 exec, {mask}')


def restore_exec():
    a(f's_mov_b64 exec, s[{sX0}:{sX0 + 1}]')


def prologue():
    if PADTO:
        a('s_memrealtime s[78:79]')
        a('s_waitcnt lgkmcnt(0)')
        a('s_mov_b32 s3, s78')
    a('s_cmp_ge_u32 s2, 256')
    a('s_cbranch_scc1 L_END')
    ptrs = [(U, 0), (WS, 144), (ARE, 8), (AIM, 16), (BRE, 24), (BIM, 32), (CRE, 40), (CIM, 48), (LDT, 56), (CC, 112),
            (WMOD, 120), (W1, 80), (W2, 88), (W3, 96), (W4, 104), (DSK, 64), (OUT, 128)]
    for r, off in ptrs:
        a(f's_load_dwordx2 s[{r}:{r + 1}], s[0:1], {off}')
    sizes = {U: 2 * 1024 * 1024, ARE: 131072, AIM: 131072, BRE: 131072, BIM: 131072, CRE: 131072, CIM: 131072,
             LDT: 1024, DSK: 1024, W1: 524288, W2: 524288, W3: 512 * F_ * 2, W4: 512 * F_ * 2, CC: 1024,
             WMOD: 512 * 3072 * 2, OUT: 2 * 1024 * 1024, WS: WS_USED + (WS_DBG_SIZE if DEBUG else 0)}
    a('v_lshrrev_b32 v2, 6, v0')
    a('v_and_b32 v1, 63, v0')
    a(f'v_readfirstlane_b32 {sWV}, v2')
    for r, sz in sizes.items():
        a(f's_mov_b32 s{r + 2}, {sz}')
        a(f's_mov_b32 s{r + 3}, 0x20000')
    a('v_and_b32 v2, 15, v1')
    a('v_lshrrev_b32 v3, 4, v1')
    a(f'v_lshlrev_b32 {vr(vL16)}, 4, v1')
    a(f's_and_b32 {sX}, s2, 7')
    if os.environ.get('XROT'):
        a(f's_add_u32 {sX}, {sX}, {os.environ["XROT"]}')
        a(f's_and_b32 {sX}, {sX}, 7')
    a(f's_lshr_b32 {sJ}, s2, 3')
    a(f's_lshl_b32 {sCH0}, {sX}, 6')
    a(f's_lshl_b32 {sA}, {sJ}, 1')
    a(f's_add_u32 {sCH0}, {sCH0}, {sA}')
    a(f's_lshl_b32 {sRB}, {sX}, 2')
    a(f's_lshr_b32 {sA}, {sJ}, 3')
    a(f's_add_u32 {sRB}, {sRB}, {sA}')
    a(f's_and_b32 {sCS}, {sJ}, 7')
    a(f's_lshl_b32 {sT32}, {sRB}, 1')
    a(f's_and_b32 {sA}, {sCS}, 1')
    a(f's_add_u32 {sT32}, {sT32}, {sA}')
    a(f's_lshr_b32 {sCQ}, {sCS}, 1')
    a('v_mov_b32 v102, 0')
    a('s_waitcnt lgkmcnt(0)')
    a(f's_mov_b64 s[{TSRD}:{TSRD + 1}], s[{W1}:{W1 + 1}]')
    a(f's_mov_b32 s{TSRD + 2}, 524288')
    a(f's_mov_b32 s{TSRD + 3}, 0x20000')


EXA = 112
KMA, KMB, KMD = 108, 109, 104


def precompute():
    a(f's_load_dword {sT}, s[{WS}:{WS + 1}], {WS_EPOCH}')
    a(f'v_lshlrev_b32 {vr(vVB)}, 4, v2')
    a(f'v_lshl_add_u32 {vr(vVB)}, v3, 9, {vr(vVB)}')
    a('v_and_b32 v16, 255, v0')
    a('v_lshlrev_b32 v16, 3, v16')
    a(f's_lshr_b32 {sA}, {sWV}, 2')
    a(f's_mul_i32 {sA}, {sA}, {KT_CH}')
    a(f's_add_u32 {sA}, {sA}, {L_KT}')
    a(f'v_cvt_f32_u32 v17, {sA}')
    a(f's_add_u32 {sA}, {sA}, {2 * KT_ZERO}')
    a(f'v_mov_b32 v18, {sA}')
    a('v_cvt_f32_u32 v19, v16')
    a('v_cmp_eq_u32 vcc, 0, v16')
    for d in range(1, 12):
        dd = d - 4
        r = EXA + d
        a(f'v_add_f32 v20, {float(dd)}, v19' if -16 <= dd <= 4 and float(dd) in (-4.0, -2.0, -1.0, 1.0, 2.0, 4.0, 0.5) else
          f'v_add_f32 v20, {fconst(float(dd))}, v19')
        a('v_cvt_pk_bf16_f32 v20, v20, v20')
        a('v_and_b32 v20, 0xffff0000, v20')
        a('v_fma_f32 v20, v20, 2.0, v17')
        a(f'v_cvt_u32_f32 {vr(r)}, v20')
        if dd < 0:
            a(f'v_cndmask_b32 {vr(r)}, {vr(r)}, v18, vcc')
    a(f's_cmp_ge_u32 {sWV}, 3')
    a(f's_cselect_b32 {sA}, 1, 0')
    a(f's_mul_i32 {sB}, {sA}, 3')
    a(f's_sub_u32 {sB}, {sWV}, {sB}')
    a(f's_mul_i32 {sC}, {sA}, {G_CH}')
    a(f's_mul_i32 {sD}, {sB}, {16 * G_ROW}')
    a(f's_add_u32 {sC}, {sC}, {sD}')
    a(f'v_mul_u32_u24 v16, {G_ROW}, v2')
    a('v_lshl_add_u32 v16, v3, 4, v16')
    a(f'v_add_u32 {vr(KMA)}, {sC}, v16')
    a(f's_mul_i32 {sC}, {sA}, {E_CH}')
    a(f's_add_u32 {sC}, {sC}, {L_E}')
    a(f'v_add_u32 {vr(KMB)}, {sC}, v16')
    bases = [(0, 4, 128, 132), (256, 384, 512, 516), (1024, 1536, 2048, 2049)]
    steps = [(1, 1, 1, 1), (2, 2, 128, 128), (128, 128, 128, 128)]
    pk2 = lambda x, y: x | (y << 16)
    pk4 = lambda t: t[0] | (t[1] << 8) | (t[2] << 16) | (t[3] << 24)
    for reg, vals in ((sC, [pk2(b[0], b[1]) for b in bases]), (sD, [pk2(b[2], b[3]) for b in bases]),
                      (sE, [pk4(s) for s in steps])):
        a(f's_mov_b32 {reg}, {vals[0]}')
        a(f's_cmp_eq_u32 {sB}, 1')
        a(f's_cselect_b32 {reg}, {vals[1]}, {reg}')
        a(f's_cmp_eq_u32 {sB}, 2')
        a(f's_cselect_b32 {reg}, {vals[2]}, {reg}')
    a('v_cmp_gt_u32 vcc, 2, v3')
    a(f'v_mov_b32 v16, {sD}')
    a(f'v_mov_b32 v17, {sC}')
    a('v_cndmask_b32 v16, v16, v17, vcc')
    a('v_and_b32 v17, 1, v3')
    a('v_lshlrev_b32 v17, 4, v17')
    a('v_bfe_u32 v16, v16, v17, 16')
    a('v_lshlrev_b32 v17, 3, v3')
    a(f'v_bfe_u32 v17, {sE}, v17, 8')
    a('v_lshl_add_u32 v16, v2, 3, v16')
    a(f's_mul_i32 {sC}, {sA}, {KT_CH}')
    a(f's_add_u32 {sC}, {sC}, {L_KT}')
    a(f'v_lshlrev_b32 v16, 1, v16')
    a(f'v_add_u32 {vr(KMD)}, {sC}, v16')
    a('v_lshlrev_b32 v17, 1, v17')
    for r in range(1, 4):
        a(f'v_add_u32 {vr(KMD + r)}, {vr(KMD + r - 1)}, v17')
    a('s_waitcnt lgkmcnt(0)')
    a(f's_add_u32 {sT}, {sT}, 1')


def role_k():
    a(f's_lshr_b32 {sA}, {sWV}, 1')
    a(f's_add_u32 {sB}, {sCH0}, {sA}')
    a(f's_and_b32 {sC}, {sWV}, 1')
    a(f's_lshl_b32 {sC}, {sC}, 6')
    a(f's_lshl_b32 {sD}, {sB}, 7')
    a(f's_add_u32 {sD}, {sD}, {sC}')
    a(f'v_add_u32 v21, {sD}, v1')
    a('v_lshlrev_b32 v21, 1, v21')
    a(f's_lshl_b32 {sB}, {sB}, 1')
    a(f'v_mov_b32 v22, {sB}')
    for i, s in enumerate((ARE, AIM, BRE, BIM, CRE, CIM)):
        bload(24 + i, 'u16', 21, s)
    bload(30, 'u16', 22, LDT)
    if PRETOUCH:
        a(f'v_lshlrev_b32 v126, {PRETOUCH}, v1')
        a('v_min_u32 v126, ' + str(WS_USED - 4) + ', v126')
        bload(127, 1, 126, WS)
    a(f's_mul_i32 {sB}, {sA}, {G_CH}')
    a(f'v_add_u32 v22, {sC}, v1')
    a('v_lshlrev_b32 v22, 2, v22')
    a(f'v_add_u32 v23, {sB}, v22')
    a(f's_mul_i32 {sB}, {sA}, {E_CH}')
    a(f's_add_u32 {sB}, {sB}, {L_E}')
    a(f'v_add_u32 v22, {sB}, v22')
    precompute()
    swz_issue()
    a('s_waitcnt vmcnt(0)')
    stamp('r_loaded')
    for i in range(7):
        a(f'v_lshlrev_b32 {vr(24 + i)}, 16, {vr(24 + i)}')
    LOG2E = 1.4426950408889634
    hi = struct.unpack('<f', struct.pack('<f', LOG2E))[0]
    lo = LOG2E - hi
    a(f'v_mul_f32 v32, {fconst(hi)}, v30')
    a(f'v_mov_b32 v31, {fconst(hi)}')
    a('v_fma_f32 v33, v30, v31, -v32')
    a(f'v_fmamk_f32 v33, v30, {fconst(lo)}, v33')
    a('v_exp_f32 v32, v32')
    a(f'v_mul_f32 v33, {fconst(0.6931471805599453)}, v33')
    a('v_fma_f32 v32, v32, v33, v32')
    a('v_cvt_pk_bf16_f32 v32, v32, v32')
    a('v_lshlrev_b32 v30, 16, v32')
    a('v_mul_f32 v24, v24, v30')
    a('v_mul_f32 v25, v25, v30')
    a(f'v_mul_f32 v24, {fconst(hi)}, v24')
    a(f'v_mul_f32 v25, {fconst(1.0 / (2 * 3.141592653589793))}, v25')
    a('v_mul_f32 v26, v26, v30')
    a('v_mul_f32 v27, v27, v30')
    cmul(32, 26, 28)
    for d, m in ((34, 1.0), (36, 8.0), (38, 128.0)):
        if m == 1.0:
            a('v_exp_f32 v40, v24'); a('v_fract_f32 v41, v25')
        else:
            a(f'v_mul_f32 v40, {fconst(m)}, v24')
            a(f'v_mul_f32 v41, {fconst(m)}, v25')
            a('v_exp_f32 v40, v40'); a('v_fract_f32 v41, v41')
        a('v_cos_f32 v42, v41')
        a('v_sin_f32 v43, v41')
        a(f'v_mul_f32 {vr(d)}, v40, v42')
        a(f'v_mul_f32 {vr(d + 1)}, v40, v43')
    P = {1: 34, 2: 44, 3: 46, 4: 48, 5: 50, 6: 52, 7: 54}
    cmul(P[2], P[1], P[1])
    cmul(P[3], P[2], P[1])
    cmul(P[4], P[2], P[2])
    cmul(P[5], P[4], P[1])
    cmul(P[6], P[4], P[2])
    cmul(P[7], P[4], P[3])

    def putG(rho, x):
        a(f'v_cvt_pk_bf16_f32 v31, {vr(x)}, -{vr(x + 1)}')
        a(f'ds_write_b32 v23, v31 offset:{rho * G_ROW}')

    def putE(j, x):
        a(f'v_cvt_pk_bf16_f32 v29, {vr(x)}, {vr(x + 1)}')
        a(f'ds_write_b32 v22, v29 offset:{j * G_ROW}')

    rows = {}
    for rho in range(41):
        if rho < 16:
            i, b = rho >> 3, rho & 7
        elif rho < 24:
            i, b = 2 + ((rho - 16) >> 2), 2 * ((rho - 16) & 3)
        elif rho < 32:
            i, b = 4 + ((rho - 24) & 3), 4 * ((rho - 24) >> 2)
        else:
            i, b = 8 + (rho - 32), 0
        rows.setdefault(i, []).append((rho, b))
    a('v_mov_b32 v29, 0x00003f80')
    a('ds_write_b32 v22, v29 offset:0')
    putE(1, 36)
    Ecur = 36
    Q = 32
    for i in range(17):
        for n_, (rho, b) in enumerate(rows[i]):
            if b == 0:
                putG(rho, Q)
            else:
                t = 64 + 2 * (n_ & 1)
                cmul(t, Q, P[b])
                putG(rho, t)
        if i < 16:
            nq = 60 if Q != 60 else 62
            cmul(nq, Q, 38)
            Q = nq
        j = i + 2
        if j < 16:
            ne = 56 if Ecur != 56 else 58
            cmul(ne, Ecur, 36)
            putE(j, ne)
            Ecur = ne
    if not os.environ.get('SWZLATE'):
        a('v_mov_b32 v14, v102')
        swz_dma()


def swz_issue():
    a(f's_lshl_b32 {sA}, s2, 2')
    a(f's_add_u32 {sA}, {sA}, {sWV}')
    a(f's_add_u32 {sA}, {sA}, 128')
    a(f's_cmp_lt_u32 {sA}, 952')
    a(f's_cselect_b32 {sSN}, 4, 0')
    a(f's_cselect_b32 {sA}, {sA}, 128')
    a(f's_mov_b64 s[{TSRD}:{TSRD + 1}], s[{W1}:{W1 + 1}]')
    a(f's_mov_b32 s{TSRD + 2}, 524288')
    a(f's_mov_b32 s{TSRD + 3}, 0x20000')
    a(f's_mov_b32 {sSD}, {WS_W1S}')
    a(f's_mov_b32 {sSS}, 16384')
    a(f's_mov_b32 {sF}, 1024')
    a(f's_mov_b32 {sB}, {sA}')
    a(f's_cmp_ge_u32 {sA}, 128')
    a(f's_cselect_b64 s[{TSRD}:{TSRD + 1}], s[{W2}:{W2 + 1}], s[{TSRD}:{TSRD + 1}]')
    a(f's_cselect_b32 {sSD}, {WS_W2S}, {sSD}')
    a(f's_cselect_b32 {sC}, 128, 0')
    a(f's_sub_u32 {sB}, {sA}, {sC}')
    a(f's_cmp_ge_u32 {sA}, 256')
    a(f's_cselect_b64 s[{TSRD}:{TSRD + 1}], s[{W3}:{W3 + 1}], s[{TSRD}:{TSRD + 1}]')
    a(f's_cselect_b32 s{TSRD + 2}, {512 * F_ * 2}, s{TSRD + 2}')
    a(f's_cselect_b32 {sSD}, {WS_W3S}, {sSD}')
    a(f's_cselect_b32 {sF}, {F_ * 2}, {sF}')
    a(f's_cselect_b32 {sC}, 256, 0')
    a(f's_cselect_b32 {sD}, 1, 0')
    a(f's_cmp_lg_u32 {sD}, 0')
    a(f's_sub_u32 {sC}, {sA}, {sC}')
    a(f's_cmp_lg_u32 {sD}, 0')
    a(f's_cselect_b32 {sB}, {sC}, {sB}')
    a(f's_and_b32 {sC}, {sB}, 15')
    a(f's_lshr_b32 {sD}, {sB}, 4')
    a(f's_mov_b32 {sE}, 16')
    a(f's_cmp_ge_u32 {sA}, 608')
    a(f's_cselect_b64 s[{TSRD}:{TSRD + 1}], s[{W4}:{W4 + 1}], s[{TSRD}:{TSRD + 1}]')
    a(f's_cselect_b32 {sSD}, {WS_W4S}, {sSD}')
    a(f's_cselect_b32 {sF}, 1024, {sF}')
    a(f's_cselect_b32 {sE}, 43, {sE}')
    a(f's_cselect_b32 {sSS}, {43 * 1024}, {sSS}')
    a(f's_sub_u32 {sB}, {sA}, 608')
    a(f's_lshr_b32 {sSB}, {sB}, 3')
    a(f's_and_b32 {sB}, {sB}, 7')
    a(f's_cmp_ge_u32 {sA}, 608')
    a(f's_cselect_b32 {sC}, {sSB}, {sC}')
    a(f's_cselect_b32 {sD}, {sB}, {sD}')
    a(f's_cselect_b32 {sB}, 0, {sD}')
    a(f's_cmp_eq_u32 {sB}, 21')
    a(f's_cselect_b32 {sB}, 2, 4')
    a(f's_min_u32 {sSN}, {sSN}, {sB}')
    a(f's_lshl_b32 {sB}, {sD}, 2')
    a(f's_mul_i32 {sB}, {sB}, {sE}')
    a(f's_add_u32 {sB}, {sB}, {sC}')
    a(f's_lshl_b32 {sB}, {sB}, 10')
    a(f's_add_u32 {sSD}, {sSD}, {sB}')
    a(f's_mul_i32 {sC}, {sC}, {sF}')
    a(f's_lshl_b32 {sC}, {sC}, 5')
    a(f's_lshl_b32 {sD}, {sD}, 7')
    a(f's_add_u32 {sC}, {sC}, {sD}')
    a('v_lshrrev_b32 v100, 3, v1')
    a(f'v_mul_lo_u32 v100, v100, {sF}')
    a('v_and_b32 v101, 7, v1')
    a('v_lshl_add_u32 v102, v101, 4, v100')
    a(f's_lshl_b32 {sB}, {sWV}, 12')
    a(f's_add_u32 {sSB}, {sB}, {L_STG}')
    a(f's_lshl_b32 {sSR}, {sF}, 3')
    a(f's_mov_b32 {sSO}, {sC}')


def swz_dma():
    a(f's_mov_b32 {sC}, {sSO}')
    for q in range(4):
        if q:
            a(f's_add_u32 {sC}, {sC}, {sSR}')
        a(f's_add_u32 {sB}, {sSB}, {q * 1024}')
        dma(4, 14, TSRD, sB, soff=sC)


def swz_finish():
    a('v_lshrrev_b32 v46, 2, v2')
    a('v_lshl_add_u32 v46, v3, 3, v46')
    a('v_lshlrev_b32 v46, 7, v46')
    a('v_and_b32 v47, 3, v2')
    a('v_lshl_add_u32 v46, v47, 3, v46')
    a(f'v_add_u32 v46, {sSB}, v46')
    for nt in range(4):
        a(f'ds_read_b64_tr_b16 {vr(48 + 4 * nt, 2)}, v46 offset:{32 * nt}')
        a(f'ds_read_b64_tr_b16 {vr(50 + 4 * nt, 2)}, v46 offset:{32 * nt + 512}')
    a('s_waitcnt lgkmcnt(0)')
    a(f's_mov_b32 {sA}, {sSD}')
    a(f's_mov_b32 {sB}, 0x7ff00000')
    for nt in range(4):
        a(f's_cmp_gt_u32 {sSN}, {nt}')
        a(f's_cselect_b32 {sC}, {sA}, {sB}')
        bstore(48 + 4 * nt, 4, vL16, WS, soff=sC, mods='sc1')
        a(f's_add_u32 {sA}, {sA}, {sSS}')


def role_stats():
    a(f's_lshl_b32 {sA}, s2, 13')
    a(f's_add_u32 {sB}, {sA}, 4096')
    for i in range(8):
        bload(24 + 4 * i, 4, vL16, U, imm=(i & 3) * 1024, soff=(sA if i < 4 else sB))
    precompute()
    a('v_mov_b32 v23, 0x3f803f80')
    a('s_waitcnt vmcnt(7)')
    stamp('r_loaded')
    for i in range(8):
        a(f's_waitcnt vmcnt({7 - i})')
        b = 24 + 4 * i
        a(f'v_dot2_f32_bf16 {vr(60 + i)}, {vr(b)}, v23, 0')
        a(f'v_dot2_f32_bf16 {vr(68 + i)}, {vr(b)}, {vr(b)}, 0')
        for k in range(1, 4):
            a(f'v_dot2c_f32_bf16 {vr(60 + i)}, {vr(b + k)}, v23')
            a(f'v_dot2c_f32_bf16 {vr(68 + i)}, {vr(b + k)}, {vr(b + k)}')
    for base in (60, 68):
        for i in range(4):
            a(f'v_permlane32_swap_b32 {vr(base + i)}, {vr(base + i + 4)}')
        for i in range(4):
            a(f'v_add_f32 {vr(base + i)}, {vr(base + i)}, {vr(base + i + 4)}')
    for base in (60, 68):
        for i in range(2):
            a(f'v_permlane16_swap_b32 {vr(base + i)}, {vr(base + i + 2)}')
        for i in range(2):
            a(f'v_add_f32 {vr(base + i)}, {vr(base + i)}, {vr(base + i + 2)}')
    for sh in (1, 2, 4, 8):
        for r in (60, 61, 68, 69):
            a(f'v_add_f32_dpp {vr(r)}, {vr(r)}, {vr(r)} row_ror:{sh} row_mask:0xf bank_mask:0xf')
    for p in range(2):
        S, Q = 60 + p, 68 + p
        d = 72 + 4 * p
        a(f'v_mul_f32 {vr(S)}, {fconst(1.0 / 512)}, {vr(S)}')
        a(f'v_mul_f32 {vr(Q)}, {fconst(1.0 / 512)}, {vr(Q)}')
        a(f'v_fma_f32 {vr(Q)}, -{vr(S)}, {vr(S)}, {vr(Q)}')
        a(f'v_max_f32 {vr(Q)}, 0, {vr(Q)}')
        a(f'v_add_f32 {vr(Q)}, {fconst(1e-5)}, {vr(Q)}')
        a(f'v_rsq_f32 {vr(d)}, {vr(Q)}')
        a(f'v_mov_b32 {vr(d + 1)}, {sT}')
        a(f'v_mov_b32 {vr(d + 3)}, {sT}')
        a(f'v_mul_f32 {vr(d + 2)}, {vr(S)}, {vr(d)}')
    a(f's_lshl_b32 {sA}, s2, 7')
    a(f's_add_u32 {sA}, {sA}, {WS_STATS}')
    a('v_lshlrev_b32 v21, 5, v3')
    save_exec_mask(0x0001000100010001)
    bstore(72, 4, 21, WS, soff=sA, mods='sc1')
    bstore(76, 4, 21, WS, imm=16, soff=sA, mods='sc1')
    restore_exec()
    stamp('r_pub')


L_SIL = 139264


def role_mod():
    lskip = a.newlabel('L_nomod'); ldone = a.newlabel('L_moddone')
    a('s_cmp_ge_u32 s2, 192')
    a(f's_cbranch_scc1 {lskip}')
    a(f's_mul_i32 {sA}, {sJ}, 43')
    a(f's_lshr_b32 {sA}, {sA}, 8')
    a(f's_mul_i32 {sB}, {sA}, 6')
    a(f's_sub_u32 {sB}, {sJ}, {sB}')
    a(f's_lshl_b32 {sB}, {sB}, 3')
    a(f's_add_u32 {sNV}, {sB}, {sX}')
    a(f's_lshl_b32 {sA}, {sA}, 1')
    a(f's_add_u32 {sA}, {sA}, {sWV}')
    a(f's_sub_u32 {sNT3}, {sA}, 5')
    a('v_lshlrev_b32 v22, 1, v1')
    a(f's_lshl_b32 {sA}, {sNT3}, 7')
    bload(24, 'u16', 22, CC, soff=sA)
    a('v_lshrrev_b32 v21, 3, v1')
    a('v_mul_u32_u24 v23, 6144, v21')
    a('v_and_b32 v40, 7, v1')
    a('v_lshl_add_u32 v23, v40, 4, v23')
    a(f's_mul_i32 {sA}, {sNT3}, {64 * 6144}')
    a(f's_lshl_b32 {sB}, {sNV}, 7')
    a(f's_add_u32 {sA}, {sA}, {sB}')
    for i in range(8):
        if i:
            a(f's_add_u32 {sA}, {sA}, {8 * 6144}')
        bload(64 + 4 * i, 4, 23, WMOD, soff=sA)
    precompute()
    a('s_waitcnt vmcnt(8)')
    stamp('r_loaded')
    a('v_lshlrev_b32 v24, 16, v24')
    a(f'v_mul_f32 v58, {fconst(-1.4426950408889634)}, v24')
    a('v_exp_f32 v58, v58')
    a('v_add_f32 v58, 1.0, v58')
    a('v_rcp_f32 v58, v58')
    a('v_mul_f32 v58, v58, v24')
    a('v_cvt_pk_bf16_f32 v58, v58, v58')
    a('v_and_b32 v56, 0xffff, v58')
    a('v_and_b32 v57, 0xffff0000, v58')
    a(f's_sub_u32 {sA}, {sWV}, 5')
    a(f's_lshl_b32 {sA}, {sA}, 9')
    a(f's_add_u32 {sA}, {sA}, {L_SIL}')
    a('v_and_b32 v25, 7, v1')
    a('v_lshlrev_b32 v25, 5, v25')
    a('v_lshrrev_b32 v26, 3, v1')
    a('v_lshl_add_u32 v25, v26, 2, v25')
    a(f'v_add_u32 v25, {sA}, v25')
    a('ds_write_b32 v25, v56')
    a('ds_write_b32 v25, v57 offset:256')
    a(f'v_lshl_add_u32 v25, v21, 5, {sA}')
    a('s_waitcnt lgkmcnt(0)')
    a('ds_read_b128 v[24:27], v25') if False else None
    a('ds_read_b128 v[28:31], v25')
    a('ds_read_b128 v[32:35], v25 offset:16')
    a('ds_read_b128 v[40:43], v25 offset:256')
    a('ds_read_b128 v[44:47], v25 offset:272')
    a('s_waitcnt lgkmcnt(0)')
    ACC = 48
    for i in range(8):
        a(f's_waitcnt vmcnt({7 - i})')
        b = 64 + 4 * i
        for k in range(4):
            if i == 0:
                a(f'v_dot2_f32_bf16 {vr(ACC + 2 * k)}, {vr(b + k)}, {vr(28 + i)}, 0')
                a(f'v_dot2_f32_bf16 {vr(ACC + 1 + 2 * k)}, {vr(b + k)}, {vr(40 + i)}, 0')
            else:
                a(f'v_dot2c_f32_bf16 {vr(ACC + 2 * k)}, {vr(b + k)}, {vr(28 + i)}')
                a(f'v_dot2c_f32_bf16 {vr(ACC + 1 + 2 * k)}, {vr(b + k)}, {vr(40 + i)}')
    for i in range(4):
        a(f'v_permlane32_swap_b32 {vr(ACC + i)}, {vr(ACC + 4 + i)}')
    for i in range(4):
        a(f'v_add_f32 {vr(ACC + i)}, {vr(ACC + i)}, {vr(ACC + 4 + i)}')
    for i in range(2):
        a(f'v_permlane16_swap_b32 {vr(ACC + i)}, {vr(ACC + 2 + i)}')
    for i in range(2):
        a(f'v_add_f32 {vr(ACC + i)}, {vr(ACC + i)}, {vr(ACC + 2 + i)}')
    for r in (ACC, ACC + 1):
        a(f'v_add_f32_dpp {vr(r)}, {vr(r)}, {vr(r)} row_ror:8 row_mask:0xf bank_mask:0xf')
    a('v_and_b32 v21, 1, v3')
    a('v_lshlrev_b32 v21, 1, v21')
    a('v_lshrrev_b32 v22, 1, v3')
    a('v_lshl_add_u32 v21, v22, 2, v21')
    a('v_and_b32 v22, 7, v1')
    a('v_lshl_add_u32 v21, v22, 3, v21')
    a('v_lshlrev_b32 v21, 3, v21')
    a(f's_mul_i32 {sA}, {sNT3}, 3072')
    a(f's_lshl_b32 {sB}, {sNV}, 6')
    a(f's_add_u32 {sA}, {sA}, {sB}')
    a(f's_lshl_b32 {sA}, {sA}, 3')
    a(f's_add_u32 {sA}, {sA}, {WS_MODG}')
    a(f'v_mov_b32 {vr(ACC + 2)}, {vr(ACC + 1)}')
    a(f'v_mov_b32 {vr(ACC + 1)}, {sT}')
    a(f'v_mov_b32 {vr(ACC + 3)}, {sT}')
    save_exec_mask(0x00ff00ff00ff00ff)
    bstore(ACC, 4, 21, WS, soff=sA, mods='sc1')
    restore_exec()
    stamp('r_pub')
    a(f's_branch {ldone}')
    a.label(lskip)
    precompute()
    a.label(ldone)


def role_xt():
    a('v_lshlrev_b32 v21, 10, v1')
    a(f's_lshl_b32 {sA}, {sJ}, 16')
    a(f's_lshl_b32 {sB}, {sX}, 7')
    a(f's_add_u32 {sA}, {sA}, {sB}')
    for i in range(8):
        bload(24 + 4 * i, 4, 21, U, imm=16 * i, soff=sA)
    precompute()
    for k in range(4):
        a(f'v_mov_b32 {vr(57 + 2 * k)}, {sT}')
    a('v_lshlrev_b32 v21, 3, v1')
    a(f's_lshl_b32 {sA}, {sX}, 19')
    a(f's_lshl_b32 {sB}, {sJ}, 9')
    a(f's_add_u32 {sA}, {sA}, {sB}')
    a(f's_add_u32 {sA}, {sA}, {WS_XT}')
    for p in range(32):
        if p % 4 == 0:
            a(f's_waitcnt vmcnt({7 - p // 4 + p})')
            if p == 0:
                stamp('r_loaded')
        t = 56 + 2 * (p % 4)
        a(f'v_mov_b32 {vr(t)}, {vr(24 + p)}')
        bstore(t, 2, 21, WS, soff=sA, mods='sc1')
        if p < 31:
            a(f's_add_u32 {sA}, {sA}, 16384')
    stamp('r_pub')


def phase_a():
    lk = 'L_roleK'; l56 = 'L_role56'; l7 = 'L_role7'; lj = 'L_A_join'
    stamp('entry')
    a(f's_cmp_lt_u32 {sWV}, 4')
    a(f's_cbranch_scc1 {lk}')
    a('s_setprio 2')
    a(f's_cmp_eq_u32 {sWV}, 7')
    a(f's_cbranch_scc1 {l7}')
    a(f's_cmp_ge_u32 {sWV}, 5')
    a(f's_cbranch_scc1 {l56}')
    role_stats()
    a(f's_branch {lj}')
    a.label(l56)
    role_mod()
    a(f's_branch {lj}')
    a.label(l7)
    role_xt()
    a(f's_branch {lj}')
    a.label(lk)
    role_k()
    a.label(lj)
    a('s_setprio 0')
    for k in range(4):
        a(f'v_mov_b32 {vr(24 + k)}, 0')
    a('v_lshrrev_b32 v21, 5, v0')
    a(f'v_mul_u32_u24 v21, {H_CH}, v21')
    a('v_and_b32 v22, 31, v0')
    a('v_lshl_add_u32 v21, v22, 4, v21')
    a(f'v_add_u32 v21, {L_H}, v21')
    a('v_subrev_u32 v22, 64, v0')
    a('v_lshrrev_b32 v23, 1, v22')
    a(f'v_mul_u32_u24 v23, {CP_R}, v23')
    a('v_and_b32 v22, 1, v0')
    a('v_lshl_add_u32 v23, v22, 4, v23')
    a(f'v_add_u32 v23, {L_COPY}, v23')
    a('v_cmp_gt_u32 vcc, 64, v0')
    a('v_cndmask_b32 v21, v23, v21, vcc')
    a(f'v_mul_u32_u24 v22, {KT_CH}, v22')
    a(f'v_add_u32 v22, {L_KT + 2 * KT_ZERO}, v22')
    lz = a.newlabel('L_z')
    a(f's_cmp_ge_u32 {sWV}, 2')
    a(f's_cbranch_scc1 {lz}')
    a('v_cmp_gt_u32 vcc, 80, v0')
    a(f's_and_saveexec_b64 s[{sX0}:{sX0 + 1}], vcc')
    a('ds_write_b128 v21, v[24:27]')
    a('ds_write_b16 v22, v24')
    restore_exec()
    a.label(lz)
    a('s_waitcnt lgkmcnt(0)')
    stamp('role_done')
    a('s_barrier')
    stamp('B1')
    lsk = a.newlabel('L_kmf')
    a(f's_cmp_ge_u32 {sWV}, 6')
    a(f's_cbranch_scc1 {lsk}')
    for ks in range(8):
        a(f'ds_read_b128 {vr(24 + 8 * ks, 4)}, {vr(KMA)} offset:{64 * ks}')
        a(f'ds_read_b128 {vr(28 + 8 * ks, 4)}, {vr(KMB)} offset:{64 * ks}')
    for ks in range(8):
        a(f's_waitcnt lgkmcnt({14 - 2 * ks})')
        acc = 88 + 4 * (ks & 1)
        mfma(acc, 24 + 8 * ks, 28 + 8 * ks, None if ks < 2 else acc)
    for k in range(4):
        a(f'v_add_f32 {vr(88 + k)}, {vr(88 + k)}, {vr(92 + k)}')
    a('v_cvt_pk_bf16_f32 v96, v88, v89')
    a('v_cvt_pk_bf16_f32 v97, v90, v91')
    a(f'ds_write_b16 {vr(KMD)}, v96')
    a(f'ds_write_b16_d16_hi {vr(KMD + 1)}, v96')
    a(f'ds_write_b16 {vr(KMD + 2)}, v97')
    a(f'ds_write_b16_d16_hi {vr(KMD + 3)}, v97')
    a('s_waitcnt lgkmcnt(0)')
    a.label(lsk)
    a('s_barrier')
    stamp('B2')
    for d in range(1, 12):
        a(f'ds_read_u16 {vr(24 + d)}, {vr(EXA + d)}')
    a(f's_lshr_b32 {sA}, {sWV}, 2')
    a(f's_mul_i32 {sA}, {sA}, {CP_CH}')
    a(f's_add_u32 {sA}, {sA}, {L_COPY + 32}')
    a('v_and_b32 v22, 255, v0')
    a(f'v_lshl_add_u32 v21, v22, 4, {sA}')
    a('s_waitcnt lgkmcnt(0)')
    for r in range(4):
        d = 36 + 4 * r
        for p in range(4):
            a(f'v_lshl_or_b32 {vr(d + p)}, {vr(24 + 5 + 2 * p - r)}, 16, {vr(24 + 4 + 2 * p - r)}')
        a(f'ds_write_b128 v21, {vr(d, 4)} offset:{r * CP_R}')
    if os.environ.get('SWZEARLY'):
        lsw = a.newlabel('L_swzfin')
        a(f's_cmp_ge_u32 {sWV}, 4')
        a(f's_cbranch_scc1 {lsw}')
        a('s_waitcnt vmcnt(0)')
        swz_finish()
        a.label(lsw)
    stamp('expanded')


def spin_guard(label_retry):
    a(f's_add_u32 {sSPIN}, {sSPIN}, 1')
    a(f's_cmp_lt_u32 {sSPIN}, {SPIN_MAX}')
    a(f's_cbranch_scc1 {label_retry}')


def tags_check(tags, lo, hi):
    a(f'v_min3_u32 {vr(lo)}, {vr(tags[0])}, {vr(tags[1])}, {vr(tags[2])}')
    a(f'v_max3_u32 {vr(hi)}, {vr(tags[0])}, {vr(tags[1])}, {vr(tags[2])}')
    k = 3
    while k < len(tags):
        t2 = tags[k + 1] if k + 1 < len(tags) else tags[k]
        a(f'v_min3_u32 {vr(lo)}, {vr(lo)}, {vr(tags[k])}, {vr(t2)}')
        a(f'v_max3_u32 {vr(hi)}, {vr(hi)}, {vr(tags[k])}, {vr(t2)}')
        k += 2
    a(f'v_cmp_ne_u32 vcc, {sT}, {vr(lo)}')
    a(f'v_cmp_ne_u32 s[{sX0}:{sX0 + 1}], {sT}, {vr(hi)}')
    a('s_nop 0')
    a(f's_or_b64 vcc, vcc, s[{sX0}:{sX0 + 1}]')


def phase_b():
    a(f's_lshl_b32 {sA}, {sWV}, 12')
    a(f'v_add_u32 v21, {sA}, {vr(vL16)}')
    a('v_lshrrev_b32 v14, 3, v1')
    a('v_cmp_gt_u32 vcc, 6, v14')
    a('v_cndmask_b32 v14, 0, v14, vcc') if False else None
    a('v_mov_b32 v15, 0')
    a('v_cndmask_b32 v14, v15, v14, vcc')
    a('v_lshrrev_b32 v15, 1, v14')
    a('v_lshlrev_b32 v15, 9, v15')
    a('v_and_b32 v14, 1, v14')
    a('v_add_u32 v15, v15, v14')
    a(f'v_add_u32 v15, {sCH0}, v15')
    a('v_and_b32 v14, 7, v1')
    a('v_mul_u32_u24 v14, 3072, v14')
    a('v_add_u32 v15, v15, v14')
    a('v_lshlrev_b32 v22, 3, v15')
    a(f's_mov_b32 {sB}, {WS_STATS}')
    a('v_lshrrev_b32 v20, 1, v21')
    a(f's_lshl_b32 {sD}, {sX}, 5'); a(f's_add_u32 {sD}, {sD}, {sJ}'); a(f's_lshl_b32 {sD}, {sD}, 14')
    a(f's_add_u32 {sD}, {sD}, {WS_XT}')
    if not NOSCOUT:
        lsk = a.newlabel('L_scoutskip'); lsp = a.newlabel('L_scout'); lso = a.newlabel('L_scoutok')
        a(f's_cmp_lg_u32 {sWV}, 0')
        a(f's_cbranch_scc1 {lsk}')
        a('v_lshlrev_b32 v24, 7, v1')
        a('v_and_b32 v25, 31, v1')
        a('v_lshlrev_b32 v25, 9, v25')
        a(f's_mov_b32 {sSPIN}, 0')
        a.label(lsp)
        for i in range(4):
            a(f's_mov_b32 {sC}, {WS_STATS + 8192 * i}')
            bload(28 + i, 1, 24, WS, imm=4, soff=sC, mods='sc1')
        bload(32, 1, 25, WS, imm=4, soff=sD, mods='sc1')
        a(f's_mov_b32 {sC}, {WS_MODG}')
        bload(33, 1, 22, WS, imm=4, soff=sC, mods='sc1')
        a('s_waitcnt vmcnt(0)')
        tags_check([28, 29, 30, 31, 32, 33], 34, 35)
        a(f's_cbranch_vccz {lso}')
        spin_guard(lsp)
        a.label(lso)
        a.label(lsk)
        a('s_barrier')
        stamp('scout')
    a(f's_mov_b32 {sSPIN}, 0')
    lp = 'L_S1_poll'; lok = 'L_S1_ok'
    a.label(lp)
    for i in range(4):
        bload(44 + 4 * i, 4, 21, WS, imm=1024 * i, soff=sB, mods='sc1')
        bload(88 + 2 * i, 2, 20, WS, imm=512 * i, soff=sD, mods='sc1')
    a(f's_mov_b32 {sC}, {WS_MODG}')
    bload(60, 2, 22, WS, soff=sC, mods='sc1')
    a('s_waitcnt vmcnt(0)')
    tags = [45, 47, 49, 51, 53, 55, 57, 59, 61, 89, 91, 93, 95]
    if 'noxt' in XP: tags = [45, 47, 49, 51, 53, 55, 57, 59, 61]
    if 'nomod' in XP: tags = [45, 47, 49, 51, 53, 55, 57, 59, 89, 91, 93, 95]
    if 'nostat' in XP: tags = [61, 89, 91, 93, 95]
    tags_check(tags, 84, 85)
    a(f's_cbranch_vccz {lok}')
    spin_guard(lp)
    a.label(lok)
    stamp('S1ok')
    if os.environ.get('SWZLATE'):
        lsw = a.newlabel('L_swzdma')
        a(f's_cmp_ge_u32 {sWV}, 4')
        a(f's_cbranch_scc1 {lsw}')
        a('v_mov_b32 v14, v102')
        swz_dma()
        a.label(lsw)
    a('v_lshrrev_b32 v23, 2, v21')
    a(f'v_add_u32 v23, {L_XC}, v23')
    for i in range(4):
        a(f'ds_write_b32 v23, {vr(88 + 2 * i)} offset:{256 * i}')
    a('v_add_f32_dpp v60, v60, v60 quad_perm:[1,0,3,2] row_mask:0xf bank_mask:0xf')
    a('v_add_f32_dpp v60, v60, v60 quad_perm:[2,3,0,1] row_mask:0xf bank_mask:0xf')
    a('v_add_f32_dpp v60, v60, v60 row_half_mirror row_mask:0xf bank_mask:0xf')
    for i, dst in enumerate((60, 62, 64, 66, 68, 70)):
        a(f'v_readlane_b32 s{64 + i}, v60, {8 * i}')
    for i, dst in enumerate((60, 62, 64, 66, 68, 70)):
        a(f'v_mov_b32 {vr(dst)}, s{64 + i}')
    a('v_add_f32 v64, 1.0, v64'); a('v_add_f32 v66, 1.0, v66')
    a(f's_lshr_b32 {sHI}, {sWV}, 2'); a(f's_and_b32 {sLO}, {sWV}, 3')
    a(f's_lshl_b32 {sA}, {sCH0}, 1')
    a(f'v_mov_b32 v77, {sA}')
    bload(76, 1, 77, DSK)
    for i in range(4):
        r, mr = 44 + 4 * i, 46 + 4 * i
        a(f'v_lshlrev_b32 v80, 16, {vr(88 + 2 * i)}')
        a(f'v_and_b32 v81, 0xffff0000, {vr(88 + 2 * i)}')
        a(f'v_fma_f32 v80, v80, {vr(r)}, -{vr(mr)}')
        a(f'v_fma_f32 v81, v81, {vr(r)}, -{vr(mr)}')
        a('v_fma_f32 v80, v80, v64, v60')
        a('v_fma_f32 v81, v81, v66, v62')
        a(f'v_cvt_pk_bf16_f32 {vr(96 + i)}, v80, v81')
    a('v_lshrrev_b32 v23, 3, v21')
    a(f'v_add_u32 v23, {L_H + 512}, v23')
    for i in range(4):
        a(f'ds_write_b16 v23, {vr(96 + i)} offset:{128 * i}')
        a(f'ds_write_b16_d16_hi v23, {vr(96 + i)} offset:{H_CH + 128 * i}')
    a(f's_mul_i32 {sA}, {sHI}, {H_CH}')
    a(f's_lshl_b32 {sB}, {sLO}, 6')
    a(f's_sub_u32 {sA}, {sA}, {sB}')
    a(f's_add_u32 {sA}, {sA}, {L_H + 480 - 256}')
    a('v_lshlrev_b32 v21, 5, v2')
    a('v_lshl_add_u32 v21, v3, 4, v21')
    a(f'v_add_u32 v21, {sA}, v21')
    a(f's_mul_i32 {sA}, {sHI}, {CP_CH}')
    a(f's_add_u32 {sA}, {sA}, {sB}')
    a(f's_add_u32 {sA}, {sA}, {L_COPY + 64 - 8}')
    a('v_lshrrev_b32 v22, 2, v2')
    a(f'v_mul_u32_u24 v22, {CP_R}, v22')
    a('v_and_b32 v23, 3, v2')
    a('v_lshl_add_u32 v22, v23, 3, v22')
    a('v_lshlrev_b32 v23, 4, v3')
    a('v_sub_u32 v22, v22, v23')
    a(f'v_add_u32 v22, {sA}, v22')
    a(f's_lshl_b32 {sA}, {sWV}, 13')
    a(f'v_add_u32 v23, {sA}, {vr(vL16)}')
    mod_final_issue()
    if not os.environ.get('SWZEARLY') and not os.environ.get('SWZLATE'):
        lsw = a.newlabel('L_swzfin')
        a(f's_cmp_ge_u32 {sWV}, 4')
        a(f's_cbranch_scc1 {lsw}')
        swz_finish()
        a.label(lsw)
    a('s_waitcnt lgkmcnt(0)')
    a('s_barrier')
    stamp('B3')
    conv_touches()
    BF = 96; AF = 160; ACC = 224

    def ldA(i):
        r = AF + 4 * i
        a(f'ds_read_b64_tr_b16 {vr(r, 2)}, v22 offset:{256 * i + 8}')
        a(f'ds_read_b64_tr_b16 {vr(r + 2, 2)}, v22 offset:{256 * i}')

    def ldB(u):
        a(f'ds_read_b128 {vr(BF + 4 * u, 4)}, v21 offset:{256 * u}')
    seq = ['A0', 'B1', 'B3', 'B5', 'B7', 'B9', 'B11', 'B13', 'B15', 'A1', 'B0', 'B2', 'B4', 'B6', 'B8', 'B10', 'B12', 'B14'] + \
          [f'A{i}' for i in range(2, 16)]
    pos = {}
    n = 0
    for s_ in seq:
        n += 2 if s_[0] == 'A' else 1
        pos[s_] = n
    total = n
    issued = 0
    it = iter(seq)

    def issue_until(cnt):
        nonlocal issued
        while issued < min(cnt, total):
            s_ = next(it)
            if s_[0] == 'A':
                ldA(int(s_[1:])); issued += 2
            else:
                ldB(int(s_[1:])); issued += 1
    writes = 0
    issue_until(12)
    order = []
    stream = []
    q = []
    for s_ in seq:
        q += [s_] * (2 if s_[0] == 'A' else 1)
    ops = list(q[:issued])
    for i in range(16):
        nmin = i // 2 if i >= 1 else 0
        for nn in range(nmin, 8):
            u = 2 * nn - i + 1
            needs = [f'A{i}', f'B{u}']
            last_needed = max(idx for idx, o in enumerate(q) if o in needs)
            tgt = max(last_needed + 1, min(total, len([o for o in ops if o != 'W']) + 2))
            while len([o for o in ops if o != 'W']) < tgt:
                before = issued
                issue_until(issued + 1)
                ops += q[before:issued]
            lastidx = max(idx for idx, o in enumerate(ops) if o in needs)
            pend = len(ops) - 1 - lastidx
            key = ('wait', pend)
            if not hasattr(phase_b, 'done') or True:
                done_upto = getattr(phase_b, 'done_upto', -1)
                if lastidx > done_upto:
                    a(f's_waitcnt lgkmcnt({min(pend, 15)})')
                    phase_b.done_upto = lastidx if pend <= 15 else len(ops) - 1 - 15
            mfma(ACC + 4 * nn, AF + 4 * i, BF + 4 * u, None if i == 0 else ACC + 4 * nn)
        if os.environ.get('SWZLATE') and i == int(os.environ['SWZLATE']):
            lsw = a.newlabel('L_swzfin')
            a(f's_cmp_ge_u32 {sWV}, 4')
            a(f's_cbranch_scc1 {lsw}')
            a('s_waitcnt vmcnt(0)')
            swz_finish()
            a.label(lsw)
        if i >= 3 and i % 2 == 1:
            nn = (i - 1) // 2 - 1
            a(f'ds_write_b128 v23, {vr(ACC + 4 * nn, 4)} offset:{1024 * nn}')
            ops.append('W')
    a(f'ds_write_b128 v23, {vr(ACC + 28, 4)} offset:{1024 * 7}')
    mod_final_finish()
    a('s_waitcnt lgkmcnt(0)')
    a('s_barrier')
    stamp('B4')

    a(f's_lshl_b32 {sA}, {sWV}, 10')
    a(f'v_add_u32 v23, {sA}, {vr(vL16)}')
    for c in range(2):
        for qq in range(4):
            a(f'ds_read_b128 {vr(96 + 16 * c + 4 * qq, 4)}, v23 offset:{32768 * c + 8192 * qq}')
    a('v_lshlrev_b32 v21, 4, v2')
    a('v_lshl_add_u32 v21, v3, 2, v21')
    a(f's_lshl_b32 {sA}, {sWV}, 8')
    a(f'v_add_u32 v21, {sA}, v21')
    a('v_lshlrev_b32 v22, 2, v21')
    a('v_lshlrev_b32 v24, 1, v21')
    a(f'ds_read_b128 v[128:131], v22 offset:{L_XC}') if L_XC < 65536 else None
    if L_XC >= 65536:
        a(f'v_add_u32 v22, {L_XC}, v22')
        a('ds_read_b128 v[128:131], v22')
    a(f'v_add_u32 v24, {L_H + 512}, v24')
    a('ds_read_b64 v[136:137], v24')
    a(f'ds_read_b64 v[138:139], v24 offset:{H_CH}')
    a('v_lshrrev_b32 v25, 1, v2')
    a('v_lshlrev_b32 v25, 15, v25')
    a('v_and_b32 v26, 1, v2')
    a('v_lshl_add_u32 v25, v26, 5, v25')
    a('v_and_b32 v26, 1, v3')
    a('v_lshl_add_u32 v25, v26, 6, v25')
    a('v_lshrrev_b32 v26, 1, v3')
    a('v_lshl_add_u32 v25, v26, 4, v25')
    a(f's_lshl_b32 {sA}, {sWV}, 18')
    a(f's_lshl_b32 {sB}, {sCH0}, 6')
    a(f's_add_u32 {sA}, {sA}, {sB}')
    a(f's_add_u32 {sE}, {sA}, {WS_X2B}')
    a('s_waitcnt vmcnt(0)')
    a('v_lshlrev_b32 v77, 16, v76')
    a('v_and_b32 v76, 0xffff0000, v76')
    a('s_waitcnt lgkmcnt(0)')
    for c in range(2):
        y = 96 + 16 * c
        for k in range(0, 4, 2):
            a(f'v_pk_add_f32 {vr(y + k, 2)}, {vr(y + k, 2)}, {vr(y + 4 + k, 2)}')
            a(f'v_pk_add_f32 {vr(y + 8 + k, 2)}, {vr(y + 8 + k, 2)}, {vr(y + 12 + k, 2)}')
            a(f'v_pk_add_f32 {vr(y + k, 2)}, {vr(y + k, 2)}, {vr(y + 8 + k, 2)}')
        dsk = 77 if c == 0 else 76
        ga = 68 if c == 0 else 70
        for k in range(4):
            hreg = 136 + 2 * c + (k >> 1)
            if k & 1:
                a(f'v_and_b32 v26, 0xffff0000, {vr(hreg)}')
            else:
                a(f'v_lshlrev_b32 v26, 16, {vr(hreg)}')
            a(f'v_fma_f32 {vr(y + k)}, v26, {vr(dsk)}, {vr(y + k)}')
            if c == 0:
                a(f'v_lshlrev_b32 v27, 16, {vr(128 + k)}')
            else:
                a(f'v_and_b32 v27, 0xffff0000, {vr(128 + k)}')
            a(f'v_fma_f32 {vr(y + k)}, {vr(ga)}, {vr(y + k)}, v27')
        a(f'v_cvt_pk_bf16_f32 {vr(28 + 2 * c)}, {vr(y)}, {vr(y + 1)}')
        a(f'v_cvt_pk_bf16_f32 {vr(29 + 2 * c)}, {vr(y + 2)}, {vr(y + 3)}')
    a('v_permlane16_swap_b32 v28, v30')
    a('v_permlane16_swap_b32 v29, v31')
    bstore(28, 4, 25, WS, soff=sE, mods='sc1')
    a('s_waitcnt vmcnt(0)')
    stamp('x2stored')
    a('s_barrier')
    set_flag(WS_F2, 's2')


def mod_final_issue():
    ls = a.newlabel('L_modf')
    a(f's_cmp_lg_u32 {sWV}, 7')
    a(f's_cbranch_scc1 {ls}')
    a('v_lshrrev_b32 v14, 3, v1')
    a(f's_mul_i32 {sA}, s2, 12')
    a(f'v_add_u32 v14, {sA}, v14')
    a('v_and_b32 v15, 7, v1')
    a('v_mul_u32_u24 v15, 3072, v15')
    a('v_add_u32 v15, v15, v14')
    a('v_lshlrev_b32 v24, 3, v15')
    a('v_lshrrev_b32 v14, 3, v1')
    a('v_and_b32 v15, 3, v14')
    a('v_sub_u32 v14, v15, v14')
    a('v_add_u32 v14, 8, v14')
    a('v_lshl_add_u32 v25, v14, 3, v24')
    a(f's_mov_b32 {sC}, {WS_MODG}')
    bload(26, 2, 24, WS, soff=sC, mods='sc1')
    bload(28, 2, 25, WS, soff=sC, mods='sc1')
    a.label(ls)


def mod_final_finish():
    ls = a.newlabel('L_modf'); lp = a.newlabel('L_modp'); lok = a.newlabel('L_modok')
    a(f's_cmp_lg_u32 {sWV}, 7')
    a(f's_cbranch_scc1 {ls}')
    a('s_waitcnt vmcnt(0)')
    tags_check([27, 29, 29], 30, 31)
    a(f's_cbranch_vccz {lok}')
    a(f's_mov_b32 {sSPIN}, 0')
    a.label(lp)
    a(f's_mov_b32 {sC}, {WS_MODG}')
    bload(26, 2, 24, WS, soff=sC, mods='sc1')
    bload(28, 2, 25, WS, soff=sC, mods='sc1')
    a('s_waitcnt vmcnt(0)')
    tags_check([27, 29, 29], 30, 31)
    a(f's_cbranch_vccz {lok}')
    spin_guard(lp)
    a.label(lok)
    for r in (26, 28):
        a(f'v_add_f32_dpp {vr(r)}, {vr(r)}, {vr(r)} quad_perm:[1,0,3,2] row_mask:0xf bank_mask:0xf')
        a(f'v_add_f32_dpp {vr(r)}, {vr(r)}, {vr(r)} quad_perm:[2,3,0,1] row_mask:0xf bank_mask:0xf')
        a(f'v_add_f32_dpp {vr(r)}, {vr(r)}, {vr(r)} row_half_mirror row_mask:0xf bank_mask:0xf')
    a('v_lshrrev_b32 v14, 3, v1')
    a('v_lshlrev_b32 v14, 2, v14')
    a(f's_mul_i32 {sA}, s2, 48')
    a(f's_add_u32 {sA}, {sA}, {WS_MODF}')
    save_exec_mask(0x0101010101010101)
    bstore(26, 1, 14, WS, soff=sA, mods='sc1')
    a('s_mov_b32 exec_hi, 0')
    bstore(28, 1, 14, WS, imm=32, soff=sA, mods='sc1')
    restore_exec()
    a.label(ls)


def wfrags(dst, base, n, nt_sgpr=None, stride=16, first=0):
    if nt_sgpr is None:
        a(f's_lshl_b32 {sA}, {sCQ}, 3')
        a(f's_add_u32 {sA}, {sA}, {sWV}')
    else:
        a(f's_mov_b32 {sA}, {nt_sgpr}')
    a(f's_mul_i32 {sA}, {sA}, {stride * 1024}')
    a(f's_add_u32 {sA}, {sA}, {base + first * 1024}')
    for k in range(n):
        if k and k % 4 == 0:
            a(f's_add_u32 {sA}, {sA}, 4096')
        bload(dst + 4 * k, 4, vL16, WS, imm=(k % 4) * 1024, soff=sA, mods='sc1')


def wfrag_base(sreg, base, nt_sgpr=None, stride=16, first=0):
    if nt_sgpr is None:
        a(f's_lshl_b32 {sreg}, {sCQ}, 3')
        a(f's_add_u32 {sreg}, {sreg}, {sWV}')
    else:
        a(f's_mov_b32 {sreg}, {nt_sgpr}')
    a(f's_mul_i32 {sreg}, {sreg}, {stride * 1024}')
    a(f's_add_u32 {sreg}, {sreg}, {base + first * 1024}')


def wfrag_one(dst, sreg, k):
    if k and k % 4 == 0:
        a(f's_add_u32 {sreg}, {sreg}, 4096')
    bload(dst + 4 * k, 4, vL16, WS, imm=(k % 4) * 1024, soff=sreg, mods='sc1')


def not_poller(fn):
    l = a.newlabel('L_np')
    a(f's_cmp_eq_u32 {sWV}, 7')
    a(f's_cbranch_scc1 {l}')
    fn()
    a.label(l)


def only_poller(fn):
    l = a.newlabel('L_op')
    a(f's_cmp_lg_u32 {sWV}, 7')
    a(f's_cbranch_scc1 {l}')
    fn()
    a.label(l)


def pretouch(which, dst=31):
    if NOFAST or os.environ.get('NOTOUCH'):
        return
    a('v_lshrrev_b32 v14, 2, v1')
    a('v_and_b32 v15, 3, v1')
    a('v_lshlrev_b32 v15, 7, v15')
    if which in ('h1', 'x1'):
        if which == 'h1':
            a('v_mul_u32_u24 v14, 768, v14')
            a('v_add_u32 v14, v14, v15')
            a(f's_mul_i32 {sA}, {sT32}, 49152'); a(f's_mul_i32 {sB}, {sCQ}, {16 * 768}'); a(f's_add_u32 {sA}, {sA}, {sB}')
            a(f's_add_u32 {sA}, {sA}, {WS_H1 + 128}')
        else:
            a('v_lshl_add_u32 v14, v14, 9, v15')
            a(f's_lshl_b32 {sA}, {sT32}, 15'); a(f's_lshl_b32 {sC}, {sCQ}, 13'); a(f's_add_u32 {sA}, {sA}, {sC}')
            a(f's_add_u32 {sA}, {sA}, {WS_X1}')
        bload(dst, 1, 14, WS, soff=sA)
        return
    else:
        a('v_lshl_add_u32 v14, v14, 9, v15')
        a(f's_sub_u32 {sA}, {sNT3}, {sWV}')
        a(f's_lshl_b32 {sA}, {sA}, 10')
        a(f's_lshl_b32 {sB}, {sRB}, 1'); a(f's_lshr_b32 {sC}, {sWV}, 1'); a(f's_add_u32 {sB}, {sB}, {sC}')
        a(f's_mul_i32 {sB}, {sB}, {86 * 1024}'); a(f's_add_u32 {sA}, {sA}, {sB}')
        a(f's_and_b32 {sB}, {sWV}, 1'); a(f's_lshl_b32 {sC}, {sB}, 13'); a(f's_add_u32 {sA}, {sA}, {sC}')
        a(f's_add_u32 {sA}, {sA}, {WS_H3}')
        a(f's_movk_i32 {sC}, {63 * 128}')
        a(f's_cmp_eq_u32 {sB}, 1')
        a(f's_cselect_b32 {sB}, {23 * 128}, {sC}')
        a(f'v_min_u32 v14, {sB}, v14')
        a(f's_cmp_lt_u32 {sWV}, 4')
    a('s_cselect_b64 exec, -1, 0')
    bload(dst, 1, 14, WS, soff=sA)
    a('s_mov_b64 exec, -1')


def conv_touches():
    if os.environ.get('NOCT'):
        return
    a('v_lshlrev_b32 v14, 7, v1')
    a(f's_sub_u32 {sC}, {sWV}, 5')
    a(f's_lshl_b32 {sA}, {sJ}, 14'); a(f's_lshl_b32 {sB}, {sC}, 13'); a(f's_add_u32 {sA}, {sA}, {sB}')
    a(f's_cmp_lt_u32 {sC}, 2')
    a('s_cselect_b64 exec, -1, 0')
    bload(15, 1, 14, W1, soff=sA)
    a('s_mov_b64 exec, -1')


def wtouch(kind, dst):
    if os.environ.get('NOWT'):
        return
    a('v_lshlrev_b32 v14, 7, v1')
    a(f's_mul_i32 {sA}, {sJ}, {43 * 1024}')
    a(f's_sub_u32 {sB}, {sWV}, 2'); a(f's_lshl_b32 {sB}, {sB}, 13'); a(f's_add_u32 {sA}, {sA}, {sB}')
    if kind == 'w23':
        a(f's_add_u32 {sA}, {sA}, {WS_W3S}')
        a(f's_lshl_b32 {sB}, {sJ}, 14'); a(f's_lshl_b32 {sC}, {sWV}, 13'); a(f's_add_u32 {sB}, {sB}, {sC}')
        a(f's_add_u32 {sB}, {sB}, {WS_W2S}')
        a(f's_cmp_lt_u32 {sWV}, 2')
        a(f's_cselect_b32 {sA}, {sB}, {sA}')
        bload(dst, 1, 14, WS, soff=sA)
    else:
        a(f's_add_u32 {sA}, {sA}, {WS_W4S}')
        a(f's_cmp_ge_u32 {sWV}, 2')
        a('s_cselect_b64 exec, -1, 0')
        bload(dst, 1, 14, WS, soff=sA)
        a('s_mov_b64 exec, -1')


def set_flag(off, idx_sgpr, cluster=False):
    a(f's_lshl_b32 {sA}, {idx_sgpr}, 6')
    a(f's_add_u32 {sA}, {sA}, {off}')
    a(f'v_mov_b32 v14, {sT}')
    a('v_mov_b32 v15, 0')
    a(f's_cmp_eq_u32 {sWV}, 0')
    if cluster and not NOFAST:
        a(f's_cselect_b64 s[{sX0}:{sX0 + 1}], 1, 0')
        a(f's_and_b64 exec, s[{sX0}:{sX0 + 1}], s[{mFA}:{mFA + 1}]')
        bstore(14, 1, 15, WS, soff=sA)
        a(f's_and_b64 exec, s[{sX0}:{sX0 + 1}], s[{mSL}:{mSL + 1}]')
        bstore(14, 1, 15, WS, soff=sA, mods='sc1')
    else:
        a('s_cselect_b64 exec, 1, 0')
        bstore(14, 1, 15, WS, soff=sA, mods='sc1')
    a('s_mov_b64 exec, -1')


PV = 116


def poll(off, kind):
    lf = a.newlabel('L_pollskip'); lp = a.newlabel('L_poll'); lok = a.newlabel('L_pollok')
    a(f's_cmp_lg_u32 {sWV}, 7')
    a(f's_cbranch_scc1 {lf}')
    if kind == 'all':
        a(f'v_lshlrev_b32 {vr(PV)}, 6, v1')
    elif kind == 'own':
        a(f'v_and_b32 {vr(PV)}, 7, v1')
        a(f's_lshl_b32 {sA}, {sRB}, 3')
        a(f'v_add_u32 {vr(PV)}, {sA}, {vr(PV)}')
        a(f'v_lshlrev_b32 {vr(PV)}, 6, {vr(PV)}')
    else:
        a(f'v_min_u32 {vr(PV)}, 11, v1')
        a(f's_lshl_b32 {sA}, {sT32}, 2')
        a(f's_sub_u32 {sB}, {sA}, 4')
        a(f'v_add_u32 {vr(PV)}, {sB}, {vr(PV)}')
        a(f'v_cmp_gt_u32 vcc, 256, {vr(PV)}')
        a(f'v_mov_b32 {vr(PV + 1)}, {sA}')
        a(f'v_cndmask_b32 {vr(PV)}, {vr(PV + 1)}, {vr(PV)}, vcc')
        a(f'v_lshlrev_b32 {vr(PV)}, 6, {vr(PV)}')
    a(f's_mov_b32 {sSPIN}, 0')
    a.label(lp)
    if kind == 'all':
        for i in range(4):
            a(f's_mov_b32 {sB}, {off + 4096 * i}')
            bload(PV + 2 + i, 1, PV, WS, soff=sB, mods='sc1')
        a('s_waitcnt vmcnt(0)')
        tags_check([PV + 2, PV + 3, PV + 4, PV + 5], PV + 6, PV + 7)
    else:
        a(f's_mov_b32 {sB}, {off}')
        bload(PV + 2, 1, PV, WS, soff=sB, mods='sc1')
        a('s_waitcnt vmcnt(0)')
        a(f'v_cmp_ne_u32 vcc, {sT}, {vr(PV + 2)}')
        a('s_nop 0')
    a(f's_cbranch_vccz {lok}')
    spin_guard(lp)
    a.label(lok)
    a.label(lf)
    a('s_barrier')


def lane_masks():
    a('v_and_b32 v15, 3, v2')
    a(f'v_cmp_eq_u32 s[{mK1}:{mK1 + 1}], 1, v15')
    a(f'v_cmp_eq_u32 s[{mK2}:{mK2 + 1}], 2, v15')
    a(f'v_cmp_eq_u32 s[{mK3}:{mK3 + 1}], 3, v15')
    a('v_lshrrev_b32 v14, 2, v2')
    a(f'v_cmp_eq_u32 s[{mDG}:{mDG + 1}], v14, v3')


def stats_publish(addr, S, Q, t0):
    a(f'v_cndmask_b32 {vr(t0 + 1)}, {vr(Q)}, {vr(Q + 1)}, s[{mK1}:{mK1 + 1}]')
    a(f'v_mov_b32 {vr(t0)}, {vr(S)}')
    a(f'v_cndmask_b32 {vr(t0 + 1)}, {vr(t0 + 1)}, {vr(Q + 2)}, s[{mK2}:{mK2 + 1}]')
    a(f'v_cndmask_b32 {vr(t0 + 1)}, {vr(t0 + 1)}, {vr(Q + 3)}, s[{mK3}:{mK3 + 1}]')
    save_exec_mask(f's[{mDG}:{mDG + 1}]')
    a(f'ds_write_b64 {vr(addr)}, {vr(t0, 2)}')
    restore_exec()


def stats_finish(S, Q, m, r):
    a(f'v_mul_f32 {vr(m)}, {fconst(1.0 / 512)}, {vr(S)}')
    a(f'v_mul_f32 {vr(r)}, {fconst(1.0 / 512)}, {vr(Q)}')
    a(f'v_fma_f32 {vr(r)}, -{vr(m)}, {vr(m)}, {vr(r)}')
    a(f'v_max_f32 {vr(r)}, 0, {vr(r)}')
    a(f'v_add_f32 {vr(r)}, {fconst(1e-5)}, {vr(r)}')
    a(f'v_rsq_f32 {vr(r)}, {vr(r)}')


GC0 = -2.0 * 1.4426950408889634 * 0.7978845608028654
GC1 = GC0 * 0.044715


def gelu_consts(gk):
    for r, c in ((gk, GC0), (gk + 2, GC1), (gk + 4, 1.0)):
        a(f'v_mov_b32 {vr(r)}, {fconst(c)}')


def gelu(regs, tmp, gk):
    n = len(regs)
    for i in range(0, n, 2):
        x = regs[i]
        t = tmp + 2 * ((i // 2) & 1)
        a(f'v_pk_mul_f32 {vr(t, 2)}, {vr(x, 2)}, {vr(x, 2)}')
        a(f'v_pk_fma_f32 {vr(t, 2)}, {vr(t, 2)}, {vr(gk + 2, 2)}, {vr(gk, 2)} op_sel_hi:[1,0,0]')
        a(f'v_pk_mul_f32 {vr(t, 2)}, {vr(t, 2)}, {vr(x, 2)}')
        a(f'v_exp_f32 {vr(t)}, {vr(t)}')
        a(f'v_exp_f32 {vr(t + 1)}, {vr(t + 1)}')
        a(f'v_pk_add_f32 {vr(t, 2)}, {vr(t, 2)}, {vr(gk + 4, 2)} op_sel_hi:[1,0]')
        a(f'v_rcp_f32 {vr(t)}, {vr(t)}')
        a(f'v_rcp_f32 {vr(t + 1)}, {vr(t + 1)}')
        a(f'v_pk_mul_f32 {vr(x, 2)}, {vr(x, 2)}, {vr(t, 2)}')


def ln_apply(acc, cs, m, r, tmp):
    for k in (0, 2):
        a(f'v_pk_fma_f32 {vr(acc + k, 2)}, {vr(cs + k, 2)}, {vr(m, 2)}, {vr(acc + k, 2)} op_sel_hi:[1,0,1] neg_lo:[0,1,0] neg_hi:[0,1,0]')
        a(f'v_pk_mul_f32 {vr(acc + k, 2)}, {vr(acc + k, 2)}, {vr(r, 2)} op_sel_hi:[1,0]')


def pack_swap(dst, t0, t1):
    a(f'v_cvt_pk_bf16_f32 {vr(dst)}, {vr(t0)}, {vr(t0 + 1)}')
    a(f'v_cvt_pk_bf16_f32 {vr(dst + 2)}, {vr(t1)}, {vr(t1 + 1)}')
    a(f'v_cvt_pk_bf16_f32 {vr(dst + 1)}, {vr(t0 + 2)}, {vr(t0 + 3)}')
    a(f'v_cvt_pk_bf16_f32 {vr(dst + 3)}, {vr(t1 + 2)}, {vr(t1 + 3)}')
    a(f'v_permlane16_swap_b32 {vr(dst)}, {vr(dst + 2)}')
    a(f'v_permlane16_swap_b32 {vr(dst + 1)}, {vr(dst + 3)}')


ONES = 16
CS1 = 20


H1A, H1B = 12, 13
mZH = 70


def h1_addresses():
    a('v_lshrrev_b32 v14, 5, v1')
    a('v_mul_u32_u24 v14, 768, v14')
    a('v_and_b32 v15, 31, v1')
    a('v_lshl_add_u32 v14, v15, 4, v14')
    a(f's_mul_i32 {sA}, {sT32}, {64 * 768}')
    a(f's_lshl_b32 {sB}, {sCQ}, 3'); a(f's_add_u32 {sB}, {sB}, {sWV}'); a(f's_mul_i32 {sB}, {sB}, {2 * 768}')
    a(f's_add_u32 {sA}, {sA}, {sB}')
    a(f's_add_u32 {sA}, {sA}, {WS_H1 + 128}')
    a(f'v_add_u32 {vr(H1A)}, {sA}, v14')
    a(f's_cmp_eq_u32 {sT32}, 0')
    a(f's_cselect_b32 {sA}, {(-32) & 0xffffffff}, {(-(49152 - 512)) & 0xffffffff}') if False else None
    a(f's_mov_b32 {sA}, {hex((-(49152 - 512)) & 0xffffffff)}')
    a(f's_cmp_eq_u32 {sT32}, 0')
    a(f's_cselect_b32 {sA}, -32, {sA}')
    a(f's_cselect_b32 s{mZH}, 3, 0')
    a(f's_mov_b32 {sB}, {49152 - 512}')
    a(f's_cmp_eq_u32 {sT32}, 63')
    a(f's_cselect_b32 {sB}, 32, {sB}')
    a(f's_cselect_b32 s{mZH}, 0xc0000000, s{mZH}')
    a(f's_mov_b32 s{mZH + 1}, s{mZH}')
    a('v_cmp_gt_u32 vcc, 2, v15')
    a(f'v_mov_b32 v14, {sB}')
    a(f'v_mov_b32 v15, {sA}')
    a('v_cndmask_b32 v14, v14, v15, vcc')
    a(f'v_add_u32 {vr(H1B)}, {vr(H1A)}, v14')
    a('v_mov_b32 v31, 0')


def phase3():
    W1R, W2R = 128, 192
    W1o = W1
    lane_masks()
    for k in range(4):
        a(f'v_mov_b32 {vr(ONES + k)}, 0x3f803f80')
    a(f's_and_b32 {sLO}, {sWV}, 1')
    a(f's_lshr_b32 {sHI}, {sWV}, 1')
    a('v_lshrrev_b32 v24, 5, v1')
    a('v_lshlrev_b32 v24, 5, v24')
    a(f'v_xor_b32 v24, v24, {vr(vL16)}')
    a('v_lshrrev_b32 v14, 2, v2')
    a('v_lshl_add_u32 v25, v3, 3, v14')
    a('v_lshlrev_b32 v25, 6, v25')
    a('v_and_b32 v14, 3, v2')
    a('v_lshl_add_u32 v25, v14, 3, v25')
    a('v_and_b32 v14, 1, v3')
    a(f'v_xor_b32 v14, {sLO}, v14')
    a('v_lshl_add_u32 v25, v14, 5, v25')
    a(f's_lshl_b32 {sA}, {sHI}, 13')
    a(f'v_add_u32 v25, {sA}, v25')
    a(f's_lshl_b32 {sA}, {sHI}, 9')
    a(f's_add_u32 {sA}, {sA}, {L_CB}')
    a(f'v_lshl_add_u32 v26, v3, 5, {sA}')
    a(f's_lshl_b32 {sA}, {sWV}, 7')
    a(f's_add_u32 {sA}, {sA}, {L_ST}')
    a(f'v_lshl_add_u32 v27, v2, 3, {sA}')
    a(f's_lshl_b32 {sA}, {sLO}, 7')
    a(f's_add_u32 {sA}, {sA}, {L_ST}')
    a(f'v_lshl_add_u32 v28, v2, 3, {sA}')
    a(f's_lshl_b32 {sA}, {sHI}, 13')
    a(f's_lshl_b32 {sB}, {sLO}, 10')
    a(f's_add_u32 {sA}, {sA}, {sB}')
    a(f's_add_u32 {sA}, {sA}, {L_HF}')
    a(f'v_add_u32 v29, {sA}, {vr(vL16)}')
    a(f'v_add_u32 v30, {L_HF}, {vr(vL16)}')
    L_SLAB = 32768
    a('v_lshrrev_b32 v32, 4, v1')
    a('v_lshlrev_b32 v32, 10, v32')
    a('v_and_b32 v33, 15, v1')
    a('v_lshrrev_b32 v34, 1, v33')
    a('v_lshrrev_b32 v35, 4, v1')
    a('v_xor_b32 v34, v34, v35')
    a('v_and_b32 v33, 1, v33')
    a('v_lshlrev_b32 v33, 4, v33')
    a('v_lshl_add_u32 v36, v34, 5, v33')
    a('v_add_u32 v36, v36, v32')
    a('v_xor_b32 v34, 4, v34')
    a('v_lshl_add_u32 v37, v34, 5, v33')
    a('v_add_u32 v37, v37, v32')
    a(f's_lshr_b32 {sA}, {sWV}, 1'); a(f's_and_b32 {sA}, {sA}, 1'); a(f's_cmp_eq_u32 {sA}, 1')
    a('s_cselect_b64 vcc, -1, 0')
    a('v_cndmask_b32 v36, v36, v37, vcc')
    a(f's_lshl_b32 {sA}, {sWV}, 12'); a(f's_lshl_b32 {sB}, {sCQ}, 8'); a(f's_add_u32 {sA}, {sA}, {sB}')
    a(f's_lshl_b32 {sB}, {sWV}, 10'); a(f's_add_u32 {sB}, {sB}, {L_SLAB}')
    for k in range(16):
        if k:
            a(f's_add_u32 {sA}, {sA}, 32768'); a(f's_add_u32 {sB}, {sB}, 8192')
        dma(4, 36, W1o, sB, soff=sA)
    a('v_lshrrev_b32 v33, 2, v2')
    a('v_and_b32 v34, 1, v3')
    a('v_lshl_or_b32 v34, v34, 2, v33')
    a(f'v_xor_b32 v34, {sWV}, v34')
    a('v_lshl_add_u32 v35, v3, 3, v33')
    a('v_lshlrev_b32 v35, 8, v35')
    a('v_lshl_add_u32 v35, v34, 5, v35')
    a('v_and_b32 v33, 3, v2')
    a('v_lshl_add_u32 v35, v33, 3, v35')
    a(f'v_add_u32 v35, {L_SLAB}, v35')
    a('v_add_u32 v37, 65536, v35')
    a('s_waitcnt vmcnt(0)')
    a('s_barrier')
    for ks in range(16):
        ad, off = (35, 8192 * ks) if ks < 8 else (37, 8192 * (ks - 8))
        a(f'ds_read_b64_tr_b16 {vr(W1R + 4 * ks, 2)}, {vr(ad)} offset:{off}')
        a(f'ds_read_b64_tr_b16 {vr(W1R + 4 * ks + 2, 2)}, {vr(ad)} offset:{off + 1024}')
    a('s_waitcnt lgkmcnt(0)')
    for ks in range(16):
        acc = CS1 if ks % 2 == 0 else 32
        mfma(acc, W1R + 4 * ks, ONES, None if ks < 2 else acc)
    for k in range(4):
        a(f'v_add_f32 {vr(CS1 + k)}, {vr(CS1 + k)}, {vr(32 + k)}')
    h1_addresses()
    stamp('W1regs')
    poll(WS_F2, 'all')
    stamp('S2ok')
    a(f's_lshl_b32 {sA}, {sT32}, 15')
    a(f's_lshl_b32 {sB}, {sWV}, 10')
    a(f's_add_u32 {sA}, {sA}, {sB}')
    a(f's_add_u32 {sA}, {sA}, {WS_X2B}')
    for k in range(4):
        if k:
            a(f's_add_u32 {sA}, {sA}, 8192')
        a(f's_add_u32 {sD}, {sB}, {L_X + k * 8192}')
        dma(4, 24, WS, sD, soff=sA, mods='sc1')
    a('v_lshlrev_b32 v14, 2, v0')
    a(f's_mov_b32 {sA}, {WS_MODF + 4 * 2048}')
    bload(32, 1, 14, WS, soff=sA, mods='sc1')
    a(f's_mov_b32 {sA}, {WS_MODF + 3 * 2048}')
    bload(36, 1, 14, WS, soff=sA, mods='sc1')
    a(f's_lshl_b32 {sA}, {sRB}, 16')
    a(f's_lshr_b32 {sB}, {sWV}, 2'); a(f's_lshl_b32 {sB}, {sB}, 15'); a(f's_add_u32 {sA}, {sA}, {sB}')
    a(f's_lshl_b32 {sB}, {sCS}, 12'); a(f's_add_u32 {sA}, {sA}, {sB}')
    a(f's_and_b32 {sB}, {sWV}, 3'); a(f's_lshl_b32 {sB}, {sB}, 10'); a(f's_add_u32 {sA}, {sA}, {sB}')
    a(f's_add_u32 {sA}, {sA}, {WS_X2B}')
    a(f's_lshl_b32 {sB}, {sWV}, 10')
    a(f's_add_u32 {sB}, {sB}, {L_XS}')
    dma(4, vL16, WS, sB, soff=sA, mods='sc1')
    a('v_lshlrev_b32 v15, 2, v0')
    a(f'v_add_u32 v15, {L_CB}, v15')
    a('s_waitcnt vmcnt(1)')
    a('v_add_f32 v32, 1.0, v32')
    a('ds_write_b32 v15, v32')
    a('ds_write_b32 v15, v36 offset:2048')
    a('s_waitcnt lgkmcnt(0)')
    a('s_barrier')
    stamp('Xlanded')
    wfrag_base(sF, WS_W2S)
    wq = list(range(16))

    def w1n(n):
        for _ in range(n):
            if wq:
                wfrag_one(W2R, sF, wq.pop(0))
    XF = 32
    for i in range(4):
        a(f'ds_read_b64_tr_b16 {vr(XF + 4 * i, 2)}, v25 offset:{2048 * i}')
        a(f'ds_read_b64_tr_b16 {vr(XF + 2 + 4 * i, 2)}, v25 offset:{2048 * i + 256}')
    CO = 64

    def ldc(i):
        b = CO + 16 * i
        a(f'ds_read_b128 {vr(b, 4)}, v26 offset:{128 * i}')
        a(f'ds_read_b128 {vr(b + 4, 4)}, v26 offset:{128 * i + 16}')
        a(f'ds_read_b128 {vr(b + 8, 4)}, v26 offset:{2048 + 128 * i}')
        a(f'ds_read_b128 {vr(b + 12, 4)}, v26 offset:{2048 + 128 * i + 16}')
    ldc(0)
    SA, QA = 48, 52
    for i in range(4):
        if i == 0:
            a('s_waitcnt lgkmcnt(10)')
        elif i == 1:
            a('s_waitcnt lgkmcnt(8)')
        elif i == 2:
            a('s_waitcnt lgkmcnt(6)')
        else:
            a('s_waitcnt lgkmcnt(4)')
        f = XF + 4 * i
        mfma(SA, ONES, f, None if i == 0 else SA)
        mfma(QA, f, f, None if i == 0 else QA)
        w1n(1)
    ldc(1); ldc(2)
    stats_publish(27, SA, QA, 56)
    ldc(3)
    a('s_waitcnt lgkmcnt(4)')
    a('s_barrier')
    a('ds_read2st64_b64 v[48:51], v28 offset0:0 offset1:1') if False else None
    a('ds_read_b64 v[48:49], v28')
    a('ds_read_b64 v[50:51], v28 offset:256')
    a('ds_read_b64 v[52:53], v28 offset:512')
    a('ds_read_b64 v[54:55], v28 offset:768')
    a('s_waitcnt lgkmcnt(0)')
    a('v_pk_add_f32 v[48:49], v[48:49], v[50:51]')
    a('v_pk_add_f32 v[52:53], v[52:53], v[54:55]')
    a('v_pk_add_f32 v[48:49], v[48:49], v[52:53]')
    stats_finish(48, 49, 58, 56)
    a('v_mul_f32 v58, v58, v56')
    stamp('stats2')
    SA, QA = 48, 52
    for i in range(4):
        f = XF + 4 * i
        b = CO + 16 * i
        for p in range(4):
            z = 60 + 2 * (p & 1)
            a(f'v_lshlrev_b32 {vr(z)}, 16, {vr(f + p)}')
            a(f'v_and_b32 {vr(z + 1)}, 0xffff0000, {vr(f + p)}')
            a(f'v_pk_fma_f32 {vr(z, 2)}, {vr(z, 2)}, v[56:57], v[58:59] op_sel_hi:[1,0,0] neg_lo:[0,0,1] neg_hi:[0,0,1]')
            a(f'v_pk_fma_f32 {vr(z, 2)}, {vr(z, 2)}, {vr(b + 2 * p, 2)}, {vr(b + 8 + 2 * p, 2)}')
            a(f'v_cvt_pk_bf16_f32 {vr(f + p)}, {vr(z)}, {vr(z + 1)}')
            if p == 1:
                w1n(1)
        a(f'ds_write_b128 v29, {vr(f, 4)} offset:{2048 * i}')
        if i > 0:
            fp = f - 4
            mfma(SA, ONES, fp, None if i == 1 else SA)
            mfma(QA, fp, fp, None if i == 1 else QA)
    f = XF + 12
    mfma(SA, ONES, f, SA)
    mfma(QA, f, f, QA)
    a(f'v_add_u32 v27, {L_ST3 - L_ST}, v27')
    stats_publish(27, SA, QA, 60)
    a('s_waitcnt lgkmcnt(0)')
    a('s_barrier')
    stamp('norm')
    AR = 64

    def lda(ks):
        b = AR + 8 * (ks % 8)
        a(f'ds_read_b128 {vr(b, 4)}, v30 offset:{2048 * ks}')
        a(f'ds_read_b128 {vr(b + 4, 4)}, v30 offset:{2048 * ks + 1024}')
    for ks in range(6):
        lda(ks)
    a(f'v_lshlrev_b32 v14, 3, v2')
    a(f'v_add_u32 v14, {L_ST3}, v14')
    for ks in range(16):
        pend = min(15 - ks, 5) * 2
        a(f's_waitcnt lgkmcnt({pend})')
        b = AR + 8 * (ks % 8)
        mfma(32, W1R + 4 * ks, b, None if ks == 0 else 32)
        mfma(36, W1R + 4 * ks, b + 4, None if ks == 0 else 36)
        if ks % 2 == 0:
            w1n(1)
        if ks + 6 < 16:
            lda(ks + 6)
    for tt in range(2):
        for kq in range(4):
            a(f'ds_read_b64 {vr(40 + 8 * tt + 2 * kq, 2)}, v14 offset:{256 * kq + 128 * tt}')
    GK = 56
    gelu_consts(GK)
    a('s_waitcnt lgkmcnt(0)')
    for tt in range(2):
        b = 40 + 8 * tt
        a(f'v_pk_add_f32 {vr(b, 2)}, {vr(b, 2)}, {vr(b + 2, 2)}')
        a(f'v_pk_add_f32 {vr(b + 4, 2)}, {vr(b + 4, 2)}, {vr(b + 6, 2)}')
        a(f'v_pk_add_f32 {vr(b, 2)}, {vr(b, 2)}, {vr(b + 4, 2)}')
        stats_finish(b, b + 1, b + 2, b + 4)
        ln_apply(32 + 4 * tt, CS1, b + 2, b + 4, None)
    stamp('gemm1')
    gelu(list(range(32, 40)), 62, GK)
    pack_swap(40, 32, 36)
    bstore(40, 4, H1A, WS, mods='sc1')
    for k in range(4):
        a(f'v_cndmask_b32 {vr(48 + k)}, {vr(40 + k)}, v31, s[{mZH}:{mZH + 1}]')
    save_exec_mask(0xc0000003c0000003)
    bstore(48, 4, H1B, WS, mods='sc1')
    restore_exec()
    p5_tiles()
    a('s_waitcnt vmcnt(0)')
    stamp('h1stored')
    a('s_barrier')
    a(f's_lshl_b32 {sE}, {sT32}, 2'); a(f's_add_u32 {sE}, {sE}, {sCQ}')
    assert not wq
    set_flag(WS_F3, sE)
    wfrags(128, WS_W3S, 8, nt_sgpr=sNT3)


def p5_tiles():
    a(f's_mul_i32 {sNT3}, {sCS}, 11')
    a(f's_cmp_eq_u32 {sCS}, 7')
    a(f's_cselect_b32 {sA}, 1, 0')
    a(f's_sub_u32 {sNT3}, {sNT3}, {sA}')
    a(f's_add_u32 {sNT3}, {sNT3}, {sWV}')
    a(f's_cmp_ge_u32 {sCS}, 6')
    a(f's_cselect_b32 {sA}, 2, 3')
    a(f's_cmp_lt_u32 {sWV}, {sA}')
    a(f's_cselect_b32 {sNV}, 2, 1')
    rot_setup()


def phase4():
    W2R = 192
    poll(WS_F3, 'halo')
    stamp('S3ok')
    a(f's_mul_i32 {sA}, {sT32}, {64 * 768}')
    a(f's_lshl_b32 {sB}, {sWV}, 10')
    a(f's_add_u32 {sA}, {sA}, {sB}')
    a(f's_add_u32 {sA}, {sA}, {WS_H1}')
    for k in range(6):
        if k:
            a(f's_add_u32 {sA}, {sA}, 8192')
        a(f's_add_u32 {sD}, {sB}, {L_A4 + k * 8192}')
        dma(4, vL16, WS, sD, soff=sA, mods=LDM)
    a('v_mul_u32_u24 v24, 768, v3')
    a('v_lshl_add_u32 v24, v2, 4, v24')
    a(f'v_add_u32 v24, {L_A4 + 128 - 32}, v24')
    a(f's_lshl_b32 {sA}, {sCQ}, 2'); a(f's_lshr_b32 {sB}, {sWV}, 1'); a(f's_add_u32 {sA}, {sA}, {sB}')
    a(f's_lshl_b32 {sA}, {sA}, 11')
    a(f's_and_b32 {sB}, {sWV}, 1'); a(f's_lshl_b32 {sB}, {sB}, 9'); a(f's_add_u32 {sA}, {sA}, {sB}')
    a(f's_add_u32 {sA}, {sA}, {L_HF}')
    a('v_lshrrev_b32 v25, 1, v3')
    a('v_lshlrev_b32 v25, 8, v25')
    a('v_lshl_add_u32 v25, v2, 4, v25')
    a('v_and_b32 v14, 1, v3')
    a('v_lshl_add_u32 v25, v14, 3, v25')
    a(f'v_add_u32 v25, {sA}, v25')
    a('ds_read_b64 v[40:41], v25')
    a('ds_read_b64 v[42:43], v25 offset:1024')
    AR = 64
    shifts = [-1, 1, -2, 2]

    def lda(ks):
        b = AR + 8 * (ks % 8)
        s_ = shifts[ks >> 2]
        off = 3072 * ks + 32 + 16 * s_
        a(f'ds_read_b128 {vr(b, 4)}, v24 offset:{off}')
        a(f'ds_read_b128 {vr(b + 4, 4)}, v24 offset:{off + 256}')
    a('s_waitcnt vmcnt(3)')
    a('s_barrier')
    stamp('A4landed')
    wfrag_base(sF, WS_W3S, nt_sgpr=sNT3, first=8)
    for ks in range(6):
        lda(ks)
    for ks in range(16):
        if ks == 2:
            a('s_waitcnt vmcnt(1)')
            a('s_barrier')
        pend = min(15 - ks, 5) * 2
        a(f's_waitcnt lgkmcnt({pend})')
        b = AR + 8 * (ks % 8)
        mfma(32, W2R + 4 * ks, b, None if ks == 0 else 32)
        mfma(36, W2R + 4 * ks, b + 4, None if ks == 0 else 36)
        if ks % 2 == 0:
            wfrag_one(128 + 32, sF, ks // 2)
        if ks + 6 < 16:
            lda(ks + 6)
    stamp('gemm2')
    for tt in range(2):
        for k in range(4):
            h = 40 + 2 * tt + (k >> 1)
            if k & 1:
                a(f'v_and_b32 {vr(44 + k)}, 0xffff0000, {vr(h)}')
            else:
                a(f'v_lshlrev_b32 {vr(44 + k)}, 16, {vr(h)}')
        a(f'v_pk_add_f32 {vr(32 + 4 * tt, 2)}, {vr(32 + 4 * tt, 2)}, v[44:45]')
        a(f'v_pk_add_f32 {vr(34 + 4 * tt, 2)}, {vr(34 + 4 * tt, 2)}, v[46:47]')
    pack_swap(40, 32, 36)
    a(f's_lshl_b32 {sA}, {sT32}, 15')
    a(f's_lshl_b32 {sB}, {sCQ}, 3'); a(f's_add_u32 {sB}, {sB}, {sWV}'); a(f's_lshl_b32 {sB}, {sB}, 10')
    a(f's_add_u32 {sA}, {sA}, {sB}')
    a(f's_add_u32 {sA}, {sA}, {WS_X1}')
    cstore(40, 4, vL16, sA)
    a('s_waitcnt vmcnt(0)')
    stamp('x1stored')
    a('s_barrier')
    a(f's_lshl_b32 {sE}, {sRB}, 3'); a(f's_add_u32 {sE}, {sE}, {sCS}')
    set_flag(WS_F4, sE, cluster=True)

    l1 = a.newlabel('L_p4one'); l2 = a.newlabel('L_p4j')
    a(f's_cmp_eq_u32 {sNV}, 1')
    a(f's_cbranch_scc1 {l1}')
    a(f's_add_u32 {sE}, {sNT3}, 8')
    wfrags(192, WS_W3S, 16, nt_sgpr=sE)
    a.label(l1)


def w4reg(s_):
    return 192 + 4 * s_ if s_ < 16 else 128 + 4 * (s_ - 16)


sWO, sWLIM, sWB, sRO, sRBAD = 's69', 's70', 's71', 's72', 's73'


def rot_setup():
    a(f's_movk_i32 {sWLIM}, {21 * 1024}')
    a(f's_cmp_ge_u32 {sWV}, 4')
    a(f's_cselect_b32 {sWLIM}, {20 * 1024}, {sWLIM}')
    a(f's_cselect_b32 {sRBAD}, {21 * 2048}, -1')
    a(f's_and_b32 {sB}, {sWV}, 3')
    a(f's_lshl_b32 {sWB}, {sCS}, 2'); a(f's_add_u32 {sWB}, {sWB}, {sB}'); a(f's_mul_i32 {sWB}, {sWB}, 43')
    a(f's_lshr_b32 {sB}, {sWV}, 2'); a(f's_mul_i32 {sB}, {sB}, 22'); a(f's_add_u32 {sWB}, {sWB}, {sB}')
    a(f's_lshl_b32 {sWB}, {sWB}, 10'); a(f's_add_u32 {sWB}, {sWB}, {WS_W4S}')


def w4_base(sreg, first=0):
    pass


def w4_one(sreg, first, k):
    s_ = first + k
    if s_ == 21:
        a(f's_add_u32 {sC}, {sWB}, {sWLIM}')
        bload(w4reg(s_), 4, vL16, WS, soff=sC, mods='sc1')
    else:
        base4 = (s_ // 4) * 4
        if s_ % 4 == 0 or k == 0:
            a(f's_add_u32 {sWO}, {sWB}, {base4 * 1024}')
        bload(w4reg(s_), 4, vL16, WS, imm=(s_ % 4) * 1024, soff=sWO, mods='sc1')


def w4_loads(first, n):
    for k in range(n):
        w4_one(None, first, k)


def phase5():
    W3A, W3B = 128, 192
    CSA, CSB = 24, 28
    for k in range(4):
        a(f'v_mov_b32 {vr(ONES + k)}, 0x3f803f80')
    a(f's_and_b32 {sLO}, {sWV}, 3')
    a(f's_lshr_b32 {sHI}, {sWV}, 2')
    a('v_lshrrev_b32 v14, 2, v2')
    a('v_lshl_add_u32 v14, v3, 2, v14')
    a('v_lshlrev_b32 v14, 6, v14')
    a('v_and_b32 v15, 3, v2')
    a('v_lshl_add_u32 v14, v15, 3, v14')
    a(f's_lshl_b32 {sA}, {sHI}, 12'); a(f's_lshl_b32 {sB}, {sLO}, 10'); a(f's_add_u32 {sA}, {sA}, {sB}')
    a(f's_add_u32 {sA}, {sA}, {L_XS}')
    a(f'v_add_u32 v14, {sA}, v14')
    a(f'ds_read_b64_tr_b16 {vr(XS, 2)}, v14')
    a(f'ds_read_b64_tr_b16 {vr(XS + 2, 2)}, v14 offset:32')
    a(f's_lshr_b32 {sA}, {sLO}, 1'); a(f's_lshl_b32 {sA}, {sA}, 15')
    a(f's_and_b32 {sB}, {sLO}, 1'); a(f's_lshl_b32 {sB}, {sB}, 8'); a(f's_add_u32 {sA}, {sA}, {sB}')
    a(f's_lshl_b32 {sB}, {sHI}, 14'); a(f's_add_u32 {sA}, {sA}, {sB}')
    a(f'v_add_u32 v20, {sA}, {vr(vVB)}')
    a(f's_lshl_b32 {sA}, {sWV}, 7'); a(f's_add_u32 {sA}, {sA}, {L_ST5}')
    a(f'v_lshl_add_u32 v21, v2, 3, {sA}')
    a(f's_lshl_b32 {sA}, {sHI}, 15'); a(f's_lshl_b32 {sB}, {sCS}, 12'); a(f's_add_u32 {sA}, {sA}, {sB}')
    a(f's_lshl_b32 {sB}, {sLO}, 10'); a(f's_add_u32 {sA}, {sA}, {sB}')
    a('v_lshrrev_b32 v22, 1, v3'); a('v_lshlrev_b32 v22, 9, v22')
    a('v_lshl_add_u32 v22, v2, 4, v22')
    a('v_and_b32 v14, 1, v3'); a('v_lshl_add_u32 v22, v14, 3, v22')
    a(f'v_add_u32 v22, {sA}, v22')
    a('v_lshlrev_b32 v23, 3, v2')
    a(f'v_add_u32 v23, {L_ST5}, v23')
    a('s_waitcnt lgkmcnt(0)')
    stamp('W3landed')
    poll(WS_F4, 'own')
    stamp('S4ok')
    a(f's_lshl_b32 {sA}, {sRB}, 16')
    a(f's_lshl_b32 {sB}, {sHI}, 15'); a(f's_lshl_b32 {sC}, {sLO}, 10'); a(f's_add_u32 {sB}, {sB}, {sC}')
    a(f's_add_u32 {sA}, {sA}, {sB}'); a(f's_add_u32 {sA}, {sA}, {WS_X1}')
    for j in range(8):
        if j:
            a(f's_add_u32 {sA}, {sA}, 4096')
        a(f's_add_u32 {sD}, {sB}, {L_X1 + 4096 * j}')
        dma(4, vL16, WS, sD, soff=sA, mods=LDM)
    a('s_waitcnt vmcnt(8)')
    for ks in range(16):
        acc = CSA if ks % 2 == 0 else 32
        mfma(acc, W3A + 4 * ks, ONES, None if ks < 2 else acc)
    lnb = a.newlabel('L_nob')
    a(f's_cmp_lt_u32 {sNV}, 2')
    a(f's_cbranch_scc1 {lnb}')
    for ks in range(16):
        acc = CSB if ks % 2 == 0 else 36
        mfma(acc, W3B + 4 * ks, ONES, None if ks < 2 else acc)
    for k in range(4):
        a(f'v_add_f32 {vr(CSB + k)}, {vr(CSB + k)}, {vr(36 + k)}')
    a.label(lnb)
    for k in range(4):
        a(f'v_add_f32 {vr(CSA + k)}, {vr(CSA + k)}, {vr(32 + k)}')
    AR = 64
    ACA, ACB = 32, 48
    SA, QA, TP, MR = 112, 116, 120, 120
    a(f's_lshl_b32 {sA}, {sRB}, 1'); a(f's_mul_i32 {sA}, {sA}, {86 * 1024}')
    a(f's_lshl_b32 {sB}, {sNT3}, 10'); a(f's_add_u32 {sA}, {sA}, {sB}'); a(f's_add_u32 {sE}, {sA}, {WS_H3}')

    def lda(ks, q):
        b = AR + 16 * (ks % 3)
        for tt in range(4):
            a(f'ds_read_b128 {vr(b + 4 * tt, 4)}, {vr(vVB)} offset:{32768 * (tt >> 1) + 2048 * ks + 256 * (tt & 1)}')
        q += [('a', ks)] * 4

    def wait_for(q, key):
        last = max(i for i, o in enumerate(q) if o == key)
        a(f's_waitcnt lgkmcnt({min(15, len(q) - 1 - last)})')

    def epi_steps(acc, cs, tileoff, tmp, gk, pk):
        steps = []
        for tt in range(4):
            mr = MR + 2 * tt
            def f(tt=tt, mr=mr):
                for k in (0, 2):
                    r = acc + 4 * tt + k
                    a(f'v_pk_fma_f32 {vr(r, 2)}, {vr(cs + k, 2)}, {vr(mr, 2)}, {vr(r, 2)} op_sel_hi:[1,0,1] neg_lo:[0,1,0] neg_hi:[0,1,0]')
                    a(f'v_pk_mul_f32 {vr(r, 2)}, {vr(r, 2)}, {vr(mr, 2)} op_sel:[0,1] op_sel_hi:[1,1]')
            steps.append(f)
        for i in range(8):
            steps.append(lambda i=i: gelu([acc + 2 * i, acc + 2 * i + 1], tmp + 2 * (i & 1), gk))
        for T in range(2):
            def f(T=T):
                d = pk + 4 * T
                pack_swap(d, acc + 8 * T, acc + 8 * T + 4)
                a(f's_add_u32 {sA}, {sE}, {tileoff + T * 86 * 1024}')
                bstore(d, 4, vL16, WS, soff=sA, mods='sc1')
            steps.append(f)
        return steps

    def stats_pass():
        a('s_waitcnt vmcnt(0)')
        a('s_barrier')
        stamp('x1landed')
        for k in range(8):
            a(f'ds_read_b128 {vr(AR + 4 * k, 4)}, v20 offset:{2048 * k}')
        a(f'ds_read_b64 {vr(X1R, 2)}, v22')
        a(f'ds_read_b64 {vr(X1R + 2, 2)}, v22 offset:256')
        for k in range(8):
            a(f's_waitcnt lgkmcnt({9 - k})')
            f = AR + 4 * k
            sa, qa = (SA, QA) if k % 2 == 0 else (ACB, ACB + 4)
            mfma(sa, ONES, f, None if k < 2 else sa)
            mfma(qa, f, f, None if k < 2 else qa)
        for k in range(4):
            a(f'v_add_f32 {vr(SA + k)}, {vr(SA + k)}, {vr(ACB + k)}') if k == 0 else None
            a(f'v_add_f32 {vr(QA + k)}, {vr(QA + k)}, {vr(ACB + 4 + k)}')
        stats_publish(21, SA, QA, TP)
        a('s_waitcnt lgkmcnt(0)')
        a('s_barrier')
        stamp('k5b')

    def loop1(two):
        q = []
        SF = AR + 32
        for tt in range(4):
            a(f'ds_read_b64 {vr(SF + 4 * tt, 2)}, v23 offset:{128 * tt}')
            a(f'ds_read_b64 {vr(SF + 4 * tt + 2, 2)}, v23 offset:{512 + 128 * tt}')
        q += [('f', 0)] * 8
        lda(0, q); lda(1, q)
        wait_for(q, ('f', 0))
        for tt in range(4):
            bb = SF + 4 * tt
            mr = MR + 2 * tt
            a(f'v_pk_add_f32 {vr(bb, 2)}, {vr(bb, 2)}, {vr(bb + 2, 2)}')
            stats_finish(bb, bb + 1, mr, mr + 1)
        nxt = 2
        for ks in range(16):
            wait_for(q, ('a', ks))
            b = AR + 16 * (ks % 3)
            for tt in range(4):
                mfma(ACA + 4 * tt, W3A + 4 * ks, b + 4 * tt, None if ks == 0 else ACA + 4 * tt)
                if two:
                    mfma(ACB + 4 * tt, W3B + 4 * ks, b + 4 * tt, None if ks == 0 else ACB + 4 * tt)
            if not two:
                w4_one(None, 0, ks)
            while nxt < 16 and nxt <= ks + 2:
                lda(nxt, q); nxt += 1
            if ks == 8:
                wtouch('w4', 15)

    stats_pass()
    a(f's_cmp_ge_u32 {sWV}, 4')
    lpr = a.newlabel('L_prio')
    a(f's_cbranch_scc0 {lpr}')
    a('s_setprio 1')
    a.label(lpr)
    l1 = a.newlabel('L_one'); lj = a.newlabel('L_p5j')
    a(f's_cmp_eq_u32 {sNV}, 1')
    a(f's_cbranch_scc1 {l1}')
    loop1(True)
    stamp('gemm3')
    GK, TMP, PK = 64, 72, 76
    gelu_consts(GK)
    for f in epi_steps(ACA, CSA, 0, TMP, GK, PK):
        f()
    stamp('loop2')
    for f in epi_steps(ACB, CSB, 8 * 1024, TMP, GK, PK + 8):
        f()
    stamp('epiB')
    a('s_waitcnt vmcnt(0) lgkmcnt(0)')
    a(f's_branch {lj}')
    a.label(l1)
    loop1(False)
    w4_loads(16, 6)
    stamp('gemm3')
    GK, TMP, PK = 64, 72, 76
    gelu_consts(GK)
    for f in epi_steps(ACA, CSA, 0, TMP, GK, PK):
        f()
    stamp('epiB')
    a('s_waitcnt vmcnt(0) lgkmcnt(0)')
    a.label(lj)
    a('s_setprio 0')
    stamp('h3stored')
    a('s_barrier')
    a(f's_lshl_b32 {sE}, {sRB}, 3'); a(f's_add_u32 {sE}, {sE}, {sCS}')
    set_flag(WS_F5, sE)

    l1 = a.newlabel('L_w4one')
    a(f's_cmp_eq_u32 {sNV}, 1')
    a(f's_cbranch_scc1 {l1}')
    w4_loads(0, 16)
    w4_loads(16, 6)
    a.label(l1)


def phase6():
    a(f's_lshl_b32 {sA}, {sCS}, 6'); a(f's_lshl_b32 {sB}, {sLO}, 4'); a(f's_add_u32 {sA}, {sA}, {sB}')
    a(f's_lshl_b32 {sA}, {sA}, 2'); a(f's_add_u32 {sA}, {sA}, {WS_MODF + 5 * 2048}')
    a('v_lshlrev_b32 v14, 4, v3')
    bload(16, 4, 14, WS, soff=sA, mods='sc1')
    poll(WS_F5, 'own')
    stamp('S5ok')
    a(f's_lshl_b32 {sA}, {sRB}, 1'); a(f's_lshr_b32 {sB}, {sWV}, 1'); a(f's_and_b32 {sB}, {sB}, 1')
    a(f's_add_u32 {sA}, {sA}, {sB}'); a(f's_mul_i32 {sA}, {sA}, {86 * 1024}')
    a(f's_mul_i32 {sB}, {sHI}, {44 * 1024}'); a(f's_add_u32 {sA}, {sA}, {sB}')
    a(f's_and_b32 {sB}, {sWV}, 1'); a(f's_lshl_b32 {sB}, {sB}, 10'); a(f's_add_u32 {sA}, {sA}, {sB}')
    a(f's_add_u32 {sE}, {sA}, {WS_H3}')
    a(f's_lshl_b32 {sF}, {sWV}, 10')

    def ring(s_):
        if 'nodma' in XP and s_ >= 3:
            return
        a(f's_add_u32 {sC}, {sE}, {2048 * s_}')
        if s_ == 21:
            a(f's_cmp_eq_u32 {sHI}, 1')
            a(f's_cselect_b32 {sC}, 0x7ff00000, {sC}')
        a(f's_add_u32 {sD}, {sF}, {8192 * (s_ % NSLOT)}')
        dma(4, vL16, WS, sD, soff=sC, mods=LDM)
    AHEAD = int(os.environ.get('AHEAD', '6'))
    RAMP = int(os.environ.get('RAMP', '14'))
    for s_ in range(AHEAD):
        ring(s_)
    a(f's_lshl_b32 {sA}, {sHI}, 12')
    a(f'v_add_u32 v32, {sA}, {vr(vVB)}')
    a('v_add_u32 v33, 65536, v32')
    a('v_add_u32 v34, 131072, v32')
    AR = 64
    ACC = 40

    def lda(s_):
        b = AR + 16 * (s_ % 4)
        off = 8192 * (s_ % NSLOT)
        ad, base = (32, 0) if off < 65536 else (33, 65536) if off < 131072 else (34, 131072)
        for tt in range(4):
            if 'nord' in XP and s_ > 3:
                continue
            a(f'ds_read_b128 {vr(b + 4 * tt, 4)}, {vr(ad)} offset:{off - base + 2048 * (tt >> 1) + 256 * (tt & 1)}')
    guar = {0: 3, 2: 7, 6: 11, 10: 15, 14: 19, 18: 22}
    issued = AHEAD
    q = []
    nxt = 0
    bound = 0
    gi = 0
    for s_ in range(22):
        if s_ in guar:
            bound = guar[s_]
            while issued < bound:
                ring(issued); issued += 1
            if 'novm' not in XP or s_ == 0:
                a(f's_waitcnt vmcnt({issued - bound})')
            if 'nobar' not in XP or s_ == 0:
                a('s_barrier')
            stamp(f'g{gi}'); gi += 1
            last_barrier = s_
        while nxt < bound and nxt <= s_ + 2:
            lda(nxt); q += [nxt] * 4; nxt += 1
        nper = 2 if issued < RAMP else 1
        for _ in range(nper):
            if issued < 22 and (issued < NSLOT or issued - NSLOT < last_barrier):
                ring(issued); issued += 1
        last = max(i for i, o in enumerate(q) if o == s_)
        a(f's_waitcnt lgkmcnt({min(15, len(q) - 1 - last)})')
        b = AR + 16 * (s_ % 4)
        for tt in range(4):
            mfma(ACC + 4 * tt, w4reg(s_), b + 4 * tt, None if s_ == 0 else ACC + 4 * tt)
        while nxt < bound and nxt <= s_ + 3:
            lda(nxt); q += [nxt] * 4; nxt += 1
    assert issued == 22
    stamp('gemm4')
    a(f's_lshl_b32 {sA}, {sWV}, 11')
    a(f's_add_u32 {sA}, {sA}, {L_EX}')
    a(f'v_add_u32 v35, {sA}, {vr(vL16)}')
    lk1 = a.newlabel('L_k1'); lkd = a.newlabel('L_kd')
    a(f's_cmp_eq_u32 {sHI}, 1')
    a(f's_cbranch_scc1 {lk1}')
    a(f'ds_write_b128 v35, {vr(ACC + 8, 4)}')
    a(f'ds_write_b128 v35, {vr(ACC + 12, 4)} offset:1024')
    a(f's_branch {lkd}')
    a.label(lk1)
    a(f'ds_write_b128 v35, {vr(ACC, 4)}')
    a(f'ds_write_b128 v35, {vr(ACC + 4, 4)} offset:1024')
    for k in range(8):
        a(f'v_mov_b32 {vr(ACC + k)}, {vr(ACC + 8 + k)}')
    a.label(lkd)
    a(f's_lshl_b32 {sA}, {sRB}, 6'); a(f's_lshl_b32 {sB}, {sHI}, 5'); a(f's_add_u32 {sA}, {sA}, {sB}')
    a(f's_lshl_b32 {sA}, {sA}, 10')
    a(f's_lshl_b32 {sB}, {sCS}, 7'); a(f's_add_u32 {sA}, {sA}, {sB}')
    a(f's_lshl_b32 {sB}, {sLO}, 5'); a(f's_add_u32 {sE}, {sA}, {sB}')
    a('v_lshlrev_b32 v36, 10, v2')
    a('v_lshl_add_u32 v36, v3, 3, v36')
    a('s_waitcnt lgkmcnt(0)')
    a('s_barrier')
    a(f's_xor_b32 {sA}, {sWV}, 4')
    a(f's_lshl_b32 {sA}, {sA}, 11')
    a(f's_add_u32 {sA}, {sA}, {L_EX}')
    a(f'v_add_u32 v35, {sA}, {vr(vL16)}')
    stamp('exch')
    a('ds_read_b128 v[64:67], v35')
    a('ds_read_b128 v[68:71], v35 offset:1024')
    for e in range(2):
        for k in range(4):
            for (src, dst) in ((X1R + 2 * e + (k >> 1), 72 + 8 * e + k), (XS + 2 * e + (k >> 1), 76 + 8 * e + k)):
                if k & 1:
                    a(f'v_and_b32 {vr(dst)}, 0xffff0000, {vr(src)}')
                else:
                    a(f'v_lshlrev_b32 {vr(dst)}, 16, {vr(src)}')
    a('s_waitcnt lgkmcnt(0)')
    for e in range(2):
        for k in range(4):
            r = ACC + 4 * e + k
            a(f'v_add_f32 {vr(r)}, {vr(r)}, {vr(64 + 4 * e + k)}')
            a(f'v_add_f32 {vr(r)}, {vr(r)}, {vr(72 + 8 * e + k)}')
            a(f'v_fma_f32 {vr(r)}, {vr(16 + k)}, {vr(r)}, {vr(76 + 8 * e + k)}')
        a(f'v_cvt_pk_bf16_f32 {vr(88 + 2 * e)}, {vr(ACC + 4 * e)}, {vr(ACC + 4 * e + 1)}')
        a(f'v_cvt_pk_bf16_f32 {vr(89 + 2 * e)}, {vr(ACC + 4 * e + 2)}, {vr(ACC + 4 * e + 3)}')
    OM = os.environ.get('OUTM', '')
    bstore(88, 2, 36, OUT, soff=sE, mods=OM)
    a(f's_add_u32 {sE}, {sE}, 16384')
    bstore(90, 2, 36, OUT, soff=sE, mods=OM)


def finish():
    lf = a.newlabel('L_fin')
    a('s_cmp_lg_u32 s2, 0')
    a(f's_cbranch_scc1 {lf}')
    a(f's_cmp_lg_u32 {sWV}, 0')
    a(f's_cbranch_scc1 {lf}')
    a(f'v_mov_b32 v14, {sT}')
    a(f'v_mov_b32 v15, {WS_EPOCH}')
    save_exec_mask('1')
    bstore(14, 1, 15, WS, mods='sc1')
    restore_exec()
    a.label(lf)
    if PADTO or STAMPS:
        a('s_waitcnt vmcnt(0)')
    if PADTO:
        lp = a.newlabel('L_pad'); lq = a.newlabel('L_padq')
        a('s_cmp_lg_u32 s2, 0')
        a(f's_cbranch_scc1 {lq}')
        a(f's_cmp_lg_u32 {sWV}, 0')
        a(f's_cbranch_scc1 {lq}')
        a.label(lp)
        a('s_memrealtime s[98:99]')
        a('s_waitcnt lgkmcnt(0)')
        a('s_sub_u32 s98, s98, s3')
        if PROBE:
            a('s_sub_u32 s99, s59, s3')
            a('s_sub_u32 s98, s98, s99')
        a(f's_cmp_lt_u32 s98, {PADTO * 100}')
        a(f's_cbranch_scc1 {lp}')
        a.label(lq)
    stamp('end')
    if STAMPS:
        for i in range(len(stamp_names)):
            a(f'v_writelane_b32 v255, s{STAMP_REGS[i]}, {i}')
        a(f's_lshl_b32 {sA}, s2, 3')
        a(f's_add_u32 {sA}, {sA}, {sWV}')
        a(f's_lshl_b32 {sA}, {sA}, 8')
        a(f's_add_u32 {sA}, {sA}, {WS_DBG}')
        a(f'v_lshl_add_u32 v20, v1, 2, {sA}')
        bstore(255, 1, 20, WS)
        a('s_waitcnt vmcnt(0)')
        open('stamps.txt', 'w').write('\n'.join(stamp_names) + '\n')
    a.label('L_END')
    a('s_endpgm')


def build(debug=True):
    global DEBUG
    DEBUG = debug
    prologue()
    phase_a()
    phase_b()
    for name, fn in (('3', phase3), ('4', phase4), ('5', phase5), ('6', phase6)):
        if STOP_AFTER and STOP_AFTER < name and STOP_AFTER != '':
            break
        fn()
    finish()
    nops = a.fast_hazard_pass()
    errs = a.check_waits([{'s5': w, 's89': nv} for w in range(8) for nv in ((1, 2) if w < 3 else (1,))])
    for e in errs:
        print('WAIT-CHECK:', e, file=sys.stderr)
    hdr = open('adaLN_cond__ssm_conv_s4__mixer_s_mlp__prompt.s.ref').read().split('\n')
    head = [l for l in hdr if l.startswith(';') and '@launch' not in l and 'Override' not in l and 'grid=ceil' not in l]
    txt = '\n'.join(head) + '\n; @launch grid=(256,1,1) block=(512,1,1) lds=163840\n'
    txt += '.amdgcn_target "amdgcn-amd-amdhsa--gfx950"\n.text\n'
    txt += f'.globl {KNAME}\n.p2align 8\n.type {KNAME},@function\n{KNAME}:\n'
    txt += a.text()
    txt += f'''.section .rodata,"a"
.p2align 6
.amdhsa_kernel {KNAME}
  .amdhsa_next_free_vgpr 256
  .amdhsa_next_free_sgpr 102
  .amdhsa_accum_offset 256
  .amdhsa_group_segment_fixed_size 0
  .amdhsa_kernarg_size 152
  .amdhsa_user_sgpr_count 2
  .amdhsa_user_sgpr_kernarg_segment_ptr 1
  .amdhsa_system_sgpr_workgroup_id_x 1
  .amdhsa_float_denorm_mode_32 3
.end_amdhsa_kernel
'''
    print(f'instructions: {len(a.lines)}  hazard nops: {nops}', file=sys.stderr)
    return txt


if __name__ == '__main__':
    out = sys.argv[1] if len(sys.argv) > 1 else 'k.s'
    open(out, 'w').write(build(debug=os.environ.get('NODEBUG') is None))
```

```python
import sys, os, struct
sys.path.insert(0, os.path.dirname(os.path.abspath(__file__)))
from asmlib import Asm
from layout import *

KNAME = 'adaLN_cond__ssm_conv_s4__mixer_s_mlp__prompt_kernel'
STOP_AFTER = os.environ.get('STOP_AFTER', '')
STAMPS = os.environ.get('STAMPS') is not None
PADTO = int(os.environ.get('PADTO', '0'))
SPIN_MAX = 20000
XP = os.environ.get('XP', '').split(',')
NOFAST = True
LDM = os.environ.get('LDM', 'sc1')
PRETOUCH = int(os.environ.get('PRETOUCH', '0'))
NOSCOUT = os.environ.get('NOSCOUT') is not None
FASTX = os.environ.get('FASTX') is not None
CM = '' if FASTX else 'sc1'

sT = 's4'; sWV = 's5'; sX = 's6'; sJ = 's7'
U, WS, OUT = 8, 12, 16
ARE, AIM, BRE, BIM, CRE, CIM = 20, 24, 28, 32, 36, 40
LDT, DSK, CC, WMOD, W1, W2, W3, W4 = 44, 48, 52, 56, 60, 64, 68, 72
sCH0 = 's76'; sRB = 's77'; sCS = 's78'; sNT3 = 's79'
sA, sB, sC, sD = 's80', 's81', 's82', 's83'
sSPIN = 's84'; sLO = 's85'; sHI = 's86'
sE, sF = 's87', 's88'; sNV = 's89'
mK1, mK2, mK3, mDG = 90, 92, 94, 96
sX0 = 98
sT32 = 's100'; sCQ = 's101'
sROT = 's68'
mFA, mSL = 64, 66
TSRD = 92
sSD, sSN, sSS, sSB = 's90', 's91', 's96', 's97'
sSR, sSO = 's74', 's75'

vL16, vVB = 4, 5
XS, X1R = 6, 10


def srd(n):
    return f's[{n}:{n + 3}]'


def vr(a, n=1):
    return f'v{a}' if n == 1 else f'v[{a}:{a + n - 1}]'


def fconst(x):
    return hex(struct.unpack('<I', struct.pack('<f', x))[0])


L_G = 0; G_ROW = 544; G_CH = 48 * G_ROW
L_E = 2 * G_CH; E_CH = 16 * G_ROW
L_KT = L_E + 2 * E_CH; KT_CH = 5120; KT_ZERO = 2559
L_COPY = L_KT + 2 * KT_CH; CP_R = 4160; CP_CH = 4 * CP_R
L_STG = L_COPY + 2 * CP_CH
L_PART = 0
L_XC = 143360
L_H = L_XC + 8192; H_CH = 4672
assert L_STG + 4 * 4096 <= L_XC and L_H + 2 * H_CH <= 163840
L_X = 0
L_HF = 32768
L_A4 = 65536
L_XS = 114688
L_CB = 122880
L_ST = L_CB + 4096
L_ST3 = L_ST + 1024
L_X1 = 0
L_ST5 = 147456
NSLOT = 18
L_EX = 147456

a = Asm()
stamp_names = []
STAMP_REGS = [3] + list(range(20, 48)) + list(range(52, 60))
STAMPSET = os.environ.get('STAMPSET', 'all')
LATE_ONLY = ('entry', 'S4ok', 'x1landed', 'k5a', 'k5b', 'k12a', 'k12b', 'gemm3', 'loop2', 'epiB', 'h3stored', 'S5ok', 'g0', 'g1', 'g2', 'g3', 'g4', 'g5', 'g6', 'g7', 'gemm4', 'exch', 'end')


PROBE = os.environ.get('PROBE')


def stamp(name):
    if PROBE == name:
        a(f's_memrealtime s[{sX0}:{sX0 + 1}]')
        a('s_waitcnt lgkmcnt(0)')
        a(f's_mov_b32 s59, s{sX0}')
    if not STAMPS:
        return
    if STAMPSET == 'late' and name not in LATE_ONLY:
        return
    if STAMPSET == 'all' and name in ('k5a', 'k5b', 'k12a', 'k12b', 'loop2', 'epiB', 'g0', 'g1', 'g2', 'g3', 'g4', 'g5', 'g6', 'g7', 'exch'):
        return
    if name in stamp_names:
        i = stamp_names.index(name)
    else:
        i = len(stamp_names)
        stamp_names.append(name)
    a(f's_memtime s[{sX0}:{sX0 + 1}]' if os.environ.get('CYC') else f's_memrealtime s[{sX0}:{sX0 + 1}]')
    a('s_waitcnt lgkmcnt(0)')
    a(f's_mov_b32 s{STAMP_REGS[i]}, s{sX0}')


def bload(dst, n, voff, s, imm=0, soff='0', mods=''):
    op = {1: 'buffer_load_dword', 2: 'buffer_load_dwordx2', 4: 'buffer_load_dwordx4', 'u16': 'buffer_load_ushort'}[n]
    cnt = 1 if n == 'u16' else n
    a(f'{op} {vr(dst, cnt)}, {vr(voff)}, {srd(s)}, {soff} offen' + (f' offset:{imm}' if imm else '') + (' ' + mods if mods else ''))


def bstore(src, n, voff, s, imm=0, soff='0', mods=''):
    op = {1: 'buffer_store_dword', 2: 'buffer_store_dwordx2', 4: 'buffer_store_dwordx4'}[n]
    a(f'{op} {vr(src, n)}, {vr(voff)}, {srd(s)}, {soff} offen' + (f' offset:{imm}' if imm else '') + (' ' + mods if mods else ''))


def dma(n, voff, s, m0, soff='0', mods=''):
    a(f's_mov_b32 m0, {m0}')
    op = {1: 'buffer_load_dword', 4: 'buffer_load_dwordx4'}[n]
    a(f'{op} {vr(voff)}, {srd(s)}, {soff} offen' + (' ' + mods if mods else '') + ' lds')


def cstore(src, n, voff, soff):
    if NOFAST:
        bstore(src, n, voff, WS, soff=soff, mods='sc1')
        return
    a(f's_mov_b64 exec, s[{mFA}:{mFA + 1}]')
    bstore(src, n, voff, WS, soff=soff)
    a(f's_mov_b64 exec, s[{mSL}:{mSL + 1}]')
    bstore(src, n, voff, WS, soff=soff, mods='sc1')
    a('s_mov_b64 exec, -1')


def mfma(d, x, y, c=None):
    cc = '0' if c is None else vr(c, 4)
    a(f'v_mfma_f32_16x16x32_bf16 {vr(d, 4)}, {vr(x, 4)}, {vr(y, 4)}, {cc}')


def cmul(d, x, y):
    a(f'v_pk_mul_f32 {vr(d, 2)}, {vr(x, 2)}, {vr(y, 2)} op_sel:[0,0] op_sel_hi:[0,1]')
    a(f'v_pk_fma_f32 {vr(d, 2)}, {vr(x, 2)}, {vr(y, 2)}, {vr(d, 2)} op_sel:[1,1,0] op_sel_hi:[1,0,1] neg_lo:[1,0,0]')


def save_exec_mask(mask):
    a(f's_mov_b64 s[{sX0}:{sX0 + 1}], exec')
    if isinstance(mask, int) and mask > 64:
        a(f's_mov_b32 exec_lo, {hex(mask & 0xffffffff)}')
        a(f's_mov_b32 exec_hi, {hex(mask >> 32)}')
    else:
        a(f's_mov_b64 exec, {mask}')


def restore_exec():
    a(f's_mov_b64 exec, s[{sX0}:{sX0 + 1}]')


def prologue():
    if PADTO:
        a('s_memrealtime s[78:79]')
        a('s_waitcnt lgkmcnt(0)')
        a('s_mov_b32 s3, s78')
    a('s_cmp_ge_u32 s2, 256')
    a('s_cbranch_scc1 L_END')
    ptrs = [(U, 0), (WS, 144), (ARE, 8), (AIM, 16), (BRE, 24), (BIM, 32), (CRE, 40), (CIM, 48), (LDT, 56), (CC, 112),
            (WMOD, 120), (W1, 80), (W2, 88), (W3, 96), (W4, 104), (DSK, 64), (OUT, 128)]
    for r, off in ptrs:
        a(f's_load_dwordx2 s[{r}:{r + 1}], s[0:1], {off}')
    sizes = {U: 2 * 1024 * 1024, ARE: 131072, AIM: 131072, BRE: 131072, BIM: 131072, CRE: 131072, CIM: 131072,
             LDT: 1024, DSK: 1024, W1: 524288, W2: 524288, W3: 512 * F_ * 2, W4: 512 * F_ * 2, CC: 1024,
             WMOD: 512 * 3072 * 2, OUT: 2 * 1024 * 1024, WS: WS_USED + (WS_DBG_SIZE if DEBUG else 0)}
    a('v_lshrrev_b32 v2, 6, v0')
    a('v_and_b32 v1, 63, v0')
    a(f'v_readfirstlane_b32 {sWV}, v2')
    for r, sz in sizes.items():
        a(f's_mov_b32 s{r + 2}, {sz}')
        a(f's_mov_b32 s{r + 3}, 0x20000')
    a('v_and_b32 v2, 15, v1')
    a('v_lshrrev_b32 v3, 4, v1')
    a(f'v_lshlrev_b32 {vr(vL16)}, 4, v1')
    a(f's_and_b32 {sX}, s2, 7')
    if os.environ.get('XROT'):
        a(f's_add_u32 {sX}, {sX}, {os.environ["XROT"]}')
        a(f's_and_b32 {sX}, {sX}, 7')
    a(f's_lshr_b32 {sJ}, s2, 3')
    a(f's_lshl_b32 {sCH0}, {sX}, 6')
    a(f's_lshl_b32 {sA}, {sJ}, 1')
    a(f's_add_u32 {sCH0}, {sCH0}, {sA}')
    a(f's_lshl_b32 {sRB}, {sX}, 2')
    a(f's_lshr_b32 {sA}, {sJ}, 3')
    a(f's_add_u32 {sRB}, {sRB}, {sA}')
    a(f's_and_b32 {sCS}, {sJ}, 7')
    a(f's_lshl_b32 {sT32}, {sRB}, 1')
    a(f's_and_b32 {sA}, {sCS}, 1')
    a(f's_add_u32 {sT32}, {sT32}, {sA}')
    a(f's_lshr_b32 {sCQ}, {sCS}, 1')
    a('v_mov_b32 v102, 0')
    a('s_waitcnt lgkmcnt(0)')
    a(f's_mov_b64 s[{TSRD}:{TSRD + 1}], s[{W1}:{W1 + 1}]')
    a(f's_mov_b32 s{TSRD + 2}, 524288')
    a(f's_mov_b32 s{TSRD + 3}, 0x20000')


EXA = 112
KMA, KMB, KMD = 108, 109, 104


def precompute():
    a(f's_load_dword {sT}, s[{WS}:{WS + 1}], {WS_EPOCH}')
    a(f'v_lshlrev_b32 {vr(vVB)}, 4, v2')
    a(f'v_lshl_add_u32 {vr(vVB)}, v3, 9, {vr(vVB)}')
    a('v_and_b32 v16, 255, v0')
    a('v_lshlrev_b32 v16, 3, v16')
    a(f's_lshr_b32 {sA}, {sWV}, 2')
    a(f's_mul_i32 {sA}, {sA}, {KT_CH}')
    a(f's_add_u32 {sA}, {sA}, {L_KT}')
    a(f'v_cvt_f32_u32 v17, {sA}')
    a(f's_add_u32 {sA}, {sA}, {2 * KT_ZERO}')
    a(f'v_mov_b32 v18, {sA}')
    a('v_cvt_f32_u32 v19, v16')
    a('v_cmp_eq_u32 vcc, 0, v16')
    for d in range(1, 12):
        dd = d - 4
        r = EXA + d
        a(f'v_add_f32 v20, {float(dd)}, v19' if -16 <= dd <= 4 and float(dd) in (-4.0, -2.0, -1.0, 1.0, 2.0, 4.0, 0.5) else
          f'v_add_f32 v20, {fconst(float(dd))}, v19')
        a('v_cvt_pk_bf16_f32 v20, v20, v20')
        a('v_and_b32 v20, 0xffff0000, v20')
        a('v_fma_f32 v20, v20, 2.0, v17')
        a(f'v_cvt_u32_f32 {vr(r)}, v20')
        if dd < 0:
            a(f'v_cndmask_b32 {vr(r)}, {vr(r)}, v18, vcc')
    a(f's_cmp_ge_u32 {sWV}, 3')
    a(f's_cselect_b32 {sA}, 1, 0')
    a(f's_mul_i32 {sB}, {sA}, 3')
    a(f's_sub_u32 {sB}, {sWV}, {sB}')
    a(f's_mul_i32 {sC}, {sA}, {G_CH}')
    a(f's_mul_i32 {sD}, {sB}, {16 * G_ROW}')
    a(f's_add_u32 {sC}, {sC}, {sD}')
    a(f'v_mul_u32_u24 v16, {G_ROW}, v2')
    a('v_lshl_add_u32 v16, v3, 4, v16')
    a(f'v_add_u32 {vr(KMA)}, {sC}, v16')
    a(f's_mul_i32 {sC}, {sA}, {E_CH}')
    a(f's_add_u32 {sC}, {sC}, {L_E}')
    a(f'v_add_u32 {vr(KMB)}, {sC}, v16')
    bases = [(0, 4, 128, 132), (256, 384, 512, 516), (1024, 1536, 2048, 2049)]
    steps = [(1, 1, 1, 1), (2, 2, 128, 128), (128, 128, 128, 128)]
    pk2 = lambda x, y: x | (y << 16)
    pk4 = lambda t: t[0] | (t[1] << 8) | (t[2] << 16) | (t[3] << 24)
    for reg, vals in ((sC, [pk2(b[0], b[1]) for b in bases]), (sD, [pk2(b[2], b[3]) for b in bases]),
                      (sE, [pk4(s) for s in steps])):
        a(f's_mov_b32 {reg}, {vals[0]}')
        a(f's_cmp_eq_u32 {sB}, 1')
        a(f's_cselect_b32 {reg}, {vals[1]}, {reg}')
        a(f's_cmp_eq_u32 {sB}, 2')
        a(f's_cselect_b32 {reg}, {vals[2]}, {reg}')
    a('v_cmp_gt_u32 vcc, 2, v3')
    a(f'v_mov_b32 v16, {sD}')
    a(f'v_mov_b32 v17, {sC}')
    a('v_cndmask_b32 v16, v16, v17, vcc')
    a('v_and_b32 v17, 1, v3')
    a('v_lshlrev_b32 v17, 4, v17')
    a('v_bfe_u32 v16, v16, v17, 16')
    a('v_lshlrev_b32 v17, 3, v3')
    a(f'v_bfe_u32 v17, {sE}, v17, 8')
    a('v_lshl_add_u32 v16, v2, 3, v16')
    a(f's_mul_i32 {sC}, {sA}, {KT_CH}')
    a(f's_add_u32 {sC}, {sC}, {L_KT}')
    a(f'v_lshlrev_b32 v16, 1, v16')
    a(f'v_add_u32 {vr(KMD)}, {sC}, v16')
    a('v_lshlrev_b32 v17, 1, v17')
    for r in range(1, 4):
        a(f'v_add_u32 {vr(KMD + r)}, {vr(KMD + r - 1)}, v17')
    a(f's_lshl_b32 {sA}, {sWV}, 12')
    a(f'v_add_u32 v9, {sA}, {vr(vL16)}')
    a('v_lshrrev_b32 v16, 3, v1')
    a('v_cmp_gt_u32 vcc, 6, v16')
    a('v_mov_b32 v17, 0')
    a('v_cndmask_b32 v16, v17, v16, vcc')
    a('v_lshrrev_b32 v17, 1, v16')
    a('v_lshlrev_b32 v17, 9, v17')
    a('v_and_b32 v16, 1, v16')
    a('v_add_u32 v17, v17, v16')
    a(f'v_add_u32 v17, {sCH0}, v17')
    a('v_and_b32 v16, 7, v1')
    a('v_mul_u32_u24 v16, 3072, v16')
    a('v_add_u32 v17, v17, v16')
    a('v_lshlrev_b32 v10, 3, v17')
    a(f's_lshr_b32 {sC}, {sWV}, 2'); a(f's_and_b32 {sD}, {sWV}, 3')
    a(f's_mul_i32 {sA}, {sC}, {H_CH}')
    a(f's_lshl_b32 {sB}, {sD}, 6')
    a(f's_sub_u32 {sA}, {sA}, {sB}')
    a(f's_add_u32 {sA}, {sA}, {L_H + 480 - 256}')
    a('v_lshlrev_b32 v6, 5, v2')
    a('v_lshl_add_u32 v6, v3, 4, v6')
    a(f'v_add_u32 v6, {sA}, v6')
    a(f's_mul_i32 {sA}, {sC}, {CP_CH}')
    a(f's_add_u32 {sA}, {sA}, {sB}')
    a(f's_add_u32 {sA}, {sA}, {L_COPY + 64 - 8}')
    a('v_lshrrev_b32 v7, 2, v2')
    a(f'v_mul_u32_u24 v7, {CP_R}, v7')
    a('v_and_b32 v16, 3, v2')
    a('v_lshl_add_u32 v7, v16, 3, v7')
    a('v_lshlrev_b32 v16, 4, v3')
    a('v_sub_u32 v7, v7, v16')
    a(f'v_add_u32 v7, {sA}, v7')
    a(f's_lshl_b32 {sA}, {sWV}, 13')
    a(f'v_add_u32 v8, {sA}, {vr(vL16)}')
    a('v_lshlrev_b32 v16, 4, v2')
    a('v_lshl_add_u32 v16, v3, 2, v16')
    a(f's_lshl_b32 {sA}, {sWV}, 8')
    a(f'v_add_u32 v16, {sA}, v16')
    a('v_lshlrev_b32 v11, 2, v16')
    a(f'v_add_u32 v11, {L_XC}, v11')
    a('v_lshlrev_b32 v12, 1, v16')
    a(f'v_add_u32 v12, {L_H + 512}, v12')
    a('v_lshrrev_b32 v13, 1, v2')
    a('v_lshlrev_b32 v13, 15, v13')
    a('v_and_b32 v16, 1, v2')
    a('v_lshl_add_u32 v13, v16, 5, v13')
    a('v_and_b32 v16, 1, v3')
    a('v_lshl_add_u32 v13, v16, 6, v13')
    a('v_lshrrev_b32 v16, 1, v3')
    a('v_lshl_add_u32 v13, v16, 4, v13')
    a('s_waitcnt lgkmcnt(0)')
    a(f's_add_u32 {sT}, {sT}, 1')


def role_k():
    a(f's_lshr_b32 {sA}, {sWV}, 1')
    a(f's_add_u32 {sB}, {sCH0}, {sA}')
    a(f's_and_b32 {sC}, {sWV}, 1')
    a(f's_lshl_b32 {sC}, {sC}, 6')
    a(f's_lshl_b32 {sD}, {sB}, 7')
    a(f's_add_u32 {sD}, {sD}, {sC}')
    a(f'v_add_u32 v21, {sD}, v1')
    a('v_lshlrev_b32 v21, 1, v21')
    a(f's_lshl_b32 {sB}, {sB}, 1')
    a(f'v_mov_b32 v22, {sB}')
    for i, s in enumerate((ARE, AIM, BRE, BIM, CRE, CIM)):
        bload(24 + i, 'u16', 21, s)
    bload(30, 'u16', 22, LDT)
    if PRETOUCH:
        a(f'v_lshlrev_b32 v126, {PRETOUCH}, v1')
        a('v_min_u32 v126, ' + str(WS_USED - 4) + ', v126')
        bload(127, 1, 126, WS)
    a(f's_mul_i32 {sB}, {sA}, {G_CH}')
    a(f'v_add_u32 v22, {sC}, v1')
    a('v_lshlrev_b32 v22, 2, v22')
    a(f'v_add_u32 v23, {sB}, v22')
    a(f's_mul_i32 {sB}, {sA}, {E_CH}')
    a(f's_add_u32 {sB}, {sB}, {L_E}')
    a(f'v_add_u32 v22, {sB}, v22')
    precompute()
    swz_issue()
    a('s_waitcnt vmcnt(0)')
    stamp('r_loaded')
    for i in range(7):
        a(f'v_lshlrev_b32 {vr(24 + i)}, 16, {vr(24 + i)}')
    LOG2E = 1.4426950408889634
    hi = struct.unpack('<f', struct.pack('<f', LOG2E))[0]
    lo = LOG2E - hi
    a(f'v_mul_f32 v32, {fconst(hi)}, v30')
    a(f'v_mov_b32 v31, {fconst(hi)}')
    a('v_fma_f32 v33, v30, v31, -v32')
    a(f'v_fmamk_f32 v33, v30, {fconst(lo)}, v33')
    a('v_exp_f32 v32, v32')
    a(f'v_mul_f32 v33, {fconst(0.6931471805599453)}, v33')
    a('v_fma_f32 v32, v32, v33, v32')
    a('v_cvt_pk_bf16_f32 v32, v32, v32')
    a('v_lshlrev_b32 v30, 16, v32')
    a('v_mul_f32 v24, v24, v30')
    a('v_mul_f32 v25, v25, v30')
    a(f'v_mul_f32 v24, {fconst(hi)}, v24')
    a(f'v_mul_f32 v25, {fconst(1.0 / (2 * 3.141592653589793))}, v25')
    a('v_mul_f32 v26, v26, v30')
    a('v_mul_f32 v27, v27, v30')
    cmul(32, 26, 28)
    for d, m in ((34, 1.0), (36, 8.0), (38, 128.0)):
        if m == 1.0:
            a('v_exp_f32 v40, v24'); a('v_fract_f32 v41, v25')
        else:
            a(f'v_mul_f32 v40, {fconst(m)}, v24')
            a(f'v_mul_f32 v41, {fconst(m)}, v25')
            a('v_exp_f32 v40, v40'); a('v_fract_f32 v41, v41')
        a('v_cos_f32 v42, v41')
        a('v_sin_f32 v43, v41')
        a(f'v_mul_f32 {vr(d)}, v40, v42')
        a(f'v_mul_f32 {vr(d + 1)}, v40, v43')
    P = {1: 34, 2: 44, 3: 46, 4: 48, 5: 50, 6: 52, 7: 54}
    cmul(P[2], P[1], P[1])
    cmul(P[3], P[2], P[1])
    cmul(P[4], P[2], P[2])
    cmul(P[5], P[4], P[1])
    cmul(P[6], P[4], P[2])
    cmul(P[7], P[4], P[3])

    def putG(rho, x):
        a(f'v_cvt_pk_bf16_f32 v31, {vr(x)}, -{vr(x + 1)}')
        a(f'ds_write_b32 v23, v31 offset:{rho * G_ROW}')

    def putE(j, x):
        a(f'v_cvt_pk_bf16_f32 v29, {vr(x)}, {vr(x + 1)}')
        a(f'ds_write_b32 v22, v29 offset:{j * G_ROW}')

    rows = {}
    for rho in range(41):
        if rho < 16:
            i, b = rho >> 3, rho & 7
        elif rho < 24:
            i, b = 2 + ((rho - 16) >> 2), 2 * ((rho - 16) & 3)
        elif rho < 32:
            i, b = 4 + ((rho - 24) & 3), 4 * ((rho - 24) >> 2)
        else:
            i, b = 8 + (rho - 32), 0
        rows.setdefault(i, []).append((rho, b))
    a('v_mov_b32 v29, 0x00003f80')
    a('ds_write_b32 v22, v29 offset:0')
    putE(1, 36)
    Ecur = 36
    Q = 32
    for i in range(17):
        for n_, (rho, b) in enumerate(rows[i]):
            if b == 0:
                putG(rho, Q)
            else:
                t = 64 + 2 * (n_ & 1)
                cmul(t, Q, P[b])
                putG(rho, t)
        if i < 16:
            nq = 60 if Q != 60 else 62
            cmul(nq, Q, 38)
            Q = nq
        j = i + 2
        if j < 16:
            ne = 56 if Ecur != 56 else 58
            cmul(ne, Ecur, 36)
            putE(j, ne)
            Ecur = ne
    if not os.environ.get('SWZLATE'):
        a('v_mov_b32 v14, v102')
        swz_dma()


def swz_issue():
    a(f's_lshl_b32 {sA}, s2, 2')
    a(f's_add_u32 {sA}, {sA}, {sWV}')
    a(f's_add_u32 {sA}, {sA}, 128')
    a(f's_cmp_lt_u32 {sA}, 952')
    a(f's_cselect_b32 {sSN}, 4, 0')
    a(f's_cselect_b32 {sA}, {sA}, 128')
    a(f's_mov_b64 s[{TSRD}:{TSRD + 1}], s[{W1}:{W1 + 1}]')
    a(f's_mov_b32 s{TSRD + 2}, 524288')
    a(f's_mov_b32 s{TSRD + 3}, 0x20000')
    a(f's_mov_b32 {sSD}, {WS_W1S}')
    a(f's_mov_b32 {sSS}, 16384')
    a(f's_mov_b32 {sF}, 1024')
    a(f's_mov_b32 {sB}, {sA}')
    a(f's_cmp_ge_u32 {sA}, 128')
    a(f's_cselect_b64 s[{TSRD}:{TSRD + 1}], s[{W2}:{W2 + 1}], s[{TSRD}:{TSRD + 1}]')
    a(f's_cselect_b32 {sSD}, {WS_W2S}, {sSD}')
    a(f's_cselect_b32 {sC}, 128, 0')
    a(f's_sub_u32 {sB}, {sA}, {sC}')
    a(f's_cmp_ge_u32 {sA}, 256')
    a(f's_cselect_b64 s[{TSRD}:{TSRD + 1}], s[{W3}:{W3 + 1}], s[{TSRD}:{TSRD + 1}]')
    a(f's_cselect_b32 s{TSRD + 2}, {512 * F_ * 2}, s{TSRD + 2}')
    a(f's_cselect_b32 {sSD}, {WS_W3S}, {sSD}')
    a(f's_cselect_b32 {sF}, {F_ * 2}, {sF}')
    a(f's_cselect_b32 {sC}, 256, 0')
    a(f's_cselect_b32 {sD}, 1, 0')
    a(f's_cmp_lg_u32 {sD}, 0')
    a(f's_sub_u32 {sC}, {sA}, {sC}')
    a(f's_cmp_lg_u32 {sD}, 0')
    a(f's_cselect_b32 {sB}, {sC}, {sB}')
    a(f's_and_b32 {sC}, {sB}, 15')
    a(f's_lshr_b32 {sD}, {sB}, 4')
    a(f's_mov_b32 {sE}, 16')
    a(f's_cmp_ge_u32 {sA}, 608')
    a(f's_cselect_b64 s[{TSRD}:{TSRD + 1}], s[{W4}:{W4 + 1}], s[{TSRD}:{TSRD + 1}]')
    a(f's_cselect_b32 {sSD}, {WS_W4S}, {sSD}')
    a(f's_cselect_b32 {sF}, 1024, {sF}')
    a(f's_cselect_b32 {sE}, 43, {sE}')
    a(f's_cselect_b32 {sSS}, {43 * 1024}, {sSS}')
    a(f's_sub_u32 {sB}, {sA}, 608')
    a(f's_lshr_b32 {sSB}, {sB}, 3')
    a(f's_and_b32 {sB}, {sB}, 7')
    a(f's_cmp_ge_u32 {sA}, 608')
    a(f's_cselect_b32 {sC}, {sSB}, {sC}')
    a(f's_cselect_b32 {sD}, {sB}, {sD}')
    a(f's_cselect_b32 {sB}, 0, {sD}')
    a(f's_cmp_eq_u32 {sB}, 21')
    a(f's_cselect_b32 {sB}, 2, 4')
    a(f's_min_u32 {sSN}, {sSN}, {sB}')
    a(f's_lshl_b32 {sB}, {sD}, 2')
    a(f's_mul_i32 {sB}, {sB}, {sE}')
    a(f's_add_u32 {sB}, {sB}, {sC}')
    a(f's_lshl_b32 {sB}, {sB}, 10')
    a(f's_add_u32 {sSD}, {sSD}, {sB}')
    a(f's_mul_i32 {sC}, {sC}, {sF}')
    a(f's_lshl_b32 {sC}, {sC}, 5')
    a(f's_lshl_b32 {sD}, {sD}, 7')
    a(f's_add_u32 {sC}, {sC}, {sD}')
    a('v_lshrrev_b32 v100, 3, v1')
    a(f'v_mul_lo_u32 v100, v100, {sF}')
    a('v_and_b32 v101, 7, v1')
    a('v_lshl_add_u32 v102, v101, 4, v100')
    a(f's_lshl_b32 {sB}, {sWV}, 12')
    a(f's_add_u32 {sSB}, {sB}, {L_STG}')
    a(f's_lshl_b32 {sSR}, {sF}, 3')
    a(f's_mov_b32 {sSO}, {sC}')


def swz_dma():
    a(f's_mov_b32 {sC}, {sSO}')
    for q in range(4):
        if q:
            a(f's_add_u32 {sC}, {sC}, {sSR}')
        a(f's_add_u32 {sB}, {sSB}, {q * 1024}')
        dma(4, 14, TSRD, sB, soff=sC)


def swz_finish():
    a('v_lshrrev_b32 v46, 2, v2')
    a('v_lshl_add_u32 v46, v3, 3, v46')
    a('v_lshlrev_b32 v46, 7, v46')
    a('v_and_b32 v47, 3, v2')
    a('v_lshl_add_u32 v46, v47, 3, v46')
    a(f'v_add_u32 v46, {sSB}, v46')
    for nt in range(4):
        a(f'ds_read_b64_tr_b16 {vr(48 + 4 * nt, 2)}, v46 offset:{32 * nt}')
        a(f'ds_read_b64_tr_b16 {vr(50 + 4 * nt, 2)}, v46 offset:{32 * nt + 512}')
    a('s_waitcnt lgkmcnt(0)')
    a(f's_mov_b32 {sA}, {sSD}')
    a(f's_mov_b32 {sB}, 0x7ff00000')
    for nt in range(4):
        a(f's_cmp_gt_u32 {sSN}, {nt}')
        a(f's_cselect_b32 {sC}, {sA}, {sB}')
        bstore(48 + 4 * nt, 4, vL16, WS, soff=sC, mods='sc1')
        a(f's_add_u32 {sA}, {sA}, {sSS}')


def role_stats():
    a(f's_lshl_b32 {sA}, s2, 13')
    a(f's_add_u32 {sB}, {sA}, 4096')
    for i in range(8):
        bload(24 + 4 * i, 4, vL16, U, imm=(i & 3) * 1024, soff=(sA if i < 4 else sB))
    precompute()
    a('v_mov_b32 v23, 0x3f803f80')
    a('s_waitcnt vmcnt(7)')
    stamp('r_loaded')
    for i in range(8):
        a(f's_waitcnt vmcnt({7 - i})')
        b = 24 + 4 * i
        a(f'v_dot2_f32_bf16 {vr(60 + i)}, {vr(b)}, v23, 0')
        a(f'v_dot2_f32_bf16 {vr(68 + i)}, {vr(b)}, {vr(b)}, 0')
        for k in range(1, 4):
            a(f'v_dot2c_f32_bf16 {vr(60 + i)}, {vr(b + k)}, v23')
            a(f'v_dot2c_f32_bf16 {vr(68 + i)}, {vr(b + k)}, {vr(b + k)}')
    for base in (60, 68):
        for i in range(4):
            a(f'v_permlane32_swap_b32 {vr(base + i)}, {vr(base + i + 4)}')
        for i in range(4):
            a(f'v_add_f32 {vr(base + i)}, {vr(base + i)}, {vr(base + i + 4)}')
    for base in (60, 68):
        for i in range(2):
            a(f'v_permlane16_swap_b32 {vr(base + i)}, {vr(base + i + 2)}')
        for i in range(2):
            a(f'v_add_f32 {vr(base + i)}, {vr(base + i)}, {vr(base + i + 2)}')
    for sh in (1, 2, 4, 8):
        for r in (60, 61, 68, 69):
            a(f'v_add_f32_dpp {vr(r)}, {vr(r)}, {vr(r)} row_ror:{sh} row_mask:0xf bank_mask:0xf')
    for p in range(2):
        S, Q = 60 + p, 68 + p
        d = 72 + 4 * p
        a(f'v_mul_f32 {vr(S)}, {fconst(1.0 / 512)}, {vr(S)}')
        a(f'v_mul_f32 {vr(Q)}, {fconst(1.0 / 512)}, {vr(Q)}')
        a(f'v_fma_f32 {vr(Q)}, -{vr(S)}, {vr(S)}, {vr(Q)}')
        a(f'v_max_f32 {vr(Q)}, 0, {vr(Q)}')
        a(f'v_add_f32 {vr(Q)}, {fconst(1e-5)}, {vr(Q)}')
        a(f'v_rsq_f32 {vr(d)}, {vr(Q)}')
        a(f'v_mov_b32 {vr(d + 1)}, {sT}')
        a(f'v_mov_b32 {vr(d + 3)}, {sT}')
        a(f'v_mul_f32 {vr(d + 2)}, {vr(S)}, {vr(d)}')
    a(f's_lshl_b32 {sA}, s2, 7')
    a(f's_add_u32 {sA}, {sA}, {WS_STATS}')
    a('v_lshlrev_b32 v21, 5, v3')
    save_exec_mask(0x0001000100010001)
    bstore(72, 4, 21, WS, soff=sA, mods='sc1')
    bstore(76, 4, 21, WS, imm=16, soff=sA, mods='sc1')
    restore_exec()
    stamp('r_pub')


L_SIL = 139264


def role_mod():
    lskip = a.newlabel('L_nomod'); ldone = a.newlabel('L_moddone')
    a('s_cmp_ge_u32 s2, 192')
    a(f's_cbranch_scc1 {lskip}')
    a(f's_mul_i32 {sA}, {sJ}, 43')
    a(f's_lshr_b32 {sA}, {sA}, 8')
    a(f's_mul_i32 {sB}, {sA}, 6')
    a(f's_sub_u32 {sB}, {sJ}, {sB}')
    a(f's_lshl_b32 {sB}, {sB}, 3')
    a(f's_add_u32 {sNV}, {sB}, {sX}')
    a(f's_lshl_b32 {sA}, {sA}, 1')
    a(f's_add_u32 {sA}, {sA}, {sWV}')
    a(f's_sub_u32 {sNT3}, {sA}, 5')
    a('v_lshlrev_b32 v22, 1, v1')
    a(f's_lshl_b32 {sA}, {sNT3}, 7')
    bload(24, 'u16', 22, CC, soff=sA)
    a('v_lshrrev_b32 v21, 3, v1')
    a('v_mul_u32_u24 v23, 6144, v21')
    a('v_and_b32 v40, 7, v1')
    a('v_lshl_add_u32 v23, v40, 4, v23')
    a(f's_mul_i32 {sA}, {sNT3}, {64 * 6144}')
    a(f's_lshl_b32 {sB}, {sNV}, 7')
    a(f's_add_u32 {sA}, {sA}, {sB}')
    for i in range(8):
        if i:
            a(f's_add_u32 {sA}, {sA}, {8 * 6144}')
        bload(64 + 4 * i, 4, 23, WMOD, soff=sA)
    precompute()
    a('s_waitcnt vmcnt(8)')
    stamp('r_loaded')
    a('v_lshlrev_b32 v24, 16, v24')
    a(f'v_mul_f32 v58, {fconst(-1.4426950408889634)}, v24')
    a('v_exp_f32 v58, v58')
    a('v_add_f32 v58, 1.0, v58')
    a('v_rcp_f32 v58, v58')
    a('v_mul_f32 v58, v58, v24')
    a('v_cvt_pk_bf16_f32 v58, v58, v58')
    a('v_and_b32 v56, 0xffff, v58')
    a('v_and_b32 v57, 0xffff0000, v58')
    a(f's_sub_u32 {sA}, {sWV}, 5')
    a(f's_lshl_b32 {sA}, {sA}, 9')
    a(f's_add_u32 {sA}, {sA}, {L_SIL}')
    a('v_and_b32 v25, 7, v1')
    a('v_lshlrev_b32 v25, 5, v25')
    a('v_lshrrev_b32 v26, 3, v1')
    a('v_lshl_add_u32 v25, v26, 2, v25')
    a(f'v_add_u32 v25, {sA}, v25')
    a('ds_write_b32 v25, v56')
    a('ds_write_b32 v25, v57 offset:256')
    a(f'v_lshl_add_u32 v25, v21, 5, {sA}')
    a('s_waitcnt lgkmcnt(0)')
    a('ds_read_b128 v[24:27], v25') if False else None
    a('ds_read_b128 v[28:31], v25')
    a('ds_read_b128 v[32:35], v25 offset:16')
    a('ds_read_b128 v[40:43], v25 offset:256')
    a('ds_read_b128 v[44:47], v25 offset:272')
    a('s_waitcnt lgkmcnt(0)')
    ACC = 48
    for i in range(8):
        a(f's_waitcnt vmcnt({7 - i})')
        b = 64 + 4 * i
        for k in range(4):
            if i == 0:
                a(f'v_dot2_f32_bf16 {vr(ACC + 2 * k)}, {vr(b + k)}, {vr(28 + i)}, 0')
                a(f'v_dot2_f32_bf16 {vr(ACC + 1 + 2 * k)}, {vr(b + k)}, {vr(40 + i)}, 0')
            else:
                a(f'v_dot2c_f32_bf16 {vr(ACC + 2 * k)}, {vr(b + k)}, {vr(28 + i)}')
                a(f'v_dot2c_f32_bf16 {vr(ACC + 1 + 2 * k)}, {vr(b + k)}, {vr(40 + i)}')
    for i in range(4):
        a(f'v_permlane32_swap_b32 {vr(ACC + i)}, {vr(ACC + 4 + i)}')
    for i in range(4):
        a(f'v_add_f32 {vr(ACC + i)}, {vr(ACC + i)}, {vr(ACC + 4 + i)}')
    for i in range(2):
        a(f'v_permlane16_swap_b32 {vr(ACC + i)}, {vr(ACC + 2 + i)}')
    for i in range(2):
        a(f'v_add_f32 {vr(ACC + i)}, {vr(ACC + i)}, {vr(ACC + 2 + i)}')
    for r in (ACC, ACC + 1):
        a(f'v_add_f32_dpp {vr(r)}, {vr(r)}, {vr(r)} row_ror:8 row_mask:0xf bank_mask:0xf')
    a('v_and_b32 v21, 1, v3')
    a('v_lshlrev_b32 v21, 1, v21')
    a('v_lshrrev_b32 v22, 1, v3')
    a('v_lshl_add_u32 v21, v22, 2, v21')
    a('v_and_b32 v22, 7, v1')
    a('v_lshl_add_u32 v21, v22, 3, v21')
    a('v_lshlrev_b32 v21, 3, v21')
    a(f's_mul_i32 {sA}, {sNT3}, 3072')
    a(f's_lshl_b32 {sB}, {sNV}, 6')
    a(f's_add_u32 {sA}, {sA}, {sB}')
    a(f's_lshl_b32 {sA}, {sA}, 3')
    a(f's_add_u32 {sA}, {sA}, {WS_MODG}')
    a(f'v_mov_b32 {vr(ACC + 2)}, {vr(ACC + 1)}')
    a(f'v_mov_b32 {vr(ACC + 1)}, {sT}')
    a(f'v_mov_b32 {vr(ACC + 3)}, {sT}')
    save_exec_mask(0x00ff00ff00ff00ff)
    bstore(ACC, 4, 21, WS, soff=sA, mods='sc1')
    restore_exec()
    stamp('r_pub')
    a(f's_branch {ldone}')
    a.label(lskip)
    precompute()
    a.label(ldone)


def role_xt():
    a('v_lshlrev_b32 v21, 10, v1')
    a(f's_lshl_b32 {sA}, {sJ}, 16')
    a(f's_lshl_b32 {sB}, {sX}, 7')
    a(f's_add_u32 {sA}, {sA}, {sB}')
    for i in range(8):
        bload(24 + 4 * i, 4, 21, U, imm=16 * i, soff=sA)
    precompute()
    for k in range(4):
        a(f'v_mov_b32 {vr(57 + 2 * k)}, {sT}')
    a('v_lshlrev_b32 v21, 3, v1')
    a(f's_lshl_b32 {sA}, {sX}, 19')
    a(f's_lshl_b32 {sB}, {sJ}, 9')
    a(f's_add_u32 {sA}, {sA}, {sB}')
    a(f's_add_u32 {sA}, {sA}, {WS_XT}')
    for p in range(32):
        if p % 4 == 0:
            a(f's_waitcnt vmcnt({7 - p // 4 + p})')
            if p == 0:
                stamp('r_loaded')
        t = 56 + 2 * (p % 4)
        a(f'v_mov_b32 {vr(t)}, {vr(24 + p)}')
        bstore(t, 2, 21, WS, soff=sA, mods='sc1')
        if p < 31:
            a(f's_add_u32 {sA}, {sA}, 16384')
    stamp('r_pub')


def phase_a():
    lk = 'L_roleK'; l56 = 'L_role56'; l7 = 'L_role7'; lj = 'L_A_join'
    stamp('entry')
    a(f's_cmp_lt_u32 {sWV}, 4')
    a(f's_cbranch_scc1 {lk}')
    a('s_setprio 2')
    a(f's_cmp_eq_u32 {sWV}, 7')
    a(f's_cbranch_scc1 {l7}')
    a(f's_cmp_ge_u32 {sWV}, 5')
    a(f's_cbranch_scc1 {l56}')
    role_stats()
    a(f's_branch {lj}')
    a.label(l56)
    role_mod()
    a(f's_branch {lj}')
    a.label(l7)
    role_xt()
    a(f's_branch {lj}')
    a.label(lk)
    role_k()
    a.label(lj)
    a('s_setprio 0')
    for k in range(4):
        a(f'v_mov_b32 {vr(24 + k)}, 0')
    a('v_lshrrev_b32 v21, 5, v0')
    a(f'v_mul_u32_u24 v21, {H_CH}, v21')
    a('v_and_b32 v22, 31, v0')
    a('v_lshl_add_u32 v21, v22, 4, v21')
    a(f'v_add_u32 v21, {L_H}, v21')
    a('v_subrev_u32 v22, 64, v0')
    a('v_lshrrev_b32 v23, 1, v22')
    a(f'v_mul_u32_u24 v23, {CP_R}, v23')
    a('v_and_b32 v22, 1, v0')
    a('v_lshl_add_u32 v23, v22, 4, v23')
    a(f'v_add_u32 v23, {L_COPY}, v23')
    a('v_cmp_gt_u32 vcc, 64, v0')
    a('v_cndmask_b32 v21, v23, v21, vcc')
    a(f'v_mul_u32_u24 v22, {KT_CH}, v22')
    a(f'v_add_u32 v22, {L_KT + 2 * KT_ZERO}, v22')
    lz = a.newlabel('L_z')
    a(f's_cmp_ge_u32 {sWV}, 2')
    a(f's_cbranch_scc1 {lz}')
    a('v_cmp_gt_u32 vcc, 80, v0')
    a(f's_and_saveexec_b64 s[{sX0}:{sX0 + 1}], vcc')
    a('ds_write_b128 v21, v[24:27]')
    a('ds_write_b16 v22, v24')
    restore_exec()
    a.label(lz)
    a('s_waitcnt lgkmcnt(0)')
    stamp('role_done')
    a('s_barrier')
    stamp('B1')
    lsk = a.newlabel('L_kmf')
    a(f's_cmp_ge_u32 {sWV}, 6')
    a(f's_cbranch_scc1 {lsk}')
    for ks in range(8):
        a(f'ds_read_b128 {vr(24 + 8 * ks, 4)}, {vr(KMA)} offset:{64 * ks}')
        a(f'ds_read_b128 {vr(28 + 8 * ks, 4)}, {vr(KMB)} offset:{64 * ks}')
    for ks in range(8):
        a(f's_waitcnt lgkmcnt({14 - 2 * ks})')
        acc = 88 + 4 * (ks & 1)
        mfma(acc, 24 + 8 * ks, 28 + 8 * ks, None if ks < 2 else acc)
    for k in range(4):
        a(f'v_add_f32 {vr(88 + k)}, {vr(88 + k)}, {vr(92 + k)}')
    a('v_cvt_pk_bf16_f32 v96, v88, v89')
    a('v_cvt_pk_bf16_f32 v97, v90, v91')
    a(f'ds_write_b16 {vr(KMD)}, v96')
    a(f'ds_write_b16_d16_hi {vr(KMD + 1)}, v96')
    a(f'ds_write_b16 {vr(KMD + 2)}, v97')
    a(f'ds_write_b16_d16_hi {vr(KMD + 3)}, v97')
    a('s_waitcnt lgkmcnt(0)')
    a.label(lsk)
    a('s_barrier')
    stamp('B2')
    for d in range(1, 12):
        a(f'ds_read_u16 {vr(24 + d)}, {vr(EXA + d)}')
    a(f's_lshr_b32 {sA}, {sWV}, 2')
    a(f's_mul_i32 {sA}, {sA}, {CP_CH}')
    a(f's_add_u32 {sA}, {sA}, {L_COPY + 32}')
    a('v_and_b32 v22, 255, v0')
    a(f'v_lshl_add_u32 v21, v22, 4, {sA}')
    a('s_waitcnt lgkmcnt(0)')
    for r in range(4):
        d = 36 + 4 * r
        for p in range(4):
            a(f'v_lshl_or_b32 {vr(d + p)}, {vr(24 + 5 + 2 * p - r)}, 16, {vr(24 + 4 + 2 * p - r)}')
        a(f'ds_write_b128 v21, {vr(d, 4)} offset:{r * CP_R}')
    if os.environ.get('SWZEARLY'):
        lsw = a.newlabel('L_swzfin')
        a(f's_cmp_ge_u32 {sWV}, 4')
        a(f's_cbranch_scc1 {lsw}')
        a('s_waitcnt vmcnt(0)')
        swz_finish()
        a.label(lsw)
    stamp('expanded')


def spin_guard(label_retry):
    a(f's_add_u32 {sSPIN}, {sSPIN}, 1')
    a(f's_cmp_lt_u32 {sSPIN}, {SPIN_MAX}')
    a(f's_cbranch_scc1 {label_retry}')


def tags_check(tags, lo, hi):
    a(f'v_min3_u32 {vr(lo)}, {vr(tags[0])}, {vr(tags[1])}, {vr(tags[2])}')
    a(f'v_max3_u32 {vr(hi)}, {vr(tags[0])}, {vr(tags[1])}, {vr(tags[2])}')
    k = 3
    while k < len(tags):
        t2 = tags[k + 1] if k + 1 < len(tags) else tags[k]
        a(f'v_min3_u32 {vr(lo)}, {vr(lo)}, {vr(tags[k])}, {vr(t2)}')
        a(f'v_max3_u32 {vr(hi)}, {vr(hi)}, {vr(tags[k])}, {vr(t2)}')
        k += 2
    a(f'v_cmp_ne_u32 vcc, {sT}, {vr(lo)}')
    a(f'v_cmp_ne_u32 s[{sX0}:{sX0 + 1}], {sT}, {vr(hi)}')
    a('s_nop 0')
    a(f's_or_b64 vcc, vcc, s[{sX0}:{sX0 + 1}]')


def phase_b():
    a('v_mov_b32 v21, v9')
    a('v_mov_b32 v22, v10')
    a(f's_mov_b32 {sB}, {WS_STATS}')
    a('v_lshrrev_b32 v20, 1, v21')
    a(f's_lshl_b32 {sD}, {sX}, 5'); a(f's_add_u32 {sD}, {sD}, {sJ}'); a(f's_lshl_b32 {sD}, {sD}, 14')
    a(f's_add_u32 {sD}, {sD}, {WS_XT}')
    if not NOSCOUT:
        lsk = a.newlabel('L_scoutskip'); lsp = a.newlabel('L_scout'); lso = a.newlabel('L_scoutok')
        a(f's_cmp_lg_u32 {sWV}, 0')
        a(f's_cbranch_scc1 {lsk}')
        a('v_lshlrev_b32 v24, 7, v1')
        a('v_and_b32 v25, 31, v1')
        a('v_lshlrev_b32 v25, 9, v25')
        a(f's_mov_b32 {sSPIN}, 0')
        a.label(lsp)
        for i in range(4):
            a(f's_mov_b32 {sC}, {WS_STATS + 8192 * i}')
            bload(28 + i, 1, 24, WS, imm=4, soff=sC, mods='sc1')
        bload(32, 1, 25, WS, imm=4, soff=sD, mods='sc1')
        a(f's_mov_b32 {sC}, {WS_MODG}')
        bload(33, 1, 22, WS, imm=4, soff=sC, mods='sc1')
        a('s_waitcnt vmcnt(0)')
        tags_check([28, 29, 30, 31, 32, 33], 34, 35)
        a(f's_cbranch_vccz {lso}')
        spin_guard(lsp)
        a.label(lso)
        a.label(lsk)
        a('s_barrier')
        stamp('scout')
    a(f's_mov_b32 {sSPIN}, 0')
    lp = 'L_S1_poll'; lok = 'L_S1_ok'
    a.label(lp)
    for i in range(4):
        bload(44 + 4 * i, 4, 21, WS, imm=1024 * i, soff=sB, mods='sc1')
        bload(88 + 2 * i, 2, 20, WS, imm=512 * i, soff=sD, mods='sc1')
    a(f's_mov_b32 {sC}, {WS_MODG}')
    bload(60, 2, 22, WS, soff=sC, mods='sc1')
    a('s_waitcnt vmcnt(0)')
    tags = [45, 47, 49, 51, 53, 55, 57, 59, 61, 89, 91, 93, 95]
    if 'noxt' in XP: tags = [45, 47, 49, 51, 53, 55, 57, 59, 61]
    if 'nomod' in XP: tags = [45, 47, 49, 51, 53, 55, 57, 59, 89, 91, 93, 95]
    if 'nostat' in XP: tags = [61, 89, 91, 93, 95]
    tags_check(tags, 84, 85)
    a(f's_cbranch_vccz {lok}')
    spin_guard(lp)
    a.label(lok)
    stamp('S1ok')
    if os.environ.get('SWZLATE'):
        lsw = a.newlabel('L_swzdma')
        a(f's_cmp_ge_u32 {sWV}, 4')
        a(f's_cbranch_scc1 {lsw}')
        a('v_mov_b32 v14, v102')
        swz_dma()
        a.label(lsw)
    a('v_lshrrev_b32 v23, 2, v21')
    a(f'v_add_u32 v23, {L_XC}, v23')
    for i in range(4):
        a(f'ds_write_b32 v23, {vr(88 + 2 * i)} offset:{256 * i}')
    a('v_add_f32_dpp v60, v60, v60 quad_perm:[1,0,3,2] row_mask:0xf bank_mask:0xf')
    a('v_add_f32_dpp v60, v60, v60 quad_perm:[2,3,0,1] row_mask:0xf bank_mask:0xf')
    a('v_add_f32_dpp v60, v60, v60 row_half_mirror row_mask:0xf bank_mask:0xf')
    for i, dst in enumerate((60, 62, 64, 66, 68, 70)):
        a(f'v_readlane_b32 s{64 + i}, v60, {8 * i}')
    for i, dst in enumerate((60, 62, 64, 66, 68, 70)):
        a(f'v_mov_b32 {vr(dst)}, s{64 + i}')
    a('v_add_f32 v64, 1.0, v64'); a('v_add_f32 v66, 1.0, v66')
    a(f's_lshr_b32 {sHI}, {sWV}, 2'); a(f's_and_b32 {sLO}, {sWV}, 3')
    a(f's_lshl_b32 {sA}, {sCH0}, 1')
    a(f'v_mov_b32 v77, {sA}')
    bload(76, 1, 77, DSK)
    for i in range(4):
        r, mr = 44 + 4 * i, 46 + 4 * i
        a(f'v_lshlrev_b32 v80, 16, {vr(88 + 2 * i)}')
        a(f'v_and_b32 v81, 0xffff0000, {vr(88 + 2 * i)}')
        a(f'v_fma_f32 v80, v80, {vr(r)}, -{vr(mr)}')
        a(f'v_fma_f32 v81, v81, {vr(r)}, -{vr(mr)}')
        a('v_fma_f32 v80, v80, v64, v60')
        a('v_fma_f32 v81, v81, v66, v62')
        a(f'v_cvt_pk_bf16_f32 {vr(96 + i)}, v80, v81')
    a('v_lshrrev_b32 v23, 3, v21')
    a(f'v_add_u32 v23, {L_H + 512}, v23')
    for i in range(4):
        a(f'ds_write_b16 v23, {vr(96 + i)} offset:{128 * i}')
        a(f'ds_write_b16_d16_hi v23, {vr(96 + i)} offset:{H_CH + 128 * i}')
    mod_final_issue()
    if not os.environ.get('SWZEARLY') and not os.environ.get('SWZLATE'):
        lsw = a.newlabel('L_swzfin')
        a(f's_cmp_ge_u32 {sWV}, 4')
        a(f's_cbranch_scc1 {lsw}')
        swz_finish()
        a.label(lsw)
    a('s_waitcnt lgkmcnt(0)')
    a('s_barrier')
    stamp('B3')
    conv_touches()
    BF = 96; AF = 160; ACC = 224

    def ldA(i):
        r = AF + 4 * i
        a(f'ds_read_b64_tr_b16 {vr(r, 2)}, v7 offset:{256 * i + 8}')
        a(f'ds_read_b64_tr_b16 {vr(r + 2, 2)}, v7 offset:{256 * i}')

    def ldB(u):
        a(f'ds_read_b128 {vr(BF + 4 * u, 4)}, v6 offset:{256 * u}')
    seq = ['A0', 'B1', 'B3', 'B5', 'B7', 'B9', 'B11', 'B13', 'B15', 'A1', 'B0', 'B2', 'B4', 'B6', 'B8', 'B10', 'B12', 'B14'] + \
          [f'A{i}' for i in range(2, 16)]
    pos = {}
    n = 0
    for s_ in seq:
        n += 2 if s_[0] == 'A' else 1
        pos[s_] = n
    total = n
    issued = 0
    it = iter(seq)

    def issue_until(cnt):
        nonlocal issued
        while issued < min(cnt, total):
            s_ = next(it)
            if s_[0] == 'A':
                ldA(int(s_[1:])); issued += 2
            else:
                ldB(int(s_[1:])); issued += 1
    writes = 0
    issue_until(12)
    order = []
    stream = []
    q = []
    for s_ in seq:
        q += [s_] * (2 if s_[0] == 'A' else 1)
    ops = list(q[:issued])
    for i in range(16):
        nmin = i // 2 if i >= 1 else 0
        for nn in range(nmin, 8):
            u = 2 * nn - i + 1
            needs = [f'A{i}', f'B{u}']
            last_needed = max(idx for idx, o in enumerate(q) if o in needs)
            tgt = max(last_needed + 1, min(total, len([o for o in ops if o != 'W']) + 2))
            while len([o for o in ops if o != 'W']) < tgt:
                before = issued
                issue_until(issued + 1)
                ops += q[before:issued]
            lastidx = max(idx for idx, o in enumerate(ops) if o in needs)
            pend = len(ops) - 1 - lastidx
            key = ('wait', pend)
            if not hasattr(phase_b, 'done') or True:
                done_upto = getattr(phase_b, 'done_upto', -1)
                if lastidx > done_upto:
                    a(f's_waitcnt lgkmcnt({min(pend, 15)})')
                    phase_b.done_upto = lastidx if pend <= 15 else len(ops) - 1 - 15
            mfma(ACC + 4 * nn, AF + 4 * i, BF + 4 * u, None if i == 0 else ACC + 4 * nn)
        if os.environ.get('SWZLATE') and i == int(os.environ['SWZLATE']):
            lsw = a.newlabel('L_swzfin')
            a(f's_cmp_ge_u32 {sWV}, 4')
            a(f's_cbranch_scc1 {lsw}')
            a('s_waitcnt vmcnt(0)')
            swz_finish()
            a.label(lsw)
        if i >= 3 and i % 2 == 1:
            nn = (i - 1) // 2 - 1
            a(f'ds_write_b128 v8, {vr(ACC + 4 * nn, 4)} offset:{1024 * nn}')
            ops.append('W')
    a(f'ds_write_b128 v8, {vr(ACC + 28, 4)} offset:{1024 * 7}')
    mod_final_finish()
    a('s_waitcnt lgkmcnt(0)')
    a('s_barrier')
    stamp('B4')

    a(f's_lshl_b32 {sA}, {sWV}, 10')
    a(f'v_add_u32 v23, {sA}, {vr(vL16)}')
    for c in range(2):
        for qq in range(4):
            a(f'ds_read_b128 {vr(96 + 16 * c + 4 * qq, 4)}, v23 offset:{32768 * c + 8192 * qq}')
    a('ds_read_b128 v[128:131], v11')
    a('ds_read_b64 v[136:137], v12')
    a(f'ds_read_b64 v[138:139], v12 offset:{H_CH}')
    a(f's_lshl_b32 {sA}, {sWV}, 18')
    a(f's_lshl_b32 {sB}, {sCH0}, 6')
    a(f's_add_u32 {sA}, {sA}, {sB}')
    a(f's_add_u32 {sE}, {sA}, {WS_X2B}')
    a('s_waitcnt vmcnt(0)')
    a('v_lshlrev_b32 v77, 16, v76')
    a('v_and_b32 v76, 0xffff0000, v76')
    a('s_waitcnt lgkmcnt(0)')
    for c in range(2):
        y = 96 + 16 * c
        for k in range(0, 4, 2):
            a(f'v_pk_add_f32 {vr(y + k, 2)}, {vr(y + k, 2)}, {vr(y + 4 + k, 2)}')
            a(f'v_pk_add_f32 {vr(y + 8 + k, 2)}, {vr(y + 8 + k, 2)}, {vr(y + 12 + k, 2)}')
            a(f'v_pk_add_f32 {vr(y + k, 2)}, {vr(y + k, 2)}, {vr(y + 8 + k, 2)}')
        dsk = 77 if c == 0 else 76
        ga = 68 if c == 0 else 70
        for k in range(4):
            hreg = 136 + 2 * c + (k >> 1)
            if k & 1:
                a(f'v_and_b32 v26, 0xffff0000, {vr(hreg)}')
            else:
                a(f'v_lshlrev_b32 v26, 16, {vr(hreg)}')
            a(f'v_fma_f32 {vr(y + k)}, v26, {vr(dsk)}, {vr(y + k)}')
            if c == 0:
                a(f'v_lshlrev_b32 v27, 16, {vr(128 + k)}')
            else:
                a(f'v_and_b32 v27, 0xffff0000, {vr(128 + k)}')
            a(f'v_fma_f32 {vr(y + k)}, {vr(ga)}, {vr(y + k)}, v27')
        a(f'v_cvt_pk_bf16_f32 {vr(28 + 2 * c)}, {vr(y)}, {vr(y + 1)}')
        a(f'v_cvt_pk_bf16_f32 {vr(29 + 2 * c)}, {vr(y + 2)}, {vr(y + 3)}')
    a('v_permlane16_swap_b32 v28, v30')
    a('v_permlane16_swap_b32 v29, v31')
    bstore(28, 4, 13, WS, soff=sE, mods='sc1')
    a('s_waitcnt vmcnt(0)')
    stamp('x2stored')
    a('s_barrier')
    set_flag(WS_F2, 's2')


def mod_final_issue():
    ls = a.newlabel('L_modf')
    a(f's_cmp_lg_u32 {sWV}, 7')
    a(f's_cbranch_scc1 {ls}')
    a('v_lshrrev_b32 v14, 3, v1')
    a(f's_mul_i32 {sA}, s2, 12')
    a(f'v_add_u32 v14, {sA}, v14')
    a('v_and_b32 v15, 7, v1')
    a('v_mul_u32_u24 v15, 3072, v15')
    a('v_add_u32 v15, v15, v14')
    a('v_lshlrev_b32 v24, 3, v15')
    a('v_lshrrev_b32 v14, 3, v1')
    a('v_and_b32 v15, 3, v14')
    a('v_sub_u32 v14, v15, v14')
    a('v_add_u32 v14, 8, v14')
    a('v_lshl_add_u32 v25, v14, 3, v24')
    a(f's_mov_b32 {sC}, {WS_MODG}')
    bload(26, 2, 24, WS, soff=sC, mods='sc1')
    bload(28, 2, 25, WS, soff=sC, mods='sc1')
    a.label(ls)


def mod_final_finish():
    ls = a.newlabel('L_modf'); lp = a.newlabel('L_modp'); lok = a.newlabel('L_modok')
    a(f's_cmp_lg_u32 {sWV}, 7')
    a(f's_cbranch_scc1 {ls}')
    a('s_waitcnt vmcnt(0)')
    tags_check([27, 29, 29], 30, 31)
    a(f's_cbranch_vccz {lok}')
    a(f's_mov_b32 {sSPIN}, 0')
    a.label(lp)
    a(f's_mov_b32 {sC}, {WS_MODG}')
    bload(26, 2, 24, WS, soff=sC, mods='sc1')
    bload(28, 2, 25, WS, soff=sC, mods='sc1')
    a('s_waitcnt vmcnt(0)')
    tags_check([27, 29, 29], 30, 31)
    a(f's_cbranch_vccz {lok}')
    spin_guard(lp)
    a.label(lok)
    for r in (26, 28):
        a(f'v_add_f32_dpp {vr(r)}, {vr(r)}, {vr(r)} quad_perm:[1,0,3,2] row_mask:0xf bank_mask:0xf')
        a(f'v_add_f32_dpp {vr(r)}, {vr(r)}, {vr(r)} quad_perm:[2,3,0,1] row_mask:0xf bank_mask:0xf')
        a(f'v_add_f32_dpp {vr(r)}, {vr(r)}, {vr(r)} row_half_mirror row_mask:0xf bank_mask:0xf')
    a('v_lshrrev_b32 v14, 3, v1')
    a('v_lshlrev_b32 v14, 2, v14')
    a(f's_mul_i32 {sA}, s2, 48')
    a(f's_add_u32 {sA}, {sA}, {WS_MODF}')
    save_exec_mask(0x0101010101010101)
    bstore(26, 1, 14, WS, soff=sA, mods='sc1')
    a('s_mov_b32 exec_hi, 0')
    bstore(28, 1, 14, WS, imm=32, soff=sA, mods='sc1')
    restore_exec()
    a.label(ls)


def wfrags(dst, base, n, nt_sgpr=None, stride=16, first=0):
    if nt_sgpr is None:
        a(f's_lshl_b32 {sA}, {sCQ}, 3')
        a(f's_add_u32 {sA}, {sA}, {sWV}')
    else:
        a(f's_mov_b32 {sA}, {nt_sgpr}')
    a(f's_mul_i32 {sA}, {sA}, {stride * 1024}')
    a(f's_add_u32 {sA}, {sA}, {base + first * 1024}')
    for k in range(n):
        if k and k % 4 == 0:
            a(f's_add_u32 {sA}, {sA}, 4096')
        bload(dst + 4 * k, 4, vL16, WS, imm=(k % 4) * 1024, soff=sA, mods='sc1')


def wfrag_base(sreg, base, nt_sgpr=None, stride=16, first=0):
    if nt_sgpr is None:
        a(f's_lshl_b32 {sreg}, {sCQ}, 3')
        a(f's_add_u32 {sreg}, {sreg}, {sWV}')
    else:
        a(f's_mov_b32 {sreg}, {nt_sgpr}')
    a(f's_mul_i32 {sreg}, {sreg}, {stride * 1024}')
    a(f's_add_u32 {sreg}, {sreg}, {base + first * 1024}')


def wfrag_one(dst, sreg, k):
    if k and k % 4 == 0:
        a(f's_add_u32 {sreg}, {sreg}, 4096')
    bload(dst + 4 * k, 4, vL16, WS, imm=(k % 4) * 1024, soff=sreg, mods='sc1')


def not_poller(fn):
    l = a.newlabel('L_np')
    a(f's_cmp_eq_u32 {sWV}, 7')
    a(f's_cbranch_scc1 {l}')
    fn()
    a.label(l)


def only_poller(fn):
    l = a.newlabel('L_op')
    a(f's_cmp_lg_u32 {sWV}, 7')
    a(f's_cbranch_scc1 {l}')
    fn()
    a.label(l)


def pretouch(which, dst=31):
    if NOFAST or os.environ.get('NOTOUCH'):
        return
    a('v_lshrrev_b32 v14, 2, v1')
    a('v_and_b32 v15, 3, v1')
    a('v_lshlrev_b32 v15, 7, v15')
    if which in ('h1', 'x1'):
        if which == 'h1':
            a('v_mul_u32_u24 v14, 768, v14')
            a('v_add_u32 v14, v14, v15')
            a(f's_mul_i32 {sA}, {sT32}, 49152'); a(f's_mul_i32 {sB}, {sCQ}, {16 * 768}'); a(f's_add_u32 {sA}, {sA}, {sB}')
            a(f's_add_u32 {sA}, {sA}, {WS_H1 + 128}')
        else:
            a('v_lshl_add_u32 v14, v14, 9, v15')
            a(f's_lshl_b32 {sA}, {sT32}, 15'); a(f's_lshl_b32 {sC}, {sCQ}, 13'); a(f's_add_u32 {sA}, {sA}, {sC}')
            a(f's_add_u32 {sA}, {sA}, {WS_X1}')
        bload(dst, 1, 14, WS, soff=sA)
        return
    else:
        a('v_lshl_add_u32 v14, v14, 9, v15')
        a(f's_sub_u32 {sA}, {sNT3}, {sWV}')
        a(f's_lshl_b32 {sA}, {sA}, 10')
        a(f's_lshl_b32 {sB}, {sRB}, 1'); a(f's_lshr_b32 {sC}, {sWV}, 1'); a(f's_add_u32 {sB}, {sB}, {sC}')
        a(f's_mul_i32 {sB}, {sB}, {86 * 1024}'); a(f's_add_u32 {sA}, {sA}, {sB}')
        a(f's_and_b32 {sB}, {sWV}, 1'); a(f's_lshl_b32 {sC}, {sB}, 13'); a(f's_add_u32 {sA}, {sA}, {sC}')
        a(f's_add_u32 {sA}, {sA}, {WS_H3}')
        a(f's_movk_i32 {sC}, {63 * 128}')
        a(f's_cmp_eq_u32 {sB}, 1')
        a(f's_cselect_b32 {sB}, {23 * 128}, {sC}')
        a(f'v_min_u32 v14, {sB}, v14')
        a(f's_cmp_lt_u32 {sWV}, 4')
    a('s_cselect_b64 exec, -1, 0')
    bload(dst, 1, 14, WS, soff=sA)
    a('s_mov_b64 exec, -1')


def conv_touches():
    if os.environ.get('NOCT'):
        return
    a('v_lshlrev_b32 v14, 7, v1')
    a(f's_sub_u32 {sC}, {sWV}, 5')
    a(f's_lshl_b32 {sA}, {sJ}, 14'); a(f's_lshl_b32 {sB}, {sC}, 13'); a(f's_add_u32 {sA}, {sA}, {sB}')
    a(f's_cmp_lt_u32 {sC}, 2')
    a('s_cselect_b64 exec, -1, 0')
    bload(15, 1, 14, W1, soff=sA)
    a('s_mov_b64 exec, -1')


def wtouch(kind, dst):
    if os.environ.get('NOWT'):
        return
    a('v_lshlrev_b32 v14, 7, v1')
    a(f's_mul_i32 {sA}, {sJ}, {43 * 1024}')
    a(f's_sub_u32 {sB}, {sWV}, 2'); a(f's_lshl_b32 {sB}, {sB}, 13'); a(f's_add_u32 {sA}, {sA}, {sB}')
    if kind == 'w23':
        a(f's_add_u32 {sA}, {sA}, {WS_W3S}')
        a(f's_lshl_b32 {sB}, {sJ}, 14'); a(f's_lshl_b32 {sC}, {sWV}, 13'); a(f's_add_u32 {sB}, {sB}, {sC}')
        a(f's_add_u32 {sB}, {sB}, {WS_W2S}')
        a(f's_cmp_lt_u32 {sWV}, 2')
        a(f's_cselect_b32 {sA}, {sB}, {sA}')
        bload(dst, 1, 14, WS, soff=sA)
    else:
        a(f's_add_u32 {sA}, {sA}, {WS_W4S}')
        a(f's_cmp_ge_u32 {sWV}, 2')
        a('s_cselect_b64 exec, -1, 0')
        bload(dst, 1, 14, WS, soff=sA)
        a('s_mov_b64 exec, -1')


def set_flag(off, idx_sgpr, cluster=False):
    a(f's_lshl_b32 {sA}, {idx_sgpr}, 6')
    a(f's_add_u32 {sA}, {sA}, {off}')
    a(f'v_mov_b32 v14, {sT}')
    a('v_mov_b32 v15, 0')
    a(f's_cmp_eq_u32 {sWV}, 0')
    if cluster and not NOFAST:
        a(f's_cselect_b64 s[{sX0}:{sX0 + 1}], 1, 0')
        a(f's_and_b64 exec, s[{sX0}:{sX0 + 1}], s[{mFA}:{mFA + 1}]')
        bstore(14, 1, 15, WS, soff=sA)
        a(f's_and_b64 exec, s[{sX0}:{sX0 + 1}], s[{mSL}:{mSL + 1}]')
        bstore(14, 1, 15, WS, soff=sA, mods='sc1')
    else:
        a('s_cselect_b64 exec, 1, 0')
        bstore(14, 1, 15, WS, soff=sA, mods='sc1')
    a('s_mov_b64 exec, -1')


PV = 116


def poll(off, kind):
    lf = a.newlabel('L_pollskip'); lp = a.newlabel('L_poll'); lok = a.newlabel('L_pollok')
    a(f's_cmp_lg_u32 {sWV}, 7')
    a(f's_cbranch_scc1 {lf}')
    if kind == 'all':
        a(f'v_lshlrev_b32 {vr(PV)}, 6, v1')
    elif kind == 'own':
        a(f'v_and_b32 {vr(PV)}, 7, v1')
        a(f's_lshl_b32 {sA}, {sRB}, 3')
        a(f'v_add_u32 {vr(PV)}, {sA}, {vr(PV)}')
        a(f'v_lshlrev_b32 {vr(PV)}, 6, {vr(PV)}')
    else:
        a(f'v_min_u32 {vr(PV)}, 11, v1')
        a(f's_lshl_b32 {sA}, {sT32}, 2')
        a(f's_sub_u32 {sB}, {sA}, 4')
        a(f'v_add_u32 {vr(PV)}, {sB}, {vr(PV)}')
        a(f'v_cmp_gt_u32 vcc, 256, {vr(PV)}')
        a(f'v_mov_b32 {vr(PV + 1)}, {sA}')
        a(f'v_cndmask_b32 {vr(PV)}, {vr(PV + 1)}, {vr(PV)}, vcc')
        a(f'v_lshlrev_b32 {vr(PV)}, 6, {vr(PV)}')
    a(f's_mov_b32 {sSPIN}, 0')
    a.label(lp)
    if kind == 'all':
        for i in range(4):
            a(f's_mov_b32 {sB}, {off + 4096 * i}')
            bload(PV + 2 + i, 1, PV, WS, soff=sB, mods='sc1')
        a('s_waitcnt vmcnt(0)')
        tags_check([PV + 2, PV + 3, PV + 4, PV + 5], PV + 6, PV + 7)
    else:
        a(f's_mov_b32 {sB}, {off}')
        bload(PV + 2, 1, PV, WS, soff=sB, mods='sc1')
        a('s_waitcnt vmcnt(0)')
        a(f'v_cmp_ne_u32 vcc, {sT}, {vr(PV + 2)}')
        a('s_nop 0')
    a(f's_cbranch_vccz {lok}')
    spin_guard(lp)
    a.label(lok)
    a.label(lf)
    a('s_barrier')


def lane_masks():
    a('v_and_b32 v15, 3, v2')
    a(f'v_cmp_eq_u32 s[{mK1}:{mK1 + 1}], 1, v15')
    a(f'v_cmp_eq_u32 s[{mK2}:{mK2 + 1}], 2, v15')
    a(f'v_cmp_eq_u32 s[{mK3}:{mK3 + 1}], 3, v15')
    a('v_lshrrev_b32 v14, 2, v2')
    a(f'v_cmp_eq_u32 s[{mDG}:{mDG + 1}], v14, v3')


def stats_publish(addr, S, Q, t0):
    a(f'v_cndmask_b32 {vr(t0 + 1)}, {vr(Q)}, {vr(Q + 1)}, s[{mK1}:{mK1 + 1}]')
    a(f'v_mov_b32 {vr(t0)}, {vr(S)}')
    a(f'v_cndmask_b32 {vr(t0 + 1)}, {vr(t0 + 1)}, {vr(Q + 2)}, s[{mK2}:{mK2 + 1}]')
    a(f'v_cndmask_b32 {vr(t0 + 1)}, {vr(t0 + 1)}, {vr(Q + 3)}, s[{mK3}:{mK3 + 1}]')
    save_exec_mask(f's[{mDG}:{mDG + 1}]')
    a(f'ds_write_b64 {vr(addr)}, {vr(t0, 2)}')
    restore_exec()


def stats_finish(S, Q, m, r):
    a(f'v_mul_f32 {vr(m)}, {fconst(1.0 / 512)}, {vr(S)}')
    a(f'v_mul_f32 {vr(r)}, {fconst(1.0 / 512)}, {vr(Q)}')
    a(f'v_fma_f32 {vr(r)}, -{vr(m)}, {vr(m)}, {vr(r)}')
    a(f'v_max_f32 {vr(r)}, 0, {vr(r)}')
    a(f'v_add_f32 {vr(r)}, {fconst(1e-5)}, {vr(r)}')
    a(f'v_rsq_f32 {vr(r)}, {vr(r)}')


GC0 = -2.0 * 1.4426950408889634 * 0.7978845608028654
GC1 = GC0 * 0.044715


def gelu_consts(gk):
    for r, c in ((gk, GC0), (gk + 2, GC1), (gk + 4, 1.0)):
        a(f'v_mov_b32 {vr(r)}, {fconst(c)}')


def gelu(regs, tmp, gk):
    n = len(regs)
    for i in range(0, n, 2):
        x = regs[i]
        t = tmp + 2 * ((i // 2) & 1)
        a(f'v_pk_mul_f32 {vr(t, 2)}, {vr(x, 2)}, {vr(x, 2)}')
        a(f'v_pk_fma_f32 {vr(t, 2)}, {vr(t, 2)}, {vr(gk + 2, 2)}, {vr(gk, 2)} op_sel_hi:[1,0,0]')
        a(f'v_pk_mul_f32 {vr(t, 2)}, {vr(t, 2)}, {vr(x, 2)}')
        a(f'v_exp_f32 {vr(t)}, {vr(t)}')
        a(f'v_exp_f32 {vr(t + 1)}, {vr(t + 1)}')
        a(f'v_pk_add_f32 {vr(t, 2)}, {vr(t, 2)}, {vr(gk + 4, 2)} op_sel_hi:[1,0]')
        a(f'v_rcp_f32 {vr(t)}, {vr(t)}')
        a(f'v_rcp_f32 {vr(t + 1)}, {vr(t + 1)}')
        a(f'v_pk_mul_f32 {vr(x, 2)}, {vr(x, 2)}, {vr(t, 2)}')


def ln_apply(acc, cs, m, r, tmp):
    for k in (0, 2):
        a(f'v_pk_fma_f32 {vr(acc + k, 2)}, {vr(cs + k, 2)}, {vr(m, 2)}, {vr(acc + k, 2)} op_sel_hi:[1,0,1] neg_lo:[0,1,0] neg_hi:[0,1,0]')
        a(f'v_pk_mul_f32 {vr(acc + k, 2)}, {vr(acc + k, 2)}, {vr(r, 2)} op_sel_hi:[1,0]')


def pack_swap(dst, t0, t1):
    a(f'v_cvt_pk_bf16_f32 {vr(dst)}, {vr(t0)}, {vr(t0 + 1)}')
    a(f'v_cvt_pk_bf16_f32 {vr(dst + 2)}, {vr(t1)}, {vr(t1 + 1)}')
    a(f'v_cvt_pk_bf16_f32 {vr(dst + 1)}, {vr(t0 + 2)}, {vr(t0 + 3)}')
    a(f'v_cvt_pk_bf16_f32 {vr(dst + 3)}, {vr(t1 + 2)}, {vr(t1 + 3)}')
    a(f'v_permlane16_swap_b32 {vr(dst)}, {vr(dst + 2)}')
    a(f'v_permlane16_swap_b32 {vr(dst + 1)}, {vr(dst + 3)}')


ONES = 16
CS1 = 20


H1A, H1B = 12, 13
mZH = 70


def h1_addresses():
    a('v_lshrrev_b32 v14, 5, v1')
    a('v_mul_u32_u24 v14, 768, v14')
    a('v_and_b32 v15, 31, v1')
    a('v_lshl_add_u32 v14, v15, 4, v14')
    a(f's_mul_i32 {sA}, {sT32}, {64 * 768}')
    a(f's_lshl_b32 {sB}, {sCQ}, 3'); a(f's_add_u32 {sB}, {sB}, {sWV}'); a(f's_mul_i32 {sB}, {sB}, {2 * 768}')
    a(f's_add_u32 {sA}, {sA}, {sB}')
    a(f's_add_u32 {sA}, {sA}, {WS_H1 + 128}')
    a(f'v_add_u32 {vr(H1A)}, {sA}, v14')
    a(f's_cmp_eq_u32 {sT32}, 0')
    a(f's_cselect_b32 {sA}, {(-32) & 0xffffffff}, {(-(49152 - 512)) & 0xffffffff}') if False else None
    a(f's_mov_b32 {sA}, {hex((-(49152 - 512)) & 0xffffffff)}')
    a(f's_cmp_eq_u32 {sT32}, 0')
    a(f's_cselect_b32 {sA}, -32, {sA}')
    a(f's_cselect_b32 s{mZH}, 3, 0')
    a(f's_mov_b32 {sB}, {49152 - 512}')
    a(f's_cmp_eq_u32 {sT32}, 63')
    a(f's_cselect_b32 {sB}, 32, {sB}')
    a(f's_cselect_b32 s{mZH}, 0xc0000000, s{mZH}')
    a(f's_mov_b32 s{mZH + 1}, s{mZH}')
    a('v_cmp_gt_u32 vcc, 2, v15')
    a(f'v_mov_b32 v14, {sB}')
    a(f'v_mov_b32 v15, {sA}')
    a('v_cndmask_b32 v14, v14, v15, vcc')
    a(f'v_add_u32 {vr(H1B)}, {vr(H1A)}, v14')
    a('v_mov_b32 v31, 0')


def phase3():
    W1R, W2R = 128, 192
    W1o = W1
    lane_masks()
    for k in range(4):
        a(f'v_mov_b32 {vr(ONES + k)}, 0x3f803f80')
    a(f's_and_b32 {sLO}, {sWV}, 1')
    a(f's_lshr_b32 {sHI}, {sWV}, 1')
    a('v_lshrrev_b32 v24, 5, v1')
    a('v_lshlrev_b32 v24, 5, v24')
    a(f'v_xor_b32 v24, v24, {vr(vL16)}')
    a('v_lshrrev_b32 v14, 2, v2')
    a('v_lshl_add_u32 v25, v3, 3, v14')
    a('v_lshlrev_b32 v25, 6, v25')
    a('v_and_b32 v14, 3, v2')
    a('v_lshl_add_u32 v25, v14, 3, v25')
    a('v_and_b32 v14, 1, v3')
    a(f'v_xor_b32 v14, {sLO}, v14')
    a('v_lshl_add_u32 v25, v14, 5, v25')
    a(f's_lshl_b32 {sA}, {sHI}, 13')
    a(f'v_add_u32 v25, {sA}, v25')
    a(f's_lshl_b32 {sA}, {sHI}, 9')
    a(f's_add_u32 {sA}, {sA}, {L_CB}')
    a(f'v_lshl_add_u32 v26, v3, 5, {sA}')
    a(f's_lshl_b32 {sA}, {sWV}, 7')
    a(f's_add_u32 {sA}, {sA}, {L_ST}')
    a(f'v_lshl_add_u32 v27, v2, 3, {sA}')
    a(f's_lshl_b32 {sA}, {sLO}, 7')
    a(f's_add_u32 {sA}, {sA}, {L_ST}')
    a(f'v_lshl_add_u32 v28, v2, 3, {sA}')
    a(f's_lshl_b32 {sA}, {sHI}, 13')
    a(f's_lshl_b32 {sB}, {sLO}, 10')
    a(f's_add_u32 {sA}, {sA}, {sB}')
    a(f's_add_u32 {sA}, {sA}, {L_HF}')
    a(f'v_add_u32 v29, {sA}, {vr(vL16)}')
    a(f'v_add_u32 v30, {L_HF}, {vr(vL16)}')
    L_SLAB = 32768
    a('v_lshrrev_b32 v32, 4, v1')
    a('v_lshlrev_b32 v32, 10, v32')
    a('v_and_b32 v33, 15, v1')
    a('v_lshrrev_b32 v34, 1, v33')
    a('v_lshrrev_b32 v35, 4, v1')
    a('v_xor_b32 v34, v34, v35')
    a('v_and_b32 v33, 1, v33')
    a('v_lshlrev_b32 v33, 4, v33')
    a('v_lshl_add_u32 v36, v34, 5, v33')
    a('v_add_u32 v36, v36, v32')
    a('v_xor_b32 v34, 4, v34')
    a('v_lshl_add_u32 v37, v34, 5, v33')
    a('v_add_u32 v37, v37, v32')
    a(f's_lshr_b32 {sA}, {sWV}, 1'); a(f's_and_b32 {sA}, {sA}, 1'); a(f's_cmp_eq_u32 {sA}, 1')
    a('s_cselect_b64 vcc, -1, 0')
    a('v_cndmask_b32 v36, v36, v37, vcc')
    a(f's_lshl_b32 {sA}, {sWV}, 12'); a(f's_lshl_b32 {sB}, {sCQ}, 8'); a(f's_add_u32 {sA}, {sA}, {sB}')
    a(f's_lshl_b32 {sB}, {sWV}, 10'); a(f's_add_u32 {sB}, {sB}, {L_SLAB}')
    for k in range(16):
        if k:
            a(f's_add_u32 {sA}, {sA}, 32768'); a(f's_add_u32 {sB}, {sB}, 8192')
        dma(4, 36, W1o, sB, soff=sA)
    a('v_lshrrev_b32 v33, 2, v2')
    a('v_and_b32 v34, 1, v3')
    a('v_lshl_or_b32 v34, v34, 2, v33')
    a(f'v_xor_b32 v34, {sWV}, v34')
    a('v_lshl_add_u32 v35, v3, 3, v33')
    a('v_lshlrev_b32 v35, 8, v35')
    a('v_lshl_add_u32 v35, v34, 5, v35')
    a('v_and_b32 v33, 3, v2')
    a('v_lshl_add_u32 v35, v33, 3, v35')
    a(f'v_add_u32 v35, {L_SLAB}, v35')
    a('v_add_u32 v37, 65536, v35')
    a('s_waitcnt vmcnt(0)')
    a('s_barrier')
    for ks in range(16):
        ad, off = (35, 8192 * ks) if ks < 8 else (37, 8192 * (ks - 8))
        a(f'ds_read_b64_tr_b16 {vr(W1R + 4 * ks, 2)}, {vr(ad)} offset:{off}')
        a(f'ds_read_b64_tr_b16 {vr(W1R + 4 * ks + 2, 2)}, {vr(ad)} offset:{off + 1024}')
    a('s_waitcnt lgkmcnt(0)')
    for ks in range(16):
        acc = CS1 if ks % 2 == 0 else 32
        mfma(acc, W1R + 4 * ks, ONES, None if ks < 2 else acc)
    for k in range(4):
        a(f'v_add_f32 {vr(CS1 + k)}, {vr(CS1 + k)}, {vr(32 + k)}')
    h1_addresses()
    stamp('W1regs')
    poll(WS_F2, 'all')
    stamp('S2ok')
    a(f's_lshl_b32 {sA}, {sT32}, 15')
    a(f's_lshl_b32 {sB}, {sWV}, 10')
    a(f's_add_u32 {sA}, {sA}, {sB}')
    a(f's_add_u32 {sA}, {sA}, {WS_X2B}')
    for k in range(4):
        if k:
            a(f's_add_u32 {sA}, {sA}, 8192')
        a(f's_add_u32 {sD}, {sB}, {L_X + k * 8192}')
        dma(4, 24, WS, sD, soff=sA, mods='sc1')
    a('v_lshlrev_b32 v14, 2, v0')
    a(f's_mov_b32 {sA}, {WS_MODF + 4 * 2048}')
    bload(32, 1, 14, WS, soff=sA, mods='sc1')
    a(f's_mov_b32 {sA}, {WS_MODF + 3 * 2048}')
    bload(36, 1, 14, WS, soff=sA, mods='sc1')
    a(f's_lshl_b32 {sA}, {sRB}, 16')
    a(f's_lshr_b32 {sB}, {sWV}, 2'); a(f's_lshl_b32 {sB}, {sB}, 15'); a(f's_add_u32 {sA}, {sA}, {sB}')
    a(f's_lshl_b32 {sB}, {sCS}, 12'); a(f's_add_u32 {sA}, {sA}, {sB}')
    a(f's_and_b32 {sB}, {sWV}, 3'); a(f's_lshl_b32 {sB}, {sB}, 10'); a(f's_add_u32 {sA}, {sA}, {sB}')
    a(f's_add_u32 {sA}, {sA}, {WS_X2B}')
    a(f's_lshl_b32 {sB}, {sWV}, 10')
    a(f's_add_u32 {sB}, {sB}, {L_XS}')
    dma(4, vL16, WS, sB, soff=sA, mods='sc1')
    a('v_lshlrev_b32 v15, 2, v0')
    a(f'v_add_u32 v15, {L_CB}, v15')
    a('s_waitcnt vmcnt(1)')
    a('v_add_f32 v32, 1.0, v32')
    a('ds_write_b32 v15, v32')
    a('ds_write_b32 v15, v36 offset:2048')
    a('s_waitcnt lgkmcnt(0)')
    a('s_barrier')
    stamp('Xlanded')
    wfrag_base(sF, WS_W2S)
    wq = list(range(16))

    def w1n(n):
        for _ in range(n):
            if wq:
                wfrag_one(W2R, sF, wq.pop(0))
    XF = 32
    for i in range(4):
        a(f'ds_read_b64_tr_b16 {vr(XF + 4 * i, 2)}, v25 offset:{2048 * i}')
        a(f'ds_read_b64_tr_b16 {vr(XF + 2 + 4 * i, 2)}, v25 offset:{2048 * i + 256}')
    CO = 64

    def ldc(i):
        b = CO + 16 * i
        a(f'ds_read_b128 {vr(b, 4)}, v26 offset:{128 * i}')
        a(f'ds_read_b128 {vr(b + 4, 4)}, v26 offset:{128 * i + 16}')
        a(f'ds_read_b128 {vr(b + 8, 4)}, v26 offset:{2048 + 128 * i}')
        a(f'ds_read_b128 {vr(b + 12, 4)}, v26 offset:{2048 + 128 * i + 16}')
    ldc(0)
    SA, QA = 48, 52
    for i in range(4):
        if i == 0:
            a('s_waitcnt lgkmcnt(10)')
        elif i == 1:
            a('s_waitcnt lgkmcnt(8)')
        elif i == 2:
            a('s_waitcnt lgkmcnt(6)')
        else:
            a('s_waitcnt lgkmcnt(4)')
        f = XF + 4 * i
        mfma(SA, ONES, f, None if i == 0 else SA)
        mfma(QA, f, f, None if i == 0 else QA)
        w1n(1)
    ldc(1); ldc(2)
    stats_publish(27, SA, QA, 56)
    ldc(3)
    a('s_waitcnt lgkmcnt(4)')
    a('s_barrier')
    a('ds_read2st64_b64 v[48:51], v28 offset0:0 offset1:1') if False else None
    a('ds_read_b64 v[48:49], v28')
    a('ds_read_b64 v[50:51], v28 offset:256')
    a('ds_read_b64 v[52:53], v28 offset:512')
    a('ds_read_b64 v[54:55], v28 offset:768')
    a('s_waitcnt lgkmcnt(0)')
    a('v_pk_add_f32 v[48:49], v[48:49], v[50:51]')
    a('v_pk_add_f32 v[52:53], v[52:53], v[54:55]')
    a('v_pk_add_f32 v[48:49], v[48:49], v[52:53]')
    stats_finish(48, 49, 58, 56)
    a('v_mul_f32 v58, v58, v56')
    stamp('stats2')
    SA, QA = 48, 52
    for i in range(4):
        f = XF + 4 * i
        b = CO + 16 * i
        for p in range(4):
            z = 60 + 2 * (p & 1)
            a(f'v_lshlrev_b32 {vr(z)}, 16, {vr(f + p)}')
            a(f'v_and_b32 {vr(z + 1)}, 0xffff0000, {vr(f + p)}')
            a(f'v_pk_fma_f32 {vr(z, 2)}, {vr(z, 2)}, v[56:57], v[58:59] op_sel_hi:[1,0,0] neg_lo:[0,0,1] neg_hi:[0,0,1]')
            a(f'v_pk_fma_f32 {vr(z, 2)}, {vr(z, 2)}, {vr(b + 2 * p, 2)}, {vr(b + 8 + 2 * p, 2)}')
            a(f'v_cvt_pk_bf16_f32 {vr(f + p)}, {vr(z)}, {vr(z + 1)}')
            if p == 1:
                w1n(1)
        a(f'ds_write_b128 v29, {vr(f, 4)} offset:{2048 * i}')
        if i > 0:
            fp = f - 4
            mfma(SA, ONES, fp, None if i == 1 else SA)
            mfma(QA, fp, fp, None if i == 1 else QA)
    f = XF + 12
    mfma(SA, ONES, f, SA)
    mfma(QA, f, f, QA)
    a(f'v_add_u32 v27, {L_ST3 - L_ST}, v27')
    stats_publish(27, SA, QA, 60)
    a('s_waitcnt lgkmcnt(0)')
    a('s_barrier')
    stamp('norm')
    AR = 64

    def lda(ks):
        b = AR + 8 * (ks % 8)
        a(f'ds_read_b128 {vr(b, 4)}, v30 offset:{2048 * ks}')
        a(f'ds_read_b128 {vr(b + 4, 4)}, v30 offset:{2048 * ks + 1024}')
    for ks in range(6):
        lda(ks)
    a(f'v_lshlrev_b32 v14, 3, v2')
    a(f'v_add_u32 v14, {L_ST3}, v14')
    for tt in range(2):
        for kq in range(4):
            a(f'ds_read_b64 {vr(40 + 8 * tt + 2 * kq, 2)}, v14 offset:{256 * kq + 128 * tt}')
    GK = 56
    for ks in range(16):
        pend = min(15 - ks, 5) * 2 + (8 if ks == 0 else 0)
        a(f's_waitcnt lgkmcnt({min(pend, 15)})')
        b = AR + 8 * (ks % 8)
        mfma(32, W1R + 4 * ks, b, None if ks == 0 else 32)
        mfma(36, W1R + 4 * ks, b + 4, None if ks == 0 else 36)
        if ks % 2 == 0:
            w1n(1)
        if ks + 6 < 16:
            lda(ks + 6)
        if ks in (3, 5):
            tt = 0 if ks == 3 else 1
            bb = 40 + 8 * tt
            a(f'v_pk_add_f32 {vr(bb, 2)}, {vr(bb, 2)}, {vr(bb + 2, 2)}')
            a(f'v_pk_add_f32 {vr(bb + 4, 2)}, {vr(bb + 4, 2)}, {vr(bb + 6, 2)}')
            a(f'v_pk_add_f32 {vr(bb, 2)}, {vr(bb, 2)}, {vr(bb + 4, 2)}')
            stats_finish(bb, bb + 1, bb + 2, bb + 4)
        if ks == 7:
            gelu_consts(GK)
    for tt in range(2):
        bb = 40 + 8 * tt
        ln_apply(32 + 4 * tt, CS1, bb + 2, bb + 4, None)
    stamp('gemm1')
    gelu(list(range(32, 40)), 62, GK)
    pack_swap(40, 32, 36)
    bstore(40, 4, H1A, WS, mods='sc1')
    for k in range(4):
        a(f'v_cndmask_b32 {vr(48 + k)}, {vr(40 + k)}, v31, s[{mZH}:{mZH + 1}]')
    save_exec_mask(0xc0000003c0000003)
    bstore(48, 4, H1B, WS, mods='sc1')
    restore_exec()
    p5_tiles()
    a('s_waitcnt vmcnt(0)')
    stamp('h1stored')
    a('s_barrier')
    a(f's_lshl_b32 {sE}, {sT32}, 2'); a(f's_add_u32 {sE}, {sE}, {sCQ}')
    assert not wq
    set_flag(WS_F3, sE)
    wfrags(128, WS_W3S, 8, nt_sgpr=sNT3)


def p5_tiles():
    a(f's_mul_i32 {sNT3}, {sCS}, 11')
    a(f's_cmp_eq_u32 {sCS}, 7')
    a(f's_cselect_b32 {sA}, 1, 0')
    a(f's_sub_u32 {sNT3}, {sNT3}, {sA}')
    a(f's_add_u32 {sNT3}, {sNT3}, {sWV}')
    a(f's_cmp_ge_u32 {sCS}, 6')
    a(f's_cselect_b32 {sA}, 2, 3')
    a(f's_cmp_lt_u32 {sWV}, {sA}')
    a(f's_cselect_b32 {sNV}, 2, 1')
    rot_setup()


def phase4():
    W2R = 192
    poll(WS_F3, 'halo')
    stamp('S3ok')
    a(f's_mul_i32 {sA}, {sT32}, {64 * 768}')
    a(f's_lshl_b32 {sB}, {sWV}, 10')
    a(f's_add_u32 {sA}, {sA}, {sB}')
    a(f's_add_u32 {sA}, {sA}, {WS_H1}')
    for k in range(6):
        if k:
            a(f's_add_u32 {sA}, {sA}, 8192')
        a(f's_add_u32 {sD}, {sB}, {L_A4 + k * 8192}')
        dma(4, vL16, WS, sD, soff=sA, mods=LDM)
    a('v_mul_u32_u24 v24, 768, v3')
    a('v_lshl_add_u32 v24, v2, 4, v24')
    a(f'v_add_u32 v24, {L_A4 + 128 - 32}, v24')
    a(f's_lshl_b32 {sA}, {sCQ}, 2'); a(f's_lshr_b32 {sB}, {sWV}, 1'); a(f's_add_u32 {sA}, {sA}, {sB}')
    a(f's_lshl_b32 {sA}, {sA}, 11')
    a(f's_and_b32 {sB}, {sWV}, 1'); a(f's_lshl_b32 {sB}, {sB}, 9'); a(f's_add_u32 {sA}, {sA}, {sB}')
    a(f's_add_u32 {sA}, {sA}, {L_HF}')
    a('v_lshrrev_b32 v25, 1, v3')
    a('v_lshlrev_b32 v25, 8, v25')
    a('v_lshl_add_u32 v25, v2, 4, v25')
    a('v_and_b32 v14, 1, v3')
    a('v_lshl_add_u32 v25, v14, 3, v25')
    a(f'v_add_u32 v25, {sA}, v25')
    a('ds_read_b64 v[40:41], v25')
    a('ds_read_b64 v[42:43], v25 offset:1024')
    AR = 64
    shifts = [-1, 1, -2, 2]

    def lda(ks):
        b = AR + 8 * (ks % 8)
        s_ = shifts[ks >> 2]
        off = 3072 * ks + 32 + 16 * s_
        a(f'ds_read_b128 {vr(b, 4)}, v24 offset:{off}')
        a(f'ds_read_b128 {vr(b + 4, 4)}, v24 offset:{off + 256}')
    a('s_waitcnt vmcnt(3)')
    a('s_barrier')
    stamp('A4landed')
    wfrag_base(sF, WS_W3S, nt_sgpr=sNT3, first=8)
    for ks in range(6):
        lda(ks)
    for ks in range(16):
        if ks == 2:
            a('s_waitcnt vmcnt(1)')
            a('s_barrier')
        pend = min(15 - ks, 5) * 2
        a(f's_waitcnt lgkmcnt({pend})')
        b = AR + 8 * (ks % 8)
        mfma(32, W2R + 4 * ks, b, None if ks == 0 else 32)
        mfma(36, W2R + 4 * ks, b + 4, None if ks == 0 else 36)
        if ks % 2 == 0:
            wfrag_one(128 + 32, sF, ks // 2)
        if ks + 6 < 16:
            lda(ks + 6)
        if ks in (4, 6):
            tt = 0 if ks == 4 else 1
            for k in range(4):
                h = 40 + 2 * tt + (k >> 1)
                if k & 1:
                    a(f'v_and_b32 {vr(48 + 4 * tt + k)}, 0xffff0000, {vr(h)}')
                else:
                    a(f'v_lshlrev_b32 {vr(48 + 4 * tt + k)}, 16, {vr(h)}')
    stamp('gemm2')
    for k in range(0, 8, 2):
        a(f'v_pk_add_f32 {vr(32 + k, 2)}, {vr(32 + k, 2)}, {vr(48 + k, 2)}')
    pack_swap(40, 32, 36)
    a(f's_lshl_b32 {sA}, {sT32}, 15')
    a(f's_lshl_b32 {sB}, {sCQ}, 3'); a(f's_add_u32 {sB}, {sB}, {sWV}'); a(f's_lshl_b32 {sB}, {sB}, 10')
    a(f's_add_u32 {sA}, {sA}, {sB}')
    a(f's_add_u32 {sA}, {sA}, {WS_X1}')
    cstore(40, 4, vL16, sA)
    a('s_waitcnt vmcnt(0)')
    stamp('x1stored')
    a('s_barrier')
    a(f's_lshl_b32 {sE}, {sRB}, 3'); a(f's_add_u32 {sE}, {sE}, {sCS}')
    set_flag(WS_F4, sE, cluster=True)

    l1 = a.newlabel('L_p4one'); l2 = a.newlabel('L_p4j')
    a(f's_cmp_eq_u32 {sNV}, 1')
    a(f's_cbranch_scc1 {l1}')
    a(f's_add_u32 {sE}, {sNT3}, 8')
    wfrags(192, WS_W3S, 16, nt_sgpr=sE)
    a.label(l1)


def w4reg(s_):
    return 192 + 4 * s_ if s_ < 16 else 128 + 4 * (s_ - 16)


sWO, sWLIM, sWB, sRO, sRBAD = 's69', 's70', 's71', 's72', 's73'


def rot_setup():
    a(f's_movk_i32 {sWLIM}, {21 * 1024}')
    a(f's_cmp_ge_u32 {sWV}, 4')
    a(f's_cselect_b32 {sWLIM}, {20 * 1024}, {sWLIM}')
    a(f's_cselect_b32 {sRBAD}, {21 * 2048}, -1')
    a(f's_and_b32 {sB}, {sWV}, 3')
    a(f's_lshl_b32 {sWB}, {sCS}, 2'); a(f's_add_u32 {sWB}, {sWB}, {sB}'); a(f's_mul_i32 {sWB}, {sWB}, 43')
    a(f's_lshr_b32 {sB}, {sWV}, 2'); a(f's_mul_i32 {sB}, {sB}, 22'); a(f's_add_u32 {sWB}, {sWB}, {sB}')
    a(f's_lshl_b32 {sWB}, {sWB}, 10'); a(f's_add_u32 {sWB}, {sWB}, {WS_W4S}')


def w4_base(sreg, first=0):
    pass


def w4_one(sreg, first, k):
    s_ = first + k
    if s_ == 21:
        a(f's_add_u32 {sC}, {sWB}, {sWLIM}')
        bload(w4reg(s_), 4, vL16, WS, soff=sC, mods='sc1')
    else:
        base4 = (s_ // 4) * 4
        if s_ % 4 == 0 or k == 0:
            a(f's_add_u32 {sWO}, {sWB}, {base4 * 1024}')
        bload(w4reg(s_), 4, vL16, WS, imm=(s_ % 4) * 1024, soff=sWO, mods='sc1')


def w4_loads(first, n):
    for k in range(n):
        w4_one(None, first, k)


def phase5():
    W3A, W3B = 128, 192
    CSA, CSB = 24, 28
    for k in range(4):
        a(f'v_mov_b32 {vr(ONES + k)}, 0x3f803f80')
    a(f's_and_b32 {sLO}, {sWV}, 3')
    a(f's_lshr_b32 {sHI}, {sWV}, 2')
    a('v_lshrrev_b32 v14, 2, v2')
    a('v_lshl_add_u32 v14, v3, 2, v14')
    a('v_lshlrev_b32 v14, 6, v14')
    a('v_and_b32 v15, 3, v2')
    a('v_lshl_add_u32 v14, v15, 3, v14')
    a(f's_lshl_b32 {sA}, {sHI}, 12'); a(f's_lshl_b32 {sB}, {sLO}, 10'); a(f's_add_u32 {sA}, {sA}, {sB}')
    a(f's_add_u32 {sA}, {sA}, {L_XS}')
    a(f'v_add_u32 v14, {sA}, v14')
    a(f'ds_read_b64_tr_b16 {vr(XS, 2)}, v14')
    a(f'ds_read_b64_tr_b16 {vr(XS + 2, 2)}, v14 offset:32')
    a(f's_lshr_b32 {sA}, {sLO}, 1'); a(f's_lshl_b32 {sA}, {sA}, 15')
    a(f's_and_b32 {sB}, {sLO}, 1'); a(f's_lshl_b32 {sB}, {sB}, 8'); a(f's_add_u32 {sA}, {sA}, {sB}')
    a(f's_lshl_b32 {sB}, {sHI}, 14'); a(f's_add_u32 {sA}, {sA}, {sB}')
    a(f'v_add_u32 v20, {sA}, {vr(vVB)}')
    a(f's_lshl_b32 {sA}, {sWV}, 7'); a(f's_add_u32 {sA}, {sA}, {L_ST5}')
    a(f'v_lshl_add_u32 v21, v2, 3, {sA}')
    a(f's_lshl_b32 {sA}, {sHI}, 15'); a(f's_lshl_b32 {sB}, {sCS}, 12'); a(f's_add_u32 {sA}, {sA}, {sB}')
    a(f's_lshl_b32 {sB}, {sLO}, 10'); a(f's_add_u32 {sA}, {sA}, {sB}')
    a('v_lshrrev_b32 v22, 1, v3'); a('v_lshlrev_b32 v22, 9, v22')
    a('v_lshl_add_u32 v22, v2, 4, v22')
    a('v_and_b32 v14, 1, v3'); a('v_lshl_add_u32 v22, v14, 3, v22')
    a(f'v_add_u32 v22, {sA}, v22')
    a('v_lshlrev_b32 v23, 3, v2')
    a(f'v_add_u32 v23, {L_ST5}, v23')
    a('s_waitcnt lgkmcnt(0)')
    stamp('W3landed')
    poll(WS_F4, 'own')
    stamp('S4ok')
    a(f's_lshl_b32 {sA}, {sRB}, 16')
    a(f's_lshl_b32 {sB}, {sHI}, 15'); a(f's_lshl_b32 {sC}, {sLO}, 10'); a(f's_add_u32 {sB}, {sB}, {sC}')
    a(f's_add_u32 {sA}, {sA}, {sB}'); a(f's_add_u32 {sA}, {sA}, {WS_X1}')
    for j in range(8):
        if j:
            a(f's_add_u32 {sA}, {sA}, 4096')
        a(f's_add_u32 {sD}, {sB}, {L_X1 + 4096 * j}')
        dma(4, vL16, WS, sD, soff=sA, mods=LDM)
    a('s_waitcnt vmcnt(8)')
    for ks in range(16):
        acc = CSA if ks % 2 == 0 else 32
        mfma(acc, W3A + 4 * ks, ONES, None if ks < 2 else acc)
    lnb = a.newlabel('L_nob')
    a(f's_cmp_lt_u32 {sNV}, 2')
    a(f's_cbranch_scc1 {lnb}')
    for ks in range(16):
        acc = CSB if ks % 2 == 0 else 36
        mfma(acc, W3B + 4 * ks, ONES, None if ks < 2 else acc)
    for k in range(4):
        a(f'v_add_f32 {vr(CSB + k)}, {vr(CSB + k)}, {vr(36 + k)}')
    a.label(lnb)
    for k in range(4):
        a(f'v_add_f32 {vr(CSA + k)}, {vr(CSA + k)}, {vr(32 + k)}')
    AR = 64
    ACA, ACB = 32, 48
    SA, QA, TP, MR = 112, 116, 120, 120
    a(f's_lshl_b32 {sA}, {sRB}, 1'); a(f's_mul_i32 {sA}, {sA}, {86 * 1024}')
    a(f's_lshl_b32 {sB}, {sNT3}, 10'); a(f's_add_u32 {sA}, {sA}, {sB}'); a(f's_add_u32 {sE}, {sA}, {WS_H3}')

    def lda(ks, q):
        b = AR + 16 * (ks % 3)
        for tt in range(4):
            a(f'ds_read_b128 {vr(b + 4 * tt, 4)}, {vr(vVB)} offset:{32768 * (tt >> 1) + 2048 * ks + 256 * (tt & 1)}')
        q += [('a', ks)] * 4

    def wait_for(q, key):
        last = max(i for i, o in enumerate(q) if o == key)
        a(f's_waitcnt lgkmcnt({min(15, len(q) - 1 - last)})')

    def epi_steps(acc, cs, tileoff, tmp, gk, pk):
        steps = []
        for tt in range(4):
            mr = MR + 2 * tt
            def f(tt=tt, mr=mr):
                for k in (0, 2):
                    r = acc + 4 * tt + k
                    a(f'v_pk_fma_f32 {vr(r, 2)}, {vr(cs + k, 2)}, {vr(mr, 2)}, {vr(r, 2)} op_sel_hi:[1,0,1] neg_lo:[0,1,0] neg_hi:[0,1,0]')
                    a(f'v_pk_mul_f32 {vr(r, 2)}, {vr(r, 2)}, {vr(mr, 2)} op_sel:[0,1] op_sel_hi:[1,1]')
            steps.append(f)
        for i in range(8):
            steps.append(lambda i=i: gelu([acc + 2 * i, acc + 2 * i + 1], tmp + 2 * (i & 1), gk))
        for T in range(2):
            def f(T=T):
                d = pk + 4 * T
                pack_swap(d, acc + 8 * T, acc + 8 * T + 4)
                a(f's_add_u32 {sA}, {sE}, {tileoff + T * 86 * 1024}')
                bstore(d, 4, vL16, WS, soff=sA, mods='sc1')
            steps.append(f)
        return steps

    def stats_pass():
        a('s_waitcnt vmcnt(0)')
        a('s_barrier')
        stamp('x1landed')
        for k in range(8):
            a(f'ds_read_b128 {vr(AR + 4 * k, 4)}, v20 offset:{2048 * k}')
        a(f'ds_read_b64 {vr(X1R, 2)}, v22')
        a(f'ds_read_b64 {vr(X1R + 2, 2)}, v22 offset:256')
        for k in range(8):
            a(f's_waitcnt lgkmcnt({9 - k})')
            f = AR + 4 * k
            sa, qa = (SA, QA) if k % 2 == 0 else (ACB, ACB + 4)
            mfma(sa, ONES, f, None if k < 2 else sa)
            mfma(qa, f, f, None if k < 2 else qa)
        for k in range(4):
            a(f'v_add_f32 {vr(SA + k)}, {vr(SA + k)}, {vr(ACB + k)}') if k == 0 else None
            a(f'v_add_f32 {vr(QA + k)}, {vr(QA + k)}, {vr(ACB + 4 + k)}')
        stats_publish(21, SA, QA, TP)
        a('s_waitcnt lgkmcnt(0)')
        a('s_barrier')
        stamp('k5b')

    def loop1(two):
        q = []
        SF = AR + 32
        for tt in range(4):
            a(f'ds_read_b64 {vr(SF + 4 * tt, 2)}, v23 offset:{128 * tt}')
            a(f'ds_read_b64 {vr(SF + 4 * tt + 2, 2)}, v23 offset:{512 + 128 * tt}')
        q += [('f', 0)] * 8
        lda(0, q); lda(1, q)
        wait_for(q, ('f', 0))
        for tt in range(4):
            bb = SF + 4 * tt
            mr = MR + 2 * tt
            a(f'v_pk_add_f32 {vr(bb, 2)}, {vr(bb, 2)}, {vr(bb + 2, 2)}')
            stats_finish(bb, bb + 1, mr, mr + 1)
        nxt = 2
        for ks in range(16):
            wait_for(q, ('a', ks))
            b = AR + 16 * (ks % 3)
            for tt in range(4):
                mfma(ACA + 4 * tt, W3A + 4 * ks, b + 4 * tt, None if ks == 0 else ACA + 4 * tt)
                if two:
                    mfma(ACB + 4 * tt, W3B + 4 * ks, b + 4 * tt, None if ks == 0 else ACB + 4 * tt)
            if not two:
                w4_one(None, 0, ks)
            while nxt < 16 and nxt <= ks + 2:
                lda(nxt, q); nxt += 1
            if ks == 8:
                wtouch('w4', 15)
            if ks == 4 and os.environ.get('OUTTOUCH'):
                a('v_lshlrev_b32 v14, 10, v1')
                a(f's_lshl_b32 {sA}, {sRB}, 16'); a(f's_lshl_b32 {sB}, {sCS}, 7'); a(f's_add_u32 {sA}, {sA}, {sB}')
                a(f's_cmp_eq_u32 {sWV}, {os.environ["OUTTOUCH"]}')
                a('s_cselect_b64 exec, -1, 0')
                bload(15, 1, 14, OUT, soff=sA)
                a('s_mov_b64 exec, -1')

    stats_pass()
    a(f's_cmp_ge_u32 {sWV}, 4')
    lpr = a.newlabel('L_prio')
    a(f's_cbranch_scc0 {lpr}')
    a('s_setprio 1')
    a.label(lpr)
    l1 = a.newlabel('L_one'); lj = a.newlabel('L_p5j')
    a(f's_cmp_eq_u32 {sNV}, 1')
    a(f's_cbranch_scc1 {l1}')
    loop1(True)
    stamp('gemm3')
    GK, TMP, PK = 64, 72, 76
    gelu_consts(GK)
    for f in epi_steps(ACA, CSA, 0, TMP, GK, PK):
        f()
    stamp('loop2')
    for f in epi_steps(ACB, CSB, 8 * 1024, TMP, GK, PK + 8):
        f()
    stamp('epiB')
    a('s_waitcnt vmcnt(0) lgkmcnt(0)')
    a(f's_branch {lj}')
    a.label(l1)
    loop1(False)
    w4_loads(16, 6)
    stamp('gemm3')
    GK, TMP, PK = 64, 72, 76
    gelu_consts(GK)
    for f in epi_steps(ACA, CSA, 0, TMP, GK, PK):
        f()
    stamp('epiB')
    a('s_waitcnt vmcnt(0) lgkmcnt(0)')
    a.label(lj)
    a('s_setprio 0')
    stamp('h3stored')
    a('s_barrier')
    a(f's_lshl_b32 {sE}, {sRB}, 3'); a(f's_add_u32 {sE}, {sE}, {sCS}')
    set_flag(WS_F5, sE)

    l1 = a.newlabel('L_w4one')
    a(f's_cmp_eq_u32 {sNV}, 1')
    a(f's_cbranch_scc1 {l1}')
    w4_loads(0, 16)
    w4_loads(16, 6)
    a.label(l1)


def p6_tail_prep():
    for e in range(2):
        for k in range(4):
            for (src, dst) in ((X1R + 2 * e + (k >> 1), 152 + 4 * e + k), (XS + 2 * e + (k >> 1), 160 + 4 * e + k)):
                if k & 1:
                    a(f'v_and_b32 {vr(dst)}, 0xffff0000, {vr(src)}')
                else:
                    a(f'v_lshlrev_b32 {vr(dst)}, 16, {vr(src)}')
    a(f's_lshl_b32 {sA}, {sRB}, 6'); a(f's_lshl_b32 {sB}, {sHI}, 5'); a(f's_add_u32 {sA}, {sA}, {sB}')
    a(f's_lshl_b32 {sA}, {sA}, 10')
    a(f's_lshl_b32 {sB}, {sCS}, 7'); a(f's_add_u32 {sA}, {sA}, {sB}')
    a(f's_lshl_b32 {sB}, {sLO}, 5'); a(f's_add_u32 {sNT3}, {sA}, {sB}')
    a('v_lshlrev_b32 v36, 10, v2')
    a('v_lshl_add_u32 v36, v3, 3, v36')


def phase6():
    a(f's_lshl_b32 {sA}, {sCS}, 6'); a(f's_lshl_b32 {sB}, {sLO}, 4'); a(f's_add_u32 {sA}, {sA}, {sB}')
    a(f's_lshl_b32 {sA}, {sA}, 2'); a(f's_add_u32 {sA}, {sA}, {WS_MODF + 5 * 2048}')
    a('v_lshlrev_b32 v14, 4, v3')
    bload(16, 4, 14, WS, soff=sA, mods='sc1')
    poll(WS_F5, 'own')
    stamp('S5ok')
    a(f's_lshl_b32 {sA}, {sRB}, 1'); a(f's_lshr_b32 {sB}, {sWV}, 1'); a(f's_and_b32 {sB}, {sB}, 1')
    a(f's_add_u32 {sA}, {sA}, {sB}'); a(f's_mul_i32 {sA}, {sA}, {86 * 1024}')
    a(f's_mul_i32 {sB}, {sHI}, {44 * 1024}'); a(f's_add_u32 {sA}, {sA}, {sB}')
    a(f's_and_b32 {sB}, {sWV}, 1'); a(f's_lshl_b32 {sB}, {sB}, 10'); a(f's_add_u32 {sA}, {sA}, {sB}')
    a(f's_add_u32 {sE}, {sA}, {WS_H3}')
    a(f's_lshl_b32 {sF}, {sWV}, 10')

    def ring(s_):
        if 'nodma' in XP and s_ >= 3:
            return
        a(f's_add_u32 {sC}, {sE}, {2048 * s_}')
        if s_ == 21:
            a(f's_cmp_eq_u32 {sHI}, 1')
            a(f's_cselect_b32 {sC}, 0x7ff00000, {sC}')
        a(f's_add_u32 {sD}, {sF}, {8192 * (s_ % NSLOT)}')
        dma(4, vL16, WS, sD, soff=sC, mods=LDM)
    AHEAD = int(os.environ.get('AHEAD', '6'))
    RAMP = int(os.environ.get('RAMP', '14'))
    for s_ in range(AHEAD):
        ring(s_)
    a(f's_lshl_b32 {sA}, {sHI}, 12')
    a(f'v_add_u32 v32, {sA}, {vr(vVB)}')
    a('v_add_u32 v33, 65536, v32')
    a('v_add_u32 v34, 131072, v32')
    AR = 64
    ACC = 40

    def lda(s_):
        b = AR + 16 * (s_ % 4)
        off = 8192 * (s_ % NSLOT)
        ad, base = (32, 0) if off < 65536 else (33, 65536) if off < 131072 else (34, 131072)
        for tt in range(4):
            if 'nord' in XP and s_ > 3:
                continue
            a(f'ds_read_b128 {vr(b + 4 * tt, 4)}, {vr(ad)} offset:{off - base + 2048 * (tt >> 1) + 256 * (tt & 1)}')
    guar = {0: 3, 2: 7, 6: 11, 10: 15, 14: 19, 18: 22}
    issued = AHEAD
    q = []
    nxt = 0
    bound = 0
    gi = 0
    for s_ in range(22):
        if s_ in guar:
            bound = guar[s_]
            while issued < bound:
                ring(issued); issued += 1
            if 'novm' not in XP or s_ == 0:
                a(f's_waitcnt vmcnt({issued - bound})')
            if 'nobar' not in XP or s_ == 0:
                a('s_barrier')
            stamp(f'g{gi}'); gi += 1
            last_barrier = s_
        while nxt < bound and nxt <= s_ + 2:
            lda(nxt); q += [nxt] * 4; nxt += 1
        nper = 2 if issued < RAMP else 1
        for _ in range(nper):
            if issued < 22 and (issued < NSLOT or issued - NSLOT < last_barrier):
                ring(issued); issued += 1
        last = max(i for i, o in enumerate(q) if o == s_)
        a(f's_waitcnt lgkmcnt({min(15, len(q) - 1 - last)})')
        b = AR + 16 * (s_ % 4)
        for tt in range(4):
            mfma(ACC + 4 * tt, w4reg(s_), b + 4 * tt, None if s_ == 0 else ACC + 4 * tt)
        while nxt < bound and nxt <= s_ + 3:
            lda(nxt); q += [nxt] * 4; nxt += 1
        if s_ in (8, 9):
            e = s_ - 8
            for k in range(4):
                for (src, dst) in ((X1R + 2 * e + (k >> 1), 16 + 8 * e + k + 4), (XS + 2 * e + (k >> 1), 216 + 4 * e + k)):
                    pass
        if s_ == 12:
            p6_tail_prep()
    assert issued == 22
    stamp('gemm4')
    a(f's_lshl_b32 {sA}, {sWV}, 11')
    a(f's_add_u32 {sA}, {sA}, {L_EX}')
    a(f'v_add_u32 v35, {sA}, {vr(vL16)}')
    lk1 = a.newlabel('L_k1'); lkd = a.newlabel('L_kd')
    a(f's_cmp_eq_u32 {sHI}, 1')
    a(f's_cbranch_scc1 {lk1}')
    a(f'ds_write_b128 v35, {vr(ACC + 8, 4)}')
    a(f'ds_write_b128 v35, {vr(ACC + 12, 4)} offset:1024')
    a(f's_branch {lkd}')
    a.label(lk1)
    a(f'ds_write_b128 v35, {vr(ACC, 4)}')
    a(f'ds_write_b128 v35, {vr(ACC + 4, 4)} offset:1024')
    for k in range(8):
        a(f'v_mov_b32 {vr(ACC + k)}, {vr(ACC + 8 + k)}')
    a.label(lkd)
    a('s_waitcnt lgkmcnt(0)')
    a('s_barrier')
    a(f's_xor_b32 {sA}, {sWV}, 4')
    a(f's_lshl_b32 {sA}, {sA}, 11')
    a(f's_add_u32 {sA}, {sA}, {L_EX}')
    a(f'v_add_u32 v35, {sA}, {vr(vL16)}')
    stamp('exch')
    a('ds_read_b128 v[64:67], v35')
    a('ds_read_b128 v[68:71], v35 offset:1024')
    a('s_waitcnt lgkmcnt(0)')
    for e in range(2):
        for k in range(4):
            r = ACC + 4 * e + k
            a(f'v_add_f32 {vr(r)}, {vr(r)}, {vr(64 + 4 * e + k)}')
            a(f'v_add_f32 {vr(r)}, {vr(r)}, {vr(152 + 4 * e + k)}')
            a(f'v_fma_f32 {vr(r)}, {vr(16 + k)}, {vr(r)}, {vr(160 + 4 * e + k)}')
        a(f'v_cvt_pk_bf16_f32 {vr(88 + 2 * e)}, {vr(ACC + 4 * e)}, {vr(ACC + 4 * e + 1)}')
        a(f'v_cvt_pk_bf16_f32 {vr(89 + 2 * e)}, {vr(ACC + 4 * e + 2)}, {vr(ACC + 4 * e + 3)}')
    OM = os.environ.get('OUTM', '')
    bstore(88, 2, 36, OUT, soff=sNT3, mods=OM)
    a(f's_add_u32 {sNT3}, {sNT3}, 16384')
    bstore(90, 2, 36, OUT, soff=sNT3, mods=OM)


def finish():
    lf = a.newlabel('L_fin')
    a('s_cmp_lg_u32 s2, 0')
    a(f's_cbranch_scc1 {lf}')
    a(f's_cmp_lg_u32 {sWV}, 0')
    a(f's_cbranch_scc1 {lf}')
    a(f'v_mov_b32 v14, {sT}')
    a(f'v_mov_b32 v15, {WS_EPOCH}')
    save_exec_mask('1')
    bstore(14, 1, 15, WS, mods='sc1')
    restore_exec()
    a.label(lf)
    if PADTO or STAMPS:
        a('s_waitcnt vmcnt(0)')
    if PADTO:
        lp = a.newlabel('L_pad'); lq = a.newlabel('L_padq')
        a('s_cmp_lg_u32 s2, 0')
        a(f's_cbranch_scc1 {lq}')
        a(f's_cmp_lg_u32 {sWV}, 0')
        a(f's_cbranch_scc1 {lq}')
        a.label(lp)
        a('s_memrealtime s[98:99]')
        a('s_waitcnt lgkmcnt(0)')
        a('s_sub_u32 s98, s98, s3')
        if PROBE:
            a('s_sub_u32 s99, s59, s3')
            a('s_sub_u32 s98, s98, s99')
        a(f's_cmp_lt_u32 s98, {PADTO * 100}')
        a(f's_cbranch_scc1 {lp}')
        a.label(lq)
    stamp('end')
    if STAMPS:
        for i in range(len(stamp_names)):
            a(f'v_writelane_b32 v255, s{STAMP_REGS[i]}, {i}')
        a(f's_lshl_b32 {sA}, s2, 3')
        a(f's_add_u32 {sA}, {sA}, {sWV}')
        a(f's_lshl_b32 {sA}, {sA}, 8')
        a(f's_add_u32 {sA}, {sA}, {WS_DBG}')
        a(f'v_lshl_add_u32 v20, v1, 2, {sA}')
        bstore(255, 1, 20, WS)
        a('s_waitcnt vmcnt(0)')
        open('stamps.txt', 'w').write('\n'.join(stamp_names) + '\n')
    a.label('L_END')
    a('s_endpgm')


def build(debug=True):
    global DEBUG
    DEBUG = debug
    prologue()
    phase_a()
    phase_b()
    for name, fn in (('3', phase3), ('4', phase4), ('5', phase5), ('6', phase6)):
        if STOP_AFTER and STOP_AFTER < name and STOP_AFTER != '':
            break
        fn()
    finish()
    nops = a.fast_hazard_pass()
    errs = a.check_waits([{'s5': w, 's89': nv} for w in range(8) for nv in ((1, 2) if w < 3 else (1,))])
    for e in errs:
        print('WAIT-CHECK:', e, file=sys.stderr)
    hdr = open('adaLN_cond__ssm_conv_s4__mixer_s_mlp__prompt.s.ref').read().split('\n')
    head = [l for l in hdr if l.startswith(';') and '@launch' not in l and 'Override' not in l and 'grid=ceil' not in l]
    txt = '\n'.join(head) + '\n; @launch grid=(256,1,1) block=(512,1,1) lds=163840\n'
    txt += '.amdgcn_target "amdgcn-amd-amdhsa--gfx950"\n.text\n'
    txt += f'.globl {KNAME}\n.p2align 8\n.type {KNAME},@function\n{KNAME}:\n'
    txt += a.text()
    txt += f'''.section .rodata,"a"
.p2align 6
.amdhsa_kernel {KNAME}
  .amdhsa_next_free_vgpr 256
  .amdhsa_next_free_sgpr 102
  .amdhsa_accum_offset 256
  .amdhsa_group_segment_fixed_size 0
  .amdhsa_kernarg_size 152
  .amdhsa_user_sgpr_count 2
  .amdhsa_user_sgpr_kernarg_segment_ptr 1
  .amdhsa_system_sgpr_workgroup_id_x 1
  .amdhsa_float_denorm_mode_32 3
.end_amdhsa_kernel
'''
    print(f'instructions: {len(a.lines)}  hazard nops: {nops}', file=sys.stderr)
    return txt


if __name__ == '__main__':
    out = sys.argv[1] if len(sys.argv) > 1 else 'k.s'
    open(out, 'w').write(build(debug=os.environ.get('NODEBUG') is None))
```

```python
import sys, os, struct
sys.path.insert(0, os.path.dirname(os.path.abspath(__file__)))
from asmlib import Asm
from layout import *

KNAME = 'adaLN_cond__ssm_conv_s4__mixer_s_mlp__prompt_kernel'
STOP_AFTER = os.environ.get('STOP_AFTER', '')
STAMPS = os.environ.get('STAMPS') is not None
PADTO = int(os.environ.get('PADTO', '0'))
SPIN_MAX = 20000
XP = os.environ.get('XP', '').split(',')
NOFAST = True
LDM = os.environ.get('LDM', 'sc1')
PRETOUCH = int(os.environ.get('PRETOUCH', '0'))
NOSCOUT = os.environ.get('NOSCOUT') is not None
FASTX = os.environ.get('FASTX') is not None
CM = '' if FASTX else 'sc1'

sT = 's4'; sWV = 's5'; sX = 's6'; sJ = 's7'
U, WS, OUT = 8, 12, 16
ARE, AIM, BRE, BIM, CRE, CIM = 20, 24, 28, 32, 36, 40
LDT, DSK, CC, WMOD, W1, W2, W3, W4 = 44, 48, 52, 56, 60, 64, 68, 72
sCH0 = 's76'; sRB = 's77'; sCS = 's78'; sNT3 = 's79'
sA, sB, sC, sD = 's80', 's81', 's82', 's83'
sSPIN = 's84'; sLO = 's85'; sHI = 's86'
sE, sF = 's87', 's88'; sNV = 's89'
mK1, mK2, mK3, mDG = 90, 92, 94, 96
sX0 = 98
sT32 = 's100'; sCQ = 's101'
sROT = 's68'
mFA, mSL = 64, 66
TSRD = 92
sSD, sSN, sSS, sSB = 's90', 's91', 's96', 's97'
sSR, sSO = 's74', 's75'

vL16, vVB = 4, 5
XS, X1R = 6, 10


def srd(n):
    return f's[{n}:{n + 3}]'


def vr(a, n=1):
    return f'v{a}' if n == 1 else f'v[{a}:{a + n - 1}]'


def fconst(x):
    return hex(struct.unpack('<I', struct.pack('<f', x))[0])


L_G = 0; G_ROW = 544; G_CH = 48 * G_ROW
L_E = 2 * G_CH; E_CH = 16 * G_ROW
L_KT = L_E + 2 * E_CH; KT_CH = 5120; KT_ZERO = 2559
L_COPY = L_KT + 2 * KT_CH; CP_R = 4160; CP_CH = 4 * CP_R
L_STG = L_COPY + 2 * CP_CH
L_PART = 0
L_XC = 143360
L_H = L_XC + 8192; H_CH = 4672
assert L_STG + 4 * 4096 <= L_XC and L_H + 2 * H_CH <= 163840
L_X = 0
L_HF = 32768
L_A4 = 65536
L_XS = 114688
L_CB = 122880
L_ST = L_CB + 4096
L_ST3 = L_ST + 1024
L_X1 = 0
L_ST5 = 147456
NSLOT = 18
L_EX = 147456

a = Asm()
stamp_names = []
STAMP_REGS = [3] + list(range(20, 48)) + list(range(52, 60))
STAMPSET = os.environ.get('STAMPSET', 'all')
LATE_ONLY = ('entry', 'S4ok', 'x1landed', 'k5a', 'k5b', 'k12a', 'k12b', 'gemm3', 'loop2', 'epiB', 'h3stored', 'S5ok', 'g0', 'g1', 'g2', 'g3', 'g4', 'g5', 'g6', 'g7', 'gemm4', 'exch', 'end')


PROBE = os.environ.get('PROBE')


def stamp(name):
    if PROBE == name:
        a(f's_memrealtime s[{sX0}:{sX0 + 1}]')
        a('s_waitcnt lgkmcnt(0)')
        a(f's_mov_b32 s59, s{sX0}')
    if not STAMPS:
        return
    if STAMPSET == 'late' and name not in LATE_ONLY:
        return
    if STAMPSET == 'all' and name in ('k5a', 'k5b', 'k12a', 'k12b', 'loop2', 'epiB', 'g0', 'g1', 'g2', 'g3', 'g4', 'g5', 'g6', 'g7', 'exch'):
        return
    if name in stamp_names:
        i = stamp_names.index(name)
    else:
        i = len(stamp_names)
        stamp_names.append(name)
    a(f's_memtime s[{sX0}:{sX0 + 1}]' if os.environ.get('CYC') else f's_memrealtime s[{sX0}:{sX0 + 1}]')
    a('s_waitcnt lgkmcnt(0)')
    a(f's_mov_b32 s{STAMP_REGS[i]}, s{sX0}')


def bload(dst, n, voff, s, imm=0, soff='0', mods=''):
    op = {1: 'buffer_load_dword', 2: 'buffer_load_dwordx2', 4: 'buffer_load_dwordx4', 'u16': 'buffer_load_ushort'}[n]
    cnt = 1 if n == 'u16' else n
    a(f'{op} {vr(dst, cnt)}, {vr(voff)}, {srd(s)}, {soff} offen' + (f' offset:{imm}' if imm else '') + (' ' + mods if mods else ''))


def bstore(src, n, voff, s, imm=0, soff='0', mods=''):
    op = {1: 'buffer_store_dword', 2: 'buffer_store_dwordx2', 4: 'buffer_store_dwordx4'}[n]
    a(f'{op} {vr(src, n)}, {vr(voff)}, {srd(s)}, {soff} offen' + (f' offset:{imm}' if imm else '') + (' ' + mods if mods else ''))


def dma(n, voff, s, m0, soff='0', mods=''):
    a(f's_mov_b32 m0, {m0}')
    op = {1: 'buffer_load_dword', 4: 'buffer_load_dwordx4'}[n]
    a(f'{op} {vr(voff)}, {srd(s)}, {soff} offen' + (' ' + mods if mods else '') + ' lds')


def cstore(src, n, voff, soff):
    if NOFAST:
        bstore(src, n, voff, WS, soff=soff, mods='sc1')
        return
    a(f's_mov_b64 exec, s[{mFA}:{mFA + 1}]')
    bstore(src, n, voff, WS, soff=soff)
    a(f's_mov_b64 exec, s[{mSL}:{mSL + 1}]')
    bstore(src, n, voff, WS, soff=soff, mods='sc1')
    a('s_mov_b64 exec, -1')


def mfma(d, x, y, c=None):
    cc = '0' if c is None else vr(c, 4)
    a(f'v_mfma_f32_16x16x32_bf16 {vr(d, 4)}, {vr(x, 4)}, {vr(y, 4)}, {cc}')


def cmul(d, x, y):
    a(f'v_pk_mul_f32 {vr(d, 2)}, {vr(x, 2)}, {vr(y, 2)} op_sel:[0,0] op_sel_hi:[0,1]')
    a(f'v_pk_fma_f32 {vr(d, 2)}, {vr(x, 2)}, {vr(y, 2)}, {vr(d, 2)} op_sel:[1,1,0] op_sel_hi:[1,0,1] neg_lo:[1,0,0]')


def save_exec_mask(mask):
    a(f's_mov_b64 s[{sX0}:{sX0 + 1}], exec')
    if isinstance(mask, int) and mask > 64:
        a(f's_mov_b32 exec_lo, {hex(mask & 0xffffffff)}')
        a(f's_mov_b32 exec_hi, {hex(mask >> 32)}')
    else:
        a(f's_mov_b64 exec, {mask}')


def restore_exec():
    a(f's_mov_b64 exec, s[{sX0}:{sX0 + 1}]')


def prologue():
    if PADTO:
        a('s_memrealtime s[78:79]')
        a('s_waitcnt lgkmcnt(0)')
        a('s_mov_b32 s3, s78')
    a('s_cmp_ge_u32 s2, 256')
    a('s_cbranch_scc1 L_END')
    ptrs = [(U, 0), (WS, 144), (ARE, 8), (AIM, 16), (BRE, 24), (BIM, 32), (CRE, 40), (CIM, 48), (LDT, 56), (CC, 112),
            (WMOD, 120), (W1, 80), (W2, 88), (W3, 96), (W4, 104), (DSK, 64), (OUT, 128)]
    for r, off in ptrs:
        a(f's_load_dwordx2 s[{r}:{r + 1}], s[0:1], {off}')
    sizes = {U: 2 * 1024 * 1024, ARE: 131072, AIM: 131072, BRE: 131072, BIM: 131072, CRE: 131072, CIM: 131072,
             LDT: 1024, DSK: 1024, W1: 524288, W2: 524288, W3: 512 * F_ * 2, W4: 512 * F_ * 2, CC: 1024,
             WMOD: 512 * 3072 * 2, OUT: 2 * 1024 * 1024, WS: WS_USED + (WS_DBG_SIZE if DEBUG else 0)}
    a('v_lshrrev_b32 v2, 6, v0')
    a('v_and_b32 v1, 63, v0')
    a(f'v_readfirstlane_b32 {sWV}, v2')
    for r, sz in sizes.items():
        a(f's_mov_b32 s{r + 2}, {sz}')
        a(f's_mov_b32 s{r + 3}, 0x20000')
    a('v_and_b32 v2, 15, v1')
    a('v_lshrrev_b32 v3, 4, v1')
    a(f'v_lshlrev_b32 {vr(vL16)}, 4, v1')
    a(f's_and_b32 {sX}, s2, 7')
    if os.environ.get('XROT'):
        a(f's_add_u32 {sX}, {sX}, {os.environ["XROT"]}')
        a(f's_and_b32 {sX}, {sX}, 7')
    a(f's_lshr_b32 {sJ}, s2, 3')
    a(f's_lshl_b32 {sCH0}, {sX}, 6')
    a(f's_lshl_b32 {sA}, {sJ}, 1')
    a(f's_add_u32 {sCH0}, {sCH0}, {sA}')
    a(f's_lshl_b32 {sRB}, {sX}, 2')
    a(f's_lshr_b32 {sA}, {sJ}, 3')
    a(f's_add_u32 {sRB}, {sRB}, {sA}')
    a(f's_and_b32 {sCS}, {sJ}, 7')
    a(f's_lshl_b32 {sT32}, {sRB}, 1')
    a(f's_and_b32 {sA}, {sCS}, 1')
    a(f's_add_u32 {sT32}, {sT32}, {sA}')
    a(f's_lshr_b32 {sCQ}, {sCS}, 1')
    a('v_mov_b32 v102, 0')
    a('s_waitcnt lgkmcnt(0)')
    a(f's_mov_b64 s[{TSRD}:{TSRD + 1}], s[{W1}:{W1 + 1}]')
    a(f's_mov_b32 s{TSRD + 2}, 524288')
    a(f's_mov_b32 s{TSRD + 3}, 0x20000')


EXA = 112
KMA, KMB, KMD = 108, 109, 104


def precompute():
    a(f's_load_dword {sT}, s[{WS}:{WS + 1}], {WS_EPOCH}')
    a(f'v_lshlrev_b32 {vr(vVB)}, 4, v2')
    a(f'v_lshl_add_u32 {vr(vVB)}, v3, 9, {vr(vVB)}')
    a('v_and_b32 v16, 255, v0')
    a('v_lshlrev_b32 v16, 3, v16')
    a(f's_lshr_b32 {sA}, {sWV}, 2')
    a(f's_mul_i32 {sA}, {sA}, {KT_CH}')
    a(f's_add_u32 {sA}, {sA}, {L_KT}')
    a(f'v_cvt_f32_u32 v17, {sA}')
    a(f's_add_u32 {sA}, {sA}, {2 * KT_ZERO}')
    a(f'v_mov_b32 v18, {sA}')
    a('v_cvt_f32_u32 v19, v16')
    a('v_cmp_eq_u32 vcc, 0, v16')
    for d in range(1, 12):
        dd = d - 4
        r = EXA + d
        a(f'v_add_f32 v20, {float(dd)}, v19' if -16 <= dd <= 4 and float(dd) in (-4.0, -2.0, -1.0, 1.0, 2.0, 4.0, 0.5) else
          f'v_add_f32 v20, {fconst(float(dd))}, v19')
        a('v_cvt_pk_bf16_f32 v20, v20, v20')
        a('v_and_b32 v20, 0xffff0000, v20')
        a('v_fma_f32 v20, v20, 2.0, v17')
        a(f'v_cvt_u32_f32 {vr(r)}, v20')
        if dd < 0:
            a(f'v_cndmask_b32 {vr(r)}, {vr(r)}, v18, vcc')
    a(f's_cmp_ge_u32 {sWV}, 3')
    a(f's_cselect_b32 {sA}, 1, 0')
    a(f's_mul_i32 {sB}, {sA}, 3')
    a(f's_sub_u32 {sB}, {sWV}, {sB}')
    a(f's_mul_i32 {sC}, {sA}, {G_CH}')
    a(f's_mul_i32 {sD}, {sB}, {16 * G_ROW}')
    a(f's_add_u32 {sC}, {sC}, {sD}')
    a(f'v_mul_u32_u24 v16, {G_ROW}, v2')
    a('v_lshl_add_u32 v16, v3, 4, v16')
    a(f'v_add_u32 {vr(KMA)}, {sC}, v16')
    a(f's_mul_i32 {sC}, {sA}, {E_CH}')
    a(f's_add_u32 {sC}, {sC}, {L_E}')
    a(f'v_add_u32 {vr(KMB)}, {sC}, v16')
    bases = [(0, 4, 128, 132), (256, 384, 512, 516), (1024, 1536, 2048, 2049)]
    steps = [(1, 1, 1, 1), (2, 2, 128, 128), (128, 128, 128, 128)]
    pk2 = lambda x, y: x | (y << 16)
    pk4 = lambda t: t[0] | (t[1] << 8) | (t[2] << 16) | (t[3] << 24)
    for reg, vals in ((sC, [pk2(b[0], b[1]) for b in bases]), (sD, [pk2(b[2], b[3]) for b in bases]),
                      (sE, [pk4(s) for s in steps])):
        a(f's_mov_b32 {reg}, {vals[0]}')
        a(f's_cmp_eq_u32 {sB}, 1')
        a(f's_cselect_b32 {reg}, {vals[1]}, {reg}')
        a(f's_cmp_eq_u32 {sB}, 2')
        a(f's_cselect_b32 {reg}, {vals[2]}, {reg}')
    a('v_cmp_gt_u32 vcc, 2, v3')
    a(f'v_mov_b32 v16, {sD}')
    a(f'v_mov_b32 v17, {sC}')
    a('v_cndmask_b32 v16, v16, v17, vcc')
    a('v_and_b32 v17, 1, v3')
    a('v_lshlrev_b32 v17, 4, v17')
    a('v_bfe_u32 v16, v16, v17, 16')
    a('v_lshlrev_b32 v17, 3, v3')
    a(f'v_bfe_u32 v17, {sE}, v17, 8')
    a('v_lshl_add_u32 v16, v2, 3, v16')
    a(f's_mul_i32 {sC}, {sA}, {KT_CH}')
    a(f's_add_u32 {sC}, {sC}, {L_KT}')
    a(f'v_lshlrev_b32 v16, 1, v16')
    a(f'v_add_u32 {vr(KMD)}, {sC}, v16')
    a('v_lshlrev_b32 v17, 1, v17')
    for r in range(1, 4):
        a(f'v_add_u32 {vr(KMD + r)}, {vr(KMD + r - 1)}, v17')
    a(f's_lshl_b32 {sA}, {sWV}, 12')
    a(f'v_add_u32 v9, {sA}, {vr(vL16)}')
    a('v_lshrrev_b32 v16, 3, v1')
    a('v_cmp_gt_u32 vcc, 6, v16')
    a('v_mov_b32 v17, 0')
    a('v_cndmask_b32 v16, v17, v16, vcc')
    a('v_lshrrev_b32 v17, 1, v16')
    a('v_lshlrev_b32 v17, 9, v17')
    a('v_and_b32 v16, 1, v16')
    a('v_add_u32 v17, v17, v16')
    a(f'v_add_u32 v17, {sCH0}, v17')
    a('v_and_b32 v16, 7, v1')
    a('v_mul_u32_u24 v16, 3072, v16')
    a('v_add_u32 v17, v17, v16')
    a('v_lshlrev_b32 v10, 3, v17')
    a(f's_lshr_b32 {sC}, {sWV}, 2'); a(f's_and_b32 {sD}, {sWV}, 3')
    a(f's_mul_i32 {sA}, {sC}, {H_CH}')
    a(f's_lshl_b32 {sB}, {sD}, 6')
    a(f's_sub_u32 {sA}, {sA}, {sB}')
    a(f's_add_u32 {sA}, {sA}, {L_H + 480 - 256}')
    a('v_lshlrev_b32 v6, 5, v2')
    a('v_lshl_add_u32 v6, v3, 4, v6')
    a(f'v_add_u32 v6, {sA}, v6')
    a(f's_mul_i32 {sA}, {sC}, {CP_CH}')
    a(f's_add_u32 {sA}, {sA}, {sB}')
    a(f's_add_u32 {sA}, {sA}, {L_COPY + 64 - 8}')
    a('v_lshrrev_b32 v7, 2, v2')
    a(f'v_mul_u32_u24 v7, {CP_R}, v7')
    a('v_and_b32 v16, 3, v2')
    a('v_lshl_add_u32 v7, v16, 3, v7')
    a('v_lshlrev_b32 v16, 4, v3')
    a('v_sub_u32 v7, v7, v16')
    a(f'v_add_u32 v7, {sA}, v7')
    a(f's_lshl_b32 {sA}, {sWV}, 13')
    a(f'v_add_u32 v8, {sA}, {vr(vL16)}')
    a('v_lshlrev_b32 v16, 4, v2')
    a('v_lshl_add_u32 v16, v3, 2, v16')
    a(f's_lshl_b32 {sA}, {sWV}, 8')
    a(f'v_add_u32 v16, {sA}, v16')
    a('v_lshlrev_b32 v11, 2, v16')
    a(f'v_add_u32 v11, {L_XC}, v11')
    a('v_lshlrev_b32 v12, 1, v16')
    a(f'v_add_u32 v12, {L_H + 512}, v12')
    a('v_lshrrev_b32 v13, 1, v2')
    a('v_lshlrev_b32 v13, 15, v13')
    a('v_and_b32 v16, 1, v2')
    a('v_lshl_add_u32 v13, v16, 5, v13')
    a('v_and_b32 v16, 1, v3')
    a('v_lshl_add_u32 v13, v16, 6, v13')
    a('v_lshrrev_b32 v16, 1, v3')
    a('v_lshl_add_u32 v13, v16, 4, v13')
    a('s_waitcnt lgkmcnt(0)')
    a(f's_add_u32 {sT}, {sT}, 1')


def role_k():
    a(f's_lshr_b32 {sA}, {sWV}, 1')
    a(f's_add_u32 {sB}, {sCH0}, {sA}')
    a(f's_and_b32 {sC}, {sWV}, 1')
    a(f's_lshl_b32 {sC}, {sC}, 6')
    a(f's_lshl_b32 {sD}, {sB}, 7')
    a(f's_add_u32 {sD}, {sD}, {sC}')
    a(f'v_add_u32 v21, {sD}, v1')
    a('v_lshlrev_b32 v21, 1, v21')
    a(f's_lshl_b32 {sB}, {sB}, 1')
    a(f'v_mov_b32 v22, {sB}')
    for i, s in enumerate((ARE, AIM, BRE, BIM, CRE, CIM)):
        bload(24 + i, 'u16', 21, s)
    bload(30, 'u16', 22, LDT)
    if PRETOUCH:
        a(f'v_lshlrev_b32 v126, {PRETOUCH}, v1')
        a('v_min_u32 v126, ' + str(WS_USED - 4) + ', v126')
        bload(127, 1, 126, WS)
    a(f's_mul_i32 {sB}, {sA}, {G_CH}')
    a(f'v_add_u32 v22, {sC}, v1')
    a('v_lshlrev_b32 v22, 2, v22')
    a(f'v_add_u32 v23, {sB}, v22')
    a(f's_mul_i32 {sB}, {sA}, {E_CH}')
    a(f's_add_u32 {sB}, {sB}, {L_E}')
    a(f'v_add_u32 v22, {sB}, v22')
    precompute()
    swz_issue()
    a('s_waitcnt vmcnt(0)')
    stamp('r_loaded')
    for i in range(7):
        a(f'v_lshlrev_b32 {vr(24 + i)}, 16, {vr(24 + i)}')
    LOG2E = 1.4426950408889634
    hi = struct.unpack('<f', struct.pack('<f', LOG2E))[0]
    lo = LOG2E - hi
    a(f'v_mul_f32 v32, {fconst(hi)}, v30')
    a(f'v_mov_b32 v31, {fconst(hi)}')
    a('v_fma_f32 v33, v30, v31, -v32')
    a(f'v_fmamk_f32 v33, v30, {fconst(lo)}, v33')
    a('v_exp_f32 v32, v32')
    a(f'v_mul_f32 v33, {fconst(0.6931471805599453)}, v33')
    a('v_fma_f32 v32, v32, v33, v32')
    a('v_cvt_pk_bf16_f32 v32, v32, v32')
    a('v_lshlrev_b32 v30, 16, v32')
    a('v_mul_f32 v24, v24, v30')
    a('v_mul_f32 v25, v25, v30')
    a(f'v_mul_f32 v24, {fconst(hi)}, v24')
    a(f'v_mul_f32 v25, {fconst(1.0 / (2 * 3.141592653589793))}, v25')
    a('v_mul_f32 v26, v26, v30')
    a('v_mul_f32 v27, v27, v30')
    cmul(32, 26, 28)
    for d, m in ((34, 1.0), (36, 8.0), (38, 128.0)):
        if m == 1.0:
            a('v_exp_f32 v40, v24'); a('v_fract_f32 v41, v25')
        else:
            a(f'v_mul_f32 v40, {fconst(m)}, v24')
            a(f'v_mul_f32 v41, {fconst(m)}, v25')
            a('v_exp_f32 v40, v40'); a('v_fract_f32 v41, v41')
        a('v_cos_f32 v42, v41')
        a('v_sin_f32 v43, v41')
        a(f'v_mul_f32 {vr(d)}, v40, v42')
        a(f'v_mul_f32 {vr(d + 1)}, v40, v43')
    P = {1: 34, 2: 44, 3: 46, 4: 48, 5: 50, 6: 52, 7: 54}
    cmul(P[2], P[1], P[1])
    cmul(P[3], P[2], P[1])
    cmul(P[4], P[2], P[2])
    cmul(P[5], P[4], P[1])
    cmul(P[6], P[4], P[2])
    cmul(P[7], P[4], P[3])

    def putG(rho, x):
        a(f'v_cvt_pk_bf16_f32 v31, {vr(x)}, -{vr(x + 1)}')
        a(f'ds_write_b32 v23, v31 offset:{rho * G_ROW}')

    def putE(j, x):
        a(f'v_cvt_pk_bf16_f32 v29, {vr(x)}, {vr(x + 1)}')
        a(f'ds_write_b32 v22, v29 offset:{j * G_ROW}')

    rows = {}
    for rho in range(41):
        if rho < 16:
            i, b = rho >> 3, rho & 7
        elif rho < 24:
            i, b = 2 + ((rho - 16) >> 2), 2 * ((rho - 16) & 3)
        elif rho < 32:
            i, b = 4 + ((rho - 24) & 3), 4 * ((rho - 24) >> 2)
        else:
            i, b = 8 + (rho - 32), 0
        rows.setdefault(i, []).append((rho, b))
    a('v_mov_b32 v29, 0x00003f80')
    a('ds_write_b32 v22, v29 offset:0')
    putE(1, 36)
    Ecur = 36
    Q = 32
    for i in range(17):
        for n_, (rho, b) in enumerate(rows[i]):
            if b == 0:
                putG(rho, Q)
            else:
                t = 64 + 2 * (n_ & 1)
                cmul(t, Q, P[b])
                putG(rho, t)
        if i < 16:
            nq = 60 if Q != 60 else 62
            cmul(nq, Q, 38)
            Q = nq
        j = i + 2
        if j < 16:
            ne = 56 if Ecur != 56 else 58
            cmul(ne, Ecur, 36)
            putE(j, ne)
            Ecur = ne
    if not os.environ.get('SWZLATE'):
        a('v_mov_b32 v14, v102')
        swz_dma()


def swz_issue():
    a(f's_lshl_b32 {sA}, s2, 2')
    a(f's_add_u32 {sA}, {sA}, {sWV}')
    a(f's_add_u32 {sA}, {sA}, 128')
    a(f's_cmp_lt_u32 {sA}, 952')
    a(f's_cselect_b32 {sSN}, 4, 0')
    a(f's_cselect_b32 {sA}, {sA}, 128')
    a(f's_mov_b64 s[{TSRD}:{TSRD + 1}], s[{W1}:{W1 + 1}]')
    a(f's_mov_b32 s{TSRD + 2}, 524288')
    a(f's_mov_b32 s{TSRD + 3}, 0x20000')
    a(f's_mov_b32 {sSD}, {WS_W1S}')
    a(f's_mov_b32 {sSS}, 16384')
    a(f's_mov_b32 {sF}, 1024')
    a(f's_mov_b32 {sB}, {sA}')
    a(f's_cmp_ge_u32 {sA}, 128')
    a(f's_cselect_b64 s[{TSRD}:{TSRD + 1}], s[{W2}:{W2 + 1}], s[{TSRD}:{TSRD + 1}]')
    a(f's_cselect_b32 {sSD}, {WS_W2S}, {sSD}')
    a(f's_cselect_b32 {sC}, 128, 0')
    a(f's_sub_u32 {sB}, {sA}, {sC}')
    a(f's_cmp_ge_u32 {sA}, 256')
    a(f's_cselect_b64 s[{TSRD}:{TSRD + 1}], s[{W3}:{W3 + 1}], s[{TSRD}:{TSRD + 1}]')
    a(f's_cselect_b32 s{TSRD + 2}, {512 * F_ * 2}, s{TSRD + 2}')
    a(f's_cselect_b32 {sSD}, {WS_W3S}, {sSD}')
    a(f's_cselect_b32 {sF}, {F_ * 2}, {sF}')
    a(f's_cselect_b32 {sC}, 256, 0')
    a(f's_cselect_b32 {sD}, 1, 0')
    a(f's_cmp_lg_u32 {sD}, 0')
    a(f's_sub_u32 {sC}, {sA}, {sC}')
    a(f's_cmp_lg_u32 {sD}, 0')
    a(f's_cselect_b32 {sB}, {sC}, {sB}')
    a(f's_and_b32 {sC}, {sB}, 15')
    a(f's_lshr_b32 {sD}, {sB}, 4')
    a(f's_mov_b32 {sE}, 16')
    a(f's_cmp_ge_u32 {sA}, 608')
    a(f's_cselect_b64 s[{TSRD}:{TSRD + 1}], s[{W4}:{W4 + 1}], s[{TSRD}:{TSRD + 1}]')
    a(f's_cselect_b32 {sSD}, {WS_W4S}, {sSD}')
    a(f's_cselect_b32 {sF}, 1024, {sF}')
    a(f's_cselect_b32 {sE}, 43, {sE}')
    a(f's_cselect_b32 {sSS}, {43 * 1024}, {sSS}')
    a(f's_sub_u32 {sB}, {sA}, 608')
    a(f's_lshr_b32 {sSB}, {sB}, 3')
    a(f's_and_b32 {sB}, {sB}, 7')
    a(f's_cmp_ge_u32 {sA}, 608')
    a(f's_cselect_b32 {sC}, {sSB}, {sC}')
    a(f's_cselect_b32 {sD}, {sB}, {sD}')
    a(f's_cselect_b32 {sB}, 0, {sD}')
    a(f's_cmp_eq_u32 {sB}, 21')
    a(f's_cselect_b32 {sB}, 2, 4')
    a(f's_min_u32 {sSN}, {sSN}, {sB}')
    a(f's_lshl_b32 {sB}, {sD}, 2')
    a(f's_mul_i32 {sB}, {sB}, {sE}')
    a(f's_add_u32 {sB}, {sB}, {sC}')
    a(f's_lshl_b32 {sB}, {sB}, 10')
    a(f's_add_u32 {sSD}, {sSD}, {sB}')
    a(f's_mul_i32 {sC}, {sC}, {sF}')
    a(f's_lshl_b32 {sC}, {sC}, 5')
    a(f's_lshl_b32 {sD}, {sD}, 7')
    a(f's_add_u32 {sC}, {sC}, {sD}')
    a('v_lshrrev_b32 v100, 3, v1')
    a(f'v_mul_lo_u32 v100, v100, {sF}')
    a('v_and_b32 v101, 7, v1')
    a('v_lshl_add_u32 v102, v101, 4, v100')
    a(f's_lshl_b32 {sB}, {sWV}, 12')
    a(f's_add_u32 {sSB}, {sB}, {L_STG}')
    a(f's_lshl_b32 {sSR}, {sF}, 3')
    a(f's_mov_b32 {sSO}, {sC}')


def swz_dma():
    a(f's_mov_b32 {sC}, {sSO}')
    for q in range(4):
        if q:
            a(f's_add_u32 {sC}, {sC}, {sSR}')
        a(f's_add_u32 {sB}, {sSB}, {q * 1024}')
        dma(4, 14, TSRD, sB, soff=sC)


def swz_finish():
    a('v_lshrrev_b32 v46, 2, v2')
    a('v_lshl_add_u32 v46, v3, 3, v46')
    a('v_lshlrev_b32 v46, 7, v46')
    a('v_and_b32 v47, 3, v2')
    a('v_lshl_add_u32 v46, v47, 3, v46')
    a(f'v_add_u32 v46, {sSB}, v46')
    for nt in range(4):
        a(f'ds_read_b64_tr_b16 {vr(48 + 4 * nt, 2)}, v46 offset:{32 * nt}')
        a(f'ds_read_b64_tr_b16 {vr(50 + 4 * nt, 2)}, v46 offset:{32 * nt + 512}')
    a('s_waitcnt lgkmcnt(0)')
    a(f's_mov_b32 {sA}, {sSD}')
    a(f's_mov_b32 {sB}, 0x7ff00000')
    for nt in range(4):
        a(f's_cmp_gt_u32 {sSN}, {nt}')
        a(f's_cselect_b32 {sC}, {sA}, {sB}')
        bstore(48 + 4 * nt, 4, vL16, WS, soff=sC, mods='sc1')
        a(f's_add_u32 {sA}, {sA}, {sSS}')


def role_stats():
    a(f's_lshl_b32 {sA}, s2, 13')
    a(f's_add_u32 {sB}, {sA}, 4096')
    for i in range(8):
        bload(24 + 4 * i, 4, vL16, U, imm=(i & 3) * 1024, soff=(sA if i < 4 else sB))
    precompute()
    a('v_mov_b32 v23, 0x3f803f80')
    a('s_waitcnt vmcnt(7)')
    stamp('r_loaded')
    for i in range(8):
        a(f's_waitcnt vmcnt({7 - i})')
        b = 24 + 4 * i
        a(f'v_dot2_f32_bf16 {vr(60 + i)}, {vr(b)}, v23, 0')
        a(f'v_dot2_f32_bf16 {vr(68 + i)}, {vr(b)}, {vr(b)}, 0')
        for k in range(1, 4):
            a(f'v_dot2c_f32_bf16 {vr(60 + i)}, {vr(b + k)}, v23')
            a(f'v_dot2c_f32_bf16 {vr(68 + i)}, {vr(b + k)}, {vr(b + k)}')
    for base in (60, 68):
        for i in range(4):
            a(f'v_permlane32_swap_b32 {vr(base + i)}, {vr(base + i + 4)}')
        for i in range(4):
            a(f'v_add_f32 {vr(base + i)}, {vr(base + i)}, {vr(base + i + 4)}')
    for base in (60, 68):
        for i in range(2):
            a(f'v_permlane16_swap_b32 {vr(base + i)}, {vr(base + i + 2)}')
        for i in range(2):
            a(f'v_add_f32 {vr(base + i)}, {vr(base + i)}, {vr(base + i + 2)}')
    for sh in (1, 2, 4, 8):
        for r in (60, 61, 68, 69):
            a(f'v_add_f32_dpp {vr(r)}, {vr(r)}, {vr(r)} row_ror:{sh} row_mask:0xf bank_mask:0xf')
    for p in range(2):
        S, Q = 60 + p, 68 + p
        d = 72 + 4 * p
        a(f'v_mul_f32 {vr(S)}, {fconst(1.0 / 512)}, {vr(S)}')
        a(f'v_mul_f32 {vr(Q)}, {fconst(1.0 / 512)}, {vr(Q)}')
        a(f'v_fma_f32 {vr(Q)}, -{vr(S)}, {vr(S)}, {vr(Q)}')
        a(f'v_max_f32 {vr(Q)}, 0, {vr(Q)}')
        a(f'v_add_f32 {vr(Q)}, {fconst(1e-5)}, {vr(Q)}')
        a(f'v_rsq_f32 {vr(d)}, {vr(Q)}')
        a(f'v_mov_b32 {vr(d + 1)}, {sT}')
        a(f'v_mov_b32 {vr(d + 3)}, {sT}')
        a(f'v_mul_f32 {vr(d + 2)}, {vr(S)}, {vr(d)}')
    a(f's_lshl_b32 {sA}, s2, 7')
    a(f's_add_u32 {sA}, {sA}, {WS_STATS}')
    a('v_lshlrev_b32 v21, 5, v3')
    save_exec_mask(0x0001000100010001)
    bstore(72, 4, 21, WS, soff=sA, mods='sc1')
    bstore(76, 4, 21, WS, imm=16, soff=sA, mods='sc1')
    restore_exec()
    stamp('r_pub')


L_SIL = 139264


def role_mod():
    lskip = a.newlabel('L_nomod'); ldone = a.newlabel('L_moddone')
    a('s_cmp_ge_u32 s2, 192')
    a(f's_cbranch_scc1 {lskip}')
    a(f's_mul_i32 {sA}, {sJ}, 43')
    a(f's_lshr_b32 {sA}, {sA}, 8')
    a(f's_mul_i32 {sB}, {sA}, 6')
    a(f's_sub_u32 {sB}, {sJ}, {sB}')
    a(f's_lshl_b32 {sB}, {sB}, 3')
    a(f's_add_u32 {sNV}, {sB}, {sX}')
    a(f's_lshl_b32 {sA}, {sA}, 1')
    a(f's_add_u32 {sA}, {sA}, {sWV}')
    a(f's_sub_u32 {sNT3}, {sA}, 5')
    a('v_lshlrev_b32 v22, 1, v1')
    a(f's_lshl_b32 {sA}, {sNT3}, 7')
    bload(24, 'u16', 22, CC, soff=sA)
    a('v_lshrrev_b32 v21, 3, v1')
    a('v_mul_u32_u24 v23, 6144, v21')
    a('v_and_b32 v40, 7, v1')
    a('v_lshl_add_u32 v23, v40, 4, v23')
    a(f's_mul_i32 {sA}, {sNT3}, {64 * 6144}')
    a(f's_lshl_b32 {sB}, {sNV}, 7')
    a(f's_add_u32 {sA}, {sA}, {sB}')
    for i in range(8):
        if i:
            a(f's_add_u32 {sA}, {sA}, {8 * 6144}')
        bload(64 + 4 * i, 4, 23, WMOD, soff=sA)
    precompute()
    a('s_waitcnt vmcnt(8)')
    stamp('r_loaded')
    a('v_lshlrev_b32 v24, 16, v24')
    a(f'v_mul_f32 v58, {fconst(-1.4426950408889634)}, v24')
    a('v_exp_f32 v58, v58')
    a('v_add_f32 v58, 1.0, v58')
    a('v_rcp_f32 v58, v58')
    a('v_mul_f32 v58, v58, v24')
    a('v_cvt_pk_bf16_f32 v58, v58, v58')
    a('v_and_b32 v56, 0xffff, v58')
    a('v_and_b32 v57, 0xffff0000, v58')
    a(f's_sub_u32 {sA}, {sWV}, 5')
    a(f's_lshl_b32 {sA}, {sA}, 9')
    a(f's_add_u32 {sA}, {sA}, {L_SIL}')
    a('v_and_b32 v25, 7, v1')
    a('v_lshlrev_b32 v25, 5, v25')
    a('v_lshrrev_b32 v26, 3, v1')
    a('v_lshl_add_u32 v25, v26, 2, v25')
    a(f'v_add_u32 v25, {sA}, v25')
    a('ds_write_b32 v25, v56')
    a('ds_write_b32 v25, v57 offset:256')
    a(f'v_lshl_add_u32 v25, v21, 5, {sA}')
    a('s_waitcnt lgkmcnt(0)')
    a('ds_read_b128 v[24:27], v25') if False else None
    a('ds_read_b128 v[28:31], v25')
    a('ds_read_b128 v[32:35], v25 offset:16')
    a('ds_read_b128 v[40:43], v25 offset:256')
    a('ds_read_b128 v[44:47], v25 offset:272')
    a('s_waitcnt lgkmcnt(0)')
    ACC = 48
    for i in range(8):
        a(f's_waitcnt vmcnt({7 - i})')
        b = 64 + 4 * i
        for k in range(4):
            if i == 0:
                a(f'v_dot2_f32_bf16 {vr(ACC + 2 * k)}, {vr(b + k)}, {vr(28 + i)}, 0')
                a(f'v_dot2_f32_bf16 {vr(ACC + 1 + 2 * k)}, {vr(b + k)}, {vr(40 + i)}, 0')
            else:
                a(f'v_dot2c_f32_bf16 {vr(ACC + 2 * k)}, {vr(b + k)}, {vr(28 + i)}')
                a(f'v_dot2c_f32_bf16 {vr(ACC + 1 + 2 * k)}, {vr(b + k)}, {vr(40 + i)}')
    for i in range(4):
        a(f'v_permlane32_swap_b32 {vr(ACC + i)}, {vr(ACC + 4 + i)}')
    for i in range(4):
        a(f'v_add_f32 {vr(ACC + i)}, {vr(ACC + i)}, {vr(ACC + 4 + i)}')
    for i in range(2):
        a(f'v_permlane16_swap_b32 {vr(ACC + i)}, {vr(ACC + 2 + i)}')
    for i in range(2):
        a(f'v_add_f32 {vr(ACC + i)}, {vr(ACC + i)}, {vr(ACC + 2 + i)}')
    for r in (ACC, ACC + 1):
        a(f'v_add_f32_dpp {vr(r)}, {vr(r)}, {vr(r)} row_ror:8 row_mask:0xf bank_mask:0xf')
    a('v_and_b32 v21, 1, v3')
    a('v_lshlrev_b32 v21, 1, v21')
    a('v_lshrrev_b32 v22, 1, v3')
    a('v_lshl_add_u32 v21, v22, 2, v21')
    a('v_and_b32 v22, 7, v1')
    a('v_lshl_add_u32 v21, v22, 3, v21')
    a('v_lshlrev_b32 v21, 3, v21')
    a(f's_mul_i32 {sA}, {sNT3}, 3072')
    a(f's_lshl_b32 {sB}, {sNV}, 6')
    a(f's_add_u32 {sA}, {sA}, {sB}')
    a(f's_lshl_b32 {sA}, {sA}, 3')
    a(f's_add_u32 {sA}, {sA}, {WS_MODG}')
    a(f'v_mov_b32 {vr(ACC + 2)}, {vr(ACC + 1)}')
    a(f'v_mov_b32 {vr(ACC + 1)}, {sT}')
    a(f'v_mov_b32 {vr(ACC + 3)}, {sT}')
    save_exec_mask(0x00ff00ff00ff00ff)
    bstore(ACC, 4, 21, WS, soff=sA, mods='sc1')
    restore_exec()
    stamp('r_pub')
    a(f's_branch {ldone}')
    a.label(lskip)
    precompute()
    a.label(ldone)


def role_xt():
    a('v_lshlrev_b32 v21, 10, v1')
    a(f's_lshl_b32 {sA}, {sJ}, 16')
    a(f's_lshl_b32 {sB}, {sX}, 7')
    a(f's_add_u32 {sA}, {sA}, {sB}')
    for i in range(8):
        bload(24 + 4 * i, 4, 21, U, imm=16 * i, soff=sA)
    precompute()
    for k in range(4):
        a(f'v_mov_b32 {vr(57 + 2 * k)}, {sT}')
    a('v_lshlrev_b32 v21, 3, v1')
    a(f's_lshl_b32 {sA}, {sX}, 19')
    a(f's_lshl_b32 {sB}, {sJ}, 9')
    a(f's_add_u32 {sA}, {sA}, {sB}')
    a(f's_add_u32 {sA}, {sA}, {WS_XT}')
    for p in range(32):
        if p % 4 == 0:
            a(f's_waitcnt vmcnt({7 - p // 4 + p})')
            if p == 0:
                stamp('r_loaded')
        t = 56 + 2 * (p % 4)
        a(f'v_mov_b32 {vr(t)}, {vr(24 + p)}')
        bstore(t, 2, 21, WS, soff=sA, mods='sc1')
        if p < 31:
            a(f's_add_u32 {sA}, {sA}, 16384')
    stamp('r_pub')


def phase_a():
    lk = 'L_roleK'; l56 = 'L_role56'; l7 = 'L_role7'; lj = 'L_A_join'
    stamp('entry')
    a(f's_cmp_lt_u32 {sWV}, 4')
    a(f's_cbranch_scc1 {lk}')
    a('s_setprio 2')
    a(f's_cmp_eq_u32 {sWV}, 7')
    a(f's_cbranch_scc1 {l7}')
    a(f's_cmp_ge_u32 {sWV}, 5')
    a(f's_cbranch_scc1 {l56}')
    role_stats()
    a(f's_branch {lj}')
    a.label(l56)
    role_mod()
    a(f's_branch {lj}')
    a.label(l7)
    role_xt()
    a(f's_branch {lj}')
    a.label(lk)
    role_k()
    a.label(lj)
    a('s_setprio 0')
    for k in range(4):
        a(f'v_mov_b32 {vr(24 + k)}, 0')
    a('v_lshrrev_b32 v21, 5, v0')
    a(f'v_mul_u32_u24 v21, {H_CH}, v21')
    a('v_and_b32 v22, 31, v0')
    a('v_lshl_add_u32 v21, v22, 4, v21')
    a(f'v_add_u32 v21, {L_H}, v21')
    a('v_subrev_u32 v22, 64, v0')
    a('v_lshrrev_b32 v23, 1, v22')
    a(f'v_mul_u32_u24 v23, {CP_R}, v23')
    a('v_and_b32 v22, 1, v0')
    a('v_lshl_add_u32 v23, v22, 4, v23')
    a(f'v_add_u32 v23, {L_COPY}, v23')
    a('v_cmp_gt_u32 vcc, 64, v0')
    a('v_cndmask_b32 v21, v23, v21, vcc')
    a(f'v_mul_u32_u24 v22, {KT_CH}, v22')
    a(f'v_add_u32 v22, {L_KT + 2 * KT_ZERO}, v22')
    lz = a.newlabel('L_z')
    a(f's_cmp_ge_u32 {sWV}, 2')
    a(f's_cbranch_scc1 {lz}')
    a('v_cmp_gt_u32 vcc, 80, v0')
    a(f's_and_saveexec_b64 s[{sX0}:{sX0 + 1}], vcc')
    a('ds_write_b128 v21, v[24:27]')
    a('ds_write_b16 v22, v24')
    restore_exec()
    a.label(lz)
    a('s_waitcnt lgkmcnt(0)')
    stamp('role_done')
    a('s_barrier')
    stamp('B1')
    lsk = a.newlabel('L_kmf')
    a(f's_cmp_ge_u32 {sWV}, 6')
    a(f's_cbranch_scc1 {lsk}')
    for ks in range(8):
        a(f'ds_read_b128 {vr(24 + 8 * ks, 4)}, {vr(KMA)} offset:{64 * ks}')
        a(f'ds_read_b128 {vr(28 + 8 * ks, 4)}, {vr(KMB)} offset:{64 * ks}')
    for ks in range(8):
        a(f's_waitcnt lgkmcnt({14 - 2 * ks})')
        acc = 88 + 4 * (ks & 1)
        mfma(acc, 24 + 8 * ks, 28 + 8 * ks, None if ks < 2 else acc)
    for k in range(4):
        a(f'v_add_f32 {vr(88 + k)}, {vr(88 + k)}, {vr(92 + k)}')
    a('v_cvt_pk_bf16_f32 v96, v88, v89')
    a('v_cvt_pk_bf16_f32 v97, v90, v91')
    a(f'ds_write_b16 {vr(KMD)}, v96')
    a(f'ds_write_b16_d16_hi {vr(KMD + 1)}, v96')
    a(f'ds_write_b16 {vr(KMD + 2)}, v97')
    a(f'ds_write_b16_d16_hi {vr(KMD + 3)}, v97')
    a('s_waitcnt lgkmcnt(0)')
    a.label(lsk)
    a('s_barrier')
    stamp('B2')
    for d in range(1, 12):
        a(f'ds_read_u16 {vr(24 + d)}, {vr(EXA + d)}')
    a(f's_lshr_b32 {sA}, {sWV}, 2')
    a(f's_mul_i32 {sA}, {sA}, {CP_CH}')
    a(f's_add_u32 {sA}, {sA}, {L_COPY + 32}')
    a('v_and_b32 v22, 255, v0')
    a(f'v_lshl_add_u32 v21, v22, 4, {sA}')
    a('s_waitcnt lgkmcnt(0)')
    for r in range(4):
        d = 36 + 4 * r
        for p in range(4):
            a(f'v_lshl_or_b32 {vr(d + p)}, {vr(24 + 5 + 2 * p - r)}, 16, {vr(24 + 4 + 2 * p - r)}')
        a(f'ds_write_b128 v21, {vr(d, 4)} offset:{r * CP_R}')
    if os.environ.get('SWZEARLY'):
        lsw = a.newlabel('L_swzfin')
        a(f's_cmp_ge_u32 {sWV}, 4')
        a(f's_cbranch_scc1 {lsw}')
        a('s_waitcnt vmcnt(0)')
        swz_finish()
        a.label(lsw)
    stamp('expanded')


def spin_guard(label_retry):
    a(f's_add_u32 {sSPIN}, {sSPIN}, 1')
    a(f's_cmp_lt_u32 {sSPIN}, {SPIN_MAX}')
    a(f's_cbranch_scc1 {label_retry}')


def tags_check(tags, lo, hi):
    a(f'v_min3_u32 {vr(lo)}, {vr(tags[0])}, {vr(tags[1])}, {vr(tags[2])}')
    a(f'v_max3_u32 {vr(hi)}, {vr(tags[0])}, {vr(tags[1])}, {vr(tags[2])}')
    k = 3
    while k < len(tags):
        t2 = tags[k + 1] if k + 1 < len(tags) else tags[k]
        a(f'v_min3_u32 {vr(lo)}, {vr(lo)}, {vr(tags[k])}, {vr(t2)}')
        a(f'v_max3_u32 {vr(hi)}, {vr(hi)}, {vr(tags[k])}, {vr(t2)}')
        k += 2
    a(f'v_cmp_ne_u32 vcc, {sT}, {vr(lo)}')
    a(f'v_cmp_ne_u32 s[{sX0}:{sX0 + 1}], {sT}, {vr(hi)}')
    a('s_nop 0')
    a(f's_or_b64 vcc, vcc, s[{sX0}:{sX0 + 1}]')


def phase_b():
    a('v_mov_b32 v21, v9')
    a('v_mov_b32 v22, v10')
    a(f's_mov_b32 {sB}, {WS_STATS}')
    a('v_lshrrev_b32 v20, 1, v21')
    a(f's_lshl_b32 {sD}, {sX}, 5'); a(f's_add_u32 {sD}, {sD}, {sJ}'); a(f's_lshl_b32 {sD}, {sD}, 14')
    a(f's_add_u32 {sD}, {sD}, {WS_XT}')
    if not NOSCOUT:
        lsk = a.newlabel('L_scoutskip'); lsp = a.newlabel('L_scout'); lso = a.newlabel('L_scoutok')
        a(f's_cmp_lg_u32 {sWV}, 0')
        a(f's_cbranch_scc1 {lsk}')
        a('v_lshlrev_b32 v24, 7, v1')
        a('v_and_b32 v25, 31, v1')
        a('v_lshlrev_b32 v25, 9, v25')
        a(f's_mov_b32 {sSPIN}, 0')
        a.label(lsp)
        for i in range(4):
            a(f's_mov_b32 {sC}, {WS_STATS + 8192 * i}')
            bload(28 + i, 1, 24, WS, imm=4, soff=sC, mods='sc1')
        bload(32, 1, 25, WS, imm=4, soff=sD, mods='sc1')
        a(f's_mov_b32 {sC}, {WS_MODG}')
        bload(33, 1, 22, WS, imm=4, soff=sC, mods='sc1')
        a('s_waitcnt vmcnt(0)')
        tags_check([28, 29, 30, 31, 32, 33], 34, 35)
        a(f's_cbranch_vccz {lso}')
        spin_guard(lsp)
        a.label(lso)
        a.label(lsk)
        a('s_barrier')
        stamp('scout')
    a(f's_mov_b32 {sSPIN}, 0')
    lp = 'L_S1_poll'; lok = 'L_S1_ok'
    a.label(lp)
    for i in range(4):
        bload(44 + 4 * i, 4, 21, WS, imm=1024 * i, soff=sB, mods='sc1')
        bload(88 + 2 * i, 2, 20, WS, imm=512 * i, soff=sD, mods='sc1')
    a(f's_mov_b32 {sC}, {WS_MODG}')
    bload(60, 2, 22, WS, soff=sC, mods='sc1')
    a('s_waitcnt vmcnt(0)')
    tags = [45, 47, 49, 51, 53, 55, 57, 59, 61, 89, 91, 93, 95]
    if 'noxt' in XP: tags = [45, 47, 49, 51, 53, 55, 57, 59, 61]
    if 'nomod' in XP: tags = [45, 47, 49, 51, 53, 55, 57, 59, 89, 91, 93, 95]
    if 'nostat' in XP: tags = [61, 89, 91, 93, 95]
    tags_check(tags, 84, 85)
    a(f's_cbranch_vccz {lok}')
    spin_guard(lp)
    a.label(lok)
    stamp('S1ok')
    if os.environ.get('SWZLATE'):
        lsw = a.newlabel('L_swzdma')
        a(f's_cmp_ge_u32 {sWV}, 4')
        a(f's_cbranch_scc1 {lsw}')
        a('v_mov_b32 v14, v102')
        swz_dma()
        a.label(lsw)
    a('v_lshrrev_b32 v23, 2, v21')
    a(f'v_add_u32 v23, {L_XC}, v23')
    for i in range(4):
        a(f'ds_write_b32 v23, {vr(88 + 2 * i)} offset:{256 * i}')
    a('v_add_f32_dpp v60, v60, v60 quad_perm:[1,0,3,2] row_mask:0xf bank_mask:0xf')
    a('v_add_f32_dpp v60, v60, v60 quad_perm:[2,3,0,1] row_mask:0xf bank_mask:0xf')
    a('v_add_f32_dpp v60, v60, v60 row_half_mirror row_mask:0xf bank_mask:0xf')
    for i, dst in enumerate((60, 62, 64, 66, 68, 70)):
        a(f'v_readlane_b32 s{64 + i}, v60, {8 * i}')
    for i, dst in enumerate((60, 62, 64, 66, 68, 70)):
        a(f'v_mov_b32 {vr(dst)}, s{64 + i}')
    a('v_add_f32 v64, 1.0, v64'); a('v_add_f32 v66, 1.0, v66')
    a(f's_lshr_b32 {sHI}, {sWV}, 2'); a(f's_and_b32 {sLO}, {sWV}, 3')
    a(f's_lshl_b32 {sA}, {sCH0}, 1')
    a(f'v_mov_b32 v77, {sA}')
    bload(76, 1, 77, DSK)
    for i in range(4):
        r, mr = 44 + 4 * i, 46 + 4 * i
        a(f'v_lshlrev_b32 v80, 16, {vr(88 + 2 * i)}')
        a(f'v_and_b32 v81, 0xffff0000, {vr(88 + 2 * i)}')
        a(f'v_fma_f32 v80, v80, {vr(r)}, -{vr(mr)}')
        a(f'v_fma_f32 v81, v81, {vr(r)}, -{vr(mr)}')
        a('v_fma_f32 v80, v80, v64, v60')
        a('v_fma_f32 v81, v81, v66, v62')
        a(f'v_cvt_pk_bf16_f32 {vr(96 + i)}, v80, v81')
    a('v_lshrrev_b32 v23, 3, v21')
    a(f'v_add_u32 v23, {L_H + 512}, v23')
    for i in range(4):
        a(f'ds_write_b16 v23, {vr(96 + i)} offset:{128 * i}')
        a(f'ds_write_b16_d16_hi v23, {vr(96 + i)} offset:{H_CH + 128 * i}')
    mod_final_issue()
    if not os.environ.get('SWZEARLY') and not os.environ.get('SWZLATE'):
        lsw = a.newlabel('L_swzfin')
        a(f's_cmp_ge_u32 {sWV}, 4')
        a(f's_cbranch_scc1 {lsw}')
        swz_finish()
        a.label(lsw)
    a('s_waitcnt lgkmcnt(0)')
    a('s_barrier')
    stamp('B3')
    conv_touches()
    BF = 96; AF = 160; ACC = 224

    def ldA(i):
        r = AF + 4 * i
        a(f'ds_read_b64_tr_b16 {vr(r, 2)}, v7 offset:{256 * i + 8}')
        a(f'ds_read_b64_tr_b16 {vr(r + 2, 2)}, v7 offset:{256 * i}')

    def ldB(u):
        a(f'ds_read_b128 {vr(BF + 4 * u, 4)}, v6 offset:{256 * u}')
    seq = ['A0', 'B1', 'B3', 'B5', 'B7', 'B9', 'B11', 'B13', 'B15', 'A1', 'B0', 'B2', 'B4', 'B6', 'B8', 'B10', 'B12', 'B14'] + \
          [f'A{i}' for i in range(2, 16)]
    pos = {}
    n = 0
    for s_ in seq:
        n += 2 if s_[0] == 'A' else 1
        pos[s_] = n
    total = n
    issued = 0
    it = iter(seq)

    def issue_until(cnt):
        nonlocal issued
        while issued < min(cnt, total):
            s_ = next(it)
            if s_[0] == 'A':
                ldA(int(s_[1:])); issued += 2
            else:
                ldB(int(s_[1:])); issued += 1
    writes = 0
    issue_until(12)
    order = []
    stream = []
    q = []
    for s_ in seq:
        q += [s_] * (2 if s_[0] == 'A' else 1)
    ops = list(q[:issued])
    for i in range(16):
        nmin = i // 2 if i >= 1 else 0
        for nn in range(nmin, 8):
            u = 2 * nn - i + 1
            needs = [f'A{i}', f'B{u}']
            last_needed = max(idx for idx, o in enumerate(q) if o in needs)
            tgt = max(last_needed + 1, min(total, len([o for o in ops if o != 'W']) + 2))
            while len([o for o in ops if o != 'W']) < tgt:
                before = issued
                issue_until(issued + 1)
                ops += q[before:issued]
            lastidx = max(idx for idx, o in enumerate(ops) if o in needs)
            pend = len(ops) - 1 - lastidx
            key = ('wait', pend)
            if not hasattr(phase_b, 'done') or True:
                done_upto = getattr(phase_b, 'done_upto', -1)
                if lastidx > done_upto:
                    a(f's_waitcnt lgkmcnt({min(pend, 15)})')
                    phase_b.done_upto = lastidx if pend <= 15 else len(ops) - 1 - 15
            mfma(ACC + 4 * nn, AF + 4 * i, BF + 4 * u, None if i == 0 else ACC + 4 * nn)
        if os.environ.get('SWZLATE') and i == int(os.environ['SWZLATE']):
            lsw = a.newlabel('L_swzfin')
            a(f's_cmp_ge_u32 {sWV}, 4')
            a(f's_cbranch_scc1 {lsw}')
            a('s_waitcnt vmcnt(0)')
            swz_finish()
            a.label(lsw)
        if i >= 3 and i % 2 == 1:
            nn = (i - 1) // 2 - 1
            a(f'ds_write_b128 v8, {vr(ACC + 4 * nn, 4)} offset:{1024 * nn}')
            ops.append('W')
    a(f'ds_write_b128 v8, {vr(ACC + 28, 4)} offset:{1024 * 7}')
    mod_final_finish()
    a('s_waitcnt lgkmcnt(0)')
    a('s_barrier')
    stamp('B4')

    a(f's_lshl_b32 {sA}, {sWV}, 10')
    a(f'v_add_u32 v23, {sA}, {vr(vL16)}')
    for c in range(2):
        for qq in range(4):
            a(f'ds_read_b128 {vr(96 + 16 * c + 4 * qq, 4)}, v23 offset:{32768 * c + 8192 * qq}')
    a('ds_read_b128 v[128:131], v11')
    a('ds_read_b64 v[136:137], v12')
    a(f'ds_read_b64 v[138:139], v12 offset:{H_CH}')
    a(f's_lshl_b32 {sA}, {sWV}, 18')
    a(f's_lshl_b32 {sB}, {sCH0}, 6')
    a(f's_add_u32 {sA}, {sA}, {sB}')
    a(f's_add_u32 {sE}, {sA}, {WS_X2B}')
    a('s_waitcnt vmcnt(0)')
    a('v_lshlrev_b32 v77, 16, v76')
    a('v_and_b32 v76, 0xffff0000, v76')
    a('s_waitcnt lgkmcnt(0)')
    for c in range(2):
        y = 96 + 16 * c
        for k in range(0, 4, 2):
            a(f'v_pk_add_f32 {vr(y + k, 2)}, {vr(y + k, 2)}, {vr(y + 4 + k, 2)}')
            a(f'v_pk_add_f32 {vr(y + 8 + k, 2)}, {vr(y + 8 + k, 2)}, {vr(y + 12 + k, 2)}')
            a(f'v_pk_add_f32 {vr(y + k, 2)}, {vr(y + k, 2)}, {vr(y + 8 + k, 2)}')
        dsk = 77 if c == 0 else 76
        ga = 68 if c == 0 else 70
        for k in range(4):
            hreg = 136 + 2 * c + (k >> 1)
            if k & 1:
                a(f'v_and_b32 v26, 0xffff0000, {vr(hreg)}')
            else:
                a(f'v_lshlrev_b32 v26, 16, {vr(hreg)}')
            a(f'v_fma_f32 {vr(y + k)}, v26, {vr(dsk)}, {vr(y + k)}')
            if c == 0:
                a(f'v_lshlrev_b32 v27, 16, {vr(128 + k)}')
            else:
                a(f'v_and_b32 v27, 0xffff0000, {vr(128 + k)}')
            a(f'v_fma_f32 {vr(y + k)}, {vr(ga)}, {vr(y + k)}, v27')
        a(f'v_cvt_pk_bf16_f32 {vr(28 + 2 * c)}, {vr(y)}, {vr(y + 1)}')
        a(f'v_cvt_pk_bf16_f32 {vr(29 + 2 * c)}, {vr(y + 2)}, {vr(y + 3)}')
    a('v_permlane16_swap_b32 v28, v30')
    a('v_permlane16_swap_b32 v29, v31')
    bstore(28, 4, 13, WS, soff=sE, mods='sc1')
    a('s_waitcnt vmcnt(0)')
    stamp('x2stored')
    a('s_barrier')
    set_flag(WS_F2, 's2')


def mod_final_issue():
    ls = a.newlabel('L_modf')
    a(f's_cmp_lg_u32 {sWV}, 7')
    a(f's_cbranch_scc1 {ls}')
    a('v_lshrrev_b32 v14, 3, v1')
    a(f's_mul_i32 {sA}, s2, 12')
    a(f'v_add_u32 v14, {sA}, v14')
    a('v_and_b32 v15, 7, v1')
    a('v_mul_u32_u24 v15, 3072, v15')
    a('v_add_u32 v15, v15, v14')
    a('v_lshlrev_b32 v24, 3, v15')
    a('v_lshrrev_b32 v14, 3, v1')
    a('v_and_b32 v15, 3, v14')
    a('v_sub_u32 v14, v15, v14')
    a('v_add_u32 v14, 8, v14')
    a('v_lshl_add_u32 v25, v14, 3, v24')
    a(f's_mov_b32 {sC}, {WS_MODG}')
    bload(26, 2, 24, WS, soff=sC, mods='sc1')
    bload(28, 2, 25, WS, soff=sC, mods='sc1')
    a.label(ls)


def mod_final_finish():
    ls = a.newlabel('L_modf'); lp = a.newlabel('L_modp'); lok = a.newlabel('L_modok')
    a(f's_cmp_lg_u32 {sWV}, 7')
    a(f's_cbranch_scc1 {ls}')
    a('s_waitcnt vmcnt(0)')
    tags_check([27, 29, 29], 30, 31)
    a(f's_cbranch_vccz {lok}')
    a(f's_mov_b32 {sSPIN}, 0')
    a.label(lp)
    a(f's_mov_b32 {sC}, {WS_MODG}')
    bload(26, 2, 24, WS, soff=sC, mods='sc1')
    bload(28, 2, 25, WS, soff=sC, mods='sc1')
    a('s_waitcnt vmcnt(0)')
    tags_check([27, 29, 29], 30, 31)
    a(f's_cbranch_vccz {lok}')
    spin_guard(lp)
    a.label(lok)
    for r in (26, 28):
        a(f'v_add_f32_dpp {vr(r)}, {vr(r)}, {vr(r)} quad_perm:[1,0,3,2] row_mask:0xf bank_mask:0xf')
        a(f'v_add_f32_dpp {vr(r)}, {vr(r)}, {vr(r)} quad_perm:[2,3,0,1] row_mask:0xf bank_mask:0xf')
        a(f'v_add_f32_dpp {vr(r)}, {vr(r)}, {vr(r)} row_half_mirror row_mask:0xf bank_mask:0xf')
    a('v_lshrrev_b32 v14, 3, v1')
    a('v_lshlrev_b32 v14, 2, v14')
    a(f's_mul_i32 {sA}, s2, 48')
    a(f's_add_u32 {sA}, {sA}, {WS_MODF}')
    save_exec_mask(0x0101010101010101)
    bstore(26, 1, 14, WS, soff=sA, mods='sc1')
    a('s_mov_b32 exec_hi, 0')
    bstore(28, 1, 14, WS, imm=32, soff=sA, mods='sc1')
    restore_exec()
    a.label(ls)


def wfrags(dst, base, n, nt_sgpr=None, stride=16, first=0):
    if nt_sgpr is None:
        a(f's_lshl_b32 {sA}, {sCQ}, 3')
        a(f's_add_u32 {sA}, {sA}, {sWV}')
    else:
        a(f's_mov_b32 {sA}, {nt_sgpr}')
    a(f's_mul_i32 {sA}, {sA}, {stride * 1024}')
    a(f's_add_u32 {sA}, {sA}, {base + first * 1024}')
    for k in range(n):
        if k and k % 4 == 0:
            a(f's_add_u32 {sA}, {sA}, 4096')
        bload(dst + 4 * k, 4, vL16, WS, imm=(k % 4) * 1024, soff=sA, mods='sc1')


def wfrag_base(sreg, base, nt_sgpr=None, stride=16, first=0):
    if nt_sgpr is None:
        a(f's_lshl_b32 {sreg}, {sCQ}, 3')
        a(f's_add_u32 {sreg}, {sreg}, {sWV}')
    else:
        a(f's_mov_b32 {sreg}, {nt_sgpr}')
    a(f's_mul_i32 {sreg}, {sreg}, {stride * 1024}')
    a(f's_add_u32 {sreg}, {sreg}, {base + first * 1024}')


def wfrag_one(dst, sreg, k):
    if k and k % 4 == 0:
        a(f's_add_u32 {sreg}, {sreg}, 4096')
    bload(dst + 4 * k, 4, vL16, WS, imm=(k % 4) * 1024, soff=sreg, mods='sc1')


def not_poller(fn):
    l = a.newlabel('L_np')
    a(f's_cmp_eq_u32 {sWV}, 7')
    a(f's_cbranch_scc1 {l}')
    fn()
    a.label(l)


def only_poller(fn):
    l = a.newlabel('L_op')
    a(f's_cmp_lg_u32 {sWV}, 7')
    a(f's_cbranch_scc1 {l}')
    fn()
    a.label(l)


def pretouch(which, dst=31):
    if NOFAST or os.environ.get('NOTOUCH'):
        return
    a('v_lshrrev_b32 v14, 2, v1')
    a('v_and_b32 v15, 3, v1')
    a('v_lshlrev_b32 v15, 7, v15')
    if which in ('h1', 'x1'):
        if which == 'h1':
            a('v_mul_u32_u24 v14, 768, v14')
            a('v_add_u32 v14, v14, v15')
            a(f's_mul_i32 {sA}, {sT32}, 49152'); a(f's_mul_i32 {sB}, {sCQ}, {16 * 768}'); a(f's_add_u32 {sA}, {sA}, {sB}')
            a(f's_add_u32 {sA}, {sA}, {WS_H1 + 128}')
        else:
            a('v_lshl_add_u32 v14, v14, 9, v15')
            a(f's_lshl_b32 {sA}, {sT32}, 15'); a(f's_lshl_b32 {sC}, {sCQ}, 13'); a(f's_add_u32 {sA}, {sA}, {sC}')
            a(f's_add_u32 {sA}, {sA}, {WS_X1}')
        bload(dst, 1, 14, WS, soff=sA)
        return
    else:
        a('v_lshl_add_u32 v14, v14, 9, v15')
        a(f's_sub_u32 {sA}, {sNT3}, {sWV}')
        a(f's_lshl_b32 {sA}, {sA}, 10')
        a(f's_lshl_b32 {sB}, {sRB}, 1'); a(f's_lshr_b32 {sC}, {sWV}, 1'); a(f's_add_u32 {sB}, {sB}, {sC}')
        a(f's_mul_i32 {sB}, {sB}, {86 * 1024}'); a(f's_add_u32 {sA}, {sA}, {sB}')
        a(f's_and_b32 {sB}, {sWV}, 1'); a(f's_lshl_b32 {sC}, {sB}, 13'); a(f's_add_u32 {sA}, {sA}, {sC}')
        a(f's_add_u32 {sA}, {sA}, {WS_H3}')
        a(f's_movk_i32 {sC}, {63 * 128}')
        a(f's_cmp_eq_u32 {sB}, 1')
        a(f's_cselect_b32 {sB}, {23 * 128}, {sC}')
        a(f'v_min_u32 v14, {sB}, v14')
        a(f's_cmp_lt_u32 {sWV}, 4')
    a('s_cselect_b64 exec, -1, 0')
    bload(dst, 1, 14, WS, soff=sA)
    a('s_mov_b64 exec, -1')


def conv_touches():
    if os.environ.get('NOCT'):
        return
    a('v_lshlrev_b32 v14, 7, v1')
    a(f's_sub_u32 {sC}, {sWV}, 5')
    a(f's_lshl_b32 {sA}, {sJ}, 14'); a(f's_lshl_b32 {sB}, {sC}, 13'); a(f's_add_u32 {sA}, {sA}, {sB}')
    a(f's_cmp_lt_u32 {sC}, 2')
    a('s_cselect_b64 exec, -1, 0')
    bload(15, 1, 14, W1, soff=sA)
    a('s_mov_b64 exec, -1')


def wtouch(kind, dst):
    if os.environ.get('NOWT'):
        return
    a('v_lshlrev_b32 v14, 7, v1')
    a(f's_mul_i32 {sA}, {sJ}, {43 * 1024}')
    a(f's_sub_u32 {sB}, {sWV}, 2'); a(f's_lshl_b32 {sB}, {sB}, 13'); a(f's_add_u32 {sA}, {sA}, {sB}')
    if kind == 'w23':
        a(f's_add_u32 {sA}, {sA}, {WS_W3S}')
        a(f's_lshl_b32 {sB}, {sJ}, 14'); a(f's_lshl_b32 {sC}, {sWV}, 13'); a(f's_add_u32 {sB}, {sB}, {sC}')
        a(f's_add_u32 {sB}, {sB}, {WS_W2S}')
        a(f's_cmp_lt_u32 {sWV}, 2')
        a(f's_cselect_b32 {sA}, {sB}, {sA}')
        bload(dst, 1, 14, WS, soff=sA)
    else:
        a(f's_add_u32 {sA}, {sA}, {WS_W4S}')
        a(f's_cmp_ge_u32 {sWV}, 2')
        a('s_cselect_b64 exec, -1, 0')
        bload(dst, 1, 14, WS, soff=sA)
        a('s_mov_b64 exec, -1')


def set_flag(off, idx_sgpr, cluster=False):
    a(f's_lshl_b32 {sA}, {idx_sgpr}, 6')
    a(f's_add_u32 {sA}, {sA}, {off}')
    a(f'v_mov_b32 v14, {sT}')
    a('v_mov_b32 v15, 0')
    a(f's_cmp_eq_u32 {sWV}, 0')
    if cluster and not NOFAST:
        a(f's_cselect_b64 s[{sX0}:{sX0 + 1}], 1, 0')
        a(f's_and_b64 exec, s[{sX0}:{sX0 + 1}], s[{mFA}:{mFA + 1}]')
        bstore(14, 1, 15, WS, soff=sA)
        a(f's_and_b64 exec, s[{sX0}:{sX0 + 1}], s[{mSL}:{mSL + 1}]')
        bstore(14, 1, 15, WS, soff=sA, mods='sc1')
    else:
        a('s_cselect_b64 exec, 1, 0')
        bstore(14, 1, 15, WS, soff=sA, mods='sc1')
    a('s_mov_b64 exec, -1')


PV = 116


def poll(off, kind):
    lf = a.newlabel('L_pollskip'); lp = a.newlabel('L_poll'); lok = a.newlabel('L_pollok')
    a(f's_cmp_lg_u32 {sWV}, 7')
    a(f's_cbranch_scc1 {lf}')
    if kind == 'all':
        a(f'v_lshlrev_b32 {vr(PV)}, 6, v1')
    elif kind == 'own':
        a(f'v_and_b32 {vr(PV)}, 7, v1')
        a(f's_lshl_b32 {sA}, {sRB}, 3')
        a(f'v_add_u32 {vr(PV)}, {sA}, {vr(PV)}')
        a(f'v_lshlrev_b32 {vr(PV)}, 6, {vr(PV)}')
    else:
        a(f'v_min_u32 {vr(PV)}, 11, v1')
        a(f's_lshl_b32 {sA}, {sT32}, 2')
        a(f's_sub_u32 {sB}, {sA}, 4')
        a(f'v_add_u32 {vr(PV)}, {sB}, {vr(PV)}')
        a(f'v_cmp_gt_u32 vcc, 256, {vr(PV)}')
        a(f'v_mov_b32 {vr(PV + 1)}, {sA}')
        a(f'v_cndmask_b32 {vr(PV)}, {vr(PV + 1)}, {vr(PV)}, vcc')
        a(f'v_lshlrev_b32 {vr(PV)}, 6, {vr(PV)}')
    a(f's_mov_b32 {sSPIN}, 0')
    a.label(lp)
    if kind == 'all':
        for i in range(4):
            a(f's_mov_b32 {sB}, {off + 4096 * i}')
            bload(PV + 2 + i, 1, PV, WS, soff=sB, mods='sc1')
        a('s_waitcnt vmcnt(0)')
        tags_check([PV + 2, PV + 3, PV + 4, PV + 5], PV + 6, PV + 7)
    else:
        a(f's_mov_b32 {sB}, {off}')
        bload(PV + 2, 1, PV, WS, soff=sB, mods='sc1')
        a('s_waitcnt vmcnt(0)')
        a(f'v_cmp_ne_u32 vcc, {sT}, {vr(PV + 2)}')
        a('s_nop 0')
    a(f's_cbranch_vccz {lok}')
    spin_guard(lp)
    a.label(lok)
    a.label(lf)
    a('s_barrier')


def lane_masks():
    a('v_and_b32 v15, 3, v2')
    a(f'v_cmp_eq_u32 s[{mK1}:{mK1 + 1}], 1, v15')
    a(f'v_cmp_eq_u32 s[{mK2}:{mK2 + 1}], 2, v15')
    a(f'v_cmp_eq_u32 s[{mK3}:{mK3 + 1}], 3, v15')
    a('v_lshrrev_b32 v14, 2, v2')
    a(f'v_cmp_eq_u32 s[{mDG}:{mDG + 1}], v14, v3')


def stats_publish(addr, S, Q, t0):
    a(f'v_cndmask_b32 {vr(t0 + 1)}, {vr(Q)}, {vr(Q + 1)}, s[{mK1}:{mK1 + 1}]')
    a(f'v_mov_b32 {vr(t0)}, {vr(S)}')
    a(f'v_cndmask_b32 {vr(t0 + 1)}, {vr(t0 + 1)}, {vr(Q + 2)}, s[{mK2}:{mK2 + 1}]')
    a(f'v_cndmask_b32 {vr(t0 + 1)}, {vr(t0 + 1)}, {vr(Q + 3)}, s[{mK3}:{mK3 + 1}]')
    save_exec_mask(f's[{mDG}:{mDG + 1}]')
    a(f'ds_write_b64 {vr(addr)}, {vr(t0, 2)}')
    restore_exec()


def stats_finish(S, Q, m, r):
    a(f'v_mul_f32 {vr(m)}, {fconst(1.0 / 512)}, {vr(S)}')
    a(f'v_mul_f32 {vr(r)}, {fconst(1.0 / 512)}, {vr(Q)}')
    a(f'v_fma_f32 {vr(r)}, -{vr(m)}, {vr(m)}, {vr(r)}')
    a(f'v_max_f32 {vr(r)}, 0, {vr(r)}')
    a(f'v_add_f32 {vr(r)}, {fconst(1e-5)}, {vr(r)}')
    a(f'v_rsq_f32 {vr(r)}, {vr(r)}')


GC0 = -2.0 * 1.4426950408889634 * 0.7978845608028654
GC1 = GC0 * 0.044715


def gelu_consts(gk):
    for r, c in ((gk, GC0), (gk + 2, GC1), (gk + 4, 1.0)):
        a(f'v_mov_b32 {vr(r)}, {fconst(c)}')


def gelu(regs, tmp, gk):
    n = len(regs)
    for i in range(0, n, 2):
        x = regs[i]
        t = tmp + 2 * ((i // 2) & 1)
        a(f'v_pk_mul_f32 {vr(t, 2)}, {vr(x, 2)}, {vr(x, 2)}')
        a(f'v_pk_fma_f32 {vr(t, 2)}, {vr(t, 2)}, {vr(gk + 2, 2)}, {vr(gk, 2)} op_sel_hi:[1,0,0]')
        a(f'v_pk_mul_f32 {vr(t, 2)}, {vr(t, 2)}, {vr(x, 2)}')
        a(f'v_exp_f32 {vr(t)}, {vr(t)}')
        a(f'v_exp_f32 {vr(t + 1)}, {vr(t + 1)}')
        a(f'v_pk_add_f32 {vr(t, 2)}, {vr(t, 2)}, {vr(gk + 4, 2)} op_sel_hi:[1,0]')
        a(f'v_rcp_f32 {vr(t)}, {vr(t)}')
        a(f'v_rcp_f32 {vr(t + 1)}, {vr(t + 1)}')
        a(f'v_pk_mul_f32 {vr(x, 2)}, {vr(x, 2)}, {vr(t, 2)}')


def ln_apply(acc, cs, m, r, tmp):
    for k in (0, 2):
        a(f'v_pk_fma_f32 {vr(acc + k, 2)}, {vr(cs + k, 2)}, {vr(m, 2)}, {vr(acc + k, 2)} op_sel_hi:[1,0,1] neg_lo:[0,1,0] neg_hi:[0,1,0]')
        a(f'v_pk_mul_f32 {vr(acc + k, 2)}, {vr(acc + k, 2)}, {vr(r, 2)} op_sel_hi:[1,0]')


def pack_swap(dst, t0, t1):
    a(f'v_cvt_pk_bf16_f32 {vr(dst)}, {vr(t0)}, {vr(t0 + 1)}')
    a(f'v_cvt_pk_bf16_f32 {vr(dst + 2)}, {vr(t1)}, {vr(t1 + 1)}')
    a(f'v_cvt_pk_bf16_f32 {vr(dst + 1)}, {vr(t0 + 2)}, {vr(t0 + 3)}')
    a(f'v_cvt_pk_bf16_f32 {vr(dst + 3)}, {vr(t1 + 2)}, {vr(t1 + 3)}')
    a(f'v_permlane16_swap_b32 {vr(dst)}, {vr(dst + 2)}')
    a(f'v_permlane16_swap_b32 {vr(dst + 1)}, {vr(dst + 3)}')


ONES = 16
CS1 = 20


H1A, H1B = 12, 13
mZH = 70


def h1_addresses():
    a('v_lshrrev_b32 v14, 5, v1')
    a('v_mul_u32_u24 v14, 768, v14')
    a('v_and_b32 v15, 31, v1')
    a('v_lshl_add_u32 v14, v15, 4, v14')
    a(f's_mul_i32 {sA}, {sT32}, {64 * 768}')
    a(f's_lshl_b32 {sB}, {sCQ}, 3'); a(f's_add_u32 {sB}, {sB}, {sWV}'); a(f's_mul_i32 {sB}, {sB}, {2 * 768}')
    a(f's_add_u32 {sA}, {sA}, {sB}')
    a(f's_add_u32 {sA}, {sA}, {WS_H1 + 128}')
    a(f'v_add_u32 {vr(H1A)}, {sA}, v14')
    a(f's_cmp_eq_u32 {sT32}, 0')
    a(f's_cselect_b32 {sA}, {(-32) & 0xffffffff}, {(-(49152 - 512)) & 0xffffffff}') if False else None
    a(f's_mov_b32 {sA}, {hex((-(49152 - 512)) & 0xffffffff)}')
    a(f's_cmp_eq_u32 {sT32}, 0')
    a(f's_cselect_b32 {sA}, -32, {sA}')
    a(f's_cselect_b32 s{mZH}, 3, 0')
    a(f's_mov_b32 {sB}, {49152 - 512}')
    a(f's_cmp_eq_u32 {sT32}, 63')
    a(f's_cselect_b32 {sB}, 32, {sB}')
    a(f's_cselect_b32 s{mZH}, 0xc0000000, s{mZH}')
    a(f's_mov_b32 s{mZH + 1}, s{mZH}')
    a('v_cmp_gt_u32 vcc, 2, v15')
    a(f'v_mov_b32 v14, {sB}')
    a(f'v_mov_b32 v15, {sA}')
    a('v_cndmask_b32 v14, v14, v15, vcc')
    a(f'v_add_u32 {vr(H1B)}, {vr(H1A)}, v14')
    a('v_mov_b32 v31, 0')


def phase3():
    W1R, W2R = 128, 192
    W1o = W1
    lane_masks()
    for k in range(4):
        a(f'v_mov_b32 {vr(ONES + k)}, 0x3f803f80')
    a(f's_and_b32 {sLO}, {sWV}, 1')
    a(f's_lshr_b32 {sHI}, {sWV}, 1')
    a('v_lshrrev_b32 v24, 5, v1')
    a('v_lshlrev_b32 v24, 5, v24')
    a(f'v_xor_b32 v24, v24, {vr(vL16)}')
    a('v_lshrrev_b32 v14, 2, v2')
    a('v_lshl_add_u32 v25, v3, 3, v14')
    a('v_lshlrev_b32 v25, 6, v25')
    a('v_and_b32 v14, 3, v2')
    a('v_lshl_add_u32 v25, v14, 3, v25')
    a('v_and_b32 v14, 1, v3')
    a(f'v_xor_b32 v14, {sLO}, v14')
    a('v_lshl_add_u32 v25, v14, 5, v25')
    a(f's_lshl_b32 {sA}, {sHI}, 13')
    a(f'v_add_u32 v25, {sA}, v25')
    a(f's_lshl_b32 {sA}, {sHI}, 9')
    a(f's_add_u32 {sA}, {sA}, {L_CB}')
    a(f'v_lshl_add_u32 v26, v3, 5, {sA}')
    a(f's_lshl_b32 {sA}, {sWV}, 7')
    a(f's_add_u32 {sA}, {sA}, {L_ST}')
    a(f'v_lshl_add_u32 v27, v2, 3, {sA}')
    a(f's_lshl_b32 {sA}, {sLO}, 7')
    a(f's_add_u32 {sA}, {sA}, {L_ST}')
    a(f'v_lshl_add_u32 v28, v2, 3, {sA}')
    a(f's_lshl_b32 {sA}, {sHI}, 13')
    a(f's_lshl_b32 {sB}, {sLO}, 10')
    a(f's_add_u32 {sA}, {sA}, {sB}')
    a(f's_add_u32 {sA}, {sA}, {L_HF}')
    a(f'v_add_u32 v29, {sA}, {vr(vL16)}')
    a(f'v_add_u32 v30, {L_HF}, {vr(vL16)}')
    L_SLAB = 32768
    a('v_lshrrev_b32 v32, 4, v1')
    a('v_lshlrev_b32 v32, 10, v32')
    a('v_and_b32 v33, 15, v1')
    a('v_lshrrev_b32 v34, 1, v33')
    a('v_lshrrev_b32 v35, 4, v1')
    a('v_xor_b32 v34, v34, v35')
    a('v_and_b32 v33, 1, v33')
    a('v_lshlrev_b32 v33, 4, v33')
    a('v_lshl_add_u32 v36, v34, 5, v33')
    a('v_add_u32 v36, v36, v32')
    a('v_xor_b32 v34, 4, v34')
    a('v_lshl_add_u32 v37, v34, 5, v33')
    a('v_add_u32 v37, v37, v32')
    a(f's_lshr_b32 {sA}, {sWV}, 1'); a(f's_and_b32 {sA}, {sA}, 1'); a(f's_cmp_eq_u32 {sA}, 1')
    a('s_cselect_b64 vcc, -1, 0')
    a('v_cndmask_b32 v36, v36, v37, vcc')
    a(f's_lshl_b32 {sA}, {sWV}, 12'); a(f's_lshl_b32 {sB}, {sCQ}, 8'); a(f's_add_u32 {sA}, {sA}, {sB}')
    a(f's_lshl_b32 {sB}, {sWV}, 10'); a(f's_add_u32 {sB}, {sB}, {L_SLAB}')
    for k in range(16):
        if k:
            a(f's_add_u32 {sA}, {sA}, 32768'); a(f's_add_u32 {sB}, {sB}, 8192')
        dma(4, 36, W1o, sB, soff=sA)
    a('v_lshrrev_b32 v33, 2, v2')
    a('v_and_b32 v34, 1, v3')
    a('v_lshl_or_b32 v34, v34, 2, v33')
    a(f'v_xor_b32 v34, {sWV}, v34')
    a('v_lshl_add_u32 v35, v3, 3, v33')
    a('v_lshlrev_b32 v35, 8, v35')
    a('v_lshl_add_u32 v35, v34, 5, v35')
    a('v_and_b32 v33, 3, v2')
    a('v_lshl_add_u32 v35, v33, 3, v35')
    a(f'v_add_u32 v35, {L_SLAB}, v35')
    a('v_add_u32 v37, 65536, v35')
    h1_addresses()
    lw = a.newlabel('L_slabw')
    a(f's_cmp_eq_u32 {sWV}, 7')
    a(f's_cbranch_scc1 {lw}')
    a('s_waitcnt vmcnt(0)')
    a.label(lw)
    poll(WS_F2, 'all')
    stamp('S2ok')
    a(f's_lshl_b32 {sA}, {sT32}, 15')
    a(f's_lshl_b32 {sB}, {sWV}, 10')
    a(f's_add_u32 {sA}, {sA}, {sB}')
    a(f's_add_u32 {sA}, {sA}, {WS_X2B}')
    for k in range(4):
        if k:
            a(f's_add_u32 {sA}, {sA}, 8192')
        a(f's_add_u32 {sD}, {sB}, {L_X + k * 8192}')
        dma(4, 24, WS, sD, soff=sA, mods='sc1')
    a('v_lshlrev_b32 v14, 2, v0')
    a(f's_mov_b32 {sA}, {WS_MODF + 4 * 2048}')
    bload(38, 1, 14, WS, soff=sA, mods='sc1')
    a(f's_mov_b32 {sA}, {WS_MODF + 3 * 2048}')
    bload(39, 1, 14, WS, soff=sA, mods='sc1')
    for ks in range(16):
        ad, off = (35, 8192 * ks) if ks < 8 else (37, 8192 * (ks - 8))
        a(f'ds_read_b64_tr_b16 {vr(W1R + 4 * ks, 2)}, {vr(ad)} offset:{off}')
        a(f'ds_read_b64_tr_b16 {vr(W1R + 4 * ks + 2, 2)}, {vr(ad)} offset:{off + 1024}')
    a('v_lshlrev_b32 v15, 2, v0')
    a(f'v_add_u32 v15, {L_CB}, v15')
    a('s_waitcnt lgkmcnt(0)')
    for ks in range(16):
        acc = CS1 if ks % 2 == 0 else 32
        mfma(acc, W1R + 4 * ks, ONES, None if ks < 2 else acc)
    for k in range(4):
        a(f'v_add_f32 {vr(CS1 + k)}, {vr(CS1 + k)}, {vr(32 + k)}')
    stamp('W1regs')
    a('s_waitcnt vmcnt(0)')
    a('v_add_f32 v38, 1.0, v38')
    a('s_barrier')
    a('ds_write_b32 v15, v38')
    a('ds_write_b32 v15, v39 offset:2048')
    a(f's_lshl_b32 {sA}, {sRB}, 16')
    a(f's_lshr_b32 {sB}, {sWV}, 2'); a(f's_lshl_b32 {sB}, {sB}, 15'); a(f's_add_u32 {sA}, {sA}, {sB}')
    a(f's_lshl_b32 {sB}, {sCS}, 12'); a(f's_add_u32 {sA}, {sA}, {sB}')
    a(f's_and_b32 {sB}, {sWV}, 3'); a(f's_lshl_b32 {sB}, {sB}, 10'); a(f's_add_u32 {sA}, {sA}, {sB}')
    a(f's_add_u32 {sA}, {sA}, {WS_X2B}')
    a(f's_lshl_b32 {sB}, {sWV}, 10')
    a(f's_add_u32 {sB}, {sB}, {L_XS}')
    dma(4, vL16, WS, sB, soff=sA, mods='sc1')
    stamp('Xlanded')
    wfrag_base(sF, WS_W2S)
    wq = list(range(16))

    def w1n(n):
        for _ in range(n):
            if wq:
                wfrag_one(W2R, sF, wq.pop(0))
    XF = 32
    for i in range(4):
        a(f'ds_read_b64_tr_b16 {vr(XF + 4 * i, 2)}, v25 offset:{2048 * i}')
        a(f'ds_read_b64_tr_b16 {vr(XF + 2 + 4 * i, 2)}, v25 offset:{2048 * i + 256}')
    CO = 64

    def ldc(i):
        b = CO + 16 * i
        a(f'ds_read_b128 {vr(b, 4)}, v26 offset:{128 * i}')
        a(f'ds_read_b128 {vr(b + 4, 4)}, v26 offset:{128 * i + 16}')
        a(f'ds_read_b128 {vr(b + 8, 4)}, v26 offset:{2048 + 128 * i}')
        a(f'ds_read_b128 {vr(b + 12, 4)}, v26 offset:{2048 + 128 * i + 16}')
    SA, QA = 48, 52
    for i in range(4):
        a(f's_waitcnt lgkmcnt({6 - 2 * i})')
        f = XF + 4 * i
        mfma(SA, ONES, f, None if i == 0 else SA)
        mfma(QA, f, f, None if i == 0 else QA)
        w1n(1)
    stats_publish(27, SA, QA, 56)
    a('s_waitcnt lgkmcnt(0)')
    a('s_barrier')
    a('ds_read_b64 v[48:49], v28')
    a('ds_read_b64 v[50:51], v28 offset:256')
    a('ds_read_b64 v[52:53], v28 offset:512')
    a('ds_read_b64 v[54:55], v28 offset:768')
    ldc(0); ldc(1)
    a('s_waitcnt lgkmcnt(8)')
    ldc(2); ldc(3)
    a('v_pk_add_f32 v[48:49], v[48:49], v[50:51]')
    a('v_pk_add_f32 v[52:53], v[52:53], v[54:55]')
    a('v_pk_add_f32 v[48:49], v[48:49], v[52:53]')
    stats_finish(48, 49, 58, 56)
    a('v_mul_f32 v58, v58, v56')
    stamp('stats2')
    SA, QA = 48, 52
    for i in range(4):
        f = XF + 4 * i
        b = CO + 16 * i
        a(f's_waitcnt lgkmcnt({min(15, 12 - 4 * i + i)})')
        for p in range(4):
            z = 60 + 2 * (p & 1)
            a(f'v_lshlrev_b32 {vr(z)}, 16, {vr(f + p)}')
            a(f'v_and_b32 {vr(z + 1)}, 0xffff0000, {vr(f + p)}')
            a(f'v_pk_fma_f32 {vr(z, 2)}, {vr(z, 2)}, v[56:57], v[58:59] op_sel_hi:[1,0,0] neg_lo:[0,0,1] neg_hi:[0,0,1]')
            a(f'v_pk_fma_f32 {vr(z, 2)}, {vr(z, 2)}, {vr(b + 2 * p, 2)}, {vr(b + 8 + 2 * p, 2)}')
            a(f'v_cvt_pk_bf16_f32 {vr(f + p)}, {vr(z)}, {vr(z + 1)}')
            if p == 1:
                w1n(1)
        a(f'ds_write_b128 v29, {vr(f, 4)} offset:{2048 * i}')
        if i > 0:
            fp = f - 4
            mfma(SA, ONES, fp, None if i == 1 else SA)
            mfma(QA, fp, fp, None if i == 1 else QA)
    f = XF + 12
    mfma(SA, ONES, f, SA)
    mfma(QA, f, f, QA)
    a(f'v_add_u32 v27, {L_ST3 - L_ST}, v27')
    stats_publish(27, SA, QA, 60)
    a('s_waitcnt lgkmcnt(0)')
    a('s_barrier')
    stamp('norm')
    AR = 64

    def lda(ks):
        b = AR + 8 * (ks % 8)
        a(f'ds_read_b128 {vr(b, 4)}, v30 offset:{2048 * ks}')
        a(f'ds_read_b128 {vr(b + 4, 4)}, v30 offset:{2048 * ks + 1024}')
    for ks in range(6):
        lda(ks)
    a(f'v_lshlrev_b32 v14, 3, v2')
    a(f'v_add_u32 v14, {L_ST3}, v14')
    for tt in range(2):
        for kq in range(4):
            a(f'ds_read_b64 {vr(40 + 8 * tt + 2 * kq, 2)}, v14 offset:{256 * kq + 128 * tt}')
    GK = 56
    for ks in range(16):
        pend = min(15 - ks, 5) * 2 + (8 if ks == 0 else 0)
        a(f's_waitcnt lgkmcnt({min(pend, 15)})')
        b = AR + 8 * (ks % 8)
        mfma(32, W1R + 4 * ks, b, None if ks == 0 else 32)
        mfma(36, W1R + 4 * ks, b + 4, None if ks == 0 else 36)
        if ks % 2 == 0:
            w1n(1)
        if ks + 6 < 16:
            lda(ks + 6)
        if ks in (3, 5):
            tt = 0 if ks == 3 else 1
            bb = 40 + 8 * tt
            a(f'v_pk_add_f32 {vr(bb, 2)}, {vr(bb, 2)}, {vr(bb + 2, 2)}')
            a(f'v_pk_add_f32 {vr(bb + 4, 2)}, {vr(bb + 4, 2)}, {vr(bb + 6, 2)}')
            a(f'v_pk_add_f32 {vr(bb, 2)}, {vr(bb, 2)}, {vr(bb + 4, 2)}')
            stats_finish(bb, bb + 1, bb + 2, bb + 4)
        if ks == 7:
            gelu_consts(GK)
    for tt in range(2):
        bb = 40 + 8 * tt
        ln_apply(32 + 4 * tt, CS1, bb + 2, bb + 4, None)
    stamp('gemm1')
    gelu(list(range(32, 40)), 62, GK)
    pack_swap(40, 32, 36)
    bstore(40, 4, H1A, WS, mods='sc1')
    for k in range(4):
        a(f'v_cndmask_b32 {vr(48 + k)}, {vr(40 + k)}, v31, s[{mZH}:{mZH + 1}]')
    save_exec_mask(0xc0000003c0000003)
    bstore(48, 4, H1B, WS, mods='sc1')
    restore_exec()
    p5_tiles()
    a('s_waitcnt vmcnt(0)')
    stamp('h1stored')
    a('s_barrier')
    a(f's_lshl_b32 {sE}, {sT32}, 2'); a(f's_add_u32 {sE}, {sE}, {sCQ}')
    assert not wq
    set_flag(WS_F3, sE)
    wfrags(128, WS_W3S, 8, nt_sgpr=sNT3)


def p5_tiles():
    a(f's_mul_i32 {sNT3}, {sCS}, 11')
    a(f's_cmp_eq_u32 {sCS}, 7')
    a(f's_cselect_b32 {sA}, 1, 0')
    a(f's_sub_u32 {sNT3}, {sNT3}, {sA}')
    a(f's_add_u32 {sNT3}, {sNT3}, {sWV}')
    a(f's_cmp_ge_u32 {sCS}, 6')
    a(f's_cselect_b32 {sA}, 2, 3')
    a(f's_cmp_lt_u32 {sWV}, {sA}')
    a(f's_cselect_b32 {sNV}, 2, 1')
    rot_setup()


def phase4():
    W2R = 192
    poll(WS_F3, 'halo')
    stamp('S3ok')
    a(f's_mul_i32 {sA}, {sT32}, {64 * 768}')
    a(f's_lshl_b32 {sB}, {sWV}, 10')
    a(f's_add_u32 {sA}, {sA}, {sB}')
    a(f's_add_u32 {sA}, {sA}, {WS_H1}')
    for k in range(6):
        if k:
            a(f's_add_u32 {sA}, {sA}, 8192')
        a(f's_add_u32 {sD}, {sB}, {L_A4 + k * 8192}')
        dma(4, vL16, WS, sD, soff=sA, mods=LDM)
    a('v_mul_u32_u24 v24, 768, v3')
    a('v_lshl_add_u32 v24, v2, 4, v24')
    a(f'v_add_u32 v24, {L_A4 + 128 - 32}, v24')
    a(f's_lshl_b32 {sA}, {sCQ}, 2'); a(f's_lshr_b32 {sB}, {sWV}, 1'); a(f's_add_u32 {sA}, {sA}, {sB}')
    a(f's_lshl_b32 {sA}, {sA}, 11')
    a(f's_and_b32 {sB}, {sWV}, 1'); a(f's_lshl_b32 {sB}, {sB}, 9'); a(f's_add_u32 {sA}, {sA}, {sB}')
    a(f's_add_u32 {sA}, {sA}, {L_HF}')
    a('v_lshrrev_b32 v25, 1, v3')
    a('v_lshlrev_b32 v25, 8, v25')
    a('v_lshl_add_u32 v25, v2, 4, v25')
    a('v_and_b32 v14, 1, v3')
    a('v_lshl_add_u32 v25, v14, 3, v25')
    a(f'v_add_u32 v25, {sA}, v25')
    a('ds_read_b64 v[40:41], v25')
    a('ds_read_b64 v[42:43], v25 offset:1024')
    AR = 64
    shifts = [-1, 1, -2, 2]

    def lda(ks):
        b = AR + 8 * (ks % 8)
        s_ = shifts[ks >> 2]
        off = 3072 * ks + 32 + 16 * s_
        a(f'ds_read_b128 {vr(b, 4)}, v24 offset:{off}')
        a(f'ds_read_b128 {vr(b + 4, 4)}, v24 offset:{off + 256}')
    a('s_waitcnt vmcnt(3)')
    a('s_barrier')
    stamp('A4landed')
    wfrag_base(sF, WS_W3S, nt_sgpr=sNT3, first=8)
    for ks in range(6):
        lda(ks)
    for ks in range(16):
        if ks == 2:
            a('s_waitcnt vmcnt(1)')
            a('s_barrier')
        pend = min(15 - ks, 5) * 2
        a(f's_waitcnt lgkmcnt({pend})')
        b = AR + 8 * (ks % 8)
        mfma(32, W2R + 4 * ks, b, None if ks == 0 else 32)
        mfma(36, W2R + 4 * ks, b + 4, None if ks == 0 else 36)
        if ks % 2 == 0:
            wfrag_one(128 + 32, sF, ks // 2)
        if ks + 6 < 16:
            lda(ks + 6)
        if ks in (4, 6):
            tt = 0 if ks == 4 else 1
            for k in range(4):
                h = 40 + 2 * tt + (k >> 1)
                if k & 1:
                    a(f'v_and_b32 {vr(48 + 4 * tt + k)}, 0xffff0000, {vr(h)}')
                else:
                    a(f'v_lshlrev_b32 {vr(48 + 4 * tt + k)}, 16, {vr(h)}')
    stamp('gemm2')
    for k in range(0, 8, 2):
        a(f'v_pk_add_f32 {vr(32 + k, 2)}, {vr(32 + k, 2)}, {vr(48 + k, 2)}')
    pack_swap(40, 32, 36)
    a(f's_lshl_b32 {sA}, {sT32}, 15')
    a(f's_lshl_b32 {sB}, {sCQ}, 3'); a(f's_add_u32 {sB}, {sB}, {sWV}'); a(f's_lshl_b32 {sB}, {sB}, 10')
    a(f's_add_u32 {sA}, {sA}, {sB}')
    a(f's_add_u32 {sA}, {sA}, {WS_X1}')
    cstore(40, 4, vL16, sA)
    a('s_waitcnt vmcnt(0)')
    stamp('x1stored')
    a('s_barrier')
    a(f's_lshl_b32 {sE}, {sRB}, 3'); a(f's_add_u32 {sE}, {sE}, {sCS}')
    set_flag(WS_F4, sE, cluster=True)

    l1 = a.newlabel('L_p4one'); l2 = a.newlabel('L_p4j')
    a(f's_cmp_eq_u32 {sNV}, 1')
    a(f's_cbranch_scc1 {l1}')
    a(f's_add_u32 {sE}, {sNT3}, 8')
    wfrags(192, WS_W3S, 16, nt_sgpr=sE)
    a.label(l1)


def w4reg(s_):
    return 192 + 4 * s_ if s_ < 16 else 128 + 4 * (s_ - 16)


sWO, sWLIM, sWB, sRO, sRBAD = 's69', 's70', 's71', 's72', 's73'


def rot_setup():
    a(f's_movk_i32 {sWLIM}, {21 * 1024}')
    a(f's_cmp_ge_u32 {sWV}, 4')
    a(f's_cselect_b32 {sWLIM}, {20 * 1024}, {sWLIM}')
    a(f's_cselect_b32 {sRBAD}, {21 * 2048}, -1')
    a(f's_and_b32 {sB}, {sWV}, 3')
    a(f's_lshl_b32 {sWB}, {sCS}, 2'); a(f's_add_u32 {sWB}, {sWB}, {sB}'); a(f's_mul_i32 {sWB}, {sWB}, 43')
    a(f's_lshr_b32 {sB}, {sWV}, 2'); a(f's_mul_i32 {sB}, {sB}, 22'); a(f's_add_u32 {sWB}, {sWB}, {sB}')
    a(f's_lshl_b32 {sWB}, {sWB}, 10'); a(f's_add_u32 {sWB}, {sWB}, {WS_W4S}')


def w4_base(sreg, first=0):
    pass


def w4_one(sreg, first, k):
    s_ = first + k
    if s_ == 21:
        a(f's_add_u32 {sC}, {sWB}, {sWLIM}')
        bload(w4reg(s_), 4, vL16, WS, soff=sC, mods='sc1')
    else:
        base4 = (s_ // 4) * 4
        if s_ % 4 == 0 or k == 0:
            a(f's_add_u32 {sWO}, {sWB}, {base4 * 1024}')
        bload(w4reg(s_), 4, vL16, WS, imm=(s_ % 4) * 1024, soff=sWO, mods='sc1')


def w4_loads(first, n):
    for k in range(n):
        w4_one(None, first, k)


def phase5():
    W3A, W3B = 128, 192
    CSA, CSB = 24, 28
    for k in range(4):
        a(f'v_mov_b32 {vr(ONES + k)}, 0x3f803f80')
    a(f's_and_b32 {sLO}, {sWV}, 3')
    a(f's_lshr_b32 {sHI}, {sWV}, 2')
    a('v_lshrrev_b32 v14, 2, v2')
    a('v_lshl_add_u32 v14, v3, 2, v14')
    a('v_lshlrev_b32 v14, 6, v14')
    a('v_and_b32 v15, 3, v2')
    a('v_lshl_add_u32 v14, v15, 3, v14')
    a(f's_lshl_b32 {sA}, {sHI}, 12'); a(f's_lshl_b32 {sB}, {sLO}, 10'); a(f's_add_u32 {sA}, {sA}, {sB}')
    a(f's_add_u32 {sA}, {sA}, {L_XS}')
    a(f'v_add_u32 v14, {sA}, v14')
    a(f'ds_read_b64_tr_b16 {vr(XS, 2)}, v14')
    a(f'ds_read_b64_tr_b16 {vr(XS + 2, 2)}, v14 offset:32')
    a(f's_lshr_b32 {sA}, {sLO}, 1'); a(f's_lshl_b32 {sA}, {sA}, 15')
    a(f's_and_b32 {sB}, {sLO}, 1'); a(f's_lshl_b32 {sB}, {sB}, 8'); a(f's_add_u32 {sA}, {sA}, {sB}')
    a(f's_lshl_b32 {sB}, {sHI}, 14'); a(f's_add_u32 {sA}, {sA}, {sB}')
    a(f'v_add_u32 v20, {sA}, {vr(vVB)}')
    a(f's_lshl_b32 {sA}, {sWV}, 7'); a(f's_add_u32 {sA}, {sA}, {L_ST5}')
    a(f'v_lshl_add_u32 v21, v2, 3, {sA}')
    a(f's_lshl_b32 {sA}, {sHI}, 15'); a(f's_lshl_b32 {sB}, {sCS}, 12'); a(f's_add_u32 {sA}, {sA}, {sB}')
    a(f's_lshl_b32 {sB}, {sLO}, 10'); a(f's_add_u32 {sA}, {sA}, {sB}')
    a('v_lshrrev_b32 v22, 1, v3'); a('v_lshlrev_b32 v22, 9, v22')
    a('v_lshl_add_u32 v22, v2, 4, v22')
    a('v_and_b32 v14, 1, v3'); a('v_lshl_add_u32 v22, v14, 3, v22')
    a(f'v_add_u32 v22, {sA}, v22')
    a('v_lshlrev_b32 v23, 3, v2')
    a(f'v_add_u32 v23, {L_ST5}, v23')
    a('s_waitcnt lgkmcnt(0)')
    stamp('W3landed')
    poll(WS_F4, 'own')
    stamp('S4ok')
    a(f's_lshl_b32 {sA}, {sRB}, 16')
    a(f's_lshl_b32 {sB}, {sHI}, 15'); a(f's_lshl_b32 {sC}, {sLO}, 10'); a(f's_add_u32 {sB}, {sB}, {sC}')
    a(f's_add_u32 {sA}, {sA}, {sB}'); a(f's_add_u32 {sA}, {sA}, {WS_X1}')
    for j in range(8):
        if j:
            a(f's_add_u32 {sA}, {sA}, 4096')
        a(f's_add_u32 {sD}, {sB}, {L_X1 + 4096 * j}')
        dma(4, vL16, WS, sD, soff=sA, mods=LDM)
    a('s_waitcnt vmcnt(8)')
    for ks in range(16):
        acc = CSA if ks % 2 == 0 else 32
        mfma(acc, W3A + 4 * ks, ONES, None if ks < 2 else acc)
    lnb = a.newlabel('L_nob')
    a(f's_cmp_lt_u32 {sNV}, 2')
    a(f's_cbranch_scc1 {lnb}')
    for ks in range(16):
        acc = CSB if ks % 2 == 0 else 36
        mfma(acc, W3B + 4 * ks, ONES, None if ks < 2 else acc)
    for k in range(4):
        a(f'v_add_f32 {vr(CSB + k)}, {vr(CSB + k)}, {vr(36 + k)}')
    a.label(lnb)
    for k in range(4):
        a(f'v_add_f32 {vr(CSA + k)}, {vr(CSA + k)}, {vr(32 + k)}')
    AR = 64
    ACA, ACB = 32, 48
    SA, QA, TP, MR = 112, 116, 120, 120
    a(f's_lshl_b32 {sA}, {sRB}, 1'); a(f's_mul_i32 {sA}, {sA}, {86 * 1024}')
    a(f's_lshl_b32 {sB}, {sNT3}, 10'); a(f's_add_u32 {sA}, {sA}, {sB}'); a(f's_add_u32 {sE}, {sA}, {WS_H3}')

    def lda(ks, q):
        b = AR + 16 * (ks % 3)
        for tt in range(4):
            a(f'ds_read_b128 {vr(b + 4 * tt, 4)}, {vr(vVB)} offset:{32768 * (tt >> 1) + 2048 * ks + 256 * (tt & 1)}')
        q += [('a', ks)] * 4

    def wait_for(q, key):
        last = max(i for i, o in enumerate(q) if o == key)
        a(f's_waitcnt lgkmcnt({min(15, len(q) - 1 - last)})')

    def epi_steps(acc, cs, tileoff, tmp, gk, pk):
        steps = []
        for tt in range(4):
            mr = MR + 2 * tt
            def f(tt=tt, mr=mr):
                for k in (0, 2):
                    r = acc + 4 * tt + k
                    a(f'v_pk_fma_f32 {vr(r, 2)}, {vr(cs + k, 2)}, {vr(mr, 2)}, {vr(r, 2)} op_sel_hi:[1,0,1] neg_lo:[0,1,0] neg_hi:[0,1,0]')
                    a(f'v_pk_mul_f32 {vr(r, 2)}, {vr(r, 2)}, {vr(mr, 2)} op_sel:[0,1] op_sel_hi:[1,1]')
            steps.append(f)
        for i in range(8):
            steps.append(lambda i=i: gelu([acc + 2 * i, acc + 2 * i + 1], tmp + 2 * (i & 1), gk))
        for T in range(2):
            def f(T=T):
                d = pk + 4 * T
                pack_swap(d, acc + 8 * T, acc + 8 * T + 4)
                a(f's_add_u32 {sA}, {sE}, {tileoff + T * 86 * 1024}')
                bstore(d, 4, vL16, WS, soff=sA, mods='sc1')
            steps.append(f)
        return steps

    def stats_pass():
        a('s_waitcnt vmcnt(0)')
        a('s_barrier')
        stamp('x1landed')
        for k in range(8):
            a(f'ds_read_b128 {vr(AR + 4 * k, 4)}, v20 offset:{2048 * k}')
        a(f'ds_read_b64 {vr(X1R, 2)}, v22')
        a(f'ds_read_b64 {vr(X1R + 2, 2)}, v22 offset:256')
        for k in range(8):
            a(f's_waitcnt lgkmcnt({9 - k})')
            f = AR + 4 * k
            sa, qa = (SA, QA) if k % 2 == 0 else (ACB, ACB + 4)
            mfma(sa, ONES, f, None if k < 2 else sa)
            mfma(qa, f, f, None if k < 2 else qa)
        for k in range(4):
            a(f'v_add_f32 {vr(SA + k)}, {vr(SA + k)}, {vr(ACB + k)}') if k == 0 else None
            a(f'v_add_f32 {vr(QA + k)}, {vr(QA + k)}, {vr(ACB + 4 + k)}')
        stats_publish(21, SA, QA, TP)
        a('s_waitcnt lgkmcnt(0)')
        a('s_barrier')
        stamp('k5b')

    def loop1(two):
        q = []
        SF = AR + 32
        for tt in range(4):
            a(f'ds_read_b64 {vr(SF + 4 * tt, 2)}, v23 offset:{128 * tt}')
            a(f'ds_read_b64 {vr(SF + 4 * tt + 2, 2)}, v23 offset:{512 + 128 * tt}')
        q += [('f', 0)] * 8
        lda(0, q); lda(1, q)
        wait_for(q, ('f', 0))
        for tt in range(4):
            bb = SF + 4 * tt
            mr = MR + 2 * tt
            a(f'v_pk_add_f32 {vr(bb, 2)}, {vr(bb, 2)}, {vr(bb + 2, 2)}')
            stats_finish(bb, bb + 1, mr, mr + 1)
        nxt = 2
        for ks in range(16):
            wait_for(q, ('a', ks))
            b = AR + 16 * (ks % 3)
            for tt in range(4):
                mfma(ACA + 4 * tt, W3A + 4 * ks, b + 4 * tt, None if ks == 0 else ACA + 4 * tt)
                if two:
                    mfma(ACB + 4 * tt, W3B + 4 * ks, b + 4 * tt, None if ks == 0 else ACB + 4 * tt)
            if not two:
                w4_one(None, 0, ks)
            while nxt < 16 and nxt <= ks + 2:
                lda(nxt, q); nxt += 1
            if ks == 8:
                wtouch('w4', 15)
            if ks == 4 and os.environ.get('OUTTOUCH'):
                a('v_lshlrev_b32 v14, 10, v1')
                a(f's_lshl_b32 {sA}, {sRB}, 16'); a(f's_lshl_b32 {sB}, {sCS}, 7'); a(f's_add_u32 {sA}, {sA}, {sB}')
                a(f's_cmp_eq_u32 {sWV}, {os.environ["OUTTOUCH"]}')
                a('s_cselect_b64 exec, -1, 0')
                bload(15, 1, 14, OUT, soff=sA)
                a('s_mov_b64 exec, -1')

    stats_pass()
    a(f's_cmp_ge_u32 {sWV}, 4')
    lpr = a.newlabel('L_prio')
    a(f's_cbranch_scc0 {lpr}')
    a('s_setprio 1')
    a.label(lpr)
    l1 = a.newlabel('L_one'); lj = a.newlabel('L_p5j')
    a(f's_cmp_eq_u32 {sNV}, 1')
    a(f's_cbranch_scc1 {l1}')
    loop1(True)
    stamp('gemm3')
    GK, TMP, PK = 64, 72, 76
    gelu_consts(GK)
    for f in epi_steps(ACA, CSA, 0, TMP, GK, PK):
        f()
    stamp('loop2')
    for f in epi_steps(ACB, CSB, 8 * 1024, TMP, GK, PK + 8):
        f()
    stamp('epiB')
    a('s_waitcnt vmcnt(0) lgkmcnt(0)')
    a(f's_branch {lj}')
    a.label(l1)
    loop1(False)
    w4_loads(16, 6)
    stamp('gemm3')
    GK, TMP, PK = 64, 72, 76
    gelu_consts(GK)
    for f in epi_steps(ACA, CSA, 0, TMP, GK, PK):
        f()
    stamp('epiB')
    a('s_waitcnt vmcnt(0) lgkmcnt(0)')
    a.label(lj)
    a('s_setprio 0')
    stamp('h3stored')
    a('s_barrier')
    a(f's_lshl_b32 {sE}, {sRB}, 3'); a(f's_add_u32 {sE}, {sE}, {sCS}')
    set_flag(WS_F5, sE)

    l1 = a.newlabel('L_w4one')
    a(f's_cmp_eq_u32 {sNV}, 1')
    a(f's_cbranch_scc1 {l1}')
    w4_loads(0, 16)
    w4_loads(16, 6)
    a.label(l1)


def p6_tail_prep():
    for e in range(2):
        for k in range(4):
            for (src, dst) in ((X1R + 2 * e + (k >> 1), 152 + 4 * e + k), (XS + 2 * e + (k >> 1), 160 + 4 * e + k)):
                if k & 1:
                    a(f'v_and_b32 {vr(dst)}, 0xffff0000, {vr(src)}')
                else:
                    a(f'v_lshlrev_b32 {vr(dst)}, 16, {vr(src)}')
    a(f's_lshl_b32 {sA}, {sRB}, 6'); a(f's_lshl_b32 {sB}, {sHI}, 5'); a(f's_add_u32 {sA}, {sA}, {sB}')
    a(f's_lshl_b32 {sA}, {sA}, 10')
    a(f's_lshl_b32 {sB}, {sCS}, 7'); a(f's_add_u32 {sA}, {sA}, {sB}')
    a(f's_lshl_b32 {sB}, {sLO}, 5'); a(f's_add_u32 {sNT3}, {sA}, {sB}')
    a('v_lshlrev_b32 v36, 10, v2')
    a('v_lshl_add_u32 v36, v3, 3, v36')


def phase6():
    a(f's_lshl_b32 {sA}, {sCS}, 6'); a(f's_lshl_b32 {sB}, {sLO}, 4'); a(f's_add_u32 {sA}, {sA}, {sB}')
    a(f's_lshl_b32 {sA}, {sA}, 2'); a(f's_add_u32 {sA}, {sA}, {WS_MODF + 5 * 2048}')
    a('v_lshlrev_b32 v14, 4, v3')
    bload(16, 4, 14, WS, soff=sA, mods='sc1')
    poll(WS_F5, 'own')
    stamp('S5ok')
    a(f's_lshl_b32 {sA}, {sRB}, 1'); a(f's_lshr_b32 {sB}, {sWV}, 1'); a(f's_and_b32 {sB}, {sB}, 1')
    a(f's_add_u32 {sA}, {sA}, {sB}'); a(f's_mul_i32 {sA}, {sA}, {86 * 1024}')
    a(f's_mul_i32 {sB}, {sHI}, {44 * 1024}'); a(f's_add_u32 {sA}, {sA}, {sB}')
    a(f's_and_b32 {sB}, {sWV}, 1'); a(f's_lshl_b32 {sB}, {sB}, 10'); a(f's_add_u32 {sA}, {sA}, {sB}')
    a(f's_add_u32 {sE}, {sA}, {WS_H3}')
    a(f's_lshl_b32 {sF}, {sWV}, 10')

    def ring(s_):
        if 'nodma' in XP and s_ >= 3:
            return
        a(f's_add_u32 {sC}, {sE}, {2048 * s_}')
        if s_ == 21:
            a(f's_cmp_eq_u32 {sHI}, 1')
            a(f's_cselect_b32 {sC}, 0x7ff00000, {sC}')
        a(f's_add_u32 {sD}, {sF}, {8192 * (s_ % NSLOT)}')
        dma(4, vL16, WS, sD, soff=sC, mods=LDM)
    AHEAD = int(os.environ.get('AHEAD', '6'))
    RAMP = int(os.environ.get('RAMP', '14'))
    for s_ in range(AHEAD):
        ring(s_)
    a(f's_lshl_b32 {sA}, {sHI}, 12')
    a(f'v_add_u32 v32, {sA}, {vr(vVB)}')
    a('v_add_u32 v33, 65536, v32')
    a('v_add_u32 v34, 131072, v32')
    AR = 64
    ACC = 40

    def lda(s_):
        b = AR + 16 * (s_ % 4)
        off = 8192 * (s_ % NSLOT)
        ad, base = (32, 0) if off < 65536 else (33, 65536) if off < 131072 else (34, 131072)
        for tt in range(4):
            if 'nord' in XP and s_ > 3:
                continue
            a(f'ds_read_b128 {vr(b + 4 * tt, 4)}, {vr(ad)} offset:{off - base + 2048 * (tt >> 1) + 256 * (tt & 1)}')
    guar = {0: 3, 2: 7, 6: 11, 10: 15, 14: 19, 18: 22}
    issued = AHEAD
    q = []
    nxt = 0
    bound = 0
    gi = 0
    for s_ in range(22):
        if s_ in guar:
            bound = guar[s_]
            while issued < bound:
                ring(issued); issued += 1
            if 'novm' not in XP or s_ == 0:
                a(f's_waitcnt vmcnt({issued - bound})')
            if 'nobar' not in XP or s_ == 0:
                a('s_barrier')
            stamp(f'g{gi}'); gi += 1
            last_barrier = s_
        while nxt < bound and nxt <= s_ + 2:
            lda(nxt); q += [nxt] * 4; nxt += 1
        nper = 2 if issued < RAMP else 1
        for _ in range(nper):
            if issued < 22 and (issued < NSLOT or issued - NSLOT < last_barrier):
                ring(issued); issued += 1
        last = max(i for i, o in enumerate(q) if o == s_)
        a(f's_waitcnt lgkmcnt({min(15, len(q) - 1 - last)})')
        b = AR + 16 * (s_ % 4)
        for tt in range(4):
            mfma(ACC + 4 * tt, w4reg(s_), b + 4 * tt, None if s_ == 0 else ACC + 4 * tt)
        while nxt < bound and nxt <= s_ + 3:
            lda(nxt); q += [nxt] * 4; nxt += 1
        if s_ in (8, 9):
            e = s_ - 8
            for k in range(4):
                for (src, dst) in ((X1R + 2 * e + (k >> 1), 16 + 8 * e + k + 4), (XS + 2 * e + (k >> 1), 216 + 4 * e + k)):
                    pass
        if s_ == 12:
            p6_tail_prep()
    assert issued == 22
    stamp('gemm4')
    a(f's_lshl_b32 {sA}, {sWV}, 11')
    a(f's_add_u32 {sA}, {sA}, {L_EX}')
    a(f'v_add_u32 v35, {sA}, {vr(vL16)}')
    lk1 = a.newlabel('L_k1'); lkd = a.newlabel('L_kd')
    a(f's_cmp_eq_u32 {sHI}, 1')
    a(f's_cbranch_scc1 {lk1}')
    a(f'ds_write_b128 v35, {vr(ACC + 8, 4)}')
    a(f'ds_write_b128 v35, {vr(ACC + 12, 4)} offset:1024')
    a(f's_branch {lkd}')
    a.label(lk1)
    a(f'ds_write_b128 v35, {vr(ACC, 4)}')
    a(f'ds_write_b128 v35, {vr(ACC + 4, 4)} offset:1024')
    for k in range(8):
        a(f'v_mov_b32 {vr(ACC + k)}, {vr(ACC + 8 + k)}')
    a.label(lkd)
    a('s_waitcnt lgkmcnt(0)')
    a('s_barrier')
    a(f's_xor_b32 {sA}, {sWV}, 4')
    a(f's_lshl_b32 {sA}, {sA}, 11')
    a(f's_add_u32 {sA}, {sA}, {L_EX}')
    a(f'v_add_u32 v35, {sA}, {vr(vL16)}')
    stamp('exch')
    a('ds_read_b128 v[64:67], v35')
    a('ds_read_b128 v[68:71], v35 offset:1024')
    a('s_waitcnt lgkmcnt(0)')
    for e in range(2):
        for k in range(4):
            r = ACC + 4 * e + k
            a(f'v_add_f32 {vr(r)}, {vr(r)}, {vr(64 + 4 * e + k)}')
            a(f'v_add_f32 {vr(r)}, {vr(r)}, {vr(152 + 4 * e + k)}')
            a(f'v_fma_f32 {vr(r)}, {vr(16 + k)}, {vr(r)}, {vr(160 + 4 * e + k)}')
        a(f'v_cvt_pk_bf16_f32 {vr(88 + 2 * e)}, {vr(ACC + 4 * e)}, {vr(ACC + 4 * e + 1)}')
        a(f'v_cvt_pk_bf16_f32 {vr(89 + 2 * e)}, {vr(ACC + 4 * e + 2)}, {vr(ACC + 4 * e + 3)}')
    OM = os.environ.get('OUTM', '')
    bstore(88, 2, 36, OUT, soff=sNT3, mods=OM)
    a(f's_add_u32 {sNT3}, {sNT3}, 16384')
    bstore(90, 2, 36, OUT, soff=sNT3, mods=OM)


def finish():
    lf = a.newlabel('L_fin')
    a('s_cmp_lg_u32 s2, 0')
    a(f's_cbranch_scc1 {lf}')
    a(f's_cmp_lg_u32 {sWV}, 0')
    a(f's_cbranch_scc1 {lf}')
    a(f'v_mov_b32 v14, {sT}')
    a(f'v_mov_b32 v15, {WS_EPOCH}')
    save_exec_mask('1')
    bstore(14, 1, 15, WS, mods='sc1')
    restore_exec()
    a.label(lf)
    if PADTO or STAMPS:
        a('s_waitcnt vmcnt(0)')
    if PADTO:
        lp = a.newlabel('L_pad'); lq = a.newlabel('L_padq')
        a('s_cmp_lg_u32 s2, 0')
        a(f's_cbranch_scc1 {lq}')
        a(f's_cmp_lg_u32 {sWV}, 0')
        a(f's_cbranch_scc1 {lq}')
        a.label(lp)
        a('s_memrealtime s[98:99]')
        a('s_waitcnt lgkmcnt(0)')
        a('s_sub_u32 s98, s98, s3')
        if PROBE:
            a('s_sub_u32 s99, s59, s3')
            a('s_sub_u32 s98, s98, s99')
        a(f's_cmp_lt_u32 s98, {PADTO * 100}')
        a(f's_cbranch_scc1 {lp}')
        a.label(lq)
    stamp('end')
    if STAMPS:
        for i in range(len(stamp_names)):
            a(f'v_writelane_b32 v255, s{STAMP_REGS[i]}, {i}')
        a(f's_lshl_b32 {sA}, s2, 3')
        a(f's_add_u32 {sA}, {sA}, {sWV}')
        a(f's_lshl_b32 {sA}, {sA}, 8')
        a(f's_add_u32 {sA}, {sA}, {WS_DBG}')
        a(f'v_lshl_add_u32 v20, v1, 2, {sA}')
        bstore(255, 1, 20, WS)
        a('s_waitcnt vmcnt(0)')
        open('stamps.txt', 'w').write('\n'.join(stamp_names) + '\n')
    a.label('L_END')
    a('s_endpgm')


def build(debug=True):
    global DEBUG
    DEBUG = debug
    prologue()
    phase_a()
    phase_b()
    for name, fn in (('3', phase3), ('4', phase4), ('5', phase5), ('6', phase6)):
        if STOP_AFTER and STOP_AFTER < name and STOP_AFTER != '':
            break
        fn()
    finish()
    nops = a.fast_hazard_pass()
    errs = a.check_waits([{'s5': w, 's89': nv} for w in range(8) for nv in ((1, 2) if w < 3 else (1,))])
    for e in errs:
        print('WAIT-CHECK:', e, file=sys.stderr)
    hdr = open('adaLN_cond__ssm_conv_s4__mixer_s_mlp__prompt.s.ref').read().split('\n')
    head = [l for l in hdr if l.startswith(';') and '@launch' not in l and 'Override' not in l and 'grid=ceil' not in l]
    txt = '\n'.join(head) + '\n; @launch grid=(256,1,1) block=(512,1,1) lds=163840\n'
    txt += '.amdgcn_target "amdgcn-amd-amdhsa--gfx950"\n.text\n'
    txt += f'.globl {KNAME}\n.p2align 8\n.type {KNAME},@function\n{KNAME}:\n'
    txt += a.text()
    txt += f'''.section .rodata,"a"
.p2align 6
.amdhsa_kernel {KNAME}
  .amdhsa_next_free_vgpr 256
  .amdhsa_next_free_sgpr 102
  .amdhsa_accum_offset 256
  .amdhsa_group_segment_fixed_size 0
  .amdhsa_kernarg_size 152
  .amdhsa_user_sgpr_count 2
  .amdhsa_user_sgpr_kernarg_segment_ptr 1
  .amdhsa_system_sgpr_workgroup_id_x 1
  .amdhsa_float_denorm_mode_32 3
.end_amdhsa_kernel
'''
    print(f'instructions: {len(a.lines)}  hazard nops: {nops}', file=sys.stderr)
    return txt


if __name__ == '__main__':
    out = sys.argv[1] if len(sys.argv) > 1 else 'k.s'
    open(out, 'w').write(build(debug=os.environ.get('NODEBUG') is None))
```
